```python
import torch

def _softmax(x, axis=-1):
    return torch.softmax(x, dim=axis)

def _gelu(x):
    return torch.nn.functional.gelu(x, approximate='tanh')

def _silu(x):
    return torch.nn.functional.silu(x)

def _sigmoid(x):
    return torch.sigmoid(x)

def _layernorm(x, axis=-1, eps=1e-05):
    m = x.mean(dim=axis, keepdim=True)
    v = x.var(dim=axis, keepdim=True, unbiased=False)
    return (x - m) / torch.sqrt(v + eps)

def _scatter_add(tgt, idx, src, axis=0):
    return tgt.clone().index_add_(axis, idx, src)

def _segment_sum(src, seg, n):
    out = torch.zeros((n,) + src.shape[1:], dtype=src.dtype)
    return out.index_add_(0, seg, src)

def _pad(x, pw):
    flat = tuple((v for pair in reversed(pw) for v in pair))
    return torch.nn.functional.pad(x, flat)
kernel_name = 'gather_scatter__molecular_angular_painn__graph'

def setup_inputs():

    _w = lambda a: (lambda t: t.to(torch.bfloat16) if t.is_floating_point() else t)(torch.as_tensor(a))
    N, deg, D = (25000, 32, 64)
    n_rbf = max(0, 4)
    E = N * deg
    cutoff = 5.0
    freqs = (torch.arange(1, n_rbf + 1) * torch.pi / cutoff).to(float)
    return {'sv': _w((lambda *s: torch.randn(*s, dtype=torch.bfloat16) * 0.4)(N, 4, D) * 0.3), 'pos': _w((lambda *s: torch.randn(*s, dtype=torch.bfloat16) * 3.2)(N, 3) * 1.2), 'src': _w((lambda lo, hi, *s: torch.randint(lo, hi, s))(0, N, E).to(torch.int64)), 'dst': _w((lambda lo, hi, *s: torch.randint(lo, hi, s))(0, N, E).to(torch.int64)), 'freqs': _w(freqs), 'w_phi1': _w((lambda *s: torch.randn(*s, dtype=torch.bfloat16) * 3.2)(D, D) / D ** 0.5), 'w_phi2': _w((lambda *s: torch.randn(*s, dtype=torch.bfloat16) * 3.2)(D, 3 * D) / D ** 0.5), 'w_rbf': _w((lambda *s: torch.randn(*s, dtype=torch.bfloat16) * 3.2)(n_rbf, 3 * D) / n_rbf ** 0.5)}

def reference(sv, pos, src, dst, freqs, w_phi1, w_phi2, w_rbf):
    N, _, D = sv.shape
    E = src.shape[0]
    PI, cutoff = (3.141592653589793, 5.0)
    s, v = (sv[:, 0, :].clone(), sv[:, 1:, :].clone())
    r_vec = pos[src] - pos[dst]
    d = torch.sqrt((r_vec * r_vec).sum(-1) + 1e-08)
    r_hat = r_vec / d[:, None]
    rbf = torch.sin(d[:, None] * freqs[None, :]) / d[:, None]
    fcut = 0.5 * (torch.cos(PI * d / cutoff) + 1.0)
    fcut = torch.where(d < cutoff, fcut, 0.0 * d)
    Wf = rbf @ w_rbf * fcut[:, None]
    phi = (_silu(s @ w_phi1) @ w_phi2)[src]
    m = phi * Wf
    m_s, m_vv, m_vr = (m[:, :D].clone(), m[:, D:2 * D].clone(), m[:, 2 * D:].clone())
    ds = _segment_sum(m_s, dst, N)
    dv_e = m_vv[:, None, :] * v[src] + m_vr[:, None, :] * r_hat[:, :, None]
    dv = _segment_sum(dv_e.reshape(E, 3 * D), dst, N).reshape(N, 3, D)
    return sv + torch.concatenate([ds[:, None, :], dv], axis=1)
```

```python
import re

TRANS = ('v_exp_f32','v_log_f32','v_rcp_f32','v_rsq_f32','v_sqrt_f32','v_sin_f32','v_cos_f32','v_rcp_iflag_f32')
NO_DST = ('v_cmp', 's_cmp', 's_waitcnt', 's_barrier', 's_nop', 's_endpgm', 's_branch', 's_cbranch', 's_setprio',
          'buffer_store', 'global_store', 'ds_write', 's_bitcmp', 's_sleep')

def regs_of(tok):
    tok = tok.strip()
    tok = tok.lstrip('-')
    m = re.fullmatch(r'abs\((.*)\)', tok)
    if m: tok = m.group(1)
    tok = tok.strip('|')
    m = re.fullmatch(r'([vsa])(\d+)', tok)
    if m: return {(m.group(1), int(m.group(2)))}
    m = re.fullmatch(r'([vsa])\[(\d+):(\d+)\]', tok)
    if m: return {(m.group(1), i) for i in range(int(m.group(2)), int(m.group(3)) + 1)}
    if tok == 'vcc': return {('s', 106), ('s', 107)}
    if tok == 'vcc_lo': return {('s', 106)}
    if tok == 'vcc_hi': return {('s', 107)}
    if tok == 'exec': return {('s', 126), ('s', 127)}
    if tok == 'exec_lo': return {('s', 126)}
    if tok == 'exec_hi': return {('s', 127)}
    if tok == 'm0': return {('s', 124)}
    return set()

def mfma_passes(mn):
    if '16x16x4bf16_1k' in mn or '32x32x16' in mn or '32x32x8' in mn: return 8
    if '16x16x32' in mn or '16x16x16' in mn: return 4
    raise ValueError(mn)

class Ins:
    def __init__(self, text):
        self.text = text
        body = text.split(';')[0].strip()
        parts = body.split(None, 1)
        self.mn = parts[0]
        rest = parts[1] if len(parts) > 1 else ''
        ops, cur, d = [], '', 0
        for ch in rest:
            if ch == '[': d += 1
            if ch == ']': d -= 1
            if ch == ',' and d == 0:
                ops.append(cur.strip()); cur = ''
            else: cur += ch
        if cur.strip(): ops.append(cur.strip())
        self.mods = ''
        if ops:
            sp = ops[-1].split(None, 1)
            if len(sp) > 1 and not sp[0].endswith(':'):
                ops[-1] = sp[0]; self.mods = sp[1]
        self.ops = ops
        mn = self.mn
        self.is_mfma = mn.startswith('v_mfma')
        self.is_valu = mn.startswith('v_') and not self.is_mfma
        self.is_trans = any(mn.startswith(t) for t in TRANS)
        self.is_vmem = mn.startswith('buffer_') or mn.startswith('global_')
        self.is_ds = mn.startswith('ds_')
        self.is_salu = mn.startswith('s_')
        self.is_dpp = '_dpp' in mn or 'quad_perm' in self.mods or 'row_' in self.mods
        self.is_permlane = mn.startswith('v_permlane')
        self.is_readlane = mn.startswith('v_readlane') or mn.startswith('v_readfirstlane') or mn.startswith('v_writelane')
        self.lds_dma = self.is_vmem and re.search(r'\blds\b', self.mods) is not None
        self.wide_store = self.is_vmem and 'store' in mn and ('x4' in mn or 'x3' in mn)
        R = [regs_of(o) for o in ops]
        self.dst, self.src = set(), set()
        self.srcC = set(); self.srcAB = set(); self.lanesel = set(); self.store_data = set(); self.mask = set()
        if mn.startswith('v_cmp'):
            self.dst = R[0]; self.src = set().union(*R[1:])
        elif self.is_mfma:
            self.dst = R[0]; self.srcAB = R[1] | R[2]; self.srcC = R[3]; self.src = self.srcAB | self.srcC
        elif self.is_permlane:
            self.dst = R[0] | R[1]; self.src = R[0] | R[1]
        elif mn.startswith('v_readlane'):
            self.dst = R[0]; self.src = R[1] | R[2]; self.lanesel = R[2]
        elif mn.startswith('v_writelane'):
            self.dst = R[0]; self.src = R[1] | R[2] | R[0]; self.lanesel = R[2]
        elif mn.startswith('v_add_co') or mn.startswith('v_sub_co') or mn.startswith('v_addc_co') or mn.startswith('v_subb_co'):
            self.dst = R[0] | R[1]; self.src = set().union(*R[2:])
        elif self.is_vmem:
            if self.lds_dma:
                self.src = set().union(*R) | {('s', 124)}
            elif 'store' in mn:
                self.src = set().union(*R)
                self.store_data = R[0] if mn.startswith('buffer') else R[1]
            elif 'atomic' in mn:
                self.src = set().union(*R)
                if 'sc0' in self.mods: self.dst = R[0]
            else:
                self.dst = R[0]; self.src = set().union(*R[1:])
                if 'd16' in mn: self.src |= R[0]
        elif self.is_ds:
            if mn.startswith('ds_write') or (mn.startswith('ds_add') or mn.startswith('ds_or') or mn.startswith('ds_max')) and 'rtn' not in mn:
                self.src = set().union(*R)
            else:
                self.dst = R[0]; self.src = set().union(*R[1:])
                if 'd16' in mn: self.src |= R[0]
        elif any(mn.startswith(p) for p in NO_DST):
            self.src = set().union(*R) if R else set()
        else:
            if R:
                self.dst = R[0]; self.src = set().union(*R[1:]) if len(R) > 1 else set()
            if mn.startswith('v_fmac') or mn.startswith('v_mac') or self.is_dpp or mn.startswith('s_addk') or mn.startswith('s_mulk') or mn.startswith('s_bitset') or mn.startswith('v_dot2c'):
                self.src |= self.dst
            if 'saveexec' in mn:
                self.dst |= {('s', 126), ('s', 127)}
            if mn.startswith('v_cndmask'):
                self.mask = R[3] if len(R) > 3 else set()
        self.states = 1
        if mn == 's_nop': self.states = int(ops[0], 0) + 1

def need(p, c):
    n = 0
    vd = {r for r in p.dst if r[0] in 'va'}
    sd = {r for r in p.dst if r[0] == 's'}
    if p.is_valu:
        if c.is_mfma and vd & c.src: n = max(n, 2)
        if (c.is_dpp or c.is_permlane) and vd & c.src: n = max(n, 2)
        if c.is_readlane and vd & c.src: n = max(n, 1)
        if p.is_trans and c.is_valu and not c.is_trans and vd & (c.src | c.dst): n = max(n, 1)
        if p.is_trans and (c.is_vmem or c.is_ds) and vd & c.src: n = max(n, 1)
        if sd:
            if c.is_readlane and sd & c.lanesel: n = max(n, 4)
            if (c.is_valu or c.is_mfma) and sd & c.src: n = max(n, 2)
            if c.is_vmem and sd & c.src: n = max(n, 5)
            if c.is_salu and sd & c.src: n = max(n, 1)
        if ('dst_sel:WORD' in p.mods or 'dst_sel:BYTE' in p.mods or 'op_sel:' in p.mods) and c.is_valu and vd & (c.src | c.dst): n = max(n, 1)
    if p.is_mfma:
        ps = mfma_passes(p.mn)
        t_ab = {2: 5, 4: 8, 8: 12, 16: 20}[ps]
        t_c = {2: 4, 4: 6, 8: 10, 16: 18}[ps]
        if c.is_mfma:
            if vd & c.srcAB: n = max(n, t_ab)
            if vd & c.srcC:
                if not (vd == c.srcC and mfma_passes(c.mn) == ps): n = max(n, t_c)
            if vd & c.dst and not (vd & c.srcC): n = max(n, t_c)
        elif c.is_valu or c.is_vmem or c.is_ds:
            if vd & (c.src | c.dst): n = max(n, t_ab)
        if c.is_valu and p.srcC & c.dst: n = max(n, {2: 1, 4: 3, 8: 7, 16: 15}[ps])
    if p.is_salu and ('s', 124) in p.dst and c.lds_dma: n = max(n, 1)
    if p.wide_store and p.store_data & c.dst: n = max(n, 2)
    return n

MAXWIN = 24

class Asm:
    def __init__(self):
        self.lines = []
        self.hist = []
        self.nops = 0
    def raw(self, text):
        self.lines.append(text)
    def c(self, text):
        self.lines.append('    ; ' + text)
    def _pad(self, k):
        self.nops += k
        while k > 0:
            t = min(k, 16)
            self.lines.append(f'    s_nop {t-1}')
            self.hist.append(Ins(f's_nop {t-1}'))
            k -= t
    def __call__(self, text):
        for ln in text.strip().split('\n'):
            ln = ln.strip()
            if not ln or ln.startswith(';'):
                if ln: self.lines.append('    ' + ln)
                continue
            ins = Ins(ln)
            dist, k = 0, 0
            for p in reversed(self.hist[-MAXWIN:]):
                k = max(k, need(p, ins) - dist)
                dist += p.states
                if dist >= 20: break
            if k > 0: self._pad(k)
            self.lines.append('    ' + ln)
            self.hist.append(ins)
            if ins.mn in ('s_branch', 's_endpgm'):
                self.hist = []
    def settle(self):
        dist, k = 0, 0
        for p in reversed(self.hist[-MAXWIN:]):
            w = 0
            if p.is_mfma: w = {2: 5, 4: 8, 8: 12, 16: 20}[mfma_passes(p.mn)]
            elif p.is_valu: w = 5 if any(r[0] == 's' for r in p.dst) else 2
            elif p.wide_store: w = 2
            elif p.is_salu and ('s', 124) in p.dst: w = 1
            k = max(k, w - dist)
            dist += p.states
        if k > 0: self._pad(k)
    def label(self, name, settle=True):
        if settle: self.settle()
        self.lines.append(name + ':')
        self.hist = []
    def br(self, text):
        self.settle()
        self(text)
    def text(self):
        return '\n'.join(self.lines) + '\n'
```

```python
import sys, struct
from asmlib import Asm

N = 25000; NB = 250; R = 100; CH = 3200
H_OFF = 0; SLOT_OFF = 0x400000; OVF_OFF = 0x800000; W2F_OFF = 0xC00000; WRF_OFF = W2F_OFF + 24576
POS4_OFF = 0xC10000; TS_OFF = 0xE00000
CAP = 15

def f2u(x): return struct.unpack('<I', struct.pack('<f', x))[0]
def fl(x): return '0x%08x' % f2u(x)
def v(i, n=1): return f'v{i}' if n == 1 else f'v[{i}:{i+n-1}]'
def s(i, n=1): return f's{i}' if n == 1 else f's[{i}:{i+n-1}]'

class Opt:
    ts = False
    nt_edges = False
    nt_out = False
    thr = 24.3
    rot = 4
    prio = False
opt = Opt()

def srd(a, d, base, off, size, mul=None):
    if mul is not None:
        a(f's_mul_i32 s{d+2}, s2, {mul}')
        if off: a(f's_add_u32 s{d+2}, s{d+2}, {off}')
        a(f's_add_u32 s{d}, s{base}, s{d+2}')
        a(f's_addc_u32 s{d+1}, s{base+1}, 0')
    elif off:
        a(f's_add_u32 s{d}, s{base}, {off}')
        a(f's_addc_u32 s{d+1}, s{base+1}, 0')
    else:
        a(f's_mov_b32 s{d}, s{base}')
        a(f's_mov_b32 s{d+1}, s{base+1}')
    a(f's_mov_b32 s{d+2}, {size}')
    a(f's_mov_b32 s{d+3}, 0x20000')

def stamp(a, kern, idx, tmpv=None):
    if not opt.ts: return
    a.settle()
    L = f'Lts_{kern}_{idx}_{stamp.n}'; stamp.n += 1
    a(f's_cmp_lg_u32 s3, {stamp.wave}')
    a.br(f's_cbranch_scc1 {L}')
    a('s_memrealtime s[92:93]')
    a('s_mov_b64 s[94:95], exec')
    a('s_mov_b64 exec, 1')
    a('s_waitcnt lgkmcnt(0)')
    t = stamp.tmp
    a(f'v_mov_b32 v{t}, s92')
    a(f'v_mov_b32 v{t+1}, s93')
    a(f'v_mov_b32 v{t+2}, 0')
    a(f'buffer_store_dwordx2 v[{t}:{t+1}], v{t+2}, s[96:99], 0 offen offset:{idx*8}')
    a('s_mov_b64 exec, s[94:95]')
    a.label(L)
stamp.n = 0; stamp.wave = 0; stamp.tmp = 0

def stamp_init(a, kern):
    if not opt.ts: return
    a(f's_lshl_b32 s98, s2, 7')
    a(f's_add_u32 s98, s98, {TS_OFF + kern*256*128}')
    a('s_add_u32 s96, s24, s98')
    a('s_addc_u32 s97, s25, 0')
    a('s_mov_b32 s98, 128')
    a('s_mov_b32 s99, 0x20000')

def header(a, name):
    a.raw(f'.globl {name}\n.p2align 8\n.type {name},@function\n{name}:')
    a.hist = []

def descriptor(name, vgpr, sgpr=102):
    acc = (vgpr + 3) // 4 * 4
    return f'''.p2align 6
.amdhsa_kernel {name}
  .amdhsa_next_free_vgpr {vgpr}
  .amdhsa_next_free_sgpr {sgpr}
  .amdhsa_accum_offset {acc}
  .amdhsa_group_segment_fixed_size 0
  .amdhsa_kernarg_size 88
  .amdhsa_user_sgpr_count 2
  .amdhsa_user_sgpr_kernarg_segment_ptr 1
  .amdhsa_system_sgpr_workgroup_id_x 1
  .amdhsa_float_denorm_mode_32 3
.end_amdhsa_kernel
'''

def emit_Q(a, dst, q, t):
    a(f'v_lshrrev_b32 v{dst}, 2, v{q}')
    a(f'v_lshlrev_b32 v{dst}, 1, v{dst}')
    a(f'v_and_b32 v{t}, 1, v{q}')
    a(f'v_add_u32 v{dst}, v{dst}, v{t}')
    a(f'v_and_b32 v{t}, 2, v{q}')
    a(f'v_lshl_add_u32 v{dst}, v{t}, 2, v{dst}')

K1_POS = 0; K1_CNT = 150528; K1_OVB = 151808; K1_W1 = 152832; K1_LDS = 161024

def gen_k1(a, name):
    header(a, name)
    stamp.tmp = 60; stamp.wave = 0
    a('s_cmp_ge_u32 s2, %d' % NB)
    a('s_cbranch_scc1 L1_end')
    a('s_load_dwordx8 s[4:11], s[0:1], 0')
    a('s_load_dwordx8 s[12:19], s[0:1], 32')
    a('s_load_dwordx2 s[24:25], s[0:1], 80')
    a('v_lshrrev_b32 v1, 6, v0')
    a('v_and_b32 v2, 63, v0')
    a('v_readfirstlane_b32 s3, v1')
    a('v_lshlrev_b32 v3, 4, v2')
    a('v_mov_b32 v40, 0')
    a('s_cmp_ge_u32 s3, 5')
    a.br('s_cbranch_scc1 L1_nozero')
    a('v_lshlrev_b32 v41, 2, v0')
    a(f'v_add_u32 v41, {K1_CNT}, v41')
    a('ds_write_b32 v41, v40')
    a.label('L1_nozero')
    a('s_waitcnt lgkmcnt(0)')
    stamp_init(a, 0)
    stamp(a, 0, 0)
    a('s_cmp_ge_u32 s3, 13')
    a.br('s_cbranch_scc1 L1_hpath')
    srd(a, 28, 8, 0, CH*4, mul=CH*4)
    srd(a, 32, 10, 0, CH*4, mul=CH*4)
    srd(a, 36, 6, 0, N*6)
    a('v_lshlrev_b32 v1, 4, v0')
    nt = ' nt' if opt.nt_edges else ''
    a(f'buffer_load_dwordx4 v[4:7], v1, s[28:31], 0 offen{nt}')
    a(f'buffer_load_dwordx4 v[8:11], v1, s[32:35], 0 offen{nt}')
    a('s_lshr_b32 s40, s2, 3')
    a(f's_mul_i32 s40, s40, {opt.rot}')
    a('s_add_u32 s40, s40, s3')
    for i in range(12):
        if i == 11:
            a('s_cmp_ge_u32 s3, 4')
            a.br('s_cbranch_scc1 L1_dmadone')
        a('s_sub_u32 s41, s40, 147')
        a('s_cmp_ge_u32 s40, 147')
        a('s_cselect_b32 s40, s41, s40')
        a('s_lshl_b32 s41, s40, 10')
        a('s_mov_b32 m0, s41')
        a('s_add_u32 s40, s40, 13')
        a('buffer_load_dwordx4 v3, s[36:39], s41 offen lds')
    a.label('L1_dmadone')
    a('s_mov_b64 s[42:43], -1')
    a('s_cmp_eq_u32 s3, 12')
    a('s_cselect_b32 s43, 0, s43')
    a(f's_mov_b32 s44, {fl(opt.thr)}')
    a(f's_mov_b32 s45, -100')
    a(f's_mov_b32 s46, {K1_CNT}')
    a('v_mov_b32 v59, 0xffff0000')
    stamp(a, 0, 1)
    a('s_waitcnt vmcnt(0) lgkmcnt(0)')
    a('s_barrier')
    stamp(a, 0, 2)
    for i in range(4):
        a(f'v_mul_u32_u24 v{12+i}, 6, v{4+i}')
        a(f'v_mul_u32_u24 v{16+i}, 6, v{8+i}')
        a(f'v_and_b32 v36, -4, v{12+i}')
        a(f'v_and_b32 v37, -4, v{16+i}')
        a(f'ds_read2_b32 v[{20+2*i}:{21+2*i}], v36 offset1:1')
        a(f'ds_read2_b32 v[{28+2*i}:{29+2*i}], v37 offset1:1')
    for i in range(4):
        a(f'v_mul_u32_u24 v36, 5243, v{8+i}')
        a(f'v_lshrrev_b32 v36, 19, v36')
        a(f'v_mad_i32_i24 v37, v36, s45, v{8+i}')
        a(f'v_lshl_or_b32 v{48+i}, v{4+i}, 9, v37')
        a(f'v_lshlrev_b32 v{44+i}, 2, v36')
        a(f'v_add_u32 v{52+i}, {K1_CNT}, v{44+i}')
    a('v_mov_b32 v56, 1')
    for i in range(4):
        p, q = 20+2*i, 28+2*i
        a(f's_waitcnt lgkmcnt({6-2*i})')
        a(f'v_alignbyte_b32 v36, v{p+1}, v{p}, v{12+i}')
        a(f'v_alignbyte_b32 v37, v{p+1}, v{p+1}, v{12+i}')
        a(f'v_alignbyte_b32 v38, v{q+1}, v{q}, v{16+i}')
        a(f'v_alignbyte_b32 v39, v{q+1}, v{q+1}, v{16+i}')
        a(f'v_lshlrev_b32 v{p}, 16, v36')
        a(f'v_lshlrev_b32 v{q}, 16, v38')
        a(f'v_and_b32 v36, v59, v36')
        a(f'v_and_b32 v38, v59, v38')
        a(f'v_lshlrev_b32 v37, 16, v37')
        a(f'v_lshlrev_b32 v39, 16, v39')
        a(f'v_sub_f32 v{p}, v{p}, v{q}')
        a(f'v_sub_f32 v36, v36, v38')
        a(f'v_sub_f32 v37, v37, v39')
        a(f'v_mul_f32 v{p}, v{p}, v{p}')
        a(f'v_fmac_f32 v{p}, v36, v36')
        a(f'v_fmac_f32 v{p}, v37, v37')
        a(f'v_cmp_ngt_f32 s[{64+2*i}:{65+2*i}], v{p}, s44')
        a(f's_and_b64 s[{64+2*i}:{65+2*i}], s[{64+2*i}:{65+2*i}], s[42:43]')
    for i in range(4):
        a(f's_mov_b64 exec, s[{64+2*i}:{65+2*i}]')
        a(f'ds_add_rtn_u32 v{12+i}, v{52+i}, v56')
    a('s_mov_b64 exec, -1')
    a('s_waitcnt lgkmcnt(0)')
    a('s_barrier')
    stamp(a, 0, 3)
    for i in range(4):
        a(f'v_cmp_gt_u32 s[{72+2*i}:{73+2*i}], {CAP}, v{12+i}')
        a(f'v_lshlrev_b32 v{16+i}, 4, v{44+i}')
        a(f'v_lshl_add_u32 v{16+i}, v{12+i}, 2, v{16+i}')
    for i in range(4):
        a(f's_and_b64 exec, s[{72+2*i}:{73+2*i}], s[{64+2*i}:{65+2*i}]')
        a(f'ds_write_b32 v{16+i}, v{48+i} offset:4')
        a(f's_andn2_b64 s[{64+2*i}:{65+2*i}], s[{64+2*i}:{65+2*i}], s[{72+2*i}:{73+2*i}]')
    a('s_mov_b64 exec, -1')
    a('s_cmp_ge_u32 s3, 4')
    a.br('s_cbranch_scc1 L1_nohdr')
    a('v_lshlrev_b32 v20, 2, v0')
    a(f'v_add_u32 v21, {K1_CNT}, v20')
    a('ds_read_b32 v22, v21')
    a('v_mov_b32 v23, 0')
    a('v_lshlrev_b32 v24, 6, v0')
    a('s_waitcnt lgkmcnt(0)')
    a(f'v_cmp_lt_u32 vcc, {CAP}, v22')
    a('s_and_saveexec_b64 s[80:81], vcc')
    a.br('s_cbranch_execz L1_hdr_noovf')
    a(f'v_subrev_u32 v25, {CAP}, v22')
    a(f'v_mov_b32 v26, {K1_CNT + 1024}')
    a('ds_add_rtn_u32 v23, v26, v25')
    a(f'v_add_u32 v21, {K1_OVB}, v20')
    a('s_waitcnt lgkmcnt(0)')
    a('ds_write_b32 v21, v23')
    a.label('L1_hdr_noovf')
    a('s_mov_b64 exec, s[80:81]')
    a('v_lshl_or_b32 v22, v23, 16, v22')
    a('ds_write_b32 v24, v22')
    a.label('L1_nohdr')
    a('s_waitcnt lgkmcnt(0)')
    a('s_barrier')
    a('s_or_b64 s[72:73], s[64:65], s[66:67]')
    a('s_or_b64 s[74:75], s[68:69], s[70:71]')
    a('s_or_b64 s[72:73], s[72:73], s[74:75]')
    a.br('s_cbranch_scc0 L1_dump')
    srd(a, 28, 24, OVF_OFF, CH*4, mul=CH*4)
    for i in range(4):
        a(f's_mov_b64 exec, s[{64+2*i}:{65+2*i}]')
        a.br(f's_cbranch_execz L1_ovf{i}')
        a(f'v_add_u32 v20, {K1_OVB}, v{44+i}')
        a('ds_read_b32 v21, v20')
        a('s_waitcnt lgkmcnt(0)')
        a(f'v_add_u32 v21, v21, v{12+i}')
        a(f'v_subrev_u32 v21, {CAP}, v21')
        a('v_lshlrev_b32 v21, 2, v21')
        a(f'buffer_store_dword v{48+i}, v21, s[28:31], 0 offen')
        a.label(f'L1_ovf{i}')
    a('s_mov_b64 exec, -1')
    a.br('s_branch L1_dump')

    a.label('L1_hpath')
    a('s_sub_u32 s40, s3, 13')
    srd(a, 28, 14, 0, 8192)
    srd(a, 32, 4, 0, R*512, mul=R*512)
    srd(a, 36, 24, H_OFF, R*128, mul=R*128)
    for i in range(8):
        a(f's_mov_b32 m0, {K1_W1 + i*1024}')
        a(f's_mov_b32 s41, {i*1024}')
        a('buffer_load_dwordx4 v3, s[28:31], s41 offen lds')
    a('v_and_b32 v4, 15, v2')
    a('v_lshrrev_b32 v5, 4, v2')
    a('s_lshl_b32 s41, s40, 4')
    a('v_add_u32 v6, s41, v4')
    a('v_lshlrev_b32 v7, 4, v5')
    a('v_lshl_add_u32 v8, v6, 9, v7')
    a('v_lshl_add_u32 v9, v6, 7, v7')
    a('buffer_load_dwordx4 v[12:15], v8, s[32:35], 0 offen')
    a('buffer_load_dwordx4 v[16:19], v8, s[32:35], 0 offen offset:64')
    a(f'v_add_u32 v8, {48*512}, v8')
    a('buffer_load_dwordx4 v[20:23], v8, s[32:35], 0 offen')
    a('buffer_load_dwordx4 v[24:27], v8, s[32:35], 0 offen offset:64')
    a(f'v_add_u32 v8, {48*512}, v8')
    a('buffer_load_dwordx4 v[28:31], v8, s[32:35], 0 offen')
    a('buffer_load_dwordx4 v[32:35], v8, s[32:35], 0 offen offset:64')
    a('v_lshrrev_b32 v10, 2, v4')
    a('v_lshl_add_u32 v10, v5, 3, v10')
    a('v_and_b32 v11, 3, v4')
    a('v_lshlrev_b32 v11, 3, v11')
    a('v_lshl_add_u32 v10, v10, 7, v11')
    a(f'v_add_u32 v10, {K1_W1}, v10')
    a('s_waitcnt vmcnt(6)')
    FR = 64
    for ht in range(4):
        for ks in range(2):
            r = FR + (ht*2+ks)*4
            for hf in range(2):
                a(f'ds_read_b64_tr_b16 v[{r+2*hf}:{r+2*hf+1}], v10 offset:{ks*4096 + ht*32 + hf*512}')
    a('s_waitcnt lgkmcnt(0)')
    D = 96; O = 112
    for t in range(3):
        if t == 2:
            a('s_cmp_lg_u32 s40, 0')
            a.br('s_cbranch_scc1 L1_hdone')
        S = 12 + 8*t
        a('s_waitcnt vmcnt(4)')
        for ht in range(4):
            a(f'v_mfma_f32_16x16x32_bf16 v[{D+4*ht}:{D+4*ht+3}], v[{FR+ht*8}:{FR+ht*8+3}], v[{S}:{S+3}], 0')
        for ht in range(4):
            a(f'v_mfma_f32_16x16x32_bf16 v[{D+4*ht}:{D+4*ht+3}], v[{FR+ht*8+4}:{FR+ht*8+7}], v[{S+4}:{S+7}], v[{D+4*ht}:{D+4*ht+3}]')
        for i in range(16):
            a(f'v_cvt_pk_bf16_f32 v{D+i}, 0, v{D+i}')
        T = 120
        for grp in range(4):
            for i in range(4):
                a(f'v_mul_f32 v{T+i}, {fl(-1.4426950408889634)}, v{D+4*grp+i}')
            for i in range(4):
                a(f'v_exp_f32 v{T+i}, v{T+i}')
            for i in range(4):
                a(f'v_add_f32 v{T+i}, 1.0, v{T+i}')
            for i in range(4):
                a(f'v_rcp_f32 v{T+i}, v{T+i}')
            for i in range(4):
                a(f'v_mul_f32 v{T+i}, v{T+i}, v{D+4*grp+i}')
            a(f'v_cvt_pk_bf16_f32 v{O+2*grp}, v{T}, v{T+1}')
            a(f'v_cvt_pk_bf16_f32 v{O+2*grp+1}, v{T+2}, v{T+3}')
        a(f'buffer_store_dwordx4 v[{O}:{O+3}], v9, s[36:39], 0 offen')
        a(f'buffer_store_dwordx4 v[{O+4}:{O+7}], v9, s[36:39], 0 offen offset:64')
        a(f'v_add_u32 v9, {48*128}, v9')
    a.label('L1_hdone')
    a('s_cmp_lg_u32 s40, 2')
    a.br('s_cbranch_scc1 L1_nofrag')
    a('s_cmp_ge_u32 s2, 27')
    a.br('s_cbranch_scc1 L1_nofrag')
    emit_Q(a, 12, 4, 13)
    a('v_lshlrev_b32 v12, 3, v12')
    srd(a, 32, 24, W2F_OFF, 24576 + 1536)
    a('s_cmp_ge_u32 s2, 24')
    a.br('s_cbranch_scc1 L1_wrfrag')
    srd(a, 28, 16, 0, 64*192*2)
    a('s_lshr_b32 s41, s2, 3')
    a('s_lshl_b32 s41, s41, 7')
    a('s_bfe_u32 s47, s2, 0x20001')
    a('s_lshl_b32 s47, s47, 1')
    a('s_add_u32 s41, s41, s47')
    a('s_and_b32 s47, s2, 1')
    a(f's_mul_i32 s47, s47, {32*384}')
    a('s_add_u32 s41, s41, s47')
    a(f'v_mul_u32_u24 v13, {4*384}, v5')
    a('v_add3_u32 v12, v12, v13, s41')
    a(f'v_add_u32 v13, {16*384}, v12')
    for jj in range(8):
        a(f'buffer_load_ushort v{16+jj}, v{12 if jj < 4 else 13}, s[28:31], 0 offen offset:{(jj&3)*384}')
    a('s_lshl_b32 s41, s2, 10')
    a('v_add_u32 v14, s41, v3')
    a('s_waitcnt vmcnt(0)')
    for i in range(4):
        a(f'v_lshl_or_b32 v{16+i}, v{17+2*i}, 16, v{16+2*i}')
    a('buffer_store_dwordx4 v[16:19], v14, s[32:35], 0 offen')
    a.br('s_branch L1_nofrag')
    a.label('L1_wrfrag')
    srd(a, 28, 18, 0, 4*192*2)
    a('s_sub_u32 s41, s2, 24')
    a('s_lshl_b32 s47, s41, 7')
    a('v_lshlrev_b32 v13, 1, v5')
    a('v_add3_u32 v12, v12, v13, s47')
    for k in range(4):
        a(f'buffer_load_ushort v{16+k}, v12, s[28:31], 0 offen offset:{k*384}')
    a('s_lshl_b32 s41, s41, 9')
    a('s_add_u32 s41, s41, 24576')
    a('v_lshlrev_b32 v14, 3, v2')
    a('v_add_u32 v14, s41, v14')
    a('s_waitcnt vmcnt(0)')
    for i in range(2):
        a(f'v_lshl_or_b32 v{16+i}, v{17+2*i}, 16, v{16+2*i}')
    a('buffer_store_dwordx2 v[16:17], v14, s[32:35], 0 offen')
    a.label('L1_nofrag')
    srd(a, 28, 24, POS4_OFF, R*8, mul=R*8)
    a('s_lshl_b32 s41, s40, 6')
    a('v_add_u32 v12, s41, v2')
    a(f's_mul_i32 s41, s2, {R}')
    a('v_add_u32 v13, s41, v12')
    a('v_mul_u32_u24 v13, 6, v13')
    a('v_and_b32 v14, -4, v13')
    a('v_lshlrev_b32 v12, 3, v12')
    a('s_waitcnt lgkmcnt(0)')
    a('s_barrier')
    a('ds_read2_b32 v[16:17], v14 offset1:1')
    a('s_waitcnt lgkmcnt(0)')
    a('v_alignbyte_b32 v18, v17, v16, v13')
    a('v_alignbyte_b32 v19, v17, v17, v13')
    a('v_and_b32 v19, 0xffff, v19')
    a('buffer_store_dwordx2 v[18:19], v12, s[28:31], 0 offen')
    a('s_barrier')
    a('s_barrier')
    a.label('L1_dump')
    stamp(a, 0, 4)
    srd(a, 28, 24, SLOT_OFF, NB*16384)
    a('v_lshlrev_b32 v4, 4, v0')
    a('ds_read_b128 v[8:11], v4')
    a('v_lshrrev_b32 v5, 2, v0')
    a('v_lshlrev_b32 v5, 14, v5')
    a('v_and_b32 v6, 3, v0')
    a('v_lshl_add_u32 v5, v6, 4, v5')
    a('s_lshl_b32 s41, s2, 6')
    a('v_add_u32 v5, s41, v5')
    a('s_waitcnt lgkmcnt(0)')
    a('buffer_store_dwordx4 v[8:11], v5, s[28:31], 0 offen')
    if opt.ts:
        a('s_waitcnt vmcnt(0)')
        stamp(a, 0, 5)
    a.label('L1_end')
    a('s_endpgm')

L_W2F = 0; L_NCNT = 24576; L_START = L_NCNT + 512; L_DPOS = 25600; L_FLAG = 27648; L_STG = 27680
L_SORT = 30784; K2_LDS = L_SORT + 4*(4000+64)

vLANE16, vK, vQK4, vSTGW, vSTGH, vSTGR, vSTGS, vLPV, vLPH, vLPR, vQQ, vMHI, vBF1, vSTLO, vSTHI, vPACK = range(1, 17)
vNQ, vRES = 17, 18
vE, vM = 19, 20
RBF = 22
WR = 24
SEL = 32; SR = 36
V = 48
H = 96
ACC = 112
D3 = 176
D2 = 208
WS = 224
PVR = 240
K2_VGPR = 256
sSV, sH, sP4, sOUT, sRES, sSLOT, sW2F, sOVF = 28, 32, 36, 40, 44, 48, 52, 80
sF = 56
sNC, sSC, sCNT, sN0, sE0, sE1, sFIRST, sMORE, sROUND, sT0, sT1, sT2, sNE = 60, 61, 62, 63, 84, 85, 86, 87, 88, 89, 90, 91, 26
sEXQ = 22
sA, sB = 64, 66

def chain_step(a):
    a(f's_add_u32 s{sT0}, s{sSC}, 32')
    a(f'v_cmp_ge_u32 s[{sA}:{sA+1}], s{sT0}, v{vSTLO}')
    a(f'v_cmp_ge_u32 s[{sB}:{sB+1}], s{sT0}, v{vSTHI}')
    a(f's_add_u32 s{sT1}, s{sNC}, 16')
    a(f's_add_u32 s{sNC}, s{sNC}, 1')
    a(f's_bcnt1_i32_b64 s{sT0}, s[{sA}:{sA+1}]')
    a(f's_bcnt1_i32_b64 s{sT2}, s[{sB}:{sB+1}]')
    a(f's_add_u32 s{sT0}, s{sT0}, s{sT2}')
    a(f's_sub_u32 s{sT0}, s{sT0}, 1')
    a(f's_min_u32 s{sT0}, s{sT0}, s{sT1}')
    a(f's_max_u32 s{sNC}, s{sNC}, s{sT0}')
    a(f's_and_b32 s{sT0}, s{sNC}, 63')
    a(f'v_readlane_b32 s{sSC}, v{vPACK}, s{sT0}')
    a(f's_lshr_b32 s{sT1}, s{sNC}, 6')
    a(f's_lshl_b32 s{sT1}, s{sT1}, 4')
    a(f's_lshr_b32 s{sSC}, s{sSC}, s{sT1}')
    a(f's_and_b32 s{sSC}, s{sSC}, 0xffff')

adv_n = [0]
def chain_adv(a):
    n = adv_n[0]; adv_n[0] += 1
    a.label(f'L2_adv{n}')
    a(f's_cmp_eq_u32 s{sCNT}, 0')
    a(f's_cbranch_scc1 L2_advdone{n}')
    a(f's_cmp_ge_u32 s{sNC}, {R}')
    a(f's_cbranch_scc1 L2_advdone{n}')
    chain_step(a)
    a(f's_sub_u32 s{sCNT}, s{sCNT}, 1')
    a(f's_branch L2_adv{n}')
    a.label(f'L2_advdone{n}', settle=False)

def Rn(a, d, x):
    a(f'v_cvt_pk_bf16_f32 v{d}, 0, v{x}')

def gen_k2(a, name):
    header(a, name)
    stamp.tmp = 252; stamp.wave = 0
    a('s_cmp_ge_u32 s2, %d' % NB)
    a('s_cbranch_scc1 L2_end')
    a('s_load_dwordx2 s[4:5], s[0:1], 0')
    a('s_load_dwordx2 s[12:13], s[0:1], 32')
    a('s_load_dwordx2 s[20:21], s[0:1], 64')
    a('s_load_dwordx2 s[24:25], s[0:1], 80')
    a('v_lshrrev_b32 v40, 6, v0')
    a('v_and_b32 v41, 63, v0')
    a('v_readfirstlane_b32 s3, v40')
    a(f'v_lshlrev_b32 v{vLANE16}, 4, v41')
    a('v_lshlrev_b32 v42, 4, v0')
    a('s_waitcnt lgkmcnt(0)')
    a('s_load_dwordx2 s[14:15], s[12:13], 0')
    srd(a, sSLOT, 24, SLOT_OFF, NB*64, mul=16384)
    W = V
    a(f'buffer_load_dwordx4 v[{W}:{W+3}], v42, s[{sSLOT}:{sSLOT+3}], 0 offen')
    a(f'v_add_u32 v43, 8192, v42')
    a(f'buffer_load_dwordx4 v[{W+4}:{W+7}], v43, s[{sSLOT}:{sSLOT+3}], 0 offen')
    srd(a, sP4, 24, POS4_OFF, N*8)
    a(f's_mul_i32 s{sT0}, s2, {R*8}')
    a('v_lshlrev_b32 v43, 3, v0')
    a(f'v_add_u32 v43, s{sT0}, v43')
    a('v_cmp_gt_u32 vcc, 128, v0')
    a('v_mov_b32 v44, 0x40000000')
    a('v_cndmask_b32_e64 v43, v44, v43, vcc')
    a(f'buffer_load_dwordx2 v[46:47], v43, s[{sP4}:{sP4+3}], 0 offen')
    srd(a, sW2F, 24, W2F_OFF, 24576 + 1536)
    for i in range(3):
        a(f's_lshl_b32 s{sT0}, s3, 10')
        if i: a(f's_add_u32 s{sT0}, s{sT0}, {i*8192}')
        a(f's_mov_b32 m0, s{sT0}')
        a(f'buffer_load_dwordx4 v{vLANE16}, s[{sW2F}:{sW2F+3}], s{sT0} offen lds')
    a('v_lshlrev_b32 v43, 3, v41')
    a(f's_mov_b32 s{sT0}, 24576')
    for p in range(3):
        a(f'buffer_load_dwordx2 v[{WR+2*p}:{WR+2*p+1}], v43, s[{sW2F}:{sW2F+3}], s{sT0} offen offset:{p*512}')
    stamp_init(a, 1)
    stamp(a, 1, 0)
    srd(a, sSV, 4, 0, N*512)
    srd(a, sH, 24, H_OFF, N*128)
    srd(a, sOUT, 20, 0, R*512, mul=R*512)
    srd(a, sRES, 4, 0, R*512, mul=R*512)
    srd(a, sOVF, 24, OVF_OFF, NB*CH*4)
    a('v_and_b32 v44, 15, v41')
    a('v_lshrrev_b32 v45, 4, v41')
    a(f'v_lshrrev_b32 v{vK}, 2, v44')
    a(f'v_lshlrev_b32 v{vK}, 3, v{vK}')
    a('v_and_b32 v40, 1, v45')
    a(f'v_lshl_add_u32 v{vK}, v40, 2, v{vK}')
    a('v_and_b32 v40, 3, v44')
    a(f'v_add_u32 v{vK}, v{vK}, v40')
    a(f'v_lshlrev_b32 v{vQK4}, 2, v{vK}')
    a(f's_mul_i32 s{sT0}, s3, 384')
    a(f's_add_u32 s{sT0}, s{sT0}, {L_STG}')
    a(f'v_add_u32 v{vSTGW}, s{sT0}, v{vQK4}')
    a(f'v_add_u32 v{vQK4}, {L_SORT}, v{vQK4}')
    a(f'v_lshl_add_u32 v{vSTGH}, v{vK}, 1, s{sT0}')
    a(f'v_lshl_add_u32 v{vSTGR}, v45, 5, s{sT0}')
    a(f'v_lshl_add_u32 v{vSTGS}, v45, 4, s{sT0}')
    emit_Q(a, vLPV, 44, 40)
    a(f'v_lshlrev_b32 v{vLPV}, 3, v{vLPV}')
    a(f'v_lshlrev_b32 v{vLPH}, 4, v45')
    a(f'v_lshl_add_u32 v{vLPR}, v44, 9, v{vLPH}')
    a(f'v_lshl_or_b32 v{vQQ}, v44, 16, v44')
    a(f'v_mov_b32 v{vMHI}, 0xffff0000')
    a(f'v_mov_b32 v{vBF1}, 0x3f803f80')
    a(f's_mov_b32 s{sROUND}, 0')
    a('s_waitcnt lgkmcnt(0)')
    a(f's_lshl_b32 s{sF}, s14, 16')
    a(f's_and_b32 s{sF+1}, s14, 0xffff0000')
    a(f's_lshl_b32 s{sF+2}, s15, 16')
    a(f's_and_b32 s{sF+3}, s15, 0xffff0000')
    a('v_and_b32 v39, 3, v0')
    a('v_lshlrev_b32 v39, 2, v39')
    a('v_subrev_u32 v39, 1, v39')
    LIM, CNT = 56, 58
    a('s_waitcnt vmcnt(8)')
    a(f'v_mov_b32_dpp v{CNT}, v{W} quad_perm:[0,0,0,0] row_mask:0xf bank_mask:0xf')
    a('s_waitcnt vmcnt(7)')
    a(f'v_mov_b32_dpp v{CNT+1}, v{W+4} quad_perm:[0,0,0,0] row_mask:0xf bank_mask:0xf')
    for h in range(2):
        a(f'v_and_b32 v{CNT+h}, 0xffff, v{CNT+h}')
        a(f'v_min_u32 v{LIM+h}, {CAP}, v{CNT+h}')
        a(f'v_subrev_u32 v{CNT+h}, {CAP}, v{CNT+h}')
    a.label('L2_round')
    a('s_cmp_ge_u32 s3, 3')
    a.br('s_cbranch_scc1 L2_nozero')
    a('v_lshlrev_b32 v40, 2, v0')
    a('v_mov_b32 v41, 0')
    a(f'v_add_u32 v42, {L_FLAG - 512}, v40')
    a(f'v_add_u32 v40, {L_NCNT}, v40')
    a('v_cmp_gt_u32 vcc, 128, v0')
    a('v_cndmask_b32_e64 v40, v42, v40, vcc')
    a('v_cmp_gt_u32 vcc, 129, v0')
    a('s_and_saveexec_b64 s[64:65], vcc')
    a('ds_write_b32 v40, v41')
    a('s_mov_b64 exec, s[64:65]')
    a.label('L2_nozero')
    a('s_waitcnt lgkmcnt(0)')
    a('s_barrier')
    stamp(a, 1, 1)
    A = 60; RK = 68; T = 76
    a('v_mov_b32 v40, 1')
    for i in range(8):
        a(f'v_add_u32 v41, {i & 3}, v39')
        a(f'v_cmp_lt_u32 s[{64+2*i}:{65+2*i}], v41, v{LIM + i//4}')
        a(f'v_and_b32 v{A+i}, 127, v{W+i}')
        a(f'v_lshlrev_b32 v{A+i}, 2, v{A+i}')
        a(f'v_add_u32 v{A+i}, {L_NCNT}, v{A+i}')
    for i in range(8):
        a(f's_mov_b64 exec, s[{64+2*i}:{65+2*i}]')
        a(f'ds_add_rtn_u32 v{RK+i}, v{A+i}, v40')
    a('s_mov_b64 exec, -1')
    a(f'v_max_i32 v41, v{CNT}, v{CNT+1}')
    a('v_cmp_lt_i32 vcc, 0, v41')
    a.br('s_cbranch_vccz L2_noflag')
    a(f'v_mov_b32 v41, {L_FLAG}')
    a('ds_write_b32 v41, v40')
    a.label('L2_noflag')
    a(f's_cmp_lg_u32 s{sROUND}, 0')
    a.br('s_cbranch_scc1 L2_nodpos')
    a('s_cmp_ge_u32 s3, 2')
    a.br('s_cbranch_scc1 L2_nodpos')
    a('s_waitcnt vmcnt(6)')
    a('v_lshlrev_b32 v84, 16, v46')
    a(f'v_and_b32 v85, v{vMHI}, v46')
    a('v_lshlrev_b32 v86, 16, v47')
    a('v_mov_b32 v87, 0')
    a('v_lshlrev_b32 v41, 4, v0')
    a(f'ds_write_b128 v41, v[84:87] offset:{L_DPOS}')
    a.label('L2_nodpos')
    a('s_waitcnt lgkmcnt(0)')
    a('s_barrier')
    stamp(a, 1, 2)
    a(f'v_lshrrev_b32 v41, 2, v{vLANE16}')
    a(f'v_add_u32 v41, {L_NCNT}, v41')
    a('ds_read2st64_b32 v[42:43], v41 offset1:1')
    a(f'v_mov_b32 v44, {L_FLAG}')
    a('ds_read_b32 v45, v44')
    a('s_waitcnt lgkmcnt(0)')
    a(f'v_readfirstlane_b32 s{sMORE}, v45')
    a('v_lshl_or_b32 v42, v43, 16, v42')
    a('v_mov_b32 v43, v42')
    for sh in ('row_shr:1', 'row_shr:2', 'row_shr:4', 'row_shr:8'):
        a(f'v_add_u32_dpp v43, v43, v43 {sh} row_mask:0xf bank_mask:0xf')
    a('v_add_u32_dpp v43, v43, v43 row_bcast:15 row_mask:0xa bank_mask:0xf')
    a('v_add_u32_dpp v43, v43, v43 row_bcast:31 row_mask:0xc bank_mask:0xf')
    a(f'v_readlane_b32 s{sT0}, v43, 63')
    a('v_sub_u32 v43, v43, v42')
    a(f's_and_b32 s{sT0}, s{sT0}, 0xffff')
    a(f'v_and_b32 v{vSTLO}, 0xffff, v43')
    a(f'v_lshrrev_b32 v{vSTHI}, 16, v43')
    a(f'v_add_u32 v{vSTHI}, s{sT0}, v{vSTHI}')
    a(f'ds_write2st64_b32 v41, v{vSTLO}, v{vSTHI} offset0:2 offset1:3')
    for i in range(8):
        a(f'ds_read_b32 v{T+i}, v{A+i} offset:512')
    a(f'v_lshl_or_b32 v{vPACK}, v{vSTHI}, 16, v{vSTLO}')
    a(f'v_cmp_lt_u32 vcc, {(R - 64) * 16}, v{vLANE16}')
    a('v_mov_b32 v44, -1')
    a(f'v_cndmask_b32_e64 v{vSTHI}, v{vSTHI}, v44, vcc')
    for i in range(8):
        a(f's_waitcnt lgkmcnt({7-i})' if i < 7 else 's_waitcnt lgkmcnt(0)')
        a(f'v_add_lshl_u32 v{T+i}, v{T+i}, v{RK+i}, 2')
    for i in range(8):
        a(f's_mov_b64 exec, s[{64+2*i}:{65+2*i}]')
        a(f'ds_write_b32 v{T+i}, v{W+i} offset:{L_SORT}')
    a('s_mov_b64 exec, -1')
    a(f's_mov_b32 s{sNC}, 0')
    a(f's_mov_b32 s{sSC}, 0')
    a(f's_mov_b32 s{sCNT}, s3')
    chain_adv(a)
    a('s_waitcnt vmcnt(0) lgkmcnt(0)')
    a('s_barrier')
    stamp(a, 1, 3)
    a.label('L2_item')
    a(f's_cmp_ge_u32 s{sNC}, {R}')
    a.br('s_cbranch_scc1 L2_rounddone')
    a(f's_mov_b32 s{sN0}, s{sNC}')
    a(f's_mov_b32 s{sE0}, s{sSC}')
    chain_step(a)
    a(f's_mov_b32 s{sE1}, s{sSC}')
    a(f's_sub_u32 s{sT0}, s{sNC}, s{sN0}')
    a(f's_bfm_b32 s{sT1}, s{sT0}, 0')
    a(f's_lshl_b32 s{sT2}, s{sT1}, 16')
    a(f's_or_b32 s{sEXQ}, s{sT1}, s{sT2}')
    a(f's_mov_b32 s{sEXQ+1}, s{sEXQ}')
    a(f's_lshl_b32 s{sT0}, s{sN0}, 9')
    a(f'v_add_u32 v{vRES}, s{sT0}, v{vLPR}')
    a(f's_mul_i32 s{sT0}, s{sN0}, 0x10001')
    a(f'v_add_u32 v{vNQ}, s{sT0}, v{vQQ}')
    a(f's_mov_b64 exec, s[{sEXQ}:{sEXQ+1}]')
    for c in range(4):
        for hh in range(2):
            r = D3 + (c*2+hh)*4
            a(f'buffer_load_dwordx4 v[{r}:{r+3}], v{vRES}, s[{sRES}:{sRES+3}], 0 offen offset:{c*128+hh*64} sc1')
    a('s_mov_b64 exec, -1')
    a(f's_mov_b32 s{sFIRST}, 1')
    a(f's_mov_b32 s{sCNT}, 7')
    a(f's_cmp_lg_u32 s{sE0}, s{sE1}')
    a.br('s_cbranch_scc1 L2_tile')
    chain_adv(a)
    a('s_waitcnt vmcnt(0)')
    a.br('s_branch L2_store')
    a.label('L2_tile')
    X = D2
    a(f's_sub_u32 s{sNE}, s{sE1}, s{sE0}')
    a(f's_lshl_b32 s{sT0}, s{sE0}, 2')
    a(f'v_add_u32 v{X}, s{sT0}, v{vQK4}')
    a(f'ds_read_b32 v{vE}, v{X}')
    a(f'v_subrev_u32 v{vM}, s{sNE}, v{vK}')
    a(f'v_ashrrev_i32 v{vM}, 31, v{vM}')
    a('s_waitcnt lgkmcnt(0)')
    a(f'v_bitop3_b32 v{vE}, v{vE}, v{vM}, v{vM} bitop3:0xf3')
    a(f'v_and_b32 v{X}, 0x7ffffe00, v{vE}')
    a(f'v_and_b32 v{X+1}, 127, v{vE}')
    a(f'ds_write_b32 v{vSTGW}, v{X}')
    a(f'ds_write_b16 v{vSTGH}, v{X+1} offset:128')
    a(f'ds_read_b128 v[{X+8}:{X+11}], v{vSTGR}')
    a(f'ds_read_b128 v[{X+12}:{X+15}], v{vSTGR} offset:16')
    a(f'v_lshrrev_b32 v{X+2}, 6, v{vE}')
    a(f'v_and_b32 v{X+2}, -8, v{X+2}')
    PS = PVR
    DP = PVR + 4
    a(f'buffer_load_dwordx2 v[{PS}:{PS+1}], v{X+2}, s[{sP4}:{sP4+3}], 0 offen')
    a(f'v_lshlrev_b32 v{X+1}, 4, v{X+1}')
    a(f'ds_read_b128 v[{DP}:{DP+3}], v{X+1} offset:{L_DPOS}')
    a(f'v_lshrrev_b32 v{X+3}, 2, v{vE}')
    a(f'v_and_b32 v{X+3}, 0x3fffff80, v{X+3}')
    a(f'v_mov_b32 v{X+4}, v{X+3}')
    a(f'v_permlane16_swap_b32 v{X+3}, v{X+4}')
    a(f'v_add_u32 v{X+3}, v{X+3}, v{vLPH}')
    a(f'v_add_u32 v{X+4}, v{X+4}, v{vLPH}')
    for et in range(2):
        for ks in range(2):
            r = H + et*8 + ks*4
            a(f'buffer_load_dwordx4 v[{r}:{r+3}], v{X+3+et}, s[{sH}:{sH+3}], 0 offen offset:{ks*64}')
    a('s_waitcnt lgkmcnt(1)')
    for jj in range(8):
        a(f'v_add_u32 v{X+8+jj}, v{X+8+jj}, v{vLPV}')
    for j in range(3):
        for jj in range(8):
            r = V + j*16 + jj*2
            a(f'buffer_load_dwordx2 v[{r}:{r+1}], v{X+8+jj}, s[{sSV}:{sSV+3}], 0 offen offset:{128*(j+1)}')
    chain_adv(a)
    a('s_waitcnt vmcnt(28) lgkmcnt(0)')
    rx, ry, rz, t0, t1, t2, dd, inv = range(X, X+8)
    a(f'v_lshlrev_b32 v{rx}, 16, v{PS}')
    a(f'v_and_b32 v{ry}, v{vMHI}, v{PS}')
    a(f'v_lshlrev_b32 v{rz}, 16, v{PS+1}')
    for i in range(3): a(f'v_sub_f32 v{rx+i}, v{rx+i}, v{DP+i}')
    for i in range(3): Rn(a, rx+i, rx+i)
    for i in range(3): a(f'v_mul_f32 v{t0+i}, v{rx+i}, v{rx+i}')
    for i in range(3): Rn(a, t0+i, t0+i)
    a(f'v_add_f32 v{t0}, v{t0}, v{t1}')
    a(f'v_add_f32 v{t0}, v{t0}, v{t2}')
    Rn(a, t0, t0)
    a(f'v_add_f32 v{t0}, {fl(1e-8)}, v{t0}')
    Rn(a, t0, t0)
    a(f'v_sqrt_f32 v{t0}, v{t0}')
    Rn(a, dd, t0)
    a(f'v_rcp_f32 v{inv}, v{dd}')
    g0 = X + 8
    for k in range(4): a(f'v_mul_f32 v{g0+k}, s{sF+k}, v{dd}')
    a(f'v_mul_f32 v{g0+4}, {fl(3.141592653589793)}, v{dd}')
    for k in range(5): Rn(a, g0+k, g0+k)
    a(f'v_mul_f32 v{g0+4}, {fl(0.2)}, v{g0+4}')
    for i in range(3): a(f'v_mul_f32 v{rx+i}, v{rx+i}, v{inv}')
    Rn(a, g0+4, g0+4)
    for k in range(5): a(f'v_mul_f32 v{g0+k}, 0.15915494, v{g0+k}')
    a(f'v_cos_f32 v{g0+4}, v{g0+4}')
    for k in range(4): a(f'v_sin_f32 v{g0+k}, v{g0+k}')
    a(f'v_cvt_pk_bf16_f32 v{t0}, v{rx}, v{ry}')
    a(f'v_cvt_pk_bf16_f32 v{t1}, v{rz}, v{rz}')
    Rn(a, g0+4, g0+4)
    a(f'v_add_f32 v{g0+4}, 1.0, v{g0+4}')
    a(f'v_and_b32 v{t0}, v{t0}, v{vM}')
    a(f'v_and_b32 v{t1}, v{t1}, v{vM}')
    Rn(a, g0+4, g0+4)
    a(f'ds_write_b16 v{vSTGH}, v{t0} offset:192')
    a(f'ds_write_b16_d16_hi v{vSTGH}, v{t0} offset:256')
    a(f'ds_write_b16 v{vSTGH}, v{t1} offset:320')
    a(f'v_mul_f32 v{inv}, 0.5, v{inv}')
    a(f'v_mul_f32 v{inv}, v{inv}, v{g0+4}')
    a(f'ds_read_b128 v[{SEL}:{SEL+3}], v{vSTGS} offset:128')
    for j in range(3):
        a(f'ds_read_b128 v[{SR+4*j}:{SR+4*j+3}], v{vSTGS} offset:{192+64*j}')
    def wread(step):
        p = [0, 2, 1][step // 4]; ct = step % 4
        for ks in range(2):
            r = WS + (step % 2)*8 + ks*4
            a(f'ds_read_b128 v[{r}:{r+3}], v{vLANE16} offset:{L_W2F + ((p*4+ct)*2+ks)*1024}')
    for k in range(4): a(f'v_mul_f32 v{g0+k}, v{g0+k}, v{inv}')
    a(f'v_cvt_pk_bf16_f32 v{RBF}, v{g0}, v{g0+1}')
    a(f'v_cvt_pk_bf16_f32 v{RBF+1}, v{g0+2}, v{g0+3}')
    a(f'v_and_b32 v{RBF}, v{RBF}, v{vM}')
    a(f'v_and_b32 v{RBF+1}, v{RBF+1}, v{vM}')
    wread(0)
    a(f's_cmp_eq_u32 s{sFIRST}, 0')
    a.br('s_cbranch_scc1 L2_nores')
    for c in range(4):
        for ct in range(4):
            for r in range(4):
                src = D3 + (c*2 + (r >> 1))*4 + 2*(r & 1) + (ct >> 1)
                dst = ACC + c*16 + ct*4 + r
                if ct & 1: a(f'v_and_b32 v{dst}, v{vMHI}, v{src}')
                else:      a(f'v_lshlrev_b32 v{dst}, 16, v{src}')
    a.label('L2_nores')
    a('s_waitcnt lgkmcnt(5)')
    a(f's_mov_b32 s{sT0}, 0x00010001')
    for i in range(4): a(f'v_xor_b32 v{SEL+i}, v{SEL+i}, v{vNQ}')
    for i in range(4): a(f'v_pk_min_u16 v{SEL+i}, v{SEL+i}, s{sT0}')
    for i in range(4): a(f'v_pk_sub_u16 v{SEL+i}, v{SEL+i}, s{sT0}')
    def wf(p):
        for et in range(2):
            a(f'v_mfma_f32_16x16x4bf16_1k v[{D3+16*et}:{D3+16*et+15}], v[{RBF}:{RBF+1}], v[{WR+2*p}:{WR+2*p+1}], 0 cbsz:2 abid:{et}')
    wf(0)
    a('s_waitcnt lgkmcnt(2)')
    for j in range(3):
        for i in range(4): a(f'v_and_b32 v{SR+4*j+i}, v{SR+4*j+i}, v{SEL+i}')
    for i in range(4): a(f'v_and_b32 v{SEL+i}, v{SEL+i}, v{vBF1}')
    a('s_waitcnt vmcnt(24)')
    def l2_mfma(step):
        d = D2 + (step % 2)*8; w = WS + (step % 2)*8
        for ks in range(2):
            for et in range(2):
                c = '0' if ks == 0 else f'v[{d+4*et}:{d+4*et+3}]'
                a(f'v_mfma_f32_16x16x32_bf16 v[{d+4*et}:{d+4*et+3}], v[{H+et*8+ks*4}:{H+et*8+ks*4+3}], v[{w+4*ks}:{w+4*ks+3}], {c}')
    def l2_valu(step):
        part = step // 4; ct = step % 4; d = D2 + (step % 2)*8
        for et in range(2):
            for r in range(4):
                m = D3 + et*16 + ct*4 + r
                dst = m if part == 2 else d + 4*et + r
                a(f'v_mul_f32 v{dst}, v{d+4*et+r}, v{m}')
        if part == 2: return
        P = d if part == 0 else PVR + 4*ct
        for i in range(4):
            a(f'v_cvt_pk_bf16_f32 v{P+i}, v{d+2*i}, v{d+2*i+1}')
        if part == 0:
            acc = ACC + ct*4
            a(f'v_mfma_f32_16x16x32_bf16 v[{acc}:{acc+3}], v[{P}:{P+3}], v[{SEL}:{SEL+3}], v[{acc}:{acc+3}]')
    def sr_mfma(j, ct):
        acc = ACC + (1+j)*16 + ct*4
        a(f'v_mfma_f32_16x16x32_bf16 v[{acc}:{acc+3}], v[{PVR+4*ct}:{PVR+4*ct+3}], v[{SR+4*j}:{SR+4*j+3}], v[{acc}:{acc+3}]')
    for step in range(12):
        if step + 1 < 12:
            wread(step + 1)
            a('s_waitcnt lgkmcnt(2)')
        else:
            a('s_waitcnt lgkmcnt(0)')
        l2_mfma(step)
        if step > 0:
            l2_valu(step - 1)
            if step == 4: wf(2)
            if step == 8: wf(1)
    l2_valu(11)
    def pv_valu(j, ct, U):
        for jj in range(8):
            src = V + j*16 + jj*2 + (ct >> 1)
            if ct & 1: a(f'v_and_b32 v{U+jj}, v{vMHI}, v{src}')
            else:      a(f'v_lshlrev_b32 v{U+jj}, 16, v{src}')
        for jj in range(8):
            m = D3 + (jj >> 2)*16 + ct*4 + (jj & 3)
            a(f'v_mul_f32 v{U+jj}, v{U+jj}, v{m}')
        for i in range(4):
            a(f'v_cvt_pk_bf16_f32 v{U+i}, v{U+2*i}, v{U+2*i+1}')
    n = 0
    for j in range(3):
        a(f's_waitcnt vmcnt({16 - 8*j})')
        for ct in range(4):
            U = D2 + (n % 4)*8; n += 1
            pv_valu(j, ct, U)
            sr_mfma(j, ct)
            acc = ACC + (1+j)*16 + ct*4
            a(f'v_mfma_f32_16x16x32_bf16 v[{acc}:{acc+3}], v[{U}:{U+3}], v[{SEL}:{SEL+3}], v[{acc}:{acc+3}]')
    a(f's_add_u32 s{sE0}, s{sE0}, 32')
    a(f's_mov_b32 s{sFIRST}, 0')
    a(f's_cmp_lt_u32 s{sE0}, s{sE1}')
    a('s_cbranch_scc0 L2_pack')
    a.br('s_branch L2_tile')
    a.label('L2_pack', settle=False)
    a.hist = []
    for c in range(4):
        if c == 3: a('s_nop 0')
        for hh in range(2):
            for d in range(4):
                lo = ACC + c*16 + (2*(d & 1))*4 + 2*hh + (d >> 1)
                a(f'v_cvt_pk_bf16_f32 v{D3+(c*2+hh)*4+d}, v{lo}, v{lo+4}')
    a.label('L2_store')
    a(f's_mov_b64 exec, s[{sEXQ}:{sEXQ+1}]')
    nt = ' nt' if opt.nt_out else ''
    for c in range(4):
        for hh in range(2):
            r = D3 + (c*2+hh)*4
            a(f'buffer_store_dwordx4 v[{r}:{r+3}], v{vRES}, s[{sOUT}:{sOUT+3}], 0 offen offset:{c*128+hh*64}{nt}')
    a('s_mov_b64 exec, -1')
    a.br('s_branch L2_item')
    a.label('L2_rounddone')
    stamp(a, 1, 4)
    a(f's_cmp_eq_u32 s{sMORE}, 0')
    a.br('s_cbranch_scc1 L2_fin')
    a('s_waitcnt vmcnt(0) lgkmcnt(0)')
    a('s_barrier')
    srd(a, sRES, 20, 0, R*512, mul=R*512)
    a('v_lshrrev_b32 v40, 2, v0')
    a('v_lshlrev_b32 v41, 6, v40')
    a(f'buffer_load_dword v42, v41, s[{sSLOT}:{sSLOT+3}], 0 offen')
    a('v_add_u32 v41, 8192, v41')
    a(f'buffer_load_dword v43, v41, s[{sSLOT}:{sSLOT+3}], 0 offen')
    a('v_and_b32 v39, 3, v0')
    a('v_lshlrev_b32 v39, 2, v39')
    a(f's_lshl_b32 s{sT0}, s{sROUND}, 4')
    a(f's_add_u32 s{sT1}, s{sT0}, {CAP}')
    a(f's_add_u32 s{sROUND}, s{sROUND}, 1')
    a(f'v_mul_u32_u24 v40, {CH*4}, v40')
    a('v_lshl_add_u32 v40, v39, 2, v40')
    a(f's_lshl_b32 s{sT0}, s{sT0}, 2')
    a(f'v_add_u32 v40, s{sT0}, v40')
    a('s_waitcnt vmcnt(0)')
    for h in range(2):
        a(f'v_lshrrev_b32 v44, 16, v{42+h}')
        a(f'v_lshl_add_u32 v44, v44, 2, v40')
        if h: a(f'v_add_u32 v44, {128*CH*4}, v44')
        a(f'buffer_load_dwordx4 v[{W+4*h}:{W+4*h+3}], v44, s[{sOVF}:{sOVF+3}], 0 offen')
        a(f'v_and_b32 v{CNT+h}, 0xffff, v{42+h}')
        a(f'v_subrev_u32 v{CNT+h}, s{sT1}, v{CNT+h}')
        a(f'v_med3_i32 v{LIM+h}, v{CNT+h}, 0, 16')
        a(f'v_subrev_u32 v{CNT+h}, 16, v{CNT+h}')
    a('s_waitcnt vmcnt(0)')
    a.br('s_branch L2_round')
    a.label('L2_fin')
    if opt.ts:
        a('s_waitcnt vmcnt(0)')
        stamp(a, 1, 5)
    a.label('L2_end')
    a('s_endpgm')

def build():
    src = open('gather_scatter__molecular_angular_painn__graph.s.ref').read().split('\n')
    head = []
    for ln in src:
        if not ln.startswith(';'): break
        if '@launch' in ln or 'Override launch' in ln or 'grid=ceil' in ln: continue
        head.append(ln)
    k1, k2 = 'painn_bin_kernel', 'painn_msg_kernel'
    head.append(f'; @launch kernel={k1} grid=({NB},1,1) block=(1024,1,1) lds={K1_LDS}')
    head.append(f'; @launch kernel={k2} grid=({NB},1,1) block=(512,1,1) lds={K2_LDS}')
    a = Asm()
    a.raw('.amdgcn_target "amdgcn-amd-amdhsa--gfx950"\n.text')
    gen_k1(a, k1)
    gen_k2(a, k2)
    out = '\n'.join(head) + '\n' + a.text() + '.section .rodata,"a"\n' + descriptor(k1, 128) + descriptor(k2, K2_VGPR)
    return out

if __name__ == '__main__':
    outp = sys.argv[1]
    for kv in sys.argv[2:]:
        k, val = kv.split('=')
        setattr(opt, k, type(getattr(opt, k))(eval(val)))
    open(outp, 'w').write(build())
```

```python
import sys, struct
from asmlib import Asm

N = 25000; NB = 250; R = 100; CH = 3200
H_OFF = 0; SLOT_OFF = 0x400000; OVF_OFF = 0x800000; W2F_OFF = 0xC00000; WRF_OFF = W2F_OFF + 24576
POS4_OFF = 0xC10000; TS_OFF = 0xE00000
CAP = 15

def f2u(x): return struct.unpack('<I', struct.pack('<f', x))[0]
def fl(x): return '0x%08x' % f2u(x)
def v(i, n=1): return f'v{i}' if n == 1 else f'v[{i}:{i+n-1}]'
def s(i, n=1): return f's{i}' if n == 1 else f's[{i}:{i+n-1}]'

class Opt:
    ts = False
    dbg = False
    nt_edges = False
    nt_out = False
    thr = 24.3
    rot = 4
    prio = False
opt = Opt()

def srd(a, d, base, off, size, mul=None):
    if mul is not None:
        a(f's_mul_i32 s{d+2}, s2, {mul}')
        if off: a(f's_add_u32 s{d+2}, s{d+2}, {off}')
        a(f's_add_u32 s{d}, s{base}, s{d+2}')
        a(f's_addc_u32 s{d+1}, s{base+1}, 0')
    elif off:
        a(f's_add_u32 s{d}, s{base}, {off}')
        a(f's_addc_u32 s{d+1}, s{base+1}, 0')
    else:
        a(f's_mov_b32 s{d}, s{base}')
        a(f's_mov_b32 s{d+1}, s{base+1}')
    a(f's_mov_b32 s{d+2}, {size}')
    a(f's_mov_b32 s{d+3}, 0x20000')

def stamp(a, kern, idx, tmpv=None):
    if not opt.ts: return
    a.settle()
    L = f'Lts_{kern}_{idx}_{stamp.n}'; stamp.n += 1
    a(f's_cmp_lg_u32 s3, {stamp.wave}')
    a.br(f's_cbranch_scc1 {L}')
    a('s_memrealtime s[92:93]')
    a('s_mov_b64 s[94:95], exec')
    a('s_mov_b64 exec, 1')
    a('s_waitcnt lgkmcnt(0)')
    t = stamp.tmp
    a(f'v_mov_b32 v{t}, s92')
    a(f'v_mov_b32 v{t+1}, s93')
    a(f'v_mov_b32 v{t+2}, 0')
    a(f'buffer_store_dwordx2 v[{t}:{t+1}], v{t+2}, s[96:99], 0 offen offset:{idx*8}')
    a('s_mov_b64 exec, s[94:95]')
    a.label(L)
stamp.n = 0; stamp.wave = 0; stamp.tmp = 0

def stamp_init(a, kern):
    if not opt.ts: return
    a(f's_lshl_b32 s98, s2, 7')
    a(f's_add_u32 s98, s98, {TS_OFF + kern*256*128}')
    a('s_add_u32 s96, s24, s98')
    a('s_addc_u32 s97, s25, 0')
    a('s_mov_b32 s98, 128')
    a('s_mov_b32 s99, 0x20000')

def dbg_init(a, kern):
    if not opt.dbg: return
    a('s_load_dwordx2 s[96:97], s[0:1], 72')
    a('s_waitcnt lgkmcnt(0)')
    if kern:
        a('s_sub_u32 s96, s96, 512')
        a('s_subb_u32 s97, s97, 0')
    a('s_mov_b32 s98, 64')
    a('s_mov_b32 s99, 0x20000')

def dbg(a, idx, allwg=False):
    if not opt.dbg: return
    a.settle()
    L = f'Ldbg_{stamp.n}'; stamp.n += 1
    a('s_cmp_lg_u32 s3, 0')
    a.br(f's_cbranch_scc1 {L}')
    if not allwg:
        a('s_cmp_lg_u32 s2, 0')
        a.br(f's_cbranch_scc1 {L}')
    a('s_memrealtime s[92:93]')
    a('s_mov_b64 s[94:95], exec')
    a('s_mov_b64 exec, 1')
    a('s_waitcnt lgkmcnt(0)')
    t = stamp.tmp
    a(f'v_mov_b32 v{t}, s92')
    a(f'v_mov_b32 v{t+2}, 0')
    a(f'buffer_atomic_umax v{t}, v{t+2}, s[96:99], 0 offen offset:{idx*4}')
    a('s_mov_b64 exec, s[94:95]')
    a.label(L)

def header(a, name):
    a.raw(f'.globl {name}\n.p2align 8\n.type {name},@function\n{name}:')
    a.hist = []

def descriptor(name, vgpr, sgpr=102):
    acc = (vgpr + 3) // 4 * 4
    return f'''.p2align 6
.amdhsa_kernel {name}
  .amdhsa_next_free_vgpr {vgpr}
  .amdhsa_next_free_sgpr {sgpr}
  .amdhsa_accum_offset {acc}
  .amdhsa_group_segment_fixed_size 0
  .amdhsa_kernarg_size 88
  .amdhsa_user_sgpr_count 2
  .amdhsa_user_sgpr_kernarg_segment_ptr 1
  .amdhsa_system_sgpr_workgroup_id_x 1
  .amdhsa_float_denorm_mode_32 3
.end_amdhsa_kernel
'''

def emit_Q(a, dst, q, t):
    a(f'v_lshrrev_b32 v{dst}, 2, v{q}')
    a(f'v_lshlrev_b32 v{dst}, 1, v{dst}')
    a(f'v_and_b32 v{t}, 1, v{q}')
    a(f'v_add_u32 v{dst}, v{dst}, v{t}')
    a(f'v_and_b32 v{t}, 2, v{q}')
    a(f'v_lshl_add_u32 v{dst}, v{t}, 2, v{dst}')

K1_POS = 0; K1_CNT = 150528; K1_OVB = 151808; K1_W1 = 152832; K1_LDS = 161024

def gen_k1(a, name):
    header(a, name)
    stamp.tmp = 60; stamp.wave = 0
    a('s_cmp_ge_u32 s2, %d' % NB)
    a('s_cbranch_scc1 L1_end')
    a('s_load_dwordx8 s[4:11], s[0:1], 0')
    a('s_load_dwordx8 s[12:19], s[0:1], 32')
    a('s_load_dwordx2 s[24:25], s[0:1], 80')
    a('v_lshrrev_b32 v1, 6, v0')
    a('v_and_b32 v2, 63, v0')
    a('v_readfirstlane_b32 s3, v1')
    a('v_lshlrev_b32 v3, 4, v2')
    a('v_mov_b32 v40, 0')
    a('s_cmp_ge_u32 s3, 5')
    a.br('s_cbranch_scc1 L1_nozero')
    a('v_lshlrev_b32 v41, 2, v0')
    a(f'v_add_u32 v41, {K1_CNT}, v41')
    a('ds_write_b32 v41, v40')
    a.label('L1_nozero')
    a('s_waitcnt lgkmcnt(0)')
    stamp_init(a, 0)
    stamp(a, 0, 0)
    dbg_init(a, 0)
    dbg(a, 0)
    dbg(a, 1, True)
    a('s_cmp_ge_u32 s3, 13')
    a.br('s_cbranch_scc1 L1_hpath')
    srd(a, 28, 8, 0, CH*4, mul=CH*4)
    srd(a, 32, 10, 0, CH*4, mul=CH*4)
    srd(a, 36, 6, 0, N*6)
    a('v_lshlrev_b32 v1, 4, v0')
    nt = ' nt' if opt.nt_edges else ''
    a(f'buffer_load_dwordx4 v[4:7], v1, s[28:31], 0 offen{nt}')
    a(f'buffer_load_dwordx4 v[8:11], v1, s[32:35], 0 offen{nt}')
    a('s_lshr_b32 s40, s2, 3')
    a(f's_mul_i32 s40, s40, {opt.rot}')
    a('s_add_u32 s40, s40, s3')
    for i in range(12):
        if i == 11:
            a('s_cmp_ge_u32 s3, 4')
            a.br('s_cbranch_scc1 L1_dmadone')
        a('s_sub_u32 s41, s40, 147')
        a('s_cmp_ge_u32 s40, 147')
        a('s_cselect_b32 s40, s41, s40')
        a('s_lshl_b32 s41, s40, 10')
        a('s_mov_b32 m0, s41')
        a('s_add_u32 s40, s40, 13')
        a('buffer_load_dwordx4 v3, s[36:39], s41 offen lds')
    a.label('L1_dmadone')
    a('s_mov_b64 s[42:43], -1')
    a('s_cmp_eq_u32 s3, 12')
    a('s_cselect_b32 s43, 0, s43')
    a(f's_mov_b32 s44, {fl(opt.thr)}')
    a(f's_mov_b32 s45, -100')
    a(f's_mov_b32 s46, {K1_CNT}')
    a('v_mov_b32 v59, 0xffff0000')
    stamp(a, 0, 1)
    a('s_waitcnt vmcnt(0) lgkmcnt(0)')
    a('s_barrier')
    stamp(a, 0, 2)
    dbg(a, 2)
    dbg(a, 3, True)
    for i in range(4):
        a(f'v_mul_u32_u24 v{12+i}, 6, v{4+i}')
        a(f'v_mul_u32_u24 v{16+i}, 6, v{8+i}')
        a(f'v_and_b32 v36, -4, v{12+i}')
        a(f'v_and_b32 v37, -4, v{16+i}')
        a(f'ds_read2_b32 v[{20+2*i}:{21+2*i}], v36 offset1:1')
        a(f'ds_read2_b32 v[{28+2*i}:{29+2*i}], v37 offset1:1')
    for i in range(4):
        a(f'v_mul_u32_u24 v36, 5243, v{8+i}')
        a(f'v_lshrrev_b32 v36, 19, v36')
        a(f'v_mad_i32_i24 v37, v36, s45, v{8+i}')
        a(f'v_lshl_or_b32 v{48+i}, v{4+i}, 9, v37')
        a(f'v_lshlrev_b32 v{44+i}, 2, v36')
        a(f'v_add_u32 v{52+i}, {K1_CNT}, v{44+i}')
    a('v_mov_b32 v56, 1')
    for i in range(4):
        p, q = 20+2*i, 28+2*i
        a(f's_waitcnt lgkmcnt({6-2*i})')
        a(f'v_alignbyte_b32 v36, v{p+1}, v{p}, v{12+i}')
        a(f'v_alignbyte_b32 v37, v{p+1}, v{p+1}, v{12+i}')
        a(f'v_alignbyte_b32 v38, v{q+1}, v{q}, v{16+i}')
        a(f'v_alignbyte_b32 v39, v{q+1}, v{q+1}, v{16+i}')
        a(f'v_lshlrev_b32 v{p}, 16, v36')
        a(f'v_lshlrev_b32 v{q}, 16, v38')
        a(f'v_and_b32 v36, v59, v36')
        a(f'v_and_b32 v38, v59, v38')
        a(f'v_lshlrev_b32 v37, 16, v37')
        a(f'v_lshlrev_b32 v39, 16, v39')
        a(f'v_sub_f32 v{p}, v{p}, v{q}')
        a(f'v_sub_f32 v36, v36, v38')
        a(f'v_sub_f32 v37, v37, v39')
        a(f'v_mul_f32 v{p}, v{p}, v{p}')
        a(f'v_fmac_f32 v{p}, v36, v36')
        a(f'v_fmac_f32 v{p}, v37, v37')
        a(f'v_cmp_ngt_f32 s[{64+2*i}:{65+2*i}], v{p}, s44')
        a(f's_and_b64 s[{64+2*i}:{65+2*i}], s[{64+2*i}:{65+2*i}], s[42:43]')
    for i in range(4):
        a(f's_mov_b64 exec, s[{64+2*i}:{65+2*i}]')
        a(f'ds_add_rtn_u32 v{12+i}, v{52+i}, v56')
    a('s_mov_b64 exec, -1')
    a('s_waitcnt lgkmcnt(0)')
    a('s_barrier')
    stamp(a, 0, 3)
    for i in range(4):
        a(f'v_cmp_gt_u32 s[{72+2*i}:{73+2*i}], {CAP}, v{12+i}')
        a(f'v_lshlrev_b32 v{16+i}, 4, v{44+i}')
        a(f'v_lshl_add_u32 v{16+i}, v{12+i}, 2, v{16+i}')
    for i in range(4):
        a(f's_and_b64 exec, s[{72+2*i}:{73+2*i}], s[{64+2*i}:{65+2*i}]')
        a(f'ds_write_b32 v{16+i}, v{48+i} offset:4')
        a(f's_andn2_b64 s[{64+2*i}:{65+2*i}], s[{64+2*i}:{65+2*i}], s[{72+2*i}:{73+2*i}]')
    a('s_mov_b64 exec, -1')
    a('s_cmp_ge_u32 s3, 4')
    a.br('s_cbranch_scc1 L1_nohdr')
    a('v_lshlrev_b32 v20, 2, v0')
    a(f'v_add_u32 v21, {K1_CNT}, v20')
    a('ds_read_b32 v22, v21')
    a('v_mov_b32 v23, 0')
    a('v_lshlrev_b32 v24, 6, v0')
    a('s_waitcnt lgkmcnt(0)')
    a(f'v_cmp_lt_u32 vcc, {CAP}, v22')
    a('s_and_saveexec_b64 s[80:81], vcc')
    a.br('s_cbranch_execz L1_hdr_noovf')
    a(f'v_subrev_u32 v25, {CAP}, v22')
    a(f'v_mov_b32 v26, {K1_CNT + 1024}')
    a('ds_add_rtn_u32 v23, v26, v25')
    a(f'v_add_u32 v21, {K1_OVB}, v20')
    a('s_waitcnt lgkmcnt(0)')
    a('ds_write_b32 v21, v23')
    a.label('L1_hdr_noovf')
    a('s_mov_b64 exec, s[80:81]')
    a('v_lshl_or_b32 v22, v23, 16, v22')
    a('ds_write_b32 v24, v22')
    a.label('L1_nohdr')
    a('s_waitcnt lgkmcnt(0)')
    a('s_barrier')
    a('s_or_b64 s[72:73], s[64:65], s[66:67]')
    a('s_or_b64 s[74:75], s[68:69], s[70:71]')
    a('s_or_b64 s[72:73], s[72:73], s[74:75]')
    a.br('s_cbranch_scc0 L1_dump')
    srd(a, 28, 24, OVF_OFF, CH*4, mul=CH*4)
    for i in range(4):
        a(f's_mov_b64 exec, s[{64+2*i}:{65+2*i}]')
        a.br(f's_cbranch_execz L1_ovf{i}')
        a(f'v_add_u32 v20, {K1_OVB}, v{44+i}')
        a('ds_read_b32 v21, v20')
        a('s_waitcnt lgkmcnt(0)')
        a(f'v_add_u32 v21, v21, v{12+i}')
        a(f'v_subrev_u32 v21, {CAP}, v21')
        a('v_lshlrev_b32 v21, 2, v21')
        a(f'buffer_store_dword v{48+i}, v21, s[28:31], 0 offen')
        a.label(f'L1_ovf{i}')
    a('s_mov_b64 exec, -1')
    a.br('s_branch L1_dump')

    a.label('L1_hpath')
    a('s_sub_u32 s40, s3, 13')
    srd(a, 28, 14, 0, 8192)
    srd(a, 32, 4, 0, R*512, mul=R*512)
    srd(a, 36, 24, H_OFF, R*128, mul=R*128)
    for i in range(8):
        a(f's_mov_b32 m0, {K1_W1 + i*1024}')
        a(f's_mov_b32 s41, {i*1024}')
        a('buffer_load_dwordx4 v3, s[28:31], s41 offen lds')
    a('v_and_b32 v4, 15, v2')
    a('v_lshrrev_b32 v5, 4, v2')
    a('s_lshl_b32 s41, s40, 4')
    a('v_add_u32 v6, s41, v4')
    a('v_lshlrev_b32 v7, 4, v5')
    a('v_lshl_add_u32 v8, v6, 9, v7')
    a('v_lshl_add_u32 v9, v6, 7, v7')
    a('buffer_load_dwordx4 v[12:15], v8, s[32:35], 0 offen')
    a('buffer_load_dwordx4 v[16:19], v8, s[32:35], 0 offen offset:64')
    a(f'v_add_u32 v8, {48*512}, v8')
    a('buffer_load_dwordx4 v[20:23], v8, s[32:35], 0 offen')
    a('buffer_load_dwordx4 v[24:27], v8, s[32:35], 0 offen offset:64')
    a(f'v_add_u32 v8, {48*512}, v8')
    a('buffer_load_dwordx4 v[28:31], v8, s[32:35], 0 offen')
    a('buffer_load_dwordx4 v[32:35], v8, s[32:35], 0 offen offset:64')
    a('v_lshrrev_b32 v10, 2, v4')
    a('v_lshl_add_u32 v10, v5, 3, v10')
    a('v_and_b32 v11, 3, v4')
    a('v_lshlrev_b32 v11, 3, v11')
    a('v_lshl_add_u32 v10, v10, 7, v11')
    a(f'v_add_u32 v10, {K1_W1}, v10')
    a('s_waitcnt vmcnt(6)')
    FR = 64
    for ht in range(4):
        for ks in range(2):
            r = FR + (ht*2+ks)*4
            for hf in range(2):
                a(f'ds_read_b64_tr_b16 v[{r+2*hf}:{r+2*hf+1}], v10 offset:{ks*4096 + ht*32 + hf*512}')
    a('s_waitcnt lgkmcnt(0)')
    D = 96; O = 112
    for t in range(3):
        if t == 2:
            a('s_cmp_lg_u32 s40, 0')
            a.br('s_cbranch_scc1 L1_hdone')
        S = 12 + 8*t
        a('s_waitcnt vmcnt(4)')
        for ht in range(4):
            a(f'v_mfma_f32_16x16x32_bf16 v[{D+4*ht}:{D+4*ht+3}], v[{FR+ht*8}:{FR+ht*8+3}], v[{S}:{S+3}], 0')
        for ht in range(4):
            a(f'v_mfma_f32_16x16x32_bf16 v[{D+4*ht}:{D+4*ht+3}], v[{FR+ht*8+4}:{FR+ht*8+7}], v[{S+4}:{S+7}], v[{D+4*ht}:{D+4*ht+3}]')
        for i in range(16):
            a(f'v_cvt_pk_bf16_f32 v{D+i}, 0, v{D+i}')
        T = 120
        for grp in range(4):
            for i in range(4):
                a(f'v_mul_f32 v{T+i}, {fl(-1.4426950408889634)}, v{D+4*grp+i}')
            for i in range(4):
                a(f'v_exp_f32 v{T+i}, v{T+i}')
            for i in range(4):
                a(f'v_add_f32 v{T+i}, 1.0, v{T+i}')
            for i in range(4):
                a(f'v_rcp_f32 v{T+i}, v{T+i}')
            for i in range(4):
                a(f'v_mul_f32 v{T+i}, v{T+i}, v{D+4*grp+i}')
            a(f'v_cvt_pk_bf16_f32 v{O+2*grp}, v{T}, v{T+1}')
            a(f'v_cvt_pk_bf16_f32 v{O+2*grp+1}, v{T+2}, v{T+3}')
        a(f'buffer_store_dwordx4 v[{O}:{O+3}], v9, s[36:39], 0 offen')
        a(f'buffer_store_dwordx4 v[{O+4}:{O+7}], v9, s[36:39], 0 offen offset:64')
        a(f'v_add_u32 v9, {48*128}, v9')
    a.label('L1_hdone')
    a('s_cmp_lg_u32 s40, 2')
    a.br('s_cbranch_scc1 L1_nofrag')
    a('s_cmp_ge_u32 s2, 27')
    a.br('s_cbranch_scc1 L1_nofrag')
    emit_Q(a, 12, 4, 13)
    a('v_lshlrev_b32 v12, 3, v12')
    srd(a, 32, 24, W2F_OFF, 24576 + 1536)
    a('s_cmp_ge_u32 s2, 24')
    a.br('s_cbranch_scc1 L1_wrfrag')
    srd(a, 28, 16, 0, 64*192*2)
    a('s_lshr_b32 s41, s2, 3')
    a('s_lshl_b32 s41, s41, 7')
    a('s_bfe_u32 s47, s2, 0x20001')
    a('s_lshl_b32 s47, s47, 1')
    a('s_add_u32 s41, s41, s47')
    a('s_and_b32 s47, s2, 1')
    a(f's_mul_i32 s47, s47, {32*384}')
    a('s_add_u32 s41, s41, s47')
    a(f'v_mul_u32_u24 v13, {4*384}, v5')
    a('v_add3_u32 v12, v12, v13, s41')
    a(f'v_add_u32 v13, {16*384}, v12')
    for jj in range(8):
        a(f'buffer_load_ushort v{16+jj}, v{12 if jj < 4 else 13}, s[28:31], 0 offen offset:{(jj&3)*384}')
    a('s_lshl_b32 s41, s2, 10')
    a('v_add_u32 v14, s41, v3')
    a('s_waitcnt vmcnt(0)')
    for i in range(4):
        a(f'v_lshl_or_b32 v{16+i}, v{17+2*i}, 16, v{16+2*i}')
    a('buffer_store_dwordx4 v[16:19], v14, s[32:35], 0 offen')
    a.br('s_branch L1_nofrag')
    a.label('L1_wrfrag')
    srd(a, 28, 18, 0, 4*192*2)
    a('s_sub_u32 s41, s2, 24')
    a('s_lshl_b32 s47, s41, 7')
    a('v_lshlrev_b32 v13, 1, v5')
    a('v_add3_u32 v12, v12, v13, s47')
    for k in range(4):
        a(f'buffer_load_ushort v{16+k}, v12, s[28:31], 0 offen offset:{k*384}')
    a('s_lshl_b32 s41, s41, 9')
    a('s_add_u32 s41, s41, 24576')
    a('v_lshlrev_b32 v14, 3, v2')
    a('v_add_u32 v14, s41, v14')
    a('s_waitcnt vmcnt(0)')
    for i in range(2):
        a(f'v_lshl_or_b32 v{16+i}, v{17+2*i}, 16, v{16+2*i}')
    a('buffer_store_dwordx2 v[16:17], v14, s[32:35], 0 offen')
    a.label('L1_nofrag')
    srd(a, 28, 24, POS4_OFF, R*8, mul=R*8)
    a('s_lshl_b32 s41, s40, 6')
    a('v_add_u32 v12, s41, v2')
    a(f's_mul_i32 s41, s2, {R}')
    a('v_add_u32 v13, s41, v12')
    a('v_mul_u32_u24 v13, 6, v13')
    a('v_and_b32 v14, -4, v13')
    a('v_lshlrev_b32 v12, 3, v12')
    a('s_waitcnt lgkmcnt(0)')
    a('s_barrier')
    a('ds_read2_b32 v[16:17], v14 offset1:1')
    a('s_waitcnt lgkmcnt(0)')
    a('v_alignbyte_b32 v18, v17, v16, v13')
    a('v_alignbyte_b32 v19, v17, v17, v13')
    a('v_and_b32 v19, 0xffff, v19')
    a('buffer_store_dwordx2 v[18:19], v12, s[28:31], 0 offen')
    a('s_barrier')
    a('s_barrier')
    a.label('L1_dump')
    stamp(a, 0, 4)
    srd(a, 28, 24, SLOT_OFF, NB*16384)
    a('v_lshlrev_b32 v4, 4, v0')
    a('ds_read_b128 v[8:11], v4')
    a('v_lshrrev_b32 v5, 2, v0')
    a('v_lshlrev_b32 v5, 14, v5')
    a('v_and_b32 v6, 3, v0')
    a('v_lshl_add_u32 v5, v6, 4, v5')
    a('s_lshl_b32 s41, s2, 6')
    a('v_add_u32 v5, s41, v5')
    a('s_waitcnt lgkmcnt(0)')
    a('buffer_store_dwordx4 v[8:11], v5, s[28:31], 0 offen')
    if opt.ts or opt.dbg:
        a('s_waitcnt vmcnt(0)')
        stamp(a, 0, 5)
        dbg(a, 4)
        dbg(a, 5, True)
    a.label('L1_end')
    a('s_endpgm')

L_W2F = 0; L_NCNT = 24576; L_START = L_NCNT + 512; L_DPOS = 25600; L_FLAG = 27648; L_STG = 27680
L_SORT = 30784; K2_LDS = L_SORT + 4*(4000+64)

vLANE16, vK, vQK4, vSTGW, vSTGH, vSTGR, vSTGS, vLPV, vLPH, vLPR, vQQ, vMHI, vBF1, vSTLO, vSTHI, vPACK = range(1, 17)
vNQ, vRES = 17, 18
vE, vM = 19, 20
RBF = 22
WR = 24
SEL = 32; SR = 36
V = 48
H = 96
ACC = 112
D3 = 176
D2 = 208
WS = 224
PVR = 240
K2_VGPR = 256
sSV, sH, sP4, sOUT, sRES, sSLOT, sW2F, sOVF = 28, 32, 36, 40, 44, 48, 52, 80
sF = 56
sNC, sSC, sCNT, sN0, sE0, sE1, sFIRST, sMORE, sROUND, sT0, sT1, sT2, sNE = 60, 61, 62, 63, 84, 85, 86, 87, 88, 89, 90, 91, 26
sEXQ = 22
sA, sB = 64, 66

def chain_step(a):
    a(f's_add_u32 s{sT0}, s{sSC}, 32')
    a(f'v_cmp_ge_u32 s[{sA}:{sA+1}], s{sT0}, v{vSTLO}')
    a(f'v_cmp_ge_u32 s[{sB}:{sB+1}], s{sT0}, v{vSTHI}')
    a(f's_add_u32 s{sT1}, s{sNC}, 16')
    a(f's_add_u32 s{sNC}, s{sNC}, 1')
    a(f's_bcnt1_i32_b64 s{sT0}, s[{sA}:{sA+1}]')
    a(f's_bcnt1_i32_b64 s{sT2}, s[{sB}:{sB+1}]')
    a(f's_add_u32 s{sT0}, s{sT0}, s{sT2}')
    a(f's_sub_u32 s{sT0}, s{sT0}, 1')
    a(f's_min_u32 s{sT0}, s{sT0}, s{sT1}')
    a(f's_max_u32 s{sNC}, s{sNC}, s{sT0}')
    a(f's_and_b32 s{sT0}, s{sNC}, 63')
    a(f'v_readlane_b32 s{sSC}, v{vPACK}, s{sT0}')
    a(f's_lshr_b32 s{sT1}, s{sNC}, 6')
    a(f's_lshl_b32 s{sT1}, s{sT1}, 4')
    a(f's_lshr_b32 s{sSC}, s{sSC}, s{sT1}')
    a(f's_and_b32 s{sSC}, s{sSC}, 0xffff')

adv_n = [0]
def chain_adv(a):
    n = adv_n[0]; adv_n[0] += 1
    a.label(f'L2_adv{n}')
    a(f's_cmp_eq_u32 s{sCNT}, 0')
    a(f's_cbranch_scc1 L2_advdone{n}')
    a(f's_cmp_ge_u32 s{sNC}, {R}')
    a(f's_cbranch_scc1 L2_advdone{n}')
    chain_step(a)
    a(f's_sub_u32 s{sCNT}, s{sCNT}, 1')
    a(f's_branch L2_adv{n}')
    a.label(f'L2_advdone{n}', settle=False)

def Rn(a, d, x):
    a(f'v_cvt_pk_bf16_f32 v{d}, 0, v{x}')

def gen_k2(a, name):
    header(a, name)
    stamp.tmp = 252; stamp.wave = 0
    a('s_cmp_ge_u32 s2, %d' % NB)
    a('s_cbranch_scc1 L2_end')
    a('s_load_dwordx2 s[4:5], s[0:1], 0')
    a('s_load_dwordx2 s[12:13], s[0:1], 32')
    a('s_load_dwordx2 s[20:21], s[0:1], 64')
    a('s_load_dwordx2 s[24:25], s[0:1], 80')
    a('v_lshrrev_b32 v40, 6, v0')
    a('v_and_b32 v41, 63, v0')
    a('v_readfirstlane_b32 s3, v40')
    a(f'v_lshlrev_b32 v{vLANE16}, 4, v41')
    a('v_lshlrev_b32 v42, 4, v0')
    a('s_waitcnt lgkmcnt(0)')
    a('s_load_dwordx2 s[14:15], s[12:13], 0')
    srd(a, sSLOT, 24, SLOT_OFF, NB*64, mul=16384)
    W = V
    a(f'buffer_load_dwordx4 v[{W}:{W+3}], v42, s[{sSLOT}:{sSLOT+3}], 0 offen')
    a(f'v_add_u32 v43, 8192, v42')
    a(f'buffer_load_dwordx4 v[{W+4}:{W+7}], v43, s[{sSLOT}:{sSLOT+3}], 0 offen')
    srd(a, sP4, 24, POS4_OFF, N*8)
    a(f's_mul_i32 s{sT0}, s2, {R*8}')
    a('v_lshlrev_b32 v43, 3, v0')
    a(f'v_add_u32 v43, s{sT0}, v43')
    a('v_cmp_gt_u32 vcc, 128, v0')
    a('v_mov_b32 v44, 0x40000000')
    a('v_cndmask_b32_e64 v43, v44, v43, vcc')
    a(f'buffer_load_dwordx2 v[46:47], v43, s[{sP4}:{sP4+3}], 0 offen')
    srd(a, sW2F, 24, W2F_OFF, 24576 + 1536)
    for i in range(3):
        a(f's_lshl_b32 s{sT0}, s3, 10')
        if i: a(f's_add_u32 s{sT0}, s{sT0}, {i*8192}')
        a(f's_mov_b32 m0, s{sT0}')
        a(f'buffer_load_dwordx4 v{vLANE16}, s[{sW2F}:{sW2F+3}], s{sT0} offen lds')
    a('v_lshlrev_b32 v43, 3, v41')
    a(f's_mov_b32 s{sT0}, 24576')
    for p in range(3):
        a(f'buffer_load_dwordx2 v[{WR+2*p}:{WR+2*p+1}], v43, s[{sW2F}:{sW2F+3}], s{sT0} offen offset:{p*512}')
    stamp_init(a, 1)
    stamp(a, 1, 0)
    dbg_init(a, 1)
    dbg(a, 6)
    dbg(a, 7, True)
    srd(a, sSV, 4, 0, N*512)
    srd(a, sH, 24, H_OFF, N*128)
    srd(a, sOUT, 20, 0, R*512, mul=R*512)
    srd(a, sRES, 4, 0, R*512, mul=R*512)
    srd(a, sOVF, 24, OVF_OFF, NB*CH*4)
    a('v_and_b32 v44, 15, v41')
    a('v_lshrrev_b32 v45, 4, v41')
    a(f'v_lshrrev_b32 v{vK}, 2, v44')
    a(f'v_lshlrev_b32 v{vK}, 3, v{vK}')
    a('v_and_b32 v40, 1, v45')
    a(f'v_lshl_add_u32 v{vK}, v40, 2, v{vK}')
    a('v_and_b32 v40, 3, v44')
    a(f'v_add_u32 v{vK}, v{vK}, v40')
    a(f'v_lshlrev_b32 v{vQK4}, 2, v{vK}')
    a(f's_mul_i32 s{sT0}, s3, 384')
    a(f's_add_u32 s{sT0}, s{sT0}, {L_STG}')
    a(f'v_add_u32 v{vSTGW}, s{sT0}, v{vQK4}')
    a(f'v_add_u32 v{vQK4}, {L_SORT}, v{vQK4}')
    a(f'v_lshl_add_u32 v{vSTGH}, v{vK}, 1, s{sT0}')
    a(f'v_lshl_add_u32 v{vSTGR}, v45, 5, s{sT0}')
    a(f'v_lshl_add_u32 v{vSTGS}, v45, 4, s{sT0}')
    emit_Q(a, vLPV, 44, 40)
    a(f'v_lshlrev_b32 v{vLPV}, 3, v{vLPV}')
    a(f'v_lshlrev_b32 v{vLPH}, 4, v45')
    a(f'v_lshl_add_u32 v{vLPR}, v44, 9, v{vLPH}')
    a(f'v_lshl_or_b32 v{vQQ}, v44, 16, v44')
    a(f'v_mov_b32 v{vMHI}, 0xffff0000')
    a(f'v_mov_b32 v{vBF1}, 0x3f803f80')
    a(f's_mov_b32 s{sROUND}, 0')
    a('s_waitcnt lgkmcnt(0)')
    a(f's_lshl_b32 s{sF}, s14, 16')
    a(f's_and_b32 s{sF+1}, s14, 0xffff0000')
    a(f's_lshl_b32 s{sF+2}, s15, 16')
    a(f's_and_b32 s{sF+3}, s15, 0xffff0000')
    a('v_and_b32 v39, 3, v0')
    a('v_lshlrev_b32 v39, 2, v39')
    a('v_subrev_u32 v39, 1, v39')
    LIM, CNT = 56, 58
    a('s_waitcnt vmcnt(8)')
    a(f'v_mov_b32_dpp v{CNT}, v{W} quad_perm:[0,0,0,0] row_mask:0xf bank_mask:0xf')
    a('s_waitcnt vmcnt(7)')
    a(f'v_mov_b32_dpp v{CNT+1}, v{W+4} quad_perm:[0,0,0,0] row_mask:0xf bank_mask:0xf')
    for h in range(2):
        a(f'v_and_b32 v{CNT+h}, 0xffff, v{CNT+h}')
        a(f'v_min_u32 v{LIM+h}, {CAP}, v{CNT+h}')
        a(f'v_subrev_u32 v{CNT+h}, {CAP}, v{CNT+h}')
    a.label('L2_round')
    a('s_cmp_ge_u32 s3, 3')
    a.br('s_cbranch_scc1 L2_nozero')
    a('v_lshlrev_b32 v40, 2, v0')
    a('v_mov_b32 v41, 0')
    a(f'v_add_u32 v42, {L_FLAG - 512}, v40')
    a(f'v_add_u32 v40, {L_NCNT}, v40')
    a('v_cmp_gt_u32 vcc, 128, v0')
    a('v_cndmask_b32_e64 v40, v42, v40, vcc')
    a('v_cmp_gt_u32 vcc, 129, v0')
    a('s_and_saveexec_b64 s[64:65], vcc')
    a('ds_write_b32 v40, v41')
    a('s_mov_b64 exec, s[64:65]')
    a.label('L2_nozero')
    a('s_waitcnt lgkmcnt(0)')
    a('s_barrier')
    stamp(a, 1, 1)
    A = 60; RK = 68; T = 76
    a('v_mov_b32 v40, 1')
    for i in range(8):
        a(f'v_add_u32 v41, {i & 3}, v39')
        a(f'v_cmp_lt_u32 s[{64+2*i}:{65+2*i}], v41, v{LIM + i//4}')
        a(f'v_and_b32 v{A+i}, 127, v{W+i}')
        a(f'v_lshlrev_b32 v{A+i}, 2, v{A+i}')
        a(f'v_add_u32 v{A+i}, {L_NCNT}, v{A+i}')
    for i in range(8):
        a(f's_mov_b64 exec, s[{64+2*i}:{65+2*i}]')
        a(f'ds_add_rtn_u32 v{RK+i}, v{A+i}, v40')
    a('s_mov_b64 exec, -1')
    a(f'v_max_i32 v41, v{CNT}, v{CNT+1}')
    a('v_cmp_lt_i32 vcc, 0, v41')
    a.br('s_cbranch_vccz L2_noflag')
    a(f'v_mov_b32 v41, {L_FLAG}')
    a('ds_write_b32 v41, v40')
    a.label('L2_noflag')
    a(f's_cmp_lg_u32 s{sROUND}, 0')
    a.br('s_cbranch_scc1 L2_nodpos')
    a('s_cmp_ge_u32 s3, 2')
    a.br('s_cbranch_scc1 L2_nodpos')
    a('s_waitcnt vmcnt(6)')
    a('v_lshlrev_b32 v84, 16, v46')
    a(f'v_and_b32 v85, v{vMHI}, v46')
    a('v_lshlrev_b32 v86, 16, v47')
    a('v_mov_b32 v87, 0')
    a('v_lshlrev_b32 v41, 4, v0')
    a(f'ds_write_b128 v41, v[84:87] offset:{L_DPOS}')
    a.label('L2_nodpos')
    a('s_waitcnt lgkmcnt(0)')
    a('s_barrier')
    stamp(a, 1, 2)
    a(f'v_lshrrev_b32 v41, 2, v{vLANE16}')
    a(f'v_add_u32 v41, {L_NCNT}, v41')
    a('ds_read2st64_b32 v[42:43], v41 offset1:1')
    a(f'v_mov_b32 v44, {L_FLAG}')
    a('ds_read_b32 v45, v44')
    a('s_waitcnt lgkmcnt(0)')
    a(f'v_readfirstlane_b32 s{sMORE}, v45')
    a('v_lshl_or_b32 v42, v43, 16, v42')
    a('v_mov_b32 v43, v42')
    for sh in ('row_shr:1', 'row_shr:2', 'row_shr:4', 'row_shr:8'):
        a(f'v_add_u32_dpp v43, v43, v43 {sh} row_mask:0xf bank_mask:0xf')
    a('v_add_u32_dpp v43, v43, v43 row_bcast:15 row_mask:0xa bank_mask:0xf')
    a('v_add_u32_dpp v43, v43, v43 row_bcast:31 row_mask:0xc bank_mask:0xf')
    a(f'v_readlane_b32 s{sT0}, v43, 63')
    a('v_sub_u32 v43, v43, v42')
    a(f's_and_b32 s{sT0}, s{sT0}, 0xffff')
    a(f'v_and_b32 v{vSTLO}, 0xffff, v43')
    a(f'v_lshrrev_b32 v{vSTHI}, 16, v43')
    a(f'v_add_u32 v{vSTHI}, s{sT0}, v{vSTHI}')
    a(f'ds_write2st64_b32 v41, v{vSTLO}, v{vSTHI} offset0:2 offset1:3')
    for i in range(8):
        a(f'ds_read_b32 v{T+i}, v{A+i} offset:512')
    a(f'v_lshl_or_b32 v{vPACK}, v{vSTHI}, 16, v{vSTLO}')
    a(f'v_cmp_lt_u32 vcc, {(R - 64) * 16}, v{vLANE16}')
    a('v_mov_b32 v44, -1')
    a(f'v_cndmask_b32_e64 v{vSTHI}, v{vSTHI}, v44, vcc')
    for i in range(8):
        a(f's_waitcnt lgkmcnt({7-i})' if i < 7 else 's_waitcnt lgkmcnt(0)')
        a(f'v_add_lshl_u32 v{T+i}, v{T+i}, v{RK+i}, 2')
    for i in range(8):
        a(f's_mov_b64 exec, s[{64+2*i}:{65+2*i}]')
        a(f'ds_write_b32 v{T+i}, v{W+i} offset:{L_SORT}')
    a('s_mov_b64 exec, -1')
    a(f's_mov_b32 s{sNC}, 0')
    a(f's_mov_b32 s{sSC}, 0')
    a(f's_mov_b32 s{sCNT}, s3')
    chain_adv(a)
    a('s_waitcnt vmcnt(0) lgkmcnt(0)')
    a('s_barrier')
    stamp(a, 1, 3)
    dbg(a, 8)
    dbg(a, 9, True)
    a.label('L2_item')
    a(f's_cmp_ge_u32 s{sNC}, {R}')
    a.br('s_cbranch_scc1 L2_rounddone')
    a(f's_mov_b32 s{sN0}, s{sNC}')
    a(f's_mov_b32 s{sE0}, s{sSC}')
    chain_step(a)
    a(f's_mov_b32 s{sE1}, s{sSC}')
    a(f's_sub_u32 s{sT0}, s{sNC}, s{sN0}')
    a(f's_bfm_b32 s{sT1}, s{sT0}, 0')
    a(f's_lshl_b32 s{sT2}, s{sT1}, 16')
    a(f's_or_b32 s{sEXQ}, s{sT1}, s{sT2}')
    a(f's_mov_b32 s{sEXQ+1}, s{sEXQ}')
    a(f's_lshl_b32 s{sT0}, s{sN0}, 9')
    a(f'v_add_u32 v{vRES}, s{sT0}, v{vLPR}')
    a(f's_mul_i32 s{sT0}, s{sN0}, 0x10001')
    a(f'v_add_u32 v{vNQ}, s{sT0}, v{vQQ}')
    a(f's_mov_b64 exec, s[{sEXQ}:{sEXQ+1}]')
    for c in range(4):
        for hh in range(2):
            r = D3 + (c*2+hh)*4
            a(f'buffer_load_dwordx4 v[{r}:{r+3}], v{vRES}, s[{sRES}:{sRES+3}], 0 offen offset:{c*128+hh*64} sc1')
    a('s_mov_b64 exec, -1')
    a(f's_mov_b32 s{sFIRST}, 1')
    a(f's_mov_b32 s{sCNT}, 7')
    a(f's_cmp_lg_u32 s{sE0}, s{sE1}')
    a.br('s_cbranch_scc1 L2_tile')
    chain_adv(a)
    a('s_waitcnt vmcnt(0)')
    a.br('s_branch L2_store')
    a.label('L2_tile')
    X = D2
    a(f's_sub_u32 s{sNE}, s{sE1}, s{sE0}')
    a(f's_lshl_b32 s{sT0}, s{sE0}, 2')
    a(f'v_add_u32 v{X}, s{sT0}, v{vQK4}')
    a(f'ds_read_b32 v{vE}, v{X}')
    a(f'v_subrev_u32 v{vM}, s{sNE}, v{vK}')
    a(f'v_ashrrev_i32 v{vM}, 31, v{vM}')
    a('s_waitcnt lgkmcnt(0)')
    a(f'v_bitop3_b32 v{vE}, v{vE}, v{vM}, v{vM} bitop3:0xf3')
    a(f'v_and_b32 v{X}, 0x7ffffe00, v{vE}')
    a(f'v_and_b32 v{X+1}, 127, v{vE}')
    a(f'ds_write_b32 v{vSTGW}, v{X}')
    a(f'ds_write_b16 v{vSTGH}, v{X+1} offset:128')
    a(f'ds_read_b128 v[{X+8}:{X+11}], v{vSTGR}')
    a(f'ds_read_b128 v[{X+12}:{X+15}], v{vSTGR} offset:16')
    a(f'v_lshrrev_b32 v{X+2}, 6, v{vE}')
    a(f'v_and_b32 v{X+2}, -8, v{X+2}')
    PS = PVR
    DP = PVR + 4
    a(f'buffer_load_dwordx2 v[{PS}:{PS+1}], v{X+2}, s[{sP4}:{sP4+3}], 0 offen')
    a(f'v_lshlrev_b32 v{X+1}, 4, v{X+1}')
    a(f'ds_read_b128 v[{DP}:{DP+3}], v{X+1} offset:{L_DPOS}')
    a(f'v_lshrrev_b32 v{X+3}, 2, v{vE}')
    a(f'v_and_b32 v{X+3}, 0x3fffff80, v{X+3}')
    a(f'v_mov_b32 v{X+4}, v{X+3}')
    a(f'v_permlane16_swap_b32 v{X+3}, v{X+4}')
    a(f'v_add_u32 v{X+3}, v{X+3}, v{vLPH}')
    a(f'v_add_u32 v{X+4}, v{X+4}, v{vLPH}')
    for et in range(2):
        for ks in range(2):
            r = H + et*8 + ks*4
            a(f'buffer_load_dwordx4 v[{r}:{r+3}], v{X+3+et}, s[{sH}:{sH+3}], 0 offen offset:{ks*64}')
    a('s_waitcnt lgkmcnt(1)')
    for jj in range(8):
        a(f'v_add_u32 v{X+8+jj}, v{X+8+jj}, v{vLPV}')
    for j in range(3):
        for jj in range(8):
            r = V + j*16 + jj*2
            a(f'buffer_load_dwordx2 v[{r}:{r+1}], v{X+8+jj}, s[{sSV}:{sSV+3}], 0 offen offset:{128*(j+1)}')
    chain_adv(a)
    a('s_waitcnt vmcnt(28) lgkmcnt(0)')
    rx, ry, rz, t0, t1, t2, dd, inv = range(X, X+8)
    a(f'v_lshlrev_b32 v{rx}, 16, v{PS}')
    a(f'v_and_b32 v{ry}, v{vMHI}, v{PS}')
    a(f'v_lshlrev_b32 v{rz}, 16, v{PS+1}')
    for i in range(3): a(f'v_sub_f32 v{rx+i}, v{rx+i}, v{DP+i}')
    for i in range(3): Rn(a, rx+i, rx+i)
    for i in range(3): a(f'v_mul_f32 v{t0+i}, v{rx+i}, v{rx+i}')
    for i in range(3): Rn(a, t0+i, t0+i)
    a(f'v_add_f32 v{t0}, v{t0}, v{t1}')
    a(f'v_add_f32 v{t0}, v{t0}, v{t2}')
    Rn(a, t0, t0)
    a(f'v_add_f32 v{t0}, {fl(1e-8)}, v{t0}')
    Rn(a, t0, t0)
    a(f'v_sqrt_f32 v{t0}, v{t0}')
    Rn(a, dd, t0)
    a(f'v_rcp_f32 v{inv}, v{dd}')
    g0 = X + 8
    for k in range(4): a(f'v_mul_f32 v{g0+k}, s{sF+k}, v{dd}')
    a(f'v_mul_f32 v{g0+4}, {fl(3.141592653589793)}, v{dd}')
    for k in range(5): Rn(a, g0+k, g0+k)
    a(f'v_mul_f32 v{g0+4}, {fl(0.2)}, v{g0+4}')
    for i in range(3): a(f'v_mul_f32 v{rx+i}, v{rx+i}, v{inv}')
    Rn(a, g0+4, g0+4)
    for k in range(5): a(f'v_mul_f32 v{g0+k}, 0.15915494, v{g0+k}')
    a(f'v_cos_f32 v{g0+4}, v{g0+4}')
    for k in range(4): a(f'v_sin_f32 v{g0+k}, v{g0+k}')
    a(f'v_cvt_pk_bf16_f32 v{t0}, v{rx}, v{ry}')
    a(f'v_cvt_pk_bf16_f32 v{t1}, v{rz}, v{rz}')
    Rn(a, g0+4, g0+4)
    a(f'v_add_f32 v{g0+4}, 1.0, v{g0+4}')
    a(f'v_and_b32 v{t0}, v{t0}, v{vM}')
    a(f'v_and_b32 v{t1}, v{t1}, v{vM}')
    Rn(a, g0+4, g0+4)
    a(f'ds_write_b16 v{vSTGH}, v{t0} offset:192')
    a(f'ds_write_b16_d16_hi v{vSTGH}, v{t0} offset:256')
    a(f'ds_write_b16 v{vSTGH}, v{t1} offset:320')
    a(f'v_mul_f32 v{inv}, 0.5, v{inv}')
    a(f'v_mul_f32 v{inv}, v{inv}, v{g0+4}')
    a(f'ds_read_b128 v[{SEL}:{SEL+3}], v{vSTGS} offset:128')
    for j in range(3):
        a(f'ds_read_b128 v[{SR+4*j}:{SR+4*j+3}], v{vSTGS} offset:{192+64*j}')
    def wread(step):
        p = [0, 2, 1][step // 4]; ct = step % 4
        for ks in range(2):
            r = WS + (step % 2)*8 + ks*4
            a(f'ds_read_b128 v[{r}:{r+3}], v{vLANE16} offset:{L_W2F + ((p*4+ct)*2+ks)*1024}')
    for k in range(4): a(f'v_mul_f32 v{g0+k}, v{g0+k}, v{inv}')
    a(f'v_cvt_pk_bf16_f32 v{RBF}, v{g0}, v{g0+1}')
    a(f'v_cvt_pk_bf16_f32 v{RBF+1}, v{g0+2}, v{g0+3}')
    a(f'v_and_b32 v{RBF}, v{RBF}, v{vM}')
    a(f'v_and_b32 v{RBF+1}, v{RBF+1}, v{vM}')
    wread(0)
    a(f's_cmp_eq_u32 s{sFIRST}, 0')
    a.br('s_cbranch_scc1 L2_nores')
    for c in range(4):
        for ct in range(4):
            for r in range(4):
                src = D3 + (c*2 + (r >> 1))*4 + 2*(r & 1) + (ct >> 1)
                dst = ACC + c*16 + ct*4 + r
                if ct & 1: a(f'v_and_b32 v{dst}, v{vMHI}, v{src}')
                else:      a(f'v_lshlrev_b32 v{dst}, 16, v{src}')
    a.label('L2_nores')
    a('s_waitcnt lgkmcnt(5)')
    a(f's_mov_b32 s{sT0}, 0x00010001')
    for i in range(4): a(f'v_xor_b32 v{SEL+i}, v{SEL+i}, v{vNQ}')
    for i in range(4): a(f'v_pk_min_u16 v{SEL+i}, v{SEL+i}, s{sT0}')
    for i in range(4): a(f'v_pk_sub_u16 v{SEL+i}, v{SEL+i}, s{sT0}')
    def wf(p):
        for et in range(2):
            a(f'v_mfma_f32_16x16x4bf16_1k v[{D3+16*et}:{D3+16*et+15}], v[{RBF}:{RBF+1}], v[{WR+2*p}:{WR+2*p+1}], 0 cbsz:2 abid:{et}')
    wf(0)
    a('s_waitcnt lgkmcnt(2)')
    for j in range(3):
        for i in range(4): a(f'v_and_b32 v{SR+4*j+i}, v{SR+4*j+i}, v{SEL+i}')
    for i in range(4): a(f'v_and_b32 v{SEL+i}, v{SEL+i}, v{vBF1}')
    a('s_waitcnt vmcnt(24)')
    def l2_mfma(step):
        d = D2 + (step % 2)*8; w = WS + (step % 2)*8
        for ks in range(2):
            for et in range(2):
                c = '0' if ks == 0 else f'v[{d+4*et}:{d+4*et+3}]'
                a(f'v_mfma_f32_16x16x32_bf16 v[{d+4*et}:{d+4*et+3}], v[{H+et*8+ks*4}:{H+et*8+ks*4+3}], v[{w+4*ks}:{w+4*ks+3}], {c}')
    def l2_valu(step):
        part = step // 4; ct = step % 4; d = D2 + (step % 2)*8
        for et in range(2):
            for r in range(4):
                m = D3 + et*16 + ct*4 + r
                dst = m if part == 2 else d + 4*et + r
                a(f'v_mul_f32 v{dst}, v{d+4*et+r}, v{m}')
        if part == 2: return
        P = d if part == 0 else PVR + 4*ct
        for i in range(4):
            a(f'v_cvt_pk_bf16_f32 v{P+i}, v{d+2*i}, v{d+2*i+1}')
        if part == 0:
            acc = ACC + ct*4
            a(f'v_mfma_f32_16x16x32_bf16 v[{acc}:{acc+3}], v[{P}:{P+3}], v[{SEL}:{SEL+3}], v[{acc}:{acc+3}]')
    def sr_mfma(j, ct):
        acc = ACC + (1+j)*16 + ct*4
        a(f'v_mfma_f32_16x16x32_bf16 v[{acc}:{acc+3}], v[{PVR+4*ct}:{PVR+4*ct+3}], v[{SR+4*j}:{SR+4*j+3}], v[{acc}:{acc+3}]')
    for step in range(12):
        if step + 1 < 12:
            wread(step + 1)
            a('s_waitcnt lgkmcnt(2)')
        else:
            a('s_waitcnt lgkmcnt(0)')
        l2_mfma(step)
        if step > 0:
            l2_valu(step - 1)
            if step == 4: wf(2)
            if step == 8: wf(1)
    l2_valu(11)
    def pv_valu(j, ct, U):
        for jj in range(8):
            src = V + j*16 + jj*2 + (ct >> 1)
            if ct & 1: a(f'v_and_b32 v{U+jj}, v{vMHI}, v{src}')
            else:      a(f'v_lshlrev_b32 v{U+jj}, 16, v{src}')
        for jj in range(8):
            m = D3 + (jj >> 2)*16 + ct*4 + (jj & 3)
            a(f'v_mul_f32 v{U+jj}, v{U+jj}, v{m}')
        for i in range(4):
            a(f'v_cvt_pk_bf16_f32 v{U+i}, v{U+2*i}, v{U+2*i+1}')
    n = 0
    for j in range(3):
        a(f's_waitcnt vmcnt({16 - 8*j})')
        for ct in range(4):
            U = D2 + (n % 4)*8; n += 1
            pv_valu(j, ct, U)
            sr_mfma(j, ct)
            acc = ACC + (1+j)*16 + ct*4
            a(f'v_mfma_f32_16x16x32_bf16 v[{acc}:{acc+3}], v[{U}:{U+3}], v[{SEL}:{SEL+3}], v[{acc}:{acc+3}]')
    a(f's_add_u32 s{sE0}, s{sE0}, 32')
    a(f's_mov_b32 s{sFIRST}, 0')
    a(f's_cmp_lt_u32 s{sE0}, s{sE1}')
    a('s_cbranch_scc0 L2_pack')
    a.br('s_branch L2_tile')
    a.label('L2_pack', settle=False)
    a.hist = []
    for c in range(4):
        if c == 3: a('s_nop 0')
        for hh in range(2):
            for d in range(4):
                lo = ACC + c*16 + (2*(d & 1))*4 + 2*hh + (d >> 1)
                a(f'v_cvt_pk_bf16_f32 v{D3+(c*2+hh)*4+d}, v{lo}, v{lo+4}')
    a.label('L2_store')
    a(f's_mov_b64 exec, s[{sEXQ}:{sEXQ+1}]')
    nt = ' nt' if opt.nt_out else ''
    for c in range(4):
        for hh in range(2):
            r = D3 + (c*2+hh)*4
            a(f'buffer_store_dwordx4 v[{r}:{r+3}], v{vRES}, s[{sOUT}:{sOUT+3}], 0 offen offset:{c*128+hh*64}{nt}')
    a('s_mov_b64 exec, -1')
    a.br('s_branch L2_item')
    a.label('L2_rounddone')
    stamp(a, 1, 4)
    a(f's_cmp_eq_u32 s{sMORE}, 0')
    a.br('s_cbranch_scc1 L2_fin')
    a('s_waitcnt vmcnt(0) lgkmcnt(0)')
    a('s_barrier')
    srd(a, sRES, 20, 0, R*512, mul=R*512)
    a('v_lshrrev_b32 v40, 2, v0')
    a('v_lshlrev_b32 v41, 6, v40')
    a(f'buffer_load_dword v42, v41, s[{sSLOT}:{sSLOT+3}], 0 offen')
    a('v_add_u32 v41, 8192, v41')
    a(f'buffer_load_dword v43, v41, s[{sSLOT}:{sSLOT+3}], 0 offen')
    a('v_and_b32 v39, 3, v0')
    a('v_lshlrev_b32 v39, 2, v39')
    a(f's_lshl_b32 s{sT0}, s{sROUND}, 4')
    a(f's_add_u32 s{sT1}, s{sT0}, {CAP}')
    a(f's_add_u32 s{sROUND}, s{sROUND}, 1')
    a(f'v_mul_u32_u24 v40, {CH*4}, v40')
    a('v_lshl_add_u32 v40, v39, 2, v40')
    a(f's_lshl_b32 s{sT0}, s{sT0}, 2')
    a(f'v_add_u32 v40, s{sT0}, v40')
    a('s_waitcnt vmcnt(0)')
    for h in range(2):
        a(f'v_lshrrev_b32 v44, 16, v{42+h}')
        a(f'v_lshl_add_u32 v44, v44, 2, v40')
        if h: a(f'v_add_u32 v44, {128*CH*4}, v44')
        a(f'buffer_load_dwordx4 v[{W+4*h}:{W+4*h+3}], v44, s[{sOVF}:{sOVF+3}], 0 offen')
        a(f'v_and_b32 v{CNT+h}, 0xffff, v{42+h}')
        a(f'v_subrev_u32 v{CNT+h}, s{sT1}, v{CNT+h}')
        a(f'v_med3_i32 v{LIM+h}, v{CNT+h}, 0, 16')
        a(f'v_subrev_u32 v{CNT+h}, 16, v{CNT+h}')
    a('s_waitcnt vmcnt(0)')
    a.br('s_branch L2_round')
    a.label('L2_fin')
    if opt.ts or opt.dbg:
        a('s_waitcnt vmcnt(0)')
        stamp(a, 1, 5)
        dbg(a, 10)
        dbg(a, 11, True)
    a.label('L2_end')
    a('s_endpgm')

def build():
    src = open('gather_scatter__molecular_angular_painn__graph.s.ref').read().split('\n')
    head = []
    for ln in src:
        if not ln.startswith(';'): break
        if '@launch' in ln or 'Override launch' in ln or 'grid=ceil' in ln: continue
        head.append(ln)
    k1, k2 = 'painn_bin_kernel', 'painn_msg_kernel'
    head.append(f'; @launch kernel={k1} grid=({NB},1,1) block=(1024,1,1) lds={K1_LDS}')
    head.append(f'; @launch kernel={k2} grid=({NB},1,1) block=(512,1,1) lds={K2_LDS}')
    a = Asm()
    a.raw('.amdgcn_target "amdgcn-amd-amdhsa--gfx950"\n.text')
    gen_k1(a, k1)
    gen_k2(a, k2)
    out = '\n'.join(head) + '\n' + a.text() + '.section .rodata,"a"\n' + descriptor(k1, 128) + descriptor(k2, K2_VGPR)
    return out

if __name__ == '__main__':
    outp = sys.argv[1]
    for kv in sys.argv[2:]:
        k, val = kv.split('=')
        setattr(opt, k, type(getattr(opt, k))(eval(val)))
    open(outp, 'w').write(build())
```

```python
import sys, struct
from asmlib import Asm

N = 25000; NB = 250; R = 100; CH = 3200
H_OFF = 0; SLOT_OFF = 0x400000; OVF_OFF = 0x800000; W2F_OFF = 0xC00000; WRF_OFF = W2F_OFF + 24576
POS4_OFF = 0xC10000; TS_OFF = 0xE00000
CAP = 15

def f2u(x): return struct.unpack('<I', struct.pack('<f', x))[0]
def fl(x): return '0x%08x' % f2u(x)
def v(i, n=1): return f'v{i}' if n == 1 else f'v[{i}:{i+n-1}]'
def s(i, n=1): return f's{i}' if n == 1 else f's[{i}:{i+n-1}]'

class Opt:
    ts = False
    tr = False
    dbg = False
    nt_edges = False
    nt_out = False
    k1st = ''
    outst = ''
    ntpos = False
    thr = 24.3
    rot = 4
    prio = False
opt = Opt()

def srd(a, d, base, off, size, mul=None):
    if mul is not None:
        a(f's_mul_i32 s{d+2}, s2, {mul}')
        if off: a(f's_add_u32 s{d+2}, s{d+2}, {off}')
        a(f's_add_u32 s{d}, s{base}, s{d+2}')
        a(f's_addc_u32 s{d+1}, s{base+1}, 0')
    elif off:
        a(f's_add_u32 s{d}, s{base}, {off}')
        a(f's_addc_u32 s{d+1}, s{base+1}, 0')
    else:
        a(f's_mov_b32 s{d}, s{base}')
        a(f's_mov_b32 s{d+1}, s{base+1}')
    a(f's_mov_b32 s{d+2}, {size}')
    a(f's_mov_b32 s{d+3}, 0x20000')

def stamp(a, kern, idx, tmpv=None):
    if not opt.ts: return
    a.settle()
    L = f'Lts_{kern}_{idx}_{stamp.n}'; stamp.n += 1
    a(f's_cmp_lg_u32 s3, {stamp.wave}')
    a.br(f's_cbranch_scc1 {L}')
    a('s_memrealtime s[92:93]')
    a('s_mov_b64 s[94:95], exec')
    a('s_mov_b64 exec, 1')
    a('s_waitcnt lgkmcnt(0)')
    t = stamp.tmp
    a(f'v_mov_b32 v{t}, s92')
    a(f'v_mov_b32 v{t+1}, s93')
    a(f'v_mov_b32 v{t+2}, 0')
    a(f'buffer_store_dwordx2 v[{t}:{t+1}], v{t+2}, s[96:99], 0 offen offset:{idx*8}')
    a('s_mov_b64 exec, s[94:95]')
    a.label(L)
stamp.n = 0; stamp.wave = 0; stamp.tmp = 0

def stamp_init(a, kern):
    if not opt.ts: return
    a(f's_lshl_b32 s98, s2, 7')
    a(f's_add_u32 s98, s98, {TS_OFF + kern*256*128}')
    a('s_add_u32 s96, s24, s98')
    a('s_addc_u32 s97, s25, 0')
    a('s_mov_b32 s98, 128')
    a('s_mov_b32 s99, 0x20000')

def dbg_init(a, kern):
    if not opt.dbg: return
    a('s_load_dwordx2 s[96:97], s[0:1], 72')
    a('s_waitcnt lgkmcnt(0)')
    if kern:
        a('s_sub_u32 s96, s96, 512')
        a('s_subb_u32 s97, s97, 0')
    a('s_mov_b32 s98, 64')
    a('s_mov_b32 s99, 0x20000')

def dbg(a, idx, allwg=False):
    if not opt.dbg: return
    a.settle()
    L = f'Ldbg_{stamp.n}'; stamp.n += 1
    a('s_cmp_lg_u32 s3, 0')
    a.br(f's_cbranch_scc1 {L}')
    if not allwg:
        a('s_cmp_lg_u32 s2, 0')
        a.br(f's_cbranch_scc1 {L}')
    a('s_memrealtime s[92:93]')
    a('s_mov_b64 s[94:95], exec')
    a('s_mov_b64 exec, 1')
    a('s_waitcnt lgkmcnt(0)')
    t = stamp.tmp
    a(f'v_mov_b32 v{t}, s92')
    a(f'v_mov_b32 v{t+2}, 0')
    a(f'buffer_atomic_umax v{t}, v{t+2}, s[96:99], 0 offen offset:{idx*4}')
    a('s_mov_b64 exec, s[94:95]')
    a.label(L)

TR_OFF = 0x1000000
def tr_init(a):
    if not opt.tr: return
    a('s_lshl_b32 s98, s2, 3')
    a('s_add_u32 s98, s98, s3')
    a('s_lshl_b32 s98, s98, 10')
    a(f's_add_u32 s98, s98, {TR_OFF}')
    a('s_add_u32 s96, s24, s98')
    a('s_addc_u32 s97, s25, 0')
    a('s_mov_b32 s98, 1024')
    a('s_mov_b32 s99, 0x20000')
    a('s_mov_b32 s27, 0')

def tr(a, tag):
    if not opt.tr: return
    a('s_memtime s[92:93]')
    a('s_mov_b64 s[94:95], exec')
    a('s_mov_b64 exec, 1')
    a('s_waitcnt lgkmcnt(0)')
    a('v_mov_b32 v30, s92')
    a(f'v_mov_b32 v31, {tag}')
    a('v_mov_b32 v21, s27')
    a('s_add_u32 s27, s27, 8')
    a('buffer_store_dwordx2 v[30:31], v21, s[96:99], 0 offen')
    a('s_mov_b64 exec, s[94:95]')

def header(a, name):
    a.raw(f'.globl {name}\n.p2align 8\n.type {name},@function\n{name}:')
    a.hist = []

def descriptor(name, vgpr, sgpr=102):
    acc = (vgpr + 3) // 4 * 4
    return f'''.p2align 6
.amdhsa_kernel {name}
  .amdhsa_next_free_vgpr {vgpr}
  .amdhsa_next_free_sgpr {sgpr}
  .amdhsa_accum_offset {acc}
  .amdhsa_group_segment_fixed_size 0
  .amdhsa_kernarg_size 88
  .amdhsa_user_sgpr_count 2
  .amdhsa_user_sgpr_kernarg_segment_ptr 1
  .amdhsa_system_sgpr_workgroup_id_x 1
  .amdhsa_float_denorm_mode_32 3
.end_amdhsa_kernel
'''

def emit_Q(a, dst, q, t):
    a(f'v_lshrrev_b32 v{dst}, 2, v{q}')
    a(f'v_lshlrev_b32 v{dst}, 1, v{dst}')
    a(f'v_and_b32 v{t}, 1, v{q}')
    a(f'v_add_u32 v{dst}, v{dst}, v{t}')
    a(f'v_and_b32 v{t}, 2, v{q}')
    a(f'v_lshl_add_u32 v{dst}, v{t}, 2, v{dst}')

K1_POS = 0; K1_CNT = 150528; K1_OVB = 151808; K1_W1 = 152832; K1_LDS = 161024

def gen_k1(a, name):
    header(a, name)
    stamp.tmp = 60; stamp.wave = 0
    a('s_cmp_ge_u32 s2, %d' % NB)
    a('s_cbranch_scc1 L1_end')
    a('s_load_dwordx8 s[4:11], s[0:1], 0')
    a('s_load_dwordx8 s[12:19], s[0:1], 32')
    a('s_load_dwordx2 s[24:25], s[0:1], 80')
    a('v_lshrrev_b32 v1, 6, v0')
    a('v_and_b32 v2, 63, v0')
    a('v_readfirstlane_b32 s3, v1')
    a('v_lshlrev_b32 v3, 4, v2')
    a('v_mov_b32 v40, 0')
    a('s_cmp_ge_u32 s3, 5')
    a.br('s_cbranch_scc1 L1_nozero')
    a('v_lshlrev_b32 v41, 2, v0')
    a(f'v_add_u32 v41, {K1_CNT}, v41')
    a('ds_write_b32 v41, v40')
    a.label('L1_nozero')
    a('s_waitcnt lgkmcnt(0)')
    stamp_init(a, 0)
    stamp(a, 0, 0)
    dbg_init(a, 0)
    dbg(a, 0)
    dbg(a, 1, True)
    a('s_cmp_ge_u32 s3, 13')
    a.br('s_cbranch_scc1 L1_hpath')
    srd(a, 28, 8, 0, CH*4, mul=CH*4)
    srd(a, 32, 10, 0, CH*4, mul=CH*4)
    srd(a, 36, 6, 0, N*6)
    a('v_lshlrev_b32 v1, 4, v0')
    nt = ' nt' if opt.nt_edges else ''
    a(f'buffer_load_dwordx4 v[4:7], v1, s[28:31], 0 offen{nt}')
    a(f'buffer_load_dwordx4 v[8:11], v1, s[32:35], 0 offen{nt}')
    a('s_lshr_b32 s40, s2, 3')
    a(f's_mul_i32 s40, s40, {opt.rot}')
    a('s_add_u32 s40, s40, s3')
    for i in range(12):
        if i == 11:
            a('s_cmp_ge_u32 s3, 4')
            a.br('s_cbranch_scc1 L1_dmadone')
        a('s_sub_u32 s41, s40, 147')
        a('s_cmp_ge_u32 s40, 147')
        a('s_cselect_b32 s40, s41, s40')
        a('s_lshl_b32 s41, s40, 10')
        a('s_mov_b32 m0, s41')
        a('s_add_u32 s40, s40, 13')
        a('buffer_load_dwordx4 v3, s[36:39], s41 offen lds')
    a.label('L1_dmadone')
    a('s_mov_b64 s[42:43], -1')
    a('s_cmp_eq_u32 s3, 12')
    a('s_cselect_b32 s43, 0, s43')
    a(f's_mov_b32 s44, {fl(opt.thr)}')
    a(f's_mov_b32 s45, -100')
    a(f's_mov_b32 s46, {K1_CNT}')
    a('v_mov_b32 v59, 0xffff0000')
    stamp(a, 0, 1)
    a('s_waitcnt vmcnt(0) lgkmcnt(0)')
    a('s_barrier')
    stamp(a, 0, 2)
    dbg(a, 2)
    dbg(a, 3, True)
    for i in range(4):
        a(f'v_mul_u32_u24 v{12+i}, 6, v{4+i}')
        a(f'v_mul_u32_u24 v{16+i}, 6, v{8+i}')
        a(f'v_and_b32 v36, -4, v{12+i}')
        a(f'v_and_b32 v37, -4, v{16+i}')
        a(f'ds_read2_b32 v[{20+2*i}:{21+2*i}], v36 offset1:1')
        a(f'ds_read2_b32 v[{28+2*i}:{29+2*i}], v37 offset1:1')
    for i in range(4):
        a(f'v_mul_u32_u24 v36, 5243, v{8+i}')
        a(f'v_lshrrev_b32 v36, 19, v36')
        a(f'v_mad_i32_i24 v37, v36, s45, v{8+i}')
        a(f'v_lshl_or_b32 v{48+i}, v{4+i}, 9, v37')
        a(f'v_lshlrev_b32 v{44+i}, 2, v36')
        a(f'v_add_u32 v{52+i}, {K1_CNT}, v{44+i}')
    a('v_mov_b32 v56, 1')
    for i in range(4):
        p, q = 20+2*i, 28+2*i
        a(f's_waitcnt lgkmcnt({6-2*i})')
        a(f'v_alignbyte_b32 v36, v{p+1}, v{p}, v{12+i}')
        a(f'v_alignbyte_b32 v37, v{p+1}, v{p+1}, v{12+i}')
        a(f'v_alignbyte_b32 v38, v{q+1}, v{q}, v{16+i}')
        a(f'v_alignbyte_b32 v39, v{q+1}, v{q+1}, v{16+i}')
        a(f'v_lshlrev_b32 v{p}, 16, v36')
        a(f'v_lshlrev_b32 v{q}, 16, v38')
        a(f'v_and_b32 v36, v59, v36')
        a(f'v_and_b32 v38, v59, v38')
        a(f'v_lshlrev_b32 v37, 16, v37')
        a(f'v_lshlrev_b32 v39, 16, v39')
        a(f'v_sub_f32 v{p}, v{p}, v{q}')
        a(f'v_sub_f32 v36, v36, v38')
        a(f'v_sub_f32 v37, v37, v39')
        a(f'v_mul_f32 v{p}, v{p}, v{p}')
        a(f'v_fmac_f32 v{p}, v36, v36')
        a(f'v_fmac_f32 v{p}, v37, v37')
        a(f'v_cmp_ngt_f32 s[{64+2*i}:{65+2*i}], v{p}, s44')
        a(f's_and_b64 s[{64+2*i}:{65+2*i}], s[{64+2*i}:{65+2*i}], s[42:43]')
    for i in range(4):
        a(f's_mov_b64 exec, s[{64+2*i}:{65+2*i}]')
        a(f'ds_add_rtn_u32 v{12+i}, v{52+i}, v56')
    a('s_mov_b64 exec, -1')
    a('s_waitcnt lgkmcnt(0)')
    a('s_barrier')
    stamp(a, 0, 3)
    for i in range(4):
        a(f'v_cmp_gt_u32 s[{72+2*i}:{73+2*i}], {CAP}, v{12+i}')
        a(f'v_lshlrev_b32 v{16+i}, 4, v{44+i}')
        a(f'v_lshl_add_u32 v{16+i}, v{12+i}, 2, v{16+i}')
    for i in range(4):
        a(f's_and_b64 exec, s[{72+2*i}:{73+2*i}], s[{64+2*i}:{65+2*i}]')
        a(f'ds_write_b32 v{16+i}, v{48+i} offset:4')
        a(f's_andn2_b64 s[{64+2*i}:{65+2*i}], s[{64+2*i}:{65+2*i}], s[{72+2*i}:{73+2*i}]')
    a('s_mov_b64 exec, -1')
    a('s_cmp_ge_u32 s3, 4')
    a.br('s_cbranch_scc1 L1_nohdr')
    a('v_lshlrev_b32 v20, 2, v0')
    a(f'v_add_u32 v21, {K1_CNT}, v20')
    a('ds_read_b32 v22, v21')
    a('v_mov_b32 v23, 0')
    a('v_lshlrev_b32 v24, 6, v0')
    a('s_waitcnt lgkmcnt(0)')
    a(f'v_cmp_lt_u32 vcc, {CAP}, v22')
    a('s_and_saveexec_b64 s[80:81], vcc')
    a.br('s_cbranch_execz L1_hdr_noovf')
    a(f'v_subrev_u32 v25, {CAP}, v22')
    a(f'v_mov_b32 v26, {K1_CNT + 1024}')
    a('ds_add_rtn_u32 v23, v26, v25')
    a(f'v_add_u32 v21, {K1_OVB}, v20')
    a('s_waitcnt lgkmcnt(0)')
    a('ds_write_b32 v21, v23')
    a.label('L1_hdr_noovf')
    a('s_mov_b64 exec, s[80:81]')
    a('v_lshl_or_b32 v22, v23, 16, v22')
    a('ds_write_b32 v24, v22')
    a.label('L1_nohdr')
    a('s_waitcnt lgkmcnt(0)')
    a('s_barrier')
    a('s_or_b64 s[72:73], s[64:65], s[66:67]')
    a('s_or_b64 s[74:75], s[68:69], s[70:71]')
    a('s_or_b64 s[72:73], s[72:73], s[74:75]')
    a.br('s_cbranch_scc0 L1_dump')
    srd(a, 28, 24, OVF_OFF, CH*4, mul=CH*4)
    for i in range(4):
        a(f's_mov_b64 exec, s[{64+2*i}:{65+2*i}]')
        a.br(f's_cbranch_execz L1_ovf{i}')
        a(f'v_add_u32 v20, {K1_OVB}, v{44+i}')
        a('ds_read_b32 v21, v20')
        a('s_waitcnt lgkmcnt(0)')
        a(f'v_add_u32 v21, v21, v{12+i}')
        a(f'v_subrev_u32 v21, {CAP}, v21')
        a('v_lshlrev_b32 v21, 2, v21')
        a(f'buffer_store_dword v{48+i}, v21, s[28:31], 0 offen')
        a.label(f'L1_ovf{i}')
    a('s_mov_b64 exec, -1')
    a.br('s_branch L1_dump')

    a.label('L1_hpath')
    a('s_sub_u32 s40, s3, 13')
    srd(a, 28, 14, 0, 8192)
    srd(a, 32, 4, 0, R*512, mul=R*512)
    srd(a, 36, 24, H_OFF, R*128, mul=R*128)
    for i in range(8):
        a(f's_mov_b32 m0, {K1_W1 + i*1024}')
        a(f's_mov_b32 s41, {i*1024}')
        a('buffer_load_dwordx4 v3, s[28:31], s41 offen lds')
    a('v_and_b32 v4, 15, v2')
    a('v_lshrrev_b32 v5, 4, v2')
    a('s_lshl_b32 s41, s40, 4')
    a('v_add_u32 v6, s41, v4')
    a('v_lshlrev_b32 v7, 4, v5')
    a('v_lshl_add_u32 v8, v6, 9, v7')
    a('v_lshl_add_u32 v9, v6, 7, v7')
    a('buffer_load_dwordx4 v[12:15], v8, s[32:35], 0 offen')
    a('buffer_load_dwordx4 v[16:19], v8, s[32:35], 0 offen offset:64')
    a(f'v_add_u32 v8, {48*512}, v8')
    a('buffer_load_dwordx4 v[20:23], v8, s[32:35], 0 offen')
    a('buffer_load_dwordx4 v[24:27], v8, s[32:35], 0 offen offset:64')
    a(f'v_add_u32 v8, {48*512}, v8')
    a('buffer_load_dwordx4 v[28:31], v8, s[32:35], 0 offen')
    a('buffer_load_dwordx4 v[32:35], v8, s[32:35], 0 offen offset:64')
    a('v_lshrrev_b32 v10, 2, v4')
    a('v_lshl_add_u32 v10, v5, 3, v10')
    a('v_and_b32 v11, 3, v4')
    a('v_lshlrev_b32 v11, 3, v11')
    a('v_lshl_add_u32 v10, v10, 7, v11')
    a(f'v_add_u32 v10, {K1_W1}, v10')
    a('s_waitcnt vmcnt(6)')
    FR = 64
    for ht in range(4):
        for ks in range(2):
            r = FR + (ht*2+ks)*4
            for hf in range(2):
                a(f'ds_read_b64_tr_b16 v[{r+2*hf}:{r+2*hf+1}], v10 offset:{ks*4096 + ht*32 + hf*512}')
    a('s_waitcnt lgkmcnt(0)')
    D = 96; O = 112
    for t in range(3):
        if t == 2:
            a('s_cmp_lg_u32 s40, 0')
            a.br('s_cbranch_scc1 L1_hdone')
        S = 12 + 8*t
        a('s_waitcnt vmcnt(4)')
        for ht in range(4):
            a(f'v_mfma_f32_16x16x32_bf16 v[{D+4*ht}:{D+4*ht+3}], v[{FR+ht*8}:{FR+ht*8+3}], v[{S}:{S+3}], 0')
        for ht in range(4):
            a(f'v_mfma_f32_16x16x32_bf16 v[{D+4*ht}:{D+4*ht+3}], v[{FR+ht*8+4}:{FR+ht*8+7}], v[{S+4}:{S+7}], v[{D+4*ht}:{D+4*ht+3}]')
        for i in range(16):
            a(f'v_cvt_pk_bf16_f32 v{D+i}, 0, v{D+i}')
        T = 120
        for grp in range(4):
            for i in range(4):
                a(f'v_mul_f32 v{T+i}, {fl(-1.4426950408889634)}, v{D+4*grp+i}')
            for i in range(4):
                a(f'v_exp_f32 v{T+i}, v{T+i}')
            for i in range(4):
                a(f'v_add_f32 v{T+i}, 1.0, v{T+i}')
            for i in range(4):
                a(f'v_rcp_f32 v{T+i}, v{T+i}')
            for i in range(4):
                a(f'v_mul_f32 v{T+i}, v{T+i}, v{D+4*grp+i}')
            a(f'v_cvt_pk_bf16_f32 v{O+2*grp}, v{T}, v{T+1}')
            a(f'v_cvt_pk_bf16_f32 v{O+2*grp+1}, v{T+2}, v{T+3}')
        a(f'buffer_store_dwordx4 v[{O}:{O+3}], v9, s[36:39], 0 offen ' + opt.k1st)
        a(f'buffer_store_dwordx4 v[{O+4}:{O+7}], v9, s[36:39], 0 offen offset:64 ' + opt.k1st)
        a(f'v_add_u32 v9, {48*128}, v9')
    a.label('L1_hdone')
    a('s_cmp_lg_u32 s40, 2')
    a.br('s_cbranch_scc1 L1_nofrag')
    a('s_cmp_ge_u32 s2, 27')
    a.br('s_cbranch_scc1 L1_nofrag')
    emit_Q(a, 12, 4, 13)
    a('v_lshlrev_b32 v12, 3, v12')
    srd(a, 32, 24, W2F_OFF, 24576 + 1536)
    a('s_cmp_ge_u32 s2, 24')
    a.br('s_cbranch_scc1 L1_wrfrag')
    srd(a, 28, 16, 0, 64*192*2)
    a('s_lshr_b32 s41, s2, 3')
    a('s_lshl_b32 s41, s41, 7')
    a('s_bfe_u32 s47, s2, 0x20001')
    a('s_lshl_b32 s47, s47, 1')
    a('s_add_u32 s41, s41, s47')
    a('s_and_b32 s47, s2, 1')
    a(f's_mul_i32 s47, s47, {32*384}')
    a('s_add_u32 s41, s41, s47')
    a(f'v_mul_u32_u24 v13, {4*384}, v5')
    a('v_add3_u32 v12, v12, v13, s41')
    a(f'v_add_u32 v13, {16*384}, v12')
    for jj in range(8):
        a(f'buffer_load_ushort v{16+jj}, v{12 if jj < 4 else 13}, s[28:31], 0 offen offset:{(jj&3)*384}')
    a('s_lshl_b32 s41, s2, 10')
    a('v_add_u32 v14, s41, v3')
    a('s_waitcnt vmcnt(0)')
    for i in range(4):
        a(f'v_lshl_or_b32 v{16+i}, v{17+2*i}, 16, v{16+2*i}')
    a('buffer_store_dwordx4 v[16:19], v14, s[32:35], 0 offen')
    a.br('s_branch L1_nofrag')
    a.label('L1_wrfrag')
    srd(a, 28, 18, 0, 4*192*2)
    a('s_sub_u32 s41, s2, 24')
    a('s_lshl_b32 s47, s41, 7')
    a('v_lshlrev_b32 v13, 1, v5')
    a('v_add3_u32 v12, v12, v13, s47')
    for k in range(4):
        a(f'buffer_load_ushort v{16+k}, v12, s[28:31], 0 offen offset:{k*384}')
    a('s_lshl_b32 s41, s41, 9')
    a('s_add_u32 s41, s41, 24576')
    a('v_lshlrev_b32 v14, 3, v2')
    a('v_add_u32 v14, s41, v14')
    a('s_waitcnt vmcnt(0)')
    for i in range(2):
        a(f'v_lshl_or_b32 v{16+i}, v{17+2*i}, 16, v{16+2*i}')
    a('buffer_store_dwordx2 v[16:17], v14, s[32:35], 0 offen')
    a.label('L1_nofrag')
    srd(a, 28, 24, POS4_OFF, R*8, mul=R*8)
    a('s_lshl_b32 s41, s40, 6')
    a('v_add_u32 v12, s41, v2')
    a(f's_mul_i32 s41, s2, {R}')
    a('v_add_u32 v13, s41, v12')
    a('v_mul_u32_u24 v13, 6, v13')
    a('v_and_b32 v14, -4, v13')
    a('v_lshlrev_b32 v12, 3, v12')
    a('s_waitcnt lgkmcnt(0)')
    a('s_barrier')
    a('ds_read2_b32 v[16:17], v14 offset1:1')
    a('s_waitcnt lgkmcnt(0)')
    a('v_alignbyte_b32 v18, v17, v16, v13')
    a('v_alignbyte_b32 v19, v17, v17, v13')
    a('v_and_b32 v19, 0xffff, v19')
    a('buffer_store_dwordx2 v[18:19], v12, s[28:31], 0 offen')
    a('s_barrier')
    a('s_barrier')
    a.label('L1_dump')
    stamp(a, 0, 4)
    srd(a, 28, 24, SLOT_OFF, NB*16384)
    a('v_lshlrev_b32 v4, 4, v0')
    a('ds_read_b128 v[8:11], v4')
    a('v_lshrrev_b32 v5, 2, v0')
    a('v_lshlrev_b32 v5, 14, v5')
    a('v_and_b32 v6, 3, v0')
    a('v_lshl_add_u32 v5, v6, 4, v5')
    a('s_lshl_b32 s41, s2, 6')
    a('v_add_u32 v5, s41, v5')
    a('s_waitcnt lgkmcnt(0)')
    a('buffer_store_dwordx4 v[8:11], v5, s[28:31], 0 offen ' + opt.k1st)
    if opt.ts or opt.dbg:
        a('s_waitcnt vmcnt(0)')
        stamp(a, 0, 5)
        dbg(a, 4)
        dbg(a, 5, True)
    a.label('L1_end')
    a('s_endpgm')

L_W2F = 0; L_NCNT = 24576; L_START = L_NCNT + 512; L_DPOS = 25600; L_FLAG = 27648; L_STG = 27680
L_SORT = 30784; K2_LDS = L_SORT + 4*(4000+64)

vLANE16, vK, vQK4, vSTGW, vSTGH, vSTGR, vSTGS, vLPV, vLPH, vLPR, vQQ, vMHI, vBF1, vSTLO, vSTHI, vPACK = range(1, 17)
vNQ, vRES = 17, 18
vE, vM = 19, 20
RBF = 22
WR = 24
SEL = 32; SR = 36
V = 48
H = 96
ACC = 112
D3 = 176
D2 = 208
WS = 224
PVR = 240
K2_VGPR = 256
sSV, sH, sP4, sOUT, sRES, sSLOT, sW2F, sOVF = 28, 32, 36, 40, 44, 48, 52, 80
sF = 56
sNC, sSC, sCNT, sN0, sE0, sE1, sFIRST, sMORE, sROUND, sT0, sT1, sT2, sNE = 60, 61, 62, 63, 84, 85, 86, 87, 88, 89, 90, 91, 26
sEXQ = 22
sA, sB = 64, 66

def chain_step(a):
    a(f's_add_u32 s{sT0}, s{sSC}, 32')
    a(f'v_cmp_ge_u32 s[{sA}:{sA+1}], s{sT0}, v{vSTLO}')
    a(f'v_cmp_ge_u32 s[{sB}:{sB+1}], s{sT0}, v{vSTHI}')
    a(f's_add_u32 s{sT1}, s{sNC}, 16')
    a(f's_add_u32 s{sNC}, s{sNC}, 1')
    a(f's_bcnt1_i32_b64 s{sT0}, s[{sA}:{sA+1}]')
    a(f's_bcnt1_i32_b64 s{sT2}, s[{sB}:{sB+1}]')
    a(f's_add_u32 s{sT0}, s{sT0}, s{sT2}')
    a(f's_sub_u32 s{sT0}, s{sT0}, 1')
    a(f's_min_u32 s{sT0}, s{sT0}, s{sT1}')
    a(f's_max_u32 s{sNC}, s{sNC}, s{sT0}')
    a(f's_and_b32 s{sT0}, s{sNC}, 63')
    a(f'v_readlane_b32 s{sSC}, v{vPACK}, s{sT0}')
    a(f's_lshr_b32 s{sT1}, s{sNC}, 6')
    a(f's_lshl_b32 s{sT1}, s{sT1}, 4')
    a(f's_lshr_b32 s{sSC}, s{sSC}, s{sT1}')
    a(f's_and_b32 s{sSC}, s{sSC}, 0xffff')

adv_n = [0]
def chain_adv(a):
    n = adv_n[0]; adv_n[0] += 1
    a.label(f'L2_adv{n}')
    a(f's_cmp_eq_u32 s{sCNT}, 0')
    a(f's_cbranch_scc1 L2_advdone{n}')
    a(f's_cmp_ge_u32 s{sNC}, {R}')
    a(f's_cbranch_scc1 L2_advdone{n}')
    chain_step(a)
    a(f's_sub_u32 s{sCNT}, s{sCNT}, 1')
    a(f's_branch L2_adv{n}')
    a.label(f'L2_advdone{n}', settle=False)

def Rn(a, d, x):
    a(f'v_cvt_pk_bf16_f32 v{d}, 0, v{x}')

def gen_k2(a, name):
    header(a, name)
    stamp.tmp = 252; stamp.wave = 0
    a('s_cmp_ge_u32 s2, %d' % NB)
    a('s_cbranch_scc1 L2_end')
    a('s_load_dwordx2 s[4:5], s[0:1], 0')
    a('s_load_dwordx2 s[12:13], s[0:1], 32')
    a('s_load_dwordx2 s[20:21], s[0:1], 64')
    a('s_load_dwordx2 s[24:25], s[0:1], 80')
    a('v_lshrrev_b32 v40, 6, v0')
    a('v_and_b32 v41, 63, v0')
    a('v_readfirstlane_b32 s3, v40')
    a(f'v_lshlrev_b32 v{vLANE16}, 4, v41')
    a('v_lshlrev_b32 v42, 4, v0')
    a('s_waitcnt lgkmcnt(0)')
    a('s_load_dwordx2 s[14:15], s[12:13], 0')
    srd(a, sSLOT, 24, SLOT_OFF, NB*64, mul=16384)
    W = V
    a(f'buffer_load_dwordx4 v[{W}:{W+3}], v42, s[{sSLOT}:{sSLOT+3}], 0 offen')
    a(f'v_add_u32 v43, 8192, v42')
    a(f'buffer_load_dwordx4 v[{W+4}:{W+7}], v43, s[{sSLOT}:{sSLOT+3}], 0 offen')
    srd(a, sP4, 24, POS4_OFF, N*8)
    a(f's_mul_i32 s{sT0}, s2, {R*8}')
    a('v_lshlrev_b32 v43, 3, v0')
    a(f'v_add_u32 v43, s{sT0}, v43')
    a('v_cmp_gt_u32 vcc, 128, v0')
    a('v_mov_b32 v44, 0x40000000')
    a('v_cndmask_b32_e64 v43, v44, v43, vcc')
    a(f'buffer_load_dwordx2 v[46:47], v43, s[{sP4}:{sP4+3}], 0 offen')
    srd(a, sW2F, 24, W2F_OFF, 24576 + 1536)
    for i in range(3):
        a(f's_lshl_b32 s{sT0}, s3, 10')
        if i: a(f's_add_u32 s{sT0}, s{sT0}, {i*8192}')
        a(f's_mov_b32 m0, s{sT0}')
        a(f'buffer_load_dwordx4 v{vLANE16}, s[{sW2F}:{sW2F+3}], s{sT0} offen lds')
    a('v_lshlrev_b32 v43, 3, v41')
    a(f's_mov_b32 s{sT0}, 24576')
    for p in range(3):
        a(f'buffer_load_dwordx2 v[{WR+2*p}:{WR+2*p+1}], v43, s[{sW2F}:{sW2F+3}], s{sT0} offen offset:{p*512}')
    stamp_init(a, 1)
    tr_init(a)
    tr(a, 1)
    stamp(a, 1, 0)
    dbg_init(a, 1)
    dbg(a, 6)
    dbg(a, 7, True)
    srd(a, sSV, 4, 0, N*512)
    srd(a, sH, 24, H_OFF, N*128)
    srd(a, sOUT, 20, 0, R*512, mul=R*512)
    srd(a, sRES, 4, 0, R*512, mul=R*512)
    srd(a, sOVF, 24, OVF_OFF, NB*CH*4)
    a('v_and_b32 v44, 15, v41')
    a('v_lshrrev_b32 v45, 4, v41')
    a(f'v_lshrrev_b32 v{vK}, 2, v44')
    a(f'v_lshlrev_b32 v{vK}, 3, v{vK}')
    a('v_and_b32 v40, 1, v45')
    a(f'v_lshl_add_u32 v{vK}, v40, 2, v{vK}')
    a('v_and_b32 v40, 3, v44')
    a(f'v_add_u32 v{vK}, v{vK}, v40')
    a(f'v_lshlrev_b32 v{vQK4}, 2, v{vK}')
    a(f's_mul_i32 s{sT0}, s3, 384')
    a(f's_add_u32 s{sT0}, s{sT0}, {L_STG}')
    a(f'v_add_u32 v{vSTGW}, s{sT0}, v{vQK4}')
    a(f'v_add_u32 v{vQK4}, {L_SORT}, v{vQK4}')
    a(f'v_lshl_add_u32 v{vSTGH}, v{vK}, 1, s{sT0}')
    a(f'v_lshl_add_u32 v{vSTGR}, v45, 5, s{sT0}')
    a(f'v_lshl_add_u32 v{vSTGS}, v45, 4, s{sT0}')
    emit_Q(a, vLPV, 44, 40)
    a(f'v_lshlrev_b32 v{vLPV}, 3, v{vLPV}')
    a(f'v_lshlrev_b32 v{vLPH}, 4, v45')
    a(f'v_lshl_add_u32 v{vLPR}, v44, 9, v{vLPH}')
    a(f'v_lshl_or_b32 v{vQQ}, v44, 16, v44')
    a(f'v_mov_b32 v{vMHI}, 0xffff0000')
    a(f'v_mov_b32 v{vBF1}, 0x3f803f80')
    a(f's_mov_b32 s{sROUND}, 0')
    a('s_waitcnt lgkmcnt(0)')
    a(f's_lshl_b32 s{sF}, s14, 16')
    a(f's_and_b32 s{sF+1}, s14, 0xffff0000')
    a(f's_lshl_b32 s{sF+2}, s15, 16')
    a(f's_and_b32 s{sF+3}, s15, 0xffff0000')
    a('v_and_b32 v39, 3, v0')
    a('v_lshlrev_b32 v39, 2, v39')
    a('v_subrev_u32 v39, 1, v39')
    LIM, CNT = 56, 58
    a('s_waitcnt vmcnt(8)')
    a(f'v_mov_b32_dpp v{CNT}, v{W} quad_perm:[0,0,0,0] row_mask:0xf bank_mask:0xf')
    a('s_waitcnt vmcnt(7)')
    a(f'v_mov_b32_dpp v{CNT+1}, v{W+4} quad_perm:[0,0,0,0] row_mask:0xf bank_mask:0xf')
    for h in range(2):
        a(f'v_and_b32 v{CNT+h}, 0xffff, v{CNT+h}')
        a(f'v_min_u32 v{LIM+h}, {CAP}, v{CNT+h}')
        a(f'v_subrev_u32 v{CNT+h}, {CAP}, v{CNT+h}')
    a.label('L2_round')
    a('s_cmp_ge_u32 s3, 3')
    a.br('s_cbranch_scc1 L2_nozero')
    a('v_lshlrev_b32 v40, 2, v0')
    a('v_mov_b32 v41, 0')
    a(f'v_add_u32 v42, {L_FLAG - 512}, v40')
    a(f'v_add_u32 v40, {L_NCNT}, v40')
    a('v_cmp_gt_u32 vcc, 128, v0')
    a('v_cndmask_b32_e64 v40, v42, v40, vcc')
    a('v_cmp_gt_u32 vcc, 129, v0')
    a('s_and_saveexec_b64 s[64:65], vcc')
    a('ds_write_b32 v40, v41')
    a('s_mov_b64 exec, s[64:65]')
    a.label('L2_nozero')
    a('s_waitcnt lgkmcnt(0)')
    a('s_barrier')
    stamp(a, 1, 1)
    A = 60; RK = 68; T = 76
    a('v_mov_b32 v40, 1')
    for i in range(8):
        a(f'v_add_u32 v41, {i & 3}, v39')
        a(f'v_cmp_lt_u32 s[{64+2*i}:{65+2*i}], v41, v{LIM + i//4}')
        a(f'v_and_b32 v{A+i}, 127, v{W+i}')
        a(f'v_lshlrev_b32 v{A+i}, 2, v{A+i}')
        a(f'v_add_u32 v{A+i}, {L_NCNT}, v{A+i}')
    for i in range(8):
        a(f's_mov_b64 exec, s[{64+2*i}:{65+2*i}]')
        a(f'ds_add_rtn_u32 v{RK+i}, v{A+i}, v40')
    a('s_mov_b64 exec, -1')
    a(f'v_max_i32 v41, v{CNT}, v{CNT+1}')
    a('v_cmp_lt_i32 vcc, 0, v41')
    a.br('s_cbranch_vccz L2_noflag')
    a(f'v_mov_b32 v41, {L_FLAG}')
    a('ds_write_b32 v41, v40')
    a.label('L2_noflag')
    a(f's_cmp_lg_u32 s{sROUND}, 0')
    a.br('s_cbranch_scc1 L2_nodpos')
    a('s_cmp_ge_u32 s3, 2')
    a.br('s_cbranch_scc1 L2_nodpos')
    a('s_waitcnt vmcnt(6)')
    a('v_lshlrev_b32 v84, 16, v46')
    a(f'v_and_b32 v85, v{vMHI}, v46')
    a('v_lshlrev_b32 v86, 16, v47')
    a('v_mov_b32 v87, 0')
    a('v_lshlrev_b32 v41, 4, v0')
    a(f'ds_write_b128 v41, v[84:87] offset:{L_DPOS}')
    a.label('L2_nodpos')
    a('s_waitcnt lgkmcnt(0)')
    a('s_barrier')
    stamp(a, 1, 2)
    a(f'v_lshrrev_b32 v41, 2, v{vLANE16}')
    a(f'v_add_u32 v41, {L_NCNT}, v41')
    a('ds_read2st64_b32 v[42:43], v41 offset1:1')
    a(f'v_mov_b32 v44, {L_FLAG}')
    a('ds_read_b32 v45, v44')
    a('s_waitcnt lgkmcnt(0)')
    a(f'v_readfirstlane_b32 s{sMORE}, v45')
    a('v_lshl_or_b32 v42, v43, 16, v42')
    a('v_mov_b32 v43, v42')
    for sh in ('row_shr:1', 'row_shr:2', 'row_shr:4', 'row_shr:8'):
        a(f'v_add_u32_dpp v43, v43, v43 {sh} row_mask:0xf bank_mask:0xf')
    a('v_add_u32_dpp v43, v43, v43 row_bcast:15 row_mask:0xa bank_mask:0xf')
    a('v_add_u32_dpp v43, v43, v43 row_bcast:31 row_mask:0xc bank_mask:0xf')
    a(f'v_readlane_b32 s{sT0}, v43, 63')
    a('v_sub_u32 v43, v43, v42')
    a(f's_and_b32 s{sT0}, s{sT0}, 0xffff')
    a(f'v_and_b32 v{vSTLO}, 0xffff, v43')
    a(f'v_lshrrev_b32 v{vSTHI}, 16, v43')
    a(f'v_add_u32 v{vSTHI}, s{sT0}, v{vSTHI}')
    a(f'ds_write2st64_b32 v41, v{vSTLO}, v{vSTHI} offset0:2 offset1:3')
    for i in range(8):
        a(f'ds_read_b32 v{T+i}, v{A+i} offset:512')
    a(f'v_lshl_or_b32 v{vPACK}, v{vSTHI}, 16, v{vSTLO}')
    a(f'v_cmp_lt_u32 vcc, {(R - 64) * 16}, v{vLANE16}')
    a('v_mov_b32 v44, -1')
    a(f'v_cndmask_b32_e64 v{vSTHI}, v{vSTHI}, v44, vcc')
    for i in range(8):
        a(f's_waitcnt lgkmcnt({7-i})' if i < 7 else 's_waitcnt lgkmcnt(0)')
        a(f'v_add_lshl_u32 v{T+i}, v{T+i}, v{RK+i}, 2')
    for i in range(8):
        a(f's_mov_b64 exec, s[{64+2*i}:{65+2*i}]')
        a(f'ds_write_b32 v{T+i}, v{W+i} offset:{L_SORT}')
    a('s_mov_b64 exec, -1')
    a(f's_mov_b32 s{sNC}, 0')
    a(f's_mov_b32 s{sSC}, 0')
    a(f's_mov_b32 s{sCNT}, s3')
    chain_adv(a)
    a('s_waitcnt vmcnt(0) lgkmcnt(0)')
    a('s_barrier')
    stamp(a, 1, 3)
    tr(a, 2)
    dbg(a, 8)
    dbg(a, 9, True)
    a.label('L2_item')
    a(f's_cmp_ge_u32 s{sNC}, {R}')
    a.br('s_cbranch_scc1 L2_rounddone')
    a(f's_mov_b32 s{sN0}, s{sNC}')
    a(f's_mov_b32 s{sE0}, s{sSC}')
    chain_step(a)
    a(f's_mov_b32 s{sE1}, s{sSC}')
    a(f's_sub_u32 s{sT0}, s{sNC}, s{sN0}')
    a(f's_bfm_b32 s{sT1}, s{sT0}, 0')
    a(f's_lshl_b32 s{sT2}, s{sT1}, 16')
    a(f's_or_b32 s{sEXQ}, s{sT1}, s{sT2}')
    a(f's_mov_b32 s{sEXQ+1}, s{sEXQ}')
    a(f's_lshl_b32 s{sT0}, s{sN0}, 9')
    a(f'v_add_u32 v{vRES}, s{sT0}, v{vLPR}')
    a(f's_mul_i32 s{sT0}, s{sN0}, 0x10001')
    a(f'v_add_u32 v{vNQ}, s{sT0}, v{vQQ}')
    a(f's_mov_b64 exec, s[{sEXQ}:{sEXQ+1}]')
    for c in range(4):
        for hh in range(2):
            r = D3 + (c*2+hh)*4
            a(f'buffer_load_dwordx4 v[{r}:{r+3}], v{vRES}, s[{sRES}:{sRES+3}], 0 offen offset:{c*128+hh*64} sc1')
    a('s_mov_b64 exec, -1')
    a(f's_mov_b32 s{sFIRST}, 1')
    a(f's_mov_b32 s{sCNT}, 7')
    a(f's_cmp_lg_u32 s{sE0}, s{sE1}')
    a.br('s_cbranch_scc1 L2_tile')
    chain_adv(a)
    a('s_waitcnt vmcnt(0)')
    a.br('s_branch L2_store')
    a.label('L2_tile')
    tr(a, 9)
    X = D2
    a(f's_sub_u32 s{sNE}, s{sE1}, s{sE0}')
    a(f's_lshl_b32 s{sT0}, s{sE0}, 2')
    a(f'v_add_u32 v{X}, s{sT0}, v{vQK4}')
    a(f'ds_read_b32 v{vE}, v{X}')
    a(f'v_subrev_u32 v{vM}, s{sNE}, v{vK}')
    a(f'v_ashrrev_i32 v{vM}, 31, v{vM}')
    a('s_waitcnt lgkmcnt(0)')
    a(f'v_bitop3_b32 v{vE}, v{vE}, v{vM}, v{vM} bitop3:0xf3')
    a(f'v_and_b32 v{X}, 0x7ffffe00, v{vE}')
    a(f'v_and_b32 v{X+1}, 127, v{vE}')
    a(f'ds_write_b32 v{vSTGW}, v{X}')
    a(f'ds_write_b16 v{vSTGH}, v{X+1} offset:128')
    a(f'ds_read_b128 v[{X+8}:{X+11}], v{vSTGR}')
    a(f'ds_read_b128 v[{X+12}:{X+15}], v{vSTGR} offset:16')
    a(f'v_lshrrev_b32 v{X+2}, 6, v{vE}')
    a(f'v_and_b32 v{X+2}, -8, v{X+2}')
    PS = PVR
    DP = PVR + 4
    a(f'buffer_load_dwordx2 v[{PS}:{PS+1}], v{X+2}, s[{sP4}:{sP4+3}], 0 offen')
    a(f'v_lshlrev_b32 v{X+1}, 4, v{X+1}')
    a(f'ds_read_b128 v[{DP}:{DP+3}], v{X+1} offset:{L_DPOS}')
    a(f'v_lshrrev_b32 v{X+3}, 2, v{vE}')
    a(f'v_and_b32 v{X+3}, 0x3fffff80, v{X+3}')
    a(f'v_mov_b32 v{X+4}, v{X+3}')
    a(f'v_permlane16_swap_b32 v{X+3}, v{X+4}')
    a(f'v_add_u32 v{X+3}, v{X+3}, v{vLPH}')
    a(f'v_add_u32 v{X+4}, v{X+4}, v{vLPH}')
    for et in range(2):
        for ks in range(2):
            r = H + et*8 + ks*4
            a(f'buffer_load_dwordx4 v[{r}:{r+3}], v{X+3+et}, s[{sH}:{sH+3}], 0 offen offset:{ks*64}')
    a('s_waitcnt lgkmcnt(1)')
    for jj in range(8):
        a(f'v_add_u32 v{X+8+jj}, v{X+8+jj}, v{vLPV}')
    for j in range(3):
        for jj in range(8):
            r = V + j*16 + jj*2
            a(f'buffer_load_dwordx2 v[{r}:{r+1}], v{X+8+jj}, s[{sSV}:{sSV+3}], 0 offen offset:{128*(j+1)}')
    tr(a, 10)
    chain_adv(a)
    tr(a, 11)
    a('s_waitcnt vmcnt(%d) lgkmcnt(0)' % (28 + (2 if opt.tr else 0)))
    tr(a, 12)
    rx, ry, rz, t0, t1, t2, dd, inv = range(X, X+8)
    a(f'v_lshlrev_b32 v{rx}, 16, v{PS}')
    a(f'v_and_b32 v{ry}, v{vMHI}, v{PS}')
    a(f'v_lshlrev_b32 v{rz}, 16, v{PS+1}')
    for i in range(3): a(f'v_sub_f32 v{rx+i}, v{rx+i}, v{DP+i}')
    for i in range(3): Rn(a, rx+i, rx+i)
    for i in range(3): a(f'v_mul_f32 v{t0+i}, v{rx+i}, v{rx+i}')
    for i in range(3): Rn(a, t0+i, t0+i)
    a(f'v_add_f32 v{t0}, v{t0}, v{t1}')
    a(f'v_add_f32 v{t0}, v{t0}, v{t2}')
    Rn(a, t0, t0)
    a(f'v_add_f32 v{t0}, {fl(1e-8)}, v{t0}')
    Rn(a, t0, t0)
    a(f'v_sqrt_f32 v{t0}, v{t0}')
    Rn(a, dd, t0)
    a(f'v_rcp_f32 v{inv}, v{dd}')
    g0 = X + 8
    for k in range(4): a(f'v_mul_f32 v{g0+k}, s{sF+k}, v{dd}')
    a(f'v_mul_f32 v{g0+4}, {fl(3.141592653589793)}, v{dd}')
    for k in range(5): Rn(a, g0+k, g0+k)
    a(f'v_mul_f32 v{g0+4}, {fl(0.2)}, v{g0+4}')
    for i in range(3): a(f'v_mul_f32 v{rx+i}, v{rx+i}, v{inv}')
    Rn(a, g0+4, g0+4)
    for k in range(5): a(f'v_mul_f32 v{g0+k}, 0.15915494, v{g0+k}')
    a(f'v_cos_f32 v{g0+4}, v{g0+4}')
    for k in range(4): a(f'v_sin_f32 v{g0+k}, v{g0+k}')
    a(f'v_cvt_pk_bf16_f32 v{t0}, v{rx}, v{ry}')
    a(f'v_cvt_pk_bf16_f32 v{t1}, v{rz}, v{rz}')
    Rn(a, g0+4, g0+4)
    a(f'v_add_f32 v{g0+4}, 1.0, v{g0+4}')
    a(f'v_and_b32 v{t0}, v{t0}, v{vM}')
    a(f'v_and_b32 v{t1}, v{t1}, v{vM}')
    Rn(a, g0+4, g0+4)
    a(f'ds_write_b16 v{vSTGH}, v{t0} offset:192')
    a(f'ds_write_b16_d16_hi v{vSTGH}, v{t0} offset:256')
    a(f'ds_write_b16 v{vSTGH}, v{t1} offset:320')
    a(f'v_mul_f32 v{inv}, 0.5, v{inv}')
    a(f'v_mul_f32 v{inv}, v{inv}, v{g0+4}')
    a(f'ds_read_b128 v[{SEL}:{SEL+3}], v{vSTGS} offset:128')
    for j in range(3):
        a(f'ds_read_b128 v[{SR+4*j}:{SR+4*j+3}], v{vSTGS} offset:{192+64*j}')
    def wread(step):
        p = [0, 2, 1][step // 4]; ct = step % 4
        for ks in range(2):
            r = WS + (step % 2)*8 + ks*4
            a(f'ds_read_b128 v[{r}:{r+3}], v{vLANE16} offset:{L_W2F + ((p*4+ct)*2+ks)*1024}')
    for k in range(4): a(f'v_mul_f32 v{g0+k}, v{g0+k}, v{inv}')
    a(f'v_cvt_pk_bf16_f32 v{RBF}, v{g0}, v{g0+1}')
    a(f'v_cvt_pk_bf16_f32 v{RBF+1}, v{g0+2}, v{g0+3}')
    a(f'v_and_b32 v{RBF}, v{RBF}, v{vM}')
    a(f'v_and_b32 v{RBF+1}, v{RBF+1}, v{vM}')
    wread(0)
    a(f's_cmp_eq_u32 s{sFIRST}, 0')
    a.br('s_cbranch_scc1 L2_nores')
    for c in range(4):
        for ct in range(4):
            for r in range(4):
                src = D3 + (c*2 + (r >> 1))*4 + 2*(r & 1) + (ct >> 1)
                dst = ACC + c*16 + ct*4 + r
                if ct & 1: a(f'v_and_b32 v{dst}, v{vMHI}, v{src}')
                else:      a(f'v_lshlrev_b32 v{dst}, 16, v{src}')
    a.label('L2_nores')
    a('s_waitcnt lgkmcnt(5)')
    a(f's_mov_b32 s{sT0}, 0x00010001')
    for i in range(4): a(f'v_xor_b32 v{SEL+i}, v{SEL+i}, v{vNQ}')
    for i in range(4): a(f'v_pk_min_u16 v{SEL+i}, v{SEL+i}, s{sT0}')
    for i in range(4): a(f'v_pk_sub_u16 v{SEL+i}, v{SEL+i}, s{sT0}')
    def wf(p):
        for et in range(2):
            a(f'v_mfma_f32_16x16x4bf16_1k v[{D3+16*et}:{D3+16*et+15}], v[{RBF}:{RBF+1}], v[{WR+2*p}:{WR+2*p+1}], 0 cbsz:2 abid:{et}')
    wf(0)
    a('s_waitcnt lgkmcnt(2)')
    for j in range(3):
        for i in range(4): a(f'v_and_b32 v{SR+4*j+i}, v{SR+4*j+i}, v{SEL+i}')
    for i in range(4): a(f'v_and_b32 v{SEL+i}, v{SEL+i}, v{vBF1}')
    tr(a, 13)
    a('s_waitcnt vmcnt(%d)' % (24 + (4 if opt.tr else 0)))
    tr(a, 14)
    def l2_mfma(step):
        d = D2 + (step % 2)*8; w = WS + (step % 2)*8
        for ks in range(2):
            for et in range(2):
                c = '0' if ks == 0 else f'v[{d+4*et}:{d+4*et+3}]'
                a(f'v_mfma_f32_16x16x32_bf16 v[{d+4*et}:{d+4*et+3}], v[{H+et*8+ks*4}:{H+et*8+ks*4+3}], v[{w+4*ks}:{w+4*ks+3}], {c}')
    def l2_valu(step):
        part = step // 4; ct = step % 4; d = D2 + (step % 2)*8
        for et in range(2):
            for r in range(4):
                m = D3 + et*16 + ct*4 + r
                dst = m if part == 2 else d + 4*et + r
                a(f'v_mul_f32 v{dst}, v{d+4*et+r}, v{m}')
        if part == 2: return
        P = d if part == 0 else PVR + 4*ct
        for i in range(4):
            a(f'v_cvt_pk_bf16_f32 v{P+i}, v{d+2*i}, v{d+2*i+1}')
        if part == 0:
            acc = ACC + ct*4
            a(f'v_mfma_f32_16x16x32_bf16 v[{acc}:{acc+3}], v[{P}:{P+3}], v[{SEL}:{SEL+3}], v[{acc}:{acc+3}]')
    def sr_mfma(j, ct):
        acc = ACC + (1+j)*16 + ct*4
        a(f'v_mfma_f32_16x16x32_bf16 v[{acc}:{acc+3}], v[{PVR+4*ct}:{PVR+4*ct+3}], v[{SR+4*j}:{SR+4*j+3}], v[{acc}:{acc+3}]')
    for step in range(12):
        if step + 1 < 12:
            wread(step + 1)
            a('s_waitcnt lgkmcnt(2)')
        else:
            a('s_waitcnt lgkmcnt(0)')
        l2_mfma(step)
        if step > 0:
            l2_valu(step - 1)
            if step == 4: wf(2)
            if step == 8: wf(1)
    l2_valu(11)
    def pv_valu(j, ct, U):
        for jj in range(8):
            src = V + j*16 + jj*2 + (ct >> 1)
            if ct & 1: a(f'v_and_b32 v{U+jj}, v{vMHI}, v{src}')
            else:      a(f'v_lshlrev_b32 v{U+jj}, 16, v{src}')
        for jj in range(8):
            m = D3 + (jj >> 2)*16 + ct*4 + (jj & 3)
            a(f'v_mul_f32 v{U+jj}, v{U+jj}, v{m}')
        for i in range(4):
            a(f'v_cvt_pk_bf16_f32 v{U+i}, v{U+2*i}, v{U+2*i+1}')
    n = 0
    for j in range(3):
        tr(a, 15+2*j)
        a(f's_waitcnt vmcnt({16 - 8*j + ((6+2*j) if opt.tr else 0)})')
        tr(a, 16+2*j)
        for ct in range(4):
            U = D2 + (n % 4)*8; n += 1
            pv_valu(j, ct, U)
            sr_mfma(j, ct)
            acc = ACC + (1+j)*16 + ct*4
            a(f'v_mfma_f32_16x16x32_bf16 v[{acc}:{acc+3}], v[{U}:{U+3}], v[{SEL}:{SEL+3}], v[{acc}:{acc+3}]')
    a(f's_add_u32 s{sE0}, s{sE0}, 32')
    a(f's_mov_b32 s{sFIRST}, 0')
    a(f's_cmp_lt_u32 s{sE0}, s{sE1}')
    a('s_cbranch_scc0 L2_pack')
    a.br('s_branch L2_tile')
    a.label('L2_pack', settle=False)
    a.hist = []
    for c in range(4):
        if c == 3: a('s_nop 0')
        for hh in range(2):
            for d in range(4):
                lo = ACC + c*16 + (2*(d & 1))*4 + 2*hh + (d >> 1)
                a(f'v_cvt_pk_bf16_f32 v{D3+(c*2+hh)*4+d}, v{lo}, v{lo+4}')
    a.label('L2_store')
    tr(a, 21)
    a(f's_mov_b64 exec, s[{sEXQ}:{sEXQ+1}]')
    nt = ' ' + opt.outst
    for c in range(4):
        for hh in range(2):
            r = D3 + (c*2+hh)*4
            a(f'buffer_store_dwordx4 v[{r}:{r+3}], v{vRES}, s[{sOUT}:{sOUT+3}], 0 offen offset:{c*128+hh*64}{nt}')
    a('s_mov_b64 exec, -1')
    a.br('s_branch L2_item')
    a.label('L2_rounddone')
    tr(a, 30)
    stamp(a, 1, 4)
    a(f's_cmp_eq_u32 s{sMORE}, 0')
    a.br('s_cbranch_scc1 L2_fin')
    a('s_waitcnt vmcnt(0) lgkmcnt(0)')
    a('s_barrier')
    srd(a, sRES, 20, 0, R*512, mul=R*512)
    a('v_lshrrev_b32 v40, 2, v0')
    a('v_lshlrev_b32 v41, 6, v40')
    a(f'buffer_load_dword v42, v41, s[{sSLOT}:{sSLOT+3}], 0 offen')
    a('v_add_u32 v41, 8192, v41')
    a(f'buffer_load_dword v43, v41, s[{sSLOT}:{sSLOT+3}], 0 offen')
    a('v_and_b32 v39, 3, v0')
    a('v_lshlrev_b32 v39, 2, v39')
    a(f's_lshl_b32 s{sT0}, s{sROUND}, 4')
    a(f's_add_u32 s{sT1}, s{sT0}, {CAP}')
    a(f's_add_u32 s{sROUND}, s{sROUND}, 1')
    a(f'v_mul_u32_u24 v40, {CH*4}, v40')
    a('v_lshl_add_u32 v40, v39, 2, v40')
    a(f's_lshl_b32 s{sT0}, s{sT0}, 2')
    a(f'v_add_u32 v40, s{sT0}, v40')
    a('s_waitcnt vmcnt(0)')
    for h in range(2):
        a(f'v_lshrrev_b32 v44, 16, v{42+h}')
        a(f'v_lshl_add_u32 v44, v44, 2, v40')
        if h: a(f'v_add_u32 v44, {128*CH*4}, v44')
        a(f'buffer_load_dwordx4 v[{W+4*h}:{W+4*h+3}], v44, s[{sOVF}:{sOVF+3}], 0 offen')
        a(f'v_and_b32 v{CNT+h}, 0xffff, v{42+h}')
        a(f'v_subrev_u32 v{CNT+h}, s{sT1}, v{CNT+h}')
        a(f'v_med3_i32 v{LIM+h}, v{CNT+h}, 0, 16')
        a(f'v_subrev_u32 v{CNT+h}, 16, v{CNT+h}')
    a('s_waitcnt vmcnt(0)')
    a.br('s_branch L2_round')
    a.label('L2_fin')
    if opt.ts or opt.dbg:
        a('s_waitcnt vmcnt(0)')
        stamp(a, 1, 5)
        dbg(a, 10)
        dbg(a, 11, True)
    a.label('L2_end')
    a('s_endpgm')

def build():
    src = open('gather_scatter__molecular_angular_painn__graph.s.ref').read().split('\n')
    head = []
    for ln in src:
        if not ln.startswith(';'): break
        if '@launch' in ln or 'Override launch' in ln or 'grid=ceil' in ln: continue
        head.append(ln)
    k1, k2 = 'painn_bin_kernel', 'painn_msg_kernel'
    head.append(f'; @launch kernel={k1} grid=({NB},1,1) block=(1024,1,1) lds={K1_LDS}')
    head.append(f'; @launch kernel={k2} grid=({NB},1,1) block=(512,1,1) lds={K2_LDS}')
    a = Asm()
    a.raw('.amdgcn_target "amdgcn-amd-amdhsa--gfx950"\n.text')
    gen_k1(a, k1)
    gen_k2(a, k2)
    out = '\n'.join(head) + '\n' + a.text() + '.section .rodata,"a"\n' + descriptor(k1, 128) + descriptor(k2, K2_VGPR)
    return out

if __name__ == '__main__':
    outp = sys.argv[1]
    for kv in sys.argv[2:]:
        k, val = kv.split('=')
        setattr(opt, k, type(getattr(opt, k))(eval(val)))
    open(outp, 'w').write(build())
```

```python
import sys, struct
from asmlib import Asm

N = 25000; NB = 250; R = 100; CH = 3200
H_OFF = 0; SLOT_OFF = 0x400000; OVF_OFF = 0x800000; W2F_OFF = 0xC00000; WRF_OFF = W2F_OFF + 24576
POS4_OFF = 0xC10000; TS_OFF = 0xE00000
CAP = 15

def f2u(x): return struct.unpack('<I', struct.pack('<f', x))[0]
def fl(x): return '0x%08x' % f2u(x)
def v(i, n=1): return f'v{i}' if n == 1 else f'v[{i}:{i+n-1}]'
def s(i, n=1): return f's{i}' if n == 1 else f's[{i}:{i+n-1}]'

class Opt:
    ts = False
    tr = False
    dbg = False
    nt_edges = False
    nt_out = False
    k1st = ''
    outst = ''
    ntpos = False
    thr = 24.3
    rot = 4
    prio = False
    prio2 = 0
    pk = False
    vsched = [8,0,0,0,8,0,0,0,8,0,0,0,0]
opt = Opt()

def srd(a, d, base, off, size, mul=None):
    if mul is not None:
        a(f's_mul_i32 s{d+2}, s2, {mul}')
        if off: a(f's_add_u32 s{d+2}, s{d+2}, {off}')
        a(f's_add_u32 s{d}, s{base}, s{d+2}')
        a(f's_addc_u32 s{d+1}, s{base+1}, 0')
    elif off:
        a(f's_add_u32 s{d}, s{base}, {off}')
        a(f's_addc_u32 s{d+1}, s{base+1}, 0')
    else:
        a(f's_mov_b32 s{d}, s{base}')
        a(f's_mov_b32 s{d+1}, s{base+1}')
    a(f's_mov_b32 s{d+2}, {size}')
    a(f's_mov_b32 s{d+3}, 0x20000')

def stamp(a, kern, idx, tmpv=None):
    if not opt.ts: return
    a.settle()
    L = f'Lts_{kern}_{idx}_{stamp.n}'; stamp.n += 1
    a(f's_cmp_lg_u32 s3, {stamp.wave}')
    a.br(f's_cbranch_scc1 {L}')
    a('s_memrealtime s[92:93]')
    a('s_mov_b64 s[94:95], exec')
    a('s_mov_b64 exec, 1')
    a('s_waitcnt lgkmcnt(0)')
    t = stamp.tmp
    a(f'v_mov_b32 v{t}, s92')
    a(f'v_mov_b32 v{t+1}, s93')
    a(f'v_mov_b32 v{t+2}, 0')
    a(f'buffer_store_dwordx2 v[{t}:{t+1}], v{t+2}, s[96:99], 0 offen offset:{idx*8}')
    a('s_mov_b64 exec, s[94:95]')
    a.label(L)
stamp.n = 0; stamp.wave = 0; stamp.tmp = 0

def stamp_init(a, kern):
    if not opt.ts: return
    a(f's_lshl_b32 s98, s2, 7')
    a(f's_add_u32 s98, s98, {TS_OFF + kern*256*128}')
    a('s_add_u32 s96, s24, s98')
    a('s_addc_u32 s97, s25, 0')
    a('s_mov_b32 s98, 128')
    a('s_mov_b32 s99, 0x20000')

def dbg_init(a, kern):
    if not opt.dbg: return
    a('s_load_dwordx2 s[96:97], s[0:1], 72')
    a('s_waitcnt lgkmcnt(0)')
    if kern:
        a('s_sub_u32 s96, s96, 512')
        a('s_subb_u32 s97, s97, 0')
    a('s_mov_b32 s98, 64')
    a('s_mov_b32 s99, 0x20000')

def dbg(a, idx, allwg=False):
    if not opt.dbg: return
    a.settle()
    L = f'Ldbg_{stamp.n}'; stamp.n += 1
    a('s_cmp_lg_u32 s3, 0')
    a.br(f's_cbranch_scc1 {L}')
    if not allwg:
        a('s_cmp_lg_u32 s2, 0')
        a.br(f's_cbranch_scc1 {L}')
    a('s_memrealtime s[92:93]')
    a('s_mov_b64 s[94:95], exec')
    a('s_mov_b64 exec, 1')
    a('s_waitcnt lgkmcnt(0)')
    t = stamp.tmp
    a(f'v_mov_b32 v{t}, s92')
    a(f'v_mov_b32 v{t+2}, 0')
    a(f'buffer_atomic_umax v{t}, v{t+2}, s[96:99], 0 offen offset:{idx*4}')
    a('s_mov_b64 exec, s[94:95]')
    a.label(L)

TR_OFF = 0x1000000
def tr_init(a):
    if not opt.tr: return
    a('s_lshl_b32 s98, s2, 3')
    a('s_add_u32 s98, s98, s3')
    a('s_lshl_b32 s98, s98, 10')
    a(f's_add_u32 s98, s98, {TR_OFF}')
    a('s_add_u32 s96, s24, s98')
    a('s_addc_u32 s97, s25, 0')
    a('s_mov_b32 s98, 1024')
    a('s_mov_b32 s99, 0x20000')
    a('s_mov_b32 s27, 0')
    a('v_mov_b32 v11, 0')

def tr(a, tag):
    if not opt.tr: return
    a('s_memtime s[92:93]')
    a('s_mov_b32 m0, s27')
    a('s_add_u32 s27, s27, 1')
    a('s_waitcnt lgkmcnt(0)')
    a('s_lshl_b32 s92, s92, 6')
    a(f's_or_b32 s92, s92, {tag}')
    a('v_writelane_b32 v11, s92, m0')

def tr_dump(a):
    if not opt.tr: return
    a('v_lshrrev_b32 v12, 2, v1')
    a('buffer_store_dword v11, v12, s[96:99], 0 offen')

def header(a, name):
    a.raw(f'.globl {name}\n.p2align 8\n.type {name},@function\n{name}:')
    a.hist = []

def descriptor(name, vgpr, sgpr=102):
    acc = (vgpr + 3) // 4 * 4
    return f'''.p2align 6
.amdhsa_kernel {name}
  .amdhsa_next_free_vgpr {vgpr}
  .amdhsa_next_free_sgpr {sgpr}
  .amdhsa_accum_offset {acc}
  .amdhsa_group_segment_fixed_size 0
  .amdhsa_kernarg_size 88
  .amdhsa_user_sgpr_count 2
  .amdhsa_user_sgpr_kernarg_segment_ptr 1
  .amdhsa_system_sgpr_workgroup_id_x 1
  .amdhsa_float_denorm_mode_32 3
.end_amdhsa_kernel
'''

def emit_Q(a, dst, q, t):
    a(f'v_lshrrev_b32 v{dst}, 2, v{q}')
    a(f'v_lshlrev_b32 v{dst}, 1, v{dst}')
    a(f'v_and_b32 v{t}, 1, v{q}')
    a(f'v_add_u32 v{dst}, v{dst}, v{t}')
    a(f'v_and_b32 v{t}, 2, v{q}')
    a(f'v_lshl_add_u32 v{dst}, v{t}, 2, v{dst}')

K1_POS = 0; K1_CNT = 150528; K1_OVB = 151808; K1_W1 = 152832; K1_LDS = 161024

def gen_k1(a, name):
    header(a, name)
    stamp.tmp = 60; stamp.wave = 0
    a('s_cmp_ge_u32 s2, %d' % NB)
    a('s_cbranch_scc1 L1_end')
    a('s_load_dwordx8 s[4:11], s[0:1], 0')
    a('s_load_dwordx8 s[12:19], s[0:1], 32')
    a('s_load_dwordx2 s[24:25], s[0:1], 80')
    a('v_lshrrev_b32 v1, 6, v0')
    a('v_and_b32 v2, 63, v0')
    a('v_readfirstlane_b32 s3, v1')
    a('v_lshlrev_b32 v3, 4, v2')
    a('v_mov_b32 v40, 0')
    a('s_cmp_ge_u32 s3, 5')
    a.br('s_cbranch_scc1 L1_nozero')
    a('v_lshlrev_b32 v41, 2, v0')
    a(f'v_add_u32 v41, {K1_CNT}, v41')
    a('ds_write_b32 v41, v40')
    a.label('L1_nozero')
    a('s_waitcnt lgkmcnt(0)')
    stamp_init(a, 0)
    stamp(a, 0, 0)
    dbg_init(a, 0)
    dbg(a, 0)
    dbg(a, 1, True)
    a('s_cmp_ge_u32 s3, 13')
    a.br('s_cbranch_scc1 L1_hpath')
    srd(a, 28, 8, 0, CH*4, mul=CH*4)
    srd(a, 32, 10, 0, CH*4, mul=CH*4)
    srd(a, 36, 6, 0, N*6)
    a('v_lshlrev_b32 v1, 4, v0')
    nt = ' nt' if opt.nt_edges else ''
    a(f'buffer_load_dwordx4 v[4:7], v1, s[28:31], 0 offen{nt}')
    a(f'buffer_load_dwordx4 v[8:11], v1, s[32:35], 0 offen{nt}')
    a('s_lshr_b32 s40, s2, 3')
    a(f's_mul_i32 s40, s40, {opt.rot}')
    a('s_add_u32 s40, s40, s3')
    for i in range(12):
        if i == 11:
            a('s_cmp_ge_u32 s3, 4')
            a.br('s_cbranch_scc1 L1_dmadone')
        a('s_sub_u32 s41, s40, 147')
        a('s_cmp_ge_u32 s40, 147')
        a('s_cselect_b32 s40, s41, s40')
        a('s_lshl_b32 s41, s40, 10')
        a('s_mov_b32 m0, s41')
        a('s_add_u32 s40, s40, 13')
        a('buffer_load_dwordx4 v3, s[36:39], s41 offen lds')
    a.label('L1_dmadone')
    a('s_mov_b64 s[42:43], -1')
    a('s_cmp_eq_u32 s3, 12')
    a('s_cselect_b32 s43, 0, s43')
    a(f's_mov_b32 s44, {fl(opt.thr)}')
    a(f's_mov_b32 s45, -100')
    a(f's_mov_b32 s46, {K1_CNT}')
    a('v_mov_b32 v59, 0xffff0000')
    stamp(a, 0, 1)
    a('s_waitcnt vmcnt(0) lgkmcnt(0)')
    a('s_barrier')
    stamp(a, 0, 2)
    dbg(a, 2)
    dbg(a, 3, True)
    for i in range(4):
        a(f'v_mul_u32_u24 v{12+i}, 6, v{4+i}')
        a(f'v_mul_u32_u24 v{16+i}, 6, v{8+i}')
        a(f'v_and_b32 v36, -4, v{12+i}')
        a(f'v_and_b32 v37, -4, v{16+i}')
        a(f'ds_read2_b32 v[{20+2*i}:{21+2*i}], v36 offset1:1')
        a(f'ds_read2_b32 v[{28+2*i}:{29+2*i}], v37 offset1:1')
    for i in range(4):
        a(f'v_mul_u32_u24 v36, 5243, v{8+i}')
        a(f'v_lshrrev_b32 v36, 19, v36')
        a(f'v_mad_i32_i24 v37, v36, s45, v{8+i}')
        a(f'v_lshl_or_b32 v{48+i}, v{4+i}, 9, v37')
        a(f'v_lshlrev_b32 v{44+i}, 2, v36')
        a(f'v_add_u32 v{52+i}, {K1_CNT}, v{44+i}')
    a('v_mov_b32 v56, 1')
    for i in range(4):
        p, q = 20+2*i, 28+2*i
        a(f's_waitcnt lgkmcnt({6-2*i})')
        a(f'v_alignbyte_b32 v36, v{p+1}, v{p}, v{12+i}')
        a(f'v_alignbyte_b32 v37, v{p+1}, v{p+1}, v{12+i}')
        a(f'v_alignbyte_b32 v38, v{q+1}, v{q}, v{16+i}')
        a(f'v_alignbyte_b32 v39, v{q+1}, v{q+1}, v{16+i}')
        a(f'v_lshlrev_b32 v{p}, 16, v36')
        a(f'v_lshlrev_b32 v{q}, 16, v38')
        a(f'v_and_b32 v36, v59, v36')
        a(f'v_and_b32 v38, v59, v38')
        a(f'v_lshlrev_b32 v37, 16, v37')
        a(f'v_lshlrev_b32 v39, 16, v39')
        a(f'v_sub_f32 v{p}, v{p}, v{q}')
        a(f'v_sub_f32 v36, v36, v38')
        a(f'v_sub_f32 v37, v37, v39')
        a(f'v_mul_f32 v{p}, v{p}, v{p}')
        a(f'v_fmac_f32 v{p}, v36, v36')
        a(f'v_fmac_f32 v{p}, v37, v37')
        a(f'v_cmp_ngt_f32 s[{64+2*i}:{65+2*i}], v{p}, s44')
        a(f's_and_b64 s[{64+2*i}:{65+2*i}], s[{64+2*i}:{65+2*i}], s[42:43]')
    for i in range(4):
        a(f's_mov_b64 exec, s[{64+2*i}:{65+2*i}]')
        a(f'ds_add_rtn_u32 v{12+i}, v{52+i}, v56')
    a('s_mov_b64 exec, -1')
    a('s_waitcnt lgkmcnt(0)')
    a('s_barrier')
    stamp(a, 0, 3)
    for i in range(4):
        a(f'v_cmp_gt_u32 s[{72+2*i}:{73+2*i}], {CAP}, v{12+i}')
        a(f'v_lshlrev_b32 v{16+i}, 4, v{44+i}')
        a(f'v_lshl_add_u32 v{16+i}, v{12+i}, 2, v{16+i}')
    for i in range(4):
        a(f's_and_b64 exec, s[{72+2*i}:{73+2*i}], s[{64+2*i}:{65+2*i}]')
        a(f'ds_write_b32 v{16+i}, v{48+i} offset:4')
        a(f's_andn2_b64 s[{64+2*i}:{65+2*i}], s[{64+2*i}:{65+2*i}], s[{72+2*i}:{73+2*i}]')
    a('s_mov_b64 exec, -1')
    a('s_cmp_ge_u32 s3, 4')
    a.br('s_cbranch_scc1 L1_nohdr')
    a('v_lshlrev_b32 v20, 2, v0')
    a(f'v_add_u32 v21, {K1_CNT}, v20')
    a('ds_read_b32 v22, v21')
    a('v_mov_b32 v23, 0')
    a('v_lshlrev_b32 v24, 6, v0')
    a('s_waitcnt lgkmcnt(0)')
    a(f'v_cmp_lt_u32 vcc, {CAP}, v22')
    a('s_and_saveexec_b64 s[80:81], vcc')
    a.br('s_cbranch_execz L1_hdr_noovf')
    a(f'v_subrev_u32 v25, {CAP}, v22')
    a(f'v_mov_b32 v26, {K1_CNT + 1024}')
    a('ds_add_rtn_u32 v23, v26, v25')
    a(f'v_add_u32 v21, {K1_OVB}, v20')
    a('s_waitcnt lgkmcnt(0)')
    a('ds_write_b32 v21, v23')
    a.label('L1_hdr_noovf')
    a('s_mov_b64 exec, s[80:81]')
    a('v_lshl_or_b32 v22, v23, 16, v22')
    a('ds_write_b32 v24, v22')
    a.label('L1_nohdr')
    a('s_waitcnt lgkmcnt(0)')
    a('s_barrier')
    a('s_or_b64 s[72:73], s[64:65], s[66:67]')
    a('s_or_b64 s[74:75], s[68:69], s[70:71]')
    a('s_or_b64 s[72:73], s[72:73], s[74:75]')
    a.br('s_cbranch_scc0 L1_dump')
    srd(a, 28, 24, OVF_OFF, CH*4, mul=CH*4)
    for i in range(4):
        a(f's_mov_b64 exec, s[{64+2*i}:{65+2*i}]')
        a.br(f's_cbranch_execz L1_ovf{i}')
        a(f'v_add_u32 v20, {K1_OVB}, v{44+i}')
        a('ds_read_b32 v21, v20')
        a('s_waitcnt lgkmcnt(0)')
        a(f'v_add_u32 v21, v21, v{12+i}')
        a(f'v_subrev_u32 v21, {CAP}, v21')
        a('v_lshlrev_b32 v21, 2, v21')
        a(f'buffer_store_dword v{48+i}, v21, s[28:31], 0 offen')
        a.label(f'L1_ovf{i}')
    a('s_mov_b64 exec, -1')
    a.br('s_branch L1_dump')

    a.label('L1_hpath')
    a('s_sub_u32 s40, s3, 13')
    srd(a, 28, 14, 0, 8192)
    srd(a, 32, 4, 0, R*512, mul=R*512)
    srd(a, 36, 24, H_OFF, R*128, mul=R*128)
    for i in range(8):
        a(f's_mov_b32 m0, {K1_W1 + i*1024}')
        a(f's_mov_b32 s41, {i*1024}')
        a('buffer_load_dwordx4 v3, s[28:31], s41 offen lds')
    a('v_and_b32 v4, 15, v2')
    a('v_lshrrev_b32 v5, 4, v2')
    a('s_lshl_b32 s41, s40, 4')
    a('v_add_u32 v6, s41, v4')
    a('v_lshlrev_b32 v7, 4, v5')
    a('v_lshl_add_u32 v8, v6, 9, v7')
    a('v_lshl_add_u32 v9, v6, 7, v7')
    a('buffer_load_dwordx4 v[12:15], v8, s[32:35], 0 offen')
    a('buffer_load_dwordx4 v[16:19], v8, s[32:35], 0 offen offset:64')
    a(f'v_add_u32 v8, {48*512}, v8')
    a('buffer_load_dwordx4 v[20:23], v8, s[32:35], 0 offen')
    a('buffer_load_dwordx4 v[24:27], v8, s[32:35], 0 offen offset:64')
    a(f'v_add_u32 v8, {48*512}, v8')
    a('buffer_load_dwordx4 v[28:31], v8, s[32:35], 0 offen')
    a('buffer_load_dwordx4 v[32:35], v8, s[32:35], 0 offen offset:64')
    a('v_lshrrev_b32 v10, 2, v4')
    a('v_lshl_add_u32 v10, v5, 3, v10')
    a('v_and_b32 v11, 3, v4')
    a('v_lshlrev_b32 v11, 3, v11')
    a('v_lshl_add_u32 v10, v10, 7, v11')
    a(f'v_add_u32 v10, {K1_W1}, v10')
    a('s_waitcnt vmcnt(6)')
    FR = 64
    for ht in range(4):
        for ks in range(2):
            r = FR + (ht*2+ks)*4
            for hf in range(2):
                a(f'ds_read_b64_tr_b16 v[{r+2*hf}:{r+2*hf+1}], v10 offset:{ks*4096 + ht*32 + hf*512}')
    a('s_waitcnt lgkmcnt(0)')
    D = 96; O = 112
    for t in range(3):
        if t == 2:
            a('s_cmp_lg_u32 s40, 0')
            a.br('s_cbranch_scc1 L1_hdone')
        S = 12 + 8*t
        a('s_waitcnt vmcnt(4)')
        for ht in range(4):
            a(f'v_mfma_f32_16x16x32_bf16 v[{D+4*ht}:{D+4*ht+3}], v[{FR+ht*8}:{FR+ht*8+3}], v[{S}:{S+3}], 0')
        for ht in range(4):
            a(f'v_mfma_f32_16x16x32_bf16 v[{D+4*ht}:{D+4*ht+3}], v[{FR+ht*8+4}:{FR+ht*8+7}], v[{S+4}:{S+7}], v[{D+4*ht}:{D+4*ht+3}]')
        for i in range(16):
            a(f'v_cvt_pk_bf16_f32 v{D+i}, 0, v{D+i}')
        T = 120
        for grp in range(4):
            for i in range(4):
                a(f'v_mul_f32 v{T+i}, {fl(-1.4426950408889634)}, v{D+4*grp+i}')
            for i in range(4):
                a(f'v_exp_f32 v{T+i}, v{T+i}')
            for i in range(4):
                a(f'v_add_f32 v{T+i}, 1.0, v{T+i}')
            for i in range(4):
                a(f'v_rcp_f32 v{T+i}, v{T+i}')
            for i in range(4):
                a(f'v_mul_f32 v{T+i}, v{T+i}, v{D+4*grp+i}')
            a(f'v_cvt_pk_bf16_f32 v{O+2*grp}, v{T}, v{T+1}')
            a(f'v_cvt_pk_bf16_f32 v{O+2*grp+1}, v{T+2}, v{T+3}')
        a(f'buffer_store_dwordx4 v[{O}:{O+3}], v9, s[36:39], 0 offen ' + opt.k1st)
        a(f'buffer_store_dwordx4 v[{O+4}:{O+7}], v9, s[36:39], 0 offen offset:64 ' + opt.k1st)
        a(f'v_add_u32 v9, {48*128}, v9')
    a.label('L1_hdone')
    a('s_cmp_lg_u32 s40, 2')
    a.br('s_cbranch_scc1 L1_nofrag')
    a('s_cmp_ge_u32 s2, 27')
    a.br('s_cbranch_scc1 L1_nofrag')
    emit_Q(a, 12, 4, 13)
    a('v_lshlrev_b32 v12, 3, v12')
    srd(a, 32, 24, W2F_OFF, 24576 + 1536)
    a('s_cmp_ge_u32 s2, 24')
    a.br('s_cbranch_scc1 L1_wrfrag')
    srd(a, 28, 16, 0, 64*192*2)
    a('s_lshr_b32 s41, s2, 3')
    a('s_lshl_b32 s41, s41, 7')
    a('s_bfe_u32 s47, s2, 0x20001')
    a('s_lshl_b32 s47, s47, 1')
    a('s_add_u32 s41, s41, s47')
    a('s_and_b32 s47, s2, 1')
    a(f's_mul_i32 s47, s47, {32*384}')
    a('s_add_u32 s41, s41, s47')
    a(f'v_mul_u32_u24 v13, {4*384}, v5')
    a('v_add3_u32 v12, v12, v13, s41')
    a(f'v_add_u32 v13, {16*384}, v12')
    for jj in range(8):
        a(f'buffer_load_ushort v{16+jj}, v{12 if jj < 4 else 13}, s[28:31], 0 offen offset:{(jj&3)*384}')
    a('s_lshl_b32 s41, s2, 10')
    a('v_add_u32 v14, s41, v3')
    a('s_waitcnt vmcnt(0)')
    for i in range(4):
        a(f'v_lshl_or_b32 v{16+i}, v{17+2*i}, 16, v{16+2*i}')
    a('buffer_store_dwordx4 v[16:19], v14, s[32:35], 0 offen')
    a.br('s_branch L1_nofrag')
    a.label('L1_wrfrag')
    srd(a, 28, 18, 0, 4*192*2)
    a('s_sub_u32 s41, s2, 24')
    a('s_lshl_b32 s47, s41, 7')
    a('v_lshlrev_b32 v13, 1, v5')
    a('v_add3_u32 v12, v12, v13, s47')
    for k in range(4):
        a(f'buffer_load_ushort v{16+k}, v12, s[28:31], 0 offen offset:{k*384}')
    a('s_lshl_b32 s41, s41, 9')
    a('s_add_u32 s41, s41, 24576')
    a('v_lshlrev_b32 v14, 3, v2')
    a('v_add_u32 v14, s41, v14')
    a('s_waitcnt vmcnt(0)')
    for i in range(2):
        a(f'v_lshl_or_b32 v{16+i}, v{17+2*i}, 16, v{16+2*i}')
    a('buffer_store_dwordx2 v[16:17], v14, s[32:35], 0 offen')
    a.label('L1_nofrag')
    srd(a, 28, 24, POS4_OFF, R*8, mul=R*8)
    a('s_lshl_b32 s41, s40, 6')
    a('v_add_u32 v12, s41, v2')
    a(f's_mul_i32 s41, s2, {R}')
    a('v_add_u32 v13, s41, v12')
    a('v_mul_u32_u24 v13, 6, v13')
    a('v_and_b32 v14, -4, v13')
    a('v_lshlrev_b32 v12, 3, v12')
    a('s_waitcnt lgkmcnt(0)')
    a('s_barrier')
    a('ds_read2_b32 v[16:17], v14 offset1:1')
    a('s_waitcnt lgkmcnt(0)')
    a('v_alignbyte_b32 v18, v17, v16, v13')
    a('v_alignbyte_b32 v19, v17, v17, v13')
    a('v_and_b32 v19, 0xffff, v19')
    a('buffer_store_dwordx2 v[18:19], v12, s[28:31], 0 offen')
    a('s_barrier')
    a('s_barrier')
    a.label('L1_dump')
    stamp(a, 0, 4)
    srd(a, 28, 24, SLOT_OFF, NB*16384)
    a('v_lshlrev_b32 v4, 4, v0')
    a('ds_read_b128 v[8:11], v4')
    a('v_lshrrev_b32 v5, 2, v0')
    a('v_lshlrev_b32 v5, 14, v5')
    a('v_and_b32 v6, 3, v0')
    a('v_lshl_add_u32 v5, v6, 4, v5')
    a('s_lshl_b32 s41, s2, 6')
    a('v_add_u32 v5, s41, v5')
    a('s_waitcnt lgkmcnt(0)')
    a('buffer_store_dwordx4 v[8:11], v5, s[28:31], 0 offen ' + opt.k1st)
    if opt.ts or opt.dbg:
        a('s_waitcnt vmcnt(0)')
        stamp(a, 0, 5)
        dbg(a, 4)
        dbg(a, 5, True)
    a.label('L1_end')
    a('s_endpgm')

L_W2F = 0; L_NCNT = 24576; L_START = L_NCNT + 512; L_DPOS = 25600; L_FLAG = 27648; L_STG = 27680
STG = 768
L_SORT = L_STG + 8*STG; L_RES = 50176; K2_LDS = L_RES + 116*512
assert L_SORT + 4*(4000+64) <= L_RES
S_VOFF, S_DL, S_R = 0, 256, 384

vLANE16, vSTGW, vSTGH, vSTGR, vSTGS, vLPV, vLPH, vLPR, vQQ, vMHI, vTR, vPACK, vNX64, vHA, vNQ, vRES, vE, vNX32, vM = range(1, 20)
PS = 20
RBF = 22
WR = 24
HOFF = 30
SEL = 32; SR = 36
V = 48
H = 96
ACC = 112
D3 = 176
D2 = 208
WS = 224
VOFF = 240
TP = 248
vRL = 254
vSTLO, vSTHI = ACC, ACC + 1
K2_VGPR = 256
sSV, sH, sP4, sOUT, sRES, sSLOT, sW2F, sOVF = 28, 32, 36, 40, 44, 48, 52, 80
sF = 56
sNC, sC64, sC32, sN0, sE0, sE1, sMORE, sROUND, sT0, sT1, sT2, sNN = 60, 61, 62, 63, 84, 85, 87, 88, 89, 90, 91, 26
sEXQ = 22
sXN0, sXNN, sXE0, sXE1, sXCONT, sLAST, sSTG, sSD, sRB = 68, 69, 70, 71, 72, 73, 6, 7, 8

def chain_step(a, tab):
    a(f'v_readlane_b32 s{sT0}, v{tab}, s{sNC}')
    a(f's_lshr_b32 s{sT1}, s{sNC}, 2')
    a(f's_and_b32 s{sT1}, s{sT1}, 16')
    a(f's_lshr_b32 s{sT0}, s{sT0}, s{sT1}')
    a(f's_and_b32 s{sNC}, s{sT0}, 0xffff')

def chain_start(a, dst):
    a(f'v_readlane_b32 s{sT0}, v{vPACK}, s{sNC}')
    a(f's_lshr_b32 s{sT1}, s{sNC}, 2')
    a(f's_and_b32 s{sT1}, s{sT1}, 16')
    a(f's_lshr_b32 s{sT0}, s{sT0}, s{sT1}')
    a(f's_and_b32 s{dst}, s{sT0}, 0xffff')

loop_n = [0]
def chain_loop(a, tab, cnt):
    n = loop_n[0]; loop_n[0] += 1
    a(f's_cmp_eq_u32 s{cnt}, 0')
    a(f's_cbranch_scc1 L2_walkdone{n}')
    a.label(f'L2_walk{n}', settle=False)
    chain_step(a, tab)
    a(f's_sub_u32 s{cnt}, s{cnt}, 1')
    a(f's_cmp_lg_u32 s{cnt}, 0')
    a(f's_cbranch_scc1 L2_walk{n}')
    a.label(f'L2_walkdone{n}', settle=False)

def Rn(d, x): return f'v_cvt_pk_bf16_f32 v{d}, 0, v{x}'

def weave(main, fill):
    out = []; n = len(main); m = len(fill); k = 0
    for i, x in enumerate(main):
        out.append(x)
        want = (i + 1) * m // n
        out += fill[k:want]; k = want
    return out + fill[k:]

def emit(a, lst):
    for x in lst: a(x)

def next_entry_read(t):
    return [f's_lshl_b32 s{sT0}, s{sXE0}, 2',
            f's_add_u32 s{sT0}, s{sT0}, s{sSD}',
            f'v_add_u32 v{t}, s{sT0}, v{vSTGW}',
            f'ds_read_b32 v{vE}, v{t}']
def next_mask(t):
    return [f's_sub_u32 s{sT0}, s{sXE1}, s{sXE0}',
            f's_lshl_b32 s{sT0}, s{sT0}, 2',
            f's_add_u32 s{sT0}, s{sT0}, s{sSTG}',
            f'v_subrev_u32 v{t}, s{sT0}, v{vSTGW}',
            f'v_ashrrev_i32 v{t}, 31, v{t}']
def next_stage(t, u):
    return [f'v_bitop3_b32 v{vE}, v{vE}, v{t}, v{t} bitop3:0xf3',
            f'v_and_b32 v{t}, 0x7ffffe00, v{vE}',
            f'v_lshrrev_b32 v{u}, 6, v{vE}',
            f'ds_write_b32 v{vSTGW}, v{t}',
            f'v_and_b32 v{u}, -8, v{u}']
def off_reads(u):
    return [f'ds_read_b32 v{HOFF}, v{vHA} offset:{128*u}',
            f'ds_read_b32 v{HOFF+1}, v{vHA} offset:{128*u + 16}',
            f'ds_read_b128 v[{VOFF}:{VOFF+3}], v{vSTGR} offset:{128*u}',
            f'ds_read_b128 v[{VOFF+4}:{VOFF+7}], v{vSTGR} offset:{128*u + 16}']
def off_adds():
    return ([f'v_lshrrev_b32 v{HOFF+et}, 2, v{HOFF+et}' for et in range(2)] +
            [f'v_add_u32 v{HOFF+et}, v{HOFF+et}, v{vLPH}' for et in range(2)] +
            [f'v_add_u32 v{VOFF+jj}, v{VOFF+jj}, v{vLPV}' for jj in range(8)])
def pos_load(u): return [f'buffer_load_dwordx2 v[{PS}:{PS+1}], v{u}, s[{sP4}:{sP4+3}], 0 offen']
def h_loads():
    return [f'buffer_load_dwordx4 v[{H+et*8+ks*4}:{H+et*8+ks*4+3}], v{HOFF+et}, s[{sH}:{sH+3}], 0 offen offset:{ks*64}'
            for et in range(2) for ks in range(2)]
def v_loads(j):
    return [f'buffer_load_dwordx2 v[{V+j*16+jj*2}:{V+j*16+jj*2+1}], v{VOFF+jj}, s[{sSV}:{sSV+3}], 0 offen offset:{128*(j+1)}'
            for jj in range(8)]
def out_stores(addr):
    return [f'buffer_store_dwordx4 v[{D3+(c*2+hh)*4}:{D3+(c*2+hh)*4+3}], v{addr}, s[{sOUT}:{sOUT+3}], 0 offen offset:{c*128+hh*64} {opt.outst}'
            for c in range(4) for hh in range(2)]
def wread(step):
    p = [0, 2, 1][step // 4]; ct = step % 4
    return [f'ds_read_b128 v[{WS+(step%2)*8+ks*4}:{WS+(step%2)*8+ks*4+3}], v{vLANE16} offset:{L_W2F + ((p*4+ct)*2+ks)*1024}' for ks in range(2)]
def wf(p, u):
    return [f'v_mfma_f32_16x16x4bf16_1k v[{D3+16*et}:{D3+16*et+15}], v[{RBF}:{RBF+1}], v[{WR+2*p}:{WR+2*p+1}], 0 cbsz:2 abid:{2*u+et}' for et in range(2)]

def T(a, n): tr(a, n)

def l2_mfma(step):
    d = D2 + (step % 2)*8; w = WS + (step % 2)*8; o = []
    for ks in range(2):
        for et in range(2):
            c = '0' if ks == 0 else f'v[{d+4*et}:{d+4*et+3}]'
            o.append(f'v_mfma_f32_16x16x32_bf16 v[{d+4*et}:{d+4*et+3}], v[{H+et*8+ks*4}:{H+et*8+ks*4+3}], v[{w+4*ks}:{w+4*ks+3}], {c}')
    return o
def l2_mul(step):
    part = step // 4; ct = step % 4; d = D2 + (step % 2)*8; o = []
    for et in range(2):
        for r in range(4):
            m = D3 + et*16 + ct*4 + r
            o.append(f'v_mul_f32 v{m if part == 2 else d+4*et+r}, v{d+4*et+r}, v{m}')
    return o
def l2_cvt(step):
    if step // 4 == 2: return []
    d = D2 + (step % 2)*8
    return [f'v_cvt_pk_bf16_f32 v{d+i}, v{d+2*i}, v{d+2*i+1}' for i in range(4)]
def l2_seg(step):
    part = step // 4; ct = step % 4; d = D2 + (step % 2)*8
    if part == 2: return []
    if part == 0:
        acc = ACC + ct*4
        return [f'v_mfma_f32_16x16x32_bf16 v[{acc}:{acc+3}], v[{d}:{d+3}], v[{SEL}:{SEL+3}], v[{acc}:{acc+3}]']
    return [f'v_mfma_f32_16x16x32_bf16 v[{ACC+(1+j)*16+ct*4}:{ACC+(1+j)*16+ct*4+3}], v[{d}:{d+3}], v[{SR+4*j}:{SR+4*j+3}], v[{ACC+(1+j)*16+ct*4}:{ACC+(1+j)*16+ct*4+3}]' for j in range(3)]
def sel_reads(u):
    return ([f'ds_read_b128 v[{SEL}:{SEL+3}], v{vSTGS} offset:{S_DL + 64*u}'] +
            [f'ds_read_b128 v[{SR+4*j}:{SR+4*j+3}], v{vSTGS} offset:{S_R + 128*j + 64*u}' for j in range(3)])

def head(a, tag):
    first = tag == 'A'; u = 1 if tag == 'C' else 0
    if u == 0: a.label(f'L2_head_{tag}')
    vl = v_loads(0) + v_loads(1) + v_loads(2)
    assert sum(opt.vsched) == 24
    def vissue(i):
        n = opt.vsched[i]; emit(a, vl[:n]); del vl[:n]
    if u == 0:
        X = D2
        DP = TP
        a(f'v_and_b32 v{X}, 127, v{vE}')
        a(f'v_lshlrev_b32 v{X+1}, 4, v{X}')
        a(f'ds_read_b128 v[{DP}:{DP+3}], v{X+1} offset:{L_DPOS}')
        a(f'ds_write_b16 v{vSTGH}, v{X} offset:{S_DL}')
        if first:
            a(f's_lshl_b32 s{sT0}, s{sN0}, 9')
            a(f'v_add_u32 v{vRES}, s{sT0}, v{vLPR}')
            a(f's_mul_i32 s{sT0}, s{sN0}, 0x10001')
            a(f'v_add_u32 v{vNQ}, s{sT0}, v{vQQ}')
            a(f's_bfm_b32 s{sT1}, s{sNN}, 0')
            a(f's_lshl_b32 s{sT2}, s{sT1}, 16')
            a(f's_or_b32 s{sEXQ}, s{sT1}, s{sT2}')
            a(f's_mov_b32 s{sEXQ+1}, s{sEXQ}')
        else:
            a(f's_lshl_b32 s{sT0}, s{sN0}, 9')
            a(f'v_add_u32 v{vRES}, s{sT0}, v{vLPR}')
        if first:
            a(f'v_and_b32 v{X+3}, 0xff, v{vNQ}')
            a(f'v_and_b32 v{X+4}, 7, v{vNQ}')
            a(f'v_lshlrev_b32 v{X+4}, 5, v{X+4}')
            a(f'v_xor_b32 v{X+4}, v{X+4}, v{vLPH}')
            a(f'v_lshl_add_u32 v{X+3}, v{X+3}, 9, v{X+4}')
            a(f'v_add_u32 v{X+3}, {L_RES}, v{X+3}')
            for i in range(8):
                if i: a(f'v_xor_b32 v{X+4+(i&1)}, {i*64}, v{X+3}')
                a(f'ds_read_b128 v[{D3+4*i}:{D3+4*i+3}], v{X+3 if i == 0 else X+4+(i&1)}')
        a(f'v_ashrrev_i32 v{vM}, 31, v{vE}')
        T(a, 9)
        a('s_waitcnt vmcnt(12)')
        T(a, 10)
        rx, ry, rz, t0, t1, t2, dd, inv = range(X, X+8)
        g0 = X + 8
        a(f'v_lshlrev_b32 v{rx}, 16, v{PS}')
        a(f'v_and_b32 v{ry}, v{vMHI}, v{PS}')
        a(f'v_lshlrev_b32 v{rz}, 16, v{PS+1}')
        a(f's_waitcnt lgkmcnt({9 if first else 1})')
        for i in range(3): a(f'v_sub_f32 v{rx+i}, v{rx+i}, v{DP+i}')
        sc = []
        sc += [Rn(rx+i, rx+i) for i in range(3)]
        sc += [f'v_mul_f32 v{t0+i}, v{rx+i}, v{rx+i}' for i in range(3)]
        sc += [Rn(t0+i, t0+i) for i in range(3)]
        sc += [f'v_add_f32 v{t0}, v{t0}, v{t1}', f'v_add_f32 v{t0}, v{t0}, v{t2}', Rn(t0, t0),
               f'v_add_f32 v{t0}, {fl(1e-8)}, v{t0}', Rn(t0, t0), f'v_sqrt_f32 v{t0}, v{t0}', Rn(dd, t0), f'v_rcp_f32 v{inv}, v{dd}']
        sc += [f'v_mul_f32 v{g0+4}, {fl(3.141592653589793)}, v{dd}']
        sc += [f'v_mul_f32 v{g0+k}, s{sF+k}, v{dd}' for k in range(4)]
        sc += [Rn(g0+4, g0+4)] + [f'v_mul_f32 v{g0+4}, {fl(0.2)}, v{g0+4}'] + [Rn(g0+k, g0+k) for k in range(2)]
        sc += [Rn(g0+4, g0+4)] + [Rn(g0+k, g0+k) for k in range(2, 4)]
        sc += [f'v_mul_f32 v{g0+4}, 0.15915494, v{g0+4}']
        sc += [f'v_mul_f32 v{rx+i}, v{rx+i}, v{inv}' for i in range(3)]
        sc += [f'v_cos_f32 v{g0+4}, v{g0+4}']
        sc += [f'v_mul_f32 v{g0+k}, 0.15915494, v{g0+k}' for k in range(4)]
        sc += [f'v_cvt_pk_bf16_f32 v{t0}, v{rx}, v{ry}', f'v_cvt_pk_bf16_f32 v{t1}, v{rz}, v{rz}', Rn(g0+4, g0+4)]
        sc += [f'v_sin_f32 v{g0+k}, v{g0+k}' for k in range(2)]
        sc += [f'v_bitop3_b32 v{t0}, v{t0}, v{vM}, v{vM} bitop3:0x30', f'v_bitop3_b32 v{t1}, v{t1}, v{vM}, v{vM} bitop3:0x30',
               f'v_add_f32 v{g0+4}, 1.0, v{g0+4}']
        sc += [f'ds_write_b16 v{vSTGH}, v{t0} offset:{S_R}', f'ds_write_b16_d16_hi v{vSTGH}, v{t0} offset:{S_R+128}', f'ds_write_b16 v{vSTGH}, v{t1} offset:{S_R+256}']
        sc += sel_reads(0)
        sc += [f'v_sin_f32 v{g0+k}, v{g0+k}' for k in range(2, 4)]
        sc += [Rn(g0+4, g0+4), f'v_mul_f32 v{inv}, 0.5, v{inv}', f'v_mul_f32 v{inv}, v{inv}, v{g0+4}']
        sc += [f'v_mul_f32 v{g0+k}, v{g0+k}, v{inv}' for k in range(4)]
        sc += [f'v_cvt_pk_bf16_f32 v{RBF}, v{g0}, v{g0+1}', f'v_cvt_pk_bf16_f32 v{RBF+1}, v{g0+2}, v{g0+3}',
               f'v_bitop3_b32 v{RBF}, v{RBF}, v{vM}, v{vM} bitop3:0x30', f'v_bitop3_b32 v{RBF+1}, v{RBF+1}, v{vM}, v{vM} bitop3:0x30']
        fill = []
        if first:
            for c in range(4):
                for hh in range(2):
                    for ct in range(4):
                        for r in (2*hh, 2*hh+1):
                            src = D3 + (c*2 + hh)*4 + 2*(r & 1) + (ct >> 1)
                            dst = ACC + c*16 + ct*4 + r
                            fill.append(f'v_and_b32 v{dst}, v{vMHI}, v{src}' if ct & 1 else f'v_lshlrev_b32 v{dst}, 16, v{src}')
        nh = 6
        emit(a, sc[:nh])
        if first: a('s_waitcnt lgkmcnt(0)')
        emit(a, weave(sc[nh:], fill))
        emit(a, wread(0)); emit(a, wread(1))
    else:
        emit(a, wread(0)); emit(a, wread(1))
        T(a, 9)
    a(f's_mov_b32 s{sT0}, 0x00010001')
    a('s_waitcnt lgkmcnt(7)')
    for i in range(4): a(f'v_xor_b32 v{SEL+i}, v{SEL+i}, v{vNQ}')
    emit(a, wf(0, u)[:1])
    for i in range(4): a(f'v_pk_min_u16 v{SEL+i}, v{SEL+i}, s{sT0}')
    for i in range(4): a(f'v_pk_sub_u16 v{SEL+i}, v{SEL+i}, s{sT0}')
    emit(a, wf(0, u)[1:])
    a('s_waitcnt lgkmcnt(4)')
    for j in range(3):
        for i in range(4): a(f'v_and_b32 v{SR+4*j+i}, v{SR+4*j+i}, v{SEL+i}')
    for i in range(4): a(f'v_and_b32 v{SEL+i}, 0x3f803f80, v{SEL+i}')
    vissue(0)
    T(a, 11)
    a(f's_waitcnt vmcnt({(8 if u == 0 else 0) + opt.vsched[0]})')
    T(a, 12)
    for step in range(12):
        a(f's_waitcnt lgkmcnt({2 if step < 11 else 0})')
        M = l2_mfma(step)
        if step == 0:
            emit(a, M); emit(a, wread(2)); vissue(1)
            continue
        m = l2_mul(step - 1)
        if step in (5, 9):
            emit(a, M[:2] + m[:4] + M[2:3] + m[4:6] + M[3:] + m[6:])
        else:
            emit(a, weave(M, m))
        if step == 4: emit(a, wf(2, u))
        if step == 8: emit(a, wf(1, u))
        emit(a, l2_cvt(step - 1))
        if step + 2 < 12: emit(a, wread(step + 2))
        emit(a, l2_seg(step - 1))
        vissue(step + 1)
    a(f's_add_u32 s{sXE0}, s{sE0}, {32*(u+1)}')
    a(f's_cmp_lt_u32 s{sXE0}, s{sE1}')
    if tag == 'A':
        a('s_cbranch_scc0 L2_newitem')
    elif tag == 'B':
        a.br('s_cbranch_scc1 L2_tail_toC')
        a.br('s_branch L2_newitem')
    else:
        a('s_cbranch_scc0 L2_newitem')
        a(f's_mov_b32 s{sXE1}, s{sE1}')
        a(f's_mov_b32 s{sXN0}, s{sN0}')
        a(f's_mov_b32 s{sXNN}, s{sNN}')
        a(f's_mov_b32 s{sXCONT}, 1')
        a(f's_mov_b32 s{sLAST}, 0')
        a.br('s_branch L2_tail_toA')

def newitem(a):
    a.label('L2_newitem', settle=False)
    a(f's_mov_b32 s{sLAST}, 1')
    chain_loop(a, vNX64, sC64)
    chain_loop(a, vNX32, sC32)
    a(f's_cmp_ge_u32 s{sNC}, {R}')
    a('s_cbranch_scc1 L2_tail_fin')
    a(f's_mov_b32 s{sXN0}, s{sNC}')
    chain_start(a, sXE0)
    chain_step(a, vNX32)
    chain_start(a, sXE1)
    a(f's_sub_u32 s{sXNN}, s{sNC}, s{sXN0}')
    a(f's_mov_b32 s{sXCONT}, 0')
    a(f's_mov_b32 s{sC32}, 7')

def tail(a, tag):
    if tag == 'toC':
        a.lines.append('L2_tail_toC:')
    else:
        a.label(f'L2_tail_{tag}', settle=False)
    def pv(n):
        j, ct = divmod(n, 4); U = D2 + ((n + 2) % 4)*8
        un, mu = [], []
        for jj in range(8):
            src = V + j*16 + jj*2 + (ct >> 1)
            un.append(f'v_and_b32 v{U+jj}, v{vMHI}, v{src}' if ct & 1 else f'v_lshlrev_b32 v{U+jj}, 16, v{src}')
            mu.append(f'v_mul_f32 v{U+jj}, v{U+jj}, v{D3 + (jj >> 2)*16 + ct*4 + (jj & 3)}')
        if opt.pk:
            mu = [f'v_pk_mul_f32 v[{U+jj}:{U+jj+1}], v[{U+jj}:{U+jj+1}], v[{D3 + (jj >> 2)*16 + ct*4 + (jj & 3)}:{D3 + (jj >> 2)*16 + ct*4 + (jj & 3) + 1}]' for jj in range(0, 8, 2)]
        cv = [f'v_cvt_pk_bf16_f32 v{U+i}, v{U+2*i}, v{U+2*i+1}' for i in range(4)]
        acc = ACC + (1+j)*16 + ct*4
        mf = f'v_mfma_f32_16x16x32_bf16 v[{acc}:{acc+3}], v[{U}:{U+3}], v[{SEL}:{SEL+3}], v[{acc}:{acc+3}]'
        return un, mu, cv, mf
    if tag == 'toA': emit(a, next_entry_read(TP) + next_mask(TP+4))
    if tag == 'toC': emit(a, off_reads(1))
    emit(a, l2_mul(11))
    prev = None
    for n in range(12):
        j, ct = divmod(n, 4)
        un, mu, cv, mf = pv(n)
        if ct == 0:
            T(a, 13 + 2*j)
            a(f's_waitcnt vmcnt({16 - 8*j})')
            T(a, 14 + 2*j)
        emit(a, un[:2])
        if prev: a(prev)
        emit(a, un[2:])
        rest = mu + cv
        if tag == 'toA' and n == 1:
            a('s_waitcnt lgkmcnt(0)')
            rest = weave(rest, next_stage(TP+4, TP+5) + off_reads(0))
        if (tag == 'toA' and n == 3) or (tag == 'toC' and n == 1):
            a('s_waitcnt lgkmcnt(0)')
            rest = weave(rest, off_adds())
        emit(a, rest)
        prev = mf
    T(a, 19)
    if tag == 'toC':
        emit(a, h_loads()[:2])
        a(prev)
        emit(a, h_loads()[2:])
        emit(a, sel_reads(1))
        return
    if tag == 'toA':
        emit(a, pos_load(TP+5))
        emit(a, h_loads())
        a(prev)
        a(f's_cmp_eq_u32 s{sLAST}, 0')
        a(f's_cbranch_scc1 L2_nopack')
    else:
        a('s_nop 1')
        a(prev)
    for c in range(4):
        for hh in range(2):
            for d in range(4):
                lo = ACC + c*16 + (2*(d & 1))*4 + 2*hh + (d >> 1)
                a(f'v_cvt_pk_bf16_f32 v{D3+(c*2+hh)*4+d}, v{lo}, v{lo+4}')
    if tag == 'toA':
        a.br('s_branch L2_store')
        a.label('L2_nopack', settle=False)
        a(f'v_mov_b32 v{vRES}, 0x40000000')
        a.label('L2_store')
    T(a, 20)
    a(f's_mov_b64 exec, s[{sEXQ}:{sEXQ+1}]')
    emit(a, out_stores(vRES))
    a('s_mov_b64 exec, -1')
    if tag == 'toA':
        a(f's_mov_b32 s{sN0}, s{sXN0}')
        a(f's_mov_b32 s{sNN}, s{sXNN}')
        a(f's_mov_b32 s{sE0}, s{sXE0}')
        a(f's_mov_b32 s{sE1}, s{sXE1}')
        a(f's_cmp_lg_u32 s{sXCONT}, 0')
        a.br('s_cbranch_scc1 L2_head_B')
        a.br('s_branch L2_head_A')

def gen_k2(a, name):
    header(a, name)
    stamp.tmp = 252; stamp.wave = 0
    a('s_cmp_ge_u32 s2, %d' % NB)
    a('s_cbranch_scc1 L2_end')
    a('s_load_dwordx2 s[4:5], s[0:1], 0')
    a('s_load_dwordx2 s[12:13], s[0:1], 32')
    a('s_load_dwordx2 s[20:21], s[0:1], 64')
    a('s_load_dwordx2 s[24:25], s[0:1], 80')
    a('v_lshrrev_b32 v40, 6, v0')
    a('v_and_b32 v41, 63, v0')
    a('v_readfirstlane_b32 s3, v40')
    a(f'v_lshlrev_b32 v{vLANE16}, 4, v41')
    a('v_lshlrev_b32 v42, 4, v0')
    a('s_waitcnt lgkmcnt(0)')
    a('s_load_dwordx2 s[14:15], s[12:13], 0')
    srd(a, sSLOT, 24, SLOT_OFF, NB*64, mul=16384)
    W = V
    a(f'buffer_load_dwordx4 v[{W}:{W+3}], v42, s[{sSLOT}:{sSLOT+3}], 0 offen')
    a(f'v_add_u32 v43, 8192, v42')
    a(f'buffer_load_dwordx4 v[{W+4}:{W+7}], v43, s[{sSLOT}:{sSLOT+3}], 0 offen')
    srd(a, sP4, 24, POS4_OFF, N*8)
    a(f's_mul_i32 s{sT0}, s2, {R*8}')
    a('v_lshlrev_b32 v43, 3, v0')
    a(f'v_add_u32 v43, s{sT0}, v43')
    a('v_cmp_gt_u32 vcc, 128, v0')
    a('v_mov_b32 v44, 0x40000000')
    a('v_cndmask_b32_e64 v43, v44, v43, vcc')
    a(f'buffer_load_dwordx2 v[46:47], v43, s[{sP4}:{sP4+3}], 0 offen')
    def zero_counters(tag):
        a('s_cmp_ge_u32 s3, 3')
        a.br(f's_cbranch_scc1 L2_nozero{tag}')
        a('v_lshlrev_b32 v40, 2, v0')
        a('v_mov_b32 v44, 0')
        a(f'v_add_u32 v42, {L_FLAG - 512}, v40')
        a(f'v_add_u32 v40, {L_NCNT}, v40')
        a('v_cmp_gt_u32 vcc, 128, v0')
        a('v_cndmask_b32_e64 v40, v42, v40, vcc')
        a('v_cmp_gt_u32 vcc, 129, v0')
        a('s_and_saveexec_b64 s[64:65], vcc')
        a('ds_write_b32 v40, v44')
        a('s_mov_b64 exec, s[64:65]')
        a.label(f'L2_nozero{tag}')
    zero_counters('a')
    srd(a, sW2F, 24, W2F_OFF, 24576 + 1536)
    a('v_lshlrev_b32 v43, 3, v41')
    a(f's_mov_b32 s{sT0}, 24576')
    for p in range(3):
        a(f'buffer_load_dwordx2 v[{WR+2*p}:{WR+2*p+1}], v43, s[{sW2F}:{sW2F+3}], s{sT0} offen offset:{p*512}')
    for i in range(3):
        a(f's_lshl_b32 s{sT0}, s3, 10')
        if i: a(f's_add_u32 s{sT0}, s{sT0}, {i*8192}')
        a(f's_mov_b32 m0, s{sT0}')
        a(f'buffer_load_dwordx4 v{vLANE16}, s[{sW2F}:{sW2F+3}], s{sT0} offen lds')
    srd(a, sRES, 4, 0, R*512, mul=R*512)
    stamp_init(a, 1)
    tr_init(a)
    tr(a, 1)
    stamp(a, 1, 0)
    dbg_init(a, 1)
    dbg(a, 6)
    dbg(a, 7, True)
    srd(a, sSV, 4, 0, N*512)
    srd(a, sH, 24, H_OFF, N*128)
    srd(a, sOUT, 20, 0, R*512, mul=R*512)
    srd(a, sOVF, 24, OVF_OFF, NB*CH*4)
    a('v_and_b32 v44, 15, v41')
    a('v_lshrrev_b32 v45, 4, v41')
    a('v_lshrrev_b32 v43, 2, v44')
    a('v_lshlrev_b32 v43, 3, v43')
    a('v_and_b32 v40, 3, v44')
    a('v_add_u32 v43, v43, v40')
    a(f's_mul_i32 s{sSTG}, s3, {STG}')
    a(f's_add_u32 s{sSTG}, s{sSTG}, {L_STG}')
    a(f's_sub_u32 s{sSD}, {L_SORT}, s{sSTG}')
    a(f'v_lshl_add_u32 v{vHA}, v43, 2, s{sSTG}')
    a('v_and_b32 v40, 1, v45')
    a('v_lshl_add_u32 v43, v40, 2, v43')
    a('v_lshrrev_b32 v40, 1, v45')
    a('v_lshl_add_u32 v43, v40, 5, v43')
    a(f'v_lshl_add_u32 v{vSTGW}, v43, 2, s{sSTG}')
    a(f'v_lshl_add_u32 v{vSTGH}, v43, 1, s{sSTG}')
    a(f'v_lshl_add_u32 v{vSTGR}, v45, 5, s{sSTG}')
    a(f'v_lshl_add_u32 v{vSTGS}, v45, 4, s{sSTG}')
    emit_Q(a, vLPV, 44, 40)
    a(f'v_lshlrev_b32 v{vLPV}, 3, v{vLPV}')
    a(f'v_lshlrev_b32 v{vLPH}, 4, v45')
    a(f'v_lshl_add_u32 v{vLPR}, v44, 9, v{vLPH}')
    a(f'v_lshl_or_b32 v{vQQ}, v44, 16, v44')
    a(f'v_mov_b32 v{vMHI}, 0xffff0000')
    a(f's_mov_b32 s{sROUND}, 0')
    a('s_waitcnt lgkmcnt(0)')
    a('s_barrier')
    a(f's_lshl_b32 s{sF}, s14, 16')
    a(f's_and_b32 s{sF+1}, s14, 0xffff0000')
    a(f's_lshl_b32 s{sF+2}, s15, 16')
    a(f's_and_b32 s{sF+3}, s15, 0xffff0000')
    a('v_and_b32 v39, 3, v0')
    a('v_lshlrev_b32 v39, 2, v39')
    a('v_subrev_u32 v39, 1, v39')
    LIM, CNT = 56, 58
    a('s_waitcnt vmcnt(8)')
    a(f'v_mov_b32_dpp v{CNT}, v{W} quad_perm:[0,0,0,0] row_mask:0xf bank_mask:0xf')
    a('s_waitcnt vmcnt(7)')
    a(f'v_mov_b32_dpp v{CNT+1}, v{W+4} quad_perm:[0,0,0,0] row_mask:0xf bank_mask:0xf')
    for h in range(2):
        a(f'v_and_b32 v{CNT+h}, 0xffff, v{CNT+h}')
        a(f'v_min_u32 v{LIM+h}, {CAP}, v{CNT+h}')
        a(f'v_subrev_u32 v{CNT+h}, {CAP}, v{CNT+h}')
    a('s_cmp_ge_u32 s3, 2')
    a.br('s_cbranch_scc1 L2_nodpos')
    a('s_waitcnt vmcnt(6)')
    a('v_lshlrev_b32 v84, 16, v46')
    a(f'v_and_b32 v85, v{vMHI}, v46')
    a('v_lshlrev_b32 v86, 16, v47')
    a('v_mov_b32 v87, 0')
    a('v_lshlrev_b32 v42, 4, v0')
    a(f'ds_write_b128 v42, v[84:87] offset:{L_DPOS}')
    a.label('L2_nodpos')
    a.label('L2_round')
    stamp(a, 1, 1)
    tr(a, 4)
    A = 60; RK = 68; T = 76
    a('v_mov_b32 v40, 1')
    for i in range(8):
        a(f'v_add_u32 v41, {i & 3}, v39')
        a(f'v_cmp_lt_u32 s[{64+2*i}:{65+2*i}], v41, v{LIM + i//4}')
        a(f'v_and_b32 v{A+i}, 127, v{W+i}')
        a(f'v_lshlrev_b32 v{A+i}, 2, v{A+i}')
        a(f'v_add_u32 v{A+i}, {L_NCNT}, v{A+i}')
    for i in range(8):
        a(f's_mov_b64 exec, s[{64+2*i}:{65+2*i}]')
        a(f'ds_add_rtn_u32 v{RK+i}, v{A+i}, v40')
    a('s_mov_b64 exec, -1')
    a(f'v_max_i32 v41, v{CNT}, v{CNT+1}')
    a('v_cmp_lt_i32 vcc, 0, v41')
    a.br('s_cbranch_vccz L2_noflag')
    a(f'v_mov_b32 v41, {L_FLAG}')
    a('ds_write_b32 v41, v40')
    a.label('L2_noflag')
    a(f'v_lshrrev_b32 v41, 9, v{vLANE16}')
    a('s_lshl_b32 s%d, s3, 1' % sT0)
    a(f'v_add_u32 v42, s{sT0}, v41')
    a('v_and_b32 v42, 7, v42')
    a('v_lshlrev_b32 v42, 5, v42')
    a(f'v_xor_b32 v42, v42, v{vLANE16}')
    for i in range(7):
        if i == 6:
            a('s_cmp_ge_u32 s3, 2')
            a.br('s_cbranch_scc1 L2_resdone')
        a(f's_lshl_b32 s{sT0}, s3, 10')
        if i: a(f's_add_u32 s{sT0}, s{sT0}, {i*8192}')
        a(f's_add_u32 m0, s{sT0}, {L_RES}')
        a(f'buffer_load_dwordx4 v42, s[{sRES}:{sRES+3}], s{sT0} offen sc1 lds')
    a.label('L2_resdone')
    a('s_waitcnt lgkmcnt(0)')
    a('s_barrier')
    stamp(a, 1, 2)
    tr(a, 5)
    a(f'v_lshrrev_b32 v41, 2, v{vLANE16}')
    a(f'v_add_u32 v41, {L_NCNT}, v41')
    a('ds_read2st64_b32 v[42:43], v41 offset1:1')
    a(f'v_mov_b32 v44, {L_FLAG}')
    a('ds_read_b32 v45, v44')
    a('s_waitcnt lgkmcnt(1)')
    a('v_lshl_or_b32 v42, v43, 16, v42')
    a('v_mov_b32 v43, v42')
    for sh in ('row_shr:1', 'row_shr:2', 'row_shr:4', 'row_shr:8'):
        a(f'v_add_u32_dpp v43, v43, v43 {sh} row_mask:0xf bank_mask:0xf')
    a('v_add_u32_dpp v43, v43, v43 row_bcast:15 row_mask:0xa bank_mask:0xf')
    a('v_add_u32_dpp v43, v43, v43 row_bcast:31 row_mask:0xc bank_mask:0xf')
    a('s_waitcnt lgkmcnt(0)')
    a(f'v_readfirstlane_b32 s{sMORE}, v45')
    a(f'v_readlane_b32 s{sT0}, v43, 63')
    a('v_sub_u32 v43, v43, v42')
    a(f's_and_b32 s{sT0}, s{sT0}, 0xffff')
    a(f'v_and_b32 v{vSTLO}, 0xffff, v43')
    a(f'v_lshrrev_b32 v{vSTHI}, 16, v43')
    a(f'v_add_u32 v{vSTHI}, s{sT0}, v{vSTHI}')
    a(f'ds_write2st64_b32 v41, v{vSTLO}, v{vSTHI} offset0:2 offset1:3')
    for i in range(8):
        a(f'ds_read_b32 v{T+i}, v{A+i} offset:512')
    a(f'v_lshl_or_b32 v{vPACK}, v{vSTHI}, 16, v{vSTLO}')
    for i in range(8):
        a('s_waitcnt lgkmcnt(7)')
        a(f'v_add_lshl_u32 v{T+i}, v{T+i}, v{RK+i}, 2')
        a(f's_mov_b64 exec, s[{64+2*i}:{65+2*i}]')
        a(f'ds_write_b32 v{T+i}, v{W+i} offset:{L_SORT}')
        a('s_mov_b64 exec, -1')
    for k, (st, d) in enumerate(((vSTLO, 32), (vSTHI, 32), (vSTLO, 64), (vSTHI, 64))):
        a(f'v_add_u32 v{T+k}, {d}, v{st}')
        a(f'v_lshlrev_b32 v{T+4+k}, 2, v{T+k}')
    a(f'v_readlane_b32 s{sT2}, v{vSTHI}, {R - 64}')
    a(f'v_lshrrev_b32 v40, 4, v{vLANE16}')
    a('v_add_u32 v41, 64, v40')
    a(f'v_mov_b32 v46, {R}')
    a(f's_mov_b32 s{sNC}, 0')
    a(f's_mov_b32 s{sC64}, s3')
    a('s_waitcnt lgkmcnt(0)')
    a('s_barrier')
    stamp(a, 1, 3)
    tr(a, 2)
    dbg(a, 8)
    dbg(a, 9, True)
    for k in (2, 3, 0, 1):
        a(f'ds_read_b32 v{T+4+k}, v{T+4+k} offset:{L_SORT}')
    for k in range(4):
        a(f'v_cmp_gt_u32 s[{64+2*k}:{65+2*k}], s{sT2}, v{T+k}')
    a('v_add_u32 v42, 1, v40')
    a('v_add_u32 v43, 16, v40')
    a('v_add_u32 v44, 1, v41')
    a('v_add_u32 v45, 16, v41')
    for k in (2, 3, 0, 1):
        r = T + 4 + k
        if k in (2, 0): a(f's_waitcnt lgkmcnt({2 if k == 2 else 0})')
        a(f'v_and_b32 v{r}, 127, v{r}')
        a(f'v_cndmask_b32_e64 v{r}, v46, v{r}, s[{64+2*k}:{65+2*k}]')
        a(f'v_med3_u32 v{r}, v{r}, v{42 + 2*(k & 1)}, v{43 + 2*(k & 1)}')
        a(f'v_min_u32 v{r}, v46, v{r}')
        if k == 3: a(f'v_lshl_or_b32 v{vNX64}, v{T+7}, 16, v{T+6}')
    a(f'v_lshl_or_b32 v{vNX32}, v{T+5}, 16, v{T+4}')
    chain_loop(a, vNX64, sC64)
    a(f's_cmp_lt_u32 s{sNC}, {R}')
    a.br('s_cbranch_scc1 L2_haveitem')
    a('s_waitcnt vmcnt(0)')
    a('s_barrier')
    a.br('s_branch L2_rounddone')
    a.label('L2_haveitem')
    if opt.prio: a('s_setprio 3')
    a(f's_mov_b32 s{sN0}, s{sNC}')
    chain_start(a, sE0)
    chain_step(a, vNX64)
    chain_start(a, sE1)
    a(f's_sub_u32 s{sNN}, s{sNC}, s{sN0}')
    a(f's_mov_b32 s{sXE0}, s{sE0}')
    a(f's_mov_b32 s{sXE1}, s{sE1}')
    emit(a, next_entry_read(TP))
    emit(a, next_mask(TP+4))
    a(f's_sub_u32 s{sC64}, 7, s3')
    a(f's_mov_b32 s{sC32}, s3')
    a('s_waitcnt lgkmcnt(0)')
    emit(a, next_stage(TP+4, TP+5))
    emit(a, off_reads(0))
    emit(a, pos_load(TP+5))
    a('s_waitcnt lgkmcnt(0)')
    emit(a, off_adds())
    emit(a, h_loads())
    a('s_waitcnt vmcnt(5)')
    a('s_barrier')
    a(f'v_mov_b32 v{vRES}, 0x40000000')
    emit(a, out_stores(vRES))
    if opt.prio: a('s_setprio 0')
    if opt.prio2 == 1:
        a('s_cmp_lt_u32 s3, 4')
        a('s_cbranch_scc1 L2_noprio')
        a('s_setprio 1')
        a.label('L2_noprio', settle=False)
    tr(a, 3)
    a.br('s_branch L2_head_A')
    head(a, 'B')
    head(a, 'A')
    tail(a, 'toC')
    head(a, 'C')
    newitem(a)
    tail(a, 'toA')
    tail(a, 'fin')
    a.label('L2_rounddone')
    tr(a, 30)
    stamp(a, 1, 4)
    a(f's_cmp_eq_u32 s{sMORE}, 0')
    a.br('s_cbranch_scc1 L2_fin')
    a('s_waitcnt vmcnt(0) lgkmcnt(0)')
    a('s_barrier')
    zero_counters('b')
    srd(a, sRES, 20, 0, R*512, mul=R*512)
    a('v_lshrrev_b32 v40, 2, v0')
    a('v_lshlrev_b32 v41, 6, v40')
    a(f'buffer_load_dword v42, v41, s[{sSLOT}:{sSLOT+3}], 0 offen')
    a('v_add_u32 v41, 8192, v41')
    a(f'buffer_load_dword v43, v41, s[{sSLOT}:{sSLOT+3}], 0 offen')
    a('v_and_b32 v39, 3, v0')
    a('v_lshlrev_b32 v39, 2, v39')
    a(f's_lshl_b32 s{sT0}, s{sROUND}, 4')
    a(f's_add_u32 s{sT1}, s{sT0}, {CAP}')
    a(f's_add_u32 s{sROUND}, s{sROUND}, 1')
    a(f'v_mul_u32_u24 v40, {CH*4}, v40')
    a('v_lshl_add_u32 v40, v39, 2, v40')
    a(f's_lshl_b32 s{sT0}, s{sT0}, 2')
    a(f'v_add_u32 v40, s{sT0}, v40')
    a('s_waitcnt vmcnt(0)')
    for h in range(2):
        a(f'v_lshrrev_b32 v44, 16, v{42+h}')
        a(f'v_lshl_add_u32 v44, v44, 2, v40')
        if h: a(f'v_add_u32 v44, {128*CH*4}, v44')
        a(f'buffer_load_dwordx4 v[{W+4*h}:{W+4*h+3}], v44, s[{sOVF}:{sOVF+3}], 0 offen')
        a(f'v_and_b32 v{CNT+h}, 0xffff, v{42+h}')
        a(f'v_subrev_u32 v{CNT+h}, s{sT1}, v{CNT+h}')
        a(f'v_med3_i32 v{LIM+h}, v{CNT+h}, 0, 16')
        a(f'v_subrev_u32 v{CNT+h}, 16, v{CNT+h}')
    a('s_waitcnt vmcnt(0) lgkmcnt(0)')
    a('s_barrier')
    a.br('s_branch L2_round')
    a.label('L2_fin')
    tr_dump(a)
    if opt.ts or opt.dbg:
        a('s_waitcnt vmcnt(0)')
        stamp(a, 1, 5)
        dbg(a, 10)
        dbg(a, 11, True)
    a.label('L2_end')
    a('s_endpgm')

def build():
    src = open('gather_scatter__molecular_angular_painn__graph.s.ref').read().split('\n')
    head = []
    for ln in src:
        if not ln.startswith(';'): break
        if '@launch' in ln or 'Override launch' in ln or 'grid=ceil' in ln: continue
        head.append(ln)
    k1, k2 = 'painn_bin_kernel', 'painn_msg_kernel'
    head.append(f'; @launch kernel={k1} grid=({NB},1,1) block=(1024,1,1) lds={K1_LDS}')
    head.append(f'; @launch kernel={k2} grid=({NB},1,1) block=(512,1,1) lds={K2_LDS}')
    a = Asm()
    a.raw('.amdgcn_target "amdgcn-amd-amdhsa--gfx950"\n.text')
    gen_k1(a, k1)
    gen_k2(a, k2)
    out = '\n'.join(head) + '\n' + a.text() + '.section .rodata,"a"\n' + descriptor(k1, 128) + descriptor(k2, K2_VGPR)
    return out

if __name__ == '__main__':
    outp = sys.argv[1]
    for kv in sys.argv[2:]:
        k, val = kv.split('=')
        setattr(opt, k, type(getattr(opt, k))(eval(val)))
    open(outp, 'w').write(build())
```

```python
import sys, struct
from asmlib import Asm

N = 25000; NB = 250; R = 100; CH = 3200
H_OFF = 0; SLOT_OFF = 0x400000; OVF_OFF = 0x800000; W2F_OFF = 0xC00000; WRF_OFF = W2F_OFF + 24576
POS4_OFF = 0xC10000; TS_OFF = 0xE00000
CAP = 15

def f2u(x): return struct.unpack('<I', struct.pack('<f', x))[0]
def fl(x): return '0x%08x' % f2u(x)
def v(i, n=1): return f'v{i}' if n == 1 else f'v[{i}:{i+n-1}]'
def s(i, n=1): return f's{i}' if n == 1 else f's[{i}:{i+n-1}]'

class Opt:
    ts = False
    tr = False
    dbg = False
    nt_edges = False
    nt_out = False
    k1st = ''
    outst = ''
    ntpos = False
    thr = 24.3
    rot = 4
    prio = False
    prio2 = 0
    pk = False
    pf_sv = ''
    vsched = [8,0,0,0,8,0,0,0,8,0,0,0,0]
opt = Opt()

def srd(a, d, base, off, size, mul=None):
    if mul is not None:
        a(f's_mul_i32 s{d+2}, s2, {mul}')
        if off: a(f's_add_u32 s{d+2}, s{d+2}, {off}')
        a(f's_add_u32 s{d}, s{base}, s{d+2}')
        a(f's_addc_u32 s{d+1}, s{base+1}, 0')
    elif off:
        a(f's_add_u32 s{d}, s{base}, {off}')
        a(f's_addc_u32 s{d+1}, s{base+1}, 0')
    else:
        a(f's_mov_b32 s{d}, s{base}')
        a(f's_mov_b32 s{d+1}, s{base+1}')
    a(f's_mov_b32 s{d+2}, {size}')
    a(f's_mov_b32 s{d+3}, 0x20000')

def stamp(a, kern, idx, tmpv=None):
    if not opt.ts: return
    a.settle()
    L = f'Lts_{kern}_{idx}_{stamp.n}'; stamp.n += 1
    a(f's_cmp_lg_u32 s3, {stamp.wave}')
    a.br(f's_cbranch_scc1 {L}')
    a('s_memrealtime s[92:93]')
    a('s_mov_b64 s[94:95], exec')
    a('s_mov_b64 exec, 1')
    a('s_waitcnt lgkmcnt(0)')
    t = stamp.tmp
    a(f'v_mov_b32 v{t}, s92')
    a(f'v_mov_b32 v{t+1}, s93')
    a(f'v_mov_b32 v{t+2}, 0')
    a(f'buffer_store_dwordx2 v[{t}:{t+1}], v{t+2}, s[96:99], 0 offen offset:{idx*8}')
    a('s_mov_b64 exec, s[94:95]')
    a.label(L)
stamp.n = 0; stamp.wave = 0; stamp.tmp = 0

def stamp_init(a, kern):
    if not opt.ts: return
    a(f's_lshl_b32 s98, s2, 7')
    a(f's_add_u32 s98, s98, {TS_OFF + kern*256*128}')
    a('s_add_u32 s96, s24, s98')
    a('s_addc_u32 s97, s25, 0')
    a('s_mov_b32 s98, 128')
    a('s_mov_b32 s99, 0x20000')

def dbg_init(a, kern):
    if not opt.dbg: return
    a('s_load_dwordx2 s[96:97], s[0:1], 72')
    a('s_waitcnt lgkmcnt(0)')
    if kern:
        a('s_sub_u32 s96, s96, 512')
        a('s_subb_u32 s97, s97, 0')
    a('s_mov_b32 s98, 64')
    a('s_mov_b32 s99, 0x20000')

def dbg(a, idx, allwg=False):
    if not opt.dbg: return
    a.settle()
    L = f'Ldbg_{stamp.n}'; stamp.n += 1
    a('s_cmp_lg_u32 s3, 0')
    a.br(f's_cbranch_scc1 {L}')
    if not allwg:
        a('s_cmp_lg_u32 s2, 0')
        a.br(f's_cbranch_scc1 {L}')
    a('s_memrealtime s[92:93]')
    a('s_mov_b64 s[94:95], exec')
    a('s_mov_b64 exec, 1')
    a('s_waitcnt lgkmcnt(0)')
    t = stamp.tmp
    a(f'v_mov_b32 v{t}, s92')
    a(f'v_mov_b32 v{t+2}, 0')
    a(f'buffer_atomic_umax v{t}, v{t+2}, s[96:99], 0 offen offset:{idx*4}')
    a('s_mov_b64 exec, s[94:95]')
    a.label(L)

TR_OFF = 0x1000000
def tr_init(a):
    if not opt.tr: return
    a('s_lshl_b32 s98, s2, 3')
    a('s_add_u32 s98, s98, s3')
    a('s_lshl_b32 s98, s98, 10')
    a(f's_add_u32 s98, s98, {TR_OFF}')
    a('s_add_u32 s96, s24, s98')
    a('s_addc_u32 s97, s25, 0')
    a('s_mov_b32 s98, 1024')
    a('s_mov_b32 s99, 0x20000')
    a('s_mov_b32 s27, 0')
    a('v_mov_b32 v11, 0')

def tr(a, tag):
    if not opt.tr: return
    a('s_memtime s[92:93]')
    a('s_mov_b32 m0, s27')
    a('s_add_u32 s27, s27, 1')
    a('s_waitcnt lgkmcnt(0)')
    a('s_lshl_b32 s92, s92, 6')
    a(f's_or_b32 s92, s92, {tag}')
    a('v_writelane_b32 v11, s92, m0')

def tr_dump(a):
    if not opt.tr: return
    a('v_lshrrev_b32 v12, 2, v1')
    a('buffer_store_dword v11, v12, s[96:99], 0 offen')

def header(a, name):
    a.raw(f'.globl {name}\n.p2align 8\n.type {name},@function\n{name}:')
    a.hist = []

def descriptor(name, vgpr, sgpr=102):
    acc = (vgpr + 3) // 4 * 4
    return f'''.p2align 6
.amdhsa_kernel {name}
  .amdhsa_next_free_vgpr {vgpr}
  .amdhsa_next_free_sgpr {sgpr}
  .amdhsa_accum_offset {acc}
  .amdhsa_group_segment_fixed_size 0
  .amdhsa_kernarg_size 88
  .amdhsa_user_sgpr_count 2
  .amdhsa_user_sgpr_kernarg_segment_ptr 1
  .amdhsa_system_sgpr_workgroup_id_x 1
  .amdhsa_float_denorm_mode_32 3
.end_amdhsa_kernel
'''

def emit_Q(a, dst, q, t):
    a(f'v_lshrrev_b32 v{dst}, 2, v{q}')
    a(f'v_lshlrev_b32 v{dst}, 1, v{dst}')
    a(f'v_and_b32 v{t}, 1, v{q}')
    a(f'v_add_u32 v{dst}, v{dst}, v{t}')
    a(f'v_and_b32 v{t}, 2, v{q}')
    a(f'v_lshl_add_u32 v{dst}, v{t}, 2, v{dst}')

K1_POS = 0; K1_CNT = 150528; K1_OVB = 151808; K1_W1 = 152832; K1_LDS = 161024

def gen_k1(a, name):
    header(a, name)
    stamp.tmp = 60; stamp.wave = 0
    a('s_cmp_ge_u32 s2, %d' % NB)
    a('s_cbranch_scc1 L1_end')
    a('s_load_dwordx8 s[4:11], s[0:1], 0')
    a('s_load_dwordx8 s[12:19], s[0:1], 32')
    a('s_load_dwordx2 s[24:25], s[0:1], 80')
    a('v_lshrrev_b32 v1, 6, v0')
    a('v_and_b32 v2, 63, v0')
    a('v_readfirstlane_b32 s3, v1')
    a('v_lshlrev_b32 v3, 4, v2')
    a('v_mov_b32 v40, 0')
    a('s_cmp_ge_u32 s3, 5')
    a.br('s_cbranch_scc1 L1_nozero')
    a('v_lshlrev_b32 v41, 2, v0')
    a(f'v_add_u32 v41, {K1_CNT}, v41')
    a('ds_write_b32 v41, v40')
    a.label('L1_nozero')
    a('s_waitcnt lgkmcnt(0)')
    stamp_init(a, 0)
    stamp(a, 0, 0)
    dbg_init(a, 0)
    dbg(a, 0)
    dbg(a, 1, True)
    a('s_cmp_ge_u32 s3, 13')
    a.br('s_cbranch_scc1 L1_hpath')
    srd(a, 28, 8, 0, CH*4, mul=CH*4)
    srd(a, 32, 10, 0, CH*4, mul=CH*4)
    srd(a, 36, 6, 0, N*6)
    a('v_lshlrev_b32 v1, 4, v0')
    nt = ' nt' if opt.nt_edges else ''
    a(f'buffer_load_dwordx4 v[4:7], v1, s[28:31], 0 offen{nt}')
    a(f'buffer_load_dwordx4 v[8:11], v1, s[32:35], 0 offen{nt}')
    a('s_lshr_b32 s40, s2, 3')
    a(f's_mul_i32 s40, s40, {opt.rot}')
    a('s_add_u32 s40, s40, s3')
    for i in range(12):
        if i == 11:
            a('s_cmp_ge_u32 s3, 4')
            a.br('s_cbranch_scc1 L1_dmadone')
        a('s_sub_u32 s41, s40, 147')
        a('s_cmp_ge_u32 s40, 147')
        a('s_cselect_b32 s40, s41, s40')
        a('s_lshl_b32 s41, s40, 10')
        a('s_mov_b32 m0, s41')
        a('s_add_u32 s40, s40, 13')
        a('buffer_load_dwordx4 v3, s[36:39], s41 offen lds')
    a.label('L1_dmadone')
    a('s_mov_b64 s[42:43], -1')
    a('s_cmp_eq_u32 s3, 12')
    a('s_cselect_b32 s43, 0, s43')
    a(f's_mov_b32 s44, {fl(opt.thr)}')
    a(f's_mov_b32 s45, -100')
    a(f's_mov_b32 s46, {K1_CNT}')
    a('v_mov_b32 v59, 0xffff0000')
    stamp(a, 0, 1)
    a('s_waitcnt vmcnt(0) lgkmcnt(0)')
    a('s_barrier')
    stamp(a, 0, 2)
    dbg(a, 2)
    dbg(a, 3, True)
    for i in range(4):
        a(f'v_mul_u32_u24 v{12+i}, 6, v{4+i}')
        a(f'v_mul_u32_u24 v{16+i}, 6, v{8+i}')
        a(f'v_and_b32 v36, -4, v{12+i}')
        a(f'v_and_b32 v37, -4, v{16+i}')
        a(f'ds_read2_b32 v[{20+2*i}:{21+2*i}], v36 offset1:1')
        a(f'ds_read2_b32 v[{28+2*i}:{29+2*i}], v37 offset1:1')
    for i in range(4):
        a(f'v_mul_u32_u24 v36, 5243, v{8+i}')
        a(f'v_lshrrev_b32 v36, 19, v36')
        a(f'v_mad_i32_i24 v37, v36, s45, v{8+i}')
        a(f'v_lshl_or_b32 v{48+i}, v{4+i}, 9, v37')
        a(f'v_lshlrev_b32 v{44+i}, 2, v36')
        a(f'v_add_u32 v{52+i}, {K1_CNT}, v{44+i}')
    a('v_mov_b32 v56, 1')
    for i in range(4):
        p, q = 20+2*i, 28+2*i
        a(f's_waitcnt lgkmcnt({6-2*i})')
        a(f'v_alignbyte_b32 v36, v{p+1}, v{p}, v{12+i}')
        a(f'v_alignbyte_b32 v37, v{p+1}, v{p+1}, v{12+i}')
        a(f'v_alignbyte_b32 v38, v{q+1}, v{q}, v{16+i}')
        a(f'v_alignbyte_b32 v39, v{q+1}, v{q+1}, v{16+i}')
        a(f'v_lshlrev_b32 v{p}, 16, v36')
        a(f'v_lshlrev_b32 v{q}, 16, v38')
        a(f'v_and_b32 v36, v59, v36')
        a(f'v_and_b32 v38, v59, v38')
        a(f'v_lshlrev_b32 v37, 16, v37')
        a(f'v_lshlrev_b32 v39, 16, v39')
        a(f'v_sub_f32 v{p}, v{p}, v{q}')
        a(f'v_sub_f32 v36, v36, v38')
        a(f'v_sub_f32 v37, v37, v39')
        a(f'v_mul_f32 v{p}, v{p}, v{p}')
        a(f'v_fmac_f32 v{p}, v36, v36')
        a(f'v_fmac_f32 v{p}, v37, v37')
        a(f'v_cmp_ngt_f32 s[{64+2*i}:{65+2*i}], v{p}, s44')
        a(f's_and_b64 s[{64+2*i}:{65+2*i}], s[{64+2*i}:{65+2*i}], s[42:43]')
    for i in range(4):
        a(f's_mov_b64 exec, s[{64+2*i}:{65+2*i}]')
        a(f'ds_add_rtn_u32 v{12+i}, v{52+i}, v56')
    a('s_mov_b64 exec, -1')
    a('s_waitcnt lgkmcnt(0)')
    a('s_barrier')
    stamp(a, 0, 3)
    for i in range(4):
        a(f'v_cmp_gt_u32 s[{72+2*i}:{73+2*i}], {CAP}, v{12+i}')
        a(f'v_lshlrev_b32 v{16+i}, 4, v{44+i}')
        a(f'v_lshl_add_u32 v{16+i}, v{12+i}, 2, v{16+i}')
    for i in range(4):
        a(f's_and_b64 exec, s[{72+2*i}:{73+2*i}], s[{64+2*i}:{65+2*i}]')
        a(f'ds_write_b32 v{16+i}, v{48+i} offset:4')
        a(f's_andn2_b64 s[{64+2*i}:{65+2*i}], s[{64+2*i}:{65+2*i}], s[{72+2*i}:{73+2*i}]')
    a('s_mov_b64 exec, -1')
    a('s_cmp_ge_u32 s3, 4')
    a.br('s_cbranch_scc1 L1_nohdr')
    a('v_lshlrev_b32 v20, 2, v0')
    a(f'v_add_u32 v21, {K1_CNT}, v20')
    a('ds_read_b32 v22, v21')
    a('v_mov_b32 v23, 0')
    a('v_lshlrev_b32 v24, 6, v0')
    a('s_waitcnt lgkmcnt(0)')
    a(f'v_cmp_lt_u32 vcc, {CAP}, v22')
    a('s_and_saveexec_b64 s[80:81], vcc')
    a.br('s_cbranch_execz L1_hdr_noovf')
    a(f'v_subrev_u32 v25, {CAP}, v22')
    a(f'v_mov_b32 v26, {K1_CNT + 1024}')
    a('ds_add_rtn_u32 v23, v26, v25')
    a(f'v_add_u32 v21, {K1_OVB}, v20')
    a('s_waitcnt lgkmcnt(0)')
    a('ds_write_b32 v21, v23')
    a.label('L1_hdr_noovf')
    a('s_mov_b64 exec, s[80:81]')
    a('v_lshl_or_b32 v22, v23, 16, v22')
    a('ds_write_b32 v24, v22')
    a.label('L1_nohdr')
    a('s_waitcnt lgkmcnt(0)')
    a('s_barrier')
    a('s_or_b64 s[72:73], s[64:65], s[66:67]')
    a('s_or_b64 s[74:75], s[68:69], s[70:71]')
    a('s_or_b64 s[72:73], s[72:73], s[74:75]')
    a.br('s_cbranch_scc0 L1_dump')
    srd(a, 28, 24, OVF_OFF, CH*4, mul=CH*4)
    for i in range(4):
        a(f's_mov_b64 exec, s[{64+2*i}:{65+2*i}]')
        a.br(f's_cbranch_execz L1_ovf{i}')
        a(f'v_add_u32 v20, {K1_OVB}, v{44+i}')
        a('ds_read_b32 v21, v20')
        a('s_waitcnt lgkmcnt(0)')
        a(f'v_add_u32 v21, v21, v{12+i}')
        a(f'v_subrev_u32 v21, {CAP}, v21')
        a('v_lshlrev_b32 v21, 2, v21')
        a(f'buffer_store_dword v{48+i}, v21, s[28:31], 0 offen')
        a.label(f'L1_ovf{i}')
    a('s_mov_b64 exec, -1')
    a.br('s_branch L1_dump')

    a.label('L1_hpath')
    a('s_sub_u32 s40, s3, 13')
    srd(a, 28, 14, 0, 8192)
    srd(a, 32, 4, 0, R*512, mul=R*512)
    srd(a, 36, 24, H_OFF, R*128, mul=R*128)
    for i in range(8):
        a(f's_mov_b32 m0, {K1_W1 + i*1024}')
        a(f's_mov_b32 s41, {i*1024}')
        a('buffer_load_dwordx4 v3, s[28:31], s41 offen lds')
    a('v_and_b32 v4, 15, v2')
    a('v_lshrrev_b32 v5, 4, v2')
    a('s_lshl_b32 s41, s40, 4')
    a('v_add_u32 v6, s41, v4')
    a('v_lshlrev_b32 v7, 4, v5')
    a('v_lshl_add_u32 v8, v6, 9, v7')
    a('v_lshl_add_u32 v9, v6, 7, v7')
    a('buffer_load_dwordx4 v[12:15], v8, s[32:35], 0 offen')
    a('buffer_load_dwordx4 v[16:19], v8, s[32:35], 0 offen offset:64')
    a(f'v_add_u32 v8, {48*512}, v8')
    a('buffer_load_dwordx4 v[20:23], v8, s[32:35], 0 offen')
    a('buffer_load_dwordx4 v[24:27], v8, s[32:35], 0 offen offset:64')
    a(f'v_add_u32 v8, {48*512}, v8')
    a('buffer_load_dwordx4 v[28:31], v8, s[32:35], 0 offen')
    a('buffer_load_dwordx4 v[32:35], v8, s[32:35], 0 offen offset:64')
    a('v_lshrrev_b32 v10, 2, v4')
    a('v_lshl_add_u32 v10, v5, 3, v10')
    a('v_and_b32 v11, 3, v4')
    a('v_lshlrev_b32 v11, 3, v11')
    a('v_lshl_add_u32 v10, v10, 7, v11')
    a(f'v_add_u32 v10, {K1_W1}, v10')
    a('s_waitcnt vmcnt(6)')
    FR = 64
    for ht in range(4):
        for ks in range(2):
            r = FR + (ht*2+ks)*4
            for hf in range(2):
                a(f'ds_read_b64_tr_b16 v[{r+2*hf}:{r+2*hf+1}], v10 offset:{ks*4096 + ht*32 + hf*512}')
    a('s_waitcnt lgkmcnt(0)')
    D = 96; O = 112
    for t in range(3):
        if t == 2:
            a('s_cmp_lg_u32 s40, 0')
            a.br('s_cbranch_scc1 L1_hdone')
        S = 12 + 8*t
        a('s_waitcnt vmcnt(4)')
        for ht in range(4):
            a(f'v_mfma_f32_16x16x32_bf16 v[{D+4*ht}:{D+4*ht+3}], v[{FR+ht*8}:{FR+ht*8+3}], v[{S}:{S+3}], 0')
        for ht in range(4):
            a(f'v_mfma_f32_16x16x32_bf16 v[{D+4*ht}:{D+4*ht+3}], v[{FR+ht*8+4}:{FR+ht*8+7}], v[{S+4}:{S+7}], v[{D+4*ht}:{D+4*ht+3}]')
        for i in range(16):
            a(f'v_cvt_pk_bf16_f32 v{D+i}, 0, v{D+i}')
        T = 120
        for grp in range(4):
            for i in range(4):
                a(f'v_mul_f32 v{T+i}, {fl(-1.4426950408889634)}, v{D+4*grp+i}')
            for i in range(4):
                a(f'v_exp_f32 v{T+i}, v{T+i}')
            for i in range(4):
                a(f'v_add_f32 v{T+i}, 1.0, v{T+i}')
            for i in range(4):
                a(f'v_rcp_f32 v{T+i}, v{T+i}')
            for i in range(4):
                a(f'v_mul_f32 v{T+i}, v{T+i}, v{D+4*grp+i}')
            a(f'v_cvt_pk_bf16_f32 v{O+2*grp}, v{T}, v{T+1}')
            a(f'v_cvt_pk_bf16_f32 v{O+2*grp+1}, v{T+2}, v{T+3}')
        a(f'buffer_store_dwordx4 v[{O}:{O+3}], v9, s[36:39], 0 offen ' + opt.k1st)
        a(f'buffer_store_dwordx4 v[{O+4}:{O+7}], v9, s[36:39], 0 offen offset:64 ' + opt.k1st)
        a(f'v_add_u32 v9, {48*128}, v9')
    a.label('L1_hdone')
    a('s_cmp_lg_u32 s40, 2')
    a.br('s_cbranch_scc1 L1_nofrag')
    a('s_cmp_ge_u32 s2, 27')
    a.br('s_cbranch_scc1 L1_nofrag')
    emit_Q(a, 12, 4, 13)
    a('v_lshlrev_b32 v12, 3, v12')
    srd(a, 32, 24, W2F_OFF, 24576 + 1536)
    a('s_cmp_ge_u32 s2, 24')
    a.br('s_cbranch_scc1 L1_wrfrag')
    srd(a, 28, 16, 0, 64*192*2)
    a('s_lshr_b32 s41, s2, 3')
    a('s_lshl_b32 s41, s41, 7')
    a('s_bfe_u32 s47, s2, 0x20001')
    a('s_lshl_b32 s47, s47, 1')
    a('s_add_u32 s41, s41, s47')
    a('s_and_b32 s47, s2, 1')
    a(f's_mul_i32 s47, s47, {32*384}')
    a('s_add_u32 s41, s41, s47')
    a(f'v_mul_u32_u24 v13, {4*384}, v5')
    a('v_add3_u32 v12, v12, v13, s41')
    a(f'v_add_u32 v13, {16*384}, v12')
    for jj in range(8):
        a(f'buffer_load_ushort v{16+jj}, v{12 if jj < 4 else 13}, s[28:31], 0 offen offset:{(jj&3)*384}')
    a('s_lshl_b32 s41, s2, 10')
    a('v_add_u32 v14, s41, v3')
    a('s_waitcnt vmcnt(0)')
    for i in range(4):
        a(f'v_lshl_or_b32 v{16+i}, v{17+2*i}, 16, v{16+2*i}')
    a('buffer_store_dwordx4 v[16:19], v14, s[32:35], 0 offen')
    a.br('s_branch L1_nofrag')
    a.label('L1_wrfrag')
    srd(a, 28, 18, 0, 4*192*2)
    a('s_sub_u32 s41, s2, 24')
    a('s_lshl_b32 s47, s41, 7')
    a('v_lshlrev_b32 v13, 1, v5')
    a('v_add3_u32 v12, v12, v13, s47')
    for k in range(4):
        a(f'buffer_load_ushort v{16+k}, v12, s[28:31], 0 offen offset:{k*384}')
    a('s_lshl_b32 s41, s41, 9')
    a('s_add_u32 s41, s41, 24576')
    a('v_lshlrev_b32 v14, 3, v2')
    a('v_add_u32 v14, s41, v14')
    a('s_waitcnt vmcnt(0)')
    for i in range(2):
        a(f'v_lshl_or_b32 v{16+i}, v{17+2*i}, 16, v{16+2*i}')
    a('buffer_store_dwordx2 v[16:17], v14, s[32:35], 0 offen')
    a.label('L1_nofrag')
    srd(a, 28, 24, POS4_OFF, R*8, mul=R*8)
    a('s_lshl_b32 s41, s40, 6')
    a('v_add_u32 v12, s41, v2')
    a(f's_mul_i32 s41, s2, {R}')
    a('v_add_u32 v13, s41, v12')
    a('v_mul_u32_u24 v13, 6, v13')
    a('v_and_b32 v14, -4, v13')
    a('v_lshlrev_b32 v12, 3, v12')
    a('s_waitcnt lgkmcnt(0)')
    a('s_barrier')
    a('ds_read2_b32 v[16:17], v14 offset1:1')
    a('s_waitcnt lgkmcnt(0)')
    a('v_alignbyte_b32 v18, v17, v16, v13')
    a('v_alignbyte_b32 v19, v17, v17, v13')
    a('v_and_b32 v19, 0xffff, v19')
    a('buffer_store_dwordx2 v[18:19], v12, s[28:31], 0 offen')
    if opt.pf_sv:
        srd(a, 32, 4, 0, R*512, mul=R*512)
        a('s_lshl_b32 s41, s40, 10')
        a('v_add_u32 v20, s41, v3')
        for i in range(17):
            a(f'buffer_load_dwordx4 v[100:103], v20, s[32:35], 0 offen {opt.pf_sv if opt.pf_sv != "plain" else ""}')
            a('v_add_u32 v20, 3072, v20')
    a('s_barrier')
    a('s_barrier')
    a.label('L1_dump')
    stamp(a, 0, 4)
    srd(a, 28, 24, SLOT_OFF, NB*16384)
    a('v_lshlrev_b32 v4, 4, v0')
    a('ds_read_b128 v[8:11], v4')
    a('v_lshrrev_b32 v5, 2, v0')
    a('v_lshlrev_b32 v5, 14, v5')
    a('v_and_b32 v6, 3, v0')
    a('v_lshl_add_u32 v5, v6, 4, v5')
    a('s_lshl_b32 s41, s2, 6')
    a('v_add_u32 v5, s41, v5')
    a('s_waitcnt lgkmcnt(0)')
    a('buffer_store_dwordx4 v[8:11], v5, s[28:31], 0 offen ' + opt.k1st)
    if opt.ts or opt.dbg:
        a('s_waitcnt vmcnt(0)')
        stamp(a, 0, 5)
        dbg(a, 4)
        dbg(a, 5, True)
    a.label('L1_end')
    a('s_endpgm')

L_W2F = 0; L_NCNT = 24576; L_START = L_NCNT + 512; L_DPOS = 25600; L_FLAG = 27648; L_STG = 27680
STG = 768
L_SORT = L_STG + 8*STG; L_RES = 50176; K2_LDS = L_RES + 116*512
assert L_SORT + 4*(4000+64) <= L_RES
S_VOFF, S_DL, S_R = 0, 256, 384

vLANE16, vSTGW, vSTGH, vSTGR, vSTGS, vLPV, vLPH, vLPR, vQQ, vMHI, vTR, vPACK, vNX64, vHA, vNQ, vRES, vE, vNX32, vM = range(1, 20)
PS = 20
RBF = 22
WR = 24
HOFF = 30
SEL = 32; SR = 36
V = 48
H = 96
ACC = 112
D3 = 176
D2 = 208
WS = 224
VOFF = 240
TP = 248
vRL = 254
vSTLO, vSTHI = ACC, ACC + 1
K2_VGPR = 256
sSV, sH, sP4, sOUT, sRES, sSLOT, sW2F, sOVF = 28, 32, 36, 40, 44, 48, 52, 80
sF = 56
sNC, sC64, sC32, sN0, sE0, sE1, sMORE, sROUND, sT0, sT1, sT2, sNN = 60, 61, 62, 63, 84, 85, 87, 88, 89, 90, 91, 26
sEXQ = 22
sXN0, sXNN, sXE0, sXE1, sXCONT, sLAST, sSTG, sSD, sRB = 68, 69, 70, 71, 72, 73, 6, 7, 8

def chain_step(a, tab):
    a(f'v_readlane_b32 s{sT0}, v{tab}, s{sNC}')
    a(f's_lshr_b32 s{sT1}, s{sNC}, 2')
    a(f's_and_b32 s{sT1}, s{sT1}, 16')
    a(f's_lshr_b32 s{sT0}, s{sT0}, s{sT1}')
    a(f's_and_b32 s{sNC}, s{sT0}, 0xffff')

def chain_start(a, dst):
    a(f'v_readlane_b32 s{sT0}, v{vPACK}, s{sNC}')
    a(f's_lshr_b32 s{sT1}, s{sNC}, 2')
    a(f's_and_b32 s{sT1}, s{sT1}, 16')
    a(f's_lshr_b32 s{sT0}, s{sT0}, s{sT1}')
    a(f's_and_b32 s{dst}, s{sT0}, 0xffff')

loop_n = [0]
def chain_loop(a, tab, cnt):
    n = loop_n[0]; loop_n[0] += 1
    a(f's_cmp_eq_u32 s{cnt}, 0')
    a(f's_cbranch_scc1 L2_walkdone{n}')
    a.label(f'L2_walk{n}', settle=False)
    chain_step(a, tab)
    a(f's_sub_u32 s{cnt}, s{cnt}, 1')
    a(f's_cmp_lg_u32 s{cnt}, 0')
    a(f's_cbranch_scc1 L2_walk{n}')
    a.label(f'L2_walkdone{n}', settle=False)

def Rn(d, x): return f'v_cvt_pk_bf16_f32 v{d}, 0, v{x}'

def weave(main, fill):
    out = []; n = len(main); m = len(fill); k = 0
    for i, x in enumerate(main):
        out.append(x)
        want = (i + 1) * m // n
        out += fill[k:want]; k = want
    return out + fill[k:]

def emit(a, lst):
    for x in lst: a(x)

def next_entry_read(t):
    return [f's_lshl_b32 s{sT0}, s{sXE0}, 2',
            f's_add_u32 s{sT0}, s{sT0}, s{sSD}',
            f'v_add_u32 v{t}, s{sT0}, v{vSTGW}',
            f'ds_read_b32 v{vE}, v{t}']
def next_mask(t):
    return [f's_sub_u32 s{sT0}, s{sXE1}, s{sXE0}',
            f's_lshl_b32 s{sT0}, s{sT0}, 2',
            f's_add_u32 s{sT0}, s{sT0}, s{sSTG}',
            f'v_subrev_u32 v{t}, s{sT0}, v{vSTGW}',
            f'v_ashrrev_i32 v{t}, 31, v{t}']
def next_stage(t, u):
    return [f'v_bitop3_b32 v{vE}, v{vE}, v{t}, v{t} bitop3:0xf3',
            f'v_and_b32 v{t}, 0x7ffffe00, v{vE}',
            f'v_lshrrev_b32 v{u}, 6, v{vE}',
            f'ds_write_b32 v{vSTGW}, v{t}',
            f'v_and_b32 v{u}, -8, v{u}']
def off_reads(u):
    return [f'ds_read_b32 v{HOFF}, v{vHA} offset:{128*u}',
            f'ds_read_b32 v{HOFF+1}, v{vHA} offset:{128*u + 16}',
            f'ds_read_b128 v[{VOFF}:{VOFF+3}], v{vSTGR} offset:{128*u}',
            f'ds_read_b128 v[{VOFF+4}:{VOFF+7}], v{vSTGR} offset:{128*u + 16}']
def off_adds():
    return ([f'v_lshrrev_b32 v{HOFF+et}, 2, v{HOFF+et}' for et in range(2)] +
            [f'v_add_u32 v{HOFF+et}, v{HOFF+et}, v{vLPH}' for et in range(2)] +
            [f'v_add_u32 v{VOFF+jj}, v{VOFF+jj}, v{vLPV}' for jj in range(8)])
def pos_load(u): return [f'buffer_load_dwordx2 v[{PS}:{PS+1}], v{u}, s[{sP4}:{sP4+3}], 0 offen']
def h_loads():
    return [f'buffer_load_dwordx4 v[{H+et*8+ks*4}:{H+et*8+ks*4+3}], v{HOFF+et}, s[{sH}:{sH+3}], 0 offen offset:{ks*64}'
            for et in range(2) for ks in range(2)]
def v_loads(j):
    return [f'buffer_load_dwordx2 v[{V+j*16+jj*2}:{V+j*16+jj*2+1}], v{VOFF+jj}, s[{sSV}:{sSV+3}], 0 offen offset:{128*(j+1)}'
            for jj in range(8)]
def out_stores(addr):
    return [f'buffer_store_dwordx4 v[{D3+(c*2+hh)*4}:{D3+(c*2+hh)*4+3}], v{addr}, s[{sOUT}:{sOUT+3}], 0 offen offset:{c*128+hh*64} {opt.outst}'
            for c in range(4) for hh in range(2)]
def wread(step):
    p = [0, 2, 1][step // 4]; ct = step % 4
    return [f'ds_read_b128 v[{WS+(step%2)*8+ks*4}:{WS+(step%2)*8+ks*4+3}], v{vLANE16} offset:{L_W2F + ((p*4+ct)*2+ks)*1024}' for ks in range(2)]
def wf(p, u):
    return [f'v_mfma_f32_16x16x4bf16_1k v[{D3+16*et}:{D3+16*et+15}], v[{RBF}:{RBF+1}], v[{WR+2*p}:{WR+2*p+1}], 0 cbsz:2 abid:{2*u+et}' for et in range(2)]

def T(a, n): tr(a, n)

def l2_mfma(step):
    d = D2 + (step % 2)*8; w = WS + (step % 2)*8; o = []
    for ks in range(2):
        for et in range(2):
            c = '0' if ks == 0 else f'v[{d+4*et}:{d+4*et+3}]'
            o.append(f'v_mfma_f32_16x16x32_bf16 v[{d+4*et}:{d+4*et+3}], v[{H+et*8+ks*4}:{H+et*8+ks*4+3}], v[{w+4*ks}:{w+4*ks+3}], {c}')
    return o
def l2_mul(step):
    part = step // 4; ct = step % 4; d = D2 + (step % 2)*8; o = []
    for et in range(2):
        for r in range(4):
            m = D3 + et*16 + ct*4 + r
            o.append(f'v_mul_f32 v{m if part == 2 else d+4*et+r}, v{d+4*et+r}, v{m}')
    return o
def l2_cvt(step):
    if step // 4 == 2: return []
    d = D2 + (step % 2)*8
    return [f'v_cvt_pk_bf16_f32 v{d+i}, v{d+2*i}, v{d+2*i+1}' for i in range(4)]
def l2_seg(step):
    part = step // 4; ct = step % 4; d = D2 + (step % 2)*8
    if part == 2: return []
    if part == 0:
        acc = ACC + ct*4
        return [f'v_mfma_f32_16x16x32_bf16 v[{acc}:{acc+3}], v[{d}:{d+3}], v[{SEL}:{SEL+3}], v[{acc}:{acc+3}]']
    return [f'v_mfma_f32_16x16x32_bf16 v[{ACC+(1+j)*16+ct*4}:{ACC+(1+j)*16+ct*4+3}], v[{d}:{d+3}], v[{SR+4*j}:{SR+4*j+3}], v[{ACC+(1+j)*16+ct*4}:{ACC+(1+j)*16+ct*4+3}]' for j in range(3)]
def sel_reads(u):
    return ([f'ds_read_b128 v[{SEL}:{SEL+3}], v{vSTGS} offset:{S_DL + 64*u}'] +
            [f'ds_read_b128 v[{SR+4*j}:{SR+4*j+3}], v{vSTGS} offset:{S_R + 128*j + 64*u}' for j in range(3)])

def head(a, tag):
    first = tag == 'A'; u = 1 if tag == 'C' else 0
    if u == 0: a.label(f'L2_head_{tag}')
    vl = v_loads(0) + v_loads(1) + v_loads(2)
    assert sum(opt.vsched) == 24
    def vissue(i):
        n = opt.vsched[i]; emit(a, vl[:n]); del vl[:n]
    if u == 0:
        X = D2
        DP = TP
        a(f'v_and_b32 v{X}, 127, v{vE}')
        a(f'v_lshlrev_b32 v{X+1}, 4, v{X}')
        a(f'ds_read_b128 v[{DP}:{DP+3}], v{X+1} offset:{L_DPOS}')
        a(f'ds_write_b16 v{vSTGH}, v{X} offset:{S_DL}')
        if first:
            a(f's_lshl_b32 s{sT0}, s{sN0}, 9')
            a(f'v_add_u32 v{vRES}, s{sT0}, v{vLPR}')
            a(f's_mul_i32 s{sT0}, s{sN0}, 0x10001')
            a(f'v_add_u32 v{vNQ}, s{sT0}, v{vQQ}')
            a(f's_bfm_b32 s{sT1}, s{sNN}, 0')
            a(f's_lshl_b32 s{sT2}, s{sT1}, 16')
            a(f's_or_b32 s{sEXQ}, s{sT1}, s{sT2}')
            a(f's_mov_b32 s{sEXQ+1}, s{sEXQ}')
        else:
            a(f's_lshl_b32 s{sT0}, s{sN0}, 9')
            a(f'v_add_u32 v{vRES}, s{sT0}, v{vLPR}')
        if first:
            a(f'v_and_b32 v{X+3}, 0xff, v{vNQ}')
            a(f'v_and_b32 v{X+4}, 7, v{vNQ}')
            a(f'v_lshlrev_b32 v{X+4}, 5, v{X+4}')
            a(f'v_xor_b32 v{X+4}, v{X+4}, v{vLPH}')
            a(f'v_lshl_add_u32 v{X+3}, v{X+3}, 9, v{X+4}')
            a(f'v_add_u32 v{X+3}, {L_RES}, v{X+3}')
            for i in range(8):
                if i: a(f'v_xor_b32 v{X+4+(i&1)}, {i*64}, v{X+3}')
                a(f'ds_read_b128 v[{D3+4*i}:{D3+4*i+3}], v{X+3 if i == 0 else X+4+(i&1)}')
        a(f'v_ashrrev_i32 v{vM}, 31, v{vE}')
        T(a, 9)
        a('s_waitcnt vmcnt(12)')
        T(a, 10)
        rx, ry, rz, t0, t1, t2, dd, inv = range(X, X+8)
        g0 = X + 8
        a(f'v_lshlrev_b32 v{rx}, 16, v{PS}')
        a(f'v_and_b32 v{ry}, v{vMHI}, v{PS}')
        a(f'v_lshlrev_b32 v{rz}, 16, v{PS+1}')
        a(f's_waitcnt lgkmcnt({9 if first else 1})')
        for i in range(3): a(f'v_sub_f32 v{rx+i}, v{rx+i}, v{DP+i}')
        sc = []
        sc += [Rn(rx+i, rx+i) for i in range(3)]
        sc += [f'v_mul_f32 v{t0+i}, v{rx+i}, v{rx+i}' for i in range(3)]
        sc += [Rn(t0+i, t0+i) for i in range(3)]
        sc += [f'v_add_f32 v{t0}, v{t0}, v{t1}', f'v_add_f32 v{t0}, v{t0}, v{t2}', Rn(t0, t0),
               f'v_add_f32 v{t0}, {fl(1e-8)}, v{t0}', Rn(t0, t0), f'v_sqrt_f32 v{t0}, v{t0}', Rn(dd, t0), f'v_rcp_f32 v{inv}, v{dd}']
        sc += [f'v_mul_f32 v{g0+4}, {fl(3.141592653589793)}, v{dd}']
        sc += [f'v_mul_f32 v{g0+k}, s{sF+k}, v{dd}' for k in range(4)]
        sc += [Rn(g0+4, g0+4)] + [f'v_mul_f32 v{g0+4}, {fl(0.2)}, v{g0+4}'] + [Rn(g0+k, g0+k) for k in range(2)]
        sc += [Rn(g0+4, g0+4)] + [Rn(g0+k, g0+k) for k in range(2, 4)]
        sc += [f'v_mul_f32 v{g0+4}, 0.15915494, v{g0+4}']
        sc += [f'v_mul_f32 v{rx+i}, v{rx+i}, v{inv}' for i in range(3)]
        sc += [f'v_cos_f32 v{g0+4}, v{g0+4}']
        sc += [f'v_mul_f32 v{g0+k}, 0.15915494, v{g0+k}' for k in range(4)]
        sc += [f'v_cvt_pk_bf16_f32 v{t0}, v{rx}, v{ry}', f'v_cvt_pk_bf16_f32 v{t1}, v{rz}, v{rz}', Rn(g0+4, g0+4)]
        sc += [f'v_sin_f32 v{g0+k}, v{g0+k}' for k in range(2)]
        sc += [f'v_bitop3_b32 v{t0}, v{t0}, v{vM}, v{vM} bitop3:0x30', f'v_bitop3_b32 v{t1}, v{t1}, v{vM}, v{vM} bitop3:0x30',
               f'v_add_f32 v{g0+4}, 1.0, v{g0+4}']
        sc += [f'ds_write_b16 v{vSTGH}, v{t0} offset:{S_R}', f'ds_write_b16_d16_hi v{vSTGH}, v{t0} offset:{S_R+128}', f'ds_write_b16 v{vSTGH}, v{t1} offset:{S_R+256}']
        sc += sel_reads(0)
        sc += [f'v_sin_f32 v{g0+k}, v{g0+k}' for k in range(2, 4)]
        sc += [Rn(g0+4, g0+4), f'v_mul_f32 v{inv}, 0.5, v{inv}', f'v_mul_f32 v{inv}, v{inv}, v{g0+4}']
        sc += [f'v_mul_f32 v{g0+k}, v{g0+k}, v{inv}' for k in range(4)]
        sc += [f'v_cvt_pk_bf16_f32 v{RBF}, v{g0}, v{g0+1}', f'v_cvt_pk_bf16_f32 v{RBF+1}, v{g0+2}, v{g0+3}',
               f'v_bitop3_b32 v{RBF}, v{RBF}, v{vM}, v{vM} bitop3:0x30', f'v_bitop3_b32 v{RBF+1}, v{RBF+1}, v{vM}, v{vM} bitop3:0x30']
        fill = []
        if first:
            for c in range(4):
                for hh in range(2):
                    for ct in range(4):
                        for r in (2*hh, 2*hh+1):
                            src = D3 + (c*2 + hh)*4 + 2*(r & 1) + (ct >> 1)
                            dst = ACC + c*16 + ct*4 + r
                            fill.append(f'v_and_b32 v{dst}, v{vMHI}, v{src}' if ct & 1 else f'v_lshlrev_b32 v{dst}, 16, v{src}')
        nh = 6
        emit(a, sc[:nh])
        if first: a('s_waitcnt lgkmcnt(0)')
        emit(a, weave(sc[nh:], fill))
        emit(a, wread(0)); emit(a, wread(1))
    else:
        emit(a, wread(0)); emit(a, wread(1))
        T(a, 9)
    a(f's_mov_b32 s{sT0}, 0x00010001')
    a('s_waitcnt lgkmcnt(7)')
    for i in range(4): a(f'v_xor_b32 v{SEL+i}, v{SEL+i}, v{vNQ}')
    emit(a, wf(0, u)[:1])
    for i in range(4): a(f'v_pk_min_u16 v{SEL+i}, v{SEL+i}, s{sT0}')
    for i in range(4): a(f'v_pk_sub_u16 v{SEL+i}, v{SEL+i}, s{sT0}')
    emit(a, wf(0, u)[1:])
    a('s_waitcnt lgkmcnt(4)')
    for j in range(3):
        for i in range(4): a(f'v_and_b32 v{SR+4*j+i}, v{SR+4*j+i}, v{SEL+i}')
    for i in range(4): a(f'v_and_b32 v{SEL+i}, 0x3f803f80, v{SEL+i}')
    vissue(0)
    T(a, 11)
    a(f's_waitcnt vmcnt({(8 if u == 0 else 0) + opt.vsched[0]})')
    T(a, 12)
    for step in range(12):
        a(f's_waitcnt lgkmcnt({2 if step < 11 else 0})')
        M = l2_mfma(step)
        if step == 0:
            emit(a, M); emit(a, wread(2)); vissue(1)
            continue
        m = l2_mul(step - 1)
        if step in (5, 9):
            emit(a, M[:2] + m[:4] + M[2:3] + m[4:6] + M[3:] + m[6:])
        else:
            emit(a, weave(M, m))
        if step == 4: emit(a, wf(2, u))
        if step == 8: emit(a, wf(1, u))
        emit(a, l2_cvt(step - 1))
        if step + 2 < 12: emit(a, wread(step + 2))
        emit(a, l2_seg(step - 1))
        vissue(step + 1)
    a(f's_add_u32 s{sXE0}, s{sE0}, {32*(u+1)}')
    a(f's_cmp_lt_u32 s{sXE0}, s{sE1}')
    if tag == 'A':
        a('s_cbranch_scc0 L2_newitem')
    elif tag == 'B':
        a.br('s_cbranch_scc1 L2_tail_toC')
        a.br('s_branch L2_newitem')
    else:
        a('s_cbranch_scc0 L2_newitem')
        a(f's_mov_b32 s{sXE1}, s{sE1}')
        a(f's_mov_b32 s{sXN0}, s{sN0}')
        a(f's_mov_b32 s{sXNN}, s{sNN}')
        a(f's_mov_b32 s{sXCONT}, 1')
        a(f's_mov_b32 s{sLAST}, 0')
        a.br('s_branch L2_tail_toA')

def newitem(a):
    a.label('L2_newitem', settle=False)
    a(f's_mov_b32 s{sLAST}, 1')
    chain_loop(a, vNX64, sC64)
    chain_loop(a, vNX32, sC32)
    a(f's_cmp_ge_u32 s{sNC}, {R}')
    a('s_cbranch_scc1 L2_tail_fin')
    a(f's_mov_b32 s{sXN0}, s{sNC}')
    chain_start(a, sXE0)
    chain_step(a, vNX32)
    chain_start(a, sXE1)
    a(f's_sub_u32 s{sXNN}, s{sNC}, s{sXN0}')
    a(f's_mov_b32 s{sXCONT}, 0')
    a(f's_mov_b32 s{sC32}, 7')

def tail(a, tag):
    if tag == 'toC':
        a.lines.append('L2_tail_toC:')
    else:
        a.label(f'L2_tail_{tag}', settle=False)
    def pv(n):
        j, ct = divmod(n, 4); U = D2 + ((n + 2) % 4)*8
        un, mu = [], []
        for jj in range(8):
            src = V + j*16 + jj*2 + (ct >> 1)
            un.append(f'v_and_b32 v{U+jj}, v{vMHI}, v{src}' if ct & 1 else f'v_lshlrev_b32 v{U+jj}, 16, v{src}')
            mu.append(f'v_mul_f32 v{U+jj}, v{U+jj}, v{D3 + (jj >> 2)*16 + ct*4 + (jj & 3)}')
        if opt.pk:
            mu = [f'v_pk_mul_f32 v[{U+jj}:{U+jj+1}], v[{U+jj}:{U+jj+1}], v[{D3 + (jj >> 2)*16 + ct*4 + (jj & 3)}:{D3 + (jj >> 2)*16 + ct*4 + (jj & 3) + 1}]' for jj in range(0, 8, 2)]
        cv = [f'v_cvt_pk_bf16_f32 v{U+i}, v{U+2*i}, v{U+2*i+1}' for i in range(4)]
        acc = ACC + (1+j)*16 + ct*4
        mf = f'v_mfma_f32_16x16x32_bf16 v[{acc}:{acc+3}], v[{U}:{U+3}], v[{SEL}:{SEL+3}], v[{acc}:{acc+3}]'
        return un, mu, cv, mf
    if tag == 'toA': emit(a, next_entry_read(TP) + next_mask(TP+4))
    if tag == 'toC': emit(a, off_reads(1))
    emit(a, l2_mul(11))
    prev = None
    for n in range(12):
        j, ct = divmod(n, 4)
        un, mu, cv, mf = pv(n)
        if ct == 0:
            T(a, 13 + 2*j)
            a(f's_waitcnt vmcnt({16 - 8*j})')
            T(a, 14 + 2*j)
        emit(a, un[:2])
        if prev: a(prev)
        emit(a, un[2:])
        rest = mu + cv
        if tag == 'toA' and n == 1:
            a('s_waitcnt lgkmcnt(0)')
            rest = weave(rest, next_stage(TP+4, TP+5) + off_reads(0))
        if (tag == 'toA' and n == 3) or (tag == 'toC' and n == 1):
            a('s_waitcnt lgkmcnt(0)')
            rest = weave(rest, off_adds())
        emit(a, rest)
        prev = mf
    T(a, 19)
    if tag == 'toC':
        emit(a, h_loads()[:2])
        a(prev)
        emit(a, h_loads()[2:])
        emit(a, sel_reads(1))
        return
    if tag == 'toA':
        emit(a, pos_load(TP+5))
        emit(a, h_loads())
        a(prev)
        a(f's_cmp_eq_u32 s{sLAST}, 0')
        a(f's_cbranch_scc1 L2_nopack')
    else:
        a('s_nop 1')
        a(prev)
    for c in range(4):
        for hh in range(2):
            for d in range(4):
                lo = ACC + c*16 + (2*(d & 1))*4 + 2*hh + (d >> 1)
                a(f'v_cvt_pk_bf16_f32 v{D3+(c*2+hh)*4+d}, v{lo}, v{lo+4}')
    if tag == 'toA':
        a.br('s_branch L2_store')
        a.label('L2_nopack', settle=False)
        a(f'v_mov_b32 v{vRES}, 0x40000000')
        a.label('L2_store')
    T(a, 20)
    a(f's_mov_b64 exec, s[{sEXQ}:{sEXQ+1}]')
    emit(a, out_stores(vRES))
    a('s_mov_b64 exec, -1')
    if tag == 'toA':
        a(f's_mov_b32 s{sN0}, s{sXN0}')
        a(f's_mov_b32 s{sNN}, s{sXNN}')
        a(f's_mov_b32 s{sE0}, s{sXE0}')
        a(f's_mov_b32 s{sE1}, s{sXE1}')
        a(f's_cmp_lg_u32 s{sXCONT}, 0')
        a.br('s_cbranch_scc1 L2_head_B')
        a.br('s_branch L2_head_A')

def gen_k2(a, name):
    header(a, name)
    stamp.tmp = 252; stamp.wave = 0
    a('s_cmp_ge_u32 s2, %d' % NB)
    a('s_cbranch_scc1 L2_end')
    a('s_load_dwordx2 s[4:5], s[0:1], 0')
    a('s_load_dwordx2 s[12:13], s[0:1], 32')
    a('s_load_dwordx2 s[20:21], s[0:1], 64')
    a('s_load_dwordx2 s[24:25], s[0:1], 80')
    a('v_lshrrev_b32 v40, 6, v0')
    a('v_and_b32 v41, 63, v0')
    a('v_readfirstlane_b32 s3, v40')
    a(f'v_lshlrev_b32 v{vLANE16}, 4, v41')
    a('v_lshlrev_b32 v42, 4, v0')
    a('s_waitcnt lgkmcnt(0)')
    a('s_load_dwordx2 s[14:15], s[12:13], 0')
    srd(a, sSLOT, 24, SLOT_OFF, NB*64, mul=16384)
    W = V
    a(f'buffer_load_dwordx4 v[{W}:{W+3}], v42, s[{sSLOT}:{sSLOT+3}], 0 offen')
    a(f'v_add_u32 v43, 8192, v42')
    a(f'buffer_load_dwordx4 v[{W+4}:{W+7}], v43, s[{sSLOT}:{sSLOT+3}], 0 offen')
    srd(a, sP4, 24, POS4_OFF, N*8)
    a(f's_mul_i32 s{sT0}, s2, {R*8}')
    a('v_lshlrev_b32 v43, 3, v0')
    a(f'v_add_u32 v43, s{sT0}, v43')
    a('v_cmp_gt_u32 vcc, 128, v0')
    a('v_mov_b32 v44, 0x40000000')
    a('v_cndmask_b32_e64 v43, v44, v43, vcc')
    a(f'buffer_load_dwordx2 v[46:47], v43, s[{sP4}:{sP4+3}], 0 offen')
    def zero_counters(tag):
        a('s_cmp_ge_u32 s3, 3')
        a.br(f's_cbranch_scc1 L2_nozero{tag}')
        a('v_lshlrev_b32 v40, 2, v0')
        a('v_mov_b32 v44, 0')
        a(f'v_add_u32 v42, {L_FLAG - 512}, v40')
        a(f'v_add_u32 v40, {L_NCNT}, v40')
        a('v_cmp_gt_u32 vcc, 128, v0')
        a('v_cndmask_b32_e64 v40, v42, v40, vcc')
        a('v_cmp_gt_u32 vcc, 129, v0')
        a('s_and_saveexec_b64 s[64:65], vcc')
        a('ds_write_b32 v40, v44')
        a('s_mov_b64 exec, s[64:65]')
        a.label(f'L2_nozero{tag}')
    zero_counters('a')
    srd(a, sW2F, 24, W2F_OFF, 24576 + 1536)
    a('v_lshlrev_b32 v43, 3, v41')
    a(f's_mov_b32 s{sT0}, 24576')
    for p in range(3):
        a(f'buffer_load_dwordx2 v[{WR+2*p}:{WR+2*p+1}], v43, s[{sW2F}:{sW2F+3}], s{sT0} offen offset:{p*512}')
    for i in range(3):
        a(f's_lshl_b32 s{sT0}, s3, 10')
        if i: a(f's_add_u32 s{sT0}, s{sT0}, {i*8192}')
        a(f's_mov_b32 m0, s{sT0}')
        a(f'buffer_load_dwordx4 v{vLANE16}, s[{sW2F}:{sW2F+3}], s{sT0} offen lds')
    srd(a, sRES, 4, 0, R*512, mul=R*512)
    stamp_init(a, 1)
    tr_init(a)
    tr(a, 1)
    stamp(a, 1, 0)
    dbg_init(a, 1)
    dbg(a, 6)
    dbg(a, 7, True)
    srd(a, sSV, 4, 0, N*512)
    srd(a, sH, 24, H_OFF, N*128)
    srd(a, sOUT, 20, 0, R*512, mul=R*512)
    srd(a, sOVF, 24, OVF_OFF, NB*CH*4)
    a('v_and_b32 v44, 15, v41')
    a('v_lshrrev_b32 v45, 4, v41')
    a('v_lshrrev_b32 v43, 2, v44')
    a('v_lshlrev_b32 v43, 3, v43')
    a('v_and_b32 v40, 3, v44')
    a('v_add_u32 v43, v43, v40')
    a(f's_mul_i32 s{sSTG}, s3, {STG}')
    a(f's_add_u32 s{sSTG}, s{sSTG}, {L_STG}')
    a(f's_sub_u32 s{sSD}, {L_SORT}, s{sSTG}')
    a(f'v_lshl_add_u32 v{vHA}, v43, 2, s{sSTG}')
    a('v_and_b32 v40, 1, v45')
    a('v_lshl_add_u32 v43, v40, 2, v43')
    a('v_lshrrev_b32 v40, 1, v45')
    a('v_lshl_add_u32 v43, v40, 5, v43')
    a(f'v_lshl_add_u32 v{vSTGW}, v43, 2, s{sSTG}')
    a(f'v_lshl_add_u32 v{vSTGH}, v43, 1, s{sSTG}')
    a(f'v_lshl_add_u32 v{vSTGR}, v45, 5, s{sSTG}')
    a(f'v_lshl_add_u32 v{vSTGS}, v45, 4, s{sSTG}')
    emit_Q(a, vLPV, 44, 40)
    a(f'v_lshlrev_b32 v{vLPV}, 3, v{vLPV}')
    a(f'v_lshlrev_b32 v{vLPH}, 4, v45')
    a(f'v_lshl_add_u32 v{vLPR}, v44, 9, v{vLPH}')
    a(f'v_lshl_or_b32 v{vQQ}, v44, 16, v44')
    a(f'v_mov_b32 v{vMHI}, 0xffff0000')
    a(f's_mov_b32 s{sROUND}, 0')
    a('s_waitcnt lgkmcnt(0)')
    a('s_barrier')
    a(f's_lshl_b32 s{sF}, s14, 16')
    a(f's_and_b32 s{sF+1}, s14, 0xffff0000')
    a(f's_lshl_b32 s{sF+2}, s15, 16')
    a(f's_and_b32 s{sF+3}, s15, 0xffff0000')
    a('v_and_b32 v39, 3, v0')
    a('v_lshlrev_b32 v39, 2, v39')
    a('v_subrev_u32 v39, 1, v39')
    LIM, CNT = 56, 58
    a('s_waitcnt vmcnt(8)')
    a(f'v_mov_b32_dpp v{CNT}, v{W} quad_perm:[0,0,0,0] row_mask:0xf bank_mask:0xf')
    a('s_waitcnt vmcnt(7)')
    a(f'v_mov_b32_dpp v{CNT+1}, v{W+4} quad_perm:[0,0,0,0] row_mask:0xf bank_mask:0xf')
    for h in range(2):
        a(f'v_and_b32 v{CNT+h}, 0xffff, v{CNT+h}')
        a(f'v_min_u32 v{LIM+h}, {CAP}, v{CNT+h}')
        a(f'v_subrev_u32 v{CNT+h}, {CAP}, v{CNT+h}')
    a('s_cmp_ge_u32 s3, 2')
    a.br('s_cbranch_scc1 L2_nodpos')
    a('s_waitcnt vmcnt(6)')
    a('v_lshlrev_b32 v84, 16, v46')
    a(f'v_and_b32 v85, v{vMHI}, v46')
    a('v_lshlrev_b32 v86, 16, v47')
    a('v_mov_b32 v87, 0')
    a('v_lshlrev_b32 v42, 4, v0')
    a(f'ds_write_b128 v42, v[84:87] offset:{L_DPOS}')
    a.label('L2_nodpos')
    a.label('L2_round')
    stamp(a, 1, 1)
    tr(a, 4)
    A = 60; RK = 68; T = 76
    a('v_mov_b32 v40, 1')
    for i in range(8):
        a(f'v_add_u32 v41, {i & 3}, v39')
        a(f'v_cmp_lt_u32 s[{64+2*i}:{65+2*i}], v41, v{LIM + i//4}')
        a(f'v_and_b32 v{A+i}, 127, v{W+i}')
        a(f'v_lshlrev_b32 v{A+i}, 2, v{A+i}')
        a(f'v_add_u32 v{A+i}, {L_NCNT}, v{A+i}')
    for i in range(8):
        a(f's_mov_b64 exec, s[{64+2*i}:{65+2*i}]')
        a(f'ds_add_rtn_u32 v{RK+i}, v{A+i}, v40')
    a('s_mov_b64 exec, -1')
    a(f'v_max_i32 v41, v{CNT}, v{CNT+1}')
    a('v_cmp_lt_i32 vcc, 0, v41')
    a.br('s_cbranch_vccz L2_noflag')
    a(f'v_mov_b32 v41, {L_FLAG}')
    a('ds_write_b32 v41, v40')
    a.label('L2_noflag')
    a(f'v_lshrrev_b32 v41, 9, v{vLANE16}')
    a('s_lshl_b32 s%d, s3, 1' % sT0)
    a(f'v_add_u32 v42, s{sT0}, v41')
    a('v_and_b32 v42, 7, v42')
    a('v_lshlrev_b32 v42, 5, v42')
    a(f'v_xor_b32 v42, v42, v{vLANE16}')
    for i in range(7):
        if i == 6:
            a('s_cmp_ge_u32 s3, 2')
            a.br('s_cbranch_scc1 L2_resdone')
        a(f's_lshl_b32 s{sT0}, s3, 10')
        if i: a(f's_add_u32 s{sT0}, s{sT0}, {i*8192}')
        a(f's_add_u32 m0, s{sT0}, {L_RES}')
        a(f'buffer_load_dwordx4 v42, s[{sRES}:{sRES+3}], s{sT0} offen sc1 lds')
    a.label('L2_resdone')
    a('s_waitcnt lgkmcnt(0)')
    a('s_barrier')
    stamp(a, 1, 2)
    tr(a, 5)
    a(f'v_lshrrev_b32 v41, 2, v{vLANE16}')
    a(f'v_add_u32 v41, {L_NCNT}, v41')
    a('ds_read2st64_b32 v[42:43], v41 offset1:1')
    a(f'v_mov_b32 v44, {L_FLAG}')
    a('ds_read_b32 v45, v44')
    a('s_waitcnt lgkmcnt(1)')
    a('v_lshl_or_b32 v42, v43, 16, v42')
    a('v_mov_b32 v43, v42')
    for sh in ('row_shr:1', 'row_shr:2', 'row_shr:4', 'row_shr:8'):
        a(f'v_add_u32_dpp v43, v43, v43 {sh} row_mask:0xf bank_mask:0xf')
    a('v_add_u32_dpp v43, v43, v43 row_bcast:15 row_mask:0xa bank_mask:0xf')
    a('v_add_u32_dpp v43, v43, v43 row_bcast:31 row_mask:0xc bank_mask:0xf')
    a('s_waitcnt lgkmcnt(0)')
    a(f'v_readfirstlane_b32 s{sMORE}, v45')
    a(f'v_readlane_b32 s{sT0}, v43, 63')
    a('v_sub_u32 v43, v43, v42')
    a(f's_and_b32 s{sT0}, s{sT0}, 0xffff')
    a(f'v_and_b32 v{vSTLO}, 0xffff, v43')
    a(f'v_lshrrev_b32 v{vSTHI}, 16, v43')
    a(f'v_add_u32 v{vSTHI}, s{sT0}, v{vSTHI}')
    a(f'ds_write2st64_b32 v41, v{vSTLO}, v{vSTHI} offset0:2 offset1:3')
    for i in range(8):
        a(f'ds_read_b32 v{T+i}, v{A+i} offset:512')
    a(f'v_lshl_or_b32 v{vPACK}, v{vSTHI}, 16, v{vSTLO}')
    for i in range(8):
        a('s_waitcnt lgkmcnt(7)')
        a(f'v_add_lshl_u32 v{T+i}, v{T+i}, v{RK+i}, 2')
        a(f's_mov_b64 exec, s[{64+2*i}:{65+2*i}]')
        a(f'ds_write_b32 v{T+i}, v{W+i} offset:{L_SORT}')
        a('s_mov_b64 exec, -1')
    for k, (st, d) in enumerate(((vSTLO, 32), (vSTHI, 32), (vSTLO, 64), (vSTHI, 64))):
        a(f'v_add_u32 v{T+k}, {d}, v{st}')
        a(f'v_lshlrev_b32 v{T+4+k}, 2, v{T+k}')
    a(f'v_readlane_b32 s{sT2}, v{vSTHI}, {R - 64}')
    a(f'v_lshrrev_b32 v40, 4, v{vLANE16}')
    a('v_add_u32 v41, 64, v40')
    a(f'v_mov_b32 v46, {R}')
    a(f's_mov_b32 s{sNC}, 0')
    a(f's_mov_b32 s{sC64}, s3')
    a('s_waitcnt lgkmcnt(0)')
    a('s_barrier')
    stamp(a, 1, 3)
    tr(a, 2)
    dbg(a, 8)
    dbg(a, 9, True)
    for k in (2, 3, 0, 1):
        a(f'ds_read_b32 v{T+4+k}, v{T+4+k} offset:{L_SORT}')
    for k in range(4):
        a(f'v_cmp_gt_u32 s[{64+2*k}:{65+2*k}], s{sT2}, v{T+k}')
    a('v_add_u32 v42, 1, v40')
    a('v_add_u32 v43, 16, v40')
    a('v_add_u32 v44, 1, v41')
    a('v_add_u32 v45, 16, v41')
    for k in (2, 3, 0, 1):
        r = T + 4 + k
        if k in (2, 0): a(f's_waitcnt lgkmcnt({2 if k == 2 else 0})')
        a(f'v_and_b32 v{r}, 127, v{r}')
        a(f'v_cndmask_b32_e64 v{r}, v46, v{r}, s[{64+2*k}:{65+2*k}]')
        a(f'v_med3_u32 v{r}, v{r}, v{42 + 2*(k & 1)}, v{43 + 2*(k & 1)}')
        a(f'v_min_u32 v{r}, v46, v{r}')
        if k == 3: a(f'v_lshl_or_b32 v{vNX64}, v{T+7}, 16, v{T+6}')
    a(f'v_lshl_or_b32 v{vNX32}, v{T+5}, 16, v{T+4}')
    chain_loop(a, vNX64, sC64)
    a(f's_cmp_lt_u32 s{sNC}, {R}')
    a.br('s_cbranch_scc1 L2_haveitem')
    a('s_waitcnt vmcnt(0)')
    a('s_barrier')
    a.br('s_branch L2_rounddone')
    a.label('L2_haveitem')
    if opt.prio: a('s_setprio 3')
    a(f's_mov_b32 s{sN0}, s{sNC}')
    chain_start(a, sE0)
    chain_step(a, vNX64)
    chain_start(a, sE1)
    a(f's_sub_u32 s{sNN}, s{sNC}, s{sN0}')
    a(f's_mov_b32 s{sXE0}, s{sE0}')
    a(f's_mov_b32 s{sXE1}, s{sE1}')
    emit(a, next_entry_read(TP))
    emit(a, next_mask(TP+4))
    a(f's_sub_u32 s{sC64}, 7, s3')
    a(f's_mov_b32 s{sC32}, s3')
    a('s_waitcnt lgkmcnt(0)')
    emit(a, next_stage(TP+4, TP+5))
    emit(a, off_reads(0))
    emit(a, pos_load(TP+5))
    a('s_waitcnt lgkmcnt(0)')
    emit(a, off_adds())
    emit(a, h_loads())
    a('s_waitcnt vmcnt(5)')
    a('s_barrier')
    a(f'v_mov_b32 v{vRES}, 0x40000000')
    emit(a, out_stores(vRES))
    if opt.prio: a('s_setprio 0')
    if opt.prio2 == 1:
        a('s_cmp_lt_u32 s3, 4')
        a('s_cbranch_scc1 L2_noprio')
        a('s_setprio 1')
        a.label('L2_noprio', settle=False)
    tr(a, 3)
    a.br('s_branch L2_head_A')
    head(a, 'B')
    head(a, 'A')
    tail(a, 'toC')
    head(a, 'C')
    newitem(a)
    tail(a, 'toA')
    tail(a, 'fin')
    a.label('L2_rounddone')
    tr(a, 30)
    stamp(a, 1, 4)
    a(f's_cmp_eq_u32 s{sMORE}, 0')
    a.br('s_cbranch_scc1 L2_fin')
    a('s_waitcnt vmcnt(0) lgkmcnt(0)')
    a('s_barrier')
    zero_counters('b')
    srd(a, sRES, 20, 0, R*512, mul=R*512)
    a('v_lshrrev_b32 v40, 2, v0')
    a('v_lshlrev_b32 v41, 6, v40')
    a(f'buffer_load_dword v42, v41, s[{sSLOT}:{sSLOT+3}], 0 offen')
    a('v_add_u32 v41, 8192, v41')
    a(f'buffer_load_dword v43, v41, s[{sSLOT}:{sSLOT+3}], 0 offen')
    a('v_and_b32 v39, 3, v0')
    a('v_lshlrev_b32 v39, 2, v39')
    a(f's_lshl_b32 s{sT0}, s{sROUND}, 4')
    a(f's_add_u32 s{sT1}, s{sT0}, {CAP}')
    a(f's_add_u32 s{sROUND}, s{sROUND}, 1')
    a(f'v_mul_u32_u24 v40, {CH*4}, v40')
    a('v_lshl_add_u32 v40, v39, 2, v40')
    a(f's_lshl_b32 s{sT0}, s{sT0}, 2')
    a(f'v_add_u32 v40, s{sT0}, v40')
    a('s_waitcnt vmcnt(0)')
    for h in range(2):
        a(f'v_lshrrev_b32 v44, 16, v{42+h}')
        a(f'v_lshl_add_u32 v44, v44, 2, v40')
        if h: a(f'v_add_u32 v44, {128*CH*4}, v44')
        a(f'buffer_load_dwordx4 v[{W+4*h}:{W+4*h+3}], v44, s[{sOVF}:{sOVF+3}], 0 offen')
        a(f'v_and_b32 v{CNT+h}, 0xffff, v{42+h}')
        a(f'v_subrev_u32 v{CNT+h}, s{sT1}, v{CNT+h}')
        a(f'v_med3_i32 v{LIM+h}, v{CNT+h}, 0, 16')
        a(f'v_subrev_u32 v{CNT+h}, 16, v{CNT+h}')
    a('s_waitcnt vmcnt(0) lgkmcnt(0)')
    a('s_barrier')
    a.br('s_branch L2_round')
    a.label('L2_fin')
    tr_dump(a)
    if opt.ts or opt.dbg:
        a('s_waitcnt vmcnt(0)')
        stamp(a, 1, 5)
        dbg(a, 10)
        dbg(a, 11, True)
    a.label('L2_end')
    a('s_endpgm')

def build():
    src = open('gather_scatter__molecular_angular_painn__graph.s.ref').read().split('\n')
    head = []
    for ln in src:
        if not ln.startswith(';'): break
        if '@launch' in ln or 'Override launch' in ln or 'grid=ceil' in ln: continue
        head.append(ln)
    k1, k2 = 'painn_bin_kernel', 'painn_msg_kernel'
    head.append(f'; @launch kernel={k1} grid=({NB},1,1) block=(1024,1,1) lds={K1_LDS}')
    head.append(f'; @launch kernel={k2} grid=({NB},1,1) block=(512,1,1) lds={K2_LDS}')
    a = Asm()
    a.raw('.amdgcn_target "amdgcn-amd-amdhsa--gfx950"\n.text')
    gen_k1(a, k1)
    gen_k2(a, k2)
    out = '\n'.join(head) + '\n' + a.text() + '.section .rodata,"a"\n' + descriptor(k1, 128) + descriptor(k2, K2_VGPR)
    return out

if __name__ == '__main__':
    outp = sys.argv[1]
    for kv in sys.argv[2:]:
        k, val = kv.split('=')
        setattr(opt, k, type(getattr(opt, k))(eval(val)))
    open(outp, 'w').write(build())
```

```python
import sys, struct
from asmlib import Asm

N = 25000; NB = 250; R = 100; CH = 3200
H_OFF = 0; SLOT_OFF = 0x400000; OVF_OFF = 0x800000; W2F_OFF = 0xC00000; WRF_OFF = W2F_OFF + 24576
POS4_OFF = 0xC10000; TS_OFF = 0xE00000
CAP = 15

def f2u(x): return struct.unpack('<I', struct.pack('<f', x))[0]
def fl(x): return '0x%08x' % f2u(x)
def v(i, n=1): return f'v{i}' if n == 1 else f'v[{i}:{i+n-1}]'
def s(i, n=1): return f's{i}' if n == 1 else f's[{i}:{i+n-1}]'

class Opt:
    ts = False
    tr = False
    dbg = False
    nt_edges = False
    nt_out = False
    k1st = ''
    outst = ''
    ntpos = False
    thr = 24.3
    rot = 4
    prio = False
    prio2 = 0
    pk = False
    tlb = 0
    pf_sv = ''
    vsched = [8,0,0,0,8,0,0,0,8,0,0,0,0]
opt = Opt()

def srd(a, d, base, off, size, mul=None):
    if mul is not None:
        a(f's_mul_i32 s{d+2}, s2, {mul}')
        if off: a(f's_add_u32 s{d+2}, s{d+2}, {off}')
        a(f's_add_u32 s{d}, s{base}, s{d+2}')
        a(f's_addc_u32 s{d+1}, s{base+1}, 0')
    elif off:
        a(f's_add_u32 s{d}, s{base}, {off}')
        a(f's_addc_u32 s{d+1}, s{base+1}, 0')
    else:
        a(f's_mov_b32 s{d}, s{base}')
        a(f's_mov_b32 s{d+1}, s{base+1}')
    a(f's_mov_b32 s{d+2}, {size}')
    a(f's_mov_b32 s{d+3}, 0x20000')

def stamp(a, kern, idx, tmpv=None):
    if not opt.ts: return
    a.settle()
    L = f'Lts_{kern}_{idx}_{stamp.n}'; stamp.n += 1
    a(f's_cmp_lg_u32 s3, {stamp.wave}')
    a.br(f's_cbranch_scc1 {L}')
    a('s_memrealtime s[92:93]')
    a('s_mov_b64 s[94:95], exec')
    a('s_mov_b64 exec, 1')
    a('s_waitcnt lgkmcnt(0)')
    t = stamp.tmp
    a(f'v_mov_b32 v{t}, s92')
    a(f'v_mov_b32 v{t+1}, s93')
    a(f'v_mov_b32 v{t+2}, 0')
    a(f'buffer_store_dwordx2 v[{t}:{t+1}], v{t+2}, s[96:99], 0 offen offset:{idx*8}')
    a('s_mov_b64 exec, s[94:95]')
    a.label(L)
stamp.n = 0; stamp.wave = 0; stamp.tmp = 0

def stamp_init(a, kern):
    if not opt.ts: return
    a(f's_lshl_b32 s98, s2, 7')
    a(f's_add_u32 s98, s98, {TS_OFF + kern*256*128}')
    a('s_add_u32 s96, s24, s98')
    a('s_addc_u32 s97, s25, 0')
    a('s_mov_b32 s98, 128')
    a('s_mov_b32 s99, 0x20000')

def dbg_init(a, kern):
    if not opt.dbg: return
    a('s_load_dwordx2 s[96:97], s[0:1], 72')
    a('s_waitcnt lgkmcnt(0)')
    if kern:
        a('s_sub_u32 s96, s96, 512')
        a('s_subb_u32 s97, s97, 0')
    a('s_mov_b32 s98, 64')
    a('s_mov_b32 s99, 0x20000')

def dbg(a, idx, allwg=False):
    if not opt.dbg: return
    a.settle()
    L = f'Ldbg_{stamp.n}'; stamp.n += 1
    a('s_cmp_lg_u32 s3, 0')
    a.br(f's_cbranch_scc1 {L}')
    if not allwg:
        a('s_cmp_lg_u32 s2, 0')
        a.br(f's_cbranch_scc1 {L}')
    a('s_memrealtime s[92:93]')
    a('s_mov_b64 s[94:95], exec')
    a('s_mov_b64 exec, 1')
    a('s_waitcnt lgkmcnt(0)')
    t = stamp.tmp
    a(f'v_mov_b32 v{t}, s92')
    a(f'v_mov_b32 v{t+2}, 0')
    a(f'buffer_atomic_umax v{t}, v{t+2}, s[96:99], 0 offen offset:{idx*4}')
    a('s_mov_b64 exec, s[94:95]')
    a.label(L)

TR_OFF = 0x1000000
def tr_init(a):
    if not opt.tr: return
    a('s_lshl_b32 s98, s2, 3')
    a('s_add_u32 s98, s98, s3')
    a('s_lshl_b32 s98, s98, 10')
    a(f's_add_u32 s98, s98, {TR_OFF}')
    a('s_add_u32 s96, s24, s98')
    a('s_addc_u32 s97, s25, 0')
    a('s_mov_b32 s98, 1024')
    a('s_mov_b32 s99, 0x20000')
    a('s_mov_b32 s27, 0')
    a('v_mov_b32 v11, 0')

def tr(a, tag):
    if not opt.tr: return
    a('s_memtime s[92:93]')
    a('s_mov_b32 m0, s27')
    a('s_add_u32 s27, s27, 1')
    a('s_waitcnt lgkmcnt(0)')
    a('s_lshl_b32 s92, s92, 6')
    a(f's_or_b32 s92, s92, {tag}')
    a('v_writelane_b32 v11, s92, m0')

def tr_dump(a):
    if not opt.tr: return
    a('v_lshrrev_b32 v12, 2, v1')
    a('buffer_store_dword v11, v12, s[96:99], 0 offen')

def header(a, name):
    a.raw(f'.globl {name}\n.p2align 8\n.type {name},@function\n{name}:')
    a.hist = []

def descriptor(name, vgpr, sgpr=102):
    acc = (vgpr + 3) // 4 * 4
    return f'''.p2align 6
.amdhsa_kernel {name}
  .amdhsa_next_free_vgpr {vgpr}
  .amdhsa_next_free_sgpr {sgpr}
  .amdhsa_accum_offset {acc}
  .amdhsa_group_segment_fixed_size 0
  .amdhsa_kernarg_size 88
  .amdhsa_user_sgpr_count 2
  .amdhsa_user_sgpr_kernarg_segment_ptr 1
  .amdhsa_system_sgpr_workgroup_id_x 1
  .amdhsa_float_denorm_mode_32 3
.end_amdhsa_kernel
'''

def emit_Q(a, dst, q, t):
    a(f'v_lshrrev_b32 v{dst}, 2, v{q}')
    a(f'v_lshlrev_b32 v{dst}, 1, v{dst}')
    a(f'v_and_b32 v{t}, 1, v{q}')
    a(f'v_add_u32 v{dst}, v{dst}, v{t}')
    a(f'v_and_b32 v{t}, 2, v{q}')
    a(f'v_lshl_add_u32 v{dst}, v{t}, 2, v{dst}')

K1_POS = 0; K1_CNT = 150528; K1_OVB = 151808; K1_W1 = 152832; K1_LDS = 161024

def gen_k1(a, name):
    header(a, name)
    stamp.tmp = 60; stamp.wave = 0
    a('s_cmp_ge_u32 s2, %d' % NB)
    a('s_cbranch_scc1 L1_end')
    a('s_load_dwordx8 s[4:11], s[0:1], 0')
    a('s_load_dwordx8 s[12:19], s[0:1], 32')
    a('s_load_dwordx2 s[24:25], s[0:1], 80')
    a('v_lshrrev_b32 v1, 6, v0')
    a('v_and_b32 v2, 63, v0')
    a('v_readfirstlane_b32 s3, v1')
    a('v_lshlrev_b32 v3, 4, v2')
    a('v_mov_b32 v40, 0')
    a('s_cmp_ge_u32 s3, 5')
    a.br('s_cbranch_scc1 L1_nozero')
    a('v_lshlrev_b32 v41, 2, v0')
    a(f'v_add_u32 v41, {K1_CNT}, v41')
    a('ds_write_b32 v41, v40')
    a.label('L1_nozero')
    a('s_waitcnt lgkmcnt(0)')
    stamp_init(a, 0)
    stamp(a, 0, 0)
    dbg_init(a, 0)
    dbg(a, 0)
    dbg(a, 1, True)
    a('s_cmp_ge_u32 s3, 13')
    a.br('s_cbranch_scc1 L1_hpath')
    srd(a, 28, 8, 0, CH*4, mul=CH*4)
    srd(a, 32, 10, 0, CH*4, mul=CH*4)
    srd(a, 36, 6, 0, N*6)
    a('v_lshlrev_b32 v1, 4, v0')
    nt = ' nt' if opt.nt_edges else ''
    a(f'buffer_load_dwordx4 v[4:7], v1, s[28:31], 0 offen{nt}')
    a(f'buffer_load_dwordx4 v[8:11], v1, s[32:35], 0 offen{nt}')
    a('s_lshr_b32 s40, s2, 3')
    a(f's_mul_i32 s40, s40, {opt.rot}')
    a('s_add_u32 s40, s40, s3')
    for i in range(12):
        if i == 11:
            a('s_cmp_ge_u32 s3, 4')
            a.br('s_cbranch_scc1 L1_dmadone')
        a('s_sub_u32 s41, s40, 147')
        a('s_cmp_ge_u32 s40, 147')
        a('s_cselect_b32 s40, s41, s40')
        a('s_lshl_b32 s41, s40, 10')
        a('s_mov_b32 m0, s41')
        a('s_add_u32 s40, s40, 13')
        a('buffer_load_dwordx4 v3, s[36:39], s41 offen lds')
    a.label('L1_dmadone')
    a('s_mov_b64 s[42:43], -1')
    a('s_cmp_eq_u32 s3, 12')
    a('s_cselect_b32 s43, 0, s43')
    a(f's_mov_b32 s44, {fl(opt.thr)}')
    a(f's_mov_b32 s45, -100')
    a(f's_mov_b32 s46, {K1_CNT}')
    a('v_mov_b32 v59, 0xffff0000')
    stamp(a, 0, 1)
    a('s_waitcnt vmcnt(0) lgkmcnt(0)')
    a('s_barrier')
    stamp(a, 0, 2)
    dbg(a, 2)
    dbg(a, 3, True)
    for i in range(4):
        a(f'v_mul_u32_u24 v{12+i}, 6, v{4+i}')
        a(f'v_mul_u32_u24 v{16+i}, 6, v{8+i}')
        a(f'v_and_b32 v36, -4, v{12+i}')
        a(f'v_and_b32 v37, -4, v{16+i}')
        a(f'ds_read2_b32 v[{20+2*i}:{21+2*i}], v36 offset1:1')
        a(f'ds_read2_b32 v[{28+2*i}:{29+2*i}], v37 offset1:1')
    for i in range(4):
        a(f'v_mul_u32_u24 v36, 5243, v{8+i}')
        a(f'v_lshrrev_b32 v36, 19, v36')
        a(f'v_mad_i32_i24 v37, v36, s45, v{8+i}')
        a(f'v_lshl_or_b32 v{48+i}, v{4+i}, 9, v37')
        a(f'v_lshlrev_b32 v{44+i}, 2, v36')
        a(f'v_add_u32 v{52+i}, {K1_CNT}, v{44+i}')
    a('v_mov_b32 v56, 1')
    for i in range(4):
        p, q = 20+2*i, 28+2*i
        a(f's_waitcnt lgkmcnt({6-2*i})')
        a(f'v_alignbyte_b32 v36, v{p+1}, v{p}, v{12+i}')
        a(f'v_alignbyte_b32 v37, v{p+1}, v{p+1}, v{12+i}')
        a(f'v_alignbyte_b32 v38, v{q+1}, v{q}, v{16+i}')
        a(f'v_alignbyte_b32 v39, v{q+1}, v{q+1}, v{16+i}')
        a(f'v_lshlrev_b32 v{p}, 16, v36')
        a(f'v_lshlrev_b32 v{q}, 16, v38')
        a(f'v_and_b32 v36, v59, v36')
        a(f'v_and_b32 v38, v59, v38')
        a(f'v_lshlrev_b32 v37, 16, v37')
        a(f'v_lshlrev_b32 v39, 16, v39')
        a(f'v_sub_f32 v{p}, v{p}, v{q}')
        a(f'v_sub_f32 v36, v36, v38')
        a(f'v_sub_f32 v37, v37, v39')
        a(f'v_mul_f32 v{p}, v{p}, v{p}')
        a(f'v_fmac_f32 v{p}, v36, v36')
        a(f'v_fmac_f32 v{p}, v37, v37')
        a(f'v_cmp_ngt_f32 s[{64+2*i}:{65+2*i}], v{p}, s44')
        a(f's_and_b64 s[{64+2*i}:{65+2*i}], s[{64+2*i}:{65+2*i}], s[42:43]')
    for i in range(4):
        a(f's_mov_b64 exec, s[{64+2*i}:{65+2*i}]')
        a(f'ds_add_rtn_u32 v{12+i}, v{52+i}, v56')
    a('s_mov_b64 exec, -1')
    a('s_waitcnt lgkmcnt(0)')
    a('s_barrier')
    stamp(a, 0, 3)
    for i in range(4):
        a(f'v_cmp_gt_u32 s[{72+2*i}:{73+2*i}], {CAP}, v{12+i}')
        a(f'v_lshlrev_b32 v{16+i}, 4, v{44+i}')
        a(f'v_lshl_add_u32 v{16+i}, v{12+i}, 2, v{16+i}')
    for i in range(4):
        a(f's_and_b64 exec, s[{72+2*i}:{73+2*i}], s[{64+2*i}:{65+2*i}]')
        a(f'ds_write_b32 v{16+i}, v{48+i} offset:4')
        a(f's_andn2_b64 s[{64+2*i}:{65+2*i}], s[{64+2*i}:{65+2*i}], s[{72+2*i}:{73+2*i}]')
    a('s_mov_b64 exec, -1')
    a('s_cmp_ge_u32 s3, 4')
    a.br('s_cbranch_scc1 L1_nohdr')
    a('v_lshlrev_b32 v20, 2, v0')
    a(f'v_add_u32 v21, {K1_CNT}, v20')
    a('ds_read_b32 v22, v21')
    a('v_mov_b32 v23, 0')
    a('v_lshlrev_b32 v24, 6, v0')
    a('s_waitcnt lgkmcnt(0)')
    a(f'v_cmp_lt_u32 vcc, {CAP}, v22')
    a('s_and_saveexec_b64 s[80:81], vcc')
    a.br('s_cbranch_execz L1_hdr_noovf')
    a(f'v_subrev_u32 v25, {CAP}, v22')
    a(f'v_mov_b32 v26, {K1_CNT + 1024}')
    a('ds_add_rtn_u32 v23, v26, v25')
    a(f'v_add_u32 v21, {K1_OVB}, v20')
    a('s_waitcnt lgkmcnt(0)')
    a('ds_write_b32 v21, v23')
    a.label('L1_hdr_noovf')
    a('s_mov_b64 exec, s[80:81]')
    a('v_lshl_or_b32 v22, v23, 16, v22')
    a('ds_write_b32 v24, v22')
    a.label('L1_nohdr')
    a('s_waitcnt lgkmcnt(0)')
    a('s_barrier')
    a('s_or_b64 s[72:73], s[64:65], s[66:67]')
    a('s_or_b64 s[74:75], s[68:69], s[70:71]')
    a('s_or_b64 s[72:73], s[72:73], s[74:75]')
    a.br('s_cbranch_scc0 L1_dump')
    srd(a, 28, 24, OVF_OFF, CH*4, mul=CH*4)
    for i in range(4):
        a(f's_mov_b64 exec, s[{64+2*i}:{65+2*i}]')
        a.br(f's_cbranch_execz L1_ovf{i}')
        a(f'v_add_u32 v20, {K1_OVB}, v{44+i}')
        a('ds_read_b32 v21, v20')
        a('s_waitcnt lgkmcnt(0)')
        a(f'v_add_u32 v21, v21, v{12+i}')
        a(f'v_subrev_u32 v21, {CAP}, v21')
        a('v_lshlrev_b32 v21, 2, v21')
        a(f'buffer_store_dword v{48+i}, v21, s[28:31], 0 offen')
        a.label(f'L1_ovf{i}')
    a('s_mov_b64 exec, -1')
    a.br('s_branch L1_dump')

    a.label('L1_hpath')
    if opt.tlb:
        a('s_load_dwordx2 s[20:21], s[0:1], 64')
        a(f'v_lshlrev_b32 v100, {opt.tlb}, v2')
        srd(a, 48, 24, 0, 0xE00000)
        srd(a, 52, 4, 0, N*512)
        a('buffer_load_dword v101, v100, s[48:51], 0 offen')
        a('buffer_load_dword v102, v100, s[52:55], 0 offen')
        a('s_waitcnt lgkmcnt(0)')
        srd(a, 56, 20, 0, N*512)
        a('buffer_load_dword v103, v100, s[56:59], 0 offen')
    a('s_sub_u32 s40, s3, 13')
    srd(a, 28, 14, 0, 8192)
    srd(a, 32, 4, 0, R*512, mul=R*512)
    srd(a, 36, 24, H_OFF, R*128, mul=R*128)
    for i in range(8):
        a(f's_mov_b32 m0, {K1_W1 + i*1024}')
        a(f's_mov_b32 s41, {i*1024}')
        a('buffer_load_dwordx4 v3, s[28:31], s41 offen lds')
    a('v_and_b32 v4, 15, v2')
    a('v_lshrrev_b32 v5, 4, v2')
    a('s_lshl_b32 s41, s40, 4')
    a('v_add_u32 v6, s41, v4')
    a('v_lshlrev_b32 v7, 4, v5')
    a('v_lshl_add_u32 v8, v6, 9, v7')
    a('v_lshl_add_u32 v9, v6, 7, v7')
    a('buffer_load_dwordx4 v[12:15], v8, s[32:35], 0 offen')
    a('buffer_load_dwordx4 v[16:19], v8, s[32:35], 0 offen offset:64')
    a(f'v_add_u32 v8, {48*512}, v8')
    a('buffer_load_dwordx4 v[20:23], v8, s[32:35], 0 offen')
    a('buffer_load_dwordx4 v[24:27], v8, s[32:35], 0 offen offset:64')
    a(f'v_add_u32 v8, {48*512}, v8')
    a('buffer_load_dwordx4 v[28:31], v8, s[32:35], 0 offen')
    a('buffer_load_dwordx4 v[32:35], v8, s[32:35], 0 offen offset:64')
    a('v_lshrrev_b32 v10, 2, v4')
    a('v_lshl_add_u32 v10, v5, 3, v10')
    a('v_and_b32 v11, 3, v4')
    a('v_lshlrev_b32 v11, 3, v11')
    a('v_lshl_add_u32 v10, v10, 7, v11')
    a(f'v_add_u32 v10, {K1_W1}, v10')
    a('s_waitcnt vmcnt(6)')
    FR = 64
    for ht in range(4):
        for ks in range(2):
            r = FR + (ht*2+ks)*4
            for hf in range(2):
                a(f'ds_read_b64_tr_b16 v[{r+2*hf}:{r+2*hf+1}], v10 offset:{ks*4096 + ht*32 + hf*512}')
    a('s_waitcnt lgkmcnt(0)')
    D = 96; O = 112
    for t in range(3):
        if t == 2:
            a('s_cmp_lg_u32 s40, 0')
            a.br('s_cbranch_scc1 L1_hdone')
        S = 12 + 8*t
        a('s_waitcnt vmcnt(4)')
        for ht in range(4):
            a(f'v_mfma_f32_16x16x32_bf16 v[{D+4*ht}:{D+4*ht+3}], v[{FR+ht*8}:{FR+ht*8+3}], v[{S}:{S+3}], 0')
        for ht in range(4):
            a(f'v_mfma_f32_16x16x32_bf16 v[{D+4*ht}:{D+4*ht+3}], v[{FR+ht*8+4}:{FR+ht*8+7}], v[{S+4}:{S+7}], v[{D+4*ht}:{D+4*ht+3}]')
        for i in range(16):
            a(f'v_cvt_pk_bf16_f32 v{D+i}, 0, v{D+i}')
        T = 120
        for grp in range(4):
            for i in range(4):
                a(f'v_mul_f32 v{T+i}, {fl(-1.4426950408889634)}, v{D+4*grp+i}')
            for i in range(4):
                a(f'v_exp_f32 v{T+i}, v{T+i}')
            for i in range(4):
                a(f'v_add_f32 v{T+i}, 1.0, v{T+i}')
            for i in range(4):
                a(f'v_rcp_f32 v{T+i}, v{T+i}')
            for i in range(4):
                a(f'v_mul_f32 v{T+i}, v{T+i}, v{D+4*grp+i}')
            a(f'v_cvt_pk_bf16_f32 v{O+2*grp}, v{T}, v{T+1}')
            a(f'v_cvt_pk_bf16_f32 v{O+2*grp+1}, v{T+2}, v{T+3}')
        a(f'buffer_store_dwordx4 v[{O}:{O+3}], v9, s[36:39], 0 offen ' + opt.k1st)
        a(f'buffer_store_dwordx4 v[{O+4}:{O+7}], v9, s[36:39], 0 offen offset:64 ' + opt.k1st)
        a(f'v_add_u32 v9, {48*128}, v9')
    a.label('L1_hdone')
    a('s_cmp_lg_u32 s40, 2')
    a.br('s_cbranch_scc1 L1_nofrag')
    a('s_cmp_ge_u32 s2, 27')
    a.br('s_cbranch_scc1 L1_nofrag')
    emit_Q(a, 12, 4, 13)
    a('v_lshlrev_b32 v12, 3, v12')
    srd(a, 32, 24, W2F_OFF, 24576 + 1536)
    a('s_cmp_ge_u32 s2, 24')
    a.br('s_cbranch_scc1 L1_wrfrag')
    srd(a, 28, 16, 0, 64*192*2)
    a('s_lshr_b32 s41, s2, 3')
    a('s_lshl_b32 s41, s41, 7')
    a('s_bfe_u32 s47, s2, 0x20001')
    a('s_lshl_b32 s47, s47, 1')
    a('s_add_u32 s41, s41, s47')
    a('s_and_b32 s47, s2, 1')
    a(f's_mul_i32 s47, s47, {32*384}')
    a('s_add_u32 s41, s41, s47')
    a(f'v_mul_u32_u24 v13, {4*384}, v5')
    a('v_add3_u32 v12, v12, v13, s41')
    a(f'v_add_u32 v13, {16*384}, v12')
    for jj in range(8):
        a(f'buffer_load_ushort v{16+jj}, v{12 if jj < 4 else 13}, s[28:31], 0 offen offset:{(jj&3)*384}')
    a('s_lshl_b32 s41, s2, 10')
    a('v_add_u32 v14, s41, v3')
    a('s_waitcnt vmcnt(0)')
    for i in range(4):
        a(f'v_lshl_or_b32 v{16+i}, v{17+2*i}, 16, v{16+2*i}')
    a('buffer_store_dwordx4 v[16:19], v14, s[32:35], 0 offen')
    a.br('s_branch L1_nofrag')
    a.label('L1_wrfrag')
    srd(a, 28, 18, 0, 4*192*2)
    a('s_sub_u32 s41, s2, 24')
    a('s_lshl_b32 s47, s41, 7')
    a('v_lshlrev_b32 v13, 1, v5')
    a('v_add3_u32 v12, v12, v13, s47')
    for k in range(4):
        a(f'buffer_load_ushort v{16+k}, v12, s[28:31], 0 offen offset:{k*384}')
    a('s_lshl_b32 s41, s41, 9')
    a('s_add_u32 s41, s41, 24576')
    a('v_lshlrev_b32 v14, 3, v2')
    a('v_add_u32 v14, s41, v14')
    a('s_waitcnt vmcnt(0)')
    for i in range(2):
        a(f'v_lshl_or_b32 v{16+i}, v{17+2*i}, 16, v{16+2*i}')
    a('buffer_store_dwordx2 v[16:17], v14, s[32:35], 0 offen')
    a.label('L1_nofrag')
    srd(a, 28, 24, POS4_OFF, R*8, mul=R*8)
    a('s_lshl_b32 s41, s40, 6')
    a('v_add_u32 v12, s41, v2')
    a(f's_mul_i32 s41, s2, {R}')
    a('v_add_u32 v13, s41, v12')
    a('v_mul_u32_u24 v13, 6, v13')
    a('v_and_b32 v14, -4, v13')
    a('v_lshlrev_b32 v12, 3, v12')
    a('s_waitcnt lgkmcnt(0)')
    a('s_barrier')
    a('ds_read2_b32 v[16:17], v14 offset1:1')
    a('s_waitcnt lgkmcnt(0)')
    a('v_alignbyte_b32 v18, v17, v16, v13')
    a('v_alignbyte_b32 v19, v17, v17, v13')
    a('v_and_b32 v19, 0xffff, v19')
    a('buffer_store_dwordx2 v[18:19], v12, s[28:31], 0 offen')
    if opt.pf_sv:
        srd(a, 32, 4, 0, R*512, mul=R*512)
        a('s_lshl_b32 s41, s40, 10')
        a('v_add_u32 v20, s41, v3')
        for i in range(17):
            a(f'buffer_load_dwordx4 v[100:103], v20, s[32:35], 0 offen {opt.pf_sv if opt.pf_sv != "plain" else ""}')
            a('v_add_u32 v20, 3072, v20')
    a('s_barrier')
    a('s_barrier')
    a.label('L1_dump')
    stamp(a, 0, 4)
    srd(a, 28, 24, SLOT_OFF, NB*16384)
    a('v_lshlrev_b32 v4, 4, v0')
    a('ds_read_b128 v[8:11], v4')
    a('v_lshrrev_b32 v5, 2, v0')
    a('v_lshlrev_b32 v5, 14, v5')
    a('v_and_b32 v6, 3, v0')
    a('v_lshl_add_u32 v5, v6, 4, v5')
    a('s_lshl_b32 s41, s2, 6')
    a('v_add_u32 v5, s41, v5')
    a('s_waitcnt lgkmcnt(0)')
    a('buffer_store_dwordx4 v[8:11], v5, s[28:31], 0 offen ' + opt.k1st)
    if opt.ts or opt.dbg:
        a('s_waitcnt vmcnt(0)')
        stamp(a, 0, 5)
        dbg(a, 4)
        dbg(a, 5, True)
    a.label('L1_end')
    a('s_endpgm')

L_W2F = 0; L_NCNT = 24576; L_START = L_NCNT + 512; L_DPOS = 25600; L_FLAG = 27648; L_STG = 27680
STG = 768
L_SORT = L_STG + 8*STG; L_RES = 50176; K2_LDS = L_RES + 116*512
assert L_SORT + 4*(4000+64) <= L_RES
S_VOFF, S_DL, S_R = 0, 256, 384

vLANE16, vSTGW, vSTGH, vSTGR, vSTGS, vLPV, vLPH, vLPR, vQQ, vMHI, vTR, vPACK, vNX64, vHA, vNQ, vRES, vE, vNX32, vM = range(1, 20)
PS = 20
RBF = 22
WR = 24
HOFF = 30
SEL = 32; SR = 36
V = 48
H = 96
ACC = 112
D3 = 176
D2 = 208
WS = 224
VOFF = 240
TP = 248
vRL = 254
vSTLO, vSTHI = ACC, ACC + 1
K2_VGPR = 256
sSV, sH, sP4, sOUT, sRES, sSLOT, sW2F, sOVF = 28, 32, 36, 40, 44, 48, 52, 80
sF = 56
sNC, sC64, sC32, sN0, sE0, sE1, sMORE, sROUND, sT0, sT1, sT2, sNN = 60, 61, 62, 63, 84, 85, 87, 88, 89, 90, 91, 26
sEXQ = 22
sXN0, sXNN, sXE0, sXE1, sXCONT, sLAST, sSTG, sSD, sRB = 68, 69, 70, 71, 72, 73, 6, 7, 8

def chain_step(a, tab):
    a(f'v_readlane_b32 s{sT0}, v{tab}, s{sNC}')
    a(f's_lshr_b32 s{sT1}, s{sNC}, 2')
    a(f's_and_b32 s{sT1}, s{sT1}, 16')
    a(f's_lshr_b32 s{sT0}, s{sT0}, s{sT1}')
    a(f's_and_b32 s{sNC}, s{sT0}, 0xffff')

def chain_start(a, dst):
    a(f'v_readlane_b32 s{sT0}, v{vPACK}, s{sNC}')
    a(f's_lshr_b32 s{sT1}, s{sNC}, 2')
    a(f's_and_b32 s{sT1}, s{sT1}, 16')
    a(f's_lshr_b32 s{sT0}, s{sT0}, s{sT1}')
    a(f's_and_b32 s{dst}, s{sT0}, 0xffff')

loop_n = [0]
def chain_loop(a, tab, cnt):
    n = loop_n[0]; loop_n[0] += 1
    a(f's_cmp_eq_u32 s{cnt}, 0')
    a(f's_cbranch_scc1 L2_walkdone{n}')
    a.label(f'L2_walk{n}', settle=False)
    chain_step(a, tab)
    a(f's_sub_u32 s{cnt}, s{cnt}, 1')
    a(f's_cmp_lg_u32 s{cnt}, 0')
    a(f's_cbranch_scc1 L2_walk{n}')
    a.label(f'L2_walkdone{n}', settle=False)

def Rn(d, x): return f'v_cvt_pk_bf16_f32 v{d}, 0, v{x}'

def weave(main, fill):
    out = []; n = len(main); m = len(fill); k = 0
    for i, x in enumerate(main):
        out.append(x)
        want = (i + 1) * m // n
        out += fill[k:want]; k = want
    return out + fill[k:]

def emit(a, lst):
    for x in lst: a(x)

def next_entry_read(t):
    return [f's_lshl_b32 s{sT0}, s{sXE0}, 2',
            f's_add_u32 s{sT0}, s{sT0}, s{sSD}',
            f'v_add_u32 v{t}, s{sT0}, v{vSTGW}',
            f'ds_read_b32 v{vE}, v{t}']
def next_mask(t):
    return [f's_sub_u32 s{sT0}, s{sXE1}, s{sXE0}',
            f's_lshl_b32 s{sT0}, s{sT0}, 2',
            f's_add_u32 s{sT0}, s{sT0}, s{sSTG}',
            f'v_subrev_u32 v{t}, s{sT0}, v{vSTGW}',
            f'v_ashrrev_i32 v{t}, 31, v{t}']
def next_stage(t, u):
    return [f'v_bitop3_b32 v{vE}, v{vE}, v{t}, v{t} bitop3:0xf3',
            f'v_and_b32 v{t}, 0x7ffffe00, v{vE}',
            f'v_lshrrev_b32 v{u}, 6, v{vE}',
            f'ds_write_b32 v{vSTGW}, v{t}',
            f'v_and_b32 v{u}, -8, v{u}']
def off_reads(u):
    return [f'ds_read_b32 v{HOFF}, v{vHA} offset:{128*u}',
            f'ds_read_b32 v{HOFF+1}, v{vHA} offset:{128*u + 16}',
            f'ds_read_b128 v[{VOFF}:{VOFF+3}], v{vSTGR} offset:{128*u}',
            f'ds_read_b128 v[{VOFF+4}:{VOFF+7}], v{vSTGR} offset:{128*u + 16}']
def off_adds():
    return ([f'v_lshrrev_b32 v{HOFF+et}, 2, v{HOFF+et}' for et in range(2)] +
            [f'v_add_u32 v{HOFF+et}, v{HOFF+et}, v{vLPH}' for et in range(2)] +
            [f'v_add_u32 v{VOFF+jj}, v{VOFF+jj}, v{vLPV}' for jj in range(8)])
def pos_load(u): return [f'buffer_load_dwordx2 v[{PS}:{PS+1}], v{u}, s[{sP4}:{sP4+3}], 0 offen']
def h_loads():
    return [f'buffer_load_dwordx4 v[{H+et*8+ks*4}:{H+et*8+ks*4+3}], v{HOFF+et}, s[{sH}:{sH+3}], 0 offen offset:{ks*64}'
            for et in range(2) for ks in range(2)]
def v_loads(j):
    return [f'buffer_load_dwordx2 v[{V+j*16+jj*2}:{V+j*16+jj*2+1}], v{VOFF+jj}, s[{sSV}:{sSV+3}], 0 offen offset:{128*(j+1)}'
            for jj in range(8)]
def out_stores(addr):
    return [f'buffer_store_dwordx4 v[{D3+(c*2+hh)*4}:{D3+(c*2+hh)*4+3}], v{addr}, s[{sOUT}:{sOUT+3}], 0 offen offset:{c*128+hh*64} {opt.outst}'
            for c in range(4) for hh in range(2)]
def wread(step):
    p = [0, 2, 1][step // 4]; ct = step % 4
    return [f'ds_read_b128 v[{WS+(step%2)*8+ks*4}:{WS+(step%2)*8+ks*4+3}], v{vLANE16} offset:{L_W2F + ((p*4+ct)*2+ks)*1024}' for ks in range(2)]
def wf(p, u):
    return [f'v_mfma_f32_16x16x4bf16_1k v[{D3+16*et}:{D3+16*et+15}], v[{RBF}:{RBF+1}], v[{WR+2*p}:{WR+2*p+1}], 0 cbsz:2 abid:{2*u+et}' for et in range(2)]

def T(a, n): tr(a, n)

def l2_mfma(step):
    d = D2 + (step % 2)*8; w = WS + (step % 2)*8; o = []
    for ks in range(2):
        for et in range(2):
            c = '0' if ks == 0 else f'v[{d+4*et}:{d+4*et+3}]'
            o.append(f'v_mfma_f32_16x16x32_bf16 v[{d+4*et}:{d+4*et+3}], v[{H+et*8+ks*4}:{H+et*8+ks*4+3}], v[{w+4*ks}:{w+4*ks+3}], {c}')
    return o
def l2_mul(step):
    part = step // 4; ct = step % 4; d = D2 + (step % 2)*8; o = []
    for et in range(2):
        for r in range(4):
            m = D3 + et*16 + ct*4 + r
            o.append(f'v_mul_f32 v{m if part == 2 else d+4*et+r}, v{d+4*et+r}, v{m}')
    return o
def l2_cvt(step):
    if step // 4 == 2: return []
    d = D2 + (step % 2)*8
    return [f'v_cvt_pk_bf16_f32 v{d+i}, v{d+2*i}, v{d+2*i+1}' for i in range(4)]
def l2_seg(step):
    part = step // 4; ct = step % 4; d = D2 + (step % 2)*8
    if part == 2: return []
    if part == 0:
        acc = ACC + ct*4
        return [f'v_mfma_f32_16x16x32_bf16 v[{acc}:{acc+3}], v[{d}:{d+3}], v[{SEL}:{SEL+3}], v[{acc}:{acc+3}]']
    return [f'v_mfma_f32_16x16x32_bf16 v[{ACC+(1+j)*16+ct*4}:{ACC+(1+j)*16+ct*4+3}], v[{d}:{d+3}], v[{SR+4*j}:{SR+4*j+3}], v[{ACC+(1+j)*16+ct*4}:{ACC+(1+j)*16+ct*4+3}]' for j in range(3)]
def sel_reads(u):
    return ([f'ds_read_b128 v[{SEL}:{SEL+3}], v{vSTGS} offset:{S_DL + 64*u}'] +
            [f'ds_read_b128 v[{SR+4*j}:{SR+4*j+3}], v{vSTGS} offset:{S_R + 128*j + 64*u}' for j in range(3)])

def head(a, tag):
    first = tag == 'A'; u = 1 if tag == 'C' else 0
    if u == 0: a.label(f'L2_head_{tag}')
    vl = v_loads(0) + v_loads(1) + v_loads(2)
    assert sum(opt.vsched) == 24
    def vissue(i):
        n = opt.vsched[i]; emit(a, vl[:n]); del vl[:n]
    if u == 0:
        X = D2
        DP = TP
        a(f'v_and_b32 v{X}, 127, v{vE}')
        a(f'v_lshlrev_b32 v{X+1}, 4, v{X}')
        a(f'ds_read_b128 v[{DP}:{DP+3}], v{X+1} offset:{L_DPOS}')
        a(f'ds_write_b16 v{vSTGH}, v{X} offset:{S_DL}')
        if first:
            a(f's_lshl_b32 s{sT0}, s{sN0}, 9')
            a(f'v_add_u32 v{vRES}, s{sT0}, v{vLPR}')
            a(f's_mul_i32 s{sT0}, s{sN0}, 0x10001')
            a(f'v_add_u32 v{vNQ}, s{sT0}, v{vQQ}')
            a(f's_bfm_b32 s{sT1}, s{sNN}, 0')
            a(f's_lshl_b32 s{sT2}, s{sT1}, 16')
            a(f's_or_b32 s{sEXQ}, s{sT1}, s{sT2}')
            a(f's_mov_b32 s{sEXQ+1}, s{sEXQ}')
        else:
            a(f's_lshl_b32 s{sT0}, s{sN0}, 9')
            a(f'v_add_u32 v{vRES}, s{sT0}, v{vLPR}')
        if first:
            a(f'v_and_b32 v{X+3}, 0xff, v{vNQ}')
            a(f'v_and_b32 v{X+4}, 7, v{vNQ}')
            a(f'v_lshlrev_b32 v{X+4}, 5, v{X+4}')
            a(f'v_xor_b32 v{X+4}, v{X+4}, v{vLPH}')
            a(f'v_lshl_add_u32 v{X+3}, v{X+3}, 9, v{X+4}')
            a(f'v_add_u32 v{X+3}, {L_RES}, v{X+3}')
            for i in range(8):
                if i: a(f'v_xor_b32 v{X+4+(i&1)}, {i*64}, v{X+3}')
                a(f'ds_read_b128 v[{D3+4*i}:{D3+4*i+3}], v{X+3 if i == 0 else X+4+(i&1)}')
        a(f'v_ashrrev_i32 v{vM}, 31, v{vE}')
        T(a, 9)
        a('s_waitcnt vmcnt(12)')
        T(a, 10)
        rx, ry, rz, t0, t1, t2, dd, inv = range(X, X+8)
        g0 = X + 8
        a(f'v_lshlrev_b32 v{rx}, 16, v{PS}')
        a(f'v_and_b32 v{ry}, v{vMHI}, v{PS}')
        a(f'v_lshlrev_b32 v{rz}, 16, v{PS+1}')
        a(f's_waitcnt lgkmcnt({9 if first else 1})')
        for i in range(3): a(f'v_sub_f32 v{rx+i}, v{rx+i}, v{DP+i}')
        sc = []
        sc += [Rn(rx+i, rx+i) for i in range(3)]
        sc += [f'v_mul_f32 v{t0+i}, v{rx+i}, v{rx+i}' for i in range(3)]
        sc += [Rn(t0+i, t0+i) for i in range(3)]
        sc += [f'v_add_f32 v{t0}, v{t0}, v{t1}', f'v_add_f32 v{t0}, v{t0}, v{t2}', Rn(t0, t0),
               f'v_add_f32 v{t0}, {fl(1e-8)}, v{t0}', Rn(t0, t0), f'v_sqrt_f32 v{t0}, v{t0}', Rn(dd, t0), f'v_rcp_f32 v{inv}, v{dd}']
        sc += [f'v_mul_f32 v{g0+4}, {fl(3.141592653589793)}, v{dd}']
        sc += [f'v_mul_f32 v{g0+k}, s{sF+k}, v{dd}' for k in range(4)]
        sc += [Rn(g0+4, g0+4)] + [f'v_mul_f32 v{g0+4}, {fl(0.2)}, v{g0+4}'] + [Rn(g0+k, g0+k) for k in range(2)]
        sc += [Rn(g0+4, g0+4)] + [Rn(g0+k, g0+k) for k in range(2, 4)]
        sc += [f'v_mul_f32 v{g0+4}, 0.15915494, v{g0+4}']
        sc += [f'v_mul_f32 v{rx+i}, v{rx+i}, v{inv}' for i in range(3)]
        sc += [f'v_cos_f32 v{g0+4}, v{g0+4}']
        sc += [f'v_mul_f32 v{g0+k}, 0.15915494, v{g0+k}' for k in range(4)]
        sc += [f'v_cvt_pk_bf16_f32 v{t0}, v{rx}, v{ry}', f'v_cvt_pk_bf16_f32 v{t1}, v{rz}, v{rz}', Rn(g0+4, g0+4)]
        sc += [f'v_sin_f32 v{g0+k}, v{g0+k}' for k in range(2)]
        sc += [f'v_bitop3_b32 v{t0}, v{t0}, v{vM}, v{vM} bitop3:0x30', f'v_bitop3_b32 v{t1}, v{t1}, v{vM}, v{vM} bitop3:0x30',
               f'v_add_f32 v{g0+4}, 1.0, v{g0+4}']
        sc += [f'ds_write_b16 v{vSTGH}, v{t0} offset:{S_R}', f'ds_write_b16_d16_hi v{vSTGH}, v{t0} offset:{S_R+128}', f'ds_write_b16 v{vSTGH}, v{t1} offset:{S_R+256}']
        sc += sel_reads(0)
        sc += [f'v_sin_f32 v{g0+k}, v{g0+k}' for k in range(2, 4)]
        sc += [Rn(g0+4, g0+4), f'v_mul_f32 v{inv}, 0.5, v{inv}', f'v_mul_f32 v{inv}, v{inv}, v{g0+4}']
        sc += [f'v_mul_f32 v{g0+k}, v{g0+k}, v{inv}' for k in range(4)]
        sc += [f'v_cvt_pk_bf16_f32 v{RBF}, v{g0}, v{g0+1}', f'v_cvt_pk_bf16_f32 v{RBF+1}, v{g0+2}, v{g0+3}',
               f'v_bitop3_b32 v{RBF}, v{RBF}, v{vM}, v{vM} bitop3:0x30', f'v_bitop3_b32 v{RBF+1}, v{RBF+1}, v{vM}, v{vM} bitop3:0x30']
        fill = []
        if first:
            for c in range(4):
                for hh in range(2):
                    for ct in range(4):
                        for r in (2*hh, 2*hh+1):
                            src = D3 + (c*2 + hh)*4 + 2*(r & 1) + (ct >> 1)
                            dst = ACC + c*16 + ct*4 + r
                            fill.append(f'v_and_b32 v{dst}, v{vMHI}, v{src}' if ct & 1 else f'v_lshlrev_b32 v{dst}, 16, v{src}')
        nh = 6
        emit(a, sc[:nh])
        if first: a('s_waitcnt lgkmcnt(0)')
        emit(a, weave(sc[nh:], fill))
        emit(a, wread(0)); emit(a, wread(1))
    else:
        emit(a, wread(0)); emit(a, wread(1))
        T(a, 9)
    a(f's_mov_b32 s{sT0}, 0x00010001')
    a('s_waitcnt lgkmcnt(7)')
    for i in range(4): a(f'v_xor_b32 v{SEL+i}, v{SEL+i}, v{vNQ}')
    emit(a, wf(0, u)[:1])
    for i in range(4): a(f'v_pk_min_u16 v{SEL+i}, v{SEL+i}, s{sT0}')
    for i in range(4): a(f'v_pk_sub_u16 v{SEL+i}, v{SEL+i}, s{sT0}')
    emit(a, wf(0, u)[1:])
    a('s_waitcnt lgkmcnt(4)')
    for j in range(3):
        for i in range(4): a(f'v_and_b32 v{SR+4*j+i}, v{SR+4*j+i}, v{SEL+i}')
    for i in range(4): a(f'v_and_b32 v{SEL+i}, 0x3f803f80, v{SEL+i}')
    vissue(0)
    T(a, 11)
    a(f's_waitcnt vmcnt({(8 if u == 0 else 0) + opt.vsched[0]})')
    T(a, 12)
    for step in range(12):
        a(f's_waitcnt lgkmcnt({2 if step < 11 else 0})')
        M = l2_mfma(step)
        if step == 0:
            emit(a, M); emit(a, wread(2)); vissue(1)
            continue
        m = l2_mul(step - 1)
        if step in (5, 9):
            emit(a, M[:2] + m[:4] + M[2:3] + m[4:6] + M[3:] + m[6:])
        else:
            emit(a, weave(M, m))
        if step == 4: emit(a, wf(2, u))
        if step == 8: emit(a, wf(1, u))
        emit(a, l2_cvt(step - 1))
        if step + 2 < 12: emit(a, wread(step + 2))
        emit(a, l2_seg(step - 1))
        vissue(step + 1)
    a(f's_add_u32 s{sXE0}, s{sE0}, {32*(u+1)}')
    a(f's_cmp_lt_u32 s{sXE0}, s{sE1}')
    if tag == 'A':
        a('s_cbranch_scc0 L2_newitem')
    elif tag == 'B':
        a.br('s_cbranch_scc1 L2_tail_toC')
        a.br('s_branch L2_newitem')
    else:
        a('s_cbranch_scc0 L2_newitem')
        a(f's_mov_b32 s{sXE1}, s{sE1}')
        a(f's_mov_b32 s{sXN0}, s{sN0}')
        a(f's_mov_b32 s{sXNN}, s{sNN}')
        a(f's_mov_b32 s{sXCONT}, 1')
        a(f's_mov_b32 s{sLAST}, 0')
        a.br('s_branch L2_tail_toA')

def newitem(a):
    a.label('L2_newitem', settle=False)
    a(f's_mov_b32 s{sLAST}, 1')
    chain_loop(a, vNX64, sC64)
    chain_loop(a, vNX32, sC32)
    a(f's_cmp_ge_u32 s{sNC}, {R}')
    a('s_cbranch_scc1 L2_tail_fin')
    a(f's_mov_b32 s{sXN0}, s{sNC}')
    chain_start(a, sXE0)
    chain_step(a, vNX32)
    chain_start(a, sXE1)
    a(f's_sub_u32 s{sXNN}, s{sNC}, s{sXN0}')
    a(f's_mov_b32 s{sXCONT}, 0')
    a(f's_mov_b32 s{sC32}, 7')

def tail(a, tag):
    if tag == 'toC':
        a.lines.append('L2_tail_toC:')
    else:
        a.label(f'L2_tail_{tag}', settle=False)
    def pv(n):
        j, ct = divmod(n, 4); U = D2 + ((n + 2) % 4)*8
        un, mu = [], []
        for jj in range(8):
            src = V + j*16 + jj*2 + (ct >> 1)
            un.append(f'v_and_b32 v{U+jj}, v{vMHI}, v{src}' if ct & 1 else f'v_lshlrev_b32 v{U+jj}, 16, v{src}')
            mu.append(f'v_mul_f32 v{U+jj}, v{U+jj}, v{D3 + (jj >> 2)*16 + ct*4 + (jj & 3)}')
        if opt.pk:
            mu = [f'v_pk_mul_f32 v[{U+jj}:{U+jj+1}], v[{U+jj}:{U+jj+1}], v[{D3 + (jj >> 2)*16 + ct*4 + (jj & 3)}:{D3 + (jj >> 2)*16 + ct*4 + (jj & 3) + 1}]' for jj in range(0, 8, 2)]
        cv = [f'v_cvt_pk_bf16_f32 v{U+i}, v{U+2*i}, v{U+2*i+1}' for i in range(4)]
        acc = ACC + (1+j)*16 + ct*4
        mf = f'v_mfma_f32_16x16x32_bf16 v[{acc}:{acc+3}], v[{U}:{U+3}], v[{SEL}:{SEL+3}], v[{acc}:{acc+3}]'
        return un, mu, cv, mf
    if tag == 'toA': emit(a, next_entry_read(TP) + next_mask(TP+4))
    if tag == 'toC': emit(a, off_reads(1))
    emit(a, l2_mul(11))
    prev = None
    for n in range(12):
        j, ct = divmod(n, 4)
        un, mu, cv, mf = pv(n)
        if ct == 0:
            T(a, 13 + 2*j)
            a(f's_waitcnt vmcnt({16 - 8*j})')
            T(a, 14 + 2*j)
        emit(a, un[:2])
        if prev: a(prev)
        emit(a, un[2:])
        rest = mu + cv
        if tag == 'toA' and n == 1:
            a('s_waitcnt lgkmcnt(0)')
            rest = weave(rest, next_stage(TP+4, TP+5) + off_reads(0))
        if (tag == 'toA' and n == 3) or (tag == 'toC' and n == 1):
            a('s_waitcnt lgkmcnt(0)')
            rest = weave(rest, off_adds())
        emit(a, rest)
        prev = mf
    T(a, 19)
    if tag == 'toC':
        emit(a, h_loads()[:2])
        a(prev)
        emit(a, h_loads()[2:])
        emit(a, sel_reads(1))
        return
    if tag == 'toA':
        emit(a, pos_load(TP+5))
        emit(a, h_loads())
        a(prev)
        a(f's_cmp_eq_u32 s{sLAST}, 0')
        a(f's_cbranch_scc1 L2_nopack')
    else:
        a('s_nop 1')
        a(prev)
    for c in range(4):
        for hh in range(2):
            for d in range(4):
                lo = ACC + c*16 + (2*(d & 1))*4 + 2*hh + (d >> 1)
                a(f'v_cvt_pk_bf16_f32 v{D3+(c*2+hh)*4+d}, v{lo}, v{lo+4}')
    if tag == 'toA':
        a.br('s_branch L2_store')
        a.label('L2_nopack', settle=False)
        a(f'v_mov_b32 v{vRES}, 0x40000000')
        a.label('L2_store')
    T(a, 20)
    a(f's_mov_b64 exec, s[{sEXQ}:{sEXQ+1}]')
    emit(a, out_stores(vRES))
    a('s_mov_b64 exec, -1')
    if tag == 'toA':
        a(f's_mov_b32 s{sN0}, s{sXN0}')
        a(f's_mov_b32 s{sNN}, s{sXNN}')
        a(f's_mov_b32 s{sE0}, s{sXE0}')
        a(f's_mov_b32 s{sE1}, s{sXE1}')
        a(f's_cmp_lg_u32 s{sXCONT}, 0')
        a.br('s_cbranch_scc1 L2_head_B')
        a.br('s_branch L2_head_A')

def gen_k2(a, name):
    header(a, name)
    stamp.tmp = 252; stamp.wave = 0
    a('s_cmp_ge_u32 s2, %d' % NB)
    a('s_cbranch_scc1 L2_end')
    a('s_load_dwordx2 s[4:5], s[0:1], 0')
    a('s_load_dwordx2 s[12:13], s[0:1], 32')
    a('s_load_dwordx2 s[20:21], s[0:1], 64')
    a('s_load_dwordx2 s[24:25], s[0:1], 80')
    a('v_lshrrev_b32 v40, 6, v0')
    a('v_and_b32 v41, 63, v0')
    a('v_readfirstlane_b32 s3, v40')
    a(f'v_lshlrev_b32 v{vLANE16}, 4, v41')
    a('v_lshlrev_b32 v42, 4, v0')
    a('s_waitcnt lgkmcnt(0)')
    a('s_load_dwordx2 s[14:15], s[12:13], 0')
    srd(a, sSLOT, 24, SLOT_OFF, NB*64, mul=16384)
    W = V
    a(f'buffer_load_dwordx4 v[{W}:{W+3}], v42, s[{sSLOT}:{sSLOT+3}], 0 offen')
    a(f'v_add_u32 v43, 8192, v42')
    a(f'buffer_load_dwordx4 v[{W+4}:{W+7}], v43, s[{sSLOT}:{sSLOT+3}], 0 offen')
    srd(a, sP4, 24, POS4_OFF, N*8)
    a(f's_mul_i32 s{sT0}, s2, {R*8}')
    a('v_lshlrev_b32 v43, 3, v0')
    a(f'v_add_u32 v43, s{sT0}, v43')
    a('v_cmp_gt_u32 vcc, 128, v0')
    a('v_mov_b32 v44, 0x40000000')
    a('v_cndmask_b32_e64 v43, v44, v43, vcc')
    a(f'buffer_load_dwordx2 v[46:47], v43, s[{sP4}:{sP4+3}], 0 offen')
    def zero_counters(tag):
        a('s_cmp_ge_u32 s3, 3')
        a.br(f's_cbranch_scc1 L2_nozero{tag}')
        a('v_lshlrev_b32 v40, 2, v0')
        a('v_mov_b32 v44, 0')
        a(f'v_add_u32 v42, {L_FLAG - 512}, v40')
        a(f'v_add_u32 v40, {L_NCNT}, v40')
        a('v_cmp_gt_u32 vcc, 128, v0')
        a('v_cndmask_b32_e64 v40, v42, v40, vcc')
        a('v_cmp_gt_u32 vcc, 129, v0')
        a('s_and_saveexec_b64 s[64:65], vcc')
        a('ds_write_b32 v40, v44')
        a('s_mov_b64 exec, s[64:65]')
        a.label(f'L2_nozero{tag}')
    zero_counters('a')
    srd(a, sW2F, 24, W2F_OFF, 24576 + 1536)
    a('v_lshlrev_b32 v43, 3, v41')
    a(f's_mov_b32 s{sT0}, 24576')
    for p in range(3):
        a(f'buffer_load_dwordx2 v[{WR+2*p}:{WR+2*p+1}], v43, s[{sW2F}:{sW2F+3}], s{sT0} offen offset:{p*512}')
    for i in range(3):
        a(f's_lshl_b32 s{sT0}, s3, 10')
        if i: a(f's_add_u32 s{sT0}, s{sT0}, {i*8192}')
        a(f's_mov_b32 m0, s{sT0}')
        a(f'buffer_load_dwordx4 v{vLANE16}, s[{sW2F}:{sW2F+3}], s{sT0} offen lds')
    srd(a, sRES, 4, 0, R*512, mul=R*512)
    stamp_init(a, 1)
    tr_init(a)
    tr(a, 1)
    stamp(a, 1, 0)
    dbg_init(a, 1)
    dbg(a, 6)
    dbg(a, 7, True)
    srd(a, sSV, 4, 0, N*512)
    srd(a, sH, 24, H_OFF, N*128)
    srd(a, sOUT, 20, 0, R*512, mul=R*512)
    srd(a, sOVF, 24, OVF_OFF, NB*CH*4)
    a('v_and_b32 v44, 15, v41')
    a('v_lshrrev_b32 v45, 4, v41')
    a('v_lshrrev_b32 v43, 2, v44')
    a('v_lshlrev_b32 v43, 3, v43')
    a('v_and_b32 v40, 3, v44')
    a('v_add_u32 v43, v43, v40')
    a(f's_mul_i32 s{sSTG}, s3, {STG}')
    a(f's_add_u32 s{sSTG}, s{sSTG}, {L_STG}')
    a(f's_sub_u32 s{sSD}, {L_SORT}, s{sSTG}')
    a(f'v_lshl_add_u32 v{vHA}, v43, 2, s{sSTG}')
    a('v_and_b32 v40, 1, v45')
    a('v_lshl_add_u32 v43, v40, 2, v43')
    a('v_lshrrev_b32 v40, 1, v45')
    a('v_lshl_add_u32 v43, v40, 5, v43')
    a(f'v_lshl_add_u32 v{vSTGW}, v43, 2, s{sSTG}')
    a(f'v_lshl_add_u32 v{vSTGH}, v43, 1, s{sSTG}')
    a(f'v_lshl_add_u32 v{vSTGR}, v45, 5, s{sSTG}')
    a(f'v_lshl_add_u32 v{vSTGS}, v45, 4, s{sSTG}')
    emit_Q(a, vLPV, 44, 40)
    a(f'v_lshlrev_b32 v{vLPV}, 3, v{vLPV}')
    a(f'v_lshlrev_b32 v{vLPH}, 4, v45')
    a(f'v_lshl_add_u32 v{vLPR}, v44, 9, v{vLPH}')
    a(f'v_lshl_or_b32 v{vQQ}, v44, 16, v44')
    a(f'v_mov_b32 v{vMHI}, 0xffff0000')
    a(f's_mov_b32 s{sROUND}, 0')
    a('s_waitcnt lgkmcnt(0)')
    a('s_barrier')
    a(f's_lshl_b32 s{sF}, s14, 16')
    a(f's_and_b32 s{sF+1}, s14, 0xffff0000')
    a(f's_lshl_b32 s{sF+2}, s15, 16')
    a(f's_and_b32 s{sF+3}, s15, 0xffff0000')
    a('v_and_b32 v39, 3, v0')
    a('v_lshlrev_b32 v39, 2, v39')
    a('v_subrev_u32 v39, 1, v39')
    LIM, CNT = 56, 58
    a('s_waitcnt vmcnt(8)')
    a(f'v_mov_b32_dpp v{CNT}, v{W} quad_perm:[0,0,0,0] row_mask:0xf bank_mask:0xf')
    a('s_waitcnt vmcnt(7)')
    a(f'v_mov_b32_dpp v{CNT+1}, v{W+4} quad_perm:[0,0,0,0] row_mask:0xf bank_mask:0xf')
    for h in range(2):
        a(f'v_and_b32 v{CNT+h}, 0xffff, v{CNT+h}')
        a(f'v_min_u32 v{LIM+h}, {CAP}, v{CNT+h}')
        a(f'v_subrev_u32 v{CNT+h}, {CAP}, v{CNT+h}')
    a('s_cmp_ge_u32 s3, 2')
    a.br('s_cbranch_scc1 L2_nodpos')
    a('s_waitcnt vmcnt(6)')
    a('v_lshlrev_b32 v84, 16, v46')
    a(f'v_and_b32 v85, v{vMHI}, v46')
    a('v_lshlrev_b32 v86, 16, v47')
    a('v_mov_b32 v87, 0')
    a('v_lshlrev_b32 v42, 4, v0')
    a(f'ds_write_b128 v42, v[84:87] offset:{L_DPOS}')
    a.label('L2_nodpos')
    a.label('L2_round')
    stamp(a, 1, 1)
    tr(a, 4)
    A = 60; RK = 68; T = 76
    a('v_mov_b32 v40, 1')
    for i in range(8):
        a(f'v_add_u32 v41, {i & 3}, v39')
        a(f'v_cmp_lt_u32 s[{64+2*i}:{65+2*i}], v41, v{LIM + i//4}')
        a(f'v_and_b32 v{A+i}, 127, v{W+i}')
        a(f'v_lshlrev_b32 v{A+i}, 2, v{A+i}')
        a(f'v_add_u32 v{A+i}, {L_NCNT}, v{A+i}')
    for i in range(8):
        a(f's_mov_b64 exec, s[{64+2*i}:{65+2*i}]')
        a(f'ds_add_rtn_u32 v{RK+i}, v{A+i}, v40')
    a('s_mov_b64 exec, -1')
    a(f'v_max_i32 v41, v{CNT}, v{CNT+1}')
    a('v_cmp_lt_i32 vcc, 0, v41')
    a.br('s_cbranch_vccz L2_noflag')
    a(f'v_mov_b32 v41, {L_FLAG}')
    a('ds_write_b32 v41, v40')
    a.label('L2_noflag')
    a(f'v_lshrrev_b32 v41, 9, v{vLANE16}')
    a('s_lshl_b32 s%d, s3, 1' % sT0)
    a(f'v_add_u32 v42, s{sT0}, v41')
    a('v_and_b32 v42, 7, v42')
    a('v_lshlrev_b32 v42, 5, v42')
    a(f'v_xor_b32 v42, v42, v{vLANE16}')
    for i in range(7):
        if i == 6:
            a('s_cmp_ge_u32 s3, 2')
            a.br('s_cbranch_scc1 L2_resdone')
        a(f's_lshl_b32 s{sT0}, s3, 10')
        if i: a(f's_add_u32 s{sT0}, s{sT0}, {i*8192}')
        a(f's_add_u32 m0, s{sT0}, {L_RES}')
        a(f'buffer_load_dwordx4 v42, s[{sRES}:{sRES+3}], s{sT0} offen sc1 lds')
    a.label('L2_resdone')
    a('s_waitcnt lgkmcnt(0)')
    a('s_barrier')
    stamp(a, 1, 2)
    tr(a, 5)
    a(f'v_lshrrev_b32 v41, 2, v{vLANE16}')
    a(f'v_add_u32 v41, {L_NCNT}, v41')
    a('ds_read2st64_b32 v[42:43], v41 offset1:1')
    a(f'v_mov_b32 v44, {L_FLAG}')
    a('ds_read_b32 v45, v44')
    a('s_waitcnt lgkmcnt(1)')
    a('v_lshl_or_b32 v42, v43, 16, v42')
    a('v_mov_b32 v43, v42')
    for sh in ('row_shr:1', 'row_shr:2', 'row_shr:4', 'row_shr:8'):
        a(f'v_add_u32_dpp v43, v43, v43 {sh} row_mask:0xf bank_mask:0xf')
    a('v_add_u32_dpp v43, v43, v43 row_bcast:15 row_mask:0xa bank_mask:0xf')
    a('v_add_u32_dpp v43, v43, v43 row_bcast:31 row_mask:0xc bank_mask:0xf')
    a('s_waitcnt lgkmcnt(0)')
    a(f'v_readfirstlane_b32 s{sMORE}, v45')
    a(f'v_readlane_b32 s{sT0}, v43, 63')
    a('v_sub_u32 v43, v43, v42')
    a(f's_and_b32 s{sT0}, s{sT0}, 0xffff')
    a(f'v_and_b32 v{vSTLO}, 0xffff, v43')
    a(f'v_lshrrev_b32 v{vSTHI}, 16, v43')
    a(f'v_add_u32 v{vSTHI}, s{sT0}, v{vSTHI}')
    a(f'ds_write2st64_b32 v41, v{vSTLO}, v{vSTHI} offset0:2 offset1:3')
    for i in range(8):
        a(f'ds_read_b32 v{T+i}, v{A+i} offset:512')
    a(f'v_lshl_or_b32 v{vPACK}, v{vSTHI}, 16, v{vSTLO}')
    for i in range(8):
        a('s_waitcnt lgkmcnt(7)')
        a(f'v_add_lshl_u32 v{T+i}, v{T+i}, v{RK+i}, 2')
        a(f's_mov_b64 exec, s[{64+2*i}:{65+2*i}]')
        a(f'ds_write_b32 v{T+i}, v{W+i} offset:{L_SORT}')
        a('s_mov_b64 exec, -1')
    for k, (st, d) in enumerate(((vSTLO, 32), (vSTHI, 32), (vSTLO, 64), (vSTHI, 64))):
        a(f'v_add_u32 v{T+k}, {d}, v{st}')
        a(f'v_lshlrev_b32 v{T+4+k}, 2, v{T+k}')
    a(f'v_readlane_b32 s{sT2}, v{vSTHI}, {R - 64}')
    a(f'v_lshrrev_b32 v40, 4, v{vLANE16}')
    a('v_add_u32 v41, 64, v40')
    a(f'v_mov_b32 v46, {R}')
    a(f's_mov_b32 s{sNC}, 0')
    a(f's_mov_b32 s{sC64}, s3')
    a('s_waitcnt lgkmcnt(0)')
    a('s_barrier')
    stamp(a, 1, 3)
    tr(a, 2)
    dbg(a, 8)
    dbg(a, 9, True)
    for k in (2, 3, 0, 1):
        a(f'ds_read_b32 v{T+4+k}, v{T+4+k} offset:{L_SORT}')
    for k in range(4):
        a(f'v_cmp_gt_u32 s[{64+2*k}:{65+2*k}], s{sT2}, v{T+k}')
    a('v_add_u32 v42, 1, v40')
    a('v_add_u32 v43, 16, v40')
    a('v_add_u32 v44, 1, v41')
    a('v_add_u32 v45, 16, v41')
    for k in (2, 3, 0, 1):
        r = T + 4 + k
        if k in (2, 0): a(f's_waitcnt lgkmcnt({2 if k == 2 else 0})')
        a(f'v_and_b32 v{r}, 127, v{r}')
        a(f'v_cndmask_b32_e64 v{r}, v46, v{r}, s[{64+2*k}:{65+2*k}]')
        a(f'v_med3_u32 v{r}, v{r}, v{42 + 2*(k & 1)}, v{43 + 2*(k & 1)}')
        a(f'v_min_u32 v{r}, v46, v{r}')
        if k == 3: a(f'v_lshl_or_b32 v{vNX64}, v{T+7}, 16, v{T+6}')
    a(f'v_lshl_or_b32 v{vNX32}, v{T+5}, 16, v{T+4}')
    chain_loop(a, vNX64, sC64)
    a(f's_cmp_lt_u32 s{sNC}, {R}')
    a.br('s_cbranch_scc1 L2_haveitem')
    a('s_waitcnt vmcnt(0)')
    a('s_barrier')
    a.br('s_branch L2_rounddone')
    a.label('L2_haveitem')
    if opt.prio: a('s_setprio 3')
    a(f's_mov_b32 s{sN0}, s{sNC}')
    chain_start(a, sE0)
    chain_step(a, vNX64)
    chain_start(a, sE1)
    a(f's_sub_u32 s{sNN}, s{sNC}, s{sN0}')
    a(f's_mov_b32 s{sXE0}, s{sE0}')
    a(f's_mov_b32 s{sXE1}, s{sE1}')
    emit(a, next_entry_read(TP))
    emit(a, next_mask(TP+4))
    a(f's_sub_u32 s{sC64}, 7, s3')
    a(f's_mov_b32 s{sC32}, s3')
    a('s_waitcnt lgkmcnt(0)')
    emit(a, next_stage(TP+4, TP+5))
    emit(a, off_reads(0))
    emit(a, pos_load(TP+5))
    a('s_waitcnt lgkmcnt(0)')
    emit(a, off_adds())
    emit(a, h_loads())
    a('s_waitcnt vmcnt(5)')
    a('s_barrier')
    a(f'v_mov_b32 v{vRES}, 0x40000000')
    emit(a, out_stores(vRES))
    if opt.prio: a('s_setprio 0')
    if opt.prio2 == 1:
        a('s_cmp_lt_u32 s3, 4')
        a('s_cbranch_scc1 L2_noprio')
        a('s_setprio 1')
        a.label('L2_noprio', settle=False)
    tr(a, 3)
    a.br('s_branch L2_head_A')
    head(a, 'B')
    head(a, 'A')
    tail(a, 'toC')
    head(a, 'C')
    newitem(a)
    tail(a, 'toA')
    tail(a, 'fin')
    a.label('L2_rounddone')
    tr(a, 30)
    stamp(a, 1, 4)
    a(f's_cmp_eq_u32 s{sMORE}, 0')
    a.br('s_cbranch_scc1 L2_fin')
    a('s_waitcnt vmcnt(0) lgkmcnt(0)')
    a('s_barrier')
    zero_counters('b')
    srd(a, sRES, 20, 0, R*512, mul=R*512)
    a('v_lshrrev_b32 v40, 2, v0')
    a('v_lshlrev_b32 v41, 6, v40')
    a(f'buffer_load_dword v42, v41, s[{sSLOT}:{sSLOT+3}], 0 offen')
    a('v_add_u32 v41, 8192, v41')
    a(f'buffer_load_dword v43, v41, s[{sSLOT}:{sSLOT+3}], 0 offen')
    a('v_and_b32 v39, 3, v0')
    a('v_lshlrev_b32 v39, 2, v39')
    a(f's_lshl_b32 s{sT0}, s{sROUND}, 4')
    a(f's_add_u32 s{sT1}, s{sT0}, {CAP}')
    a(f's_add_u32 s{sROUND}, s{sROUND}, 1')
    a(f'v_mul_u32_u24 v40, {CH*4}, v40')
    a('v_lshl_add_u32 v40, v39, 2, v40')
    a(f's_lshl_b32 s{sT0}, s{sT0}, 2')
    a(f'v_add_u32 v40, s{sT0}, v40')
    a('s_waitcnt vmcnt(0)')
    for h in range(2):
        a(f'v_lshrrev_b32 v44, 16, v{42+h}')
        a(f'v_lshl_add_u32 v44, v44, 2, v40')
        if h: a(f'v_add_u32 v44, {128*CH*4}, v44')
        a(f'buffer_load_dwordx4 v[{W+4*h}:{W+4*h+3}], v44, s[{sOVF}:{sOVF+3}], 0 offen')
        a(f'v_and_b32 v{CNT+h}, 0xffff, v{42+h}')
        a(f'v_subrev_u32 v{CNT+h}, s{sT1}, v{CNT+h}')
        a(f'v_med3_i32 v{LIM+h}, v{CNT+h}, 0, 16')
        a(f'v_subrev_u32 v{CNT+h}, 16, v{CNT+h}')
    a('s_waitcnt vmcnt(0) lgkmcnt(0)')
    a('s_barrier')
    a.br('s_branch L2_round')
    a.label('L2_fin')
    tr_dump(a)
    if opt.ts or opt.dbg:
        a('s_waitcnt vmcnt(0)')
        stamp(a, 1, 5)
        dbg(a, 10)
        dbg(a, 11, True)
    a.label('L2_end')
    a('s_endpgm')

def build():
    src = open('gather_scatter__molecular_angular_painn__graph.s.ref').read().split('\n')
    head = []
    for ln in src:
        if not ln.startswith(';'): break
        if '@launch' in ln or 'Override launch' in ln or 'grid=ceil' in ln: continue
        head.append(ln)
    k1, k2 = 'painn_bin_kernel', 'painn_msg_kernel'
    head.append(f'; @launch kernel={k1} grid=({NB},1,1) block=(1024,1,1) lds={K1_LDS}')
    head.append(f'; @launch kernel={k2} grid=({NB},1,1) block=(512,1,1) lds={K2_LDS}')
    a = Asm()
    a.raw('.amdgcn_target "amdgcn-amd-amdhsa--gfx950"\n.text')
    gen_k1(a, k1)
    gen_k2(a, k2)
    out = '\n'.join(head) + '\n' + a.text() + '.section .rodata,"a"\n' + descriptor(k1, 128) + descriptor(k2, K2_VGPR)
    return out

if __name__ == '__main__':
    outp = sys.argv[1]
    for kv in sys.argv[2:]:
        k, val = kv.split('=')
        setattr(opt, k, type(getattr(opt, k))(eval(val)))
    open(outp, 'w').write(build())
```

```python
import sys, struct
from asmlib import Asm

N = 25000; NB = 250; R = 100; CH = 3200
H_OFF = 0; SLOT_OFF = 0x400000; OVF_OFF = 0x800000; W2F_OFF = 0xC00000; WRF_OFF = W2F_OFF + 24576
POS4_OFF = 0xC10000; TS_OFF = 0xE00000
CAP = 15

def f2u(x): return struct.unpack('<I', struct.pack('<f', x))[0]
def fl(x): return '0x%08x' % f2u(x)
def v(i, n=1): return f'v{i}' if n == 1 else f'v[{i}:{i+n-1}]'
def s(i, n=1): return f's{i}' if n == 1 else f's[{i}:{i+n-1}]'

class Opt:
    ts = False
    tr = False
    dbg = False
    nt_edges = False
    nt_out = False
    k1st = ''
    outst = ''
    ntpos = False
    thr = 24.3
    rot = 4
    prio = False
    prio2 = 0
    pk = False
    rawpos = False
    spread = False
    pkc = 0
    trmain = True
    tlb = 0
    pf_sv = ''
    vsched = [8,0,0,0,8,0,0,0,8,0,0,0,0]
opt = Opt()

def srd(a, d, base, off, size, mul=None):
    if mul is not None:
        a(f's_mul_i32 s{d+2}, s2, {mul}')
        if off: a(f's_add_u32 s{d+2}, s{d+2}, {off}')
        a(f's_add_u32 s{d}, s{base}, s{d+2}')
        a(f's_addc_u32 s{d+1}, s{base+1}, 0')
    elif off:
        a(f's_add_u32 s{d}, s{base}, {off}')
        a(f's_addc_u32 s{d+1}, s{base+1}, 0')
    else:
        a(f's_mov_b32 s{d}, s{base}')
        a(f's_mov_b32 s{d+1}, s{base+1}')
    a(f's_mov_b32 s{d+2}, {size}')
    a(f's_mov_b32 s{d+3}, 0x20000')

def stamp(a, kern, idx, tmpv=None):
    if not opt.ts: return
    a.settle()
    L = f'Lts_{kern}_{idx}_{stamp.n}'; stamp.n += 1
    a(f's_cmp_lg_u32 s3, {stamp.wave}')
    a.br(f's_cbranch_scc1 {L}')
    a('s_memrealtime s[92:93]')
    a('s_mov_b64 s[94:95], exec')
    a('s_mov_b64 exec, 1')
    a('s_waitcnt lgkmcnt(0)')
    t = stamp.tmp
    a(f'v_mov_b32 v{t}, s92')
    a(f'v_mov_b32 v{t+1}, s93')
    a(f'v_mov_b32 v{t+2}, 0')
    a(f'buffer_store_dwordx2 v[{t}:{t+1}], v{t+2}, s[96:99], 0 offen offset:{idx*8}')
    a('s_mov_b64 exec, s[94:95]')
    a.label(L)
stamp.n = 0; stamp.wave = 0; stamp.tmp = 0

def stamp_init(a, kern):
    if not opt.ts: return
    a(f's_lshl_b32 s98, s2, 7')
    a(f's_add_u32 s98, s98, {TS_OFF + kern*256*128}')
    a('s_add_u32 s96, s24, s98')
    a('s_addc_u32 s97, s25, 0')
    a('s_mov_b32 s98, 128')
    a('s_mov_b32 s99, 0x20000')

def dbg_init(a, kern):
    if not opt.dbg: return
    a('s_load_dwordx2 s[96:97], s[0:1], 72')
    a('s_waitcnt lgkmcnt(0)')
    if kern:
        a('s_sub_u32 s96, s96, 512')
        a('s_subb_u32 s97, s97, 0')
    a('s_mov_b32 s98, 64')
    a('s_mov_b32 s99, 0x20000')

def dbg(a, idx, allwg=False):
    if not opt.dbg: return
    a.settle()
    L = f'Ldbg_{stamp.n}'; stamp.n += 1
    a('s_cmp_lg_u32 s3, 0')
    a.br(f's_cbranch_scc1 {L}')
    if not allwg:
        a('s_cmp_lg_u32 s2, 0')
        a.br(f's_cbranch_scc1 {L}')
    a('s_memrealtime s[92:93]')
    a('s_mov_b64 s[94:95], exec')
    a('s_mov_b64 exec, 1')
    a('s_waitcnt lgkmcnt(0)')
    t = stamp.tmp
    a(f'v_mov_b32 v{t}, s92')
    a(f'v_mov_b32 v{t+2}, 0')
    a(f'buffer_atomic_umax v{t}, v{t+2}, s[96:99], 0 offen offset:{idx*4}')
    a('s_mov_b64 exec, s[94:95]')
    a.label(L)

TR_OFF = 0x1000000
def tr_init(a):
    if not opt.tr: return
    a('s_lshl_b32 s98, s2, 3')
    a('s_add_u32 s98, s98, s3')
    a('s_lshl_b32 s98, s98, 10')
    a(f's_add_u32 s98, s98, {TR_OFF}')
    a('s_add_u32 s96, s24, s98')
    a('s_addc_u32 s97, s25, 0')
    a('s_mov_b32 s98, 1024')
    a('s_mov_b32 s99, 0x20000')
    a('s_mov_b32 s27, 0')
    a('v_mov_b32 v11, 0')

def tr(a, tag):
    if not opt.tr: return
    a('s_memtime s[92:93]')
    a('s_mov_b32 m0, s27')
    a('s_add_u32 s27, s27, 1')
    a('s_waitcnt lgkmcnt(0)')
    a('s_lshl_b32 s92, s92, 6')
    a(f's_or_b32 s92, s92, {tag}')
    a('v_writelane_b32 v11, s92, m0')

def tr_dump(a):
    if not opt.tr: return
    a('v_lshrrev_b32 v12, 2, v1')
    a('buffer_store_dword v11, v12, s[96:99], 0 offen')

def header(a, name):
    a.raw(f'.globl {name}\n.p2align 8\n.type {name},@function\n{name}:')
    a.hist = []

def descriptor(name, vgpr, sgpr=102):
    acc = (vgpr + 3) // 4 * 4
    return f'''.p2align 6
.amdhsa_kernel {name}
  .amdhsa_next_free_vgpr {vgpr}
  .amdhsa_next_free_sgpr {sgpr}
  .amdhsa_accum_offset {acc}
  .amdhsa_group_segment_fixed_size 0
  .amdhsa_kernarg_size 88
  .amdhsa_user_sgpr_count 2
  .amdhsa_user_sgpr_kernarg_segment_ptr 1
  .amdhsa_system_sgpr_workgroup_id_x 1
  .amdhsa_float_denorm_mode_32 3
.end_amdhsa_kernel
'''

def emit_Q(a, dst, q, t):
    a(f'v_lshrrev_b32 v{dst}, 2, v{q}')
    a(f'v_lshlrev_b32 v{dst}, 1, v{dst}')
    a(f'v_and_b32 v{t}, 1, v{q}')
    a(f'v_add_u32 v{dst}, v{dst}, v{t}')
    a(f'v_and_b32 v{t}, 2, v{q}')
    a(f'v_lshl_add_u32 v{dst}, v{t}, 2, v{dst}')

K1_POS = 0; K1_CNT = 150528; K1_OVB = 151808; K1_W1 = 152832; K1_LDS = 161024

def gen_k1(a, name):
    header(a, name)
    stamp.tmp = 60; stamp.wave = 0
    a('s_cmp_ge_u32 s2, %d' % NB)
    a('s_cbranch_scc1 L1_end')
    a('s_load_dwordx8 s[4:11], s[0:1], 0')
    a('s_load_dwordx8 s[12:19], s[0:1], 32')
    a('s_load_dwordx2 s[24:25], s[0:1], 80')
    a('v_lshrrev_b32 v1, 6, v0')
    a('v_and_b32 v2, 63, v0')
    a('v_readfirstlane_b32 s3, v1')
    a('v_lshlrev_b32 v3, 4, v2')
    a('v_mov_b32 v40, 0')
    a('s_cmp_ge_u32 s3, 5')
    a.br('s_cbranch_scc1 L1_nozero')
    a('v_lshlrev_b32 v41, 2, v0')
    a(f'v_add_u32 v41, {K1_CNT}, v41')
    a('ds_write_b32 v41, v40')
    a.label('L1_nozero')
    a('s_waitcnt lgkmcnt(0)')
    stamp_init(a, 0)
    stamp(a, 0, 0)
    dbg_init(a, 0)
    dbg(a, 0)
    dbg(a, 1, True)
    a('s_cmp_ge_u32 s3, 13')
    a.br('s_cbranch_scc1 L1_hpath')
    srd(a, 28, 8, 0, CH*4, mul=CH*4)
    srd(a, 32, 10, 0, CH*4, mul=CH*4)
    srd(a, 36, 6, 0, N*6)
    a('v_lshlrev_b32 v1, 4, v0')
    nt = ' nt' if opt.nt_edges else ''
    a(f'buffer_load_dwordx4 v[4:7], v1, s[28:31], 0 offen{nt}')
    a(f'buffer_load_dwordx4 v[8:11], v1, s[32:35], 0 offen{nt}')
    a('s_lshr_b32 s40, s2, 3')
    a(f's_mul_i32 s40, s40, {opt.rot}')
    a('s_add_u32 s40, s40, s3')
    for i in range(12):
        if i == 11:
            a('s_cmp_ge_u32 s3, 4')
            a.br('s_cbranch_scc1 L1_dmadone')
        a('s_sub_u32 s41, s40, 147')
        a('s_cmp_ge_u32 s40, 147')
        a('s_cselect_b32 s40, s41, s40')
        a('s_lshl_b32 s41, s40, 10')
        a('s_mov_b32 m0, s41')
        a('s_add_u32 s40, s40, 13')
        a('buffer_load_dwordx4 v3, s[36:39], s41 offen lds')
    a.label('L1_dmadone')
    a('s_mov_b64 s[42:43], -1')
    a('s_cmp_eq_u32 s3, 12')
    a('s_cselect_b32 s43, 0, s43')
    a(f's_mov_b32 s44, {fl(opt.thr)}')
    a(f's_mov_b32 s45, -100')
    a(f's_mov_b32 s46, {K1_CNT}')
    a('v_mov_b32 v59, 0xffff0000')
    stamp(a, 0, 1)
    a('s_waitcnt vmcnt(0) lgkmcnt(0)')
    a('s_barrier')
    stamp(a, 0, 2)
    dbg(a, 2)
    dbg(a, 3, True)
    for i in range(4):
        a(f'v_mul_u32_u24 v{12+i}, 6, v{4+i}')
        a(f'v_mul_u32_u24 v{16+i}, 6, v{8+i}')
        a(f'v_and_b32 v36, -4, v{12+i}')
        a(f'v_and_b32 v37, -4, v{16+i}')
        a(f'ds_read2_b32 v[{20+2*i}:{21+2*i}], v36 offset1:1')
        a(f'ds_read2_b32 v[{28+2*i}:{29+2*i}], v37 offset1:1')
    for i in range(4):
        a(f'v_mul_u32_u24 v36, 5243, v{8+i}')
        a(f'v_lshrrev_b32 v36, 19, v36')
        a(f'v_mad_i32_i24 v37, v36, s45, v{8+i}')
        a(f'v_lshl_or_b32 v{48+i}, v{4+i}, 9, v37')
        a(f'v_lshlrev_b32 v{44+i}, 2, v36')
        a(f'v_add_u32 v{52+i}, {K1_CNT}, v{44+i}')
    a('v_mov_b32 v56, 1')
    for i in range(4):
        p, q = 20+2*i, 28+2*i
        a(f's_waitcnt lgkmcnt({6-2*i})')
        a(f'v_alignbyte_b32 v36, v{p+1}, v{p}, v{12+i}')
        a(f'v_alignbyte_b32 v37, v{p+1}, v{p+1}, v{12+i}')
        a(f'v_alignbyte_b32 v38, v{q+1}, v{q}, v{16+i}')
        a(f'v_alignbyte_b32 v39, v{q+1}, v{q+1}, v{16+i}')
        a(f'v_lshlrev_b32 v{p}, 16, v36')
        a(f'v_lshlrev_b32 v{q}, 16, v38')
        a(f'v_and_b32 v36, v59, v36')
        a(f'v_and_b32 v38, v59, v38')
        a(f'v_lshlrev_b32 v37, 16, v37')
        a(f'v_lshlrev_b32 v39, 16, v39')
        a(f'v_sub_f32 v{p}, v{p}, v{q}')
        a(f'v_sub_f32 v36, v36, v38')
        a(f'v_sub_f32 v37, v37, v39')
        a(f'v_mul_f32 v{p}, v{p}, v{p}')
        a(f'v_fmac_f32 v{p}, v36, v36')
        a(f'v_fmac_f32 v{p}, v37, v37')
        a(f'v_cmp_ngt_f32 s[{64+2*i}:{65+2*i}], v{p}, s44')
        a(f's_and_b64 s[{64+2*i}:{65+2*i}], s[{64+2*i}:{65+2*i}], s[42:43]')
    for i in range(4):
        a(f's_mov_b64 exec, s[{64+2*i}:{65+2*i}]')
        a(f'ds_add_rtn_u32 v{12+i}, v{52+i}, v56')
    a('s_mov_b64 exec, -1')
    a('s_waitcnt lgkmcnt(0)')
    a('s_barrier')
    stamp(a, 0, 3)
    for i in range(4):
        a(f'v_cmp_gt_u32 s[{72+2*i}:{73+2*i}], {CAP}, v{12+i}')
        a(f'v_lshlrev_b32 v{16+i}, 4, v{44+i}')
        a(f'v_lshl_add_u32 v{16+i}, v{12+i}, 2, v{16+i}')
    for i in range(4):
        a(f's_and_b64 exec, s[{72+2*i}:{73+2*i}], s[{64+2*i}:{65+2*i}]')
        a(f'ds_write_b32 v{16+i}, v{48+i} offset:4')
        a(f's_andn2_b64 s[{64+2*i}:{65+2*i}], s[{64+2*i}:{65+2*i}], s[{72+2*i}:{73+2*i}]')
    a('s_mov_b64 exec, -1')
    a('s_cmp_ge_u32 s3, 4')
    a.br('s_cbranch_scc1 L1_nohdr')
    a('v_lshlrev_b32 v20, 2, v0')
    a(f'v_add_u32 v21, {K1_CNT}, v20')
    a('ds_read_b32 v22, v21')
    a('v_mov_b32 v23, 0')
    a('v_lshlrev_b32 v24, 6, v0')
    a('s_waitcnt lgkmcnt(0)')
    a(f'v_cmp_lt_u32 vcc, {CAP}, v22')
    a('s_and_saveexec_b64 s[80:81], vcc')
    a.br('s_cbranch_execz L1_hdr_noovf')
    a(f'v_subrev_u32 v25, {CAP}, v22')
    a(f'v_mov_b32 v26, {K1_CNT + 1024}')
    a('ds_add_rtn_u32 v23, v26, v25')
    a(f'v_add_u32 v21, {K1_OVB}, v20')
    a('s_waitcnt lgkmcnt(0)')
    a('ds_write_b32 v21, v23')
    a.label('L1_hdr_noovf')
    a('s_mov_b64 exec, s[80:81]')
    a('v_lshl_or_b32 v22, v23, 16, v22')
    a('ds_write_b32 v24, v22')
    a.label('L1_nohdr')
    a('s_waitcnt lgkmcnt(0)')
    a('s_barrier')
    a('s_or_b64 s[72:73], s[64:65], s[66:67]')
    a('s_or_b64 s[74:75], s[68:69], s[70:71]')
    a('s_or_b64 s[72:73], s[72:73], s[74:75]')
    a.br('s_cbranch_scc0 L1_dump')
    srd(a, 28, 24, OVF_OFF, CH*4, mul=CH*4)
    for i in range(4):
        a(f's_mov_b64 exec, s[{64+2*i}:{65+2*i}]')
        a.br(f's_cbranch_execz L1_ovf{i}')
        a(f'v_add_u32 v20, {K1_OVB}, v{44+i}')
        a('ds_read_b32 v21, v20')
        a('s_waitcnt lgkmcnt(0)')
        a(f'v_add_u32 v21, v21, v{12+i}')
        a(f'v_subrev_u32 v21, {CAP}, v21')
        a('v_lshlrev_b32 v21, 2, v21')
        a(f'buffer_store_dword v{48+i}, v21, s[28:31], 0 offen')
        a.label(f'L1_ovf{i}')
    a('s_mov_b64 exec, -1')
    a.br('s_branch L1_dump')

    a.label('L1_hpath')
    if opt.tlb:
        a('s_load_dwordx2 s[20:21], s[0:1], 64')
        a(f'v_lshlrev_b32 v100, {opt.tlb}, v2')
        srd(a, 48, 24, 0, 0xE00000)
        srd(a, 52, 4, 0, N*512)
        a('buffer_load_dword v101, v100, s[48:51], 0 offen')
        a('buffer_load_dword v102, v100, s[52:55], 0 offen')
        a('s_waitcnt lgkmcnt(0)')
        srd(a, 56, 20, 0, N*512)
        a('buffer_load_dword v103, v100, s[56:59], 0 offen')
    a('s_sub_u32 s40, s3, 13')
    srd(a, 28, 14, 0, 8192)
    srd(a, 32, 4, 0, R*512, mul=R*512)
    srd(a, 36, 24, H_OFF, R*128, mul=R*128)
    for i in range(8):
        a(f's_mov_b32 m0, {K1_W1 + i*1024}')
        a(f's_mov_b32 s41, {i*1024}')
        a('buffer_load_dwordx4 v3, s[28:31], s41 offen lds')
    a('v_and_b32 v4, 15, v2')
    a('v_lshrrev_b32 v5, 4, v2')
    a('s_lshl_b32 s41, s40, 4')
    a('v_add_u32 v6, s41, v4')
    a('v_lshlrev_b32 v7, 4, v5')
    a('v_lshl_add_u32 v8, v6, 9, v7')
    a('v_lshl_add_u32 v9, v6, 7, v7')
    a('buffer_load_dwordx4 v[12:15], v8, s[32:35], 0 offen')
    a('buffer_load_dwordx4 v[16:19], v8, s[32:35], 0 offen offset:64')
    a(f'v_add_u32 v8, {48*512}, v8')
    a('buffer_load_dwordx4 v[20:23], v8, s[32:35], 0 offen')
    a('buffer_load_dwordx4 v[24:27], v8, s[32:35], 0 offen offset:64')
    a(f'v_add_u32 v8, {48*512}, v8')
    a('buffer_load_dwordx4 v[28:31], v8, s[32:35], 0 offen')
    a('buffer_load_dwordx4 v[32:35], v8, s[32:35], 0 offen offset:64')
    a('v_lshrrev_b32 v10, 2, v4')
    a('v_lshl_add_u32 v10, v5, 3, v10')
    a('v_and_b32 v11, 3, v4')
    a('v_lshlrev_b32 v11, 3, v11')
    a('v_lshl_add_u32 v10, v10, 7, v11')
    a(f'v_add_u32 v10, {K1_W1}, v10')
    a('s_waitcnt vmcnt(6)')
    FR = 64
    for ht in range(4):
        for ks in range(2):
            r = FR + (ht*2+ks)*4
            for hf in range(2):
                a(f'ds_read_b64_tr_b16 v[{r+2*hf}:{r+2*hf+1}], v10 offset:{ks*4096 + ht*32 + hf*512}')
    a('s_waitcnt lgkmcnt(0)')
    D = 96; O = 112
    for t in range(3):
        if t == 2:
            a('s_cmp_lg_u32 s40, 0')
            a.br('s_cbranch_scc1 L1_hdone')
        S = 12 + 8*t
        a('s_waitcnt vmcnt(4)')
        for ht in range(4):
            a(f'v_mfma_f32_16x16x32_bf16 v[{D+4*ht}:{D+4*ht+3}], v[{FR+ht*8}:{FR+ht*8+3}], v[{S}:{S+3}], 0')
        for ht in range(4):
            a(f'v_mfma_f32_16x16x32_bf16 v[{D+4*ht}:{D+4*ht+3}], v[{FR+ht*8+4}:{FR+ht*8+7}], v[{S+4}:{S+7}], v[{D+4*ht}:{D+4*ht+3}]')
        for i in range(16):
            a(f'v_cvt_pk_bf16_f32 v{D+i}, 0, v{D+i}')
        T = 120
        for grp in range(4):
            for i in range(4):
                a(f'v_mul_f32 v{T+i}, {fl(-1.4426950408889634)}, v{D+4*grp+i}')
            for i in range(4):
                a(f'v_exp_f32 v{T+i}, v{T+i}')
            for i in range(4):
                a(f'v_add_f32 v{T+i}, 1.0, v{T+i}')
            for i in range(4):
                a(f'v_rcp_f32 v{T+i}, v{T+i}')
            for i in range(4):
                a(f'v_mul_f32 v{T+i}, v{T+i}, v{D+4*grp+i}')
            a(f'v_cvt_pk_bf16_f32 v{O+2*grp}, v{T}, v{T+1}')
            a(f'v_cvt_pk_bf16_f32 v{O+2*grp+1}, v{T+2}, v{T+3}')
        a(f'buffer_store_dwordx4 v[{O}:{O+3}], v9, s[36:39], 0 offen ' + opt.k1st)
        a(f'buffer_store_dwordx4 v[{O+4}:{O+7}], v9, s[36:39], 0 offen offset:64 ' + opt.k1st)
        a(f'v_add_u32 v9, {48*128}, v9')
    a.label('L1_hdone')
    a('s_cmp_lg_u32 s40, 2')
    a.br('s_cbranch_scc1 L1_nofrag')
    a('s_cmp_ge_u32 s2, 27')
    a.br('s_cbranch_scc1 L1_nofrag')
    emit_Q(a, 12, 4, 13)
    a('v_lshlrev_b32 v12, 3, v12')
    srd(a, 32, 24, W2F_OFF, 24576 + 1536)
    a('s_cmp_ge_u32 s2, 24')
    a.br('s_cbranch_scc1 L1_wrfrag')
    srd(a, 28, 16, 0, 64*192*2)
    a('s_lshr_b32 s41, s2, 3')
    a('s_lshl_b32 s41, s41, 7')
    a('s_bfe_u32 s47, s2, 0x20001')
    a('s_lshl_b32 s47, s47, 1')
    a('s_add_u32 s41, s41, s47')
    a('s_and_b32 s47, s2, 1')
    a(f's_mul_i32 s47, s47, {32*384}')
    a('s_add_u32 s41, s41, s47')
    a(f'v_mul_u32_u24 v13, {4*384}, v5')
    a('v_add3_u32 v12, v12, v13, s41')
    a(f'v_add_u32 v13, {16*384}, v12')
    for jj in range(8):
        a(f'buffer_load_ushort v{16+jj}, v{12 if jj < 4 else 13}, s[28:31], 0 offen offset:{(jj&3)*384}')
    a('s_lshl_b32 s41, s2, 10')
    a('v_add_u32 v14, s41, v3')
    a('s_waitcnt vmcnt(0)')
    for i in range(4):
        a(f'v_lshl_or_b32 v{16+i}, v{17+2*i}, 16, v{16+2*i}')
    a('buffer_store_dwordx4 v[16:19], v14, s[32:35], 0 offen')
    a.br('s_branch L1_nofrag')
    a.label('L1_wrfrag')
    srd(a, 28, 18, 0, 4*192*2)
    a('s_sub_u32 s41, s2, 24')
    a('s_lshl_b32 s47, s41, 7')
    a('v_lshlrev_b32 v13, 1, v5')
    a('v_add3_u32 v12, v12, v13, s47')
    for k in range(4):
        a(f'buffer_load_ushort v{16+k}, v12, s[28:31], 0 offen offset:{k*384}')
    a('s_lshl_b32 s41, s41, 9')
    a('s_add_u32 s41, s41, 24576')
    a('v_lshlrev_b32 v14, 3, v2')
    a('v_add_u32 v14, s41, v14')
    a('s_waitcnt vmcnt(0)')
    for i in range(2):
        a(f'v_lshl_or_b32 v{16+i}, v{17+2*i}, 16, v{16+2*i}')
    a('buffer_store_dwordx2 v[16:17], v14, s[32:35], 0 offen')
    a.label('L1_nofrag')
    srd(a, 28, 24, POS4_OFF, R*8, mul=R*8)
    a('s_lshl_b32 s41, s40, 6')
    a('v_add_u32 v12, s41, v2')
    a(f's_mul_i32 s41, s2, {R}')
    a('v_add_u32 v13, s41, v12')
    a('v_mul_u32_u24 v13, 6, v13')
    a('v_and_b32 v14, -4, v13')
    a('v_lshlrev_b32 v12, 3, v12')
    a('s_waitcnt lgkmcnt(0)')
    a('s_barrier')
    a('ds_read2_b32 v[16:17], v14 offset1:1')
    a('s_waitcnt lgkmcnt(0)')
    a('v_alignbyte_b32 v18, v17, v16, v13')
    a('v_alignbyte_b32 v19, v17, v17, v13')
    a('v_and_b32 v19, 0xffff, v19')
    a('buffer_store_dwordx2 v[18:19], v12, s[28:31], 0 offen')
    if opt.pf_sv:
        srd(a, 32, 4, 0, R*512, mul=R*512)
        a('s_lshl_b32 s41, s40, 10')
        a('v_add_u32 v20, s41, v3')
        for i in range(17):
            a(f'buffer_load_dwordx4 v[100:103], v20, s[32:35], 0 offen {opt.pf_sv if opt.pf_sv != "plain" else ""}')
            a('v_add_u32 v20, 3072, v20')
    a('s_barrier')
    a('s_barrier')
    a.label('L1_dump')
    stamp(a, 0, 4)
    srd(a, 28, 24, SLOT_OFF, NB*16384)
    a('v_lshlrev_b32 v4, 4, v0')
    a('ds_read_b128 v[8:11], v4')
    a('v_lshrrev_b32 v5, 2, v0')
    a('v_lshlrev_b32 v5, 14, v5')
    a('v_and_b32 v6, 3, v0')
    a('v_lshl_add_u32 v5, v6, 4, v5')
    a('s_lshl_b32 s41, s2, 6')
    a('v_add_u32 v5, s41, v5')
    a('s_waitcnt lgkmcnt(0)')
    a('buffer_store_dwordx4 v[8:11], v5, s[28:31], 0 offen ' + opt.k1st)
    if opt.ts or opt.dbg:
        a('s_waitcnt vmcnt(0)')
        stamp(a, 0, 5)
        dbg(a, 4)
        dbg(a, 5, True)
    a.label('L1_end')
    a('s_endpgm')

L_W2F = 0; L_NCNT = 24576; L_START = L_NCNT + 512; L_DPOS = 25600; L_FLAG = 27648; L_STG = 27680
STG = 768
L_SORT = L_STG + 8*STG; L_RES = 50176; K2_LDS = L_RES + 116*512
assert L_SORT + 4*(4000+64) <= L_RES
S_VOFF, S_DL, S_R = 0, 256, 384

vLANE16, vSTGW, vSTGH, vSTGR, vSTGS, vLPV, vLPH, vLPR, vQQ, vMHI, vTR, vPACK, vNX64, vHA, vNQ, vRES, vE, vNX32, vM = range(1, 20)
PS = 20
RBF = 22
WR = 24
HOFF = 30
SEL = 32; SR = 36
V = 48
H = 96
ACC = 112
D3 = 176
D2 = 208
WS = 224
VOFF = 240
TP = 248
vRL = 254
vSTLO, vSTHI = ACC, ACC + 1
K2_VGPR = 256
sSV, sH, sP4, sOUT, sRES, sSLOT, sW2F, sOVF = 28, 32, 36, 40, 44, 48, 52, 80
sF = 56
sNC, sC64, sC32, sN0, sE0, sE1, sMORE, sROUND, sT0, sT1, sT2, sNN = 60, 61, 62, 63, 84, 85, 87, 88, 89, 90, 91, 26
sEXQ = 22
sXN0, sXNN, sXE0, sXE1, sXCONT, sLAST, sSTG, sSD, sRB = 68, 69, 70, 71, 72, 73, 6, 7, 8

def chain_step(a, tab):
    a(f'v_readlane_b32 s{sT0}, v{tab}, s{sNC}')
    a(f's_lshr_b32 s{sT1}, s{sNC}, 2')
    a(f's_and_b32 s{sT1}, s{sT1}, 16')
    a(f's_lshr_b32 s{sT0}, s{sT0}, s{sT1}')
    a(f's_and_b32 s{sNC}, s{sT0}, 0xffff')

def chain_start(a, dst):
    a(f'v_readlane_b32 s{sT0}, v{vPACK}, s{sNC}')
    a(f's_lshr_b32 s{sT1}, s{sNC}, 2')
    a(f's_and_b32 s{sT1}, s{sT1}, 16')
    a(f's_lshr_b32 s{sT0}, s{sT0}, s{sT1}')
    a(f's_and_b32 s{dst}, s{sT0}, 0xffff')

loop_n = [0]
def chain_loop(a, tab, cnt):
    n = loop_n[0]; loop_n[0] += 1
    a(f's_cmp_eq_u32 s{cnt}, 0')
    a(f's_cbranch_scc1 L2_walkdone{n}')
    a.label(f'L2_walk{n}', settle=False)
    chain_step(a, tab)
    a(f's_sub_u32 s{cnt}, s{cnt}, 1')
    a(f's_cmp_lg_u32 s{cnt}, 0')
    a(f's_cbranch_scc1 L2_walk{n}')
    a.label(f'L2_walkdone{n}', settle=False)

def Rn(d, x): return f'v_cvt_pk_bf16_f32 v{d}, 0, v{x}'

def weave(main, fill):
    out = []; n = len(main); m = len(fill); k = 0
    for i, x in enumerate(main):
        out.append(x)
        want = (i + 1) * m // n
        out += fill[k:want]; k = want
    return out + fill[k:]

def emit(a, lst):
    for x in lst: a(x)

def next_entry_read(t):
    return [f's_lshl_b32 s{sT0}, s{sXE0}, 2',
            f's_add_u32 s{sT0}, s{sT0}, s{sSD}',
            f'v_add_u32 v{t}, s{sT0}, v{vSTGW}',
            f'ds_read_b32 v{vE}, v{t}']
def next_mask(t):
    return [f's_sub_u32 s{sT0}, s{sXE1}, s{sXE0}',
            f's_lshl_b32 s{sT0}, s{sT0}, 2',
            f's_add_u32 s{sT0}, s{sT0}, s{sSTG}',
            f'v_subrev_u32 v{t}, s{sT0}, v{vSTGW}',
            f'v_ashrrev_i32 v{t}, 31, v{t}']
def next_stage(t, u):
    return [f'v_bitop3_b32 v{vE}, v{vE}, v{t}, v{t} bitop3:0xf3',
            f'v_and_b32 v{t}, 0x7ffffe00, v{vE}',
            f'v_lshrrev_b32 v{u}, {9 if opt.rawpos else 6}, v{vE}',
            f'ds_write_b32 v{vSTGW}, v{t}',
            f'v_mul_u32_u24 v{u}, 6, v{u}' if opt.rawpos else f'v_and_b32 v{u}, -8, v{u}']
def off_reads(u):
    return [f'ds_read_b32 v{HOFF}, v{vHA} offset:{128*u}',
            f'ds_read_b32 v{HOFF+1}, v{vHA} offset:{128*u + 16}',
            f'ds_read_b128 v[{VOFF}:{VOFF+3}], v{vSTGR} offset:{128*u}',
            f'ds_read_b128 v[{VOFF+4}:{VOFF+7}], v{vSTGR} offset:{128*u + 16}']
def off_adds():
    return ([f'v_lshrrev_b32 v{HOFF+et}, 2, v{HOFF+et}' for et in range(2)] +
            [f'v_add_u32 v{HOFF+et}, v{HOFF+et}, v{vLPH}' for et in range(2)] +
            [f'v_add_u32 v{VOFF+jj}, v{VOFF+jj}, v{vLPV}' for jj in range(8)])
def pos_load(u): return [f'buffer_load_dwordx2 v[{PS}:{PS+1}], v{u}, s[{sP4}:{sP4+3}], 0 offen']
def h_loads():
    return [f'buffer_load_dwordx4 v[{H+et*8+ks*4}:{H+et*8+ks*4+3}], v{HOFF+et}, s[{sH}:{sH+3}], 0 offen offset:{ks*64}'
            for et in range(2) for ks in range(2)]
def v_loads(j):
    return [f'buffer_load_dwordx2 v[{V+j*16+jj*2}:{V+j*16+jj*2+1}], v{VOFF+jj}, s[{sSV}:{sSV+3}], 0 offen offset:{128*(j+1)}'
            for jj in range(8)]
def out_stores(addr):
    return [f'buffer_store_dwordx4 v[{D3+(c*2+hh)*4}:{D3+(c*2+hh)*4+3}], v{addr}, s[{sOUT}:{sOUT+3}], 0 offen offset:{c*128+hh*64} {opt.outst}'
            for c in range(4) for hh in range(2)]
def wread(step):
    p = [0, 2, 1][step // 4]; ct = step % 4
    return [f'ds_read_b128 v[{WS+(step%2)*8+ks*4}:{WS+(step%2)*8+ks*4+3}], v{vLANE16} offset:{L_W2F + ((p*4+ct)*2+ks)*1024}' for ks in range(2)]
def wf(p, u):
    return [f'v_mfma_f32_16x16x4bf16_1k v[{D3+16*et}:{D3+16*et+15}], v[{RBF}:{RBF+1}], v[{WR+2*p}:{WR+2*p+1}], 0 cbsz:2 abid:{2*u+et}' for et in range(2)]

sFI = 0
def T(a, n):
    if opt.trmain: tr(a, n)

def l2_mfma(step):
    d = D2 + (step % 2)*8; w = WS + (step % 2)*8; o = []
    for ks in range(2):
        for et in range(2):
            c = '0' if ks == 0 else f'v[{d+4*et}:{d+4*et+3}]'
            o.append(f'v_mfma_f32_16x16x32_bf16 v[{d+4*et}:{d+4*et+3}], v[{H+et*8+ks*4}:{H+et*8+ks*4+3}], v[{w+4*ks}:{w+4*ks+3}], {c}')
    return o
def l2_mul(step):
    part = step // 4; ct = step % 4; d = D2 + (step % 2)*8; o = []
    for et in range(2):
        for r in range(4):
            m = D3 + et*16 + ct*4 + r
            o.append(f'v_mul_f32 v{m if part == 2 else d+4*et+r}, v{d+4*et+r}, v{m}')
    if opt.pkc:
        o = []
        for et in range(2):
            for r in (0, 2):
                m = D3 + et*16 + ct*4 + r; x = d+4*et+r; y = m if part == 2 else x
                o.append(f'v_pk_mul_f32 v[{y}:{y+1}], v[{x}:{x+1}], v[{m}:{m+1}]')
    return o
def pbuf(step): return (TP + 4*(step % 2)) if opt.spread else D2 + (step % 2)*8
def l2_cvt(step):
    if step // 4 == 2: return []
    d = D2 + (step % 2)*8; p = pbuf(step)
    return [f'v_cvt_pk_bf16_f32 v{p+i}, v{d+2*i}, v{d+2*i+1}' for i in range(4)]
def l2_seg(step):
    part = step // 4; ct = step % 4; d = pbuf(step)
    if part == 2: return []
    if part == 0:
        acc = ACC + ct*4
        return [f'v_mfma_f32_16x16x32_bf16 v[{acc}:{acc+3}], v[{d}:{d+3}], v[{SEL}:{SEL+3}], v[{acc}:{acc+3}]']
    return [f'v_mfma_f32_16x16x32_bf16 v[{ACC+(1+j)*16+ct*4}:{ACC+(1+j)*16+ct*4+3}], v[{d}:{d+3}], v[{SR+4*j}:{SR+4*j+3}], v[{ACC+(1+j)*16+ct*4}:{ACC+(1+j)*16+ct*4+3}]' for j in range(3)]
def sel_reads(u):
    return ([f'ds_read_b128 v[{SEL}:{SEL+3}], v{vSTGS} offset:{S_DL + 64*u}'] +
            [f'ds_read_b128 v[{SR+4*j}:{SR+4*j+3}], v{vSTGS} offset:{S_R + 128*j + 64*u}' for j in range(3)])

def head(a, tag):
    first = tag == 'A'; u = 1 if tag == 'C' else 0
    if u == 0: a.label(f'L2_head_{tag}')
    vl = v_loads(0) + v_loads(1) + v_loads(2)
    assert sum(opt.vsched) == 24
    def vissue(i):
        n = opt.vsched[i]; emit(a, vl[:n]); del vl[:n]
    if u == 0:
        X = D2
        DP = TP
        a(f'v_and_b32 v{X}, 127, v{vE}')
        a(f'v_lshlrev_b32 v{X+1}, 4, v{X}')
        a(f'ds_read_b128 v[{DP}:{DP+3}], v{X+1} offset:{L_DPOS}')
        a(f'ds_write_b16 v{vSTGH}, v{X} offset:{S_DL}')
        if first:
            a(f's_lshl_b32 s{sT0}, s{sN0}, 9')
            a(f'v_add_u32 v{vRES}, s{sT0}, v{vLPR}')
            a(f's_mul_i32 s{sT0}, s{sN0}, 0x10001')
            a(f'v_add_u32 v{vNQ}, s{sT0}, v{vQQ}')
            a(f's_bfm_b32 s{sT1}, s{sNN}, 0')
            a(f's_lshl_b32 s{sT2}, s{sT1}, 16')
            a(f's_or_b32 s{sEXQ}, s{sT1}, s{sT2}')
            a(f's_mov_b32 s{sEXQ+1}, s{sEXQ}')
        else:
            a(f's_lshl_b32 s{sT0}, s{sN0}, 9')
            a(f'v_add_u32 v{vRES}, s{sT0}, v{vLPR}')
        if first:
            a(f'v_and_b32 v{X+3}, 0xff, v{vNQ}')
            a(f'v_and_b32 v{X+4}, 7, v{vNQ}')
            a(f'v_lshlrev_b32 v{X+4}, 5, v{X+4}')
            a(f'v_xor_b32 v{X+4}, v{X+4}, v{vLPH}')
            a(f'v_lshl_add_u32 v{X+3}, v{X+3}, 9, v{X+4}')
            a(f'v_add_u32 v{X+3}, {L_RES}, v{X+3}')
            for i in range(8):
                if i: a(f'v_xor_b32 v{X+4+(i&1)}, {i*64}, v{X+3}')
                a(f'ds_read_b128 v[{D3+4*i}:{D3+4*i+3}], v{X+3 if i == 0 else X+4+(i&1)}')
        a(f'v_ashrrev_i32 v{vM}, 31, v{vE}')
        T(a, 9)
        if first and sFI:
            a(f's_cmp_eq_u32 s{sFI}, 0')
            a('s_cbranch_scc1 L2_notfirst1')
            a('s_waitcnt vmcnt(4)')
            a.lines.append('L2_notfirst1:')
        a('s_waitcnt vmcnt(12)')
        T(a, 10)
        rx, ry, rz, t0, t1, t2, dd, inv = range(X, X+8)
        g0 = X + 8
        if opt.rawpos:
            a(f'v_alignbyte_b32 v{PS}, v{PS+1}, v{PS}, v{TP+5}')
            a(f'v_alignbyte_b32 v{PS+1}, v{PS+1}, v{PS+1}, v{TP+5}')
        a(f'v_lshlrev_b32 v{rx}, 16, v{PS}')
        a(f'v_and_b32 v{ry}, v{vMHI}, v{PS}')
        a(f'v_lshlrev_b32 v{rz}, 16, v{PS+1}')
        a(f's_waitcnt lgkmcnt({9 if first else 1})')
        for i in range(3): a(f'v_sub_f32 v{rx+i}, v{rx+i}, v{DP+i}')
        sc = []
        sc += [Rn(rx+i, rx+i) for i in range(3)]
        sc += [f'v_mul_f32 v{t0+i}, v{rx+i}, v{rx+i}' for i in range(3)]
        sc += [Rn(t0+i, t0+i) for i in range(3)]
        sc += [f'v_add_f32 v{t0}, v{t0}, v{t1}', f'v_add_f32 v{t0}, v{t0}, v{t2}', Rn(t0, t0),
               f'v_add_f32 v{t0}, {fl(1e-8)}, v{t0}', Rn(t0, t0), f'v_sqrt_f32 v{t0}, v{t0}', Rn(dd, t0), f'v_rcp_f32 v{inv}, v{dd}']
        sc += [f'v_mul_f32 v{g0+4}, {fl(3.141592653589793)}, v{dd}']
        sc += [f'v_mul_f32 v{g0+k}, s{sF+k}, v{dd}' for k in range(4)]
        sc += [Rn(g0+4, g0+4)] + [f'v_mul_f32 v{g0+4}, {fl(0.2)}, v{g0+4}'] + [Rn(g0+k, g0+k) for k in range(2)]
        sc += [Rn(g0+4, g0+4)] + [Rn(g0+k, g0+k) for k in range(2, 4)]
        sc += [f'v_mul_f32 v{g0+4}, 0.15915494, v{g0+4}']
        sc += [f'v_mul_f32 v{rx+i}, v{rx+i}, v{inv}' for i in range(3)]
        sc += [f'v_cos_f32 v{g0+4}, v{g0+4}']
        sc += [f'v_mul_f32 v{g0+k}, 0.15915494, v{g0+k}' for k in range(4)]
        sc += [f'v_cvt_pk_bf16_f32 v{t0}, v{rx}, v{ry}', f'v_cvt_pk_bf16_f32 v{t1}, v{rz}, v{rz}', Rn(g0+4, g0+4)]
        sc += [f'v_sin_f32 v{g0+k}, v{g0+k}' for k in range(2)]
        sc += [f'v_bitop3_b32 v{t0}, v{t0}, v{vM}, v{vM} bitop3:0x30', f'v_bitop3_b32 v{t1}, v{t1}, v{vM}, v{vM} bitop3:0x30',
               f'v_add_f32 v{g0+4}, 1.0, v{g0+4}']
        sc += [f'ds_write_b16 v{vSTGH}, v{t0} offset:{S_R}', f'ds_write_b16_d16_hi v{vSTGH}, v{t0} offset:{S_R+128}', f'ds_write_b16 v{vSTGH}, v{t1} offset:{S_R+256}']
        sc += sel_reads(0)
        sc += [f'v_sin_f32 v{g0+k}, v{g0+k}' for k in range(2, 4)]
        sc += [Rn(g0+4, g0+4), f'v_mul_f32 v{inv}, 0.5, v{inv}', f'v_mul_f32 v{inv}, v{inv}, v{g0+4}']
        sc += [f'v_mul_f32 v{g0+k}, v{g0+k}, v{inv}' for k in range(4)]
        sc += [f'v_cvt_pk_bf16_f32 v{RBF}, v{g0}, v{g0+1}', f'v_cvt_pk_bf16_f32 v{RBF+1}, v{g0+2}, v{g0+3}',
               f'v_bitop3_b32 v{RBF}, v{RBF}, v{vM}, v{vM} bitop3:0x30', f'v_bitop3_b32 v{RBF+1}, v{RBF+1}, v{vM}, v{vM} bitop3:0x30']
        fill = []
        if first:
            for c in range(4):
                for hh in range(2):
                    for ct in range(4):
                        for r in (2*hh, 2*hh+1):
                            src = D3 + (c*2 + hh)*4 + 2*(r & 1) + (ct >> 1)
                            dst = ACC + c*16 + ct*4 + r
                            fill.append(f'v_and_b32 v{dst}, v{vMHI}, v{src}' if ct & 1 else f'v_lshlrev_b32 v{dst}, 16, v{src}')
        nh = 6
        emit(a, sc[:nh])
        if first: a('s_waitcnt lgkmcnt(0)')
        emit(a, weave(sc[nh:], fill))
        emit(a, wread(0)); emit(a, wread(1))
    else:
        emit(a, wread(0)); emit(a, wread(1))
        T(a, 9)
    a(f's_mov_b32 s{sT0}, 0x00010001')
    a('s_waitcnt lgkmcnt(7)')
    for i in range(4): a(f'v_xor_b32 v{SEL+i}, v{SEL+i}, v{vNQ}')
    emit(a, wf(0, u)[:1])
    for i in range(4): a(f'v_pk_min_u16 v{SEL+i}, v{SEL+i}, s{sT0}')
    for i in range(4): a(f'v_pk_sub_u16 v{SEL+i}, v{SEL+i}, s{sT0}')
    emit(a, wf(0, u)[1:])
    a('s_waitcnt lgkmcnt(4)')
    for j in range(3):
        for i in range(4): a(f'v_and_b32 v{SR+4*j+i}, v{SR+4*j+i}, v{SEL+i}')
    for i in range(4): a(f'v_and_b32 v{SEL+i}, 0x3f803f80, v{SEL+i}')
    vissue(0)
    T(a, 11)
    if first and sFI:
        a(f's_cmp_eq_u32 s{sFI}, 0')
        a('s_cbranch_scc1 L2_notfirst2')
        a(f's_waitcnt vmcnt({opt.vsched[0]})')
        a(f's_mov_b32 s{sFI}, 0')
        a.lines.append('L2_notfirst2:')
    a(f's_waitcnt vmcnt({(8 if u == 0 else 0) + opt.vsched[0]})')
    T(a, 12)
    for step in range(12 if opt.spread else 0):
        a(f's_waitcnt lgkmcnt({2 if step < 11 else 0})')
        M = l2_mfma(step)
        if step == 0:
            emit(a, M); emit(a, wread(2)); vissue(1)
            continue
        S = l2_seg(step - 2) if step >= 2 else []
        s = step - 1; part = s // 4; ct = s % 4
        mu = l2_mul(s); cv = l2_cvt(s)
        va = mu[:4] + cv[:2] + mu[4:] + cv[2:]
        mf = M[:2] + S[:1] + M[2:] + S[1:]
        if step in (4, 8):
            last = max(i for i, x in enumerate(va) if x.startswith('v_mul'))
            emit(a, weave(mf[:4], va[:last+1])); emit(a, wf(2 if step == 4 else 1, u)[:1])
            emit(a, va[last+1:]); emit(a, mf[4:]); emit(a, wread(step + 2)); emit(a, wf(2 if step == 4 else 1, u)[1:])
        elif step in (5, 9):
            emit(a, mf[:4]); emit(a, weave(va, mf[4:])); emit(a, wread(step + 2) if step + 2 < 12 else [])
        else:
            emit(a, weave(mf, va))
            if step + 2 < 12: emit(a, wread(step + 2))
        vissue(step + 1)
    for step in range(0 if opt.spread else 12):
        a(f's_waitcnt lgkmcnt({2 if step < 11 else 0})')
        M = l2_mfma(step)
        if step == 0:
            emit(a, M); emit(a, wread(2)); vissue(1)
            continue
        m = l2_mul(step - 1)
        if opt.pkc == 2:
            emit(a, m + M)
        elif opt.pkc == 3:
            emit(a, M + m)
        elif step in (5, 9):
            h_ = len(m)//2
            emit(a, M[:2] + m[:h_] + M[2:3] + m[h_:h_+h_//2] + M[3:] + m[h_+h_//2:])
        else:
            emit(a, weave(M, m))
        if step == 4: emit(a, wf(2, u))
        if step == 8: emit(a, wf(1, u))
        emit(a, l2_cvt(step - 1))
        if step + 2 < 12: emit(a, wread(step + 2))
        emit(a, l2_seg(step - 1))
        vissue(step + 1)
    a(f's_add_u32 s{sXE0}, s{sE0}, {32*(u+1)}')
    a(f's_cmp_lt_u32 s{sXE0}, s{sE1}')
    if tag == 'A':
        a('s_cbranch_scc0 L2_newitem')
    elif tag == 'B':
        a.br('s_cbranch_scc1 L2_tail_toC')
        a.br('s_branch L2_newitem')
    else:
        a('s_cbranch_scc0 L2_newitem')
        a(f's_mov_b32 s{sXE1}, s{sE1}')
        a(f's_mov_b32 s{sXN0}, s{sN0}')
        a(f's_mov_b32 s{sXNN}, s{sNN}')
        a(f's_mov_b32 s{sXCONT}, 1')
        a(f's_mov_b32 s{sLAST}, 0')
        a.br('s_branch L2_tail_toA')

def newitem(a):
    a.label('L2_newitem', settle=False)
    a(f's_mov_b32 s{sLAST}, 1')
    chain_loop(a, vNX64, sC64)
    chain_loop(a, vNX32, sC32)
    a(f's_cmp_ge_u32 s{sNC}, {R}')
    a('s_cbranch_scc1 L2_tail_fin')
    a(f's_mov_b32 s{sXN0}, s{sNC}')
    chain_start(a, sXE0)
    chain_step(a, vNX32)
    chain_start(a, sXE1)
    a(f's_sub_u32 s{sXNN}, s{sNC}, s{sXN0}')
    a(f's_mov_b32 s{sXCONT}, 0')
    a(f's_mov_b32 s{sC32}, 7')

def tail(a, tag):
    if tag == 'toC':
        a.lines.append('L2_tail_toC:')
    else:
        a.label(f'L2_tail_{tag}', settle=False)
    def pv(n):
        j, ct = divmod(n, 4); U = D2 + ((n + 2) % 4)*8
        un, mu = [], []
        for jj in range(8):
            src = V + j*16 + jj*2 + (ct >> 1)
            un.append(f'v_and_b32 v{U+jj}, v{vMHI}, v{src}' if ct & 1 else f'v_lshlrev_b32 v{U+jj}, 16, v{src}')
            mu.append(f'v_mul_f32 v{U+jj}, v{U+jj}, v{D3 + (jj >> 2)*16 + ct*4 + (jj & 3)}')
        if opt.pk:
            mu = [f'v_pk_mul_f32 v[{U+jj}:{U+jj+1}], v[{U+jj}:{U+jj+1}], v[{D3 + (jj >> 2)*16 + ct*4 + (jj & 3)}:{D3 + (jj >> 2)*16 + ct*4 + (jj & 3) + 1}]' for jj in range(0, 8, 2)]
        cv = [f'v_cvt_pk_bf16_f32 v{U+i}, v{U+2*i}, v{U+2*i+1}' for i in range(4)]
        acc = ACC + (1+j)*16 + ct*4
        mf = f'v_mfma_f32_16x16x32_bf16 v[{acc}:{acc+3}], v[{U}:{U+3}], v[{SEL}:{SEL+3}], v[{acc}:{acc+3}]'
        return un, mu, cv, mf
    if tag == 'toA': emit(a, next_entry_read(TP) + next_mask(TP+4))
    if tag == 'toC': emit(a, off_reads(1))
    emit(a, l2_mul(11))
    prev = None
    for n in range(12):
        j, ct = divmod(n, 4)
        un, mu, cv, mf = pv(n)
        if ct == 0:
            T(a, 13 + 2*j)
            a(f's_waitcnt vmcnt({16 - 8*j})')
            T(a, 14 + 2*j)
        emit(a, un[:2])
        if prev: a(prev)
        emit(a, un[2:])
        rest = mu + cv
        if tag == 'toA' and n == 1:
            a('s_waitcnt lgkmcnt(0)')
            rest = weave(rest, next_stage(TP+4, TP+5) + off_reads(0))
        if (tag == 'toA' and n == 3) or (tag == 'toC' and n == 1):
            a('s_waitcnt lgkmcnt(0)')
            rest = weave(rest, off_adds())
        emit(a, rest)
        prev = mf
    T(a, 19)
    if tag == 'toC':
        emit(a, h_loads()[:2])
        a(prev)
        emit(a, h_loads()[2:])
        emit(a, sel_reads(1))
        return
    if tag == 'toA':
        emit(a, pos_load(TP+5))
        emit(a, h_loads())
        a(prev)
        a(f's_cmp_eq_u32 s{sLAST}, 0')
        a(f's_cbranch_scc1 L2_nopack')
    else:
        a('s_nop 1')
        a(prev)
    for c in range(4):
        for hh in range(2):
            for d in range(4):
                lo = ACC + c*16 + (2*(d & 1))*4 + 2*hh + (d >> 1)
                a(f'v_cvt_pk_bf16_f32 v{D3+(c*2+hh)*4+d}, v{lo}, v{lo+4}')
    if tag == 'toA':
        a.br('s_branch L2_store')
        a.label('L2_nopack', settle=False)
        a(f'v_mov_b32 v{vRES}, 0x40000000')
        a.label('L2_store')
    T(a, 20)
    a(f's_mov_b64 exec, s[{sEXQ}:{sEXQ+1}]')
    emit(a, out_stores(vRES))
    a('s_mov_b64 exec, -1')
    if tag == 'toA':
        a(f's_mov_b32 s{sN0}, s{sXN0}')
        a(f's_mov_b32 s{sNN}, s{sXNN}')
        a(f's_mov_b32 s{sE0}, s{sXE0}')
        a(f's_mov_b32 s{sE1}, s{sXE1}')
        a(f's_cmp_lg_u32 s{sXCONT}, 0')
        a.br('s_cbranch_scc1 L2_head_B')
        a.br('s_branch L2_head_A')

def gen_k2(a, name):
    header(a, name)
    stamp.tmp = 252; stamp.wave = 0
    a('s_cmp_ge_u32 s2, %d' % NB)
    a('s_cbranch_scc1 L2_end')
    a('s_load_dwordx2 s[4:5], s[0:1], 0')
    a('s_load_dwordx2 s[12:13], s[0:1], 32')
    a('s_load_dwordx2 s[20:21], s[0:1], 64')
    a('s_load_dwordx2 s[24:25], s[0:1], 80')
    a('v_lshrrev_b32 v40, 6, v0')
    a('v_and_b32 v41, 63, v0')
    a('v_readfirstlane_b32 s3, v40')
    a(f'v_lshlrev_b32 v{vLANE16}, 4, v41')
    a('v_lshlrev_b32 v42, 4, v0')
    a('s_waitcnt lgkmcnt(0)')
    a('s_load_dwordx2 s[14:15], s[12:13], 0')
    srd(a, sSLOT, 24, SLOT_OFF, NB*64, mul=16384)
    W = V
    a(f'buffer_load_dwordx4 v[{W}:{W+3}], v42, s[{sSLOT}:{sSLOT+3}], 0 offen')
    a(f'v_add_u32 v43, 8192, v42')
    a(f'buffer_load_dwordx4 v[{W+4}:{W+7}], v43, s[{sSLOT}:{sSLOT+3}], 0 offen')
    srd(a, sP4, 24, POS4_OFF, N*8)
    a(f's_mul_i32 s{sT0}, s2, {R*8}')
    a('v_lshlrev_b32 v43, 3, v0')
    a(f'v_add_u32 v43, s{sT0}, v43')
    a('v_cmp_gt_u32 vcc, 128, v0')
    a('v_mov_b32 v44, 0x40000000')
    a('v_cndmask_b32_e64 v43, v44, v43, vcc')
    a(f'buffer_load_dwordx2 v[46:47], v43, s[{sP4}:{sP4+3}], 0 offen')
    def zero_counters(tag):
        a('s_cmp_ge_u32 s3, 3')
        a.br(f's_cbranch_scc1 L2_nozero{tag}')
        a('v_lshlrev_b32 v40, 2, v0')
        a('v_mov_b32 v44, 0')
        a(f'v_add_u32 v42, {L_FLAG - 512}, v40')
        a(f'v_add_u32 v40, {L_NCNT}, v40')
        a('v_cmp_gt_u32 vcc, 128, v0')
        a('v_cndmask_b32_e64 v40, v42, v40, vcc')
        a('v_cmp_gt_u32 vcc, 129, v0')
        a('s_and_saveexec_b64 s[64:65], vcc')
        a('ds_write_b32 v40, v44')
        a('s_mov_b64 exec, s[64:65]')
        a.label(f'L2_nozero{tag}')
    zero_counters('a')
    srd(a, sW2F, 24, W2F_OFF, 24576 + 1536)
    a('v_lshlrev_b32 v43, 3, v41')
    a(f's_mov_b32 s{sT0}, 24576')
    for p in range(3):
        a(f'buffer_load_dwordx2 v[{WR+2*p}:{WR+2*p+1}], v43, s[{sW2F}:{sW2F+3}], s{sT0} offen offset:{p*512}')
    for i in range(3):
        a(f's_lshl_b32 s{sT0}, s3, 10')
        if i: a(f's_add_u32 s{sT0}, s{sT0}, {i*8192}')
        a(f's_mov_b32 m0, s{sT0}')
        a(f'buffer_load_dwordx4 v{vLANE16}, s[{sW2F}:{sW2F+3}], s{sT0} offen lds')
    srd(a, sRES, 4, 0, R*512, mul=R*512)
    stamp_init(a, 1)
    tr_init(a)
    tr(a, 1)
    stamp(a, 1, 0)
    dbg_init(a, 1)
    dbg(a, 6)
    dbg(a, 7, True)
    srd(a, sSV, 4, 0, N*512)
    srd(a, sH, 24, H_OFF, N*128)
    srd(a, sOUT, 20, 0, R*512, mul=R*512)
    srd(a, sOVF, 24, OVF_OFF, NB*CH*4)
    a('v_and_b32 v44, 15, v41')
    a('v_lshrrev_b32 v45, 4, v41')
    a('v_lshrrev_b32 v43, 2, v44')
    a('v_lshlrev_b32 v43, 3, v43')
    a('v_and_b32 v40, 3, v44')
    a('v_add_u32 v43, v43, v40')
    a(f's_mul_i32 s{sSTG}, s3, {STG}')
    a(f's_add_u32 s{sSTG}, s{sSTG}, {L_STG}')
    a(f's_sub_u32 s{sSD}, {L_SORT}, s{sSTG}')
    a(f'v_lshl_add_u32 v{vHA}, v43, 2, s{sSTG}')
    a('v_and_b32 v40, 1, v45')
    a('v_lshl_add_u32 v43, v40, 2, v43')
    a('v_lshrrev_b32 v40, 1, v45')
    a('v_lshl_add_u32 v43, v40, 5, v43')
    a(f'v_lshl_add_u32 v{vSTGW}, v43, 2, s{sSTG}')
    a(f'v_lshl_add_u32 v{vSTGH}, v43, 1, s{sSTG}')
    a(f'v_lshl_add_u32 v{vSTGR}, v45, 5, s{sSTG}')
    a(f'v_lshl_add_u32 v{vSTGS}, v45, 4, s{sSTG}')
    emit_Q(a, vLPV, 44, 40)
    a(f'v_lshlrev_b32 v{vLPV}, 3, v{vLPV}')
    a(f'v_lshlrev_b32 v{vLPH}, 4, v45')
    a(f'v_lshl_add_u32 v{vLPR}, v44, 9, v{vLPH}')
    a(f'v_lshl_or_b32 v{vQQ}, v44, 16, v44')
    a(f'v_mov_b32 v{vMHI}, 0xffff0000')
    a(f's_mov_b32 s{sROUND}, 0')
    a('s_waitcnt lgkmcnt(0)')
    a('s_barrier')
    a(f's_lshl_b32 s{sF}, s14, 16')
    a(f's_and_b32 s{sF+1}, s14, 0xffff0000')
    a(f's_lshl_b32 s{sF+2}, s15, 16')
    a(f's_and_b32 s{sF+3}, s15, 0xffff0000')
    a('v_and_b32 v39, 3, v0')
    a('v_lshlrev_b32 v39, 2, v39')
    a('v_subrev_u32 v39, 1, v39')
    LIM, CNT = 56, 58
    a('s_waitcnt vmcnt(8)')
    a(f'v_mov_b32_dpp v{CNT}, v{W} quad_perm:[0,0,0,0] row_mask:0xf bank_mask:0xf')
    a('s_waitcnt vmcnt(7)')
    a(f'v_mov_b32_dpp v{CNT+1}, v{W+4} quad_perm:[0,0,0,0] row_mask:0xf bank_mask:0xf')
    for h in range(2):
        a(f'v_and_b32 v{CNT+h}, 0xffff, v{CNT+h}')
        a(f'v_min_u32 v{LIM+h}, {CAP}, v{CNT+h}')
        a(f'v_subrev_u32 v{CNT+h}, {CAP}, v{CNT+h}')
    a('s_cmp_ge_u32 s3, 2')
    a.br('s_cbranch_scc1 L2_nodpos')
    a('s_waitcnt vmcnt(6)')
    a('v_lshlrev_b32 v84, 16, v46')
    a(f'v_and_b32 v85, v{vMHI}, v46')
    a('v_lshlrev_b32 v86, 16, v47')
    a('v_mov_b32 v87, 0')
    a('v_lshlrev_b32 v42, 4, v0')
    a(f'ds_write_b128 v42, v[84:87] offset:{L_DPOS}')
    a.label('L2_nodpos')
    a.label('L2_round')
    stamp(a, 1, 1)
    tr(a, 4)
    A = 60; RK = 68; T = 76
    a('v_mov_b32 v40, 1')
    for i in range(8):
        a(f'v_add_u32 v41, {i & 3}, v39')
        a(f'v_cmp_lt_u32 s[{64+2*i}:{65+2*i}], v41, v{LIM + i//4}')
        a(f'v_and_b32 v{A+i}, 127, v{W+i}')
        a(f'v_lshlrev_b32 v{A+i}, 2, v{A+i}')
        a(f'v_add_u32 v{A+i}, {L_NCNT}, v{A+i}')
    for i in range(8):
        a(f's_mov_b64 exec, s[{64+2*i}:{65+2*i}]')
        a(f'ds_add_rtn_u32 v{RK+i}, v{A+i}, v40')
    a('s_mov_b64 exec, -1')
    a(f'v_max_i32 v41, v{CNT}, v{CNT+1}')
    a('v_cmp_lt_i32 vcc, 0, v41')
    a.br('s_cbranch_vccz L2_noflag')
    a(f'v_mov_b32 v41, {L_FLAG}')
    a('ds_write_b32 v41, v40')
    a.label('L2_noflag')
    a(f'v_lshrrev_b32 v41, 9, v{vLANE16}')
    a('s_lshl_b32 s%d, s3, 1' % sT0)
    a(f'v_add_u32 v42, s{sT0}, v41')
    a('v_and_b32 v42, 7, v42')
    a('v_lshlrev_b32 v42, 5, v42')
    a(f'v_xor_b32 v42, v42, v{vLANE16}')
    for i in range(7):
        if i == 6:
            a('s_cmp_ge_u32 s3, 2')
            a.br('s_cbranch_scc1 L2_resdone')
        a(f's_lshl_b32 s{sT0}, s3, 10')
        if i: a(f's_add_u32 s{sT0}, s{sT0}, {i*8192}')
        a(f's_add_u32 m0, s{sT0}, {L_RES}')
        a(f'buffer_load_dwordx4 v42, s[{sRES}:{sRES+3}], s{sT0} offen sc1 lds')
    a.label('L2_resdone')
    a('s_waitcnt lgkmcnt(0)')
    a('s_barrier')
    stamp(a, 1, 2)
    tr(a, 5)
    a(f'v_lshrrev_b32 v41, 2, v{vLANE16}')
    a(f'v_add_u32 v41, {L_NCNT}, v41')
    a('ds_read2st64_b32 v[42:43], v41 offset1:1')
    a(f'v_mov_b32 v44, {L_FLAG}')
    a('ds_read_b32 v45, v44')
    a('s_waitcnt lgkmcnt(1)')
    a('v_lshl_or_b32 v42, v43, 16, v42')
    a('v_mov_b32 v43, v42')
    for sh in ('row_shr:1', 'row_shr:2', 'row_shr:4', 'row_shr:8'):
        a(f'v_add_u32_dpp v43, v43, v43 {sh} row_mask:0xf bank_mask:0xf')
    a('v_add_u32_dpp v43, v43, v43 row_bcast:15 row_mask:0xa bank_mask:0xf')
    a('v_add_u32_dpp v43, v43, v43 row_bcast:31 row_mask:0xc bank_mask:0xf')
    a('s_waitcnt lgkmcnt(0)')
    a(f'v_readfirstlane_b32 s{sMORE}, v45')
    a(f'v_readlane_b32 s{sT0}, v43, 63')
    a('v_sub_u32 v43, v43, v42')
    a(f's_and_b32 s{sT0}, s{sT0}, 0xffff')
    a(f'v_and_b32 v{vSTLO}, 0xffff, v43')
    a(f'v_lshrrev_b32 v{vSTHI}, 16, v43')
    a(f'v_add_u32 v{vSTHI}, s{sT0}, v{vSTHI}')
    a(f'ds_write2st64_b32 v41, v{vSTLO}, v{vSTHI} offset0:2 offset1:3')
    for i in range(8):
        a(f'ds_read_b32 v{T+i}, v{A+i} offset:512')
    a(f'v_lshl_or_b32 v{vPACK}, v{vSTHI}, 16, v{vSTLO}')
    for i in range(8):
        a('s_waitcnt lgkmcnt(7)')
        a(f'v_add_lshl_u32 v{T+i}, v{T+i}, v{RK+i}, 2')
        a(f's_mov_b64 exec, s[{64+2*i}:{65+2*i}]')
        a(f'ds_write_b32 v{T+i}, v{W+i} offset:{L_SORT}')
        a('s_mov_b64 exec, -1')
    for k, (st, d) in enumerate(((vSTLO, 32), (vSTHI, 32), (vSTLO, 64), (vSTHI, 64))):
        a(f'v_add_u32 v{T+k}, {d}, v{st}')
        a(f'v_lshlrev_b32 v{T+4+k}, 2, v{T+k}')
    a(f'v_readlane_b32 s{sT2}, v{vSTHI}, {R - 64}')
    a(f'v_lshrrev_b32 v40, 4, v{vLANE16}')
    a('v_add_u32 v41, 64, v40')
    a(f'v_mov_b32 v46, {R}')
    a(f's_mov_b32 s{sNC}, 0')
    a(f's_mov_b32 s{sC64}, s3')
    a('s_waitcnt lgkmcnt(0)')
    a('s_barrier')
    stamp(a, 1, 3)
    tr(a, 2)
    dbg(a, 8)
    dbg(a, 9, True)
    for k in (2, 3, 0, 1):
        a(f'ds_read_b32 v{T+4+k}, v{T+4+k} offset:{L_SORT}')
    for k in range(4):
        a(f'v_cmp_gt_u32 s[{64+2*k}:{65+2*k}], s{sT2}, v{T+k}')
    a('v_add_u32 v42, 1, v40')
    a('v_add_u32 v43, 16, v40')
    a('v_add_u32 v44, 1, v41')
    a('v_add_u32 v45, 16, v41')
    for k in (2, 3, 0, 1):
        r = T + 4 + k
        if k in (2, 0): a(f's_waitcnt lgkmcnt({2 if k == 2 else 0})')
        a(f'v_and_b32 v{r}, 127, v{r}')
        a(f'v_cndmask_b32_e64 v{r}, v46, v{r}, s[{64+2*k}:{65+2*k}]')
        a(f'v_med3_u32 v{r}, v{r}, v{42 + 2*(k & 1)}, v{43 + 2*(k & 1)}')
        a(f'v_min_u32 v{r}, v46, v{r}')
        if k == 3: a(f'v_lshl_or_b32 v{vNX64}, v{T+7}, 16, v{T+6}')
    a(f'v_lshl_or_b32 v{vNX32}, v{T+5}, 16, v{T+4}')
    chain_loop(a, vNX64, sC64)
    a(f's_cmp_lt_u32 s{sNC}, {R}')
    a.br('s_cbranch_scc1 L2_haveitem')
    a('s_waitcnt vmcnt(0)')
    a('s_barrier')
    a.br('s_branch L2_rounddone')
    a.label('L2_haveitem')
    if opt.prio: a('s_setprio 3')
    a(f's_mov_b32 s{sN0}, s{sNC}')
    chain_start(a, sE0)
    chain_step(a, vNX64)
    chain_start(a, sE1)
    a(f's_sub_u32 s{sNN}, s{sNC}, s{sN0}')
    a(f's_mov_b32 s{sXE0}, s{sE0}')
    a(f's_mov_b32 s{sXE1}, s{sE1}')
    emit(a, next_entry_read(TP))
    emit(a, next_mask(TP+4))
    a(f's_sub_u32 s{sC64}, 7, s3')
    a(f's_mov_b32 s{sC32}, s3')
    a('s_waitcnt lgkmcnt(0)')
    emit(a, next_stage(TP+4, TP+5))
    emit(a, off_reads(0))
    emit(a, pos_load(TP+5))
    a('s_waitcnt lgkmcnt(0)')
    emit(a, off_adds())
    emit(a, h_loads())
    a('s_waitcnt vmcnt(5)')
    a('s_barrier')
    a(f'v_mov_b32 v{vRES}, 0x40000000')
    emit(a, out_stores(vRES))
    if opt.prio: a('s_setprio 0')
    if opt.prio2 == 1:
        a('s_cmp_lt_u32 s3, 4')
        a('s_cbranch_scc1 L2_noprio')
        a('s_setprio 1')
        a.label('L2_noprio', settle=False)
    tr(a, 3)
    a.br('s_branch L2_head_A')
    head(a, 'B')
    head(a, 'A')
    tail(a, 'toC')
    head(a, 'C')
    newitem(a)
    tail(a, 'toA')
    tail(a, 'fin')
    a.label('L2_rounddone')
    tr(a, 30)
    stamp(a, 1, 4)
    a(f's_cmp_eq_u32 s{sMORE}, 0')
    a.br('s_cbranch_scc1 L2_fin')
    a('s_waitcnt vmcnt(0) lgkmcnt(0)')
    a('s_barrier')
    zero_counters('b')
    srd(a, sRES, 20, 0, R*512, mul=R*512)
    a('v_lshrrev_b32 v40, 2, v0')
    a('v_lshlrev_b32 v41, 6, v40')
    a(f'buffer_load_dword v42, v41, s[{sSLOT}:{sSLOT+3}], 0 offen')
    a('v_add_u32 v41, 8192, v41')
    a(f'buffer_load_dword v43, v41, s[{sSLOT}:{sSLOT+3}], 0 offen')
    a('v_and_b32 v39, 3, v0')
    a('v_lshlrev_b32 v39, 2, v39')
    a(f's_lshl_b32 s{sT0}, s{sROUND}, 4')
    a(f's_add_u32 s{sT1}, s{sT0}, {CAP}')
    a(f's_add_u32 s{sROUND}, s{sROUND}, 1')
    a(f'v_mul_u32_u24 v40, {CH*4}, v40')
    a('v_lshl_add_u32 v40, v39, 2, v40')
    a(f's_lshl_b32 s{sT0}, s{sT0}, 2')
    a(f'v_add_u32 v40, s{sT0}, v40')
    a('s_waitcnt vmcnt(0)')
    for h in range(2):
        a(f'v_lshrrev_b32 v44, 16, v{42+h}')
        a(f'v_lshl_add_u32 v44, v44, 2, v40')
        if h: a(f'v_add_u32 v44, {128*CH*4}, v44')
        a(f'buffer_load_dwordx4 v[{W+4*h}:{W+4*h+3}], v44, s[{sOVF}:{sOVF+3}], 0 offen')
        a(f'v_and_b32 v{CNT+h}, 0xffff, v{42+h}')
        a(f'v_subrev_u32 v{CNT+h}, s{sT1}, v{CNT+h}')
        a(f'v_med3_i32 v{LIM+h}, v{CNT+h}, 0, 16')
        a(f'v_subrev_u32 v{CNT+h}, 16, v{CNT+h}')
    a('s_waitcnt vmcnt(0) lgkmcnt(0)')
    a('s_barrier')
    a.br('s_branch L2_round')
    a.label('L2_fin')
    tr_dump(a)
    if opt.ts or opt.dbg:
        a('s_waitcnt vmcnt(0)')
        stamp(a, 1, 5)
        dbg(a, 10)
        dbg(a, 11, True)
    a.label('L2_end')
    a('s_endpgm')

def build():
    src = open('gather_scatter__molecular_angular_painn__graph.s.ref').read().split('\n')
    head = []
    for ln in src:
        if not ln.startswith(';'): break
        if '@launch' in ln or 'Override launch' in ln or 'grid=ceil' in ln: continue
        head.append(ln)
    k1, k2 = 'painn_bin_kernel', 'painn_msg_kernel'
    head.append(f'; @launch kernel={k1} grid=({NB},1,1) block=(1024,1,1) lds={K1_LDS}')
    head.append(f'; @launch kernel={k2} grid=({NB},1,1) block=(512,1,1) lds={K2_LDS}')
    a = Asm()
    a.raw('.amdgcn_target "amdgcn-amd-amdhsa--gfx950"\n.text')
    gen_k1(a, k1)
    gen_k2(a, k2)
    out = '\n'.join(head) + '\n' + a.text() + '.section .rodata,"a"\n' + descriptor(k1, 128) + descriptor(k2, K2_VGPR)
    return out

if __name__ == '__main__':
    outp = sys.argv[1]
    for kv in sys.argv[2:]:
        k, val = kv.split('=')
        setattr(opt, k, type(getattr(opt, k))(eval(val)))
    open(outp, 'w').write(build())
```

```python
import sys
from asmlib import Asm
import gen4 as g
from gen4 import *

NAME = 'gather_scatter__molecular_angular_painn__graph_kernel'
SS = 16512
EPOCH_OFF = SLOT_OFF + 250*SS
L_WRR = 125952
L_STAGE = 129024
L_W2R = 101376
opt.ng0 = 2; opt.hprio = 2; opt.rawpos = True; opt.pfres = 0; opt.fine = False; opt.tr0 = False; opt.hsc = 'sc1'; opt.rt = False; opt.spin = 16; opt.pk = True; opt.sleep = 2; opt.res_when = 'pre'; opt.prew = True; opt.pfw = True; opt.pollmask = True; opt.dumpsc = 'sc1'
sNB = 8
sEP = 100
sFI = 86
g.sFI = sFI
pLDS, pOFA, pOFB, pME, pM0, pT0, pPA, pPB, pN0, pNE, pWA, pWD, pWR, pHC, pHS = range(172, 187)
pRS = 188
sWRR = 12
M_ENT = 0x00fffe7f; M_HDR = 0x00ffffff

def tr(a, tag):
    if not opt.tr: return
    a('s_memrealtime s[92:93]' if opt.rt else 's_memtime s[92:93]')
    a('s_mov_b32 m0, s27')
    a('s_add_u32 s27, s27, 1')
    a('s_waitcnt lgkmcnt(0)')
    a('s_lshl_b32 s92, s92, 6')
    a(f's_or_b32 s92, s92, {tag}')
    a('v_writelane_b32 v11, s92, m0')
g.tr = tr

def h_loads():
    return [f'buffer_load_dwordx4 v[{H+et*8+ks*4}:{H+et*8+ks*4+3}], v{HOFF+et}, s[{sH}:{sH+3}], 0 offen offset:{ks*64} {opt.hsc}'
            for et in range(2) for ks in range(2)]
def pos_load(u): return [f'v_and_b32 v{u-1}, -4, v{u}', f'buffer_load_dwordx2 v[{PS}:{PS+1}], v{u-1}, s[{sP4}:{sP4+3}], 0 offen']
g.h_loads = h_loads; g.pos_load = pos_load


def rare_paths(a):
    RK1, BINC, ENT = 136, 80, 96
    a.label('L1_hdr_ovf')
    a('s_mov_b64 exec, vcc')
    a(f'v_subrev_u32 v45, {CAP}, v42')
    a(f'v_mov_b32 v46, {K1_CNT + 1024}')
    a('ds_add_rtn_u32 v43, v46, v45')
    a('s_waitcnt lgkmcnt(0)')
    a(f'ds_write_b32 v{pHC}, v43 offset:{K1_OVB - K1_CNT}')
    a('s_mov_b64 exec, -1')
    a.br('s_branch L1_hdr_back')
    a.label('L1_ovf')
    srd(a, 88, 24, OVF_OFF, CH*4, mul=CH*4)
    for i in range(7):
        a('s_mov_b64 exec, -1')
        a(f'v_cmp_le_u32 vcc, {CAP}, v{RK1+i}')
        a(f's_and_b64 exec, vcc, s[{64+2*i}:{65+2*i}]')
        a.br(f's_cbranch_execz L1_ovf{i}')
        a(f'ds_read_b32 v40, v{BINC+i} offset:{K1_OVB - K1_CNT}')
        a('s_waitcnt lgkmcnt(0)')
        a(f'v_add_u32 v40, v40, v{RK1+i}')
        a(f'v_subrev_u32 v40, {CAP}, v40')
        a('v_lshlrev_b32 v40, 2, v40')
        a(f'buffer_store_dword v{ENT+i}, v40, s[88:91], 0 offen sc1')
        a.label(f'L1_ovf{i}')
    a('s_mov_b64 exec, -1')
    a('s_waitcnt vmcnt(0)')
    a('s_barrier')
    a(f's_mov_b32 s{sROUND}, 0')
    a.br('s_branch L1_noovf')

def gen(a):
    header(a, NAME)
    a('s_cmp_ge_u32 s2, %d' % NB)
    a('s_cbranch_scc1 L_end')
    a('s_load_dwordx8 s[4:11], s[0:1], 0')
    a('s_load_dwordx8 s[12:19], s[0:1], 32')
    a('s_load_dwordx2 s[20:21], s[0:1], 64')
    a('s_load_dwordx2 s[24:25], s[0:1], 80')
    a('v_lshrrev_b32 v40, 6, v0')
    a('v_and_b32 v41, 63, v0')
    a('v_readfirstlane_b32 s3, v40')
    a(f'v_lshlrev_b32 v{vLANE16}, 4, v41')
    a('v_lshlrev_b32 v42, 4, v0')
    a('v_and_b32 v44, 15, v41')
    a('v_lshrrev_b32 v45, 4, v41')
    a(f'v_lshlrev_b32 v{vLPH}, 4, v45')
    a('s_and_b32 s60, s3, 3')
    a('s_lshl_b32 s60, s60, 4')
    a('v_add_u32 v46, s60, v44')
    a(f'v_lshl_add_u32 v64, v46, 9, v{vLPH}')
    a(f'v_lshl_add_u32 v65, v46, 7, v{vLPH}')
    a('v_lshrrev_b32 v43, 2, v42')
    a('s_lshl_b32 s61, s3, 10')
    a(f's_add_u32 m0, s61, {K1_W1}')
    a('s_waitcnt lgkmcnt(0)')
    if opt.tr0:
        tr_init(a); tr(a, 48)
        a('s_lshl_b32 s61, s3, 10')
        a(f's_add_u32 m0, s61, {K1_W1}')
    srd(a, 72, 14, 0, 8192)
    a(f'buffer_load_dwordx4 v{vLANE16}, s[72:75], s61 offen lds')
    srd(a, sRES, 4, 0, R*512, mul=R*512)
    S = 68
    a('s_cmp_lt_u32 s3, 4')
    a('s_cbranch_scc1 L1_nos')
    a(f'buffer_load_dwordx4 v[{S}:{S+3}], v64, s[{sRES}:{sRES+3}], 0 offen')
    a(f'buffer_load_dwordx4 v[{S+4}:{S+7}], v64, s[{sRES}:{sRES+3}], 0 offen offset:64')
    a(f'v_add_u32 v64, {64*512}, v64')
    a(f'buffer_load_dwordx4 v[{S+8}:{S+11}], v64, s[{sRES}:{sRES+3}], 0 offen')
    a(f'buffer_load_dwordx4 v[{S+12}:{S+15}], v64, s[{sRES}:{sRES+3}], 0 offen offset:64')
    a.label('L1_nos', settle=False)
    SRC, DST = 48, 56
    srd(a, 64, 8, 0, CH*4, mul=CH*4)
    srd(a, 68, 10, 0, CH*4, mul=CH*4)
    nt = 'nt' if opt.nt_edges else ''
    a('v_lshrrev_b32 v47, 1, v42')
    a('v_add_u32 v47, 8192, v47')
    a(f'buffer_load_dwordx4 v[{SRC}:{SRC+3}], v42, s[64:67], 0 offen {nt}')
    a(f'buffer_load_dwordx4 v[{DST}:{DST+3}], v42, s[68:71], 0 offen {nt}')
    a(f'buffer_load_dwordx2 v[{SRC+4}:{SRC+5}], v47, s[64:67], 0 offen {nt}')
    a(f'buffer_load_dwordx2 v[{DST+4}:{DST+5}], v47, s[68:71], 0 offen {nt}')
    a(f'v_add_u32 v47, {12288 - 512}, v43')
    a('s_sub_u32 s60, s3, 2')
    a('s_cmp_lt_u32 s60, 2')
    a('s_cselect_b32 s62, 0, 0x40000000')
    a('v_add_u32 v47, s62, v47')
    a(f'buffer_load_dword v{SRC+6}, v47, s[64:67], 0 offen {nt}')
    a(f'buffer_load_dword v{DST+6}, v47, s[68:71], 0 offen {nt}')
    a(f's_add_u32 s62, s24, {EPOCH_OFF}')
    a('s_addc_u32 s63, s25, 0')
    a(f's_load_dword s{sEP}, s[62:63], 0')
    a(f's_load_dwordx2 s[{sF}:{sF+1}], s[12:13], 0')
    srd(a, 72, 6, 0, N*6)
    srd(a, sP4, 6, 0, N*6)
    a('s_lshr_b32 s63, s2, 3')
    def group():
        a('s_sub_u32 s61, s60, 37')
        a('s_cmp_ge_u32 s60, 37')
        a('s_cselect_b32 s60, s61, s60')
        a('s_lshl_b32 s61, s60, 12')
        a('s_mov_b32 m0, s61')
        a(f's_add_u32 s60, s60, {group.step}')
        for k in range(4):
            a(f'buffer_load_dwordx4 v{vLANE16}, s[72:75], s61 offen offset:{1024*k} lds')
    NG = opt.ng0
    a('s_add_u32 s60, s63, s3')
    group.step = 8
    for i in range(NG): group()
    if not opt.tr0: tr_init(a)
    tr(a, 1)
    a('v_mov_b32 v40, 0')
    a(f'v_add_u32 v47, {K1_CNT}, v43')
    a('s_cmp_ge_u32 s3, 5')
    a('s_cbranch_scc1 L1_nozero')
    a('ds_write_b32 v47, v40')
    a.label('L1_nozero', settle=False)
    a(f's_waitcnt vmcnt({6 + 4*NG}) lgkmcnt(0)')
    a('s_barrier')
    tr(a, 2)
    a('s_cmp_ge_u32 s3, 4')
    a('s_cbranch_scc1 L1_hpath')
    a('s_add_u32 s60, s63, s3')
    a(f's_add_u32 s60, s60, {8*NG}')
    a('s_sub_u32 s61, s60, 37')
    a('s_cmp_ge_u32 s60, 37')
    a('s_cselect_b32 s60, s61, s60')
    group.step = 4
    rest = 37 - 8*NG
    for i in range((rest + 3)//4):
        if 4*i + 3 >= rest:
            a(f's_cmp_ge_u32 s3, {rest - 4*i}')
            a('s_cbranch_scc1 L1_tabdone')
        group()
    a.label('L1_tabdone', settle=False)
    a(f's_waitcnt vmcnt({4*NG + 4*(rest//4)})')
    a('s_branch L1_consts')
    a.label('L1_hpath', settle=False)
    if opt.hprio: a(f's_setprio {opt.hprio}')
    srd(a, 76, 24, H_OFF, R*128, mul=R*128)
    a('v_lshrrev_b32 v66, 2, v44')
    a('v_lshl_add_u32 v66, v45, 3, v66')
    a('v_and_b32 v67, 3, v44')
    a('v_lshlrev_b32 v67, 3, v67')
    a('v_lshl_add_u32 v66, v66, 7, v67')
    a(f'v_add_u32 v66, {K1_W1}, v66')
    FR = 100
    for ht in range(4):
        for ks in range(2):
            r = FR + (ht*2+ks)*4
            if ht == 3 and ks == 0: a('s_waitcnt lgkmcnt(4)')
            for hf in range(2):
                a(f'ds_read_b64_tr_b16 v[{r+2*hf}:{r+2*hf+1}], v66 offset:{ks*4096 + ht*32 + hf*512}')
    D = 132; O = 148; Tt = 164
    a('s_waitcnt lgkmcnt(0)')
    for t in range(2):
        if t == 1:
            a('s_cmp_eq_u32 s3, 7')
            a.br('s_cbranch_scc1 L1_hdone')
        for ht in range(4):
            a(f'v_mfma_f32_16x16x32_bf16 v[{D+4*ht}:{D+4*ht+3}], v[{FR+ht*8}:{FR+ht*8+3}], v[{S+8*t}:{S+8*t+3}], 0')
            a(f'v_mfma_f32_16x16x32_bf16 v[{D+4*ht}:{D+4*ht+3}], v[{FR+ht*8+4}:{FR+ht*8+7}], v[{S+8*t+4}:{S+8*t+7}], v[{D+4*ht}:{D+4*ht+3}]')
        for grp in range(4):
            for i in range(4): a(f'v_cvt_pk_bf16_f32 v{D+4*grp+i}, 0, v{D+4*grp+i}')
            for i in range(4): a(f'v_mul_f32 v{Tt+i}, {fl(-1.4426950408889634)}, v{D+4*grp+i}')
            for i in range(4): a(f'v_exp_f32 v{Tt+i}, v{Tt+i}')
            for i in range(4): a(f'v_add_f32 v{Tt+i}, 1.0, v{Tt+i}')
            for i in range(4): a(f'v_rcp_f32 v{Tt+i}, v{Tt+i}')
            for i in range(4): a(f'v_mul_f32 v{Tt+i}, v{Tt+i}, v{D+4*grp+i}')
            a(f'v_cvt_pk_bf16_f32 v{O+8*t+2*grp}, v{Tt}, v{Tt+1}')
            a(f'v_cvt_pk_bf16_f32 v{O+8*t+2*grp+1}, v{Tt+2}, v{Tt+3}')
        if t == 0:
            O2 = O
        else:
            pass
    a.label('L1_hdone')
    a(f'buffer_store_dwordx4 v[{O}:{O+3}], v65, s[76:79], 0 offen sc1')
    a(f'buffer_store_dwordx4 v[{O+4}:{O+7}], v65, s[76:79], 0 offen offset:64 sc1')
    a(f'v_add_u32 v65, {64*128}, v65')
    a(f'buffer_store_dwordx4 v[{O+8}:{O+11}], v65, s[76:79], 0 offen sc1')
    a(f'buffer_store_dwordx4 v[{O+12}:{O+15}], v65, s[76:79], 0 offen offset:64 sc1')
    a(f's_waitcnt vmcnt({4*NG + 4})')
    a.label('L1_consts')
    a('s_waitcnt lgkmcnt(0)')
    a(f's_and_b32 s{sF+3}, s{sF+1}, 0xffff0000')
    a(f's_lshl_b32 s{sF+2}, s{sF+1}, 16')
    a(f's_and_b32 s{sF+1}, s{sF}, 0xffff0000')
    a(f's_lshl_b32 s{sF}, s{sF}, 16')
    a(f's_add_u32 s{sEP}, s{sEP}, 1')
    for j in (1, 2, 3):
        a(f's_lshr_b32 s60, s{sEP}, {10*(j-1)}')
        a('s_lshl_b32 s61, s60, 24')
        a('s_lshr_b32 s60, s60, 1')
        a('s_and_b32 s60, s60, 0x180')
        a(f's_or_b32 s{sNB+j}, s60, s61')
    a(f's_xor_b32 s{sNB}, s{sNB+1}, 0xff000180')
    srd(a, sSV, 4, 0, N*512)
    srd(a, sH, 24, H_OFF, N*128)
    srd(a, sOUT, 20, 0, R*512, mul=R*512)
    a('s_and_b32 s60, s2, 0xf0')
    a('s_and_b32 s61, s2, 7')
    a('s_lshl_b32 s61, s61, 1')
    a('s_or_b32 s60, s60, s61')
    a('s_bfe_u32 s61, s2, 0x10003')
    a('s_or_b32 s60, s60, s61')
    a('s_lshl_b32 s60, s60, 6')
    a(f's_add_u32 s60, s60, {SLOT_OFF}')
    a(f's_add_u32 s{sSLOT}, s24, s60')
    a(f's_addc_u32 s{sSLOT+1}, s25, 0')
    a(f's_mov_b32 s{sSLOT+2}, {(NB-1)*SS + 64}')
    a(f's_mov_b32 s{sSLOT+3}, 0x20000')
    srd(a, sW2F, 16, 0, 64*192*2)
    srd(a, sOVF, 24, OVF_OFF, NB*CH*4)
    a('v_lshrrev_b32 v43, 2, v44')
    a('v_lshlrev_b32 v43, 3, v43')
    a('v_and_b32 v40, 3, v44')
    a('v_add_u32 v43, v43, v40')
    a(f's_mul_i32 s{sSTG}, s3, {STG}')
    a(f's_add_u32 s{sSTG}, s{sSTG}, {L_STG}')
    a(f's_sub_u32 s{sSD}, {L_SORT}, s{sSTG}')
    a(f'v_lshl_add_u32 v{vHA}, v43, 2, s{sSTG}')
    a('v_and_b32 v40, 1, v45')
    a('v_lshl_add_u32 v43, v40, 2, v43')
    a('v_lshrrev_b32 v40, 1, v45')
    a('v_lshl_add_u32 v43, v40, 5, v43')
    a(f'v_lshl_add_u32 v{vSTGW}, v43, 2, s{sSTG}')
    a(f'v_lshl_add_u32 v{vSTGH}, v43, 1, s{sSTG}')
    a(f'v_lshl_add_u32 v{vSTGR}, v45, 5, s{sSTG}')
    a(f'v_lshl_add_u32 v{vSTGS}, v45, 4, s{sSTG}')
    emit_Q(a, vLPV, 44, 40)
    a(f'v_lshlrev_b32 v{vLPV}, 3, v{vLPV}')
    a(f'v_lshl_add_u32 v{vLPR}, v44, 9, v{vLPH}')
    a(f'v_lshl_or_b32 v{vQQ}, v44, 16, v44')
    a(f'v_mov_b32 v{vMHI}, 0xffff0000')
    a(f's_mov_b32 s{sROUND}, 0')
    a('v_lshrrev_b32 v43, 2, v0')
    a('v_and_b32 v40, 0xf0, v43')
    a('v_bfe_u32 v46, v43, 1, 3')
    a('v_or_b32 v40, v40, v46')
    a('v_and_b32 v46, 1, v43')
    a('v_lshl_or_b32 v40, v46, 3, v40')
    a('v_and_b32 v46, 3, v0')
    a(f'v_lshlrev_b32 v{pPA}, 4, v46')
    a('v_mul_u32_u24 v40, 80, v40')
    a(f'v_add_u32 v40, v40, v{pPA}')
    a(f'v_add_u32 v{pLDS}, {L_STAGE}, v40')
    a('v_and_b32 v40, 0xff, v0')
    a(f'v_lshlrev_b32 v{pHC}, 2, v40')
    a(f'v_add_u32 v{pHC}, {K1_CNT}, v{pHC}')
    a(f'v_mul_u32_u24 v{pHS}, 80, v40')
    a(f'v_add_u32 v{pHS}, {L_STAGE}, v{pHS}')
    srd(a, sWRR, 18, 0, 4*192*2)
    a(f'v_lshrrev_b32 v40, 9, v{vLANE16}')
    for k in range(4):
        a(f'v_add_u32 v{pRS+k}, {2*k}, v40')
        a(f'v_lshlrev_b32 v{pRS+k}, 5, v{pRS+k}')
        a(f'v_xor_b32 v{pRS+k}, v{pRS+k}, v{vLANE16}')
    a(f'v_lshlrev_b32 v{pOFA}, 4, v0')
    a(f'v_add_u32 v{pOFB}, 8192, v{pOFA}')
    a(f'v_mov_b32 v{pME}, {M_ENT}')
    a(f'v_mov_b32 v{pM0}, {M_HDR}')
    a('v_cmp_eq_u32 vcc, 0, v46')
    a(f'v_mul_u32_u24 v43, {SS}, v43')
    a(f'v_add_u32 v{pPA}, v{pPA}, v43')
    a(f'v_cndmask_b32_e64 v{pM0}, v{pME}, v{pM0}, vcc')
    a(f'v_add_u32 v{pPB}, {128*SS}, v{pPA}')
    a(f'v_not_b32 v{pN0}, v{pM0}')
    a(f'v_not_b32 v{pNE}, v{pME}')
    a(f'v_and_b32 v{pT0}, s{sNB}, v{pN0}')
    a('s_and_b32 s60, s3, 1')
    a(f's_mul_i32 s60, s60, {32*384}')
    a('s_bfe_u32 s61, s3, 0x20001')
    a('s_lshl_b32 s61, s61, 1')
    a('s_add_u32 s60, s60, s61')
    a(f's_add_u32 s60, s60, {L_W2R}')
    a(f'v_mul_u32_u24 v{pWA}, 96, v{vLPH}')
    a(f'v_add3_u32 v{pWA}, v{pWA}, v{vLPV}, s60')
    a('s_lshl_b32 s60, s3, 10')
    a(f'v_add_u32 v{pWD}, s60, v{vLANE16}')
    a(f'v_lshrrev_b32 v{pWR}, 3, v{vLPH}')
    a(f'v_add3_u32 v{pWR}, v{pWR}, v{vLPV}, {L_WRR})' if False else f'v_add_u32 v{pWR}, v{pWR}, v{vLPV}')
    a(f'v_add_u32 v{pWR}, {L_WRR}, v{pWR}')
    AS, AD = 64, 72
    BINC, BINS, ENT = 80, 88, 96
    P = 104
    a(f's_mov_b32 s60, {fl(opt.thr)}')
    a('s_mov_b32 s61, -100')
    a(f's_mov_b32 s62, {K1_CNT}')
    a(f's_mov_b32 s63, {L_STAGE}')
    def prep(i):
        a(f'v_mul_u32_u24 v40, 5243, v{DST+i}')
        a(f'v_mul_u32_u24 v{AS+i}, 6, v{SRC+i}')
        a(f'v_lshrrev_b32 v40, 19, v40')
        a(f'v_mul_u32_u24 v{AD+i}, 6, v{DST+i}')
        a(f'v_mad_i32_i24 v41, v40, s61, v{DST+i}')
        a(f'v_lshl_add_u32 v{BINC+i}, v40, 2, s62')
        a(f'v_lshl_or_b32 v{ENT+i}, v{SRC+i}, 9, v41')
        a(f'v_mad_u32_u24 v{BINS+i}, v40, v47, s63')
        a(f'v_and_b32 v{SRC+i}, -4, v{AS+i}')
        a(f'v_and_b32 v{DST+i}, -4, v{AD+i}')
    a('v_mov_b32 v47, 80')
    RK1 = 136
    for i in range(7): prep(i)
    a(f's_mul_i32 s84, s2, {R}')
    a(f'v_lshrrev_b32 v41, 4, v{vLANE16}')
    a('v_add_u32 v132, s84, v41')
    a('v_add_u32 v133, 64, v132')
    for h in range(2):
        a(f'v_mul_u32_u24 v{132+h}, 6, v{132+h}')
        a(f'v_and_b32 v{134+h}, -4, v{132+h}')
    a('v_mov_b32 v46, 1')
    if opt.hprio: a('s_setprio 0')
    tr(a, 3)
    a('s_cmp_ge_u32 s3, 4')
    a('s_cbranch_scc1 L1_b1')
    a('s_waitcnt vmcnt(0)')
    a.label('L1_b1', settle=False)
    a('s_waitcnt vmcnt(4) lgkmcnt(0)')
    a('s_barrier')
    tr(a, 4)
    def reads(i):
        a(f'ds_read2_b32 v[{P+4*i}:{P+4*i+1}], v{SRC+i} offset1:1')
        a(f'ds_read2_b32 v[{P+4*i+2}:{P+4*i+3}], v{DST+i} offset1:1')
    def test(i):
        p, q = P+4*i, P+4*i+2
        a(f'v_alignbyte_b32 v40, v{p+1}, v{p}, v{AS+i}')
        a(f'v_alignbyte_b32 v41, v{p+1}, v{p+1}, v{AS+i}')
        a(f'v_alignbyte_b32 v42, v{q+1}, v{q}, v{AD+i}')
        a(f'v_alignbyte_b32 v43, v{q+1}, v{q+1}, v{AD+i}')
        a(f'v_lshlrev_b32 v{p}, 16, v40')
        a(f'v_lshlrev_b32 v{q}, 16, v42')
        a(f'v_and_b32 v40, v{vMHI}, v40')
        a(f'v_and_b32 v42, v{vMHI}, v42')
        a(f'v_lshlrev_b32 v41, 16, v41')
        a(f'v_lshlrev_b32 v43, 16, v43')
        a(f'v_sub_f32 v{p}, v{p}, v{q}')
        a(f'v_sub_f32 v40, v40, v42')
        a(f'v_sub_f32 v41, v41, v43')
        a(f'v_mul_f32 v{p}, v{p}, v{p}')
        a(f'v_fmac_f32 v{p}, v40, v40')
        a(f'v_fmac_f32 v{p}, v41, v41')
        a(f'v_cmp_ngt_f32 s[{64+2*i}:{65+2*i}], v{p}, s60')
    def rank(i):
        a(f's_mov_b64 exec, s[{64+2*i}:{65+2*i}]')
        a(f'ds_add_rtn_u32 v{RK1+i}, v{BINC+i}, v46')
        a('s_mov_b64 exec, -1')
    for i in range(6): reads(i)
    if opt.pfres:
        a(f's_lshl_b32 s84, s3, 12')
        for k in range(4):
            a(f'buffer_load_dwordx4 v[164:167], v{vLANE16}, s[{sRES}:{sRES+3}], s84 offen offset:{1024*k}')
        if opt.pfres > 1:
            a('s_add_u32 s84, s84, 32768')
            for k in range(4):
                a(f'buffer_load_dwordx4 v[164:167], v{vLANE16}, s[{sRES}:{sRES+3}], s84 offen offset:{1024*k}')
    if opt.prew or opt.pfw:
        a('s_sub_u32 s84, s3, 4')
        a('s_cmp_ge_u32 s84, 3')
        a('s_cbranch_scc1 L1_notouch')
    if opt.pfw:
        a('s_lshr_b32 s85, s2, 3')
        a('s_mul_i32 s85, s85, 768')
        a('s_lshl_b32 s86, s84, 8')
        a('s_add_u32 s85, s85, s86')
        a(f'v_and_b32 v47, 0xf0, v{vLANE16}')
        a('v_add_u32 v47, s85, v47')
        a(f'buffer_load_dwordx4 v[168:171], v47, s[{sW2F}:{sW2F+3}], 0 offen')
    if opt.prew:
        srd(a, 88, 24, SLOT_OFF, 16384, mul=SS)
        a(f'v_subrev_u32 v47, 4096, v{pOFA}')
        for k in range(6):
            a('buffer_load_dwordx4 v[168:171], v47, s[88:91], 0 offen')
            if k < 5: a('v_add_u32 v47, 3072, v47')
        a(f's_mov_b32 s{sROUND}, 0')
    if opt.prew or opt.pfw:
        a.label('L1_notouch', settle=False)
    a('s_mov_b64 s[76:77], 0')
    a('s_sub_u32 s84, s3, 2')
    a('s_cmp_lt_u32 s84, 2')
    a('s_cbranch_scc0 L1_six')
    a('s_waitcnt lgkmcnt(10)')
    test(0)
    reads(6)
    a('s_waitcnt lgkmcnt(0)')
    test(6)
    a.br('s_branch L1_rest')
    a.label('L1_six')
    a('s_cmp_lg_u32 s3, 7')
    a('s_cbranch_scc1 L1_notw7')
    a('s_waitcnt lgkmcnt(8)')
    for h in range(2):
        a(f'ds_read2_b32 v[{152+2*h}:{153+2*h}], v{134+h} offset1:1')
    a('s_waitcnt lgkmcnt(0)')
    for h in range(2):
        a(f'v_alignbyte_b32 v{156+2*h}, v{153+2*h}, v{152+2*h}, v{132+h}')
        a(f'v_alignbyte_b32 v{157+2*h}, v{153+2*h}, v{153+2*h}, v{132+h}')
        a(f'v_lshlrev_b32 v{144+4*h}, 16, v{156+2*h}')
        a(f'v_and_b32 v{145+4*h}, v{vMHI}, v{156+2*h}')
        a(f'v_lshlrev_b32 v{146+4*h}, 16, v{157+2*h}')
        a(f'v_mov_b32 v{147+4*h}, 0')
    a.label('L1_notw7')
    a('s_waitcnt lgkmcnt(10)')
    test(0)
    a.label('L1_rest')
    for i in range(1, 6):
        a(f's_waitcnt lgkmcnt({2*(5-i)})')
        test(i)
    for i in (6, 0, 1, 2, 3, 4, 5):
        a(f's_mov_b64 exec, s[{64+2*i}:{65+2*i}]')
        a(f'ds_add_rtn_u32 v{RK1+i}, v{BINC+i}, v46')
    a('s_mov_b64 exec, -1')
    a('s_waitcnt lgkmcnt(0)')
    a('s_barrier')
    tr(a, 5)
    a(f's_mul_i32 s{sT0}, s3, 3072')
    a(f's_add_u32 m0, s{sT0}, {L_W2R}')
    a(f's_lshl_b32 s{sT1}, s3, 10')
    a(f's_min_u32 s{sT2}, s{sT1}, 2048')
    for i in range(3):
        a(f'buffer_load_dwordx4 v{vLANE16}, s[{sW2F}:{sW2F+3}], s{sT0} offen offset:{1024*i} lds')
    a(f's_add_u32 m0, s{sT2}, {L_WRR}')
    a('s_cmp_lt_u32 s3, 4')
    a(f'buffer_load_dwordx4 v{vLANE16}, s[{sWRR}:{sWRR+3}], s{sT1} offen lds')
    a('s_cbranch_scc1 L1_nohdr')
    a(f'ds_read_b32 v42, v{pHC}')
    a.label('L1_nohdr', settle=False)
    if opt.fine: tr(a, 50)
    for i in range(7):
        a(f'v_min_u32 v40, {CAP}, v{RK1+i}')
        a(f'v_lshl_add_u32 v{BINS+i}, v40, 2, v{BINS+i}')
    for i in range(7):
        a(f's_mov_b64 exec, s[{64+2*i}:{65+2*i}]')
        a(f'ds_write_b32 v{BINS+i}, v{ENT+i} offset:4')
    a('s_mov_b64 exec, -1')
    if opt.fine: tr(a, 51)
    a('s_cmp_lt_u32 s3, 4')
    a('s_cbranch_scc1 L1_low')
    a('v_mov_b32 v43, 0')
    a('s_waitcnt lgkmcnt(0)')
    a(f'v_cmp_lt_u32 vcc, {CAP}, v42')
    a('s_nop 0')
    a('s_cbranch_vccnz L1_hdr_ovf')
    a.label('L1_hdr_back', settle=False)
    a('v_lshl_or_b32 v42, v43, 12, v42')
    a(f'ds_write_b32 v{pHS}, v42')
    a('s_cmp_lg_u32 s3, 7')
    a('s_cbranch_scc1 L1_join')
    for h in range(2):
        a(f'ds_write_b128 v{vLANE16}, v[{144+4*h}:{147+4*h}] offset:{L_DPOS + 1024*h}')
    a('s_branch L1_join')
    a.label('L1_low', settle=False)
    def zero_counters(tag):
        a('s_cmp_ge_u32 s3, 2')
        a(f's_cbranch_scc1 L2_nozero{tag}')
        a('v_lshlrev_b32 v42, 2, v0')
        a('v_mov_b32 v44, 0')
        a(f'ds_write_b32 v42, v44 offset:{L_NCNT}')
        a.label(f'L2_nozero{tag}', settle=False)
    zero_counters('a')
    a.label('L1_join')
    a(f'v_mov_b32 v43, {K1_CNT + 1024}')
    srd(a, 84, 24, SLOT_OFF, 16384, mul=SS)
    if opt.fine: tr(a, 52)
    a('s_waitcnt vmcnt(%d) lgkmcnt(0)' % (4 + [0, 4, 8][opt.pfres]))
    if opt.fine: tr(a, 53)
    a('s_barrier')
    tr(a, 6)
    W = V
    a('ds_read_b32 v44, v43')
    a(f'ds_read_b128 v[{W}:{W+3}], v{pLDS}')
    a(f'ds_read_b128 v[{W+4}:{W+7}], v{pLDS} offset:{128*80}')
    a('s_waitcnt lgkmcnt(2)')
    a('v_readfirstlane_b32 s60, v44')
    a('s_cmp_lg_u32 s60, 0')
    a('s_cbranch_scc1 L1_ovf')
    a.label('L1_noovf', settle=False)
    for h in range(2):
        a(f's_waitcnt lgkmcnt({1-h})')
        a(f'v_and_or_b32 v{W+4*h}, v{W+4*h}, v{pM0}, v{pT0}')
        for j in (1, 2, 3):
            a(f'v_and_or_b32 v{W+4*h+j}, v{W+4*h+j}, v{pME}, s{sNB+j}')
        a(f'buffer_store_dwordx4 v[{W+4*h}:{W+4*h+3}], v{pOFA+h}, s[84:87], 0 offen {opt.dumpsc}')
    tr(a, 7)
    a('v_cmp_gt_u32 vcc, 488, v0')
    a('s_mov_b64 s[64:65], vcc')
    a('s_waitcnt vmcnt(2)')
    a('s_barrier')
    tr(a, 23)
    def res_image(tag):
        if tag == 'b':
            a(f'v_lshrrev_b32 v40, 9, v{vLANE16}')
            for k in range(4):
                a(f'v_add_u32 v{pRS+k}, {2*k}, v40')
                a(f'v_lshlrev_b32 v{pRS+k}, 5, v{pRS+k}')
                a(f'v_xor_b32 v{pRS+k}, v{pRS+k}, v{vLANE16}')
        a(f's_lshl_b32 s{sT0}, s3, 12')
        a(f's_add_u32 m0, s{sT0}, {L_RES}')
        a('s_cmp_ge_u32 s3, 5')
        for k in range(4):
            a(f'buffer_load_dwordx4 v{pRS+k}, s[{sRES}:{sRES+3}], s{sT0} offen offset:{1024*k} sc1 lds')
        a(f's_cbranch_scc1 L2_resdone{tag}')
        a(f's_add_u32 s{sT0}, s{sT0}, 32768')
        a(f's_add_u32 m0, s{sT0}, {L_RES}')
        a('s_cmp_eq_u32 s3, 4')
        for k in range(4):
            if k == 2: a(f's_cbranch_scc1 L2_resdone{tag}')
            a(f'buffer_load_dwordx4 v{pRS+k}, s[{sRES}:{sRES+3}], s{sT0} offen offset:{1024*k} sc1 lds')
        a.label(f'L2_resdone{tag}', settle=False)
    if opt.res_when == 'pre': res_image('a')
    for p in range(3):
        for k in range(4):
            a(f'ds_read_u16 v{104+4*p+k}, v{pWR} offset:{k*384 + p*128}')
    a('s_waitcnt lgkmcnt(0)')
    for p in range(3):
        for jj in range(8):
            if p and jj == 5: a('s_waitcnt lgkmcnt(11)')
            a(f'ds_read_u16 v{64+8*(p&1)+jj}, v{pWA} offset:{p*128 + (16*(jj>>2) + (jj&3))*384}')
        if p == 0:
            for pp in range(3):
                for i in range(2):
                    a(f'v_lshl_or_b32 v{WR+2*pp+i}, v{105+4*pp+2*i}, 16, v{104+4*pp+2*i}')
        if p:
            q = p - 1
            a('s_waitcnt lgkmcnt(8)')
            for i in range(4): a(f'v_lshl_or_b32 v{80+i}, v{65+8*(q&1)+2*i}, 16, v{64+8*(q&1)+2*i}')
            a(f'ds_write_b128 v{pWD}, v[80:83] offset:{q*8192}')
    a('s_waitcnt lgkmcnt(1)')
    for i in range(4): a(f'v_lshl_or_b32 v{84+i}, v{65+2*i}, 16, v{64+2*i}')
    a(f'ds_write_b128 v{pWD}, v[84:87] offset:{2*8192}')
    a(f's_mov_b32 s61, {1 << opt.spin}')
    a('s_waitcnt vmcnt(4)' if opt.res_when == 'pre' else 's_waitcnt vmcnt(0)')
    tr(a, 8)
    a(f'buffer_load_dwordx4 v[{W}:{W+3}], v{pPA}, s[{sSLOT}:{sSLOT+3}], 0 offen sc1')
    a(f'buffer_load_dwordx4 v[{W+4}:{W+7}], v{pPB}, s[{sSLOT}:{sSLOT+3}], 0 offen sc1')
    if opt.res_when == 'mid': res_image('a')
    a('s_waitcnt vmcnt(4)' if opt.res_when == 'mid' else 's_waitcnt vmcnt(0)')
    a.label('L2_poll')
    if opt.fine: tr(a, 24)
    for h in range(2):
        w = W + 4*h
        a(f'v_xor_b32 v{61+h}, v{pT0}, v{w}')
        a(f'v_and_b32 v{61+h}, v{pN0}, v{61+h}')
        for j in (1, 2, 3):
            a(f'v_xor_b32 v63, s{sNB+j}, v{w+j}')
            a(f'v_and_or_b32 v{61+h}, v63, v{pNE}, v{61+h}')
    a('v_cmp_ne_u32 vcc, 0, v61')
    a('v_cmp_ne_u32 s[66:67], 0, v62')
    a('s_and_b64 s[66:67], s[66:67], s[64:65]')
    a('s_or_b64 s[68:69], s[66:67], vcc')
    a.br('s_cbranch_scc0 L2_polled')
    a('s_sub_u32 s61, s61, 1')
    a('s_cmp_eq_u32 s61, 0')
    a.br('s_cbranch_scc1 L2_polled')
    if opt.sleep: a(f's_sleep {opt.sleep}')
    if opt.pollmask:
        a('s_mov_b64 exec, vcc')
        a('s_cbranch_execz L2_nopollA')
    a(f'buffer_load_dwordx4 v[{W}:{W+3}], v{pPA}, s[{sSLOT}:{sSLOT+3}], 0 offen sc1')
    if opt.pollmask:
        a.label('L2_nopollA', settle=False)
        a('s_mov_b64 exec, s[66:67]')
        a('s_cbranch_execz L2_nopollB')
    a(f'buffer_load_dwordx4 v[{W+4}:{W+7}], v{pPB}, s[{sSLOT}:{sSLOT+3}], 0 offen sc1')
    if opt.pollmask:
        a.label('L2_nopollB', settle=False)
        a('s_mov_b64 exec, -1')
    a('s_waitcnt vmcnt(0)')
    a.br('s_branch L2_poll')
    a.label('L2_polled')
    tr(a, 9)
    if opt.res_when == 'post': res_image('a')
    LIM, CNT = 56, 58
    a('v_and_b32 v39, 3, v0')
    a('v_lshlrev_b32 v39, 2, v39')
    a('v_subrev_u32 v39, 1, v39')
    a(f'v_mov_b32_dpp v{CNT}, v{W} quad_perm:[0,0,0,0] row_mask:0xf bank_mask:0xf')
    a(f'v_mov_b32_dpp v{CNT+1}, v{W+4} quad_perm:[0,0,0,0] row_mask:0xf bank_mask:0xf')
    for h in range(2):
        a(f'v_and_b32 v{CNT+h}, 0xfff, v{CNT+h}')
        a(f'v_min_u32 v{LIM+h}, {CAP}, v{CNT+h}')
        a(f'v_subrev_u32 v{CNT+h}, {CAP}, v{CNT+h}')
    a.label('L2_round')
    A = 60; RK = 68; T = 76
    a('v_mov_b32 v40, 1')
    a(f's_mov_b32 s60, {L_NCNT}')
    for i in range(4):
        a(f'v_add_u32 v{41+i}, {i}, v39')
    for i in range(8):
        a(f'v_cmp_lt_u32 s[{64+2*i}:{65+2*i}], v{41 + (i & 3)}, v{LIM + i//4}')
        a(f'v_and_b32 v{A+i}, 127, v{W+i}')
        a(f'v_lshl_add_u32 v{A+i}, v{A+i}, 2, s60')
    a(f'v_max_i32 v41, v{CNT}, v{CNT+1}')
    a('v_cmp_lt_i32 vcc, 0, v41')
    for i in range(8):
        a(f's_mov_b64 exec, s[{64+2*i}:{65+2*i}]')
        a(f'ds_add_rtn_u32 v{RK+i}, v{A+i}, v40')
    a('s_mov_b64 exec, -1')
    a('s_cbranch_vccz L2_noflag')
    a(f'v_mov_b32 v41, {L_NCNT + 127*4}')
    a('ds_write_b32 v41, v40')
    a.label('L2_noflag', settle=False)
    for i in range(8):
        a(f'v_and_b32 v{W+i}, {M_ENT}, v{W+i}')
    a('s_waitcnt lgkmcnt(0)')
    a('s_barrier')
    tr(a, 10)
    a(f's_cmp_lg_u32 s{sROUND}, 0')
    a.br('s_cbranch_scc1 L2_now2f')
    if opt.res_when == 'late': res_image('a')
    a('s_or_b32 s60, s2, s3')
    a('s_cmp_lg_u32 s60, 0')
    a.br('s_cbranch_scc1 L2_now2f')
    srd(a, 84, 24, EPOCH_OFF, 4)
    a(f'v_mov_b32 v43, s{sEP}')
    a('s_mov_b64 exec, 1')
    a('buffer_store_dword v43, off, s[84:87], 0 sc1')
    a('s_mov_b64 exec, -1')
    a.label('L2_now2f')
    a(f'v_lshrrev_b32 v41, 2, v{vLANE16}')
    a(f'v_add_u32 v41, {L_NCNT}, v41')
    a('ds_read2st64_b32 v[42:43], v41 offset1:1')
    a('s_waitcnt lgkmcnt(0)')
    a(f'v_readlane_b32 s{sMORE}, v43, 63')
    a('v_lshl_or_b32 v42, v43, 16, v42')
    a('v_mov_b32 v43, v42')
    for sh in ('row_shr:1', 'row_shr:2', 'row_shr:4', 'row_shr:8'):
        a(f'v_add_u32_dpp v43, v43, v43 {sh} row_mask:0xf bank_mask:0xf')
    a('v_add_u32_dpp v43, v43, v43 row_bcast:15 row_mask:0xa bank_mask:0xf')
    a('v_add_u32_dpp v43, v43, v43 row_bcast:31 row_mask:0xc bank_mask:0xf')
    a(f'v_readlane_b32 s{sT0}, v43, 63')
    a('v_sub_u32 v43, v43, v42')
    a(f's_and_b32 s{sT0}, s{sT0}, 0xffff')
    a(f'v_and_b32 v{vSTLO}, 0xffff, v43')
    a(f'v_lshrrev_b32 v{vSTHI}, 16, v43')
    a(f'v_add_u32 v{vSTHI}, s{sT0}, v{vSTHI}')
    a(f'ds_write2st64_b32 v41, v{vSTLO}, v{vSTHI} offset0:2 offset1:3')
    for i in range(8):
        a(f'ds_read_b32 v{T+i}, v{A+i} offset:512')
    a(f'v_lshl_or_b32 v{vPACK}, v{vSTHI}, 16, v{vSTLO}')
    for i in range(8):
        if i % 4 == 0:
            a(f's_waitcnt lgkmcnt({4 - i})')
            for k in range(i, i+4): a(f'v_add_lshl_u32 v{T+k}, v{T+k}, v{RK+k}, 2')
        a(f's_mov_b64 exec, s[{64+2*i}:{65+2*i}]')
        a(f'ds_write_b32 v{T+i}, v{W+i} offset:{L_SORT}')
        if i % 4 == 3: a('s_mov_b64 exec, -1')
    for k, (st, d) in enumerate(((vSTLO, 32), (vSTHI, 32), (vSTLO, 64), (vSTHI, 64))):
        a(f'v_add_u32 v{T+k}, {d}, v{st}')
        a(f'v_lshlrev_b32 v{T+4+k}, 2, v{T+k}')
    a(f'v_readlane_b32 s{sT2}, v{vSTHI}, {R - 64}')
    a(f'v_lshrrev_b32 v40, 4, v{vLANE16}')
    a('v_add_u32 v41, 64, v40')
    a(f'v_mov_b32 v46, {R}')
    a(f's_mov_b32 s{sNC}, 0')
    a(f's_mov_b32 s{sC64}, s3')
    a('s_waitcnt vmcnt(0) lgkmcnt(0)')
    a('s_barrier')
    tr(a, 21)
    for k in (2, 3, 0, 1):
        a(f'ds_read_b32 v{T+4+k}, v{T+4+k} offset:{L_SORT}')
    for k in range(4):
        a(f'v_cmp_gt_u32 s[{64+2*k}:{65+2*k}], s{sT2}, v{T+k}')
    a('v_add_u32 v42, 1, v40')
    a('v_add_u32 v43, 16, v40')
    a('v_add_u32 v44, 1, v41')
    a('v_add_u32 v45, 16, v41')
    for k in (2, 3, 0, 1):
        r = T + 4 + k
        if k in (2, 0): a(f's_waitcnt lgkmcnt({2 if k == 2 else 0})')
        a(f'v_and_b32 v{r}, 127, v{r}')
        a(f'v_cndmask_b32_e64 v{r}, v46, v{r}, s[{64+2*k}:{65+2*k}]')
        a(f'v_med3_u32 v{r}, v{r}, v{42 + 2*(k & 1)}, v{43 + 2*(k & 1)}')
        a(f'v_min_u32 v{r}, v46, v{r}')
        if k == 3: a(f'v_lshl_or_b32 v{vNX64}, v{T+7}, 16, v{T+6}')
    a(f'v_lshl_or_b32 v{vNX32}, v{T+5}, 16, v{T+4}')
    if opt.fine: tr(a, 42)
    chain_loop(a, vNX64, sC64)
    if opt.fine: tr(a, 43)
    a(f's_cmp_lt_u32 s{sNC}, {R}')
    a.br('s_cbranch_scc0 L2_rounddone')
    if opt.prio: a('s_setprio 3')
    a(f's_mov_b32 s{sN0}, s{sNC}')
    chain_start(a, sE0)
    chain_step(a, vNX64)
    chain_start(a, sE1)
    a(f's_sub_u32 s{sNN}, s{sNC}, s{sN0}')
    a(f's_mov_b32 s{sXE0}, s{sE0}')
    a(f's_mov_b32 s{sXE1}, s{sE1}')
    emit(a, next_entry_read(TP))
    emit(a, next_mask(TP+4))
    a(f's_sub_u32 s{sC64}, 7, s3')
    a(f's_mov_b32 s{sC32}, s3')
    a('s_waitcnt lgkmcnt(0)')
    emit(a, next_stage(TP+4, TP+5))
    emit(a, off_reads(0))
    emit(a, pos_load(TP+5))
    a('s_waitcnt lgkmcnt(0)')
    emit(a, off_adds())
    emit(a, h_loads())
    a(f's_mov_b32 s{sFI}, 1')
    if opt.prio: a('s_setprio 0')
    tr(a, 22)
    a.br('s_branch L2_head_A')
    head(a, 'B')
    head(a, 'A')
    tail(a, 'toC')
    head(a, 'C')
    newitem(a)
    tail(a, 'toA')
    tail(a, 'fin')
    a.label('L2_rounddone')
    tr(a, 30)
    a(f's_cmp_eq_u32 s{sMORE}, 0')
    a.br('s_cbranch_scc1 L2_fin')
    a('s_waitcnt vmcnt(0) lgkmcnt(0)')
    a('s_barrier')
    zero_counters('b')
    srd(a, sRES, 20, 0, R*512, mul=R*512)
    res_image('b')
    a('v_lshrrev_b32 v40, 2, v0')
    a(f'v_mul_u32_u24 v41, {SS}, v40')
    a(f'buffer_load_dword v42, v41, s[{sSLOT}:{sSLOT+3}], 0 offen sc1')
    a(f'v_add_u32 v41, {128*SS}, v41')
    a(f'buffer_load_dword v43, v41, s[{sSLOT}:{sSLOT+3}], 0 offen sc1')
    a('v_and_b32 v39, 3, v0')
    a('v_lshlrev_b32 v39, 2, v39')
    a(f's_lshl_b32 s{sT0}, s{sROUND}, 4')
    a(f's_add_u32 s{sT1}, s{sT0}, {CAP}')
    a(f's_add_u32 s{sROUND}, s{sROUND}, 1')
    a(f'v_mul_u32_u24 v40, {CH*4}, v40')
    a('v_lshl_add_u32 v40, v39, 2, v40')
    a(f's_lshl_b32 s{sT0}, s{sT0}, 2')
    a(f'v_add_u32 v40, s{sT0}, v40')
    a('s_waitcnt vmcnt(0)')
    for h in range(2):
        a(f'v_bfe_u32 v44, v{42+h}, 12, 12')
        a(f'v_lshl_add_u32 v44, v44, 2, v40')
        if h: a(f'v_add_u32 v44, {128*CH*4}, v44')
        a(f'buffer_load_dwordx4 v[{W+4*h}:{W+4*h+3}], v44, s[{sOVF}:{sOVF+3}], 0 offen sc1')
        a(f'v_and_b32 v{CNT+h}, 0xfff, v{42+h}')
        a(f'v_subrev_u32 v{CNT+h}, s{sT1}, v{CNT+h}')
        a(f'v_med3_i32 v{LIM+h}, v{CNT+h}, 0, 16')
        a(f'v_subrev_u32 v{CNT+h}, 16, v{CNT+h}')
    a('s_waitcnt vmcnt(0) lgkmcnt(0)')
    a('s_barrier')
    a.br('s_branch L2_round')
    a.label('L2_fin')
    if opt.tr:
        a('s_waitcnt vmcnt(0)')
        tr(a, 31)
    tr_dump(a)
    a.label('L_end')
    a('s_endpgm')
    rare_paths(a)

def build():
    src = open('gather_scatter__molecular_angular_painn__graph.s.ref').read().split('\n')
    head_ = []
    for ln in src:
        if not ln.startswith(';'): break
        if '@launch' in ln or 'Override launch' in ln or 'grid=ceil' in ln: continue
        head_.append(ln)
    head_.append(f'; @launch grid=({NB},1,1) block=(512,1,1) lds={K1_LDS}')
    a = Asm()
    a.raw('.amdgcn_target "amdgcn-amd-amdhsa--gfx950"\n.text')
    gen(a)
    return '\n'.join(head_) + '\n' + a.text() + '.section .rodata,"a"\n' + descriptor(NAME, 256)

if __name__ == '__main__':
    outp = sys.argv[1]
    for kv in sys.argv[2:]:
        k, val = kv.split('=', 1)
        setattr(opt, k, type(getattr(opt, k))(eval(val)))
    open(outp, 'w').write(build())
```

```python
import sys, struct
from asmlib import Asm

N = 25000; NB = 250; R = 100; CH = 3200
H_OFF = 0; SLOT_OFF = 0x400000; OVF_OFF = 0x800000; W2F_OFF = 0xC00000; WRF_OFF = W2F_OFF + 24576
POS4_OFF = 0xC10000; TS_OFF = 0xE00000
CAP = 15

def f2u(x): return struct.unpack('<I', struct.pack('<f', x))[0]
def fl(x): return '0x%08x' % f2u(x)
def v(i, n=1): return f'v{i}' if n == 1 else f'v[{i}:{i+n-1}]'
def s(i, n=1): return f's{i}' if n == 1 else f's[{i}:{i+n-1}]'

class Opt:
    ts = False
    tr = False
    dbg = False
    nt_edges = False
    nt_out = False
    k1st = ''
    outst = ''
    ntpos = False
    thr = 24.3
    rot = 4
    prio = False
    prio2 = 0
    pk = False
    earlyh = False
    rawpos = False
    spread = False
    pkc = 0
    trmain = True
    tlb = 0
    pf_sv = ''
    vsched = [8,0,0,0,8,0,0,0,8,0,0,0,0]
opt = Opt()

def srd(a, d, base, off, size, mul=None):
    if mul is not None:
        a(f's_mul_i32 s{d+2}, s2, {mul}')
        if off: a(f's_add_u32 s{d+2}, s{d+2}, {off}')
        a(f's_add_u32 s{d}, s{base}, s{d+2}')
        a(f's_addc_u32 s{d+1}, s{base+1}, 0')
    elif off:
        a(f's_add_u32 s{d}, s{base}, {off}')
        a(f's_addc_u32 s{d+1}, s{base+1}, 0')
    else:
        a(f's_mov_b32 s{d}, s{base}')
        a(f's_mov_b32 s{d+1}, s{base+1}')
    a(f's_mov_b32 s{d+2}, {size}')
    a(f's_mov_b32 s{d+3}, 0x20000')

def stamp(a, kern, idx, tmpv=None):
    if not opt.ts: return
    a.settle()
    L = f'Lts_{kern}_{idx}_{stamp.n}'; stamp.n += 1
    a(f's_cmp_lg_u32 s3, {stamp.wave}')
    a.br(f's_cbranch_scc1 {L}')
    a('s_memrealtime s[92:93]')
    a('s_mov_b64 s[94:95], exec')
    a('s_mov_b64 exec, 1')
    a('s_waitcnt lgkmcnt(0)')
    t = stamp.tmp
    a(f'v_mov_b32 v{t}, s92')
    a(f'v_mov_b32 v{t+1}, s93')
    a(f'v_mov_b32 v{t+2}, 0')
    a(f'buffer_store_dwordx2 v[{t}:{t+1}], v{t+2}, s[96:99], 0 offen offset:{idx*8}')
    a('s_mov_b64 exec, s[94:95]')
    a.label(L)
stamp.n = 0; stamp.wave = 0; stamp.tmp = 0

def stamp_init(a, kern):
    if not opt.ts: return
    a(f's_lshl_b32 s98, s2, 7')
    a(f's_add_u32 s98, s98, {TS_OFF + kern*256*128}')
    a('s_add_u32 s96, s24, s98')
    a('s_addc_u32 s97, s25, 0')
    a('s_mov_b32 s98, 128')
    a('s_mov_b32 s99, 0x20000')

def dbg_init(a, kern):
    if not opt.dbg: return
    a('s_load_dwordx2 s[96:97], s[0:1], 72')
    a('s_waitcnt lgkmcnt(0)')
    if kern:
        a('s_sub_u32 s96, s96, 512')
        a('s_subb_u32 s97, s97, 0')
    a('s_mov_b32 s98, 64')
    a('s_mov_b32 s99, 0x20000')

def dbg(a, idx, allwg=False):
    if not opt.dbg: return
    a.settle()
    L = f'Ldbg_{stamp.n}'; stamp.n += 1
    a('s_cmp_lg_u32 s3, 0')
    a.br(f's_cbranch_scc1 {L}')
    if not allwg:
        a('s_cmp_lg_u32 s2, 0')
        a.br(f's_cbranch_scc1 {L}')
    a('s_memrealtime s[92:93]')
    a('s_mov_b64 s[94:95], exec')
    a('s_mov_b64 exec, 1')
    a('s_waitcnt lgkmcnt(0)')
    t = stamp.tmp
    a(f'v_mov_b32 v{t}, s92')
    a(f'v_mov_b32 v{t+2}, 0')
    a(f'buffer_atomic_umax v{t}, v{t+2}, s[96:99], 0 offen offset:{idx*4}')
    a('s_mov_b64 exec, s[94:95]')
    a.label(L)

TR_OFF = 0x1000000
def tr_init(a):
    if not opt.tr: return
    a('s_lshl_b32 s98, s2, 3')
    a('s_add_u32 s98, s98, s3')
    a('s_lshl_b32 s98, s98, 10')
    a(f's_add_u32 s98, s98, {TR_OFF}')
    a('s_add_u32 s96, s24, s98')
    a('s_addc_u32 s97, s25, 0')
    a('s_mov_b32 s98, 1024')
    a('s_mov_b32 s99, 0x20000')
    a('s_mov_b32 s27, 0')
    a('v_mov_b32 v11, 0')

def tr(a, tag):
    if not opt.tr: return
    a('s_memtime s[92:93]')
    a('s_mov_b32 m0, s27')
    a('s_add_u32 s27, s27, 1')
    a('s_waitcnt lgkmcnt(0)')
    a('s_lshl_b32 s92, s92, 6')
    a(f's_or_b32 s92, s92, {tag}')
    a('v_writelane_b32 v11, s92, m0')

def tr_dump(a):
    if not opt.tr: return
    a('v_lshrrev_b32 v12, 2, v1')
    a('buffer_store_dword v11, v12, s[96:99], 0 offen')

def header(a, name):
    a.raw(f'.globl {name}\n.p2align 8\n.type {name},@function\n{name}:')
    a.hist = []

def descriptor(name, vgpr, sgpr=102):
    acc = (vgpr + 3) // 4 * 4
    return f'''.p2align 6
.amdhsa_kernel {name}
  .amdhsa_next_free_vgpr {vgpr}
  .amdhsa_next_free_sgpr {sgpr}
  .amdhsa_accum_offset {acc}
  .amdhsa_group_segment_fixed_size 0
  .amdhsa_kernarg_size 88
  .amdhsa_user_sgpr_count 2
  .amdhsa_user_sgpr_kernarg_segment_ptr 1
  .amdhsa_system_sgpr_workgroup_id_x 1
  .amdhsa_float_denorm_mode_32 3
.end_amdhsa_kernel
'''

def emit_Q(a, dst, q, t):
    a(f'v_lshrrev_b32 v{dst}, 2, v{q}')
    a(f'v_lshlrev_b32 v{dst}, 1, v{dst}')
    a(f'v_and_b32 v{t}, 1, v{q}')
    a(f'v_add_u32 v{dst}, v{dst}, v{t}')
    a(f'v_and_b32 v{t}, 2, v{q}')
    a(f'v_lshl_add_u32 v{dst}, v{t}, 2, v{dst}')

K1_POS = 0; K1_CNT = 150528; K1_OVB = 151808; K1_W1 = 152832; K1_LDS = 161024

def gen_k1(a, name):
    header(a, name)
    stamp.tmp = 60; stamp.wave = 0
    a('s_cmp_ge_u32 s2, %d' % NB)
    a('s_cbranch_scc1 L1_end')
    a('s_load_dwordx8 s[4:11], s[0:1], 0')
    a('s_load_dwordx8 s[12:19], s[0:1], 32')
    a('s_load_dwordx2 s[24:25], s[0:1], 80')
    a('v_lshrrev_b32 v1, 6, v0')
    a('v_and_b32 v2, 63, v0')
    a('v_readfirstlane_b32 s3, v1')
    a('v_lshlrev_b32 v3, 4, v2')
    a('v_mov_b32 v40, 0')
    a('s_cmp_ge_u32 s3, 5')
    a.br('s_cbranch_scc1 L1_nozero')
    a('v_lshlrev_b32 v41, 2, v0')
    a(f'v_add_u32 v41, {K1_CNT}, v41')
    a('ds_write_b32 v41, v40')
    a.label('L1_nozero')
    a('s_waitcnt lgkmcnt(0)')
    stamp_init(a, 0)
    stamp(a, 0, 0)
    dbg_init(a, 0)
    dbg(a, 0)
    dbg(a, 1, True)
    a('s_cmp_ge_u32 s3, 13')
    a.br('s_cbranch_scc1 L1_hpath')
    srd(a, 28, 8, 0, CH*4, mul=CH*4)
    srd(a, 32, 10, 0, CH*4, mul=CH*4)
    srd(a, 36, 6, 0, N*6)
    a('v_lshlrev_b32 v1, 4, v0')
    nt = ' nt' if opt.nt_edges else ''
    a(f'buffer_load_dwordx4 v[4:7], v1, s[28:31], 0 offen{nt}')
    a(f'buffer_load_dwordx4 v[8:11], v1, s[32:35], 0 offen{nt}')
    a('s_lshr_b32 s40, s2, 3')
    a(f's_mul_i32 s40, s40, {opt.rot}')
    a('s_add_u32 s40, s40, s3')
    for i in range(12):
        if i == 11:
            a('s_cmp_ge_u32 s3, 4')
            a.br('s_cbranch_scc1 L1_dmadone')
        a('s_sub_u32 s41, s40, 147')
        a('s_cmp_ge_u32 s40, 147')
        a('s_cselect_b32 s40, s41, s40')
        a('s_lshl_b32 s41, s40, 10')
        a('s_mov_b32 m0, s41')
        a('s_add_u32 s40, s40, 13')
        a('buffer_load_dwordx4 v3, s[36:39], s41 offen lds')
    a.label('L1_dmadone')
    a('s_mov_b64 s[42:43], -1')
    a('s_cmp_eq_u32 s3, 12')
    a('s_cselect_b32 s43, 0, s43')
    a(f's_mov_b32 s44, {fl(opt.thr)}')
    a(f's_mov_b32 s45, -100')
    a(f's_mov_b32 s46, {K1_CNT}')
    a('v_mov_b32 v59, 0xffff0000')
    stamp(a, 0, 1)
    a('s_waitcnt vmcnt(0) lgkmcnt(0)')
    a('s_barrier')
    stamp(a, 0, 2)
    dbg(a, 2)
    dbg(a, 3, True)
    for i in range(4):
        a(f'v_mul_u32_u24 v{12+i}, 6, v{4+i}')
        a(f'v_mul_u32_u24 v{16+i}, 6, v{8+i}')
        a(f'v_and_b32 v36, -4, v{12+i}')
        a(f'v_and_b32 v37, -4, v{16+i}')
        a(f'ds_read2_b32 v[{20+2*i}:{21+2*i}], v36 offset1:1')
        a(f'ds_read2_b32 v[{28+2*i}:{29+2*i}], v37 offset1:1')
    for i in range(4):
        a(f'v_mul_u32_u24 v36, 5243, v{8+i}')
        a(f'v_lshrrev_b32 v36, 19, v36')
        a(f'v_mad_i32_i24 v37, v36, s45, v{8+i}')
        a(f'v_lshl_or_b32 v{48+i}, v{4+i}, 9, v37')
        a(f'v_lshlrev_b32 v{44+i}, 2, v36')
        a(f'v_add_u32 v{52+i}, {K1_CNT}, v{44+i}')
    a('v_mov_b32 v56, 1')
    for i in range(4):
        p, q = 20+2*i, 28+2*i
        a(f's_waitcnt lgkmcnt({6-2*i})')
        a(f'v_alignbyte_b32 v36, v{p+1}, v{p}, v{12+i}')
        a(f'v_alignbyte_b32 v37, v{p+1}, v{p+1}, v{12+i}')
        a(f'v_alignbyte_b32 v38, v{q+1}, v{q}, v{16+i}')
        a(f'v_alignbyte_b32 v39, v{q+1}, v{q+1}, v{16+i}')
        a(f'v_lshlrev_b32 v{p}, 16, v36')
        a(f'v_lshlrev_b32 v{q}, 16, v38')
        a(f'v_and_b32 v36, v59, v36')
        a(f'v_and_b32 v38, v59, v38')
        a(f'v_lshlrev_b32 v37, 16, v37')
        a(f'v_lshlrev_b32 v39, 16, v39')
        a(f'v_sub_f32 v{p}, v{p}, v{q}')
        a(f'v_sub_f32 v36, v36, v38')
        a(f'v_sub_f32 v37, v37, v39')
        a(f'v_mul_f32 v{p}, v{p}, v{p}')
        a(f'v_fmac_f32 v{p}, v36, v36')
        a(f'v_fmac_f32 v{p}, v37, v37')
        a(f'v_cmp_ngt_f32 s[{64+2*i}:{65+2*i}], v{p}, s44')
        a(f's_and_b64 s[{64+2*i}:{65+2*i}], s[{64+2*i}:{65+2*i}], s[42:43]')
    for i in range(4):
        a(f's_mov_b64 exec, s[{64+2*i}:{65+2*i}]')
        a(f'ds_add_rtn_u32 v{12+i}, v{52+i}, v56')
    a('s_mov_b64 exec, -1')
    a('s_waitcnt lgkmcnt(0)')
    a('s_barrier')
    stamp(a, 0, 3)
    for i in range(4):
        a(f'v_cmp_gt_u32 s[{72+2*i}:{73+2*i}], {CAP}, v{12+i}')
        a(f'v_lshlrev_b32 v{16+i}, 4, v{44+i}')
        a(f'v_lshl_add_u32 v{16+i}, v{12+i}, 2, v{16+i}')
    for i in range(4):
        a(f's_and_b64 exec, s[{72+2*i}:{73+2*i}], s[{64+2*i}:{65+2*i}]')
        a(f'ds_write_b32 v{16+i}, v{48+i} offset:4')
        a(f's_andn2_b64 s[{64+2*i}:{65+2*i}], s[{64+2*i}:{65+2*i}], s[{72+2*i}:{73+2*i}]')
    a('s_mov_b64 exec, -1')
    a('s_cmp_ge_u32 s3, 4')
    a.br('s_cbranch_scc1 L1_nohdr')
    a('v_lshlrev_b32 v20, 2, v0')
    a(f'v_add_u32 v21, {K1_CNT}, v20')
    a('ds_read_b32 v22, v21')
    a('v_mov_b32 v23, 0')
    a('v_lshlrev_b32 v24, 6, v0')
    a('s_waitcnt lgkmcnt(0)')
    a(f'v_cmp_lt_u32 vcc, {CAP}, v22')
    a('s_and_saveexec_b64 s[80:81], vcc')
    a.br('s_cbranch_execz L1_hdr_noovf')
    a(f'v_subrev_u32 v25, {CAP}, v22')
    a(f'v_mov_b32 v26, {K1_CNT + 1024}')
    a('ds_add_rtn_u32 v23, v26, v25')
    a(f'v_add_u32 v21, {K1_OVB}, v20')
    a('s_waitcnt lgkmcnt(0)')
    a('ds_write_b32 v21, v23')
    a.label('L1_hdr_noovf')
    a('s_mov_b64 exec, s[80:81]')
    a('v_lshl_or_b32 v22, v23, 16, v22')
    a('ds_write_b32 v24, v22')
    a.label('L1_nohdr')
    a('s_waitcnt lgkmcnt(0)')
    a('s_barrier')
    a('s_or_b64 s[72:73], s[64:65], s[66:67]')
    a('s_or_b64 s[74:75], s[68:69], s[70:71]')
    a('s_or_b64 s[72:73], s[72:73], s[74:75]')
    a.br('s_cbranch_scc0 L1_dump')
    srd(a, 28, 24, OVF_OFF, CH*4, mul=CH*4)
    for i in range(4):
        a(f's_mov_b64 exec, s[{64+2*i}:{65+2*i}]')
        a.br(f's_cbranch_execz L1_ovf{i}')
        a(f'v_add_u32 v20, {K1_OVB}, v{44+i}')
        a('ds_read_b32 v21, v20')
        a('s_waitcnt lgkmcnt(0)')
        a(f'v_add_u32 v21, v21, v{12+i}')
        a(f'v_subrev_u32 v21, {CAP}, v21')
        a('v_lshlrev_b32 v21, 2, v21')
        a(f'buffer_store_dword v{48+i}, v21, s[28:31], 0 offen')
        a.label(f'L1_ovf{i}')
    a('s_mov_b64 exec, -1')
    a.br('s_branch L1_dump')

    a.label('L1_hpath')
    if opt.tlb:
        a('s_load_dwordx2 s[20:21], s[0:1], 64')
        a(f'v_lshlrev_b32 v100, {opt.tlb}, v2')
        srd(a, 48, 24, 0, 0xE00000)
        srd(a, 52, 4, 0, N*512)
        a('buffer_load_dword v101, v100, s[48:51], 0 offen')
        a('buffer_load_dword v102, v100, s[52:55], 0 offen')
        a('s_waitcnt lgkmcnt(0)')
        srd(a, 56, 20, 0, N*512)
        a('buffer_load_dword v103, v100, s[56:59], 0 offen')
    a('s_sub_u32 s40, s3, 13')
    srd(a, 28, 14, 0, 8192)
    srd(a, 32, 4, 0, R*512, mul=R*512)
    srd(a, 36, 24, H_OFF, R*128, mul=R*128)
    for i in range(8):
        a(f's_mov_b32 m0, {K1_W1 + i*1024}')
        a(f's_mov_b32 s41, {i*1024}')
        a('buffer_load_dwordx4 v3, s[28:31], s41 offen lds')
    a('v_and_b32 v4, 15, v2')
    a('v_lshrrev_b32 v5, 4, v2')
    a('s_lshl_b32 s41, s40, 4')
    a('v_add_u32 v6, s41, v4')
    a('v_lshlrev_b32 v7, 4, v5')
    a('v_lshl_add_u32 v8, v6, 9, v7')
    a('v_lshl_add_u32 v9, v6, 7, v7')
    a('buffer_load_dwordx4 v[12:15], v8, s[32:35], 0 offen')
    a('buffer_load_dwordx4 v[16:19], v8, s[32:35], 0 offen offset:64')
    a(f'v_add_u32 v8, {48*512}, v8')
    a('buffer_load_dwordx4 v[20:23], v8, s[32:35], 0 offen')
    a('buffer_load_dwordx4 v[24:27], v8, s[32:35], 0 offen offset:64')
    a(f'v_add_u32 v8, {48*512}, v8')
    a('buffer_load_dwordx4 v[28:31], v8, s[32:35], 0 offen')
    a('buffer_load_dwordx4 v[32:35], v8, s[32:35], 0 offen offset:64')
    a('v_lshrrev_b32 v10, 2, v4')
    a('v_lshl_add_u32 v10, v5, 3, v10')
    a('v_and_b32 v11, 3, v4')
    a('v_lshlrev_b32 v11, 3, v11')
    a('v_lshl_add_u32 v10, v10, 7, v11')
    a(f'v_add_u32 v10, {K1_W1}, v10')
    a('s_waitcnt vmcnt(6)')
    FR = 64
    for ht in range(4):
        for ks in range(2):
            r = FR + (ht*2+ks)*4
            for hf in range(2):
                a(f'ds_read_b64_tr_b16 v[{r+2*hf}:{r+2*hf+1}], v10 offset:{ks*4096 + ht*32 + hf*512}')
    a('s_waitcnt lgkmcnt(0)')
    D = 96; O = 112
    for t in range(3):
        if t == 2:
            a('s_cmp_lg_u32 s40, 0')
            a.br('s_cbranch_scc1 L1_hdone')
        S = 12 + 8*t
        a('s_waitcnt vmcnt(4)')
        for ht in range(4):
            a(f'v_mfma_f32_16x16x32_bf16 v[{D+4*ht}:{D+4*ht+3}], v[{FR+ht*8}:{FR+ht*8+3}], v[{S}:{S+3}], 0')
        for ht in range(4):
            a(f'v_mfma_f32_16x16x32_bf16 v[{D+4*ht}:{D+4*ht+3}], v[{FR+ht*8+4}:{FR+ht*8+7}], v[{S+4}:{S+7}], v[{D+4*ht}:{D+4*ht+3}]')
        for i in range(16):
            a(f'v_cvt_pk_bf16_f32 v{D+i}, 0, v{D+i}')
        T = 120
        for grp in range(4):
            for i in range(4):
                a(f'v_mul_f32 v{T+i}, {fl(-1.4426950408889634)}, v{D+4*grp+i}')
            for i in range(4):
                a(f'v_exp_f32 v{T+i}, v{T+i}')
            for i in range(4):
                a(f'v_add_f32 v{T+i}, 1.0, v{T+i}')
            for i in range(4):
                a(f'v_rcp_f32 v{T+i}, v{T+i}')
            for i in range(4):
                a(f'v_mul_f32 v{T+i}, v{T+i}, v{D+4*grp+i}')
            a(f'v_cvt_pk_bf16_f32 v{O+2*grp}, v{T}, v{T+1}')
            a(f'v_cvt_pk_bf16_f32 v{O+2*grp+1}, v{T+2}, v{T+3}')
        a(f'buffer_store_dwordx4 v[{O}:{O+3}], v9, s[36:39], 0 offen ' + opt.k1st)
        a(f'buffer_store_dwordx4 v[{O+4}:{O+7}], v9, s[36:39], 0 offen offset:64 ' + opt.k1st)
        a(f'v_add_u32 v9, {48*128}, v9')
    a.label('L1_hdone')
    a('s_cmp_lg_u32 s40, 2')
    a.br('s_cbranch_scc1 L1_nofrag')
    a('s_cmp_ge_u32 s2, 27')
    a.br('s_cbranch_scc1 L1_nofrag')
    emit_Q(a, 12, 4, 13)
    a('v_lshlrev_b32 v12, 3, v12')
    srd(a, 32, 24, W2F_OFF, 24576 + 1536)
    a('s_cmp_ge_u32 s2, 24')
    a.br('s_cbranch_scc1 L1_wrfrag')
    srd(a, 28, 16, 0, 64*192*2)
    a('s_lshr_b32 s41, s2, 3')
    a('s_lshl_b32 s41, s41, 7')
    a('s_bfe_u32 s47, s2, 0x20001')
    a('s_lshl_b32 s47, s47, 1')
    a('s_add_u32 s41, s41, s47')
    a('s_and_b32 s47, s2, 1')
    a(f's_mul_i32 s47, s47, {32*384}')
    a('s_add_u32 s41, s41, s47')
    a(f'v_mul_u32_u24 v13, {4*384}, v5')
    a('v_add3_u32 v12, v12, v13, s41')
    a(f'v_add_u32 v13, {16*384}, v12')
    for jj in range(8):
        a(f'buffer_load_ushort v{16+jj}, v{12 if jj < 4 else 13}, s[28:31], 0 offen offset:{(jj&3)*384}')
    a('s_lshl_b32 s41, s2, 10')
    a('v_add_u32 v14, s41, v3')
    a('s_waitcnt vmcnt(0)')
    for i in range(4):
        a(f'v_lshl_or_b32 v{16+i}, v{17+2*i}, 16, v{16+2*i}')
    a('buffer_store_dwordx4 v[16:19], v14, s[32:35], 0 offen')
    a.br('s_branch L1_nofrag')
    a.label('L1_wrfrag')
    srd(a, 28, 18, 0, 4*192*2)
    a('s_sub_u32 s41, s2, 24')
    a('s_lshl_b32 s47, s41, 7')
    a('v_lshlrev_b32 v13, 1, v5')
    a('v_add3_u32 v12, v12, v13, s47')
    for k in range(4):
        a(f'buffer_load_ushort v{16+k}, v12, s[28:31], 0 offen offset:{k*384}')
    a('s_lshl_b32 s41, s41, 9')
    a('s_add_u32 s41, s41, 24576')
    a('v_lshlrev_b32 v14, 3, v2')
    a('v_add_u32 v14, s41, v14')
    a('s_waitcnt vmcnt(0)')
    for i in range(2):
        a(f'v_lshl_or_b32 v{16+i}, v{17+2*i}, 16, v{16+2*i}')
    a('buffer_store_dwordx2 v[16:17], v14, s[32:35], 0 offen')
    a.label('L1_nofrag')
    srd(a, 28, 24, POS4_OFF, R*8, mul=R*8)
    a('s_lshl_b32 s41, s40, 6')
    a('v_add_u32 v12, s41, v2')
    a(f's_mul_i32 s41, s2, {R}')
    a('v_add_u32 v13, s41, v12')
    a('v_mul_u32_u24 v13, 6, v13')
    a('v_and_b32 v14, -4, v13')
    a('v_lshlrev_b32 v12, 3, v12')
    a('s_waitcnt lgkmcnt(0)')
    a('s_barrier')
    a('ds_read2_b32 v[16:17], v14 offset1:1')
    a('s_waitcnt lgkmcnt(0)')
    a('v_alignbyte_b32 v18, v17, v16, v13')
    a('v_alignbyte_b32 v19, v17, v17, v13')
    a('v_and_b32 v19, 0xffff, v19')
    a('buffer_store_dwordx2 v[18:19], v12, s[28:31], 0 offen')
    if opt.pf_sv:
        srd(a, 32, 4, 0, R*512, mul=R*512)
        a('s_lshl_b32 s41, s40, 10')
        a('v_add_u32 v20, s41, v3')
        for i in range(17):
            a(f'buffer_load_dwordx4 v[100:103], v20, s[32:35], 0 offen {opt.pf_sv if opt.pf_sv != "plain" else ""}')
            a('v_add_u32 v20, 3072, v20')
    a('s_barrier')
    a('s_barrier')
    a.label('L1_dump')
    stamp(a, 0, 4)
    srd(a, 28, 24, SLOT_OFF, NB*16384)
    a('v_lshlrev_b32 v4, 4, v0')
    a('ds_read_b128 v[8:11], v4')
    a('v_lshrrev_b32 v5, 2, v0')
    a('v_lshlrev_b32 v5, 14, v5')
    a('v_and_b32 v6, 3, v0')
    a('v_lshl_add_u32 v5, v6, 4, v5')
    a('s_lshl_b32 s41, s2, 6')
    a('v_add_u32 v5, s41, v5')
    a('s_waitcnt lgkmcnt(0)')
    a('buffer_store_dwordx4 v[8:11], v5, s[28:31], 0 offen ' + opt.k1st)
    if opt.ts or opt.dbg:
        a('s_waitcnt vmcnt(0)')
        stamp(a, 0, 5)
        dbg(a, 4)
        dbg(a, 5, True)
    a.label('L1_end')
    a('s_endpgm')

L_W2F = 0; L_NCNT = 24576; L_START = L_NCNT + 512; L_DPOS = 25600; L_FLAG = 27648; L_STG = 27680
STG = 768
L_SORT = L_STG + 8*STG; L_RES = 50176; K2_LDS = L_RES + 116*512
assert L_SORT + 4*(4000+64) <= L_RES
S_VOFF, S_DL, S_R = 0, 256, 384

vLANE16, vSTGW, vSTGH, vSTGR, vSTGS, vLPV, vLPH, vLPR, vQQ, vMHI, vTR, vPACK, vNX64, vHA, vNQ, vRES, vE, vNX32, vM = range(1, 20)
PS = 20
RBF = 22
WR = 24
HOFF = 30
SEL = 32; SR = 36
V = 48
H = 96
ACC = 112
D3 = 176
D2 = 208
WS = 224
VOFF = 240
TP = 248
vRL = 254
vSTLO, vSTHI = ACC, ACC + 1
K2_VGPR = 256
sSV, sH, sP4, sOUT, sRES, sSLOT, sW2F, sOVF = 28, 32, 36, 40, 44, 48, 52, 80
sF = 56
sNC, sC64, sC32, sN0, sE0, sE1, sMORE, sROUND, sT0, sT1, sT2, sNN = 60, 61, 62, 63, 84, 85, 87, 88, 89, 90, 91, 26
sEXQ = 22
sXN0, sXNN, sXE0, sXE1, sXCONT, sLAST, sSTG, sSD, sRB = 68, 69, 70, 71, 72, 73, 6, 7, 8

def chain_step(a, tab):
    a(f'v_readlane_b32 s{sT0}, v{tab}, s{sNC}')
    a(f's_lshr_b32 s{sT1}, s{sNC}, 2')
    a(f's_and_b32 s{sT1}, s{sT1}, 16')
    a(f's_lshr_b32 s{sT0}, s{sT0}, s{sT1}')
    a(f's_and_b32 s{sNC}, s{sT0}, 0xffff')

def chain_start(a, dst):
    a(f'v_readlane_b32 s{sT0}, v{vPACK}, s{sNC}')
    a(f's_lshr_b32 s{sT1}, s{sNC}, 2')
    a(f's_and_b32 s{sT1}, s{sT1}, 16')
    a(f's_lshr_b32 s{sT0}, s{sT0}, s{sT1}')
    a(f's_and_b32 s{dst}, s{sT0}, 0xffff')

loop_n = [0]
def chain_loop(a, tab, cnt):
    n = loop_n[0]; loop_n[0] += 1
    a(f's_cmp_eq_u32 s{cnt}, 0')
    a(f's_cbranch_scc1 L2_walkdone{n}')
    a.label(f'L2_walk{n}', settle=False)
    chain_step(a, tab)
    a(f's_sub_u32 s{cnt}, s{cnt}, 1')
    a(f's_cmp_lg_u32 s{cnt}, 0')
    a(f's_cbranch_scc1 L2_walk{n}')
    a.label(f'L2_walkdone{n}', settle=False)

def Rn(d, x): return f'v_cvt_pk_bf16_f32 v{d}, 0, v{x}'

def weave(main, fill):
    out = []; n = len(main); m = len(fill); k = 0
    for i, x in enumerate(main):
        out.append(x)
        want = (i + 1) * m // n
        out += fill[k:want]; k = want
    return out + fill[k:]

def emit(a, lst):
    for x in lst: a(x)

def next_entry_read(t):
    return [f's_lshl_b32 s{sT0}, s{sXE0}, 2',
            f's_add_u32 s{sT0}, s{sT0}, s{sSD}',
            f'v_add_u32 v{t}, s{sT0}, v{vSTGW}',
            f'ds_read_b32 v{vE}, v{t}']
def next_mask(t):
    return [f's_sub_u32 s{sT0}, s{sXE1}, s{sXE0}',
            f's_lshl_b32 s{sT0}, s{sT0}, 2',
            f's_add_u32 s{sT0}, s{sT0}, s{sSTG}',
            f'v_subrev_u32 v{t}, s{sT0}, v{vSTGW}',
            f'v_ashrrev_i32 v{t}, 31, v{t}']
def next_stage(t, u):
    return [f'v_bitop3_b32 v{vE}, v{vE}, v{t}, v{t} bitop3:0xf3',
            f'v_and_b32 v{t}, 0x7ffffe00, v{vE}',
            f'v_lshrrev_b32 v{u}, {9 if opt.rawpos else 6}, v{vE}',
            f'ds_write_b32 v{vSTGW}, v{t}',
            f'v_mul_u32_u24 v{u}, 6, v{u}' if opt.rawpos else f'v_and_b32 v{u}, -8, v{u}']
def off_reads(u):
    return [f'ds_read_b32 v{HOFF}, v{vHA} offset:{128*u}',
            f'ds_read_b32 v{HOFF+1}, v{vHA} offset:{128*u + 16}',
            f'ds_read_b128 v[{VOFF}:{VOFF+3}], v{vSTGR} offset:{128*u}',
            f'ds_read_b128 v[{VOFF+4}:{VOFF+7}], v{vSTGR} offset:{128*u + 16}']
def off_adds():
    return ([f'v_lshrrev_b32 v{HOFF+et}, 2, v{HOFF+et}' for et in range(2)] +
            [f'v_add_u32 v{HOFF+et}, v{HOFF+et}, v{vLPH}' for et in range(2)] +
            [f'v_add_u32 v{VOFF+jj}, v{VOFF+jj}, v{vLPV}' for jj in range(8)])
def pos_load(u): return [f'buffer_load_dwordx2 v[{PS}:{PS+1}], v{u}, s[{sP4}:{sP4+3}], 0 offen']
def h_loads():
    return [f'buffer_load_dwordx4 v[{H+et*8+ks*4}:{H+et*8+ks*4+3}], v{HOFF+et}, s[{sH}:{sH+3}], 0 offen offset:{ks*64}'
            for et in range(2) for ks in range(2)]
def v_loads(j):
    return [f'buffer_load_dwordx2 v[{V+j*16+jj*2}:{V+j*16+jj*2+1}], v{VOFF+jj}, s[{sSV}:{sSV+3}], 0 offen offset:{128*(j+1)}'
            for jj in range(8)]
def out_stores(addr):
    return [f'buffer_store_dwordx4 v[{D3+(c*2+hh)*4}:{D3+(c*2+hh)*4+3}], v{addr}, s[{sOUT}:{sOUT+3}], 0 offen offset:{c*128+hh*64} {opt.outst}'
            for c in range(4) for hh in range(2)]
def wread(step):
    p = [0, 2, 1][step // 4]; ct = step % 4
    return [f'ds_read_b128 v[{WS+(step%2)*8+ks*4}:{WS+(step%2)*8+ks*4+3}], v{vLANE16} offset:{L_W2F + ((p*4+ct)*2+ks)*1024}' for ks in range(2)]
def wf(p, u):
    return [f'v_mfma_f32_16x16x4bf16_1k v[{D3+16*et}:{D3+16*et+15}], v[{RBF}:{RBF+1}], v[{WR+2*p}:{WR+2*p+1}], 0 cbsz:2 abid:{2*u+et}' for et in range(2)]

sFI = 0
def T(a, n):
    if opt.trmain: tr(a, n)

def l2_mfma(step):
    d = D2 + (step % 2)*8; w = WS + (step % 2)*8; o = []
    for ks in range(2):
        for et in range(2):
            c = '0' if ks == 0 else f'v[{d+4*et}:{d+4*et+3}]'
            o.append(f'v_mfma_f32_16x16x32_bf16 v[{d+4*et}:{d+4*et+3}], v[{H+et*8+ks*4}:{H+et*8+ks*4+3}], v[{w+4*ks}:{w+4*ks+3}], {c}')
    return o
def l2_mul(step):
    part = step // 4; ct = step % 4; d = D2 + (step % 2)*8; o = []
    for et in range(2):
        for r in range(4):
            m = D3 + et*16 + ct*4 + r
            o.append(f'v_mul_f32 v{m if part == 2 else d+4*et+r}, v{d+4*et+r}, v{m}')
    if opt.pkc:
        o = []
        for et in range(2):
            for r in (0, 2):
                m = D3 + et*16 + ct*4 + r; x = d+4*et+r; y = m if part == 2 else x
                o.append(f'v_pk_mul_f32 v[{y}:{y+1}], v[{x}:{x+1}], v[{m}:{m+1}]')
    return o
def pbuf(step): return (TP + 4*(step % 2)) if opt.spread else D2 + (step % 2)*8
def l2_cvt(step):
    if step // 4 == 2: return []
    d = D2 + (step % 2)*8; p = pbuf(step)
    return [f'v_cvt_pk_bf16_f32 v{p+i}, v{d+2*i}, v{d+2*i+1}' for i in range(4)]
def l2_seg(step):
    part = step // 4; ct = step % 4; d = pbuf(step)
    if part == 2: return []
    if part == 0:
        acc = ACC + ct*4
        return [f'v_mfma_f32_16x16x32_bf16 v[{acc}:{acc+3}], v[{d}:{d+3}], v[{SEL}:{SEL+3}], v[{acc}:{acc+3}]']
    return [f'v_mfma_f32_16x16x32_bf16 v[{ACC+(1+j)*16+ct*4}:{ACC+(1+j)*16+ct*4+3}], v[{d}:{d+3}], v[{SR+4*j}:{SR+4*j+3}], v[{ACC+(1+j)*16+ct*4}:{ACC+(1+j)*16+ct*4+3}]' for j in range(3)]
def sel_reads(u):
    return ([f'ds_read_b128 v[{SEL}:{SEL+3}], v{vSTGS} offset:{S_DL + 64*u}'] +
            [f'ds_read_b128 v[{SR+4*j}:{SR+4*j+3}], v{vSTGS} offset:{S_R + 128*j + 64*u}' for j in range(3)])

def head(a, tag):
    first = tag == 'A'; u = 1 if tag == 'C' else 0
    if u == 0: a.label(f'L2_head_{tag}')
    vl = v_loads(0) + v_loads(1) + v_loads(2)
    assert sum(opt.vsched) == 24
    def vissue(i):
        n = opt.vsched[i]; emit(a, vl[:n]); del vl[:n]
    if u == 0:
        X = D2
        DP = TP
        a(f'v_and_b32 v{X}, 127, v{vE}')
        a(f'v_lshlrev_b32 v{X+1}, 4, v{X}')
        a(f'ds_read_b128 v[{DP}:{DP+3}], v{X+1} offset:{L_DPOS}')
        a(f'ds_write_b16 v{vSTGH}, v{X} offset:{S_DL}')
        if first:
            a(f's_lshl_b32 s{sT0}, s{sN0}, 9')
            a(f'v_add_u32 v{vRES}, s{sT0}, v{vLPR}')
            a(f's_mul_i32 s{sT0}, s{sN0}, 0x10001')
            a(f'v_add_u32 v{vNQ}, s{sT0}, v{vQQ}')
            a(f's_bfm_b32 s{sT1}, s{sNN}, 0')
            a(f's_lshl_b32 s{sT2}, s{sT1}, 16')
            a(f's_or_b32 s{sEXQ}, s{sT1}, s{sT2}')
            a(f's_mov_b32 s{sEXQ+1}, s{sEXQ}')
        else:
            a(f's_lshl_b32 s{sT0}, s{sN0}, 9')
            a(f'v_add_u32 v{vRES}, s{sT0}, v{vLPR}')
        if first:
            a(f'v_and_b32 v{X+3}, 0xff, v{vNQ}')
            a(f'v_and_b32 v{X+4}, 7, v{vNQ}')
            a(f'v_lshlrev_b32 v{X+4}, 5, v{X+4}')
            a(f'v_xor_b32 v{X+4}, v{X+4}, v{vLPH}')
            a(f'v_lshl_add_u32 v{X+3}, v{X+3}, 9, v{X+4}')
            a(f'v_add_u32 v{X+3}, {L_RES}, v{X+3}')
            for i in range(8):
                if i: a(f'v_xor_b32 v{X+4+(i&1)}, {i*64}, v{X+3}')
                a(f'ds_read_b128 v[{D3+4*i}:{D3+4*i+3}], v{X+3 if i == 0 else X+4+(i&1)}')
        a(f'v_ashrrev_i32 v{vM}, 31, v{vE}')
        T(a, 9)
        if first and sFI:
            a(f's_cmp_eq_u32 s{sFI}, 0')
            a('s_cbranch_scc1 L2_notfirst1')
            a('s_waitcnt vmcnt(4)')
            a.lines.append('L2_notfirst1:')
        a('s_waitcnt vmcnt(12)')
        T(a, 10)
        rx, ry, rz, t0, t1, t2, dd, inv = range(X, X+8)
        g0 = X + 8
        if opt.rawpos:
            a(f'v_alignbyte_b32 v{PS}, v{PS+1}, v{PS}, v{TP+5}')
            a(f'v_alignbyte_b32 v{PS+1}, v{PS+1}, v{PS+1}, v{TP+5}')
        a(f'v_lshlrev_b32 v{rx}, 16, v{PS}')
        a(f'v_and_b32 v{ry}, v{vMHI}, v{PS}')
        a(f'v_lshlrev_b32 v{rz}, 16, v{PS+1}')
        a(f's_waitcnt lgkmcnt({9 if first else 1})')
        for i in range(3): a(f'v_sub_f32 v{rx+i}, v{rx+i}, v{DP+i}')
        sc = []
        sc += [Rn(rx+i, rx+i) for i in range(3)]
        sc += [f'v_mul_f32 v{t0+i}, v{rx+i}, v{rx+i}' for i in range(3)]
        sc += [Rn(t0+i, t0+i) for i in range(3)]
        sc += [f'v_add_f32 v{t0}, v{t0}, v{t1}', f'v_add_f32 v{t0}, v{t0}, v{t2}', Rn(t0, t0),
               f'v_add_f32 v{t0}, {fl(1e-8)}, v{t0}', Rn(t0, t0), f'v_sqrt_f32 v{t0}, v{t0}', Rn(dd, t0), f'v_rcp_f32 v{inv}, v{dd}']
        sc += [f'v_mul_f32 v{g0+4}, {fl(3.141592653589793)}, v{dd}']
        sc += [f'v_mul_f32 v{g0+k}, s{sF+k}, v{dd}' for k in range(4)]
        sc += [Rn(g0+4, g0+4)] + [f'v_mul_f32 v{g0+4}, {fl(0.2)}, v{g0+4}'] + [Rn(g0+k, g0+k) for k in range(2)]
        sc += [Rn(g0+4, g0+4)] + [Rn(g0+k, g0+k) for k in range(2, 4)]
        sc += [f'v_mul_f32 v{g0+4}, 0.15915494, v{g0+4}']
        sc += [f'v_mul_f32 v{rx+i}, v{rx+i}, v{inv}' for i in range(3)]
        sc += [f'v_cos_f32 v{g0+4}, v{g0+4}']
        sc += [f'v_mul_f32 v{g0+k}, 0.15915494, v{g0+k}' for k in range(4)]
        sc += [f'v_cvt_pk_bf16_f32 v{t0}, v{rx}, v{ry}', f'v_cvt_pk_bf16_f32 v{t1}, v{rz}, v{rz}', Rn(g0+4, g0+4)]
        sc += [f'v_sin_f32 v{g0+k}, v{g0+k}' for k in range(2)]
        sc += [f'v_bitop3_b32 v{t0}, v{t0}, v{vM}, v{vM} bitop3:0x30', f'v_bitop3_b32 v{t1}, v{t1}, v{vM}, v{vM} bitop3:0x30',
               f'v_add_f32 v{g0+4}, 1.0, v{g0+4}']
        sc += [f'ds_write_b16 v{vSTGH}, v{t0} offset:{S_R}', f'ds_write_b16_d16_hi v{vSTGH}, v{t0} offset:{S_R+128}', f'ds_write_b16 v{vSTGH}, v{t1} offset:{S_R+256}']
        sc += sel_reads(0)
        sc += [f'v_sin_f32 v{g0+k}, v{g0+k}' for k in range(2, 4)]
        sc += [Rn(g0+4, g0+4), f'v_mul_f32 v{inv}, 0.5, v{inv}', f'v_mul_f32 v{inv}, v{inv}, v{g0+4}']
        sc += [f'v_mul_f32 v{g0+k}, v{g0+k}, v{inv}' for k in range(4)]
        sc += [f'v_cvt_pk_bf16_f32 v{RBF}, v{g0}, v{g0+1}', f'v_cvt_pk_bf16_f32 v{RBF+1}, v{g0+2}, v{g0+3}',
               f'v_bitop3_b32 v{RBF}, v{RBF}, v{vM}, v{vM} bitop3:0x30', f'v_bitop3_b32 v{RBF+1}, v{RBF+1}, v{vM}, v{vM} bitop3:0x30']
        fill = []
        if first:
            for c in range(4):
                for hh in range(2):
                    for ct in range(4):
                        for r in (2*hh, 2*hh+1):
                            src = D3 + (c*2 + hh)*4 + 2*(r & 1) + (ct >> 1)
                            dst = ACC + c*16 + ct*4 + r
                            fill.append(f'v_and_b32 v{dst}, v{vMHI}, v{src}' if ct & 1 else f'v_lshlrev_b32 v{dst}, 16, v{src}')
        nh = 6
        emit(a, sc[:nh])
        if first: a('s_waitcnt lgkmcnt(0)')
        emit(a, weave(sc[nh:], fill))
        emit(a, wread(0)); emit(a, wread(1))
    else:
        emit(a, wread(0)); emit(a, wread(1))
        T(a, 9)
    a(f's_mov_b32 s{sT0}, 0x00010001')
    a('s_waitcnt lgkmcnt(7)')
    for i in range(4): a(f'v_xor_b32 v{SEL+i}, v{SEL+i}, v{vNQ}')
    emit(a, wf(0, u)[:1])
    for i in range(4): a(f'v_pk_min_u16 v{SEL+i}, v{SEL+i}, s{sT0}')
    for i in range(4): a(f'v_pk_sub_u16 v{SEL+i}, v{SEL+i}, s{sT0}')
    emit(a, wf(0, u)[1:])
    a('s_waitcnt lgkmcnt(4)')
    for j in range(3):
        for i in range(4): a(f'v_and_b32 v{SR+4*j+i}, v{SR+4*j+i}, v{SEL+i}')
    for i in range(4): a(f'v_and_b32 v{SEL+i}, 0x3f803f80, v{SEL+i}')
    vissue(0)
    T(a, 11)
    if first and sFI:
        a(f's_cmp_eq_u32 s{sFI}, 0')
        a('s_cbranch_scc1 L2_notfirst2')
        a(f's_waitcnt vmcnt({opt.vsched[0]})')
        a(f's_mov_b32 s{sFI}, 0')
        a.lines.append('L2_notfirst2:')
    a(f's_waitcnt vmcnt({(8 if u == 0 else 0) + opt.vsched[0]})')
    T(a, 12)
    for step in range(12 if opt.spread else 0):
        a(f's_waitcnt lgkmcnt({2 if step < 11 else 0})')
        M = l2_mfma(step)
        if step == 0:
            emit(a, M); emit(a, wread(2)); vissue(1)
            continue
        S = l2_seg(step - 2) if step >= 2 else []
        s = step - 1; part = s // 4; ct = s % 4
        mu = l2_mul(s); cv = l2_cvt(s)
        va = mu[:4] + cv[:2] + mu[4:] + cv[2:]
        mf = M[:2] + S[:1] + M[2:] + S[1:]
        if step in (4, 8):
            last = max(i for i, x in enumerate(va) if x.startswith('v_mul'))
            emit(a, weave(mf[:4], va[:last+1])); emit(a, wf(2 if step == 4 else 1, u)[:1])
            emit(a, va[last+1:]); emit(a, mf[4:]); emit(a, wread(step + 2)); emit(a, wf(2 if step == 4 else 1, u)[1:])
        elif step in (5, 9):
            emit(a, mf[:4]); emit(a, weave(va, mf[4:])); emit(a, wread(step + 2) if step + 2 < 12 else [])
        else:
            emit(a, weave(mf, va))
            if step + 2 < 12: emit(a, wread(step + 2))
        vissue(step + 1)
    for step in range(0 if opt.spread else 12):
        a(f's_waitcnt lgkmcnt({2 if step < 11 else 0})')
        M = l2_mfma(step)
        if step == 0:
            emit(a, M); emit(a, wread(2)); vissue(1)
            continue
        m = l2_mul(step - 1)
        if opt.pkc == 2:
            emit(a, m + M)
        elif opt.pkc == 3:
            emit(a, M + m)
        elif step in (5, 9):
            h_ = len(m)//2
            emit(a, M[:2] + m[:h_] + M[2:3] + m[h_:h_+h_//2] + M[3:] + m[h_+h_//2:])
        else:
            emit(a, weave(M, m))
        if step == 4: emit(a, wf(2, u))
        if step == 8: emit(a, wf(1, u))
        emit(a, l2_cvt(step - 1))
        if step + 2 < 12: emit(a, wread(step + 2))
        emit(a, l2_seg(step - 1))
        vissue(step + 1)
    a(f's_add_u32 s{sXE0}, s{sE0}, {32*(u+1)}')
    a(f's_cmp_lt_u32 s{sXE0}, s{sE1}')
    if tag == 'A':
        a('s_cbranch_scc0 L2_newitem')
    elif tag == 'B':
        a.br('s_cbranch_scc1 L2_tail_toC')
        a.br('s_branch L2_newitem')
    else:
        a('s_cbranch_scc0 L2_newitem')
        a(f's_mov_b32 s{sXE1}, s{sE1}')
        a(f's_mov_b32 s{sXN0}, s{sN0}')
        a(f's_mov_b32 s{sXNN}, s{sNN}')
        a(f's_mov_b32 s{sXCONT}, 1')
        a(f's_mov_b32 s{sLAST}, 0')
        a.br('s_branch L2_tail_toA')

def newitem(a):
    a.label('L2_newitem', settle=False)
    a(f's_mov_b32 s{sLAST}, 1')
    chain_loop(a, vNX64, sC64)
    chain_loop(a, vNX32, sC32)
    a(f's_cmp_ge_u32 s{sNC}, {R}')
    a('s_cbranch_scc1 L2_tail_fin')
    a(f's_mov_b32 s{sXN0}, s{sNC}')
    chain_start(a, sXE0)
    chain_step(a, vNX32)
    chain_start(a, sXE1)
    a(f's_sub_u32 s{sXNN}, s{sNC}, s{sXN0}')
    a(f's_mov_b32 s{sXCONT}, 0')
    a(f's_mov_b32 s{sC32}, 7')
    if getattr(opt, 'yld', 0) == 2: a('s_setprio 0')

def tail(a, tag):
    if tag == 'toC':
        a.lines.append('L2_tail_toC:')
    else:
        a.label(f'L2_tail_{tag}', settle=False)
    def pv(n):
        j, ct = divmod(n, 4); U = D2 + ((n + 2) % 4)*8
        un, mu = [], []
        for jj in range(8):
            src = V + j*16 + jj*2 + (ct >> 1)
            un.append(f'v_and_b32 v{U+jj}, v{vMHI}, v{src}' if ct & 1 else f'v_lshlrev_b32 v{U+jj}, 16, v{src}')
            mu.append(f'v_mul_f32 v{U+jj}, v{U+jj}, v{D3 + (jj >> 2)*16 + ct*4 + (jj & 3)}')
        if opt.pk:
            mu = [f'v_pk_mul_f32 v[{U+jj}:{U+jj+1}], v[{U+jj}:{U+jj+1}], v[{D3 + (jj >> 2)*16 + ct*4 + (jj & 3)}:{D3 + (jj >> 2)*16 + ct*4 + (jj & 3) + 1}]' for jj in range(0, 8, 2)]
        cv = [f'v_cvt_pk_bf16_f32 v{U+i}, v{U+2*i}, v{U+2*i+1}' for i in range(4)]
        acc = ACC + (1+j)*16 + ct*4
        mf = f'v_mfma_f32_16x16x32_bf16 v[{acc}:{acc+3}], v[{U}:{U+3}], v[{SEL}:{SEL+3}], v[{acc}:{acc+3}]'
        return un, mu, cv, mf
    early = {'toA': 5, 'toC': 4, 'fin': 0}[tag] if opt.earlyh else 0
    if tag == 'toA': emit(a, next_entry_read(TP) + next_mask(TP+4))
    if tag == 'toC':
        if getattr(opt, 'yld', 0) == 4: a('s_setprio 1')
        emit(a, off_reads(1))
    if getattr(opt, 'yld', 0) == 5 and tag in ('toA', 'fin'): a('s_setprio 1')
    if getattr(opt, 'yld', 0) == 6 and tag == 'toA': a('s_setprio 0')
    emit(a, l2_mul(11))
    prev = None
    for n in range(12):
        j, ct = divmod(n, 4)
        un, mu, cv, mf = pv(n)
        if ct == 0:
            T(a, 13 + 2*j)
            a(f's_waitcnt vmcnt({16 - 8*j + (early if j else 0)})')
            T(a, 14 + 2*j)
        emit(a, un[:2])
        if prev: a(prev)
        emit(a, un[2:])
        rest = mu + cv
        if tag == 'toA' and n == 1:
            a('s_waitcnt lgkmcnt(0)')
            rest = weave(rest, next_stage(TP+4, TP+5) + off_reads(0))
        if (tag == 'toA' and n == 3) or (tag == 'toC' and n == 1):
            a('s_waitcnt lgkmcnt(0)')
            rest = weave(rest, off_adds())
            if opt.earlyh: rest = rest + (pos_load(TP+5) if tag == 'toA' else []) + h_loads()
        emit(a, rest)
        prev = mf
    T(a, 19)
    if tag == 'toC':
        if opt.earlyh:
            a('s_nop 1')
            a(prev)
        else:
            emit(a, h_loads()[:2])
            a(prev)
            emit(a, h_loads()[2:])
        emit(a, sel_reads(1))
        if getattr(opt, 'yld', 0) == 3: a('s_setprio 1')
        return
    if tag == 'toA':
        if not opt.earlyh:
            emit(a, pos_load(TP+5))
            emit(a, h_loads())
        a(prev)
        a(f's_cmp_eq_u32 s{sLAST}, 0')
        a(f's_cbranch_scc1 L2_nopack')
    else:
        a('s_nop 1')
        a(prev)
    for c in range(4):
        for hh in range(2):
            for d in range(4):
                lo = ACC + c*16 + (2*(d & 1))*4 + 2*hh + (d >> 1)
                a(f'v_cvt_pk_bf16_f32 v{D3+(c*2+hh)*4+d}, v{lo}, v{lo+4}')
    if tag == 'toA':
        a.br('s_branch L2_store')
        a.label('L2_nopack', settle=False)
        a(f'v_mov_b32 v{vRES}, 0x40000000')
        a.label('L2_store')
    T(a, 20)
    a(f's_mov_b64 exec, s[{sEXQ}:{sEXQ+1}]')
    emit(a, out_stores(vRES))
    a('s_mov_b64 exec, -1')
    if tag == 'toA':
        a(f's_mov_b32 s{sN0}, s{sXN0}')
        a(f's_mov_b32 s{sNN}, s{sXNN}')
        a(f's_mov_b32 s{sE0}, s{sXE0}')
        a(f's_mov_b32 s{sE1}, s{sXE1}')
        if getattr(opt, 'yld', 0) in (1, 3, 4, 5, 6): a('s_setprio 0')
        a(f's_cmp_lg_u32 s{sXCONT}, 0')
        a.br('s_cbranch_scc1 L2_head_B')
        a.br('s_branch L2_head_A')

def gen_k2(a, name):
    header(a, name)
    stamp.tmp = 252; stamp.wave = 0
    a('s_cmp_ge_u32 s2, %d' % NB)
    a('s_cbranch_scc1 L2_end')
    a('s_load_dwordx2 s[4:5], s[0:1], 0')
    a('s_load_dwordx2 s[12:13], s[0:1], 32')
    a('s_load_dwordx2 s[20:21], s[0:1], 64')
    a('s_load_dwordx2 s[24:25], s[0:1], 80')
    a('v_lshrrev_b32 v40, 6, v0')
    a('v_and_b32 v41, 63, v0')
    a('v_readfirstlane_b32 s3, v40')
    a(f'v_lshlrev_b32 v{vLANE16}, 4, v41')
    a('v_lshlrev_b32 v42, 4, v0')
    a('s_waitcnt lgkmcnt(0)')
    a('s_load_dwordx2 s[14:15], s[12:13], 0')
    srd(a, sSLOT, 24, SLOT_OFF, NB*64, mul=16384)
    W = V
    a(f'buffer_load_dwordx4 v[{W}:{W+3}], v42, s[{sSLOT}:{sSLOT+3}], 0 offen')
    a(f'v_add_u32 v43, 8192, v42')
    a(f'buffer_load_dwordx4 v[{W+4}:{W+7}], v43, s[{sSLOT}:{sSLOT+3}], 0 offen')
    srd(a, sP4, 24, POS4_OFF, N*8)
    a(f's_mul_i32 s{sT0}, s2, {R*8}')
    a('v_lshlrev_b32 v43, 3, v0')
    a(f'v_add_u32 v43, s{sT0}, v43')
    a('v_cmp_gt_u32 vcc, 128, v0')
    a('v_mov_b32 v44, 0x40000000')
    a('v_cndmask_b32_e64 v43, v44, v43, vcc')
    a(f'buffer_load_dwordx2 v[46:47], v43, s[{sP4}:{sP4+3}], 0 offen')
    def zero_counters(tag):
        a('s_cmp_ge_u32 s3, 3')
        a.br(f's_cbranch_scc1 L2_nozero{tag}')
        a('v_lshlrev_b32 v40, 2, v0')
        a('v_mov_b32 v44, 0')
        a(f'v_add_u32 v42, {L_FLAG - 512}, v40')
        a(f'v_add_u32 v40, {L_NCNT}, v40')
        a('v_cmp_gt_u32 vcc, 128, v0')
        a('v_cndmask_b32_e64 v40, v42, v40, vcc')
        a('v_cmp_gt_u32 vcc, 129, v0')
        a('s_and_saveexec_b64 s[64:65], vcc')
        a('ds_write_b32 v40, v44')
        a('s_mov_b64 exec, s[64:65]')
        a.label(f'L2_nozero{tag}')
    zero_counters('a')
    srd(a, sW2F, 24, W2F_OFF, 24576 + 1536)
    a('v_lshlrev_b32 v43, 3, v41')
    a(f's_mov_b32 s{sT0}, 24576')
    for p in range(3):
        a(f'buffer_load_dwordx2 v[{WR+2*p}:{WR+2*p+1}], v43, s[{sW2F}:{sW2F+3}], s{sT0} offen offset:{p*512}')
    for i in range(3):
        a(f's_lshl_b32 s{sT0}, s3, 10')
        if i: a(f's_add_u32 s{sT0}, s{sT0}, {i*8192}')
        a(f's_mov_b32 m0, s{sT0}')
        a(f'buffer_load_dwordx4 v{vLANE16}, s[{sW2F}:{sW2F+3}], s{sT0} offen lds')
    srd(a, sRES, 4, 0, R*512, mul=R*512)
    stamp_init(a, 1)
    tr_init(a)
    tr(a, 1)
    stamp(a, 1, 0)
    dbg_init(a, 1)
    dbg(a, 6)
    dbg(a, 7, True)
    srd(a, sSV, 4, 0, N*512)
    srd(a, sH, 24, H_OFF, N*128)
    srd(a, sOUT, 20, 0, R*512, mul=R*512)
    srd(a, sOVF, 24, OVF_OFF, NB*CH*4)
    a('v_and_b32 v44, 15, v41')
    a('v_lshrrev_b32 v45, 4, v41')
    a('v_lshrrev_b32 v43, 2, v44')
    a('v_lshlrev_b32 v43, 3, v43')
    a('v_and_b32 v40, 3, v44')
    a('v_add_u32 v43, v43, v40')
    a(f's_mul_i32 s{sSTG}, s3, {STG}')
    a(f's_add_u32 s{sSTG}, s{sSTG}, {L_STG}')
    a(f's_sub_u32 s{sSD}, {L_SORT}, s{sSTG}')
    a(f'v_lshl_add_u32 v{vHA}, v43, 2, s{sSTG}')
    a('v_and_b32 v40, 1, v45')
    a('v_lshl_add_u32 v43, v40, 2, v43')
    a('v_lshrrev_b32 v40, 1, v45')
    a('v_lshl_add_u32 v43, v40, 5, v43')
    a(f'v_lshl_add_u32 v{vSTGW}, v43, 2, s{sSTG}')
    a(f'v_lshl_add_u32 v{vSTGH}, v43, 1, s{sSTG}')
    a(f'v_lshl_add_u32 v{vSTGR}, v45, 5, s{sSTG}')
    a(f'v_lshl_add_u32 v{vSTGS}, v45, 4, s{sSTG}')
    emit_Q(a, vLPV, 44, 40)
    a(f'v_lshlrev_b32 v{vLPV}, 3, v{vLPV}')
    a(f'v_lshlrev_b32 v{vLPH}, 4, v45')
    a(f'v_lshl_add_u32 v{vLPR}, v44, 9, v{vLPH}')
    a(f'v_lshl_or_b32 v{vQQ}, v44, 16, v44')
    a(f'v_mov_b32 v{vMHI}, 0xffff0000')
    a(f's_mov_b32 s{sROUND}, 0')
    a('s_waitcnt lgkmcnt(0)')
    a('s_barrier')
    a(f's_lshl_b32 s{sF}, s14, 16')
    a(f's_and_b32 s{sF+1}, s14, 0xffff0000')
    a(f's_lshl_b32 s{sF+2}, s15, 16')
    a(f's_and_b32 s{sF+3}, s15, 0xffff0000')
    a('v_and_b32 v39, 3, v0')
    a('v_lshlrev_b32 v39, 2, v39')
    a('v_subrev_u32 v39, 1, v39')
    LIM, CNT = 56, 58
    a('s_waitcnt vmcnt(8)')
    a(f'v_mov_b32_dpp v{CNT}, v{W} quad_perm:[0,0,0,0] row_mask:0xf bank_mask:0xf')
    a('s_waitcnt vmcnt(7)')
    a(f'v_mov_b32_dpp v{CNT+1}, v{W+4} quad_perm:[0,0,0,0] row_mask:0xf bank_mask:0xf')
    for h in range(2):
        a(f'v_and_b32 v{CNT+h}, 0xffff, v{CNT+h}')
        a(f'v_min_u32 v{LIM+h}, {CAP}, v{CNT+h}')
        a(f'v_subrev_u32 v{CNT+h}, {CAP}, v{CNT+h}')
    a('s_cmp_ge_u32 s3, 2')
    a.br('s_cbranch_scc1 L2_nodpos')
    a('s_waitcnt vmcnt(6)')
    a('v_lshlrev_b32 v84, 16, v46')
    a(f'v_and_b32 v85, v{vMHI}, v46')
    a('v_lshlrev_b32 v86, 16, v47')
    a('v_mov_b32 v87, 0')
    a('v_lshlrev_b32 v42, 4, v0')
    a(f'ds_write_b128 v42, v[84:87] offset:{L_DPOS}')
    a.label('L2_nodpos')
    a.label('L2_round')
    stamp(a, 1, 1)
    tr(a, 4)
    A = 60; RK = 68; T = 76
    a('v_mov_b32 v40, 1')
    for i in range(8):
        a(f'v_add_u32 v41, {i & 3}, v39')
        a(f'v_cmp_lt_u32 s[{64+2*i}:{65+2*i}], v41, v{LIM + i//4}')
        a(f'v_and_b32 v{A+i}, 127, v{W+i}')
        a(f'v_lshlrev_b32 v{A+i}, 2, v{A+i}')
        a(f'v_add_u32 v{A+i}, {L_NCNT}, v{A+i}')
    for i in range(8):
        a(f's_mov_b64 exec, s[{64+2*i}:{65+2*i}]')
        a(f'ds_add_rtn_u32 v{RK+i}, v{A+i}, v40')
    a('s_mov_b64 exec, -1')
    a(f'v_max_i32 v41, v{CNT}, v{CNT+1}')
    a('v_cmp_lt_i32 vcc, 0, v41')
    a.br('s_cbranch_vccz L2_noflag')
    a(f'v_mov_b32 v41, {L_FLAG}')
    a('ds_write_b32 v41, v40')
    a.label('L2_noflag')
    a(f'v_lshrrev_b32 v41, 9, v{vLANE16}')
    a('s_lshl_b32 s%d, s3, 1' % sT0)
    a(f'v_add_u32 v42, s{sT0}, v41')
    a('v_and_b32 v42, 7, v42')
    a('v_lshlrev_b32 v42, 5, v42')
    a(f'v_xor_b32 v42, v42, v{vLANE16}')
    for i in range(7):
        if i == 6:
            a('s_cmp_ge_u32 s3, 2')
            a.br('s_cbranch_scc1 L2_resdone')
        a(f's_lshl_b32 s{sT0}, s3, 10')
        if i: a(f's_add_u32 s{sT0}, s{sT0}, {i*8192}')
        a(f's_add_u32 m0, s{sT0}, {L_RES}')
        a(f'buffer_load_dwordx4 v42, s[{sRES}:{sRES+3}], s{sT0} offen sc1 lds')
    a.label('L2_resdone')
    a('s_waitcnt lgkmcnt(0)')
    a('s_barrier')
    stamp(a, 1, 2)
    tr(a, 5)
    a(f'v_lshrrev_b32 v41, 2, v{vLANE16}')
    a(f'v_add_u32 v41, {L_NCNT}, v41')
    a('ds_read2st64_b32 v[42:43], v41 offset1:1')
    a(f'v_mov_b32 v44, {L_FLAG}')
    a('ds_read_b32 v45, v44')
    a('s_waitcnt lgkmcnt(1)')
    a('v_lshl_or_b32 v42, v43, 16, v42')
    a('v_mov_b32 v43, v42')
    for sh in ('row_shr:1', 'row_shr:2', 'row_shr:4', 'row_shr:8'):
        a(f'v_add_u32_dpp v43, v43, v43 {sh} row_mask:0xf bank_mask:0xf')
    a('v_add_u32_dpp v43, v43, v43 row_bcast:15 row_mask:0xa bank_mask:0xf')
    a('v_add_u32_dpp v43, v43, v43 row_bcast:31 row_mask:0xc bank_mask:0xf')
    a('s_waitcnt lgkmcnt(0)')
    a(f'v_readfirstlane_b32 s{sMORE}, v45')
    a(f'v_readlane_b32 s{sT0}, v43, 63')
    a('v_sub_u32 v43, v43, v42')
    a(f's_and_b32 s{sT0}, s{sT0}, 0xffff')
    a(f'v_and_b32 v{vSTLO}, 0xffff, v43')
    a(f'v_lshrrev_b32 v{vSTHI}, 16, v43')
    a(f'v_add_u32 v{vSTHI}, s{sT0}, v{vSTHI}')
    a(f'ds_write2st64_b32 v41, v{vSTLO}, v{vSTHI} offset0:2 offset1:3')
    for i in range(8):
        a(f'ds_read_b32 v{T+i}, v{A+i} offset:512')
    a(f'v_lshl_or_b32 v{vPACK}, v{vSTHI}, 16, v{vSTLO}')
    for i in range(8):
        a('s_waitcnt lgkmcnt(7)')
        a(f'v_add_lshl_u32 v{T+i}, v{T+i}, v{RK+i}, 2')
        a(f's_mov_b64 exec, s[{64+2*i}:{65+2*i}]')
        a(f'ds_write_b32 v{T+i}, v{W+i} offset:{L_SORT}')
        a('s_mov_b64 exec, -1')
    for k, (st, d) in enumerate(((vSTLO, 32), (vSTHI, 32), (vSTLO, 64), (vSTHI, 64))):
        a(f'v_add_u32 v{T+k}, {d}, v{st}')
        a(f'v_lshlrev_b32 v{T+4+k}, 2, v{T+k}')
    a(f'v_readlane_b32 s{sT2}, v{vSTHI}, {R - 64}')
    a(f'v_lshrrev_b32 v40, 4, v{vLANE16}')
    a('v_add_u32 v41, 64, v40')
    a(f'v_mov_b32 v46, {R}')
    a(f's_mov_b32 s{sNC}, 0')
    a(f's_mov_b32 s{sC64}, s3')
    a('s_waitcnt lgkmcnt(0)')
    a('s_barrier')
    stamp(a, 1, 3)
    tr(a, 2)
    dbg(a, 8)
    dbg(a, 9, True)
    for k in (2, 3, 0, 1):
        a(f'ds_read_b32 v{T+4+k}, v{T+4+k} offset:{L_SORT}')
    for k in range(4):
        a(f'v_cmp_gt_u32 s[{64+2*k}:{65+2*k}], s{sT2}, v{T+k}')
    a('v_add_u32 v42, 1, v40')
    a('v_add_u32 v43, 16, v40')
    a('v_add_u32 v44, 1, v41')
    a('v_add_u32 v45, 16, v41')
    for k in (2, 3, 0, 1):
        r = T + 4 + k
        if k in (2, 0): a(f's_waitcnt lgkmcnt({2 if k == 2 else 0})')
        a(f'v_and_b32 v{r}, 127, v{r}')
        a(f'v_cndmask_b32_e64 v{r}, v46, v{r}, s[{64+2*k}:{65+2*k}]')
        a(f'v_med3_u32 v{r}, v{r}, v{42 + 2*(k & 1)}, v{43 + 2*(k & 1)}')
        a(f'v_min_u32 v{r}, v46, v{r}')
        if k == 3: a(f'v_lshl_or_b32 v{vNX64}, v{T+7}, 16, v{T+6}')
    a(f'v_lshl_or_b32 v{vNX32}, v{T+5}, 16, v{T+4}')
    chain_loop(a, vNX64, sC64)
    a(f's_cmp_lt_u32 s{sNC}, {R}')
    a.br('s_cbranch_scc1 L2_haveitem')
    a('s_waitcnt vmcnt(0)')
    a('s_barrier')
    a.br('s_branch L2_rounddone')
    a.label('L2_haveitem')
    if opt.prio: a('s_setprio 3')
    a(f's_mov_b32 s{sN0}, s{sNC}')
    chain_start(a, sE0)
    chain_step(a, vNX64)
    chain_start(a, sE1)
    a(f's_sub_u32 s{sNN}, s{sNC}, s{sN0}')
    a(f's_mov_b32 s{sXE0}, s{sE0}')
    a(f's_mov_b32 s{sXE1}, s{sE1}')
    emit(a, next_entry_read(TP))
    emit(a, next_mask(TP+4))
    a(f's_sub_u32 s{sC64}, 7, s3')
    a(f's_mov_b32 s{sC32}, s3')
    a('s_waitcnt lgkmcnt(0)')
    emit(a, next_stage(TP+4, TP+5))
    emit(a, off_reads(0))
    emit(a, pos_load(TP+5))
    a('s_waitcnt lgkmcnt(0)')
    emit(a, off_adds())
    emit(a, h_loads())
    a('s_waitcnt vmcnt(5)')
    a('s_barrier')
    a(f'v_mov_b32 v{vRES}, 0x40000000')
    emit(a, out_stores(vRES))
    if opt.prio: a('s_setprio 0')
    if opt.prio2 == 1:
        a('s_cmp_lt_u32 s3, 4')
        a('s_cbranch_scc1 L2_noprio')
        a('s_setprio 1')
        a.label('L2_noprio', settle=False)
    tr(a, 3)
    a.br('s_branch L2_head_A')
    head(a, 'B')
    head(a, 'A')
    tail(a, 'toC')
    head(a, 'C')
    newitem(a)
    tail(a, 'toA')
    tail(a, 'fin')
    a.label('L2_rounddone')
    tr(a, 30)
    stamp(a, 1, 4)
    a(f's_cmp_eq_u32 s{sMORE}, 0')
    a.br('s_cbranch_scc1 L2_fin')
    a('s_waitcnt vmcnt(0) lgkmcnt(0)')
    a('s_barrier')
    zero_counters('b')
    srd(a, sRES, 20, 0, R*512, mul=R*512)
    a('v_lshrrev_b32 v40, 2, v0')
    a('v_lshlrev_b32 v41, 6, v40')
    a(f'buffer_load_dword v42, v41, s[{sSLOT}:{sSLOT+3}], 0 offen')
    a('v_add_u32 v41, 8192, v41')
    a(f'buffer_load_dword v43, v41, s[{sSLOT}:{sSLOT+3}], 0 offen')
    a('v_and_b32 v39, 3, v0')
    a('v_lshlrev_b32 v39, 2, v39')
    a(f's_lshl_b32 s{sT0}, s{sROUND}, 4')
    a(f's_add_u32 s{sT1}, s{sT0}, {CAP}')
    a(f's_add_u32 s{sROUND}, s{sROUND}, 1')
    a(f'v_mul_u32_u24 v40, {CH*4}, v40')
    a('v_lshl_add_u32 v40, v39, 2, v40')
    a(f's_lshl_b32 s{sT0}, s{sT0}, 2')
    a(f'v_add_u32 v40, s{sT0}, v40')
    a('s_waitcnt vmcnt(0)')
    for h in range(2):
        a(f'v_lshrrev_b32 v44, 16, v{42+h}')
        a(f'v_lshl_add_u32 v44, v44, 2, v40')
        if h: a(f'v_add_u32 v44, {128*CH*4}, v44')
        a(f'buffer_load_dwordx4 v[{W+4*h}:{W+4*h+3}], v44, s[{sOVF}:{sOVF+3}], 0 offen')
        a(f'v_and_b32 v{CNT+h}, 0xffff, v{42+h}')
        a(f'v_subrev_u32 v{CNT+h}, s{sT1}, v{CNT+h}')
        a(f'v_med3_i32 v{LIM+h}, v{CNT+h}, 0, 16')
        a(f'v_subrev_u32 v{CNT+h}, 16, v{CNT+h}')
    a('s_waitcnt vmcnt(0) lgkmcnt(0)')
    a('s_barrier')
    a.br('s_branch L2_round')
    a.label('L2_fin')
    tr_dump(a)
    if opt.ts or opt.dbg:
        a('s_waitcnt vmcnt(0)')
        stamp(a, 1, 5)
        dbg(a, 10)
        dbg(a, 11, True)
    a.label('L2_end')
    a('s_endpgm')

def build():
    src = open('gather_scatter__molecular_angular_painn__graph.s.ref').read().split('\n')
    head = []
    for ln in src:
        if not ln.startswith(';'): break
        if '@launch' in ln or 'Override launch' in ln or 'grid=ceil' in ln: continue
        head.append(ln)
    k1, k2 = 'painn_bin_kernel', 'painn_msg_kernel'
    head.append(f'; @launch kernel={k1} grid=({NB},1,1) block=(1024,1,1) lds={K1_LDS}')
    head.append(f'; @launch kernel={k2} grid=({NB},1,1) block=(512,1,1) lds={K2_LDS}')
    a = Asm()
    a.raw('.amdgcn_target "amdgcn-amd-amdhsa--gfx950"\n.text')
    gen_k1(a, k1)
    gen_k2(a, k2)
    out = '\n'.join(head) + '\n' + a.text() + '.section .rodata,"a"\n' + descriptor(k1, 128) + descriptor(k2, K2_VGPR)
    return out

if __name__ == '__main__':
    outp = sys.argv[1]
    for kv in sys.argv[2:]:
        k, val = kv.split('=')
        setattr(opt, k, type(getattr(opt, k))(eval(val)))
    open(outp, 'w').write(build())
```

```python
import sys
from asmlib import Asm
import gen4 as g
from gen4 import *

NAME = 'gather_scatter__molecular_angular_painn__graph_kernel'
SS = 16512
EPOCH_OFF = SLOT_OFF + 250*SS
L_WRR = 125952
L_STAGE = 129024
L_W2R = 101376
opt.ng0 = 2; opt.hprio = 2; opt.rawpos = True; opt.pfres = 1; opt.wb = 2; opt.yld = 0; opt.pfv = []; opt.diag = ''; opt.pfn = 2; opt.pfh = False; opt.fine = False; opt.tr0 = False; opt.hsc = 'sc1'; opt.rt = False; opt.spin = 16; opt.pk = True; opt.sleep = 2; opt.res_when = 'pre'; opt.prew = True; opt.pfw = True; opt.pollmask = True; opt.dumpsc = 'sc1'
sNB = 8
sEP = 100
sFI = 86
g.sFI = sFI
pLDS, pOFA, pOFB, pME, pM0, pT0, pPA, pPB, pN0, pNE, pWA, pWD, pWR, pHC, pHS = range(172, 187)
pRS = 188
sWRR = 12
sPC0 = 78
M_ENT = 0x00fffe7f; M_HDR = 0x00ffffff

def tr(a, tag):
    if not opt.tr: return
    a('s_memrealtime s[92:93]' if opt.rt else 's_memtime s[92:93]')
    a('s_mov_b32 m0, s27')
    a('s_add_u32 s27, s27, 1')
    a('s_waitcnt lgkmcnt(0)')
    a('s_lshl_b32 s92, s92, 6')
    a(f's_or_b32 s92, s92, {tag}')
    a('v_writelane_b32 v11, s92, m0')
g.tr = tr

def h_loads():
    return [f'buffer_load_dwordx4 v[{H+et*8+ks*4}:{H+et*8+ks*4+3}], v{HOFF+et}, s[{sH}:{sH+3}], 0 offen offset:{ks*64} {opt.hsc}'
            for et in range(2) for ks in range(2)]
def pos_load(u): return [f'v_and_b32 v{u-1}, -4, v{u}', f'buffer_load_dwordx2 v[{PS}:{PS+1}], v{u-1}, s[{sP4}:{sP4+3}], 0 offen']
g.h_loads = h_loads; g.pos_load = pos_load


def rare_paths(a):
    RK1, BINC, ENT = 136, 80, 96
    a.label('L1_ovf')
    a('s_cmp_ge_u32 s3, 4')
    a.br('s_cbranch_scc1 L1_ovf_based')
    a('v_lshlrev_b32 v40, 2, v0')
    a(f'v_add_u32 v40, {K1_CNT}, v40')
    a('ds_read_b32 v41, v40')
    a('s_waitcnt lgkmcnt(0)')
    a(f'v_cmp_lt_u32 vcc, {CAP}, v41')
    a('s_and_saveexec_b64 s[88:89], vcc')
    a.br('s_cbranch_execz L1_ovf_none')
    a(f'v_subrev_u32 v41, {CAP}, v41')
    a(f'v_mov_b32 v42, {K1_CNT + 1024}')
    a('ds_add_rtn_u32 v43, v42, v41')
    a('s_waitcnt lgkmcnt(0)')
    a(f'ds_write_b32 v40, v43 offset:{K1_OVB - K1_CNT}')
    a.label('L1_ovf_none')
    a('s_mov_b64 exec, s[88:89]')
    a.label('L1_ovf_based')
    a('s_waitcnt lgkmcnt(0)')
    a('s_barrier')
    srd(a, 88, 24, OVF_OFF, CH*4, mul=CH*4)
    for i in range(7):
        a('s_mov_b64 exec, -1')
        a(f'v_cmp_le_u32 vcc, {CAP}, v{RK1+i}')
        a(f's_and_b64 exec, vcc, s[{64+2*i}:{65+2*i}]')
        a.br(f's_cbranch_execz L1_ovf{i}')
        a(f'ds_read_b32 v40, v{BINC+i} offset:{K1_OVB - K1_CNT}')
        a('s_waitcnt lgkmcnt(0)')
        a(f'v_add_u32 v40, v40, v{RK1+i}')
        a(f'v_subrev_u32 v40, {CAP}, v40')
        a('v_lshlrev_b32 v40, 2, v40')
        a(f'buffer_store_dword v{ENT+i}, v40, s[88:91], 0 offen sc1')
        a.label(f'L1_ovf{i}')
    a('s_mov_b64 exec, -1')
    for h in range(2):
        a(f'ds_read_b32 v40, v{pHC} offset:{K1_OVB - K1_CNT + 512*h}')
        a(f'v_cmp_lt_u32 vcc, {CAP}, v{108+h}')
        a('s_waitcnt lgkmcnt(0)')
        a('v_lshlrev_b32 v40, 12, v40')
        a('v_cndmask_b32_e64 v40, 0, v40, vcc')
        a(f'v_or_b32 v{108+h}, v{108+h}, v40')
    a('s_waitcnt vmcnt(0)')
    a('s_barrier')
    a.br('s_branch L1_noovf')

def consts_poll(a):
    a('s_and_b32 s60, s2, 0xf0')
    a('s_and_b32 s61, s2, 7')
    a('s_lshl_b32 s61, s61, 1')
    a('s_or_b32 s60, s60, s61')
    a('s_bfe_u32 s61, s2, 0x10003')
    a('s_or_b32 s60, s60, s61')
    a('s_lshl_b32 s60, s60, 6')
    a(f's_add_u32 s60, s60, {SLOT_OFF}')
    a(f's_add_u32 s{sSLOT}, s24, s60')
    a(f's_addc_u32 s{sSLOT+1}, s25, 0')
    a(f's_mov_b32 s{sSLOT+2}, {(NB-1)*SS + 64}')
    a(f's_mov_b32 s{sSLOT+3}, 0x20000')
    a('v_lshrrev_b32 v43, 2, v0')
    a(f'v_mul_u32_u24 v43, {SS}, v43')
    a(f'v_add_u32 v{pPA}, v{pPA}, v43')
    a(f'v_add_u32 v{pPB}, {128*SS}, v{pPA}')
    a(f'v_not_b32 v{pNE}, v{pME}')
    a('v_cmp_gt_u32 vcc, 488, v0')
    a('s_mov_b64 s[64:65], vcc')

def consts_late(a):
    a(f's_and_b32 s{sF+3}, s{sF+1}, 0xffff0000')
    a(f's_lshl_b32 s{sF+2}, s{sF+1}, 16')
    a(f's_and_b32 s{sF+1}, s{sF}, 0xffff0000')
    a(f's_lshl_b32 s{sF}, s{sF}, 16')
    srd(a, sSV, 4, 0, 0 if 'V' in opt.diag else N*512)
    srd(a, sH, 24, H_OFF, 0 if 'H' in opt.diag else N*128)
    srd(a, sOUT, 20, 0, 0 if 'S' in opt.diag else R*512, mul=R*512)
    srd(a, sOVF, 24, OVF_OFF, NB*CH*4)
    a(f'v_bfe_u32 v44, v{vLANE16}, 4, 4')
    a(f'v_lshrrev_b32 v45, 8, v{vLANE16}')
    a('v_lshrrev_b32 v43, 2, v44')
    a('v_lshlrev_b32 v43, 3, v43')
    a('v_and_b32 v40, 3, v44')
    a('v_add_u32 v43, v43, v40')
    a(f's_mul_i32 s{sSTG}, s3, {STG}')
    a(f's_add_u32 s{sSTG}, s{sSTG}, {L_STG}')
    a(f's_sub_u32 s{sSD}, {L_SORT}, s{sSTG}')
    a(f'v_lshl_add_u32 v{vHA}, v43, 2, s{sSTG}')
    a('v_and_b32 v40, 1, v45')
    a('v_lshl_add_u32 v43, v40, 2, v43')
    a('v_lshrrev_b32 v40, 1, v45')
    a('v_lshl_add_u32 v43, v40, 5, v43')
    a(f'v_lshl_add_u32 v{vSTGW}, v43, 2, s{sSTG}')
    a(f'v_lshl_add_u32 v{vSTGH}, v43, 1, s{sSTG}')
    a(f'v_lshl_add_u32 v{vSTGR}, v45, 5, s{sSTG}')
    a(f'v_lshl_add_u32 v{vSTGS}, v45, 4, s{sSTG}')
    emit_Q(a, vLPV, 44, 40)
    a(f'v_lshlrev_b32 v{vLPV}, 3, v{vLPV}')
    a(f'v_lshl_add_u32 v{vLPR}, v44, 9, v{vLPH}')
    a(f'v_lshl_or_b32 v{vQQ}, v44, 16, v44')
    a(f's_mov_b32 s{sROUND}, 0')
    a(f'v_lshrrev_b32 v40, 1, v45')
    for k in range(4):
        a(f'v_add_u32 v{pRS+k}, {2*k}, v40')
        a(f'v_lshlrev_b32 v{pRS+k}, 5, v{pRS+k}')
        a(f'v_xor_b32 v{pRS+k}, v{pRS+k}, v{vLANE16}')
    a('v_and_b32 v39, 3, v0')
    a('v_lshlrev_b32 v39, 2, v39')
    a('v_subrev_u32 v39, 1, v39')

def build_weights(a):
    a('s_and_b32 s60, s3, 1')
    a(f's_mul_i32 s60, s60, {32*384}')
    a('s_bfe_u32 s62, s3, 0x20001')
    a('s_lshl_b32 s62, s62, 1')
    a('s_add_u32 s60, s60, s62')
    a(f's_add_u32 s60, s60, {L_W2R}')
    a(f'v_mul_u32_u24 v{pWA}, 96, v{vLPH}')
    a(f'v_add3_u32 v{pWA}, v{pWA}, v{vLPV}, s60')
    a('s_lshl_b32 s60, s3, 10')
    a(f'v_add_u32 v{pWD}, s60, v{vLANE16}')
    a(f'v_lshrrev_b32 v{pWR}, 3, v{vLPH}')
    a(f'v_add_u32 v{pWR}, v{pWR}, v{vLPV}')
    a(f'v_add_u32 v{pWR}, {L_WRR}, v{pWR}')
    for p in range(3):
        for k in range(4):
            a(f'ds_read_u16 v{104+4*p+k}, v{pWR} offset:{k*384 + p*128}')
    a('s_waitcnt lgkmcnt(0)')
    for p in range(3):
        for jj in range(8):
            if p and jj == 5: a('s_waitcnt lgkmcnt(11)')
            a(f'ds_read_u16 v{64+8*(p&1)+jj}, v{pWA} offset:{p*128 + (16*(jj>>2) + (jj&3))*384}')
        if p == 0:
            for pp in range(3):
                for i in range(2):
                    a(f'v_lshl_or_b32 v{WR+2*pp+i}, v{105+4*pp+2*i}, 16, v{104+4*pp+2*i}')
        if p:
            q = p - 1
            a('s_waitcnt lgkmcnt(8)')
            for i in range(4): a(f'v_lshl_or_b32 v{80+i}, v{65+8*(q&1)+2*i}, 16, v{64+8*(q&1)+2*i}')
            a(f'ds_write_b128 v{pWD}, v[80:83] offset:{q*8192}')
    a('s_waitcnt lgkmcnt(1)')
    for i in range(4): a(f'v_lshl_or_b32 v{84+i}, v{65+2*i}, 16, v{64+2*i}')
    a(f'ds_write_b128 v{pWD}, v[84:87] offset:{2*8192}')

def gen(a):
    header(a, NAME)
    a('s_cmp_ge_u32 s2, %d' % NB)
    a('s_cbranch_scc1 L_end')
    a('s_load_dwordx8 s[4:11], s[0:1], 0')
    a('s_load_dwordx8 s[12:19], s[0:1], 32')
    a('s_load_dwordx2 s[20:21], s[0:1], 64')
    a('s_load_dwordx2 s[24:25], s[0:1], 80')
    a('v_lshrrev_b32 v40, 6, v0')
    a('v_and_b32 v41, 63, v0')
    a('v_readfirstlane_b32 s3, v40')
    a(f'v_lshlrev_b32 v{vLANE16}, 4, v41')
    a('v_lshlrev_b32 v42, 4, v0')
    a('v_and_b32 v44, 15, v41')
    a('v_lshrrev_b32 v45, 4, v41')
    a(f'v_lshlrev_b32 v{vLPH}, 4, v45')
    a('s_and_b32 s60, s3, 3')
    a('s_lshl_b32 s60, s60, 4')
    a('v_add_u32 v46, s60, v44')
    a(f'v_lshl_add_u32 v64, v46, 9, v{vLPH}')
    a(f'v_lshl_add_u32 v65, v46, 7, v{vLPH}')
    a('v_lshrrev_b32 v43, 2, v42')
    a('s_lshl_b32 s61, s3, 10')
    a(f's_add_u32 m0, s61, {K1_W1}')
    a('s_waitcnt lgkmcnt(0)')
    if opt.tr0:
        tr_init(a); tr(a, 48)
        a('s_lshl_b32 s61, s3, 10')
        a(f's_add_u32 m0, s61, {K1_W1}')
    srd(a, 72, 14, 0, 8192)
    a(f'buffer_load_dwordx4 v{vLANE16}, s[72:75], s61 offen lds')
    srd(a, sRES, 4, 0, R*512, mul=R*512)
    S = 68
    a('s_cmp_lt_u32 s3, 4')
    a('s_cbranch_scc1 L1_nos')
    a(f'buffer_load_dwordx4 v[{S}:{S+3}], v64, s[{sRES}:{sRES+3}], 0 offen')
    a(f'buffer_load_dwordx4 v[{S+4}:{S+7}], v64, s[{sRES}:{sRES+3}], 0 offen offset:64')
    a(f'v_add_u32 v64, {64*512}, v64')
    a(f'buffer_load_dwordx4 v[{S+8}:{S+11}], v64, s[{sRES}:{sRES+3}], 0 offen')
    a(f'buffer_load_dwordx4 v[{S+12}:{S+15}], v64, s[{sRES}:{sRES+3}], 0 offen offset:64')
    a.label('L1_nos', settle=False)
    SRC, DST = 48, 56
    srd(a, 64, 8, 0, CH*4, mul=CH*4)
    srd(a, 68, 10, 0, CH*4, mul=CH*4)
    nt = 'nt' if opt.nt_edges else ''
    a('v_lshrrev_b32 v47, 1, v42')
    a('v_add_u32 v47, 8192, v47')
    a(f'buffer_load_dwordx4 v[{SRC}:{SRC+3}], v42, s[64:67], 0 offen {nt}')
    a(f'buffer_load_dwordx4 v[{DST}:{DST+3}], v42, s[68:71], 0 offen {nt}')
    a(f'buffer_load_dwordx2 v[{SRC+4}:{SRC+5}], v47, s[64:67], 0 offen {nt}')
    a(f'buffer_load_dwordx2 v[{DST+4}:{DST+5}], v47, s[68:71], 0 offen {nt}')
    a(f'v_add_u32 v47, {12288 - 512}, v43')
    a('s_sub_u32 s60, s3, 2')
    a('s_cmp_lt_u32 s60, 2')
    a('s_cselect_b32 s62, 0, 0x40000000')
    a('v_add_u32 v47, s62, v47')
    a(f'buffer_load_dword v{SRC+6}, v47, s[64:67], 0 offen {nt}')
    a(f'buffer_load_dword v{DST+6}, v47, s[68:71], 0 offen {nt}')
    a(f's_add_u32 s62, s24, {EPOCH_OFF}')
    a('s_addc_u32 s63, s25, 0')
    a(f's_load_dword s{sEP}, s[62:63], 0')
    a(f's_load_dwordx2 s[{sF}:{sF+1}], s[12:13], 0')
    srd(a, 72, 6, 0, N*6)
    srd(a, sP4, 6, 0, 0 if 'P' in opt.diag else N*6)
    a('s_lshr_b32 s63, s2, 3')
    def group():
        a('s_sub_u32 s61, s60, 37')
        a('s_cmp_ge_u32 s60, 37')
        a('s_cselect_b32 s60, s61, s60')
        a('s_lshl_b32 s61, s60, 12')
        a('s_mov_b32 m0, s61')
        a(f's_add_u32 s60, s60, {group.step}')
        for k in range(4):
            a(f'buffer_load_dwordx4 v{vLANE16}, s[72:75], s61 offen offset:{1024*k} lds')
    NG = opt.ng0
    a('s_add_u32 s60, s63, s3')
    group.step = 8
    for i in range(NG): group()
    if not opt.tr0: tr_init(a)
    tr(a, 1)
    a('v_mov_b32 v40, 0')
    a(f'v_add_u32 v47, {K1_CNT}, v43')
    a('s_cmp_ge_u32 s3, 5')
    a('s_cbranch_scc1 L1_nozero')
    a('ds_write_b32 v47, v40')
    a.label('L1_nozero', settle=False)
    a(f's_waitcnt vmcnt({6 + 4*NG}) lgkmcnt(0)')
    a('s_barrier')
    tr(a, 2)
    a('s_cmp_ge_u32 s3, 4')
    a('s_cbranch_scc1 L1_hpath')
    a('s_add_u32 s60, s63, s3')
    a(f's_add_u32 s60, s60, {8*NG}')
    a('s_sub_u32 s61, s60, 37')
    a('s_cmp_ge_u32 s60, 37')
    a('s_cselect_b32 s60, s61, s60')
    group.step = 4
    rest = 37 - 8*NG
    for i in range((rest + 3)//4):
        if 4*i + 3 >= rest:
            a(f's_cmp_ge_u32 s3, {rest - 4*i}')
            a('s_cbranch_scc1 L1_tabdone')
        group()
    a.label('L1_tabdone', settle=False)
    if opt.fine: tr(a, 54)
    a(f's_waitcnt vmcnt({4*NG + 4*(rest//4)})')
    a('s_branch L1_consts')
    a.label('L1_hpath', settle=False)
    if opt.hprio: a(f's_setprio {opt.hprio}')
    srd(a, 76, 24, H_OFF, R*128, mul=R*128)
    a('v_lshrrev_b32 v66, 2, v44')
    a('v_lshl_add_u32 v66, v45, 3, v66')
    a('v_and_b32 v67, 3, v44')
    a('v_lshlrev_b32 v67, 3, v67')
    a('v_lshl_add_u32 v66, v66, 7, v67')
    a(f'v_add_u32 v66, {K1_W1}, v66')
    FR = 100
    for ht in range(4):
        for ks in range(2):
            r = FR + (ht*2+ks)*4
            if ht == 3 and ks == 0: a('s_waitcnt lgkmcnt(4)')
            for hf in range(2):
                a(f'ds_read_b64_tr_b16 v[{r+2*hf}:{r+2*hf+1}], v66 offset:{ks*4096 + ht*32 + hf*512}')
    D = 132; O = 148; Tt = 164
    a('s_waitcnt lgkmcnt(0)')
    for t in range(2):
        if t == 1:
            a('s_cmp_eq_u32 s3, 7')
            a.br('s_cbranch_scc1 L1_hdone')
        for ht in range(4):
            a(f'v_mfma_f32_16x16x32_bf16 v[{D+4*ht}:{D+4*ht+3}], v[{FR+ht*8}:{FR+ht*8+3}], v[{S+8*t}:{S+8*t+3}], 0')
            a(f'v_mfma_f32_16x16x32_bf16 v[{D+4*ht}:{D+4*ht+3}], v[{FR+ht*8+4}:{FR+ht*8+7}], v[{S+8*t+4}:{S+8*t+7}], v[{D+4*ht}:{D+4*ht+3}]')
        for grp in range(4):
            for i in range(4): a(f'v_cvt_pk_bf16_f32 v{D+4*grp+i}, 0, v{D+4*grp+i}')
            for i in range(4): a(f'v_mul_f32 v{Tt+i}, {fl(-1.4426950408889634)}, v{D+4*grp+i}')
            for i in range(4): a(f'v_exp_f32 v{Tt+i}, v{Tt+i}')
            for i in range(4): a(f'v_add_f32 v{Tt+i}, 1.0, v{Tt+i}')
            for i in range(4): a(f'v_rcp_f32 v{Tt+i}, v{Tt+i}')
            for i in range(4): a(f'v_mul_f32 v{Tt+i}, v{Tt+i}, v{D+4*grp+i}')
            a(f'v_cvt_pk_bf16_f32 v{O+8*t+2*grp}, v{Tt}, v{Tt+1}')
            a(f'v_cvt_pk_bf16_f32 v{O+8*t+2*grp+1}, v{Tt+2}, v{Tt+3}')
        if t == 0:
            O2 = O
        else:
            pass
    a.label('L1_hdone')
    if opt.fine: tr(a, 57)
    a(f'buffer_store_dwordx4 v[{O}:{O+3}], v65, s[76:79], 0 offen sc1')
    a(f'buffer_store_dwordx4 v[{O+4}:{O+7}], v65, s[76:79], 0 offen offset:64 sc1')
    a(f'v_add_u32 v65, {64*128}, v65')
    a(f'buffer_store_dwordx4 v[{O+8}:{O+11}], v65, s[76:79], 0 offen sc1')
    a(f'buffer_store_dwordx4 v[{O+12}:{O+15}], v65, s[76:79], 0 offen offset:64 sc1')
    a(f's_waitcnt vmcnt({4*NG + 4})')
    a.label('L1_consts')
    if opt.fine: tr(a, 55)
    a('s_waitcnt lgkmcnt(0)')
    a(f's_add_u32 s{sEP}, s{sEP}, 1')
    for j in (1, 2, 3):
        a(f's_lshr_b32 s60, s{sEP}, {10*(j-1)}')
        a('s_lshl_b32 s61, s60, 24')
        a('s_lshr_b32 s60, s60, 1')
        a('s_and_b32 s60, s60, 0x180')
        a(f's_or_b32 s{sNB+j}, s60, s61')
    a(f's_xor_b32 s{sNB}, s{sNB+1}, 0xff000180')
    srd(a, sW2F, 16, 0, 64*192*2)
    srd(a, sWRR, 18, 0, 4*192*2)
    a(f'v_mov_b32 v{vMHI}, 0xffff0000')
    a('v_lshrrev_b32 v43, 2, v0')
    a('v_and_b32 v40, 0xf0, v43')
    a('v_bfe_u32 v46, v43, 1, 3')
    a('v_or_b32 v40, v40, v46')
    a('v_and_b32 v46, 1, v43')
    a('v_lshl_or_b32 v40, v46, 3, v40')
    a('v_and_b32 v46, 3, v0')
    a(f'v_lshlrev_b32 v{pPA}, 4, v46')
    a(f'v_lshlrev_b32 v{pHC}, 2, v40')
    a(f'v_add_u32 v{pHC}, {K1_CNT}, v{pHC}')
    a('v_mul_u32_u24 v40, 80, v40')
    a(f'v_add_u32 v40, v40, v{pPA}')
    a(f'v_add_u32 v{pLDS}, {L_STAGE}, v40')
    a(f'v_lshlrev_b32 v{pOFA}, 4, v0')
    a(f'v_add_u32 v{pOFB}, 8192, v{pOFA}')
    a(f'v_mov_b32 v{pME}, {M_ENT}')
    a(f'v_mov_b32 v{pM0}, {M_HDR}')
    a(f'v_cmp_eq_u32 s[{sPC0}:{sPC0+1}], 0, v46')
    a(f'v_add_u32 v{pHS}, {K1_CNT}, v{vLANE16}')
    a(f'v_cndmask_b32_e64 v{pM0}, v{pME}, v{pM0}, s[{sPC0}:{sPC0+1}]')
    a(f'v_not_b32 v{pN0}, v{pM0}')
    a(f'v_and_b32 v{pT0}, s{sNB}, v{pN0}')
    if opt.fine: tr(a, 56)
    AS, AD = 64, 72
    BINC, BINS, ENT = 80, 88, 96
    P = 104
    a(f's_mov_b32 s60, {fl(opt.thr)}')
    a('s_mov_b32 s61, -100')
    a(f's_mov_b32 s62, {K1_CNT}')
    a(f's_mov_b32 s63, {L_STAGE}')
    def prep(i):
        a(f'v_mul_u32_u24 v40, 5243, v{DST+i}')
        a(f'v_mul_u32_u24 v{AS+i}, 6, v{SRC+i}')
        a(f'v_lshrrev_b32 v40, 19, v40')
        a(f'v_mul_u32_u24 v{AD+i}, 6, v{DST+i}')
        a(f'v_mad_i32_i24 v41, v40, s61, v{DST+i}')
        a(f'v_lshl_add_u32 v{BINC+i}, v40, 2, s62')
        a(f'v_lshl_or_b32 v{ENT+i}, v{SRC+i}, 9, v41')
        a(f'v_mad_u32_u24 v{BINS+i}, v40, v47, s63')
        a(f'v_and_b32 v{SRC+i}, -4, v{AS+i}')
        a(f'v_and_b32 v{DST+i}, -4, v{AD+i}')
    a('v_mov_b32 v47, 80')
    RK1 = 136
    for i in range(7): prep(i)
    a(f's_mul_i32 s84, s2, {R}')
    a(f'v_lshrrev_b32 v41, 4, v{vLANE16}')
    a('v_add_u32 v132, s84, v41')
    a('v_add_u32 v133, 64, v132')
    for h in range(2):
        a(f'v_mul_u32_u24 v{132+h}, 6, v{132+h}')
        a(f'v_and_b32 v{134+h}, -4, v{132+h}')
    a('v_mov_b32 v46, 1')
    if opt.hprio: a('s_setprio 0')
    tr(a, 3)
    a('s_cmp_ge_u32 s3, 4')
    a('s_cbranch_scc1 L1_b1')
    a('s_waitcnt vmcnt(0)')
    a.label('L1_b1', settle=False)
    a('s_waitcnt vmcnt(4) lgkmcnt(0)')
    a('s_barrier')
    tr(a, 4)
    def reads(i):
        a(f'ds_read2_b32 v[{P+4*i}:{P+4*i+1}], v{SRC+i} offset1:1')
        a(f'ds_read2_b32 v[{P+4*i+2}:{P+4*i+3}], v{DST+i} offset1:1')
    def test(i):
        p, q = P+4*i, P+4*i+2
        a(f'v_alignbyte_b32 v40, v{p+1}, v{p}, v{AS+i}')
        a(f'v_alignbyte_b32 v41, v{p+1}, v{p+1}, v{AS+i}')
        a(f'v_alignbyte_b32 v42, v{q+1}, v{q}, v{AD+i}')
        a(f'v_alignbyte_b32 v43, v{q+1}, v{q+1}, v{AD+i}')
        a(f'v_lshlrev_b32 v{p}, 16, v40')
        a(f'v_lshlrev_b32 v{q}, 16, v42')
        a(f'v_and_b32 v40, v{vMHI}, v40')
        a(f'v_and_b32 v42, v{vMHI}, v42')
        a(f'v_lshlrev_b32 v41, 16, v41')
        a(f'v_lshlrev_b32 v43, 16, v43')
        a(f'v_sub_f32 v{p}, v{p}, v{q}')
        a(f'v_sub_f32 v40, v40, v42')
        a(f'v_sub_f32 v41, v41, v43')
        a(f'v_mul_f32 v{p}, v{p}, v{p}')
        a(f'v_fmac_f32 v{p}, v40, v40')
        a(f'v_fmac_f32 v{p}, v41, v41')
        a(f'v_cmp_ngt_f32 s[{64+2*i}:{65+2*i}], v{p}, s60')
    def rank(i):
        a(f's_mov_b64 exec, s[{64+2*i}:{65+2*i}]')
        a(f'ds_add_rtn_u32 v{RK1+i}, v{BINC+i}, v46')
        a('s_mov_b64 exec, -1')
    for i in range(6): reads(i)
    if opt.pfres:
        a(f's_lshl_b32 s84, s3, 12')
        for k in range(4):
            a(f'buffer_load_dwordx4 v[164:167], v{vLANE16}, s[{sRES}:{sRES+3}], s84 offen offset:{1024*k}')
        if opt.pfres > 1:
            a('s_add_u32 s84, s84, 32768')
            for k in range(4):
                a(f'buffer_load_dwordx4 v[164:167], v{vLANE16}, s[{sRES}:{sRES+3}], s84 offen offset:{1024*k}')
    if opt.prew or opt.pfw:
        a('s_sub_u32 s84, s3, 4')
        a('s_cmp_ge_u32 s84, 3')
        a('s_cbranch_scc1 L1_notouch')
    if opt.pfw:
        a('s_lshr_b32 s85, s2, 3')
        a('s_mul_i32 s85, s85, 768')
        a('s_lshl_b32 s86, s84, 8')
        a('s_add_u32 s85, s85, s86')
        a(f'v_and_b32 v47, 0xf0, v{vLANE16}')
        a('v_add_u32 v47, s85, v47')
        a(f'buffer_load_dwordx4 v[168:171], v47, s[{sW2F}:{sW2F+3}], 0 offen')
    if opt.prew:
        srd(a, 88, 24, SLOT_OFF, 16384, mul=SS)
        a(f'v_subrev_u32 v47, 4096, v{pOFA}')
        for k in range(6):
            a('buffer_load_dwordx4 v[168:171], v47, s[88:91], 0 offen')
            if k < 5: a('v_add_u32 v47, 3072, v47')
        a(f's_mov_b32 s{sROUND}, 0')
    if opt.prew or opt.pfw:
        a.label('L1_notouch', settle=False)
    a('s_mov_b64 s[76:77], 0')
    a('s_sub_u32 s84, s3, 2')
    a('s_cmp_lt_u32 s84, 2')
    a('s_cbranch_scc0 L1_six')
    a('s_waitcnt lgkmcnt(10)')
    test(0)
    reads(6)
    a('s_waitcnt lgkmcnt(0)')
    test(6)
    a.br('s_branch L1_rest')
    a.label('L1_six')
    a('s_cmp_lg_u32 s3, 7')
    a('s_cbranch_scc1 L1_notw7')
    a('s_waitcnt lgkmcnt(8)')
    for h in range(2):
        a(f'ds_read2_b32 v[{152+2*h}:{153+2*h}], v{134+h} offset1:1')
    a('s_waitcnt lgkmcnt(0)')
    for h in range(2):
        a(f'v_alignbyte_b32 v{156+2*h}, v{153+2*h}, v{152+2*h}, v{132+h}')
        a(f'v_alignbyte_b32 v{157+2*h}, v{153+2*h}, v{153+2*h}, v{132+h}')
        a(f'v_lshlrev_b32 v{144+4*h}, 16, v{156+2*h}')
        a(f'v_and_b32 v{145+4*h}, v{vMHI}, v{156+2*h}')
        a(f'v_lshlrev_b32 v{146+4*h}, 16, v{157+2*h}')
        a(f'v_mov_b32 v{147+4*h}, 0')
    a.label('L1_notw7')
    a('s_waitcnt lgkmcnt(10)')
    test(0)
    a.label('L1_rest')
    for i in range(1, 6):
        a(f's_waitcnt lgkmcnt({2*(5-i)})')
        test(i)
    for i in (6, 0, 1, 2, 3, 4, 5):
        a(f's_mov_b64 exec, s[{64+2*i}:{65+2*i}]')
        a(f'ds_add_rtn_u32 v{RK1+i}, v{BINC+i}, v46')
    a('s_mov_b64 exec, -1')
    a('s_waitcnt lgkmcnt(0)')
    a('s_barrier')
    tr(a, 5)
    a(f's_mul_i32 s{sT0}, s3, 3072')
    a(f's_add_u32 m0, s{sT0}, {L_W2R}')
    a(f's_lshl_b32 s{sT1}, s3, 10')
    a(f's_min_u32 s{sT2}, s{sT1}, 2048')
    for i in range(3):
        a(f'buffer_load_dwordx4 v{vLANE16}, s[{sW2F}:{sW2F+3}], s{sT0} offen offset:{1024*i} lds')
    a(f's_add_u32 m0, s{sT2}, {L_WRR}')
    a(f'ds_read_b128 v[104:107], v{pHS}')
    a(f'buffer_load_dwordx4 v{vLANE16}, s[{sWRR}:{sWRR+3}], s{sT1} offen lds')
    a(f'ds_read_b32 v108, v{pHC}')
    a(f'ds_read_b32 v109, v{pHC} offset:512')
    if opt.fine: tr(a, 50)
    for i in range(7):
        a(f'v_min_u32 v40, {CAP}, v{RK1+i}')
        a(f'v_lshl_add_u32 v{BINS+i}, v40, 2, v{BINS+i}')
    for i in range(7):
        a(f's_mov_b64 exec, s[{64+2*i}:{65+2*i}]')
        a(f'ds_write_b32 v{BINS+i}, v{ENT+i} offset:4')
    a('s_mov_b64 exec, -1')
    if opt.fine: tr(a, 51)
    def zero_counters(tag):
        a('s_cmp_ge_u32 s3, 2')
        a(f's_cbranch_scc1 L2_nozero{tag}')
        a('v_lshlrev_b32 v42, 2, v0')
        a('v_mov_b32 v44, 0')
        a(f'ds_write_b32 v42, v44 offset:{L_NCNT}')
        a.label(f'L2_nozero{tag}', settle=False)
    zero_counters('a')
    a('s_cmp_lg_u32 s3, 7')
    a('s_cbranch_scc1 L1_join')
    for h in range(2):
        a(f'ds_write_b128 v{vLANE16}, v[{144+4*h}:{147+4*h}] offset:{L_DPOS + 1024*h}')
    a.label('L1_join', settle=False)
    srd(a, 84, 24, SLOT_OFF, 16384, mul=SS)
    if opt.fine: tr(a, 52)
    n7 = 4 + [0, 4, 8][opt.pfres]
    if opt.prew or opt.pfw:
        a('s_cmp_lg_u32 s3, 7')
        a('s_cbranch_scc1 L1_b3')
        a(f's_waitcnt vmcnt({n7})')
        a.label('L1_b3', settle=False)
    a('s_waitcnt vmcnt(%d) lgkmcnt(0)' % (n7 + (6 if opt.prew else 0) + (1 if opt.pfw else 0)))
    if opt.fine: tr(a, 53)
    a('v_max3_u32 v104, v104, v105, v106')
    a('v_max_u32 v104, v104, v107')
    a(f'v_cmp_lt_u32 vcc, {CAP}, v104')
    a('s_barrier')
    tr(a, 6)
    W = V
    a(f'ds_read_b128 v[{W}:{W+3}], v{pLDS}')
    a(f'ds_read_b128 v[{W+4}:{W+7}], v{pLDS} offset:{128*80}')
    a('s_cbranch_vccnz L1_ovf')
    a.label('L1_noovf', settle=False)
    for h in range(2):
        a(f's_waitcnt lgkmcnt({1-h})')
        a(f'v_cndmask_b32_e64 v{W+4*h}, v{W+4*h}, v{108+h}, s[{sPC0}:{sPC0+1}]')
        for j in (1, 2, 3):
            a(f'v_and_or_b32 v{W+4*h+j}, v{W+4*h+j}, v{pME}, s{sNB+j}')
        a(f'v_and_or_b32 v{W+4*h}, v{W+4*h}, v{pM0}, v{pT0}')
        a(f'buffer_store_dwordx4 v[{W+4*h}:{W+4*h+3}], v{pOFA+h}, s[84:87], 0 offen {opt.dumpsc}')
    tr(a, 7)
    consts_poll(a)
    if opt.wb == 1:
        emit_Q(a, vLPV, 44, 40) if False else None
    def res_image(tag):
        if tag == 'b':
            a(f'v_lshrrev_b32 v40, 9, v{vLANE16}')
            for k in range(4):
                a(f'v_add_u32 v{pRS+k}, {2*k}, v40')
                a(f'v_lshlrev_b32 v{pRS+k}, 5, v{pRS+k}')
                a(f'v_xor_b32 v{pRS+k}, v{pRS+k}, v{vLANE16}')
        a(f's_lshl_b32 s{sT0}, s3, 12')
        a(f's_add_u32 m0, s{sT0}, {L_RES}')
        a('s_cmp_ge_u32 s3, 5')
        for k in range(4):
            a(f'buffer_load_dwordx4 v{pRS+k}, s[{sRES}:{sRES+3}], s{sT0} offen offset:{1024*k} sc1 lds')
        a(f's_cbranch_scc1 L2_resdone{tag}')
        a(f's_add_u32 s{sT0}, s{sT0}, 32768')
        a(f's_add_u32 m0, s{sT0}, {L_RES}')
        a('s_cmp_eq_u32 s3, 4')
        for k in range(4):
            if k == 2: a(f's_cbranch_scc1 L2_resdone{tag}')
            a(f'buffer_load_dwordx4 v{pRS+k}, s[{sRES}:{sRES+3}], s{sT0} offen offset:{1024*k} sc1 lds')
        a.label(f'L2_resdone{tag}', settle=False)
    a(f's_mov_b32 s61, {1 << opt.spin}')
    a('s_waitcnt vmcnt(2)')
    a('s_barrier')
    tr(a, 23)
    if opt.wb == 1:
        consts_late(a); build_weights(a)
    if opt.wb == 2: consts_late(a)
    a('s_waitcnt vmcnt(0)')
    tr(a, 8)
    a(f'buffer_load_dwordx4 v[{W}:{W+3}], v{pPA}, s[{sSLOT}:{sSLOT+3}], 0 offen sc1')
    a(f'buffer_load_dwordx4 v[{W+4}:{W+7}], v{pPB}, s[{sSLOT}:{sSLOT+3}], 0 offen sc1')
    if opt.wb == 0: consts_late(a)
    if opt.wb != 1: build_weights(a)
    a('s_waitcnt vmcnt(0)')
    a.label('L2_poll')
    if opt.fine: tr(a, 24)
    for h in range(2):
        w = W + 4*h
        a(f'v_xor_b32 v{61+h}, v{pT0}, v{w}')
        a(f'v_and_b32 v{61+h}, v{pN0}, v{61+h}')
        for j in (1, 2, 3):
            a(f'v_xor_b32 v63, s{sNB+j}, v{w+j}')
            a(f'v_and_or_b32 v{61+h}, v63, v{pNE}, v{61+h}')
    a('v_cmp_ne_u32 vcc, 0, v61')
    a('v_cmp_ne_u32 s[66:67], 0, v62')
    a('s_and_b64 s[66:67], s[66:67], s[64:65]')
    a('s_or_b64 s[68:69], s[66:67], vcc')
    a.br('s_cbranch_scc0 L2_polled')
    a('s_sub_u32 s61, s61, 1')
    a('s_cmp_eq_u32 s61, 0')
    a.br('s_cbranch_scc1 L2_polled')
    if opt.sleep: a(f's_sleep {opt.sleep}')
    if opt.pollmask:
        a('s_mov_b64 exec, vcc')
        a('s_cbranch_execz L2_nopollA')
    a(f'buffer_load_dwordx4 v[{W}:{W+3}], v{pPA}, s[{sSLOT}:{sSLOT+3}], 0 offen sc1')
    if opt.pollmask:
        a.label('L2_nopollA', settle=False)
        a('s_mov_b64 exec, s[66:67]')
        a('s_cbranch_execz L2_nopollB')
    a(f'buffer_load_dwordx4 v[{W+4}:{W+7}], v{pPB}, s[{sSLOT}:{sSLOT+3}], 0 offen sc1')
    if opt.pollmask:
        a.label('L2_nopollB', settle=False)
        a('s_mov_b64 exec, -1')
    a('s_waitcnt vmcnt(0)')
    a.br('s_branch L2_poll')
    a.label('L2_polled')
    tr(a, 9)
    if opt.res_when == 'post': res_image('a')
    LIM, CNT = 56, 58
    a(f'v_mov_b32_dpp v{CNT}, v{W} quad_perm:[0,0,0,0] row_mask:0xf bank_mask:0xf')
    a(f'v_mov_b32_dpp v{CNT+1}, v{W+4} quad_perm:[0,0,0,0] row_mask:0xf bank_mask:0xf')
    for h in range(2):
        a(f'v_and_b32 v{CNT+h}, 0xfff, v{CNT+h}')
        a(f'v_min_u32 v{LIM+h}, {CAP}, v{CNT+h}')
        a(f'v_subrev_u32 v{CNT+h}, {CAP}, v{CNT+h}')
    a.label('L2_round')
    A = 60; RK = 68; T = 76
    a('v_mov_b32 v40, 1')
    a(f's_mov_b32 s60, {L_NCNT}')
    for i in range(4):
        a(f'v_add_u32 v{41+i}, {i}, v39')
    for i in range(8):
        a(f'v_cmp_lt_u32 s[{64+2*i}:{65+2*i}], v{41 + (i & 3)}, v{LIM + i//4}')
        a(f'v_and_b32 v{A+i}, 127, v{W+i}')
        a(f'v_lshl_add_u32 v{A+i}, v{A+i}, 2, s60')
    a(f'v_max_i32 v41, v{CNT}, v{CNT+1}')
    a('v_cmp_lt_i32 vcc, 0, v41')
    for i in range(8):
        a(f's_mov_b64 exec, s[{64+2*i}:{65+2*i}]')
        a(f'ds_add_rtn_u32 v{RK+i}, v{A+i}, v40')
    a('s_mov_b64 exec, -1')
    if opt.res_when == 'post2':
        a(f's_cmp_lg_u32 s{sROUND}, 0')
        a('s_cbranch_scc1 L2_resdonea')
        res_image('a')
    a('s_cbranch_vccz L2_noflag')
    a(f'v_mov_b32 v41, {L_NCNT + 127*4}')
    a('ds_write_b32 v41, v40')
    a.label('L2_noflag', settle=False)
    for i in range(8):
        a(f'v_and_b32 v{W+i}, {M_ENT}, v{W+i}')
    a('s_waitcnt lgkmcnt(0)')
    a('s_barrier')
    tr(a, 10)
    a(f's_cmp_lg_u32 s{sROUND}, 0')
    a.br('s_cbranch_scc1 L2_now2f')
    if opt.res_when == 'late': res_image('a')
    a('s_or_b32 s60, s2, s3')
    a('s_cmp_lg_u32 s60, 0')
    a.br('s_cbranch_scc1 L2_now2f')
    srd(a, 84, 24, EPOCH_OFF, 4)
    a(f'v_mov_b32 v43, s{sEP}')
    a('s_mov_b64 exec, 1')
    a('buffer_store_dword v43, off, s[84:87], 0 sc1')
    a('s_mov_b64 exec, -1')
    a.label('L2_now2f')
    if opt.pfv: a('v_mov_b32 v44, 0x40000000')
    for i in opt.pfv:
        a(f'v_and_b32 v45, 0xfffe00, v{W+i}')
        a(f'v_cndmask_b32_e64 v45, v44, v45, s[{64+2*i}:{65+2*i}]')
        for j in range(3*opt.pfn):
            a(f'buffer_load_dword v255, v45, s[{sSV}:{sSV+3}], 0 offen offset:{128 + j*128//opt.pfn}')
        if opt.pfh:
            a('v_lshrrev_b32 v45, 2, v45')
            a(f'buffer_load_dword v255, v45, s[{sH}:{sH+3}], 0 offen {opt.hsc}')
    a(f'v_lshrrev_b32 v41, 2, v{vLANE16}')
    a(f'v_add_u32 v41, {L_NCNT}, v41')
    a('ds_read2st64_b32 v[42:43], v41 offset1:1')
    a('s_waitcnt lgkmcnt(0)')
    a(f'v_readlane_b32 s{sMORE}, v43, 63')
    a('v_lshl_or_b32 v42, v43, 16, v42')
    a('v_mov_b32 v43, v42')
    for sh in ('row_shr:1', 'row_shr:2', 'row_shr:4', 'row_shr:8'):
        a(f'v_add_u32_dpp v43, v43, v43 {sh} row_mask:0xf bank_mask:0xf')
    a('v_add_u32_dpp v43, v43, v43 row_bcast:15 row_mask:0xa bank_mask:0xf')
    a('v_add_u32_dpp v43, v43, v43 row_bcast:31 row_mask:0xc bank_mask:0xf')
    a(f'v_readlane_b32 s{sT0}, v43, 63')
    a('v_sub_u32 v43, v43, v42')
    a(f's_and_b32 s{sT0}, s{sT0}, 0xffff')
    a(f'v_and_b32 v{vSTLO}, 0xffff, v43')
    a(f'v_lshrrev_b32 v{vSTHI}, 16, v43')
    a(f'v_add_u32 v{vSTHI}, s{sT0}, v{vSTHI}')
    a(f'ds_write2st64_b32 v41, v{vSTLO}, v{vSTHI} offset0:2 offset1:3')
    for i in range(8):
        a(f'ds_read_b32 v{T+i}, v{A+i} offset:512')
    a(f'v_lshl_or_b32 v{vPACK}, v{vSTHI}, 16, v{vSTLO}')
    for i in range(8):
        if i % 4 == 0:
            a(f's_waitcnt lgkmcnt({4 - i})')
            for k in range(i, i+4): a(f'v_add_lshl_u32 v{T+k}, v{T+k}, v{RK+k}, 2')
        a(f's_mov_b64 exec, s[{64+2*i}:{65+2*i}]')
        a(f'ds_write_b32 v{T+i}, v{W+i} offset:{L_SORT}')
        if i % 4 == 3: a('s_mov_b64 exec, -1')
    for k, (st, d) in enumerate(((vSTLO, 32), (vSTHI, 32), (vSTLO, 64), (vSTHI, 64))):
        a(f'v_add_u32 v{T+k}, {d}, v{st}')
        a(f'v_lshlrev_b32 v{T+4+k}, 2, v{T+k}')
    a(f'v_readlane_b32 s{sT2}, v{vSTHI}, {R - 64}')
    a(f'v_lshrrev_b32 v40, 4, v{vLANE16}')
    a('v_add_u32 v41, 64, v40')
    a(f'v_mov_b32 v46, {R}')
    a(f's_mov_b32 s{sNC}, 0')
    a(f's_mov_b32 s{sC64}, s3')
    a('s_waitcnt vmcnt(%d) lgkmcnt(0)' % (len(opt.pfv)*(3*opt.pfn + (1 if opt.pfh else 0))))
    a('s_barrier')
    tr(a, 21)
    for k in (2, 3, 0, 1):
        a(f'ds_read_b32 v{T+4+k}, v{T+4+k} offset:{L_SORT}')
    for k in range(4):
        a(f'v_cmp_gt_u32 s[{64+2*k}:{65+2*k}], s{sT2}, v{T+k}')
    a('v_add_u32 v42, 1, v40')
    a('v_add_u32 v43, 16, v40')
    a('v_add_u32 v44, 1, v41')
    a('v_add_u32 v45, 16, v41')
    for k in (2, 3, 0, 1):
        r = T + 4 + k
        if k in (2, 0): a(f's_waitcnt lgkmcnt({2 if k == 2 else 0})')
        a(f'v_and_b32 v{r}, 127, v{r}')
        a(f'v_cndmask_b32_e64 v{r}, v46, v{r}, s[{64+2*k}:{65+2*k}]')
        a(f'v_med3_u32 v{r}, v{r}, v{42 + 2*(k & 1)}, v{43 + 2*(k & 1)}')
        a(f'v_min_u32 v{r}, v46, v{r}')
        if k == 3: a(f'v_lshl_or_b32 v{vNX64}, v{T+7}, 16, v{T+6}')
    a(f'v_lshl_or_b32 v{vNX32}, v{T+5}, 16, v{T+4}')
    if opt.fine: tr(a, 42)
    chain_loop(a, vNX64, sC64)
    if opt.fine: tr(a, 43)
    a(f's_cmp_lt_u32 s{sNC}, {R}')
    a.br('s_cbranch_scc0 L2_rounddone')
    if opt.prio: a('s_setprio 3')
    a(f's_mov_b32 s{sN0}, s{sNC}')
    chain_start(a, sE0)
    chain_step(a, vNX64)
    chain_start(a, sE1)
    a(f's_sub_u32 s{sNN}, s{sNC}, s{sN0}')
    a(f's_mov_b32 s{sXE0}, s{sE0}')
    a(f's_mov_b32 s{sXE1}, s{sE1}')
    emit(a, next_entry_read(TP))
    emit(a, next_mask(TP+4))
    a(f's_sub_u32 s{sC64}, 7, s3')
    a(f's_mov_b32 s{sC32}, s3')
    a('s_waitcnt lgkmcnt(0)')
    emit(a, next_stage(TP+4, TP+5))
    emit(a, off_reads(0))
    emit(a, pos_load(TP+5))
    a('s_waitcnt lgkmcnt(0)')
    emit(a, off_adds())
    emit(a, h_loads())
    a(f's_mov_b32 s{sFI}, 1')
    if opt.prio: a('s_setprio %d' % {0: 0, 1: 1, 2: 1, 3: 2, 4: 2, 5: 2, 6: 2}[opt.yld])
    tr(a, 22)
    a.br('s_branch L2_head_A')
    head(a, 'B')
    head(a, 'A')
    tail(a, 'toC')
    head(a, 'C')
    newitem(a)
    tail(a, 'toA')
    tail(a, 'fin')
    a.label('L2_rounddone')
    tr(a, 30)
    a(f's_cmp_eq_u32 s{sMORE}, 0')
    a.br('s_cbranch_scc1 L2_fin')
    a('s_waitcnt vmcnt(0) lgkmcnt(0)')
    a('s_barrier')
    zero_counters('b')
    srd(a, sRES, 20, 0, R*512, mul=R*512)
    res_image('b')
    a('v_lshrrev_b32 v40, 2, v0')
    a(f'v_mul_u32_u24 v41, {SS}, v40')
    a(f'buffer_load_dword v42, v41, s[{sSLOT}:{sSLOT+3}], 0 offen sc1')
    a(f'v_add_u32 v41, {128*SS}, v41')
    a(f'buffer_load_dword v43, v41, s[{sSLOT}:{sSLOT+3}], 0 offen sc1')
    a('v_and_b32 v39, 3, v0')
    a('v_lshlrev_b32 v39, 2, v39')
    a(f's_lshl_b32 s{sT0}, s{sROUND}, 4')
    a(f's_add_u32 s{sT1}, s{sT0}, {CAP}')
    a(f's_add_u32 s{sROUND}, s{sROUND}, 1')
    a(f'v_mul_u32_u24 v40, {CH*4}, v40')
    a('v_lshl_add_u32 v40, v39, 2, v40')
    a(f's_lshl_b32 s{sT0}, s{sT0}, 2')
    a(f'v_add_u32 v40, s{sT0}, v40')
    a('s_waitcnt vmcnt(0)')
    for h in range(2):
        a(f'v_bfe_u32 v44, v{42+h}, 12, 12')
        a(f'v_lshl_add_u32 v44, v44, 2, v40')
        if h: a(f'v_add_u32 v44, {128*CH*4}, v44')
        a(f'buffer_load_dwordx4 v[{W+4*h}:{W+4*h+3}], v44, s[{sOVF}:{sOVF+3}], 0 offen sc1')
        a(f'v_and_b32 v{CNT+h}, 0xfff, v{42+h}')
        a(f'v_subrev_u32 v{CNT+h}, s{sT1}, v{CNT+h}')
        a(f'v_med3_i32 v{LIM+h}, v{CNT+h}, 0, 16')
        a(f'v_subrev_u32 v{CNT+h}, 16, v{CNT+h}')
    a('s_waitcnt vmcnt(0) lgkmcnt(0)')
    a('s_barrier')
    a.br('s_branch L2_round')
    a.label('L2_fin')
    if opt.tr:
        a('s_waitcnt vmcnt(0)')
        tr(a, 31)
    tr_dump(a)
    a.label('L_end')
    a('s_endpgm')
    rare_paths(a)

def build():
    src = open('gather_scatter__molecular_angular_painn__graph.s.ref').read().split('\n')
    head_ = []
    for ln in src:
        if not ln.startswith(';'): break
        if '@launch' in ln or 'Override launch' in ln or 'grid=ceil' in ln: continue
        head_.append(ln)
    head_.append(f'; @launch grid=({NB},1,1) block=(512,1,1) lds={K1_LDS}')
    a = Asm()
    a.raw('.amdgcn_target "amdgcn-amd-amdhsa--gfx950"\n.text')
    gen(a)
    return '\n'.join(head_) + '\n' + a.text() + '.section .rodata,"a"\n' + descriptor(NAME, 256)

if __name__ == '__main__':
    outp = sys.argv[1]
    for kv in sys.argv[2:]:
        k, val = kv.split('=', 1)
        setattr(opt, k, type(getattr(opt, k))(eval(val)))
    open(outp, 'w').write(build())
```

```python
import sys, struct
from asmlib import Asm

N = 25000; NB = 250; R = 100; CH = 3200
H_OFF = 0; SLOT_OFF = 0x400000; OVF_OFF = 0x800000; W2F_OFF = 0xC00000; WRF_OFF = W2F_OFF + 24576
POS4_OFF = 0xC10000; TS_OFF = 0xE00000
CAP = 15

def f2u(x): return struct.unpack('<I', struct.pack('<f', x))[0]
def fl(x): return '0x%08x' % f2u(x)
def v(i, n=1): return f'v{i}' if n == 1 else f'v[{i}:{i+n-1}]'
def s(i, n=1): return f's{i}' if n == 1 else f's[{i}:{i+n-1}]'

class Opt:
    ts = False
    tr = False
    dbg = False
    nt_edges = False
    nt_out = False
    k1st = ''
    outst = ''
    ntpos = False
    thr = 24.3
    rot = 4
    prio = False
    prio2 = 0
    pk = False
    cprio = 0
    look = False
    earlyst = False
    earlyh = False
    rawpos = False
    spread = False
    pkc = 0
    trmain = True
    tlb = 0
    pf_sv = ''
    vsched = [8,0,0,0,8,0,0,0,8,0,0,0,0]
opt = Opt()

def srd(a, d, base, off, size, mul=None):
    if mul is not None:
        a(f's_mul_i32 s{d+2}, s2, {mul}')
        if off: a(f's_add_u32 s{d+2}, s{d+2}, {off}')
        a(f's_add_u32 s{d}, s{base}, s{d+2}')
        a(f's_addc_u32 s{d+1}, s{base+1}, 0')
    elif off:
        a(f's_add_u32 s{d}, s{base}, {off}')
        a(f's_addc_u32 s{d+1}, s{base+1}, 0')
    else:
        a(f's_mov_b32 s{d}, s{base}')
        a(f's_mov_b32 s{d+1}, s{base+1}')
    a(f's_mov_b32 s{d+2}, {size}')
    a(f's_mov_b32 s{d+3}, 0x20000')

def stamp(a, kern, idx, tmpv=None):
    if not opt.ts: return
    a.settle()
    L = f'Lts_{kern}_{idx}_{stamp.n}'; stamp.n += 1
    a(f's_cmp_lg_u32 s3, {stamp.wave}')
    a.br(f's_cbranch_scc1 {L}')
    a('s_memrealtime s[92:93]')
    a('s_mov_b64 s[94:95], exec')
    a('s_mov_b64 exec, 1')
    a('s_waitcnt lgkmcnt(0)')
    t = stamp.tmp
    a(f'v_mov_b32 v{t}, s92')
    a(f'v_mov_b32 v{t+1}, s93')
    a(f'v_mov_b32 v{t+2}, 0')
    a(f'buffer_store_dwordx2 v[{t}:{t+1}], v{t+2}, s[96:99], 0 offen offset:{idx*8}')
    a('s_mov_b64 exec, s[94:95]')
    a.label(L)
stamp.n = 0; stamp.wave = 0; stamp.tmp = 0

def stamp_init(a, kern):
    if not opt.ts: return
    a(f's_lshl_b32 s98, s2, 7')
    a(f's_add_u32 s98, s98, {TS_OFF + kern*256*128}')
    a('s_add_u32 s96, s24, s98')
    a('s_addc_u32 s97, s25, 0')
    a('s_mov_b32 s98, 128')
    a('s_mov_b32 s99, 0x20000')

def dbg_init(a, kern):
    if not opt.dbg: return
    a('s_load_dwordx2 s[96:97], s[0:1], 72')
    a('s_waitcnt lgkmcnt(0)')
    if kern:
        a('s_sub_u32 s96, s96, 512')
        a('s_subb_u32 s97, s97, 0')
    a('s_mov_b32 s98, 64')
    a('s_mov_b32 s99, 0x20000')

def dbg(a, idx, allwg=False):
    if not opt.dbg: return
    a.settle()
    L = f'Ldbg_{stamp.n}'; stamp.n += 1
    a('s_cmp_lg_u32 s3, 0')
    a.br(f's_cbranch_scc1 {L}')
    if not allwg:
        a('s_cmp_lg_u32 s2, 0')
        a.br(f's_cbranch_scc1 {L}')
    a('s_memrealtime s[92:93]')
    a('s_mov_b64 s[94:95], exec')
    a('s_mov_b64 exec, 1')
    a('s_waitcnt lgkmcnt(0)')
    t = stamp.tmp
    a(f'v_mov_b32 v{t}, s92')
    a(f'v_mov_b32 v{t+2}, 0')
    a(f'buffer_atomic_umax v{t}, v{t+2}, s[96:99], 0 offen offset:{idx*4}')
    a('s_mov_b64 exec, s[94:95]')
    a.label(L)

TR_OFF = 0x1000000
def tr_init(a):
    if not opt.tr: return
    a('s_lshl_b32 s98, s2, 3')
    a('s_add_u32 s98, s98, s3')
    a('s_lshl_b32 s98, s98, 10')
    a(f's_add_u32 s98, s98, {TR_OFF}')
    a('s_add_u32 s96, s24, s98')
    a('s_addc_u32 s97, s25, 0')
    a('s_mov_b32 s98, 1024')
    a('s_mov_b32 s99, 0x20000')
    a('s_mov_b32 s27, 0')
    a('v_mov_b32 v11, 0')

def tr(a, tag):
    if not opt.tr: return
    a('s_memtime s[92:93]')
    a('s_mov_b32 m0, s27')
    a('s_add_u32 s27, s27, 1')
    a('s_waitcnt lgkmcnt(0)')
    a('s_lshl_b32 s92, s92, 6')
    a(f's_or_b32 s92, s92, {tag}')
    a('v_writelane_b32 v11, s92, m0')

def tr_dump(a):
    if not opt.tr: return
    a('v_lshrrev_b32 v12, 2, v1')
    a('buffer_store_dword v11, v12, s[96:99], 0 offen')

def header(a, name):
    a.raw(f'.globl {name}\n.p2align 8\n.type {name},@function\n{name}:')
    a.hist = []

def descriptor(name, vgpr, sgpr=102):
    acc = (vgpr + 3) // 4 * 4
    return f'''.p2align 6
.amdhsa_kernel {name}
  .amdhsa_next_free_vgpr {vgpr}
  .amdhsa_next_free_sgpr {sgpr}
  .amdhsa_accum_offset {acc}
  .amdhsa_group_segment_fixed_size 0
  .amdhsa_kernarg_size 88
  .amdhsa_user_sgpr_count 2
  .amdhsa_user_sgpr_kernarg_segment_ptr 1
  .amdhsa_system_sgpr_workgroup_id_x 1
  .amdhsa_float_denorm_mode_32 3
.end_amdhsa_kernel
'''

def emit_Q(a, dst, q, t):
    a(f'v_lshrrev_b32 v{dst}, 2, v{q}')
    a(f'v_lshlrev_b32 v{dst}, 1, v{dst}')
    a(f'v_and_b32 v{t}, 1, v{q}')
    a(f'v_add_u32 v{dst}, v{dst}, v{t}')
    a(f'v_and_b32 v{t}, 2, v{q}')
    a(f'v_lshl_add_u32 v{dst}, v{t}, 2, v{dst}')

K1_POS = 0; K1_CNT = 150528; K1_OVB = 151808; K1_W1 = 152832; K1_LDS = 161024

def gen_k1(a, name):
    header(a, name)
    stamp.tmp = 60; stamp.wave = 0
    a('s_cmp_ge_u32 s2, %d' % NB)
    a('s_cbranch_scc1 L1_end')
    a('s_load_dwordx8 s[4:11], s[0:1], 0')
    a('s_load_dwordx8 s[12:19], s[0:1], 32')
    a('s_load_dwordx2 s[24:25], s[0:1], 80')
    a('v_lshrrev_b32 v1, 6, v0')
    a('v_and_b32 v2, 63, v0')
    a('v_readfirstlane_b32 s3, v1')
    a('v_lshlrev_b32 v3, 4, v2')
    a('v_mov_b32 v40, 0')
    a('s_cmp_ge_u32 s3, 5')
    a.br('s_cbranch_scc1 L1_nozero')
    a('v_lshlrev_b32 v41, 2, v0')
    a(f'v_add_u32 v41, {K1_CNT}, v41')
    a('ds_write_b32 v41, v40')
    a.label('L1_nozero')
    a('s_waitcnt lgkmcnt(0)')
    stamp_init(a, 0)
    stamp(a, 0, 0)
    dbg_init(a, 0)
    dbg(a, 0)
    dbg(a, 1, True)
    a('s_cmp_ge_u32 s3, 13')
    a.br('s_cbranch_scc1 L1_hpath')
    srd(a, 28, 8, 0, CH*4, mul=CH*4)
    srd(a, 32, 10, 0, CH*4, mul=CH*4)
    srd(a, 36, 6, 0, N*6)
    a('v_lshlrev_b32 v1, 4, v0')
    nt = ' nt' if opt.nt_edges else ''
    a(f'buffer_load_dwordx4 v[4:7], v1, s[28:31], 0 offen{nt}')
    a(f'buffer_load_dwordx4 v[8:11], v1, s[32:35], 0 offen{nt}')
    a('s_lshr_b32 s40, s2, 3')
    a(f's_mul_i32 s40, s40, {opt.rot}')
    a('s_add_u32 s40, s40, s3')
    for i in range(12):
        if i == 11:
            a('s_cmp_ge_u32 s3, 4')
            a.br('s_cbranch_scc1 L1_dmadone')
        a('s_sub_u32 s41, s40, 147')
        a('s_cmp_ge_u32 s40, 147')
        a('s_cselect_b32 s40, s41, s40')
        a('s_lshl_b32 s41, s40, 10')
        a('s_mov_b32 m0, s41')
        a('s_add_u32 s40, s40, 13')
        a('buffer_load_dwordx4 v3, s[36:39], s41 offen lds')
    a.label('L1_dmadone')
    a('s_mov_b64 s[42:43], -1')
    a('s_cmp_eq_u32 s3, 12')
    a('s_cselect_b32 s43, 0, s43')
    a(f's_mov_b32 s44, {fl(opt.thr)}')
    a(f's_mov_b32 s45, -100')
    a(f's_mov_b32 s46, {K1_CNT}')
    a('v_mov_b32 v59, 0xffff0000')
    stamp(a, 0, 1)
    a('s_waitcnt vmcnt(0) lgkmcnt(0)')
    a('s_barrier')
    stamp(a, 0, 2)
    dbg(a, 2)
    dbg(a, 3, True)
    for i in range(4):
        a(f'v_mul_u32_u24 v{12+i}, 6, v{4+i}')
        a(f'v_mul_u32_u24 v{16+i}, 6, v{8+i}')
        a(f'v_and_b32 v36, -4, v{12+i}')
        a(f'v_and_b32 v37, -4, v{16+i}')
        a(f'ds_read2_b32 v[{20+2*i}:{21+2*i}], v36 offset1:1')
        a(f'ds_read2_b32 v[{28+2*i}:{29+2*i}], v37 offset1:1')
    for i in range(4):
        a(f'v_mul_u32_u24 v36, 5243, v{8+i}')
        a(f'v_lshrrev_b32 v36, 19, v36')
        a(f'v_mad_i32_i24 v37, v36, s45, v{8+i}')
        a(f'v_lshl_or_b32 v{48+i}, v{4+i}, 9, v37')
        a(f'v_lshlrev_b32 v{44+i}, 2, v36')
        a(f'v_add_u32 v{52+i}, {K1_CNT}, v{44+i}')
    a('v_mov_b32 v56, 1')
    for i in range(4):
        p, q = 20+2*i, 28+2*i
        a(f's_waitcnt lgkmcnt({6-2*i})')
        a(f'v_alignbyte_b32 v36, v{p+1}, v{p}, v{12+i}')
        a(f'v_alignbyte_b32 v37, v{p+1}, v{p+1}, v{12+i}')
        a(f'v_alignbyte_b32 v38, v{q+1}, v{q}, v{16+i}')
        a(f'v_alignbyte_b32 v39, v{q+1}, v{q+1}, v{16+i}')
        a(f'v_lshlrev_b32 v{p}, 16, v36')
        a(f'v_lshlrev_b32 v{q}, 16, v38')
        a(f'v_and_b32 v36, v59, v36')
        a(f'v_and_b32 v38, v59, v38')
        a(f'v_lshlrev_b32 v37, 16, v37')
        a(f'v_lshlrev_b32 v39, 16, v39')
        a(f'v_sub_f32 v{p}, v{p}, v{q}')
        a(f'v_sub_f32 v36, v36, v38')
        a(f'v_sub_f32 v37, v37, v39')
        a(f'v_mul_f32 v{p}, v{p}, v{p}')
        a(f'v_fmac_f32 v{p}, v36, v36')
        a(f'v_fmac_f32 v{p}, v37, v37')
        a(f'v_cmp_ngt_f32 s[{64+2*i}:{65+2*i}], v{p}, s44')
        a(f's_and_b64 s[{64+2*i}:{65+2*i}], s[{64+2*i}:{65+2*i}], s[42:43]')
    for i in range(4):
        a(f's_mov_b64 exec, s[{64+2*i}:{65+2*i}]')
        a(f'ds_add_rtn_u32 v{12+i}, v{52+i}, v56')
    a('s_mov_b64 exec, -1')
    a('s_waitcnt lgkmcnt(0)')
    a('s_barrier')
    stamp(a, 0, 3)
    for i in range(4):
        a(f'v_cmp_gt_u32 s[{72+2*i}:{73+2*i}], {CAP}, v{12+i}')
        a(f'v_lshlrev_b32 v{16+i}, 4, v{44+i}')
        a(f'v_lshl_add_u32 v{16+i}, v{12+i}, 2, v{16+i}')
    for i in range(4):
        a(f's_and_b64 exec, s[{72+2*i}:{73+2*i}], s[{64+2*i}:{65+2*i}]')
        a(f'ds_write_b32 v{16+i}, v{48+i} offset:4')
        a(f's_andn2_b64 s[{64+2*i}:{65+2*i}], s[{64+2*i}:{65+2*i}], s[{72+2*i}:{73+2*i}]')
    a('s_mov_b64 exec, -1')
    a('s_cmp_ge_u32 s3, 4')
    a.br('s_cbranch_scc1 L1_nohdr')
    a('v_lshlrev_b32 v20, 2, v0')
    a(f'v_add_u32 v21, {K1_CNT}, v20')
    a('ds_read_b32 v22, v21')
    a('v_mov_b32 v23, 0')
    a('v_lshlrev_b32 v24, 6, v0')
    a('s_waitcnt lgkmcnt(0)')
    a(f'v_cmp_lt_u32 vcc, {CAP}, v22')
    a('s_and_saveexec_b64 s[80:81], vcc')
    a.br('s_cbranch_execz L1_hdr_noovf')
    a(f'v_subrev_u32 v25, {CAP}, v22')
    a(f'v_mov_b32 v26, {K1_CNT + 1024}')
    a('ds_add_rtn_u32 v23, v26, v25')
    a(f'v_add_u32 v21, {K1_OVB}, v20')
    a('s_waitcnt lgkmcnt(0)')
    a('ds_write_b32 v21, v23')
    a.label('L1_hdr_noovf')
    a('s_mov_b64 exec, s[80:81]')
    a('v_lshl_or_b32 v22, v23, 16, v22')
    a('ds_write_b32 v24, v22')
    a.label('L1_nohdr')
    a('s_waitcnt lgkmcnt(0)')
    a('s_barrier')
    a('s_or_b64 s[72:73], s[64:65], s[66:67]')
    a('s_or_b64 s[74:75], s[68:69], s[70:71]')
    a('s_or_b64 s[72:73], s[72:73], s[74:75]')
    a.br('s_cbranch_scc0 L1_dump')
    srd(a, 28, 24, OVF_OFF, CH*4, mul=CH*4)
    for i in range(4):
        a(f's_mov_b64 exec, s[{64+2*i}:{65+2*i}]')
        a.br(f's_cbranch_execz L1_ovf{i}')
        a(f'v_add_u32 v20, {K1_OVB}, v{44+i}')
        a('ds_read_b32 v21, v20')
        a('s_waitcnt lgkmcnt(0)')
        a(f'v_add_u32 v21, v21, v{12+i}')
        a(f'v_subrev_u32 v21, {CAP}, v21')
        a('v_lshlrev_b32 v21, 2, v21')
        a(f'buffer_store_dword v{48+i}, v21, s[28:31], 0 offen')
        a.label(f'L1_ovf{i}')
    a('s_mov_b64 exec, -1')
    a.br('s_branch L1_dump')

    a.label('L1_hpath')
    if opt.tlb:
        a('s_load_dwordx2 s[20:21], s[0:1], 64')
        a(f'v_lshlrev_b32 v100, {opt.tlb}, v2')
        srd(a, 48, 24, 0, 0xE00000)
        srd(a, 52, 4, 0, N*512)
        a('buffer_load_dword v101, v100, s[48:51], 0 offen')
        a('buffer_load_dword v102, v100, s[52:55], 0 offen')
        a('s_waitcnt lgkmcnt(0)')
        srd(a, 56, 20, 0, N*512)
        a('buffer_load_dword v103, v100, s[56:59], 0 offen')
    a('s_sub_u32 s40, s3, 13')
    srd(a, 28, 14, 0, 8192)
    srd(a, 32, 4, 0, R*512, mul=R*512)
    srd(a, 36, 24, H_OFF, R*128, mul=R*128)
    for i in range(8):
        a(f's_mov_b32 m0, {K1_W1 + i*1024}')
        a(f's_mov_b32 s41, {i*1024}')
        a('buffer_load_dwordx4 v3, s[28:31], s41 offen lds')
    a('v_and_b32 v4, 15, v2')
    a('v_lshrrev_b32 v5, 4, v2')
    a('s_lshl_b32 s41, s40, 4')
    a('v_add_u32 v6, s41, v4')
    a('v_lshlrev_b32 v7, 4, v5')
    a('v_lshl_add_u32 v8, v6, 9, v7')
    a('v_lshl_add_u32 v9, v6, 7, v7')
    a('buffer_load_dwordx4 v[12:15], v8, s[32:35], 0 offen')
    a('buffer_load_dwordx4 v[16:19], v8, s[32:35], 0 offen offset:64')
    a(f'v_add_u32 v8, {48*512}, v8')
    a('buffer_load_dwordx4 v[20:23], v8, s[32:35], 0 offen')
    a('buffer_load_dwordx4 v[24:27], v8, s[32:35], 0 offen offset:64')
    a(f'v_add_u32 v8, {48*512}, v8')
    a('buffer_load_dwordx4 v[28:31], v8, s[32:35], 0 offen')
    a('buffer_load_dwordx4 v[32:35], v8, s[32:35], 0 offen offset:64')
    a('v_lshrrev_b32 v10, 2, v4')
    a('v_lshl_add_u32 v10, v5, 3, v10')
    a('v_and_b32 v11, 3, v4')
    a('v_lshlrev_b32 v11, 3, v11')
    a('v_lshl_add_u32 v10, v10, 7, v11')
    a(f'v_add_u32 v10, {K1_W1}, v10')
    a('s_waitcnt vmcnt(6)')
    FR = 64
    for ht in range(4):
        for ks in range(2):
            r = FR + (ht*2+ks)*4
            for hf in range(2):
                a(f'ds_read_b64_tr_b16 v[{r+2*hf}:{r+2*hf+1}], v10 offset:{ks*4096 + ht*32 + hf*512}')
    a('s_waitcnt lgkmcnt(0)')
    D = 96; O = 112
    for t in range(3):
        if t == 2:
            a('s_cmp_lg_u32 s40, 0')
            a.br('s_cbranch_scc1 L1_hdone')
        S = 12 + 8*t
        a('s_waitcnt vmcnt(4)')
        for ht in range(4):
            a(f'v_mfma_f32_16x16x32_bf16 v[{D+4*ht}:{D+4*ht+3}], v[{FR+ht*8}:{FR+ht*8+3}], v[{S}:{S+3}], 0')
        for ht in range(4):
            a(f'v_mfma_f32_16x16x32_bf16 v[{D+4*ht}:{D+4*ht+3}], v[{FR+ht*8+4}:{FR+ht*8+7}], v[{S+4}:{S+7}], v[{D+4*ht}:{D+4*ht+3}]')
        for i in range(16):
            a(f'v_cvt_pk_bf16_f32 v{D+i}, 0, v{D+i}')
        T = 120
        for grp in range(4):
            for i in range(4):
                a(f'v_mul_f32 v{T+i}, {fl(-1.4426950408889634)}, v{D+4*grp+i}')
            for i in range(4):
                a(f'v_exp_f32 v{T+i}, v{T+i}')
            for i in range(4):
                a(f'v_add_f32 v{T+i}, 1.0, v{T+i}')
            for i in range(4):
                a(f'v_rcp_f32 v{T+i}, v{T+i}')
            for i in range(4):
                a(f'v_mul_f32 v{T+i}, v{T+i}, v{D+4*grp+i}')
            a(f'v_cvt_pk_bf16_f32 v{O+2*grp}, v{T}, v{T+1}')
            a(f'v_cvt_pk_bf16_f32 v{O+2*grp+1}, v{T+2}, v{T+3}')
        a(f'buffer_store_dwordx4 v[{O}:{O+3}], v9, s[36:39], 0 offen ' + opt.k1st)
        a(f'buffer_store_dwordx4 v[{O+4}:{O+7}], v9, s[36:39], 0 offen offset:64 ' + opt.k1st)
        a(f'v_add_u32 v9, {48*128}, v9')
    a.label('L1_hdone')
    a('s_cmp_lg_u32 s40, 2')
    a.br('s_cbranch_scc1 L1_nofrag')
    a('s_cmp_ge_u32 s2, 27')
    a.br('s_cbranch_scc1 L1_nofrag')
    emit_Q(a, 12, 4, 13)
    a('v_lshlrev_b32 v12, 3, v12')
    srd(a, 32, 24, W2F_OFF, 24576 + 1536)
    a('s_cmp_ge_u32 s2, 24')
    a.br('s_cbranch_scc1 L1_wrfrag')
    srd(a, 28, 16, 0, 64*192*2)
    a('s_lshr_b32 s41, s2, 3')
    a('s_lshl_b32 s41, s41, 7')
    a('s_bfe_u32 s47, s2, 0x20001')
    a('s_lshl_b32 s47, s47, 1')
    a('s_add_u32 s41, s41, s47')
    a('s_and_b32 s47, s2, 1')
    a(f's_mul_i32 s47, s47, {32*384}')
    a('s_add_u32 s41, s41, s47')
    a(f'v_mul_u32_u24 v13, {4*384}, v5')
    a('v_add3_u32 v12, v12, v13, s41')
    a(f'v_add_u32 v13, {16*384}, v12')
    for jj in range(8):
        a(f'buffer_load_ushort v{16+jj}, v{12 if jj < 4 else 13}, s[28:31], 0 offen offset:{(jj&3)*384}')
    a('s_lshl_b32 s41, s2, 10')
    a('v_add_u32 v14, s41, v3')
    a('s_waitcnt vmcnt(0)')
    for i in range(4):
        a(f'v_lshl_or_b32 v{16+i}, v{17+2*i}, 16, v{16+2*i}')
    a('buffer_store_dwordx4 v[16:19], v14, s[32:35], 0 offen')
    a.br('s_branch L1_nofrag')
    a.label('L1_wrfrag')
    srd(a, 28, 18, 0, 4*192*2)
    a('s_sub_u32 s41, s2, 24')
    a('s_lshl_b32 s47, s41, 7')
    a('v_lshlrev_b32 v13, 1, v5')
    a('v_add3_u32 v12, v12, v13, s47')
    for k in range(4):
        a(f'buffer_load_ushort v{16+k}, v12, s[28:31], 0 offen offset:{k*384}')
    a('s_lshl_b32 s41, s41, 9')
    a('s_add_u32 s41, s41, 24576')
    a('v_lshlrev_b32 v14, 3, v2')
    a('v_add_u32 v14, s41, v14')
    a('s_waitcnt vmcnt(0)')
    for i in range(2):
        a(f'v_lshl_or_b32 v{16+i}, v{17+2*i}, 16, v{16+2*i}')
    a('buffer_store_dwordx2 v[16:17], v14, s[32:35], 0 offen')
    a.label('L1_nofrag')
    srd(a, 28, 24, POS4_OFF, R*8, mul=R*8)
    a('s_lshl_b32 s41, s40, 6')
    a('v_add_u32 v12, s41, v2')
    a(f's_mul_i32 s41, s2, {R}')
    a('v_add_u32 v13, s41, v12')
    a('v_mul_u32_u24 v13, 6, v13')
    a('v_and_b32 v14, -4, v13')
    a('v_lshlrev_b32 v12, 3, v12')
    a('s_waitcnt lgkmcnt(0)')
    a('s_barrier')
    a('ds_read2_b32 v[16:17], v14 offset1:1')
    a('s_waitcnt lgkmcnt(0)')
    a('v_alignbyte_b32 v18, v17, v16, v13')
    a('v_alignbyte_b32 v19, v17, v17, v13')
    a('v_and_b32 v19, 0xffff, v19')
    a('buffer_store_dwordx2 v[18:19], v12, s[28:31], 0 offen')
    if opt.pf_sv:
        srd(a, 32, 4, 0, R*512, mul=R*512)
        a('s_lshl_b32 s41, s40, 10')
        a('v_add_u32 v20, s41, v3')
        for i in range(17):
            a(f'buffer_load_dwordx4 v[100:103], v20, s[32:35], 0 offen {opt.pf_sv if opt.pf_sv != "plain" else ""}')
            a('v_add_u32 v20, 3072, v20')
    a('s_barrier')
    a('s_barrier')
    a.label('L1_dump')
    stamp(a, 0, 4)
    srd(a, 28, 24, SLOT_OFF, NB*16384)
    a('v_lshlrev_b32 v4, 4, v0')
    a('ds_read_b128 v[8:11], v4')
    a('v_lshrrev_b32 v5, 2, v0')
    a('v_lshlrev_b32 v5, 14, v5')
    a('v_and_b32 v6, 3, v0')
    a('v_lshl_add_u32 v5, v6, 4, v5')
    a('s_lshl_b32 s41, s2, 6')
    a('v_add_u32 v5, s41, v5')
    a('s_waitcnt lgkmcnt(0)')
    a('buffer_store_dwordx4 v[8:11], v5, s[28:31], 0 offen ' + opt.k1st)
    if opt.ts or opt.dbg:
        a('s_waitcnt vmcnt(0)')
        stamp(a, 0, 5)
        dbg(a, 4)
        dbg(a, 5, True)
    a.label('L1_end')
    a('s_endpgm')

L_W2F = 0; L_NCNT = 24576; L_START = L_NCNT + 512; L_DPOS = 25600; L_FLAG = 27648; L_STG = 27680
STG = 768
L_SORT = L_STG + 8*STG; L_RES = 50176; K2_LDS = L_RES + 116*512
assert L_SORT + 4*(4000+64) <= L_RES
S_VOFF, S_DL, S_R = 0, 256, 384

vLANE16, vSTGW, vSTGH, vSTGR, vSTGS, vLPV, vLPH, vLPR, vQQ, vMHI, vTR, vPACK, vNX64, vHA, vNQ, vRES, vE, vNX32, vM = range(1, 20)
PS = 20
RBF = 22
WR = 24
HOFF = 30
SEL = 32; SR = 36
V = 48
H = 96
ACC = 112
D3 = 176
D2 = 208
WS = 224
VOFF = 240
TP = 248
vRL = 254
vSTLO, vSTHI = ACC, ACC + 1
K2_VGPR = 256
sSV, sH, sP4, sOUT, sRES, sSLOT, sW2F, sOVF = 28, 32, 36, 40, 44, 48, 52, 80
sF = 56
sNC, sC64, sC32, sN0, sE0, sE1, sMORE, sROUND, sT0, sT1, sT2, sNN = 60, 61, 62, 63, 84, 85, 87, 88, 89, 90, 91, 26
sEXQ = 22
sXN0, sXNN, sXE0, sXE1, sXCONT, sLAST, sSTG, sSD, sRB = 68, 69, 70, 71, 72, 73, 6, 7, 8

def chain_step(a, tab):
    a(f'v_readlane_b32 s{sT0}, v{tab}, s{sNC}')
    a(f's_lshr_b32 s{sT1}, s{sNC}, 2')
    a(f's_and_b32 s{sT1}, s{sT1}, 16')
    a(f's_lshr_b32 s{sT0}, s{sT0}, s{sT1}')
    a(f's_and_b32 s{sNC}, s{sT0}, 0xffff')

def chain_start(a, dst):
    a(f'v_readlane_b32 s{sT0}, v{vPACK}, s{sNC}')
    a(f's_lshr_b32 s{sT1}, s{sNC}, 2')
    a(f's_and_b32 s{sT1}, s{sT1}, 16')
    a(f's_lshr_b32 s{sT0}, s{sT0}, s{sT1}')
    a(f's_and_b32 s{dst}, s{sT0}, 0xffff')

loop_n = [0]
def chain_loop(a, tab, cnt):
    n = loop_n[0]; loop_n[0] += 1
    a(f's_cmp_eq_u32 s{cnt}, 0')
    a(f's_cbranch_scc1 L2_walkdone{n}')
    a.label(f'L2_walk{n}', settle=False)
    chain_step(a, tab)
    a(f's_sub_u32 s{cnt}, s{cnt}, 1')
    a(f's_cmp_lg_u32 s{cnt}, 0')
    a(f's_cbranch_scc1 L2_walk{n}')
    a.label(f'L2_walkdone{n}', settle=False)

def Rn(d, x): return f'v_cvt_pk_bf16_f32 v{d}, 0, v{x}'

def weave(main, fill):
    out = []; n = len(main); m = len(fill); k = 0
    for i, x in enumerate(main):
        out.append(x)
        want = (i + 1) * m // n
        out += fill[k:want]; k = want
    return out + fill[k:]

def emit(a, lst):
    for x in lst: a(x)

def next_entry_read(t):
    return [f's_lshl_b32 s{sT0}, s{sXE0}, 2',
            f's_add_u32 s{sT0}, s{sT0}, s{sSD}',
            f'v_add_u32 v{t}, s{sT0}, v{vSTGW}',
            f'ds_read_b32 v{vE}, v{t}']
def next_mask(t):
    return [f's_sub_u32 s{sT0}, s{sXE1}, s{sXE0}',
            f's_lshl_b32 s{sT0}, s{sT0}, 2',
            f's_add_u32 s{sT0}, s{sT0}, s{sSTG}',
            f'v_subrev_u32 v{t}, s{sT0}, v{vSTGW}',
            f'v_ashrrev_i32 v{t}, 31, v{t}']
def next_stage(t, u):
    return [f'v_bitop3_b32 v{vE}, v{vE}, v{t}, v{t} bitop3:0xf3',
            f'v_and_b32 v{t}, 0x7ffffe00, v{vE}',
            f'v_lshrrev_b32 v{u}, {9 if opt.rawpos else 6}, v{vE}',
            f'ds_write_b32 v{vSTGW}, v{t}',
            f'v_mul_u32_u24 v{u}, 6, v{u}' if opt.rawpos else f'v_and_b32 v{u}, -8, v{u}']
def off_reads(u):
    return [f'ds_read_b32 v{HOFF}, v{vHA} offset:{128*u}',
            f'ds_read_b32 v{HOFF+1}, v{vHA} offset:{128*u + 16}',
            f'ds_read_b128 v[{VOFF}:{VOFF+3}], v{vSTGR} offset:{128*u}',
            f'ds_read_b128 v[{VOFF+4}:{VOFF+7}], v{vSTGR} offset:{128*u + 16}']
def off_adds():
    return ([f'v_lshrrev_b32 v{HOFF+et}, 2, v{HOFF+et}' for et in range(2)] +
            [f'v_add_u32 v{HOFF+et}, v{HOFF+et}, v{vLPH}' for et in range(2)] +
            [f'v_add_u32 v{VOFF+jj}, v{VOFF+jj}, v{vLPV}' for jj in range(8)])
def pos_load(u): return [f'buffer_load_dwordx2 v[{PS}:{PS+1}], v{u}, s[{sP4}:{sP4+3}], 0 offen']
def h_loads():
    return [f'buffer_load_dwordx4 v[{H+et*8+ks*4}:{H+et*8+ks*4+3}], v{HOFF+et}, s[{sH}:{sH+3}], 0 offen offset:{ks*64}'
            for et in range(2) for ks in range(2)]
def v_loads(j):
    return [f'buffer_load_dwordx2 v[{V+j*16+jj*2}:{V+j*16+jj*2+1}], v{VOFF+jj}, s[{sSV}:{sSV+3}], 0 offen offset:{128*(j+1)}'
            for jj in range(8)]
def out_stores(addr):
    return [f'buffer_store_dwordx4 v[{D3+(c*2+hh)*4}:{D3+(c*2+hh)*4+3}], v{addr}, s[{sOUT}:{sOUT+3}], 0 offen offset:{c*128+hh*64} {opt.outst}'
            for c in range(4) for hh in range(2)]
def wread(step):
    p = [0, 2, 1][step // 4]; ct = step % 4
    return [f'ds_read_b128 v[{WS+(step%2)*8+ks*4}:{WS+(step%2)*8+ks*4+3}], v{vLANE16} offset:{L_W2F + ((p*4+ct)*2+ks)*1024}' for ks in range(2)]
def wf(p, u):
    return [f'v_mfma_f32_16x16x4bf16_1k v[{D3+16*et}:{D3+16*et+15}], v[{RBF}:{RBF+1}], v[{WR+2*p}:{WR+2*p+1}], 0 cbsz:2 abid:{2*u+et}' for et in range(2)]

sFI = 0
def T(a, n):
    if opt.trmain: tr(a, n)

def l2_mfma(step):
    d = D2 + (step % 2)*8; w = WS + (step % 2)*8; o = []
    for ks in range(2):
        for et in range(2):
            c = '0' if ks == 0 else f'v[{d+4*et}:{d+4*et+3}]'
            o.append(f'v_mfma_f32_16x16x32_bf16 v[{d+4*et}:{d+4*et+3}], v[{H+et*8+ks*4}:{H+et*8+ks*4+3}], v[{w+4*ks}:{w+4*ks+3}], {c}')
    return o
def l2_mul(step):
    part = step // 4; ct = step % 4; d = D2 + (step % 2)*8; o = []
    for et in range(2):
        for r in range(4):
            m = D3 + et*16 + ct*4 + r
            o.append(f'v_mul_f32 v{m if part == 2 else d+4*et+r}, v{d+4*et+r}, v{m}')
    if opt.pkc:
        o = []
        for et in range(2):
            for r in (0, 2):
                m = D3 + et*16 + ct*4 + r; x = d+4*et+r; y = m if part == 2 else x
                o.append(f'v_pk_mul_f32 v[{y}:{y+1}], v[{x}:{x+1}], v[{m}:{m+1}]')
    return o
def pbuf(step): return (TP + 4*(step % 2)) if opt.spread else D2 + (step % 2)*8
def l2_cvt(step):
    if step // 4 == 2: return []
    d = D2 + (step % 2)*8; p = pbuf(step)
    return [f'v_cvt_pk_bf16_f32 v{p+i}, v{d+2*i}, v{d+2*i+1}' for i in range(4)]
def l2_seg(step):
    part = step // 4; ct = step % 4; d = pbuf(step)
    if part == 2: return []
    if part == 0:
        acc = ACC + ct*4
        return [f'v_mfma_f32_16x16x32_bf16 v[{acc}:{acc+3}], v[{d}:{d+3}], v[{SEL}:{SEL+3}], v[{acc}:{acc+3}]']
    return [f'v_mfma_f32_16x16x32_bf16 v[{ACC+(1+j)*16+ct*4}:{ACC+(1+j)*16+ct*4+3}], v[{d}:{d+3}], v[{SR+4*j}:{SR+4*j+3}], v[{ACC+(1+j)*16+ct*4}:{ACC+(1+j)*16+ct*4+3}]' for j in range(3)]
def sel_reads(u):
    return ([f'ds_read_b128 v[{SEL}:{SEL+3}], v{vSTGS} offset:{S_DL + 64*u}'] +
            [f'ds_read_b128 v[{SR+4*j}:{SR+4*j+3}], v{vSTGS} offset:{S_R + 128*j + 64*u}' for j in range(3)])

def head(a, tag):
    first = tag == 'A'; u = 1 if tag == 'C' else 0
    if u == 0: a.label(f'L2_head_{tag}')
    vl = v_loads(0) + v_loads(1) + v_loads(2)
    assert sum(opt.vsched) == 24
    def vissue(i):
        n = opt.vsched[i]; emit(a, vl[:n]); del vl[:n]
    if u == 0:
        X = D2
        DP = TP
        a(f'v_and_b32 v{X}, 127, v{vE}')
        a(f'v_lshlrev_b32 v{X+1}, 4, v{X}')
        a(f'ds_read_b128 v[{DP}:{DP+3}], v{X+1} offset:{L_DPOS}')
        a(f'ds_write_b16 v{vSTGH}, v{X} offset:{S_DL}')
        if first:
            a(f's_lshl_b32 s{sT0}, s{sN0}, 9')
            a(f'v_add_u32 v{vRES}, s{sT0}, v{vLPR}')
            a(f's_mul_i32 s{sT0}, s{sN0}, 0x10001')
            a(f'v_add_u32 v{vNQ}, s{sT0}, v{vQQ}')
            a(f's_bfm_b32 s{sT1}, s{sNN}, 0')
            a(f's_lshl_b32 s{sT2}, s{sT1}, 16')
            a(f's_or_b32 s{sEXQ}, s{sT1}, s{sT2}')
            a(f's_mov_b32 s{sEXQ+1}, s{sEXQ}')
        else:
            a(f's_lshl_b32 s{sT0}, s{sN0}, 9')
            a(f'v_add_u32 v{vRES}, s{sT0}, v{vLPR}')
        if first:
            a(f'v_and_b32 v{X+3}, 0xff, v{vNQ}')
            a(f'v_and_b32 v{X+4}, 7, v{vNQ}')
            a(f'v_lshlrev_b32 v{X+4}, 5, v{X+4}')
            a(f'v_xor_b32 v{X+4}, v{X+4}, v{vLPH}')
            a(f'v_lshl_add_u32 v{X+3}, v{X+3}, 9, v{X+4}')
            a(f'v_add_u32 v{X+3}, {L_RES}, v{X+3}')
            for i in range(8):
                if i: a(f'v_xor_b32 v{X+4+(i&1)}, {i*64}, v{X+3}')
                a(f'ds_read_b128 v[{D3+4*i}:{D3+4*i+3}], v{X+3 if i == 0 else X+4+(i&1)}')
        a(f'v_ashrrev_i32 v{vM}, 31, v{vE}')
        T(a, 9)
        if first and sFI:
            a(f's_cmp_eq_u32 s{sFI}, 0')
            a('s_cbranch_scc1 L2_notfirst1')
            a('s_waitcnt vmcnt(4)')
            a.lines.append('L2_notfirst1:')
        a('s_waitcnt vmcnt(12)')
        T(a, 10)
        rx, ry, rz, t0, t1, t2, dd, inv = range(X, X+8)
        g0 = X + 8
        if opt.rawpos:
            a(f'v_alignbyte_b32 v{PS}, v{PS+1}, v{PS}, v{TP+5}')
            a(f'v_alignbyte_b32 v{PS+1}, v{PS+1}, v{PS+1}, v{TP+5}')
        a(f'v_lshlrev_b32 v{rx}, 16, v{PS}')
        a(f'v_and_b32 v{ry}, v{vMHI}, v{PS}')
        a(f'v_lshlrev_b32 v{rz}, 16, v{PS+1}')
        a(f's_waitcnt lgkmcnt({9 if first else 1})')
        for i in range(3): a(f'v_sub_f32 v{rx+i}, v{rx+i}, v{DP+i}')
        sc = []
        sc += [Rn(rx+i, rx+i) for i in range(3)]
        sc += [f'v_mul_f32 v{t0+i}, v{rx+i}, v{rx+i}' for i in range(3)]
        sc += [Rn(t0+i, t0+i) for i in range(3)]
        sc += [f'v_add_f32 v{t0}, v{t0}, v{t1}', f'v_add_f32 v{t0}, v{t0}, v{t2}', Rn(t0, t0),
               f'v_add_f32 v{t0}, {fl(1e-8)}, v{t0}', Rn(t0, t0), f'v_sqrt_f32 v{t0}, v{t0}', Rn(dd, t0), f'v_rcp_f32 v{inv}, v{dd}']
        sc += [f'v_mul_f32 v{g0+4}, {fl(3.141592653589793)}, v{dd}']
        sc += [f'v_mul_f32 v{g0+k}, s{sF+k}, v{dd}' for k in range(4)]
        sc += [Rn(g0+4, g0+4)] + [f'v_mul_f32 v{g0+4}, {fl(0.2)}, v{g0+4}'] + [Rn(g0+k, g0+k) for k in range(2)]
        sc += [Rn(g0+4, g0+4)] + [Rn(g0+k, g0+k) for k in range(2, 4)]
        sc += [f'v_mul_f32 v{g0+4}, 0.15915494, v{g0+4}']
        sc += [f'v_mul_f32 v{rx+i}, v{rx+i}, v{inv}' for i in range(3)]
        sc += [f'v_cos_f32 v{g0+4}, v{g0+4}']
        sc += [f'v_mul_f32 v{g0+k}, 0.15915494, v{g0+k}' for k in range(4)]
        sc += [f'v_cvt_pk_bf16_f32 v{t0}, v{rx}, v{ry}', f'v_cvt_pk_bf16_f32 v{t1}, v{rz}, v{rz}', Rn(g0+4, g0+4)]
        sc += [f'v_sin_f32 v{g0+k}, v{g0+k}' for k in range(2)]
        sc += [f'v_bitop3_b32 v{t0}, v{t0}, v{vM}, v{vM} bitop3:0x30', f'v_bitop3_b32 v{t1}, v{t1}, v{vM}, v{vM} bitop3:0x30',
               f'v_add_f32 v{g0+4}, 1.0, v{g0+4}']
        sc += [f'ds_write_b16 v{vSTGH}, v{t0} offset:{S_R}', f'ds_write_b16_d16_hi v{vSTGH}, v{t0} offset:{S_R+128}', f'ds_write_b16 v{vSTGH}, v{t1} offset:{S_R+256}']
        sc += sel_reads(0)
        sc += [f'v_sin_f32 v{g0+k}, v{g0+k}' for k in range(2, 4)]
        sc += [Rn(g0+4, g0+4), f'v_mul_f32 v{inv}, 0.5, v{inv}', f'v_mul_f32 v{inv}, v{inv}, v{g0+4}']
        sc += [f'v_mul_f32 v{g0+k}, v{g0+k}, v{inv}' for k in range(4)]
        sc += [f'v_cvt_pk_bf16_f32 v{RBF}, v{g0}, v{g0+1}', f'v_cvt_pk_bf16_f32 v{RBF+1}, v{g0+2}, v{g0+3}',
               f'v_bitop3_b32 v{RBF}, v{RBF}, v{vM}, v{vM} bitop3:0x30', f'v_bitop3_b32 v{RBF+1}, v{RBF+1}, v{vM}, v{vM} bitop3:0x30']
        fill = []
        if first:
            for c in range(4):
                for hh in range(2):
                    for ct in range(4):
                        for r in (2*hh, 2*hh+1):
                            src = D3 + (c*2 + hh)*4 + 2*(r & 1) + (ct >> 1)
                            dst = ACC + c*16 + ct*4 + r
                            fill.append(f'v_and_b32 v{dst}, v{vMHI}, v{src}' if ct & 1 else f'v_lshlrev_b32 v{dst}, 16, v{src}')
        nh = 6
        emit(a, sc[:nh])
        if first: a('s_waitcnt lgkmcnt(0)')
        emit(a, weave(sc[nh:], fill))
        emit(a, wread(0)); emit(a, wread(1))
    else:
        emit(a, wread(0)); emit(a, wread(1))
        T(a, 9)
    a(f's_mov_b32 s{sT0}, 0x00010001')
    a('s_waitcnt lgkmcnt(7)')
    for i in range(4): a(f'v_xor_b32 v{SEL+i}, v{SEL+i}, v{vNQ}')
    emit(a, wf(0, u)[:1])
    for i in range(4): a(f'v_pk_min_u16 v{SEL+i}, v{SEL+i}, s{sT0}')
    for i in range(4): a(f'v_pk_sub_u16 v{SEL+i}, v{SEL+i}, s{sT0}')
    emit(a, wf(0, u)[1:])
    a('s_waitcnt lgkmcnt(4)')
    for j in range(3):
        for i in range(4): a(f'v_and_b32 v{SR+4*j+i}, v{SR+4*j+i}, v{SEL+i}')
    for i in range(4): a(f'v_and_b32 v{SEL+i}, 0x3f803f80, v{SEL+i}')
    vissue(0)
    T(a, 11)
    if first and sFI:
        a(f's_cmp_eq_u32 s{sFI}, 0')
        a('s_cbranch_scc1 L2_notfirst2')
        a(f's_waitcnt vmcnt({opt.vsched[0]})')
        a(f's_mov_b32 s{sFI}, 0')
        a.lines.append('L2_notfirst2:')
    a(f's_waitcnt vmcnt({(8 if u == 0 else 0) + opt.vsched[0]})')
    T(a, 12)
    if opt.cprio == 1: a('s_setprio 1')
    if opt.cprio == 2: a('s_setprio 0')
    for step in range(12 if opt.spread else 0):
        a(f's_waitcnt lgkmcnt({2 if step < 11 else 0})')
        M = l2_mfma(step)
        if step == 0:
            emit(a, M); emit(a, wread(2)); vissue(1)
            continue
        S = l2_seg(step - 2) if step >= 2 else []
        s = step - 1; part = s // 4; ct = s % 4
        mu = l2_mul(s); cv = l2_cvt(s)
        va = mu[:4] + cv[:2] + mu[4:] + cv[2:]
        mf = M[:2] + S[:1] + M[2:] + S[1:]
        if step in (4, 8):
            last = max(i for i, x in enumerate(va) if x.startswith('v_mul'))
            emit(a, weave(mf[:4], va[:last+1])); emit(a, wf(2 if step == 4 else 1, u)[:1])
            emit(a, va[last+1:]); emit(a, mf[4:]); emit(a, wread(step + 2)); emit(a, wf(2 if step == 4 else 1, u)[1:])
        elif step in (5, 9):
            emit(a, mf[:4]); emit(a, weave(va, mf[4:])); emit(a, wread(step + 2) if step + 2 < 12 else [])
        else:
            emit(a, weave(mf, va))
            if step + 2 < 12: emit(a, wread(step + 2))
        vissue(step + 1)
    for step in range(0 if opt.spread else 12):
        a(f's_waitcnt lgkmcnt({2 if step < 11 else 0})')
        M = l2_mfma(step)
        if step == 0:
            emit(a, M); emit(a, wread(2)); vissue(1)
            continue
        m = l2_mul(step - 1)
        if opt.pkc == 2:
            emit(a, m + M)
        elif opt.pkc == 3:
            emit(a, M + m)
        elif step in (5, 9):
            h_ = len(m)//2
            emit(a, M[:2] + m[:h_] + M[2:3] + m[h_:h_+h_//2] + M[3:] + m[h_+h_//2:])
        else:
            emit(a, weave(M, m))
        if step == 4: emit(a, wf(2, u))
        if step == 8: emit(a, wf(1, u))
        emit(a, l2_cvt(step - 1))
        if step + 2 < 12: emit(a, wread(step + 2))
        emit(a, l2_seg(step - 1))
        vissue(step + 1)
    if opt.cprio == 1: a('s_setprio 0')
    if opt.cprio == 2: a('s_setprio 1')
    a(f's_add_u32 s{sXE0}, s{sE0}, {32*(u+1)}')
    a(f's_cmp_lt_u32 s{sXE0}, s{sE1}')
    if tag == 'A':
        a('s_cbranch_scc0 L2_newitem')
    elif tag == 'B':
        a.br('s_cbranch_scc1 L2_tail_toC')
        a.br('s_branch L2_newitem')
    else:
        a('s_cbranch_scc0 L2_newitem')
        a(f's_mov_b32 s{sXE1}, s{sE1}')
        a(f's_mov_b32 s{sXN0}, s{sN0}')
        a(f's_mov_b32 s{sXNN}, s{sNN}')
        a(f's_mov_b32 s{sXCONT}, 1')
        a(f's_mov_b32 s{sLAST}, 0')
        a.br('s_branch L2_tail_toA')

sPRE = 74; sPN0, sPNN, sPE0, sPE1 = 75, 76, 77, 78
def lookahead(a):
    chain_loop(a, vNX64, sC64)
    chain_loop(a, vNX32, sC32)
    a(f's_mov_b32 s{sPRE}, 2')
    a(f's_cmp_ge_u32 s{sNC}, {R}')
    a('s_cbranch_scc1 L2_lookdone')
    a(f's_mov_b32 s{sPN0}, s{sNC}')
    chain_start(a, sPE0)
    chain_step(a, vNX32)
    chain_start(a, sPE1)
    a(f's_sub_u32 s{sPNN}, s{sNC}, s{sPN0}')
    a(f's_mov_b32 s{sC32}, 7')
    a(f's_mov_b32 s{sPRE}, 1')
    if opt.yld in (7, 8, 9): a('s_setprio 3')
    a.label('L2_lookdone', settle=False)

def newitem(a):
    a.label('L2_newitem', settle=False)
    a(f's_mov_b32 s{sLAST}, 1')
    if opt.look:
        a(f's_cmp_eq_u32 s{sPRE}, 0')
        a('s_cbranch_scc1 L2_walknow')
        a(f's_cmp_eq_u32 s{sPRE}, 2')
        a('s_nop 3')
        a('s_cbranch_scc1 L2_tail_fin')
        a(f's_mov_b32 s{sXN0}, s{sPN0}')
        a(f's_mov_b32 s{sXNN}, s{sPNN}')
        a(f's_mov_b32 s{sXE0}, s{sPE0}')
        a(f's_mov_b32 s{sXE1}, s{sPE1}')
        a(f's_mov_b32 s{sXCONT}, 0')
        a(f's_mov_b32 s{sPRE}, 0')
        a('s_branch L2_tail_toA')
        a.label('L2_walknow', settle=False)
    chain_loop(a, vNX64, sC64)
    chain_loop(a, vNX32, sC32)
    a(f's_cmp_ge_u32 s{sNC}, {R}')
    a('s_cbranch_scc1 L2_tail_fin')
    a(f's_mov_b32 s{sXN0}, s{sNC}')
    chain_start(a, sXE0)
    chain_step(a, vNX32)
    chain_start(a, sXE1)
    a(f's_sub_u32 s{sXNN}, s{sNC}, s{sXN0}')
    a(f's_mov_b32 s{sXCONT}, 0')
    a(f's_mov_b32 s{sC32}, 7')
    if getattr(opt, 'yld', 0) == 2: a('s_setprio 0')

def tail(a, tag):
    if tag == 'toC':
        a.lines.append('L2_tail_toC:')
    else:
        a.label(f'L2_tail_{tag}', settle=False)
    def pv(n):
        j, ct = divmod(n, 4); U = D2 + ((n + 2) % 4)*8
        un, mu = [], []
        for jj in range(8):
            src = V + j*16 + jj*2 + (ct >> 1)
            un.append(f'v_and_b32 v{U+jj}, v{vMHI}, v{src}' if ct & 1 else f'v_lshlrev_b32 v{U+jj}, 16, v{src}')
            mu.append(f'v_mul_f32 v{U+jj}, v{U+jj}, v{D3 + (jj >> 2)*16 + ct*4 + (jj & 3)}')
        if opt.pk:
            mu = [f'v_pk_mul_f32 v[{U+jj}:{U+jj+1}], v[{U+jj}:{U+jj+1}], v[{D3 + (jj >> 2)*16 + ct*4 + (jj & 3)}:{D3 + (jj >> 2)*16 + ct*4 + (jj & 3) + 1}]' for jj in range(0, 8, 2)]
        cv = [f'v_cvt_pk_bf16_f32 v{U+i}, v{U+2*i}, v{U+2*i+1}' for i in range(4)]
        acc = ACC + (1+j)*16 + ct*4
        mf = f'v_mfma_f32_16x16x32_bf16 v[{acc}:{acc+3}], v[{U}:{U+3}], v[{SEL}:{SEL+3}], v[{acc}:{acc+3}]'
        return un, mu, cv, mf
    early = {'toA': 5, 'toC': 4, 'fin': 0}[tag] if opt.earlyh else 0
    if tag == 'toA': emit(a, next_entry_read(TP) + next_mask(TP+4))
    if tag == 'toC':
        if getattr(opt, 'yld', 0) == 4: a('s_setprio 1')
        emit(a, off_reads(1))
    if getattr(opt, 'yld', 0) == 5 and tag in ('toA', 'fin'): a('s_setprio 1')
    if getattr(opt, 'yld', 0) == 9 and tag == 'toA': a('s_setprio 0')
    if getattr(opt, 'yld', 0) == 10 and tag == 'fin': a('s_setprio 1')
    if getattr(opt, 'yld', 0) == 11 and tag == 'fin':
        a('s_cmp_ge_u32 s3, 4')
        a('s_cbranch_scc1 L2_keepprio')
        a('s_setprio 0')
        a.lines.append('L2_keepprio:')
    if getattr(opt, 'yld', 0) == 6 and tag == 'toA': a('s_setprio 0')
    emit(a, l2_mul(11))
    prev = None
    for n in range(12):
        j, ct = divmod(n, 4)
        un, mu, cv, mf = pv(n)
        if ct == 0:
            T(a, 13 + 2*j)
            late = 4 if (tag == 'fin' and opt.earlyst and j == 2) else 0
            a(f's_waitcnt vmcnt({16 - 8*j + (early if j else 0) + late})')
            T(a, 14 + 2*j)
        emit(a, un[:2])
        if prev: a(prev)
        emit(a, un[2:])
        rest = mu + cv
        if tag == 'toA' and n == 1:
            a('s_waitcnt lgkmcnt(0)')
            rest = weave(rest, next_stage(TP+4, TP+5) + off_reads(0))
        if (tag == 'toA' and n == 3) or (tag == 'toC' and n == 1):
            a('s_waitcnt lgkmcnt(0)')
            rest = weave(rest, off_adds())
            if opt.earlyh: rest = rest + (pos_load(TP+5) if tag == 'toA' else []) + h_loads()
        if tag == 'fin' and opt.earlyst and n in (5, 9):
            comps, base = ((0, 1), V) if n == 5 else ((2,), V + 16)
            pk_, st_ = [], []
            for ci, c in enumerate(comps):
                for hh in range(2):
                    r0 = base + ci*8 + hh*4
                    for d in range(4):
                        lo = ACC + c*16 + (2*(d & 1))*4 + 2*hh + (d >> 1)
                        pk_.append(f'v_cvt_pk_bf16_f32 v{r0+d}, v{lo}, v{lo+4}')
                    st_.append(f'buffer_store_dwordx4 v[{r0}:{r0+3}], v{vRES}, s[{sOUT}:{sOUT+3}], 0 offen offset:{c*128+hh*64} {opt.outst}')
            rest = rest + pk_ + [f's_mov_b64 exec, s[{sEXQ}:{sEXQ+1}]'] + st_ + ['s_mov_b64 exec, -1']
        emit(a, rest)
        prev = mf
    T(a, 19)
    if tag == 'toC':
        if opt.earlyh:
            a('s_nop 1')
            a(prev)
        else:
            emit(a, h_loads()[:2])
            a(prev)
            emit(a, h_loads()[2:])
        emit(a, sel_reads(1))
        if getattr(opt, 'yld', 0) == 3: a('s_setprio 1')
        return
    if tag == 'toA':
        if not opt.earlyh:
            emit(a, pos_load(TP+5))
            emit(a, h_loads())
        a(prev)
        a(f's_cmp_eq_u32 s{sLAST}, 0')
        a(f's_cbranch_scc1 L2_nopack')
    else:
        a('s_nop 1')
        a(prev)
    short = tag == 'fin' and opt.earlyst
    for c in range(3 if short else 0, 4):
        for hh in range(2):
            for d in range(4):
                lo = ACC + c*16 + (2*(d & 1))*4 + 2*hh + (d >> 1)
                a(f'v_cvt_pk_bf16_f32 v{D3+(c*2+hh)*4+d}, v{lo}, v{lo+4}')
    if tag == 'toA':
        a.br('s_branch L2_store')
        a.label('L2_nopack', settle=False)
        a(f'v_mov_b32 v{vRES}, 0x40000000')
        a.label('L2_store')
    T(a, 20)
    a(f's_mov_b64 exec, s[{sEXQ}:{sEXQ+1}]')
    emit(a, out_stores(vRES)[6 if short else 0:])
    a('s_mov_b64 exec, -1')
    if tag == 'toA':
        a(f's_mov_b32 s{sN0}, s{sXN0}')
        a(f's_mov_b32 s{sNN}, s{sXNN}')
        a(f's_mov_b32 s{sE0}, s{sXE0}')
        a(f's_mov_b32 s{sE1}, s{sXE1}')
        if getattr(opt, 'yld', 0) in (1, 3, 4, 5, 6, 7, 8): a('s_setprio 0')
        a(f's_cmp_lg_u32 s{sXCONT}, 0')
        a.br('s_cbranch_scc1 L2_head_B')
        a.br('s_branch L2_head_A')

def gen_k2(a, name):
    header(a, name)
    stamp.tmp = 252; stamp.wave = 0
    a('s_cmp_ge_u32 s2, %d' % NB)
    a('s_cbranch_scc1 L2_end')
    a('s_load_dwordx2 s[4:5], s[0:1], 0')
    a('s_load_dwordx2 s[12:13], s[0:1], 32')
    a('s_load_dwordx2 s[20:21], s[0:1], 64')
    a('s_load_dwordx2 s[24:25], s[0:1], 80')
    a('v_lshrrev_b32 v40, 6, v0')
    a('v_and_b32 v41, 63, v0')
    a('v_readfirstlane_b32 s3, v40')
    a(f'v_lshlrev_b32 v{vLANE16}, 4, v41')
    a('v_lshlrev_b32 v42, 4, v0')
    a('s_waitcnt lgkmcnt(0)')
    a('s_load_dwordx2 s[14:15], s[12:13], 0')
    srd(a, sSLOT, 24, SLOT_OFF, NB*64, mul=16384)
    W = V
    a(f'buffer_load_dwordx4 v[{W}:{W+3}], v42, s[{sSLOT}:{sSLOT+3}], 0 offen')
    a(f'v_add_u32 v43, 8192, v42')
    a(f'buffer_load_dwordx4 v[{W+4}:{W+7}], v43, s[{sSLOT}:{sSLOT+3}], 0 offen')
    srd(a, sP4, 24, POS4_OFF, N*8)
    a(f's_mul_i32 s{sT0}, s2, {R*8}')
    a('v_lshlrev_b32 v43, 3, v0')
    a(f'v_add_u32 v43, s{sT0}, v43')
    a('v_cmp_gt_u32 vcc, 128, v0')
    a('v_mov_b32 v44, 0x40000000')
    a('v_cndmask_b32_e64 v43, v44, v43, vcc')
    a(f'buffer_load_dwordx2 v[46:47], v43, s[{sP4}:{sP4+3}], 0 offen')
    def zero_counters(tag):
        a('s_cmp_ge_u32 s3, 3')
        a.br(f's_cbranch_scc1 L2_nozero{tag}')
        a('v_lshlrev_b32 v40, 2, v0')
        a('v_mov_b32 v44, 0')
        a(f'v_add_u32 v42, {L_FLAG - 512}, v40')
        a(f'v_add_u32 v40, {L_NCNT}, v40')
        a('v_cmp_gt_u32 vcc, 128, v0')
        a('v_cndmask_b32_e64 v40, v42, v40, vcc')
        a('v_cmp_gt_u32 vcc, 129, v0')
        a('s_and_saveexec_b64 s[64:65], vcc')
        a('ds_write_b32 v40, v44')
        a('s_mov_b64 exec, s[64:65]')
        a.label(f'L2_nozero{tag}')
    zero_counters('a')
    srd(a, sW2F, 24, W2F_OFF, 24576 + 1536)
    a('v_lshlrev_b32 v43, 3, v41')
    a(f's_mov_b32 s{sT0}, 24576')
    for p in range(3):
        a(f'buffer_load_dwordx2 v[{WR+2*p}:{WR+2*p+1}], v43, s[{sW2F}:{sW2F+3}], s{sT0} offen offset:{p*512}')
    for i in range(3):
        a(f's_lshl_b32 s{sT0}, s3, 10')
        if i: a(f's_add_u32 s{sT0}, s{sT0}, {i*8192}')
        a(f's_mov_b32 m0, s{sT0}')
        a(f'buffer_load_dwordx4 v{vLANE16}, s[{sW2F}:{sW2F+3}], s{sT0} offen lds')
    srd(a, sRES, 4, 0, R*512, mul=R*512)
    stamp_init(a, 1)
    tr_init(a)
    tr(a, 1)
    stamp(a, 1, 0)
    dbg_init(a, 1)
    dbg(a, 6)
    dbg(a, 7, True)
    srd(a, sSV, 4, 0, N*512)
    srd(a, sH, 24, H_OFF, N*128)
    srd(a, sOUT, 20, 0, R*512, mul=R*512)
    srd(a, sOVF, 24, OVF_OFF, NB*CH*4)
    a('v_and_b32 v44, 15, v41')
    a('v_lshrrev_b32 v45, 4, v41')
    a('v_lshrrev_b32 v43, 2, v44')
    a('v_lshlrev_b32 v43, 3, v43')
    a('v_and_b32 v40, 3, v44')
    a('v_add_u32 v43, v43, v40')
    a(f's_mul_i32 s{sSTG}, s3, {STG}')
    a(f's_add_u32 s{sSTG}, s{sSTG}, {L_STG}')
    a(f's_sub_u32 s{sSD}, {L_SORT}, s{sSTG}')
    a(f'v_lshl_add_u32 v{vHA}, v43, 2, s{sSTG}')
    a('v_and_b32 v40, 1, v45')
    a('v_lshl_add_u32 v43, v40, 2, v43')
    a('v_lshrrev_b32 v40, 1, v45')
    a('v_lshl_add_u32 v43, v40, 5, v43')
    a(f'v_lshl_add_u32 v{vSTGW}, v43, 2, s{sSTG}')
    a(f'v_lshl_add_u32 v{vSTGH}, v43, 1, s{sSTG}')
    a(f'v_lshl_add_u32 v{vSTGR}, v45, 5, s{sSTG}')
    a(f'v_lshl_add_u32 v{vSTGS}, v45, 4, s{sSTG}')
    emit_Q(a, vLPV, 44, 40)
    a(f'v_lshlrev_b32 v{vLPV}, 3, v{vLPV}')
    a(f'v_lshlrev_b32 v{vLPH}, 4, v45')
    a(f'v_lshl_add_u32 v{vLPR}, v44, 9, v{vLPH}')
    a(f'v_lshl_or_b32 v{vQQ}, v44, 16, v44')
    a(f'v_mov_b32 v{vMHI}, 0xffff0000')
    a(f's_mov_b32 s{sROUND}, 0')
    a('s_waitcnt lgkmcnt(0)')
    a('s_barrier')
    a(f's_lshl_b32 s{sF}, s14, 16')
    a(f's_and_b32 s{sF+1}, s14, 0xffff0000')
    a(f's_lshl_b32 s{sF+2}, s15, 16')
    a(f's_and_b32 s{sF+3}, s15, 0xffff0000')
    a('v_and_b32 v39, 3, v0')
    a('v_lshlrev_b32 v39, 2, v39')
    a('v_subrev_u32 v39, 1, v39')
    LIM, CNT = 56, 58
    a('s_waitcnt vmcnt(8)')
    a(f'v_mov_b32_dpp v{CNT}, v{W} quad_perm:[0,0,0,0] row_mask:0xf bank_mask:0xf')
    a('s_waitcnt vmcnt(7)')
    a(f'v_mov_b32_dpp v{CNT+1}, v{W+4} quad_perm:[0,0,0,0] row_mask:0xf bank_mask:0xf')
    for h in range(2):
        a(f'v_and_b32 v{CNT+h}, 0xffff, v{CNT+h}')
        a(f'v_min_u32 v{LIM+h}, {CAP}, v{CNT+h}')
        a(f'v_subrev_u32 v{CNT+h}, {CAP}, v{CNT+h}')
    a('s_cmp_ge_u32 s3, 2')
    a.br('s_cbranch_scc1 L2_nodpos')
    a('s_waitcnt vmcnt(6)')
    a('v_lshlrev_b32 v84, 16, v46')
    a(f'v_and_b32 v85, v{vMHI}, v46')
    a('v_lshlrev_b32 v86, 16, v47')
    a('v_mov_b32 v87, 0')
    a('v_lshlrev_b32 v42, 4, v0')
    a(f'ds_write_b128 v42, v[84:87] offset:{L_DPOS}')
    a.label('L2_nodpos')
    a.label('L2_round')
    stamp(a, 1, 1)
    tr(a, 4)
    A = 60; RK = 68; T = 76
    a('v_mov_b32 v40, 1')
    for i in range(8):
        a(f'v_add_u32 v41, {i & 3}, v39')
        a(f'v_cmp_lt_u32 s[{64+2*i}:{65+2*i}], v41, v{LIM + i//4}')
        a(f'v_and_b32 v{A+i}, 127, v{W+i}')
        a(f'v_lshlrev_b32 v{A+i}, 2, v{A+i}')
        a(f'v_add_u32 v{A+i}, {L_NCNT}, v{A+i}')
    for i in range(8):
        a(f's_mov_b64 exec, s[{64+2*i}:{65+2*i}]')
        a(f'ds_add_rtn_u32 v{RK+i}, v{A+i}, v40')
    a('s_mov_b64 exec, -1')
    a(f'v_max_i32 v41, v{CNT}, v{CNT+1}')
    a('v_cmp_lt_i32 vcc, 0, v41')
    a.br('s_cbranch_vccz L2_noflag')
    a(f'v_mov_b32 v41, {L_FLAG}')
    a('ds_write_b32 v41, v40')
    a.label('L2_noflag')
    a(f'v_lshrrev_b32 v41, 9, v{vLANE16}')
    a('s_lshl_b32 s%d, s3, 1' % sT0)
    a(f'v_add_u32 v42, s{sT0}, v41')
    a('v_and_b32 v42, 7, v42')
    a('v_lshlrev_b32 v42, 5, v42')
    a(f'v_xor_b32 v42, v42, v{vLANE16}')
    for i in range(7):
        if i == 6:
            a('s_cmp_ge_u32 s3, 2')
            a.br('s_cbranch_scc1 L2_resdone')
        a(f's_lshl_b32 s{sT0}, s3, 10')
        if i: a(f's_add_u32 s{sT0}, s{sT0}, {i*8192}')
        a(f's_add_u32 m0, s{sT0}, {L_RES}')
        a(f'buffer_load_dwordx4 v42, s[{sRES}:{sRES+3}], s{sT0} offen sc1 lds')
    a.label('L2_resdone')
    a('s_waitcnt lgkmcnt(0)')
    a('s_barrier')
    stamp(a, 1, 2)
    tr(a, 5)
    a(f'v_lshrrev_b32 v41, 2, v{vLANE16}')
    a(f'v_add_u32 v41, {L_NCNT}, v41')
    a('ds_read2st64_b32 v[42:43], v41 offset1:1')
    a(f'v_mov_b32 v44, {L_FLAG}')
    a('ds_read_b32 v45, v44')
    a('s_waitcnt lgkmcnt(1)')
    a('v_lshl_or_b32 v42, v43, 16, v42')
    a('v_mov_b32 v43, v42')
    for sh in ('row_shr:1', 'row_shr:2', 'row_shr:4', 'row_shr:8'):
        a(f'v_add_u32_dpp v43, v43, v43 {sh} row_mask:0xf bank_mask:0xf')
    a('v_add_u32_dpp v43, v43, v43 row_bcast:15 row_mask:0xa bank_mask:0xf')
    a('v_add_u32_dpp v43, v43, v43 row_bcast:31 row_mask:0xc bank_mask:0xf')
    a('s_waitcnt lgkmcnt(0)')
    a(f'v_readfirstlane_b32 s{sMORE}, v45')
    a(f'v_readlane_b32 s{sT0}, v43, 63')
    a('v_sub_u32 v43, v43, v42')
    a(f's_and_b32 s{sT0}, s{sT0}, 0xffff')
    a(f'v_and_b32 v{vSTLO}, 0xffff, v43')
    a(f'v_lshrrev_b32 v{vSTHI}, 16, v43')
    a(f'v_add_u32 v{vSTHI}, s{sT0}, v{vSTHI}')
    a(f'ds_write2st64_b32 v41, v{vSTLO}, v{vSTHI} offset0:2 offset1:3')
    for i in range(8):
        a(f'ds_read_b32 v{T+i}, v{A+i} offset:512')
    a(f'v_lshl_or_b32 v{vPACK}, v{vSTHI}, 16, v{vSTLO}')
    for i in range(8):
        a('s_waitcnt lgkmcnt(7)')
        a(f'v_add_lshl_u32 v{T+i}, v{T+i}, v{RK+i}, 2')
        a(f's_mov_b64 exec, s[{64+2*i}:{65+2*i}]')
        a(f'ds_write_b32 v{T+i}, v{W+i} offset:{L_SORT}')
        a('s_mov_b64 exec, -1')
    for k, (st, d) in enumerate(((vSTLO, 32), (vSTHI, 32), (vSTLO, 64), (vSTHI, 64))):
        a(f'v_add_u32 v{T+k}, {d}, v{st}')
        a(f'v_lshlrev_b32 v{T+4+k}, 2, v{T+k}')
    a(f'v_readlane_b32 s{sT2}, v{vSTHI}, {R - 64}')
    a(f'v_lshrrev_b32 v40, 4, v{vLANE16}')
    a('v_add_u32 v41, 64, v40')
    a(f'v_mov_b32 v46, {R}')
    a(f's_mov_b32 s{sNC}, 0')
    a(f's_mov_b32 s{sC64}, s3')
    a('s_waitcnt lgkmcnt(0)')
    a('s_barrier')
    stamp(a, 1, 3)
    tr(a, 2)
    dbg(a, 8)
    dbg(a, 9, True)
    for k in (2, 3, 0, 1):
        a(f'ds_read_b32 v{T+4+k}, v{T+4+k} offset:{L_SORT}')
    for k in range(4):
        a(f'v_cmp_gt_u32 s[{64+2*k}:{65+2*k}], s{sT2}, v{T+k}')
    a('v_add_u32 v42, 1, v40')
    a('v_add_u32 v43, 16, v40')
    a('v_add_u32 v44, 1, v41')
    a('v_add_u32 v45, 16, v41')
    for k in (2, 3, 0, 1):
        r = T + 4 + k
        if k in (2, 0): a(f's_waitcnt lgkmcnt({2 if k == 2 else 0})')
        a(f'v_and_b32 v{r}, 127, v{r}')
        a(f'v_cndmask_b32_e64 v{r}, v46, v{r}, s[{64+2*k}:{65+2*k}]')
        a(f'v_med3_u32 v{r}, v{r}, v{42 + 2*(k & 1)}, v{43 + 2*(k & 1)}')
        a(f'v_min_u32 v{r}, v46, v{r}')
        if k == 3: a(f'v_lshl_or_b32 v{vNX64}, v{T+7}, 16, v{T+6}')
    a(f'v_lshl_or_b32 v{vNX32}, v{T+5}, 16, v{T+4}')
    chain_loop(a, vNX64, sC64)
    a(f's_cmp_lt_u32 s{sNC}, {R}')
    a.br('s_cbranch_scc1 L2_haveitem')
    a('s_waitcnt vmcnt(0)')
    a('s_barrier')
    a.br('s_branch L2_rounddone')
    a.label('L2_haveitem')
    if opt.prio: a('s_setprio 3')
    a(f's_mov_b32 s{sN0}, s{sNC}')
    chain_start(a, sE0)
    chain_step(a, vNX64)
    chain_start(a, sE1)
    a(f's_sub_u32 s{sNN}, s{sNC}, s{sN0}')
    a(f's_mov_b32 s{sXE0}, s{sE0}')
    a(f's_mov_b32 s{sXE1}, s{sE1}')
    emit(a, next_entry_read(TP))
    emit(a, next_mask(TP+4))
    a(f's_sub_u32 s{sC64}, 7, s3')
    a(f's_mov_b32 s{sC32}, s3')
    a('s_waitcnt lgkmcnt(0)')
    emit(a, next_stage(TP+4, TP+5))
    emit(a, off_reads(0))
    emit(a, pos_load(TP+5))
    a('s_waitcnt lgkmcnt(0)')
    emit(a, off_adds())
    emit(a, h_loads())
    a('s_waitcnt vmcnt(5)')
    a('s_barrier')
    a(f'v_mov_b32 v{vRES}, 0x40000000')
    emit(a, out_stores(vRES))
    if opt.prio: a('s_setprio 0')
    if opt.prio2 == 1:
        a('s_cmp_lt_u32 s3, 4')
        a('s_cbranch_scc1 L2_noprio')
        a('s_setprio 1')
        a.label('L2_noprio', settle=False)
    tr(a, 3)
    a.br('s_branch L2_head_A')
    head(a, 'B')
    head(a, 'A')
    tail(a, 'toC')
    head(a, 'C')
    newitem(a)
    tail(a, 'toA')
    tail(a, 'fin')
    a.label('L2_rounddone')
    tr(a, 30)
    stamp(a, 1, 4)
    a(f's_cmp_eq_u32 s{sMORE}, 0')
    a.br('s_cbranch_scc1 L2_fin')
    a('s_waitcnt vmcnt(0) lgkmcnt(0)')
    a('s_barrier')
    zero_counters('b')
    srd(a, sRES, 20, 0, R*512, mul=R*512)
    a('v_lshrrev_b32 v40, 2, v0')
    a('v_lshlrev_b32 v41, 6, v40')
    a(f'buffer_load_dword v42, v41, s[{sSLOT}:{sSLOT+3}], 0 offen')
    a('v_add_u32 v41, 8192, v41')
    a(f'buffer_load_dword v43, v41, s[{sSLOT}:{sSLOT+3}], 0 offen')
    a('v_and_b32 v39, 3, v0')
    a('v_lshlrev_b32 v39, 2, v39')
    a(f's_lshl_b32 s{sT0}, s{sROUND}, 4')
    a(f's_add_u32 s{sT1}, s{sT0}, {CAP}')
    a(f's_add_u32 s{sROUND}, s{sROUND}, 1')
    a(f'v_mul_u32_u24 v40, {CH*4}, v40')
    a('v_lshl_add_u32 v40, v39, 2, v40')
    a(f's_lshl_b32 s{sT0}, s{sT0}, 2')
    a(f'v_add_u32 v40, s{sT0}, v40')
    a('s_waitcnt vmcnt(0)')
    for h in range(2):
        a(f'v_lshrrev_b32 v44, 16, v{42+h}')
        a(f'v_lshl_add_u32 v44, v44, 2, v40')
        if h: a(f'v_add_u32 v44, {128*CH*4}, v44')
        a(f'buffer_load_dwordx4 v[{W+4*h}:{W+4*h+3}], v44, s[{sOVF}:{sOVF+3}], 0 offen')
        a(f'v_and_b32 v{CNT+h}, 0xffff, v{42+h}')
        a(f'v_subrev_u32 v{CNT+h}, s{sT1}, v{CNT+h}')
        a(f'v_med3_i32 v{LIM+h}, v{CNT+h}, 0, 16')
        a(f'v_subrev_u32 v{CNT+h}, 16, v{CNT+h}')
    a('s_waitcnt vmcnt(0) lgkmcnt(0)')
    a('s_barrier')
    a.br('s_branch L2_round')
    a.label('L2_fin')
    tr_dump(a)
    if opt.ts or opt.dbg:
        a('s_waitcnt vmcnt(0)')
        stamp(a, 1, 5)
        dbg(a, 10)
        dbg(a, 11, True)
    a.label('L2_end')
    a('s_endpgm')

def build():
    src = open('gather_scatter__molecular_angular_painn__graph.s.ref').read().split('\n')
    head = []
    for ln in src:
        if not ln.startswith(';'): break
        if '@launch' in ln or 'Override launch' in ln or 'grid=ceil' in ln: continue
        head.append(ln)
    k1, k2 = 'painn_bin_kernel', 'painn_msg_kernel'
    head.append(f'; @launch kernel={k1} grid=({NB},1,1) block=(1024,1,1) lds={K1_LDS}')
    head.append(f'; @launch kernel={k2} grid=({NB},1,1) block=(512,1,1) lds={K2_LDS}')
    a = Asm()
    a.raw('.amdgcn_target "amdgcn-amd-amdhsa--gfx950"\n.text')
    gen_k1(a, k1)
    gen_k2(a, k2)
    out = '\n'.join(head) + '\n' + a.text() + '.section .rodata,"a"\n' + descriptor(k1, 128) + descriptor(k2, K2_VGPR)
    return out

if __name__ == '__main__':
    outp = sys.argv[1]
    for kv in sys.argv[2:]:
        k, val = kv.split('=')
        setattr(opt, k, type(getattr(opt, k))(eval(val)))
    open(outp, 'w').write(build())
```

```python
import sys
from asmlib import Asm
import gen4 as g
from gen4 import *

NAME = 'gather_scatter__molecular_angular_painn__graph_kernel'
SS = 16512
EPOCH_OFF = SLOT_OFF + 250*SS
L_WRR = 125952
L_STAGE = 129024
L_W2R = 101376
opt.ng0 = 2; opt.hprio = 2; opt.rawpos = True; opt.pfres = 1; opt.wb = 2; opt.prewr = False; opt.g1st = 0; opt.yld = 0; opt.pfv = []; opt.diag = ''; opt.pfn = 2; opt.pfh = False; opt.fine = False; opt.tr0 = False; opt.hsc = 'sc1'; opt.rt = False; opt.spin = 16; opt.pk = True; opt.sleep = 2; opt.res_when = 'pre'; opt.prew = True; opt.pfw = True; opt.pollmask = True; opt.dumpsc = 'sc1'
sNB = 8
sEP = 100
sFI = 86
g.sFI = sFI
pLDS, pOFA, pOFB, pME, pM0, pT0, pPA, pPB, pN0, pNE, pWA, pWD, pWR, pHC, pHS = range(172, 187)
pRS = 188
sWRR = 12
sPC0 = 78
M_ENT = 0x00fffe7f; M_HDR = 0x00ffffff

def tr(a, tag):
    if not opt.tr: return
    a('s_memrealtime s[92:93]' if opt.rt else 's_memtime s[92:93]')
    a('s_mov_b32 m0, s27')
    a('s_add_u32 s27, s27, 1')
    a('s_waitcnt lgkmcnt(0)')
    a('s_lshl_b32 s92, s92, 6')
    a(f's_or_b32 s92, s92, {tag}')
    a('v_writelane_b32 v11, s92, m0')
g.tr = tr

def h_loads():
    return [f'buffer_load_dwordx4 v[{H+et*8+ks*4}:{H+et*8+ks*4+3}], v{HOFF+et}, s[{sH}:{sH+3}], 0 offen offset:{ks*64} {opt.hsc}'
            for et in range(2) for ks in range(2)]
def pos_load(u): return [f'v_and_b32 v{u-1}, -4, v{u}', f'buffer_load_dwordx2 v[{PS}:{PS+1}], v{u-1}, s[{sP4}:{sP4+3}], 0 offen']
g.h_loads = h_loads; g.pos_load = pos_load


def rare_paths(a):
    RK1, BINC, ENT = 136, 80, 96
    a.label('L1_ovf')
    a('s_cmp_ge_u32 s3, 4')
    a.br('s_cbranch_scc1 L1_ovf_based')
    a('v_lshlrev_b32 v40, 2, v0')
    a(f'v_add_u32 v40, {K1_CNT}, v40')
    a('ds_read_b32 v41, v40')
    a('s_waitcnt lgkmcnt(0)')
    a(f'v_cmp_lt_u32 vcc, {CAP}, v41')
    a('s_and_saveexec_b64 s[88:89], vcc')
    a.br('s_cbranch_execz L1_ovf_none')
    a(f'v_subrev_u32 v41, {CAP}, v41')
    a(f'v_mov_b32 v42, {K1_CNT + 1024}')
    a('ds_add_rtn_u32 v43, v42, v41')
    a('s_waitcnt lgkmcnt(0)')
    a(f'ds_write_b32 v40, v43 offset:{K1_OVB - K1_CNT}')
    a.label('L1_ovf_none')
    a('s_mov_b64 exec, s[88:89]')
    a.label('L1_ovf_based')
    a('s_waitcnt lgkmcnt(0)')
    a('s_barrier')
    srd(a, 88, 24, OVF_OFF, CH*4, mul=CH*4)
    for i in range(7):
        a('s_mov_b64 exec, -1')
        a(f'v_cmp_le_u32 vcc, {CAP}, v{RK1+i}')
        a(f's_and_b64 exec, vcc, s[{64+2*i}:{65+2*i}]')
        a.br(f's_cbranch_execz L1_ovf{i}')
        a(f'ds_read_b32 v40, v{BINC+i} offset:{K1_OVB - K1_CNT}')
        a('s_waitcnt lgkmcnt(0)')
        a(f'v_add_u32 v40, v40, v{RK1+i}')
        a(f'v_subrev_u32 v40, {CAP}, v40')
        a('v_lshlrev_b32 v40, 2, v40')
        a(f'buffer_store_dword v{ENT+i}, v40, s[88:91], 0 offen sc1')
        a.label(f'L1_ovf{i}')
    a('s_mov_b64 exec, -1')
    for h in range(2):
        a(f'ds_read_b32 v40, v{pHC} offset:{K1_OVB - K1_CNT + 512*h}')
        a(f'v_cmp_lt_u32 vcc, {CAP}, v{108+h}')
        a('s_waitcnt lgkmcnt(0)')
        a('v_lshlrev_b32 v40, 12, v40')
        a('v_cndmask_b32_e64 v40, 0, v40, vcc')
        a(f'v_or_b32 v{108+h}, v{108+h}, v40')
    a('s_waitcnt vmcnt(0)')
    a('s_barrier')
    a.br('s_branch L1_noovf')

def consts_poll(a):
    a('s_and_b32 s60, s2, 0xf0')
    a('s_and_b32 s61, s2, 7')
    a('s_lshl_b32 s61, s61, 1')
    a('s_or_b32 s60, s60, s61')
    a('s_bfe_u32 s61, s2, 0x10003')
    a('s_or_b32 s60, s60, s61')
    a('s_lshl_b32 s60, s60, 6')
    a(f's_add_u32 s60, s60, {SLOT_OFF}')
    a(f's_add_u32 s{sSLOT}, s24, s60')
    a(f's_addc_u32 s{sSLOT+1}, s25, 0')
    a(f's_mov_b32 s{sSLOT+2}, {(NB-1)*SS + 64}')
    a(f's_mov_b32 s{sSLOT+3}, 0x20000')
    a('v_lshrrev_b32 v43, 2, v0')
    a(f'v_mul_u32_u24 v43, {SS}, v43')
    a(f'v_add_u32 v{pPA}, v{pPA}, v43')
    a(f'v_add_u32 v{pPB}, {128*SS}, v{pPA}')
    a(f'v_not_b32 v{pNE}, v{pME}')
    a('v_cmp_gt_u32 vcc, 488, v0')
    a('s_mov_b64 s[64:65], vcc')

def consts_late(a):
    a(f's_and_b32 s{sF+3}, s{sF+1}, 0xffff0000')
    a(f's_lshl_b32 s{sF+2}, s{sF+1}, 16')
    a(f's_and_b32 s{sF+1}, s{sF}, 0xffff0000')
    a(f's_lshl_b32 s{sF}, s{sF}, 16')
    srd(a, sSV, 4, 0, 0 if 'V' in opt.diag else N*512)
    srd(a, sH, 24, H_OFF, 0 if 'H' in opt.diag else N*128)
    srd(a, sOUT, 20, 0, 0 if 'S' in opt.diag else R*512, mul=R*512)
    srd(a, sOVF, 24, OVF_OFF, NB*CH*4)
    a(f'v_bfe_u32 v44, v{vLANE16}, 4, 4')
    a(f'v_lshrrev_b32 v45, 8, v{vLANE16}')
    a('v_lshrrev_b32 v43, 2, v44')
    a('v_lshlrev_b32 v43, 3, v43')
    a('v_and_b32 v40, 3, v44')
    a('v_add_u32 v43, v43, v40')
    a(f's_mul_i32 s{sSTG}, s3, {STG}')
    a(f's_add_u32 s{sSTG}, s{sSTG}, {L_STG}')
    a(f's_sub_u32 s{sSD}, {L_SORT}, s{sSTG}')
    a(f'v_lshl_add_u32 v{vHA}, v43, 2, s{sSTG}')
    a('v_and_b32 v40, 1, v45')
    a('v_lshl_add_u32 v43, v40, 2, v43')
    a('v_lshrrev_b32 v40, 1, v45')
    a('v_lshl_add_u32 v43, v40, 5, v43')
    a(f'v_lshl_add_u32 v{vSTGW}, v43, 2, s{sSTG}')
    a(f'v_lshl_add_u32 v{vSTGH}, v43, 1, s{sSTG}')
    a(f'v_lshl_add_u32 v{vSTGR}, v45, 5, s{sSTG}')
    a(f'v_lshl_add_u32 v{vSTGS}, v45, 4, s{sSTG}')
    emit_Q(a, vLPV, 44, 40)
    a(f'v_lshlrev_b32 v{vLPV}, 3, v{vLPV}')
    a(f'v_lshl_add_u32 v{vLPR}, v44, 9, v{vLPH}')
    a(f'v_lshl_or_b32 v{vQQ}, v44, 16, v44')
    a(f's_mov_b32 s{sROUND}, 0')
    a(f'v_lshrrev_b32 v40, 1, v45')
    for k in range(4):
        a(f'v_add_u32 v{pRS+k}, {2*k}, v40')
        a(f'v_lshlrev_b32 v{pRS+k}, 5, v{pRS+k}')
        a(f'v_xor_b32 v{pRS+k}, v{pRS+k}, v{vLANE16}')
    a('v_and_b32 v39, 3, v0')
    a('v_lshlrev_b32 v39, 2, v39')
    a('v_subrev_u32 v39, 1, v39')

def build_weights(a):
    a('s_and_b32 s60, s3, 1')
    a(f's_mul_i32 s60, s60, {32*384}')
    a('s_bfe_u32 s62, s3, 0x20001')
    a('s_lshl_b32 s62, s62, 1')
    a('s_add_u32 s60, s60, s62')
    a(f's_add_u32 s60, s60, {L_W2R}')
    a(f'v_mul_u32_u24 v{pWA}, 96, v{vLPH}')
    a(f'v_add3_u32 v{pWA}, v{pWA}, v{vLPV}, s60')
    a('s_lshl_b32 s60, s3, 10')
    a(f'v_add_u32 v{pWD}, s60, v{vLANE16}')
    a(f'v_lshrrev_b32 v{pWR}, 3, v{vLPH}')
    a(f'v_add_u32 v{pWR}, v{pWR}, v{vLPV}')
    a(f'v_add_u32 v{pWR}, {L_WRR}, v{pWR}')
    for p in range(3):
        for k in range(4):
            a(f'ds_read_u16 v{104+4*p+k}, v{pWR} offset:{k*384 + p*128}')
    a('s_waitcnt lgkmcnt(0)')
    for p in range(3):
        for jj in range(8):
            if p and jj == 5: a('s_waitcnt lgkmcnt(11)')
            a(f'ds_read_u16 v{64+8*(p&1)+jj}, v{pWA} offset:{p*128 + (16*(jj>>2) + (jj&3))*384}')
        if p == 0:
            for pp in range(3):
                for i in range(2):
                    a(f'v_lshl_or_b32 v{WR+2*pp+i}, v{105+4*pp+2*i}, 16, v{104+4*pp+2*i}')
        if p:
            q = p - 1
            a('s_waitcnt lgkmcnt(8)')
            for i in range(4): a(f'v_lshl_or_b32 v{80+i}, v{65+8*(q&1)+2*i}, 16, v{64+8*(q&1)+2*i}')
            a(f'ds_write_b128 v{pWD}, v[80:83] offset:{q*8192}')
    a('s_waitcnt lgkmcnt(1)')
    for i in range(4): a(f'v_lshl_or_b32 v{84+i}, v{65+2*i}, 16, v{64+2*i}')
    a(f'ds_write_b128 v{pWD}, v[84:87] offset:{2*8192}')

def gen(a):
    header(a, NAME)
    a('s_cmp_ge_u32 s2, %d' % NB)
    a('s_cbranch_scc1 L_end')
    a('s_load_dwordx8 s[4:11], s[0:1], 0')
    a('s_load_dwordx8 s[12:19], s[0:1], 32')
    a('s_load_dwordx2 s[20:21], s[0:1], 64')
    a('s_load_dwordx2 s[24:25], s[0:1], 80')
    a('v_lshrrev_b32 v40, 6, v0')
    a('v_and_b32 v41, 63, v0')
    a('v_readfirstlane_b32 s3, v40')
    a(f'v_lshlrev_b32 v{vLANE16}, 4, v41')
    a('v_lshlrev_b32 v42, 4, v0')
    a('v_and_b32 v44, 15, v41')
    a('v_lshrrev_b32 v45, 4, v41')
    a(f'v_lshlrev_b32 v{vLPH}, 4, v45')
    a('s_and_b32 s60, s3, 3')
    a('s_lshl_b32 s60, s60, 4')
    a('v_add_u32 v46, s60, v44')
    a(f'v_lshl_add_u32 v64, v46, 9, v{vLPH}')
    a(f'v_lshl_add_u32 v65, v46, 7, v{vLPH}')
    a('v_lshrrev_b32 v43, 2, v42')
    a('s_waitcnt lgkmcnt(0)')
    if opt.tr0:
        tr_init(a); tr(a, 48)
    srd(a, 72, 6, 0, N*6)
    srd(a, sP4, 6, 0, 0 if 'P' in opt.diag else N*6)
    a('s_lshr_b32 s63, s2, 3')
    def group():
        a('s_sub_u32 s61, s60, 37')
        a('s_cmp_ge_u32 s60, 37')
        a('s_cselect_b32 s60, s61, s60')
        a('s_lshl_b32 s61, s60, 12')
        a('s_mov_b32 m0, s61')
        a(f's_add_u32 s60, s60, {group.step}')
        for k in range(4):
            a(f'buffer_load_dwordx4 v{vLANE16}, s[72:75], s61 offen offset:{1024*k} lds')
    NG = opt.ng0
    a('s_add_u32 s60, s63, s3')
    group.step = 8
    for i in range(opt.g1st): group()
    srd(a, 76, 14, 0, 8192)
    a('s_lshl_b32 s61, s3, 10')
    a(f's_add_u32 m0, s61, {K1_W1}')
    a('s_nop 0')
    a(f'buffer_load_dwordx4 v{vLANE16}, s[76:79], s61 offen lds')
    srd(a, sRES, 4, 0, R*512, mul=R*512)
    S = 68
    a('s_cmp_lt_u32 s3, 4')
    a('s_cbranch_scc1 L1_nos')
    a(f'buffer_load_dwordx4 v[{S}:{S+3}], v64, s[{sRES}:{sRES+3}], 0 offen')
    a(f'buffer_load_dwordx4 v[{S+4}:{S+7}], v64, s[{sRES}:{sRES+3}], 0 offen offset:64')
    a(f'v_add_u32 v64, {64*512}, v64')
    a(f'buffer_load_dwordx4 v[{S+8}:{S+11}], v64, s[{sRES}:{sRES+3}], 0 offen')
    a(f'buffer_load_dwordx4 v[{S+12}:{S+15}], v64, s[{sRES}:{sRES+3}], 0 offen offset:64')
    a.label('L1_nos', settle=False)
    SRC, DST = 48, 56
    srd(a, 64, 8, 0, CH*4, mul=CH*4)
    srd(a, 68, 10, 0, CH*4, mul=CH*4)
    nt = 'nt' if opt.nt_edges else ''
    a('v_lshrrev_b32 v47, 1, v42')
    a('v_add_u32 v47, 8192, v47')
    a(f'buffer_load_dwordx4 v[{SRC}:{SRC+3}], v42, s[64:67], 0 offen {nt}')
    a(f'buffer_load_dwordx4 v[{DST}:{DST+3}], v42, s[68:71], 0 offen {nt}')
    a(f'buffer_load_dwordx2 v[{SRC+4}:{SRC+5}], v47, s[64:67], 0 offen {nt}')
    a(f'buffer_load_dwordx2 v[{DST+4}:{DST+5}], v47, s[68:71], 0 offen {nt}')
    a(f'v_add_u32 v47, {12288 - 512}, v43')
    a('s_sub_u32 s61, s3, 2')
    a('s_cmp_lt_u32 s61, 2')
    a('s_cselect_b32 s62, 0, 0x40000000')
    a('v_add_u32 v47, s62, v47')
    a(f'buffer_load_dword v{SRC+6}, v47, s[64:67], 0 offen {nt}')
    a(f'buffer_load_dword v{DST+6}, v47, s[68:71], 0 offen {nt}')
    a(f's_add_u32 s84, s24, {EPOCH_OFF}')
    a('s_addc_u32 s85, s25, 0')
    a(f's_load_dword s{sEP}, s[84:85], 0')
    a(f's_load_dwordx2 s[{sF}:{sF+1}], s[12:13], 0')
    for i in range(NG - opt.g1st): group()
    if not opt.tr0: tr_init(a)
    tr(a, 1)
    a('v_mov_b32 v40, 0')
    a(f'v_add_u32 v47, {K1_CNT}, v43')
    a('s_cmp_ge_u32 s3, 5')
    a('s_cbranch_scc1 L1_nozero')
    a('ds_write_b32 v47, v40')
    a.label('L1_nozero', settle=False)
    a(f's_waitcnt vmcnt({6 + 4*(NG - opt.g1st)}) lgkmcnt(0)')
    a('s_barrier')
    tr(a, 2)
    a('s_cmp_ge_u32 s3, 4')
    a('s_cbranch_scc1 L1_hpath')
    a('s_add_u32 s60, s63, s3')
    a(f's_add_u32 s60, s60, {8*NG}')
    a('s_sub_u32 s61, s60, 37')
    a('s_cmp_ge_u32 s60, 37')
    a('s_cselect_b32 s60, s61, s60')
    group.step = 4
    rest = 37 - 8*NG
    for i in range((rest + 3)//4):
        if 4*i + 3 >= rest:
            a(f's_cmp_ge_u32 s3, {rest - 4*i}')
            a('s_cbranch_scc1 L1_tabdone')
        group()
    a.label('L1_tabdone', settle=False)
    if opt.fine: tr(a, 54)
    a(f's_waitcnt vmcnt({4*(NG - opt.g1st) + 4*(rest//4)})')
    a('s_branch L1_consts')
    a.label('L1_hpath', settle=False)
    if opt.hprio: a(f's_setprio {opt.hprio}')
    srd(a, 76, 24, H_OFF, R*128, mul=R*128)
    a('v_lshrrev_b32 v66, 2, v44')
    a('v_lshl_add_u32 v66, v45, 3, v66')
    a('v_and_b32 v67, 3, v44')
    a('v_lshlrev_b32 v67, 3, v67')
    a('v_lshl_add_u32 v66, v66, 7, v67')
    a(f'v_add_u32 v66, {K1_W1}, v66')
    FR = 100
    for ht in range(4):
        for ks in range(2):
            r = FR + (ht*2+ks)*4
            if ht == 3 and ks == 0: a('s_waitcnt lgkmcnt(4)')
            for hf in range(2):
                a(f'ds_read_b64_tr_b16 v[{r+2*hf}:{r+2*hf+1}], v66 offset:{ks*4096 + ht*32 + hf*512}')
    D = 132; O = 148; Tt = 164
    a('s_waitcnt lgkmcnt(0)')
    for t in range(2):
        if t == 1:
            a('s_cmp_eq_u32 s3, 7')
            a.br('s_cbranch_scc1 L1_hdone')
        for ht in range(4):
            a(f'v_mfma_f32_16x16x32_bf16 v[{D+4*ht}:{D+4*ht+3}], v[{FR+ht*8}:{FR+ht*8+3}], v[{S+8*t}:{S+8*t+3}], 0')
            a(f'v_mfma_f32_16x16x32_bf16 v[{D+4*ht}:{D+4*ht+3}], v[{FR+ht*8+4}:{FR+ht*8+7}], v[{S+8*t+4}:{S+8*t+7}], v[{D+4*ht}:{D+4*ht+3}]')
        for grp in range(4):
            for i in range(4): a(f'v_cvt_pk_bf16_f32 v{D+4*grp+i}, 0, v{D+4*grp+i}')
            for i in range(4): a(f'v_mul_f32 v{Tt+i}, {fl(-1.4426950408889634)}, v{D+4*grp+i}')
            for i in range(4): a(f'v_exp_f32 v{Tt+i}, v{Tt+i}')
            for i in range(4): a(f'v_add_f32 v{Tt+i}, 1.0, v{Tt+i}')
            for i in range(4): a(f'v_rcp_f32 v{Tt+i}, v{Tt+i}')
            for i in range(4): a(f'v_mul_f32 v{Tt+i}, v{Tt+i}, v{D+4*grp+i}')
            a(f'v_cvt_pk_bf16_f32 v{O+8*t+2*grp}, v{Tt}, v{Tt+1}')
            a(f'v_cvt_pk_bf16_f32 v{O+8*t+2*grp+1}, v{Tt+2}, v{Tt+3}')
        if t == 0:
            O2 = O
        else:
            pass
    a.label('L1_hdone')
    if opt.fine: tr(a, 57)
    a(f'buffer_store_dwordx4 v[{O}:{O+3}], v65, s[76:79], 0 offen sc1')
    a(f'buffer_store_dwordx4 v[{O+4}:{O+7}], v65, s[76:79], 0 offen offset:64 sc1')
    a(f'v_add_u32 v65, {64*128}, v65')
    a(f'buffer_store_dwordx4 v[{O+8}:{O+11}], v65, s[76:79], 0 offen sc1')
    a(f'buffer_store_dwordx4 v[{O+12}:{O+15}], v65, s[76:79], 0 offen offset:64 sc1')
    a(f's_waitcnt vmcnt({4*(NG - opt.g1st) + 4})')
    a.label('L1_consts')
    if opt.fine: tr(a, 55)
    a('s_waitcnt lgkmcnt(0)')
    a(f's_add_u32 s{sEP}, s{sEP}, 1')
    for j in (1, 2, 3):
        a(f's_lshr_b32 s60, s{sEP}, {10*(j-1)}')
        a('s_lshl_b32 s61, s60, 24')
        a('s_lshr_b32 s60, s60, 1')
        a('s_and_b32 s60, s60, 0x180')
        a(f's_or_b32 s{sNB+j}, s60, s61')
    a(f's_xor_b32 s{sNB}, s{sNB+1}, 0xff000180')
    srd(a, sW2F, 16, 0, 64*192*2)
    srd(a, sWRR, 18, 0, 4*192*2)
    a(f'v_mov_b32 v{vMHI}, 0xffff0000')
    a('v_lshrrev_b32 v43, 2, v0')
    a('v_and_b32 v40, 0xf0, v43')
    a('v_bfe_u32 v46, v43, 1, 3')
    a('v_or_b32 v40, v40, v46')
    a('v_and_b32 v46, 1, v43')
    a('v_lshl_or_b32 v40, v46, 3, v40')
    a('v_and_b32 v46, 3, v0')
    a(f'v_lshlrev_b32 v{pPA}, 4, v46')
    a(f'v_lshlrev_b32 v{pHC}, 2, v40')
    a(f'v_add_u32 v{pHC}, {K1_CNT}, v{pHC}')
    a('v_mul_u32_u24 v40, 80, v40')
    a(f'v_add_u32 v40, v40, v{pPA}')
    a(f'v_add_u32 v{pLDS}, {L_STAGE}, v40')
    a(f'v_lshlrev_b32 v{pOFA}, 4, v0')
    a(f'v_add_u32 v{pOFB}, 8192, v{pOFA}')
    a(f'v_mov_b32 v{pME}, {M_ENT}')
    a(f'v_mov_b32 v{pM0}, {M_HDR}')
    a(f'v_cmp_eq_u32 s[{sPC0}:{sPC0+1}], 0, v46')
    a(f'v_add_u32 v{pHS}, {K1_CNT}, v{vLANE16}')
    a(f'v_cndmask_b32_e64 v{pM0}, v{pME}, v{pM0}, s[{sPC0}:{sPC0+1}]')
    a(f'v_not_b32 v{pN0}, v{pM0}')
    a(f'v_and_b32 v{pT0}, s{sNB}, v{pN0}')
    if opt.fine: tr(a, 56)
    AS, AD = 64, 72
    BINC, BINS, ENT = 80, 88, 96
    P = 104
    a(f's_mov_b32 s60, {fl(opt.thr)}')
    a('s_mov_b32 s61, -100')
    a(f's_mov_b32 s62, {K1_CNT}')
    a(f's_mov_b32 s63, {L_STAGE}')
    def prep(i):
        a(f'v_mul_u32_u24 v40, 5243, v{DST+i}')
        a(f'v_mul_u32_u24 v{AS+i}, 6, v{SRC+i}')
        a(f'v_lshrrev_b32 v40, 19, v40')
        a(f'v_mul_u32_u24 v{AD+i}, 6, v{DST+i}')
        a(f'v_mad_i32_i24 v41, v40, s61, v{DST+i}')
        a(f'v_lshl_add_u32 v{BINC+i}, v40, 2, s62')
        a(f'v_lshl_or_b32 v{ENT+i}, v{SRC+i}, 9, v41')
        a(f'v_mad_u32_u24 v{BINS+i}, v40, v47, s63')
        a(f'v_and_b32 v{SRC+i}, -4, v{AS+i}')
        a(f'v_and_b32 v{DST+i}, -4, v{AD+i}')
    a('v_mov_b32 v47, 80')
    RK1 = 136
    for i in range(7): prep(i)
    a(f's_mul_i32 s84, s2, {R}')
    a(f'v_lshrrev_b32 v41, 4, v{vLANE16}')
    a('v_add_u32 v132, s84, v41')
    a('v_add_u32 v133, 64, v132')
    for h in range(2):
        a(f'v_mul_u32_u24 v{132+h}, 6, v{132+h}')
        a(f'v_and_b32 v{134+h}, -4, v{132+h}')
    a('v_mov_b32 v46, 1')
    if opt.hprio: a('s_setprio 0')
    tr(a, 3)
    a('s_cmp_ge_u32 s3, 4')
    a('s_cbranch_scc1 L1_b1')
    a('s_waitcnt vmcnt(0)')
    a.label('L1_b1', settle=False)
    a('s_waitcnt vmcnt(4) lgkmcnt(0)')
    a('s_barrier')
    tr(a, 4)
    def reads(i):
        a(f'ds_read2_b32 v[{P+4*i}:{P+4*i+1}], v{SRC+i} offset1:1')
        a(f'ds_read2_b32 v[{P+4*i+2}:{P+4*i+3}], v{DST+i} offset1:1')
    def test(i):
        p, q = P+4*i, P+4*i+2
        a(f'v_alignbyte_b32 v40, v{p+1}, v{p}, v{AS+i}')
        a(f'v_alignbyte_b32 v41, v{p+1}, v{p+1}, v{AS+i}')
        a(f'v_alignbyte_b32 v42, v{q+1}, v{q}, v{AD+i}')
        a(f'v_alignbyte_b32 v43, v{q+1}, v{q+1}, v{AD+i}')
        a(f'v_lshlrev_b32 v{p}, 16, v40')
        a(f'v_lshlrev_b32 v{q}, 16, v42')
        a(f'v_and_b32 v40, v{vMHI}, v40')
        a(f'v_and_b32 v42, v{vMHI}, v42')
        a(f'v_lshlrev_b32 v41, 16, v41')
        a(f'v_lshlrev_b32 v43, 16, v43')
        a(f'v_sub_f32 v{p}, v{p}, v{q}')
        a(f'v_sub_f32 v40, v40, v42')
        a(f'v_sub_f32 v41, v41, v43')
        a(f'v_mul_f32 v{p}, v{p}, v{p}')
        a(f'v_fmac_f32 v{p}, v40, v40')
        a(f'v_fmac_f32 v{p}, v41, v41')
        a(f'v_cmp_ngt_f32 s[{64+2*i}:{65+2*i}], v{p}, s60')
    def rank(i):
        a(f's_mov_b64 exec, s[{64+2*i}:{65+2*i}]')
        a(f'ds_add_rtn_u32 v{RK1+i}, v{BINC+i}, v46')
        a('s_mov_b64 exec, -1')
    for i in range(6): reads(i)
    if opt.prewr:
        srd(a, 88, 24, SLOT_OFF, 16384, mul=SS)
        for k in range(4): a(f'v_mov_b32 v{168+k}, 0')
        for h in range(2):
            a(f'buffer_store_dwordx4 v[168:171], v{pOFA+h}, s[88:91], 0 offen sc1')
    if opt.pfres:
        a(f's_lshl_b32 s84, s3, 12')
        for k in range(4):
            a(f'buffer_load_dwordx4 v[164:167], v{vLANE16}, s[{sRES}:{sRES+3}], s84 offen offset:{1024*k}')
        if opt.pfres > 1:
            a('s_add_u32 s84, s84, 32768')
            for k in range(4):
                a(f'buffer_load_dwordx4 v[164:167], v{vLANE16}, s[{sRES}:{sRES+3}], s84 offen offset:{1024*k}')
    if opt.prew or opt.pfw:
        a('s_sub_u32 s84, s3, 4')
        a('s_cmp_ge_u32 s84, 3')
        a('s_cbranch_scc1 L1_notouch')
    if opt.pfw:
        a('s_lshr_b32 s85, s2, 3')
        a('s_mul_i32 s85, s85, 768')
        a('s_lshl_b32 s86, s84, 8')
        a('s_add_u32 s85, s85, s86')
        a(f'v_and_b32 v47, 0xf0, v{vLANE16}')
        a('v_add_u32 v47, s85, v47')
        a(f'buffer_load_dwordx4 v[168:171], v47, s[{sW2F}:{sW2F+3}], 0 offen')
    if opt.prew:
        srd(a, 88, 24, SLOT_OFF, 16384, mul=SS)
        a(f'v_subrev_u32 v47, 4096, v{pOFA}')
        for k in range(6):
            a('buffer_load_dwordx4 v[168:171], v47, s[88:91], 0 offen')
            if k < 5: a('v_add_u32 v47, 3072, v47')
        a(f's_mov_b32 s{sROUND}, 0')
    if opt.prew or opt.pfw:
        a.label('L1_notouch', settle=False)
    a('s_mov_b64 s[76:77], 0')
    a('s_sub_u32 s84, s3, 2')
    a('s_cmp_lt_u32 s84, 2')
    a('s_cbranch_scc0 L1_six')
    a('s_waitcnt lgkmcnt(10)')
    test(0)
    reads(6)
    a('s_waitcnt lgkmcnt(0)')
    test(6)
    a.br('s_branch L1_rest')
    a.label('L1_six')
    a('s_cmp_lg_u32 s3, 7')
    a('s_cbranch_scc1 L1_notw7')
    a('s_waitcnt lgkmcnt(8)')
    for h in range(2):
        a(f'ds_read2_b32 v[{152+2*h}:{153+2*h}], v{134+h} offset1:1')
    a('s_waitcnt lgkmcnt(0)')
    for h in range(2):
        a(f'v_alignbyte_b32 v{156+2*h}, v{153+2*h}, v{152+2*h}, v{132+h}')
        a(f'v_alignbyte_b32 v{157+2*h}, v{153+2*h}, v{153+2*h}, v{132+h}')
        a(f'v_lshlrev_b32 v{144+4*h}, 16, v{156+2*h}')
        a(f'v_and_b32 v{145+4*h}, v{vMHI}, v{156+2*h}')
        a(f'v_lshlrev_b32 v{146+4*h}, 16, v{157+2*h}')
        a(f'v_mov_b32 v{147+4*h}, 0')
    a.label('L1_notw7')
    a('s_waitcnt lgkmcnt(10)')
    test(0)
    a.label('L1_rest')
    for i in range(1, 6):
        a(f's_waitcnt lgkmcnt({2*(5-i)})')
        test(i)
    for i in (6, 0, 1, 2, 3, 4, 5):
        a(f's_mov_b64 exec, s[{64+2*i}:{65+2*i}]')
        a(f'ds_add_rtn_u32 v{RK1+i}, v{BINC+i}, v46')
    a('s_mov_b64 exec, -1')
    a('s_waitcnt lgkmcnt(0)')
    a('s_barrier')
    tr(a, 5)
    a(f's_mul_i32 s{sT0}, s3, 3072')
    a(f's_add_u32 m0, s{sT0}, {L_W2R}')
    a(f's_lshl_b32 s{sT1}, s3, 10')
    a(f's_min_u32 s{sT2}, s{sT1}, 2048')
    for i in range(3):
        a(f'buffer_load_dwordx4 v{vLANE16}, s[{sW2F}:{sW2F+3}], s{sT0} offen offset:{1024*i} lds')
    a(f's_add_u32 m0, s{sT2}, {L_WRR}')
    a(f'ds_read_b128 v[104:107], v{pHS}')
    a(f'buffer_load_dwordx4 v{vLANE16}, s[{sWRR}:{sWRR+3}], s{sT1} offen lds')
    a(f'ds_read_b32 v108, v{pHC}')
    a(f'ds_read_b32 v109, v{pHC} offset:512')
    if opt.fine: tr(a, 50)
    for i in range(7):
        a(f'v_min_u32 v40, {CAP}, v{RK1+i}')
        a(f'v_lshl_add_u32 v{BINS+i}, v40, 2, v{BINS+i}')
    for i in range(7):
        a(f's_mov_b64 exec, s[{64+2*i}:{65+2*i}]')
        a(f'ds_write_b32 v{BINS+i}, v{ENT+i} offset:4')
    a('s_mov_b64 exec, -1')
    if opt.fine: tr(a, 51)
    def zero_counters(tag):
        a('s_cmp_ge_u32 s3, 2')
        a(f's_cbranch_scc1 L2_nozero{tag}')
        a('v_lshlrev_b32 v42, 2, v0')
        a('v_mov_b32 v44, 0')
        a(f'ds_write_b32 v42, v44 offset:{L_NCNT}')
        a.label(f'L2_nozero{tag}', settle=False)
    zero_counters('a')
    a('s_cmp_lg_u32 s3, 7')
    a('s_cbranch_scc1 L1_join')
    for h in range(2):
        a(f'ds_write_b128 v{vLANE16}, v[{144+4*h}:{147+4*h}] offset:{L_DPOS + 1024*h}')
    a.label('L1_join', settle=False)
    srd(a, 84, 24, SLOT_OFF, 16384, mul=SS)
    if opt.fine: tr(a, 52)
    n7 = 4 + [0, 4, 8][opt.pfres] + (2 if opt.prewr else 0)
    if opt.prew or opt.pfw:
        a('s_cmp_lg_u32 s3, 7')
        a('s_cbranch_scc1 L1_b3')
        a(f's_waitcnt vmcnt({n7})')
        a.label('L1_b3', settle=False)
    a('s_waitcnt vmcnt(%d) lgkmcnt(0)' % (n7 + (6 if opt.prew else 0) + (1 if opt.pfw else 0)))
    if opt.fine: tr(a, 53)
    a('v_max3_u32 v104, v104, v105, v106')
    a('v_max_u32 v104, v104, v107')
    a(f'v_cmp_lt_u32 vcc, {CAP}, v104')
    a('s_barrier')
    tr(a, 6)
    W = V
    a(f'ds_read_b128 v[{W}:{W+3}], v{pLDS}')
    a(f'ds_read_b128 v[{W+4}:{W+7}], v{pLDS} offset:{128*80}')
    a('s_cbranch_vccnz L1_ovf')
    a.label('L1_noovf', settle=False)
    for h in range(2):
        a(f's_waitcnt lgkmcnt({1-h})')
        a(f'v_cndmask_b32_e64 v{W+4*h}, v{W+4*h}, v{108+h}, s[{sPC0}:{sPC0+1}]')
        for j in (1, 2, 3):
            a(f'v_and_or_b32 v{W+4*h+j}, v{W+4*h+j}, v{pME}, s{sNB+j}')
        a(f'v_and_or_b32 v{W+4*h}, v{W+4*h}, v{pM0}, v{pT0}')
        a(f'buffer_store_dwordx4 v[{W+4*h}:{W+4*h+3}], v{pOFA+h}, s[84:87], 0 offen {opt.dumpsc}')
    tr(a, 7)
    consts_poll(a)
    if opt.wb == 1:
        emit_Q(a, vLPV, 44, 40) if False else None
    def res_image(tag):
        if tag == 'b':
            a(f'v_lshrrev_b32 v40, 9, v{vLANE16}')
            for k in range(4):
                a(f'v_add_u32 v{pRS+k}, {2*k}, v40')
                a(f'v_lshlrev_b32 v{pRS+k}, 5, v{pRS+k}')
                a(f'v_xor_b32 v{pRS+k}, v{pRS+k}, v{vLANE16}')
        a(f's_lshl_b32 s{sT0}, s3, 12')
        a(f's_add_u32 m0, s{sT0}, {L_RES}')
        a('s_cmp_ge_u32 s3, 5')
        for k in range(4):
            a(f'buffer_load_dwordx4 v{pRS+k}, s[{sRES}:{sRES+3}], s{sT0} offen offset:{1024*k} sc1 lds')
        a(f's_cbranch_scc1 L2_resdone{tag}')
        a(f's_add_u32 s{sT0}, s{sT0}, 32768')
        a(f's_add_u32 m0, s{sT0}, {L_RES}')
        a('s_cmp_eq_u32 s3, 4')
        for k in range(4):
            if k == 2: a(f's_cbranch_scc1 L2_resdone{tag}')
            a(f'buffer_load_dwordx4 v{pRS+k}, s[{sRES}:{sRES+3}], s{sT0} offen offset:{1024*k} sc1 lds')
        a.label(f'L2_resdone{tag}', settle=False)
    a(f's_mov_b32 s61, {1 << opt.spin}')
    a('s_waitcnt vmcnt(2)')
    a('s_barrier')
    tr(a, 23)
    if opt.wb == 1:
        consts_late(a); build_weights(a)
    if opt.wb == 2: consts_late(a)
    if opt.res_when == 'drain':
        res_image('a')
        a('s_waitcnt vmcnt(4)')
    else:
        a('s_waitcnt vmcnt(0)')
    tr(a, 8)
    a(f'buffer_load_dwordx4 v[{W}:{W+3}], v{pPA}, s[{sSLOT}:{sSLOT+3}], 0 offen sc1')
    a(f'buffer_load_dwordx4 v[{W+4}:{W+7}], v{pPB}, s[{sSLOT}:{sSLOT+3}], 0 offen sc1')
    if opt.res_when == 'mid': res_image('a')
    if opt.wb == 0: consts_late(a)
    if opt.wb != 1: build_weights(a)
    a('s_waitcnt vmcnt(4)' if opt.res_when == 'mid' else 's_waitcnt vmcnt(0)')
    a.label('L2_poll')
    if opt.fine: tr(a, 24)
    for h in range(2):
        w = W + 4*h
        a(f'v_xor_b32 v{61+h}, v{pT0}, v{w}')
        a(f'v_and_b32 v{61+h}, v{pN0}, v{61+h}')
        for j in (1, 2, 3):
            a(f'v_xor_b32 v63, s{sNB+j}, v{w+j}')
            a(f'v_and_or_b32 v{61+h}, v63, v{pNE}, v{61+h}')
    a('v_cmp_ne_u32 vcc, 0, v61')
    a('v_cmp_ne_u32 s[66:67], 0, v62')
    a('s_and_b64 s[66:67], s[66:67], s[64:65]')
    a('s_or_b64 s[68:69], s[66:67], vcc')
    a.br('s_cbranch_scc0 L2_polled')
    a('s_sub_u32 s61, s61, 1')
    a('s_cmp_eq_u32 s61, 0')
    a.br('s_cbranch_scc1 L2_polled')
    if opt.sleep: a(f's_sleep {opt.sleep}')
    if opt.pollmask:
        a('s_mov_b64 exec, vcc')
        a('s_cbranch_execz L2_nopollA')
    a(f'buffer_load_dwordx4 v[{W}:{W+3}], v{pPA}, s[{sSLOT}:{sSLOT+3}], 0 offen sc1')
    if opt.pollmask:
        a.label('L2_nopollA', settle=False)
        a('s_mov_b64 exec, s[66:67]')
        a('s_cbranch_execz L2_nopollB')
    a(f'buffer_load_dwordx4 v[{W+4}:{W+7}], v{pPB}, s[{sSLOT}:{sSLOT+3}], 0 offen sc1')
    if opt.pollmask:
        a.label('L2_nopollB', settle=False)
        a('s_mov_b64 exec, -1')
    a('s_waitcnt vmcnt(0)')
    a.br('s_branch L2_poll')
    a.label('L2_polled')
    tr(a, 9)
    if opt.res_when == 'post': res_image('a')
    LIM, CNT = 56, 58
    a(f'v_mov_b32_dpp v{CNT}, v{W} quad_perm:[0,0,0,0] row_mask:0xf bank_mask:0xf')
    a(f'v_mov_b32_dpp v{CNT+1}, v{W+4} quad_perm:[0,0,0,0] row_mask:0xf bank_mask:0xf')
    for h in range(2):
        a(f'v_and_b32 v{CNT+h}, 0xfff, v{CNT+h}')
        a(f'v_min_u32 v{LIM+h}, {CAP}, v{CNT+h}')
        a(f'v_subrev_u32 v{CNT+h}, {CAP}, v{CNT+h}')
    a.label('L2_round')
    A = 60; RK = 68; T = 76
    a('v_mov_b32 v40, 1')
    a(f's_mov_b32 s60, {L_NCNT}')
    for i in range(4):
        a(f'v_add_u32 v{41+i}, {i}, v39')
    for i in range(8):
        a(f'v_cmp_lt_u32 s[{64+2*i}:{65+2*i}], v{41 + (i & 3)}, v{LIM + i//4}')
        a(f'v_and_b32 v{A+i}, 127, v{W+i}')
        a(f'v_lshl_add_u32 v{A+i}, v{A+i}, 2, s60')
    if opt.fine: tr(a, 61)
    a(f'v_max_i32 v41, v{CNT}, v{CNT+1}')
    a('v_cmp_lt_i32 vcc, 0, v41')
    for i in range(8):
        a(f's_mov_b64 exec, s[{64+2*i}:{65+2*i}]')
        a(f'ds_add_rtn_u32 v{RK+i}, v{A+i}, v40')
    a('s_mov_b64 exec, -1')
    if opt.res_when == 'post2':
        a(f's_cmp_lg_u32 s{sROUND}, 0')
        a('s_cbranch_scc1 L2_resdonea')
        res_image('a')
    a('s_cbranch_vccz L2_noflag')
    a(f'v_mov_b32 v41, {L_NCNT + 127*4}')
    a('ds_write_b32 v41, v40')
    a.label('L2_noflag', settle=False)
    for i in range(8):
        a(f'v_and_b32 v{W+i}, {M_ENT}, v{W+i}')
    a('s_waitcnt lgkmcnt(0)')
    a('s_barrier')
    tr(a, 10)
    a(f's_cmp_lg_u32 s{sROUND}, 0')
    a.br('s_cbranch_scc1 L2_now2f')
    if opt.res_when == 'late': res_image('a')
    a('s_or_b32 s60, s2, s3')
    a('s_cmp_lg_u32 s60, 0')
    a.br('s_cbranch_scc1 L2_now2f')
    srd(a, 84, 24, EPOCH_OFF, 4)
    a(f'v_mov_b32 v43, s{sEP}')
    a('s_mov_b64 exec, 1')
    a('buffer_store_dword v43, off, s[84:87], 0 sc1')
    a('s_mov_b64 exec, -1')
    a.label('L2_now2f')
    if opt.pfv: a('v_mov_b32 v44, 0x40000000')
    for i in opt.pfv:
        a(f'v_and_b32 v45, 0xfffe00, v{W+i}')
        a(f'v_cndmask_b32_e64 v45, v44, v45, s[{64+2*i}:{65+2*i}]')
        for j in range(3*opt.pfn):
            a(f'buffer_load_dword v255, v45, s[{sSV}:{sSV+3}], 0 offen offset:{128 + j*128//opt.pfn}')
        if opt.pfh:
            a('v_lshrrev_b32 v45, 2, v45')
            a(f'buffer_load_dword v255, v45, s[{sH}:{sH+3}], 0 offen {opt.hsc}')
    a(f'v_lshrrev_b32 v41, 2, v{vLANE16}')
    a(f'v_add_u32 v41, {L_NCNT}, v41')
    a('ds_read2st64_b32 v[42:43], v41 offset1:1')
    a('s_waitcnt lgkmcnt(0)')
    a(f'v_readlane_b32 s{sMORE}, v43, 63')
    a('v_lshl_or_b32 v42, v43, 16, v42')
    a('v_mov_b32 v43, v42')
    for sh in ('row_shr:1', 'row_shr:2', 'row_shr:4', 'row_shr:8'):
        a(f'v_add_u32_dpp v43, v43, v43 {sh} row_mask:0xf bank_mask:0xf')
    a('v_add_u32_dpp v43, v43, v43 row_bcast:15 row_mask:0xa bank_mask:0xf')
    a('v_add_u32_dpp v43, v43, v43 row_bcast:31 row_mask:0xc bank_mask:0xf')
    a(f'v_readlane_b32 s{sT0}, v43, 63')
    a('v_sub_u32 v43, v43, v42')
    a(f's_and_b32 s{sT0}, s{sT0}, 0xffff')
    a(f'v_and_b32 v{vSTLO}, 0xffff, v43')
    a(f'v_lshrrev_b32 v{vSTHI}, 16, v43')
    a(f'v_add_u32 v{vSTHI}, s{sT0}, v{vSTHI}')
    if opt.fine: tr(a, 58)
    a(f'ds_write2st64_b32 v41, v{vSTLO}, v{vSTHI} offset0:2 offset1:3')
    for i in range(8):
        a(f'ds_read_b32 v{T+i}, v{A+i} offset:512')
    a(f'v_lshl_or_b32 v{vPACK}, v{vSTHI}, 16, v{vSTLO}')
    for i in range(8):
        if i % 4 == 0:
            a(f's_waitcnt lgkmcnt({4 - i})')
            for k in range(i, i+4): a(f'v_add_lshl_u32 v{T+k}, v{T+k}, v{RK+k}, 2')
        a(f's_mov_b64 exec, s[{64+2*i}:{65+2*i}]')
        a(f'ds_write_b32 v{T+i}, v{W+i} offset:{L_SORT}')
        if i % 4 == 3: a('s_mov_b64 exec, -1')
    for k, (st, d) in enumerate(((vSTLO, 32), (vSTHI, 32), (vSTLO, 64), (vSTHI, 64))):
        a(f'v_add_u32 v{T+k}, {d}, v{st}')
        a(f'v_lshlrev_b32 v{T+4+k}, 2, v{T+k}')
    a(f'v_readlane_b32 s{sT2}, v{vSTHI}, {R - 64}')
    a(f'v_lshrrev_b32 v40, 4, v{vLANE16}')
    a('v_add_u32 v41, 64, v40')
    a(f'v_mov_b32 v46, {R}')
    a(f's_mov_b32 s{sNC}, 0')
    a(f's_mov_b32 s{sC64}, s3')
    if opt.fine: tr(a, 59)
    a('s_waitcnt vmcnt(%d) lgkmcnt(0)' % (len(opt.pfv)*(3*opt.pfn + (1 if opt.pfh else 0))))
    if opt.fine: tr(a, 60)
    a('s_barrier')
    tr(a, 21)
    for k in (2, 3, 0, 1):
        a(f'ds_read_b32 v{T+4+k}, v{T+4+k} offset:{L_SORT}')
    for k in range(4):
        a(f'v_cmp_gt_u32 s[{64+2*k}:{65+2*k}], s{sT2}, v{T+k}')
    a('v_add_u32 v42, 1, v40')
    a('v_add_u32 v43, 16, v40')
    a('v_add_u32 v44, 1, v41')
    a('v_add_u32 v45, 16, v41')
    for k in (2, 3, 0, 1):
        r = T + 4 + k
        if k in (2, 0): a(f's_waitcnt lgkmcnt({2 if k == 2 else 0})')
        a(f'v_and_b32 v{r}, 127, v{r}')
        a(f'v_cndmask_b32_e64 v{r}, v46, v{r}, s[{64+2*k}:{65+2*k}]')
        a(f'v_med3_u32 v{r}, v{r}, v{42 + 2*(k & 1)}, v{43 + 2*(k & 1)}')
        a(f'v_min_u32 v{r}, v46, v{r}')
        if k == 3: a(f'v_lshl_or_b32 v{vNX64}, v{T+7}, 16, v{T+6}')
    a(f'v_lshl_or_b32 v{vNX32}, v{T+5}, 16, v{T+4}')
    if opt.fine: tr(a, 42)
    chain_loop(a, vNX64, sC64)
    if opt.fine: tr(a, 43)
    a(f's_cmp_lt_u32 s{sNC}, {R}')
    a.br('s_cbranch_scc0 L2_rounddone')
    if opt.prio: a('s_setprio 3')
    a(f's_mov_b32 s{sN0}, s{sNC}')
    chain_start(a, sE0)
    chain_step(a, vNX64)
    chain_start(a, sE1)
    a(f's_sub_u32 s{sNN}, s{sNC}, s{sN0}')
    a(f's_mov_b32 s{sXE0}, s{sE0}')
    a(f's_mov_b32 s{sXE1}, s{sE1}')
    emit(a, next_entry_read(TP))
    emit(a, next_mask(TP+4))
    a(f's_sub_u32 s{sC64}, 7, s3')
    a(f's_mov_b32 s{sC32}, s3')
    a('s_waitcnt lgkmcnt(0)')
    if opt.fine: tr(a, 62)
    emit(a, next_stage(TP+4, TP+5))
    emit(a, off_reads(0))
    emit(a, pos_load(TP+5))
    a('s_waitcnt lgkmcnt(0)')
    emit(a, off_adds())
    emit(a, h_loads())
    a(f's_mov_b32 s{sFI}, 1')
    if opt.prio: a('s_setprio %d' % {0: 0, 1: 1, 2: 1, 3: 2, 4: 2, 5: 2, 6: 2, 7: 1, 8: 2, 9: 1, 10: 2, 11: 2}[opt.yld])
    if opt.look: g.lookahead(a)
    tr(a, 22)
    a.br('s_branch L2_head_A')
    head(a, 'B')
    head(a, 'A')
    tail(a, 'toC')
    head(a, 'C')
    newitem(a)
    tail(a, 'toA')
    tail(a, 'fin')
    a.label('L2_rounddone')
    tr(a, 30)
    a(f's_cmp_eq_u32 s{sMORE}, 0')
    a.br('s_cbranch_scc1 L2_fin')
    a('s_waitcnt vmcnt(0) lgkmcnt(0)')
    a('s_barrier')
    zero_counters('b')
    srd(a, sRES, 20, 0, R*512, mul=R*512)
    res_image('b')
    a('v_lshrrev_b32 v40, 2, v0')
    a(f'v_mul_u32_u24 v41, {SS}, v40')
    a(f'buffer_load_dword v42, v41, s[{sSLOT}:{sSLOT+3}], 0 offen sc1')
    a(f'v_add_u32 v41, {128*SS}, v41')
    a(f'buffer_load_dword v43, v41, s[{sSLOT}:{sSLOT+3}], 0 offen sc1')
    a('v_and_b32 v39, 3, v0')
    a('v_lshlrev_b32 v39, 2, v39')
    a(f's_lshl_b32 s{sT0}, s{sROUND}, 4')
    a(f's_add_u32 s{sT1}, s{sT0}, {CAP}')
    a(f's_add_u32 s{sROUND}, s{sROUND}, 1')
    a(f'v_mul_u32_u24 v40, {CH*4}, v40')
    a('v_lshl_add_u32 v40, v39, 2, v40')
    a(f's_lshl_b32 s{sT0}, s{sT0}, 2')
    a(f'v_add_u32 v40, s{sT0}, v40')
    a('s_waitcnt vmcnt(0)')
    for h in range(2):
        a(f'v_bfe_u32 v44, v{42+h}, 12, 12')
        a(f'v_lshl_add_u32 v44, v44, 2, v40')
        if h: a(f'v_add_u32 v44, {128*CH*4}, v44')
        a(f'buffer_load_dwordx4 v[{W+4*h}:{W+4*h+3}], v44, s[{sOVF}:{sOVF+3}], 0 offen sc1')
        a(f'v_and_b32 v{CNT+h}, 0xfff, v{42+h}')
        a(f'v_subrev_u32 v{CNT+h}, s{sT1}, v{CNT+h}')
        a(f'v_med3_i32 v{LIM+h}, v{CNT+h}, 0, 16')
        a(f'v_subrev_u32 v{CNT+h}, 16, v{CNT+h}')
    a('s_waitcnt vmcnt(0) lgkmcnt(0)')
    a('s_barrier')
    a.br('s_branch L2_round')
    a.label('L2_fin')
    if opt.tr:
        a('s_waitcnt vmcnt(0)')
        tr(a, 31)
    tr_dump(a)
    a.label('L_end')
    a('s_endpgm')
    rare_paths(a)

def build():
    src = open('gather_scatter__molecular_angular_painn__graph.s.ref').read().split('\n')
    head_ = []
    for ln in src:
        if not ln.startswith(';'): break
        if '@launch' in ln or 'Override launch' in ln or 'grid=ceil' in ln: continue
        head_.append(ln)
    head_.append(f'; @launch grid=({NB},1,1) block=(512,1,1) lds={K1_LDS}')
    a = Asm()
    a.raw('.amdgcn_target "amdgcn-amd-amdhsa--gfx950"\n.text')
    gen(a)
    return '\n'.join(head_) + '\n' + a.text() + '.section .rodata,"a"\n' + descriptor(NAME, 256)

if __name__ == '__main__':
    outp = sys.argv[1]
    for kv in sys.argv[2:]:
        k, val = kv.split('=', 1)
        setattr(opt, k, type(getattr(opt, k))(eval(val)))
    open(outp, 'w').write(build())
```

```python
import sys
from asmlib import Asm
import gen4 as g
from gen4 import *

NAME = 'gather_scatter__molecular_angular_painn__graph_kernel'
SS = 16512
EPOCH_OFF = SLOT_OFF + 250*SS
L_WRR = 125952
L_STAGE = 129024
L_W2R = 101376
opt.ng0 = 2; opt.hprio = 2; opt.rawpos = True; opt.pfres = 1; opt.wb = 2; opt.dbg2 = False; opt.prewr = False; opt.g1st = 0; opt.yld = 0; opt.pfv = []; opt.diag = ''; opt.pfn = 2; opt.pfh = False; opt.fine = False; opt.tr0 = False; opt.hsc = 'sc1'; opt.rt = False; opt.spin = 16; opt.pk = True; opt.sleep = 2; opt.res_when = 'pre'; opt.prew = True; opt.pfw = True; opt.pollmask = True; opt.dumpsc = 'sc1'
sNB = 8
sEP = 100
sFI = 86
g.sFI = sFI
pLDS, pOFA, pOFB, pME, pM0, pT0, pPA, pPB, pN0, pNE, pWA, pWD, pWR, pHC, pHS = range(172, 187)
pRS = 188
sWRR = 12
sPC0 = 78
M_ENT = 0x00fffe7f; M_HDR = 0x00ffffff

def tr(a, tag):
    if not opt.tr: return
    a('s_memrealtime s[92:93]' if opt.rt else 's_memtime s[92:93]')
    a('s_mov_b32 m0, s27')
    a('s_add_u32 s27, s27, 1')
    a('s_waitcnt lgkmcnt(0)')
    a('s_lshl_b32 s92, s92, 6')
    a(f's_or_b32 s92, s92, {tag}')
    a('v_writelane_b32 v11, s92, m0')
_tr_plain = tr
DBGMAP = {48: 0, 4: 2, 7: 4, 9: 6, 21: 8, 31: 10}
def tr(a, tag):
    if not opt.dbg2: return _tr_plain(a, tag)
    if tag not in DBGMAP: return
    i = DBGMAP[tag]
    L = f'Ldbg{tag}'
    a.settle()
    a('s_mov_b32 s27, scc') if False else None
    a('s_cmp_lg_u32 s3, 0')
    a(f's_cbranch_scc1 {L}')
    a('s_memrealtime s[92:93]')
    a('s_mov_b64 s[94:95], exec')
    a('s_mov_b64 exec, 1')
    a('s_waitcnt lgkmcnt(0)')
    a('v_mov_b32 v255, s92')
    a(f'buffer_atomic_umax v255, off, s[96:99], 0 offset:{4*i + 4}')
    a('s_not_b32 s92, s92')
    a('s_nop 0')
    a('v_mov_b32 v11, s92')
    a(f'buffer_atomic_umax v11, off, s[96:99], 0 offset:{4*i}')
    a('s_mov_b64 exec, s[94:95]')
    a.label(L)
g.tr = tr
_tr_init = tr_init
def tr_init(a):
    if not opt.dbg2: return _tr_init(a)
    a('s_load_dwordx2 s[96:97], s[0:1], 72')
    a('s_waitcnt lgkmcnt(0)')
    a('s_mov_b32 s98, 64')
    a('s_mov_b32 s99, 0x20000')

def h_loads():
    return [f'buffer_load_dwordx4 v[{H+et*8+ks*4}:{H+et*8+ks*4+3}], v{HOFF+et}, s[{sH}:{sH+3}], 0 offen offset:{ks*64} {opt.hsc}'
            for et in range(2) for ks in range(2)]
def pos_load(u): return [f'v_and_b32 v{u-1}, -4, v{u}', f'buffer_load_dwordx2 v[{PS}:{PS+1}], v{u-1}, s[{sP4}:{sP4+3}], 0 offen']
g.h_loads = h_loads; g.pos_load = pos_load


def rare_paths(a):
    RK1, BINC, ENT = 136, 80, 96
    a.label('L1_ovf')
    a('s_cmp_ge_u32 s3, 4')
    a.br('s_cbranch_scc1 L1_ovf_based')
    a('v_lshlrev_b32 v40, 2, v0')
    a(f'v_add_u32 v40, {K1_CNT}, v40')
    a('ds_read_b32 v41, v40')
    a('s_waitcnt lgkmcnt(0)')
    a(f'v_cmp_lt_u32 vcc, {CAP}, v41')
    a('s_and_saveexec_b64 s[88:89], vcc')
    a.br('s_cbranch_execz L1_ovf_none')
    a(f'v_subrev_u32 v41, {CAP}, v41')
    a(f'v_mov_b32 v42, {K1_CNT + 1024}')
    a('ds_add_rtn_u32 v43, v42, v41')
    a('s_waitcnt lgkmcnt(0)')
    a(f'ds_write_b32 v40, v43 offset:{K1_OVB - K1_CNT}')
    a.label('L1_ovf_none')
    a('s_mov_b64 exec, s[88:89]')
    a.label('L1_ovf_based')
    a('s_waitcnt lgkmcnt(0)')
    a('s_barrier')
    srd(a, 88, 24, OVF_OFF, CH*4, mul=CH*4)
    for i in range(7):
        a('s_mov_b64 exec, -1')
        a(f'v_cmp_le_u32 vcc, {CAP}, v{RK1+i}')
        a(f's_and_b64 exec, vcc, s[{64+2*i}:{65+2*i}]')
        a.br(f's_cbranch_execz L1_ovf{i}')
        a(f'ds_read_b32 v40, v{BINC+i} offset:{K1_OVB - K1_CNT}')
        a('s_waitcnt lgkmcnt(0)')
        a(f'v_add_u32 v40, v40, v{RK1+i}')
        a(f'v_subrev_u32 v40, {CAP}, v40')
        a('v_lshlrev_b32 v40, 2, v40')
        a(f'buffer_store_dword v{ENT+i}, v40, s[88:91], 0 offen sc1')
        a.label(f'L1_ovf{i}')
    a('s_mov_b64 exec, -1')
    for h in range(2):
        a(f'ds_read_b32 v40, v{pHC} offset:{K1_OVB - K1_CNT + 512*h}')
        a(f'v_cmp_lt_u32 vcc, {CAP}, v{108+h}')
        a('s_waitcnt lgkmcnt(0)')
        a('v_lshlrev_b32 v40, 12, v40')
        a('v_cndmask_b32_e64 v40, 0, v40, vcc')
        a(f'v_or_b32 v{108+h}, v{108+h}, v40')
    a('s_waitcnt vmcnt(0)')
    a('s_barrier')
    a.br('s_branch L1_noovf')

def consts_poll(a):
    a('s_and_b32 s60, s2, 0xf0')
    a('s_and_b32 s61, s2, 7')
    a('s_lshl_b32 s61, s61, 1')
    a('s_or_b32 s60, s60, s61')
    a('s_bfe_u32 s61, s2, 0x10003')
    a('s_or_b32 s60, s60, s61')
    a('s_lshl_b32 s60, s60, 6')
    a(f's_add_u32 s60, s60, {SLOT_OFF}')
    a(f's_add_u32 s{sSLOT}, s24, s60')
    a(f's_addc_u32 s{sSLOT+1}, s25, 0')
    a(f's_mov_b32 s{sSLOT+2}, {(NB-1)*SS + 64}')
    a(f's_mov_b32 s{sSLOT+3}, 0x20000')
    a('v_lshrrev_b32 v43, 2, v0')
    a(f'v_mul_u32_u24 v43, {SS}, v43')
    a(f'v_add_u32 v{pPA}, v{pPA}, v43')
    a(f'v_add_u32 v{pPB}, {128*SS}, v{pPA}')
    a(f'v_not_b32 v{pNE}, v{pME}')
    a('v_cmp_gt_u32 vcc, 488, v0')
    a('s_mov_b64 s[64:65], vcc')

def consts_late(a):
    a(f's_and_b32 s{sF+3}, s{sF+1}, 0xffff0000')
    a(f's_lshl_b32 s{sF+2}, s{sF+1}, 16')
    a(f's_and_b32 s{sF+1}, s{sF}, 0xffff0000')
    a(f's_lshl_b32 s{sF}, s{sF}, 16')
    srd(a, sSV, 4, 0, 0 if 'V' in opt.diag else N*512)
    srd(a, sH, 24, H_OFF, 0 if 'H' in opt.diag else N*128)
    srd(a, sOUT, 20, 0, 0 if 'S' in opt.diag else R*512, mul=R*512)
    srd(a, sOVF, 24, OVF_OFF, NB*CH*4)
    a(f'v_bfe_u32 v44, v{vLANE16}, 4, 4')
    a(f'v_lshrrev_b32 v45, 8, v{vLANE16}')
    a('v_lshrrev_b32 v43, 2, v44')
    a('v_lshlrev_b32 v43, 3, v43')
    a('v_and_b32 v40, 3, v44')
    a('v_add_u32 v43, v43, v40')
    a(f's_mul_i32 s{sSTG}, s3, {STG}')
    a(f's_add_u32 s{sSTG}, s{sSTG}, {L_STG}')
    a(f's_sub_u32 s{sSD}, {L_SORT}, s{sSTG}')
    a(f'v_lshl_add_u32 v{vHA}, v43, 2, s{sSTG}')
    a('v_and_b32 v40, 1, v45')
    a('v_lshl_add_u32 v43, v40, 2, v43')
    a('v_lshrrev_b32 v40, 1, v45')
    a('v_lshl_add_u32 v43, v40, 5, v43')
    a(f'v_lshl_add_u32 v{vSTGW}, v43, 2, s{sSTG}')
    a(f'v_lshl_add_u32 v{vSTGH}, v43, 1, s{sSTG}')
    a(f'v_lshl_add_u32 v{vSTGR}, v45, 5, s{sSTG}')
    a(f'v_lshl_add_u32 v{vSTGS}, v45, 4, s{sSTG}')
    emit_Q(a, vLPV, 44, 40)
    a(f'v_lshlrev_b32 v{vLPV}, 3, v{vLPV}')
    a(f'v_lshl_add_u32 v{vLPR}, v44, 9, v{vLPH}')
    a(f'v_lshl_or_b32 v{vQQ}, v44, 16, v44')
    a(f's_mov_b32 s{sROUND}, 0')
    a(f'v_lshrrev_b32 v40, 1, v45')
    for k in range(4):
        a(f'v_add_u32 v{pRS+k}, {2*k}, v40')
        a(f'v_lshlrev_b32 v{pRS+k}, 5, v{pRS+k}')
        a(f'v_xor_b32 v{pRS+k}, v{pRS+k}, v{vLANE16}')
    a('v_and_b32 v39, 3, v0')
    a('v_lshlrev_b32 v39, 2, v39')
    a('v_subrev_u32 v39, 1, v39')

def build_weights(a):
    a('s_and_b32 s60, s3, 1')
    a(f's_mul_i32 s60, s60, {32*384}')
    a('s_bfe_u32 s62, s3, 0x20001')
    a('s_lshl_b32 s62, s62, 1')
    a('s_add_u32 s60, s60, s62')
    a(f's_add_u32 s60, s60, {L_W2R}')
    a(f'v_mul_u32_u24 v{pWA}, 96, v{vLPH}')
    a(f'v_add3_u32 v{pWA}, v{pWA}, v{vLPV}, s60')
    a('s_lshl_b32 s60, s3, 10')
    a(f'v_add_u32 v{pWD}, s60, v{vLANE16}')
    a(f'v_lshrrev_b32 v{pWR}, 3, v{vLPH}')
    a(f'v_add_u32 v{pWR}, v{pWR}, v{vLPV}')
    a(f'v_add_u32 v{pWR}, {L_WRR}, v{pWR}')
    for p in range(3):
        for k in range(4):
            a(f'ds_read_u16 v{104+4*p+k}, v{pWR} offset:{k*384 + p*128}')
    a('s_waitcnt lgkmcnt(0)')
    for p in range(3):
        for jj in range(8):
            if p and jj == 5: a('s_waitcnt lgkmcnt(11)')
            a(f'ds_read_u16 v{64+8*(p&1)+jj}, v{pWA} offset:{p*128 + (16*(jj>>2) + (jj&3))*384}')
        if p == 0:
            for pp in range(3):
                for i in range(2):
                    a(f'v_lshl_or_b32 v{WR+2*pp+i}, v{105+4*pp+2*i}, 16, v{104+4*pp+2*i}')
        if p:
            q = p - 1
            a('s_waitcnt lgkmcnt(8)')
            for i in range(4): a(f'v_lshl_or_b32 v{80+i}, v{65+8*(q&1)+2*i}, 16, v{64+8*(q&1)+2*i}')
            a(f'ds_write_b128 v{pWD}, v[80:83] offset:{q*8192}')
    a('s_waitcnt lgkmcnt(1)')
    for i in range(4): a(f'v_lshl_or_b32 v{84+i}, v{65+2*i}, 16, v{64+2*i}')
    a(f'ds_write_b128 v{pWD}, v[84:87] offset:{2*8192}')

def gen(a):
    header(a, NAME)
    a('s_cmp_ge_u32 s2, %d' % NB)
    a('s_cbranch_scc1 L_end')
    a('s_load_dwordx8 s[4:11], s[0:1], 0')
    a('s_load_dwordx8 s[12:19], s[0:1], 32')
    a('s_load_dwordx2 s[20:21], s[0:1], 64')
    a('s_load_dwordx2 s[24:25], s[0:1], 80')
    a('v_lshrrev_b32 v40, 6, v0')
    a('v_and_b32 v41, 63, v0')
    a('v_readfirstlane_b32 s3, v40')
    a(f'v_lshlrev_b32 v{vLANE16}, 4, v41')
    a('v_lshlrev_b32 v42, 4, v0')
    a('v_and_b32 v44, 15, v41')
    a('v_lshrrev_b32 v45, 4, v41')
    a(f'v_lshlrev_b32 v{vLPH}, 4, v45')
    a('s_and_b32 s60, s3, 3')
    a('s_lshl_b32 s60, s60, 4')
    a('v_add_u32 v46, s60, v44')
    a(f'v_lshl_add_u32 v64, v46, 9, v{vLPH}')
    a(f'v_lshl_add_u32 v65, v46, 7, v{vLPH}')
    a('v_lshrrev_b32 v43, 2, v42')
    a('s_waitcnt lgkmcnt(0)')
    if opt.tr0:
        tr_init(a); tr(a, 48)
    srd(a, 72, 6, 0, N*6)
    srd(a, sP4, 6, 0, 0 if 'P' in opt.diag else N*6)
    a('s_lshr_b32 s63, s2, 3')
    def group():
        a('s_sub_u32 s61, s60, 37')
        a('s_cmp_ge_u32 s60, 37')
        a('s_cselect_b32 s60, s61, s60')
        a('s_lshl_b32 s61, s60, 12')
        a('s_mov_b32 m0, s61')
        a(f's_add_u32 s60, s60, {group.step}')
        for k in range(4):
            a(f'buffer_load_dwordx4 v{vLANE16}, s[72:75], s61 offen offset:{1024*k} lds')
    NG = opt.ng0
    a('s_add_u32 s60, s63, s3')
    group.step = 8
    for i in range(opt.g1st): group()
    srd(a, 76, 14, 0, 8192)
    a('s_lshl_b32 s61, s3, 10')
    a(f's_add_u32 m0, s61, {K1_W1}')
    a('s_nop 0')
    a(f'buffer_load_dwordx4 v{vLANE16}, s[76:79], s61 offen lds')
    srd(a, sRES, 4, 0, R*512, mul=R*512)
    S = 68
    a('s_cmp_lt_u32 s3, 4')
    a('s_cbranch_scc1 L1_nos')
    a(f'buffer_load_dwordx4 v[{S}:{S+3}], v64, s[{sRES}:{sRES+3}], 0 offen')
    a(f'buffer_load_dwordx4 v[{S+4}:{S+7}], v64, s[{sRES}:{sRES+3}], 0 offen offset:64')
    a(f'v_add_u32 v64, {64*512}, v64')
    a(f'buffer_load_dwordx4 v[{S+8}:{S+11}], v64, s[{sRES}:{sRES+3}], 0 offen')
    a(f'buffer_load_dwordx4 v[{S+12}:{S+15}], v64, s[{sRES}:{sRES+3}], 0 offen offset:64')
    a.label('L1_nos', settle=False)
    SRC, DST = 48, 56
    srd(a, 64, 8, 0, CH*4, mul=CH*4)
    srd(a, 68, 10, 0, CH*4, mul=CH*4)
    nt = 'nt' if opt.nt_edges else ''
    a('v_lshrrev_b32 v47, 1, v42')
    a('v_add_u32 v47, 8192, v47')
    a(f'buffer_load_dwordx4 v[{SRC}:{SRC+3}], v42, s[64:67], 0 offen {nt}')
    a(f'buffer_load_dwordx4 v[{DST}:{DST+3}], v42, s[68:71], 0 offen {nt}')
    a(f'buffer_load_dwordx2 v[{SRC+4}:{SRC+5}], v47, s[64:67], 0 offen {nt}')
    a(f'buffer_load_dwordx2 v[{DST+4}:{DST+5}], v47, s[68:71], 0 offen {nt}')
    a(f'v_add_u32 v47, {12288 - 512}, v43')
    a('s_sub_u32 s61, s3, 2')
    a('s_cmp_lt_u32 s61, 2')
    a('s_cselect_b32 s62, 0, 0x40000000')
    a('v_add_u32 v47, s62, v47')
    a(f'buffer_load_dword v{SRC+6}, v47, s[64:67], 0 offen {nt}')
    a(f'buffer_load_dword v{DST+6}, v47, s[68:71], 0 offen {nt}')
    a(f's_add_u32 s84, s24, {EPOCH_OFF}')
    a('s_addc_u32 s85, s25, 0')
    a(f's_load_dword s{sEP}, s[84:85], 0')
    a(f's_load_dwordx2 s[{sF}:{sF+1}], s[12:13], 0')
    for i in range(NG - opt.g1st): group()
    if not opt.tr0: tr_init(a)
    tr(a, 1)
    a('v_mov_b32 v40, 0')
    a(f'v_add_u32 v47, {K1_CNT}, v43')
    a('s_cmp_ge_u32 s3, 5')
    a('s_cbranch_scc1 L1_nozero')
    a('ds_write_b32 v47, v40')
    a.label('L1_nozero', settle=False)
    a(f's_waitcnt vmcnt({6 + 4*(NG - opt.g1st)}) lgkmcnt(0)')
    a('s_barrier')
    tr(a, 2)
    a('s_cmp_ge_u32 s3, 4')
    a('s_cbranch_scc1 L1_hpath')
    a('s_add_u32 s60, s63, s3')
    a(f's_add_u32 s60, s60, {8*NG}')
    a('s_sub_u32 s61, s60, 37')
    a('s_cmp_ge_u32 s60, 37')
    a('s_cselect_b32 s60, s61, s60')
    group.step = 4
    rest = 37 - 8*NG
    for i in range((rest + 3)//4):
        if 4*i + 3 >= rest:
            a(f's_cmp_ge_u32 s3, {rest - 4*i}')
            a('s_cbranch_scc1 L1_tabdone')
        group()
    a.label('L1_tabdone', settle=False)
    if opt.fine: tr(a, 54)
    a(f's_waitcnt vmcnt({4*(NG - opt.g1st) + 4*(rest//4)})')
    a('s_branch L1_consts')
    a.label('L1_hpath', settle=False)
    if opt.hprio: a(f's_setprio {opt.hprio}')
    srd(a, 76, 24, H_OFF, R*128, mul=R*128)
    a('v_lshrrev_b32 v66, 2, v44')
    a('v_lshl_add_u32 v66, v45, 3, v66')
    a('v_and_b32 v67, 3, v44')
    a('v_lshlrev_b32 v67, 3, v67')
    a('v_lshl_add_u32 v66, v66, 7, v67')
    a(f'v_add_u32 v66, {K1_W1}, v66')
    FR = 100
    for ht in range(4):
        for ks in range(2):
            r = FR + (ht*2+ks)*4
            if ht == 3 and ks == 0: a('s_waitcnt lgkmcnt(4)')
            for hf in range(2):
                a(f'ds_read_b64_tr_b16 v[{r+2*hf}:{r+2*hf+1}], v66 offset:{ks*4096 + ht*32 + hf*512}')
    D = 132; O = 148; Tt = 164
    a('s_waitcnt lgkmcnt(0)')
    for t in range(2):
        if t == 1:
            a('s_cmp_eq_u32 s3, 7')
            a.br('s_cbranch_scc1 L1_hdone')
        for ht in range(4):
            a(f'v_mfma_f32_16x16x32_bf16 v[{D+4*ht}:{D+4*ht+3}], v[{FR+ht*8}:{FR+ht*8+3}], v[{S+8*t}:{S+8*t+3}], 0')
            a(f'v_mfma_f32_16x16x32_bf16 v[{D+4*ht}:{D+4*ht+3}], v[{FR+ht*8+4}:{FR+ht*8+7}], v[{S+8*t+4}:{S+8*t+7}], v[{D+4*ht}:{D+4*ht+3}]')
        for grp in range(4):
            for i in range(4): a(f'v_cvt_pk_bf16_f32 v{D+4*grp+i}, 0, v{D+4*grp+i}')
            for i in range(4): a(f'v_mul_f32 v{Tt+i}, {fl(-1.4426950408889634)}, v{D+4*grp+i}')
            for i in range(4): a(f'v_exp_f32 v{Tt+i}, v{Tt+i}')
            for i in range(4): a(f'v_add_f32 v{Tt+i}, 1.0, v{Tt+i}')
            for i in range(4): a(f'v_rcp_f32 v{Tt+i}, v{Tt+i}')
            for i in range(4): a(f'v_mul_f32 v{Tt+i}, v{Tt+i}, v{D+4*grp+i}')
            a(f'v_cvt_pk_bf16_f32 v{O+8*t+2*grp}, v{Tt}, v{Tt+1}')
            a(f'v_cvt_pk_bf16_f32 v{O+8*t+2*grp+1}, v{Tt+2}, v{Tt+3}')
        if t == 0:
            O2 = O
        else:
            pass
    a.label('L1_hdone')
    if opt.fine: tr(a, 57)
    a(f'buffer_store_dwordx4 v[{O}:{O+3}], v65, s[76:79], 0 offen sc1')
    a(f'buffer_store_dwordx4 v[{O+4}:{O+7}], v65, s[76:79], 0 offen offset:64 sc1')
    a(f'v_add_u32 v65, {64*128}, v65')
    a(f'buffer_store_dwordx4 v[{O+8}:{O+11}], v65, s[76:79], 0 offen sc1')
    a(f'buffer_store_dwordx4 v[{O+12}:{O+15}], v65, s[76:79], 0 offen offset:64 sc1')
    a(f's_waitcnt vmcnt({4*(NG - opt.g1st) + 4})')
    a.label('L1_consts')
    if opt.fine: tr(a, 55)
    a('s_waitcnt lgkmcnt(0)')
    a(f's_add_u32 s{sEP}, s{sEP}, 1')
    for j in (1, 2, 3):
        a(f's_lshr_b32 s60, s{sEP}, {10*(j-1)}')
        a('s_lshl_b32 s61, s60, 24')
        a('s_lshr_b32 s60, s60, 1')
        a('s_and_b32 s60, s60, 0x180')
        a(f's_or_b32 s{sNB+j}, s60, s61')
    a(f's_xor_b32 s{sNB}, s{sNB+1}, 0xff000180')
    srd(a, sW2F, 16, 0, 64*192*2)
    srd(a, sWRR, 18, 0, 4*192*2)
    a(f'v_mov_b32 v{vMHI}, 0xffff0000')
    a('v_lshrrev_b32 v43, 2, v0')
    a('v_and_b32 v40, 0xf0, v43')
    a('v_bfe_u32 v46, v43, 1, 3')
    a('v_or_b32 v40, v40, v46')
    a('v_and_b32 v46, 1, v43')
    a('v_lshl_or_b32 v40, v46, 3, v40')
    a('v_and_b32 v46, 3, v0')
    a(f'v_lshlrev_b32 v{pPA}, 4, v46')
    a(f'v_lshlrev_b32 v{pHC}, 2, v40')
    a(f'v_add_u32 v{pHC}, {K1_CNT}, v{pHC}')
    a('v_mul_u32_u24 v40, 80, v40')
    a(f'v_add_u32 v40, v40, v{pPA}')
    a(f'v_add_u32 v{pLDS}, {L_STAGE}, v40')
    a(f'v_lshlrev_b32 v{pOFA}, 4, v0')
    a(f'v_add_u32 v{pOFB}, 8192, v{pOFA}')
    a(f'v_mov_b32 v{pME}, {M_ENT}')
    a(f'v_mov_b32 v{pM0}, {M_HDR}')
    a(f'v_cmp_eq_u32 s[{sPC0}:{sPC0+1}], 0, v46')
    a(f'v_add_u32 v{pHS}, {K1_CNT}, v{vLANE16}')
    a(f'v_cndmask_b32_e64 v{pM0}, v{pME}, v{pM0}, s[{sPC0}:{sPC0+1}]')
    a(f'v_not_b32 v{pN0}, v{pM0}')
    a(f'v_and_b32 v{pT0}, s{sNB}, v{pN0}')
    if opt.fine: tr(a, 56)
    AS, AD = 64, 72
    BINC, BINS, ENT = 80, 88, 96
    P = 104
    a(f's_mov_b32 s60, {fl(opt.thr)}')
    a('s_mov_b32 s61, -100')
    a(f's_mov_b32 s62, {K1_CNT}')
    a(f's_mov_b32 s63, {L_STAGE}')
    def prep(i):
        a(f'v_mul_u32_u24 v40, 5243, v{DST+i}')
        a(f'v_mul_u32_u24 v{AS+i}, 6, v{SRC+i}')
        a(f'v_lshrrev_b32 v40, 19, v40')
        a(f'v_mul_u32_u24 v{AD+i}, 6, v{DST+i}')
        a(f'v_mad_i32_i24 v41, v40, s61, v{DST+i}')
        a(f'v_lshl_add_u32 v{BINC+i}, v40, 2, s62')
        a(f'v_lshl_or_b32 v{ENT+i}, v{SRC+i}, 9, v41')
        a(f'v_mad_u32_u24 v{BINS+i}, v40, v47, s63')
        a(f'v_and_b32 v{SRC+i}, -4, v{AS+i}')
        a(f'v_and_b32 v{DST+i}, -4, v{AD+i}')
    a('v_mov_b32 v47, 80')
    RK1 = 136
    for i in range(7): prep(i)
    a(f's_mul_i32 s84, s2, {R}')
    a(f'v_lshrrev_b32 v41, 4, v{vLANE16}')
    a('v_add_u32 v132, s84, v41')
    a('v_add_u32 v133, 64, v132')
    for h in range(2):
        a(f'v_mul_u32_u24 v{132+h}, 6, v{132+h}')
        a(f'v_and_b32 v{134+h}, -4, v{132+h}')
    a('v_mov_b32 v46, 1')
    if opt.hprio: a('s_setprio 0')
    tr(a, 3)
    a('s_cmp_ge_u32 s3, 4')
    a('s_cbranch_scc1 L1_b1')
    a('s_waitcnt vmcnt(0)')
    a.label('L1_b1', settle=False)
    a('s_waitcnt vmcnt(4) lgkmcnt(0)')
    a('s_barrier')
    tr(a, 4)
    def reads(i):
        a(f'ds_read2_b32 v[{P+4*i}:{P+4*i+1}], v{SRC+i} offset1:1')
        a(f'ds_read2_b32 v[{P+4*i+2}:{P+4*i+3}], v{DST+i} offset1:1')
    def test(i):
        p, q = P+4*i, P+4*i+2
        a(f'v_alignbyte_b32 v40, v{p+1}, v{p}, v{AS+i}')
        a(f'v_alignbyte_b32 v41, v{p+1}, v{p+1}, v{AS+i}')
        a(f'v_alignbyte_b32 v42, v{q+1}, v{q}, v{AD+i}')
        a(f'v_alignbyte_b32 v43, v{q+1}, v{q+1}, v{AD+i}')
        a(f'v_lshlrev_b32 v{p}, 16, v40')
        a(f'v_lshlrev_b32 v{q}, 16, v42')
        a(f'v_and_b32 v40, v{vMHI}, v40')
        a(f'v_and_b32 v42, v{vMHI}, v42')
        a(f'v_lshlrev_b32 v41, 16, v41')
        a(f'v_lshlrev_b32 v43, 16, v43')
        a(f'v_sub_f32 v{p}, v{p}, v{q}')
        a(f'v_sub_f32 v40, v40, v42')
        a(f'v_sub_f32 v41, v41, v43')
        a(f'v_mul_f32 v{p}, v{p}, v{p}')
        a(f'v_fmac_f32 v{p}, v40, v40')
        a(f'v_fmac_f32 v{p}, v41, v41')
        a(f'v_cmp_ngt_f32 s[{64+2*i}:{65+2*i}], v{p}, s60')
    def rank(i):
        a(f's_mov_b64 exec, s[{64+2*i}:{65+2*i}]')
        a(f'ds_add_rtn_u32 v{RK1+i}, v{BINC+i}, v46')
        a('s_mov_b64 exec, -1')
    for i in range(6): reads(i)
    if opt.prewr:
        srd(a, 88, 24, SLOT_OFF, 16384, mul=SS)
        for k in range(4): a(f'v_mov_b32 v{168+k}, 0')
        for h in range(2):
            a(f'buffer_store_dwordx4 v[168:171], v{pOFA+h}, s[88:91], 0 offen sc1')
    if opt.pfres:
        a(f's_lshl_b32 s84, s3, 12')
        for k in range(4):
            a(f'buffer_load_dwordx4 v[164:167], v{vLANE16}, s[{sRES}:{sRES+3}], s84 offen offset:{1024*k}')
        if opt.pfres > 1:
            a('s_add_u32 s84, s84, 32768')
            for k in range(4):
                a(f'buffer_load_dwordx4 v[164:167], v{vLANE16}, s[{sRES}:{sRES+3}], s84 offen offset:{1024*k}')
    if opt.prew or opt.pfw:
        a('s_sub_u32 s84, s3, 4')
        a('s_cmp_ge_u32 s84, 3')
        a('s_cbranch_scc1 L1_notouch')
    if opt.pfw:
        a('s_lshr_b32 s85, s2, 3')
        a('s_mul_i32 s85, s85, 768')
        a('s_lshl_b32 s86, s84, 8')
        a('s_add_u32 s85, s85, s86')
        a(f'v_and_b32 v47, 0xf0, v{vLANE16}')
        a('v_add_u32 v47, s85, v47')
        a(f'buffer_load_dwordx4 v[168:171], v47, s[{sW2F}:{sW2F+3}], 0 offen')
    if opt.prew:
        srd(a, 88, 24, SLOT_OFF, 16384, mul=SS)
        a(f'v_subrev_u32 v47, 4096, v{pOFA}')
        for k in range(6):
            a('buffer_load_dwordx4 v[168:171], v47, s[88:91], 0 offen')
            if k < 5: a('v_add_u32 v47, 3072, v47')
        a(f's_mov_b32 s{sROUND}, 0')
    if opt.prew or opt.pfw:
        a.label('L1_notouch', settle=False)
    a('s_mov_b64 s[76:77], 0')
    a('s_sub_u32 s84, s3, 2')
    a('s_cmp_lt_u32 s84, 2')
    a('s_cbranch_scc0 L1_six')
    a('s_waitcnt lgkmcnt(10)')
    test(0)
    reads(6)
    a('s_waitcnt lgkmcnt(0)')
    test(6)
    a.br('s_branch L1_rest')
    a.label('L1_six')
    a('s_cmp_lg_u32 s3, 7')
    a('s_cbranch_scc1 L1_notw7')
    a('s_waitcnt lgkmcnt(8)')
    for h in range(2):
        a(f'ds_read2_b32 v[{152+2*h}:{153+2*h}], v{134+h} offset1:1')
    a('s_waitcnt lgkmcnt(0)')
    for h in range(2):
        a(f'v_alignbyte_b32 v{156+2*h}, v{153+2*h}, v{152+2*h}, v{132+h}')
        a(f'v_alignbyte_b32 v{157+2*h}, v{153+2*h}, v{153+2*h}, v{132+h}')
        a(f'v_lshlrev_b32 v{144+4*h}, 16, v{156+2*h}')
        a(f'v_and_b32 v{145+4*h}, v{vMHI}, v{156+2*h}')
        a(f'v_lshlrev_b32 v{146+4*h}, 16, v{157+2*h}')
        a(f'v_mov_b32 v{147+4*h}, 0')
    a.label('L1_notw7')
    a('s_waitcnt lgkmcnt(10)')
    test(0)
    a.label('L1_rest')
    for i in range(1, 6):
        a(f's_waitcnt lgkmcnt({2*(5-i)})')
        test(i)
    for i in (6, 0, 1, 2, 3, 4, 5):
        a(f's_mov_b64 exec, s[{64+2*i}:{65+2*i}]')
        a(f'ds_add_rtn_u32 v{RK1+i}, v{BINC+i}, v46')
    a('s_mov_b64 exec, -1')
    a('s_waitcnt lgkmcnt(0)')
    a('s_barrier')
    tr(a, 5)
    a(f's_mul_i32 s{sT0}, s3, 3072')
    a(f's_add_u32 m0, s{sT0}, {L_W2R}')
    a(f's_lshl_b32 s{sT1}, s3, 10')
    a(f's_min_u32 s{sT2}, s{sT1}, 2048')
    for i in range(3):
        a(f'buffer_load_dwordx4 v{vLANE16}, s[{sW2F}:{sW2F+3}], s{sT0} offen offset:{1024*i} lds')
    a(f's_add_u32 m0, s{sT2}, {L_WRR}')
    a(f'ds_read_b128 v[104:107], v{pHS}')
    a(f'buffer_load_dwordx4 v{vLANE16}, s[{sWRR}:{sWRR+3}], s{sT1} offen lds')
    a(f'ds_read_b32 v108, v{pHC}')
    a(f'ds_read_b32 v109, v{pHC} offset:512')
    if opt.fine: tr(a, 50)
    for i in range(7):
        a(f'v_min_u32 v40, {CAP}, v{RK1+i}')
        a(f'v_lshl_add_u32 v{BINS+i}, v40, 2, v{BINS+i}')
    for i in range(7):
        a(f's_mov_b64 exec, s[{64+2*i}:{65+2*i}]')
        a(f'ds_write_b32 v{BINS+i}, v{ENT+i} offset:4')
    a('s_mov_b64 exec, -1')
    if opt.fine: tr(a, 51)
    def zero_counters(tag):
        a('s_cmp_ge_u32 s3, 2')
        a(f's_cbranch_scc1 L2_nozero{tag}')
        a('v_lshlrev_b32 v42, 2, v0')
        a('v_mov_b32 v44, 0')
        a(f'ds_write_b32 v42, v44 offset:{L_NCNT}')
        a.label(f'L2_nozero{tag}', settle=False)
    zero_counters('a')
    a('s_cmp_lg_u32 s3, 7')
    a('s_cbranch_scc1 L1_join')
    for h in range(2):
        a(f'ds_write_b128 v{vLANE16}, v[{144+4*h}:{147+4*h}] offset:{L_DPOS + 1024*h}')
    a.label('L1_join', settle=False)
    srd(a, 84, 24, SLOT_OFF, 16384, mul=SS)
    if opt.fine: tr(a, 52)
    n7 = 4 + [0, 4, 8][opt.pfres] + (2 if opt.prewr else 0)
    if opt.prew or opt.pfw:
        a('s_cmp_lg_u32 s3, 7')
        a('s_cbranch_scc1 L1_b3')
        a(f's_waitcnt vmcnt({n7})')
        a.label('L1_b3', settle=False)
    a('s_waitcnt vmcnt(%d) lgkmcnt(0)' % (n7 + (6 if opt.prew else 0) + (1 if opt.pfw else 0)))
    if opt.fine: tr(a, 53)
    a('v_max3_u32 v104, v104, v105, v106')
    a('v_max_u32 v104, v104, v107')
    a(f'v_cmp_lt_u32 vcc, {CAP}, v104')
    a('s_barrier')
    tr(a, 6)
    W = V
    a(f'ds_read_b128 v[{W}:{W+3}], v{pLDS}')
    a(f'ds_read_b128 v[{W+4}:{W+7}], v{pLDS} offset:{128*80}')
    a('s_cbranch_vccnz L1_ovf')
    a.label('L1_noovf', settle=False)
    for h in range(2):
        a(f's_waitcnt lgkmcnt({1-h})')
        a(f'v_cndmask_b32_e64 v{W+4*h}, v{W+4*h}, v{108+h}, s[{sPC0}:{sPC0+1}]')
        for j in (1, 2, 3):
            a(f'v_and_or_b32 v{W+4*h+j}, v{W+4*h+j}, v{pME}, s{sNB+j}')
        a(f'v_and_or_b32 v{W+4*h}, v{W+4*h}, v{pM0}, v{pT0}')
        a(f'buffer_store_dwordx4 v[{W+4*h}:{W+4*h+3}], v{pOFA+h}, s[84:87], 0 offen {opt.dumpsc}')
    tr(a, 7)
    consts_poll(a)
    if opt.wb == 1:
        emit_Q(a, vLPV, 44, 40) if False else None
    def res_image(tag):
        if tag == 'b':
            a(f'v_lshrrev_b32 v40, 9, v{vLANE16}')
            for k in range(4):
                a(f'v_add_u32 v{pRS+k}, {2*k}, v40')
                a(f'v_lshlrev_b32 v{pRS+k}, 5, v{pRS+k}')
                a(f'v_xor_b32 v{pRS+k}, v{pRS+k}, v{vLANE16}')
        a(f's_lshl_b32 s{sT0}, s3, 12')
        a(f's_add_u32 m0, s{sT0}, {L_RES}')
        a('s_cmp_ge_u32 s3, 5')
        for k in range(4):
            a(f'buffer_load_dwordx4 v{pRS+k}, s[{sRES}:{sRES+3}], s{sT0} offen offset:{1024*k} sc1 lds')
        a(f's_cbranch_scc1 L2_resdone{tag}')
        a(f's_add_u32 s{sT0}, s{sT0}, 32768')
        a(f's_add_u32 m0, s{sT0}, {L_RES}')
        a('s_cmp_eq_u32 s3, 4')
        for k in range(4):
            if k == 2: a(f's_cbranch_scc1 L2_resdone{tag}')
            a(f'buffer_load_dwordx4 v{pRS+k}, s[{sRES}:{sRES+3}], s{sT0} offen offset:{1024*k} sc1 lds')
        a.label(f'L2_resdone{tag}', settle=False)
    a(f's_mov_b32 s61, {1 << opt.spin}')
    a('s_waitcnt vmcnt(2)')
    a('s_barrier')
    tr(a, 23)
    if opt.wb == 1:
        consts_late(a); build_weights(a)
    if opt.wb == 2: consts_late(a)
    if opt.res_when == 'drain':
        res_image('a')
        a('s_waitcnt vmcnt(4)')
    else:
        a('s_waitcnt vmcnt(0)')
    tr(a, 8)
    a(f'buffer_load_dwordx4 v[{W}:{W+3}], v{pPA}, s[{sSLOT}:{sSLOT+3}], 0 offen sc1')
    a(f'buffer_load_dwordx4 v[{W+4}:{W+7}], v{pPB}, s[{sSLOT}:{sSLOT+3}], 0 offen sc1')
    if opt.res_when == 'mid': res_image('a')
    if opt.wb == 0: consts_late(a)
    if opt.wb != 1: build_weights(a)
    a('s_waitcnt vmcnt(4)' if opt.res_when == 'mid' else 's_waitcnt vmcnt(0)')
    a.label('L2_poll')
    if opt.fine: tr(a, 24)
    for h in range(2):
        w = W + 4*h
        a(f'v_xor_b32 v{61+h}, v{pT0}, v{w}')
        a(f'v_and_b32 v{61+h}, v{pN0}, v{61+h}')
        for j in (1, 2, 3):
            a(f'v_xor_b32 v63, s{sNB+j}, v{w+j}')
            a(f'v_and_or_b32 v{61+h}, v63, v{pNE}, v{61+h}')
    a('v_cmp_ne_u32 vcc, 0, v61')
    a('v_cmp_ne_u32 s[66:67], 0, v62')
    a('s_and_b64 s[66:67], s[66:67], s[64:65]')
    a('s_or_b64 s[68:69], s[66:67], vcc')
    a.br('s_cbranch_scc0 L2_polled')
    a('s_sub_u32 s61, s61, 1')
    a('s_cmp_eq_u32 s61, 0')
    a.br('s_cbranch_scc1 L2_polled')
    if opt.sleep: a(f's_sleep {opt.sleep}')
    if opt.pollmask:
        a('s_mov_b64 exec, vcc')
        a('s_cbranch_execz L2_nopollA')
    a(f'buffer_load_dwordx4 v[{W}:{W+3}], v{pPA}, s[{sSLOT}:{sSLOT+3}], 0 offen sc1')
    if opt.pollmask:
        a.label('L2_nopollA', settle=False)
        a('s_mov_b64 exec, s[66:67]')
        a('s_cbranch_execz L2_nopollB')
    a(f'buffer_load_dwordx4 v[{W+4}:{W+7}], v{pPB}, s[{sSLOT}:{sSLOT+3}], 0 offen sc1')
    if opt.pollmask:
        a.label('L2_nopollB', settle=False)
        a('s_mov_b64 exec, -1')
    a('s_waitcnt vmcnt(0)')
    a.br('s_branch L2_poll')
    a.label('L2_polled')
    tr(a, 9)
    if opt.res_when == 'post': res_image('a')
    LIM, CNT = 56, 58
    a(f'v_mov_b32_dpp v{CNT}, v{W} quad_perm:[0,0,0,0] row_mask:0xf bank_mask:0xf')
    a(f'v_mov_b32_dpp v{CNT+1}, v{W+4} quad_perm:[0,0,0,0] row_mask:0xf bank_mask:0xf')
    for h in range(2):
        a(f'v_and_b32 v{CNT+h}, 0xfff, v{CNT+h}')
        a(f'v_min_u32 v{LIM+h}, {CAP}, v{CNT+h}')
        a(f'v_subrev_u32 v{CNT+h}, {CAP}, v{CNT+h}')
    a.label('L2_round')
    A = 60; RK = 68; T = 76
    a('v_mov_b32 v40, 1')
    a(f's_mov_b32 s60, {L_NCNT}')
    for i in range(4):
        a(f'v_add_u32 v{41+i}, {i}, v39')
    for i in range(8):
        a(f'v_cmp_lt_u32 s[{64+2*i}:{65+2*i}], v{41 + (i & 3)}, v{LIM + i//4}')
        a(f'v_and_b32 v{A+i}, 127, v{W+i}')
        a(f'v_lshl_add_u32 v{A+i}, v{A+i}, 2, s60')
    if opt.fine: tr(a, 61)
    a(f'v_max_i32 v41, v{CNT}, v{CNT+1}')
    a('v_cmp_lt_i32 vcc, 0, v41')
    for i in range(8):
        a(f's_mov_b64 exec, s[{64+2*i}:{65+2*i}]')
        a(f'ds_add_rtn_u32 v{RK+i}, v{A+i}, v40')
    a('s_mov_b64 exec, -1')
    if opt.res_when == 'post2':
        a(f's_cmp_lg_u32 s{sROUND}, 0')
        a('s_cbranch_scc1 L2_resdonea')
        res_image('a')
    a('s_cbranch_vccz L2_noflag')
    a(f'v_mov_b32 v41, {L_NCNT + 127*4}')
    a('ds_write_b32 v41, v40')
    a.label('L2_noflag', settle=False)
    for i in range(8):
        a(f'v_and_b32 v{W+i}, {M_ENT}, v{W+i}')
    a('s_waitcnt lgkmcnt(0)')
    a('s_barrier')
    tr(a, 10)
    a(f's_cmp_lg_u32 s{sROUND}, 0')
    a.br('s_cbranch_scc1 L2_now2f')
    if opt.res_when == 'late': res_image('a')
    a('s_or_b32 s60, s2, s3')
    a('s_cmp_lg_u32 s60, 0')
    a.br('s_cbranch_scc1 L2_now2f')
    srd(a, 84, 24, EPOCH_OFF, 4)
    a(f'v_mov_b32 v43, s{sEP}')
    a('s_mov_b64 exec, 1')
    a('buffer_store_dword v43, off, s[84:87], 0 sc1')
    a('s_mov_b64 exec, -1')
    a.label('L2_now2f')
    if opt.pfv: a('v_mov_b32 v44, 0x40000000')
    for i in opt.pfv:
        a(f'v_and_b32 v45, 0xfffe00, v{W+i}')
        a(f'v_cndmask_b32_e64 v45, v44, v45, s[{64+2*i}:{65+2*i}]')
        for j in range(3*opt.pfn):
            a(f'buffer_load_dword v255, v45, s[{sSV}:{sSV+3}], 0 offen offset:{128 + j*128//opt.pfn}')
        if opt.pfh:
            a('v_lshrrev_b32 v45, 2, v45')
            a(f'buffer_load_dword v255, v45, s[{sH}:{sH+3}], 0 offen {opt.hsc}')
    a(f'v_lshrrev_b32 v41, 2, v{vLANE16}')
    a(f'v_add_u32 v41, {L_NCNT}, v41')
    a('ds_read2st64_b32 v[42:43], v41 offset1:1')
    a('s_waitcnt lgkmcnt(0)')
    a(f'v_readlane_b32 s{sMORE}, v43, 63')
    a('v_lshl_or_b32 v42, v43, 16, v42')
    a('v_mov_b32 v43, v42')
    for sh in ('row_shr:1', 'row_shr:2', 'row_shr:4', 'row_shr:8'):
        a(f'v_add_u32_dpp v43, v43, v43 {sh} row_mask:0xf bank_mask:0xf')
    a('v_add_u32_dpp v43, v43, v43 row_bcast:15 row_mask:0xa bank_mask:0xf')
    a('v_add_u32_dpp v43, v43, v43 row_bcast:31 row_mask:0xc bank_mask:0xf')
    a(f'v_readlane_b32 s{sT0}, v43, 63')
    a('v_sub_u32 v43, v43, v42')
    a(f's_and_b32 s{sT0}, s{sT0}, 0xffff')
    a(f'v_and_b32 v{vSTLO}, 0xffff, v43')
    a(f'v_lshrrev_b32 v{vSTHI}, 16, v43')
    a(f'v_add_u32 v{vSTHI}, s{sT0}, v{vSTHI}')
    if opt.fine: tr(a, 58)
    a(f'ds_write2st64_b32 v41, v{vSTLO}, v{vSTHI} offset0:2 offset1:3')
    for i in range(8):
        a(f'ds_read_b32 v{T+i}, v{A+i} offset:512')
    a(f'v_lshl_or_b32 v{vPACK}, v{vSTHI}, 16, v{vSTLO}')
    for i in range(8):
        if i % 4 == 0:
            a(f's_waitcnt lgkmcnt({4 - i})')
            for k in range(i, i+4): a(f'v_add_lshl_u32 v{T+k}, v{T+k}, v{RK+k}, 2')
        a(f's_mov_b64 exec, s[{64+2*i}:{65+2*i}]')
        a(f'ds_write_b32 v{T+i}, v{W+i} offset:{L_SORT}')
        if i % 4 == 3: a('s_mov_b64 exec, -1')
    for k, (st, d) in enumerate(((vSTLO, 32), (vSTHI, 32), (vSTLO, 64), (vSTHI, 64))):
        a(f'v_add_u32 v{T+k}, {d}, v{st}')
        a(f'v_lshlrev_b32 v{T+4+k}, 2, v{T+k}')
    a(f'v_readlane_b32 s{sT2}, v{vSTHI}, {R - 64}')
    a(f'v_lshrrev_b32 v40, 4, v{vLANE16}')
    a('v_add_u32 v41, 64, v40')
    a(f'v_mov_b32 v46, {R}')
    a(f's_mov_b32 s{sNC}, 0')
    a(f's_mov_b32 s{sC64}, s3')
    if opt.fine: tr(a, 59)
    a('s_waitcnt vmcnt(%d) lgkmcnt(0)' % (len(opt.pfv)*(3*opt.pfn + (1 if opt.pfh else 0))))
    if opt.fine: tr(a, 60)
    a('s_barrier')
    tr(a, 21)
    for k in (2, 3, 0, 1):
        a(f'ds_read_b32 v{T+4+k}, v{T+4+k} offset:{L_SORT}')
    for k in range(4):
        a(f'v_cmp_gt_u32 s[{64+2*k}:{65+2*k}], s{sT2}, v{T+k}')
    a('v_add_u32 v42, 1, v40')
    a('v_add_u32 v43, 16, v40')
    a('v_add_u32 v44, 1, v41')
    a('v_add_u32 v45, 16, v41')
    for k in (2, 3, 0, 1):
        r = T + 4 + k
        if k in (2, 0): a(f's_waitcnt lgkmcnt({2 if k == 2 else 0})')
        a(f'v_and_b32 v{r}, 127, v{r}')
        a(f'v_cndmask_b32_e64 v{r}, v46, v{r}, s[{64+2*k}:{65+2*k}]')
        a(f'v_med3_u32 v{r}, v{r}, v{42 + 2*(k & 1)}, v{43 + 2*(k & 1)}')
        a(f'v_min_u32 v{r}, v46, v{r}')
        if k == 3: a(f'v_lshl_or_b32 v{vNX64}, v{T+7}, 16, v{T+6}')
    a(f'v_lshl_or_b32 v{vNX32}, v{T+5}, 16, v{T+4}')
    if opt.fine: tr(a, 42)
    chain_loop(a, vNX64, sC64)
    if opt.fine: tr(a, 43)
    a(f's_cmp_lt_u32 s{sNC}, {R}')
    a.br('s_cbranch_scc0 L2_rounddone')
    if opt.prio: a('s_setprio 3')
    a(f's_mov_b32 s{sN0}, s{sNC}')
    chain_start(a, sE0)
    chain_step(a, vNX64)
    chain_start(a, sE1)
    a(f's_sub_u32 s{sNN}, s{sNC}, s{sN0}')
    a(f's_mov_b32 s{sXE0}, s{sE0}')
    a(f's_mov_b32 s{sXE1}, s{sE1}')
    emit(a, next_entry_read(TP))
    emit(a, next_mask(TP+4))
    a(f's_sub_u32 s{sC64}, 7, s3')
    a(f's_mov_b32 s{sC32}, s3')
    a('s_waitcnt lgkmcnt(0)')
    if opt.fine: tr(a, 62)
    emit(a, next_stage(TP+4, TP+5))
    emit(a, off_reads(0))
    emit(a, pos_load(TP+5))
    a('s_waitcnt lgkmcnt(0)')
    emit(a, off_adds())
    emit(a, h_loads())
    a(f's_mov_b32 s{sFI}, 1')
    if opt.prio: a('s_setprio %d' % {0: 0, 1: 1, 2: 1, 3: 2, 4: 2, 5: 2, 6: 2, 7: 1, 8: 2, 9: 1, 10: 2, 11: 2}[opt.yld])
    if opt.look: g.lookahead(a)
    tr(a, 22)
    a.br('s_branch L2_head_A')
    head(a, 'B')
    head(a, 'A')
    tail(a, 'toC')
    head(a, 'C')
    newitem(a)
    tail(a, 'toA')
    tail(a, 'fin')
    a.label('L2_rounddone')
    tr(a, 30)
    a(f's_cmp_eq_u32 s{sMORE}, 0')
    a.br('s_cbranch_scc1 L2_fin')
    a('s_waitcnt vmcnt(0) lgkmcnt(0)')
    a('s_barrier')
    zero_counters('b')
    srd(a, sRES, 20, 0, R*512, mul=R*512)
    res_image('b')
    a('v_lshrrev_b32 v40, 2, v0')
    a(f'v_mul_u32_u24 v41, {SS}, v40')
    a(f'buffer_load_dword v42, v41, s[{sSLOT}:{sSLOT+3}], 0 offen sc1')
    a(f'v_add_u32 v41, {128*SS}, v41')
    a(f'buffer_load_dword v43, v41, s[{sSLOT}:{sSLOT+3}], 0 offen sc1')
    a('v_and_b32 v39, 3, v0')
    a('v_lshlrev_b32 v39, 2, v39')
    a(f's_lshl_b32 s{sT0}, s{sROUND}, 4')
    a(f's_add_u32 s{sT1}, s{sT0}, {CAP}')
    a(f's_add_u32 s{sROUND}, s{sROUND}, 1')
    a(f'v_mul_u32_u24 v40, {CH*4}, v40')
    a('v_lshl_add_u32 v40, v39, 2, v40')
    a(f's_lshl_b32 s{sT0}, s{sT0}, 2')
    a(f'v_add_u32 v40, s{sT0}, v40')
    a('s_waitcnt vmcnt(0)')
    for h in range(2):
        a(f'v_bfe_u32 v44, v{42+h}, 12, 12')
        a(f'v_lshl_add_u32 v44, v44, 2, v40')
        if h: a(f'v_add_u32 v44, {128*CH*4}, v44')
        a(f'buffer_load_dwordx4 v[{W+4*h}:{W+4*h+3}], v44, s[{sOVF}:{sOVF+3}], 0 offen sc1')
        a(f'v_and_b32 v{CNT+h}, 0xfff, v{42+h}')
        a(f'v_subrev_u32 v{CNT+h}, s{sT1}, v{CNT+h}')
        a(f'v_med3_i32 v{LIM+h}, v{CNT+h}, 0, 16')
        a(f'v_subrev_u32 v{CNT+h}, 16, v{CNT+h}')
    a('s_waitcnt vmcnt(0) lgkmcnt(0)')
    a('s_barrier')
    a.br('s_branch L2_round')
    a.label('L2_fin')
    if opt.tr or opt.dbg2:
        a('s_waitcnt vmcnt(0)')
        tr(a, 31)
    tr_dump(a)
    a.label('L_end')
    a('s_endpgm')
    rare_paths(a)

def build():
    src = open('gather_scatter__molecular_angular_painn__graph.s.ref').read().split('\n')
    head_ = []
    for ln in src:
        if not ln.startswith(';'): break
        if '@launch' in ln or 'Override launch' in ln or 'grid=ceil' in ln: continue
        head_.append(ln)
    head_.append(f'; @launch grid=({NB},1,1) block=(512,1,1) lds={K1_LDS}')
    a = Asm()
    a.raw('.amdgcn_target "amdgcn-amd-amdhsa--gfx950"\n.text')
    gen(a)
    return '\n'.join(head_) + '\n' + a.text() + '.section .rodata,"a"\n' + descriptor(NAME, 256)

if __name__ == '__main__':
    outp = sys.argv[1]
    for kv in sys.argv[2:]:
        k, val = kv.split('=', 1)
        setattr(opt, k, type(getattr(opt, k))(eval(val)))
    open(outp, 'w').write(build())
```

```python
import sys, struct
from asmlib import Asm

N = 25000; NB = 250; R = 100; CH = 3200
H_OFF = 0; SLOT_OFF = 0x400000; OVF_OFF = 0x800000; W2F_OFF = 0xC00000; WRF_OFF = W2F_OFF + 24576
POS4_OFF = 0xC10000; TS_OFF = 0xE00000
CAP = 15

def f2u(x): return struct.unpack('<I', struct.pack('<f', x))[0]
def fl(x): return '0x%08x' % f2u(x)
def v(i, n=1): return f'v{i}' if n == 1 else f'v[{i}:{i+n-1}]'
def s(i, n=1): return f's{i}' if n == 1 else f's[{i}:{i+n-1}]'

class Opt:
    ts = False
    tr = False
    dbg = False
    nt_edges = False
    nt_out = False
    k1st = ''
    outst = ''
    ntpos = False
    thr = 24.3
    rot = 4
    prio = False
    prio2 = 0
    pk = False
    roll = False
    rollat = 1
    earlyst2 = False
    cprio = 0
    look = False
    earlyst = False
    earlyh = False
    rawpos = False
    spread = False
    pkc = 0
    trmain = True
    tlb = 0
    pf_sv = ''
    vsched = [8,0,0,0,8,0,0,0,8,0,0,0,0]
opt = Opt()

def srd(a, d, base, off, size, mul=None):
    if mul is not None:
        a(f's_mul_i32 s{d+2}, s2, {mul}')
        if off: a(f's_add_u32 s{d+2}, s{d+2}, {off}')
        a(f's_add_u32 s{d}, s{base}, s{d+2}')
        a(f's_addc_u32 s{d+1}, s{base+1}, 0')
    elif off:
        a(f's_add_u32 s{d}, s{base}, {off}')
        a(f's_addc_u32 s{d+1}, s{base+1}, 0')
    else:
        a(f's_mov_b32 s{d}, s{base}')
        a(f's_mov_b32 s{d+1}, s{base+1}')
    a(f's_mov_b32 s{d+2}, {size}')
    a(f's_mov_b32 s{d+3}, 0x20000')

def stamp(a, kern, idx, tmpv=None):
    if not opt.ts: return
    a.settle()
    L = f'Lts_{kern}_{idx}_{stamp.n}'; stamp.n += 1
    a(f's_cmp_lg_u32 s3, {stamp.wave}')
    a.br(f's_cbranch_scc1 {L}')
    a('s_memrealtime s[92:93]')
    a('s_mov_b64 s[94:95], exec')
    a('s_mov_b64 exec, 1')
    a('s_waitcnt lgkmcnt(0)')
    t = stamp.tmp
    a(f'v_mov_b32 v{t}, s92')
    a(f'v_mov_b32 v{t+1}, s93')
    a(f'v_mov_b32 v{t+2}, 0')
    a(f'buffer_store_dwordx2 v[{t}:{t+1}], v{t+2}, s[96:99], 0 offen offset:{idx*8}')
    a('s_mov_b64 exec, s[94:95]')
    a.label(L)
stamp.n = 0; stamp.wave = 0; stamp.tmp = 0

def stamp_init(a, kern):
    if not opt.ts: return
    a(f's_lshl_b32 s98, s2, 7')
    a(f's_add_u32 s98, s98, {TS_OFF + kern*256*128}')
    a('s_add_u32 s96, s24, s98')
    a('s_addc_u32 s97, s25, 0')
    a('s_mov_b32 s98, 128')
    a('s_mov_b32 s99, 0x20000')

def dbg_init(a, kern):
    if not opt.dbg: return
    a('s_load_dwordx2 s[96:97], s[0:1], 72')
    a('s_waitcnt lgkmcnt(0)')
    if kern:
        a('s_sub_u32 s96, s96, 512')
        a('s_subb_u32 s97, s97, 0')
    a('s_mov_b32 s98, 64')
    a('s_mov_b32 s99, 0x20000')

def dbg(a, idx, allwg=False):
    if not opt.dbg: return
    a.settle()
    L = f'Ldbg_{stamp.n}'; stamp.n += 1
    a('s_cmp_lg_u32 s3, 0')
    a.br(f's_cbranch_scc1 {L}')
    if not allwg:
        a('s_cmp_lg_u32 s2, 0')
        a.br(f's_cbranch_scc1 {L}')
    a('s_memrealtime s[92:93]')
    a('s_mov_b64 s[94:95], exec')
    a('s_mov_b64 exec, 1')
    a('s_waitcnt lgkmcnt(0)')
    t = stamp.tmp
    a(f'v_mov_b32 v{t}, s92')
    a(f'v_mov_b32 v{t+2}, 0')
    a(f'buffer_atomic_umax v{t}, v{t+2}, s[96:99], 0 offen offset:{idx*4}')
    a('s_mov_b64 exec, s[94:95]')
    a.label(L)

TR_OFF = 0x1000000
def tr_init(a):
    if not opt.tr: return
    a('s_lshl_b32 s98, s2, 3')
    a('s_add_u32 s98, s98, s3')
    a('s_lshl_b32 s98, s98, 10')
    a(f's_add_u32 s98, s98, {TR_OFF}')
    a('s_add_u32 s96, s24, s98')
    a('s_addc_u32 s97, s25, 0')
    a('s_mov_b32 s98, 1024')
    a('s_mov_b32 s99, 0x20000')
    a('s_mov_b32 s27, 0')
    a('v_mov_b32 v11, 0')

def tr(a, tag):
    if not opt.tr: return
    a('s_memtime s[92:93]')
    a('s_mov_b32 m0, s27')
    a('s_add_u32 s27, s27, 1')
    a('s_waitcnt lgkmcnt(0)')
    a('s_lshl_b32 s92, s92, 6')
    a(f's_or_b32 s92, s92, {tag}')
    a('v_writelane_b32 v11, s92, m0')

def tr_dump(a):
    if not opt.tr: return
    a('v_lshrrev_b32 v12, 2, v1')
    a('buffer_store_dword v11, v12, s[96:99], 0 offen')

def header(a, name):
    a.raw(f'.globl {name}\n.p2align 8\n.type {name},@function\n{name}:')
    a.hist = []

def descriptor(name, vgpr, sgpr=102):
    acc = (vgpr + 3) // 4 * 4
    return f'''.p2align 6
.amdhsa_kernel {name}
  .amdhsa_next_free_vgpr {vgpr}
  .amdhsa_next_free_sgpr {sgpr}
  .amdhsa_accum_offset {acc}
  .amdhsa_group_segment_fixed_size 0
  .amdhsa_kernarg_size 88
  .amdhsa_user_sgpr_count 2
  .amdhsa_user_sgpr_kernarg_segment_ptr 1
  .amdhsa_system_sgpr_workgroup_id_x 1
  .amdhsa_float_denorm_mode_32 3
.end_amdhsa_kernel
'''

def emit_Q(a, dst, q, t):
    a(f'v_lshrrev_b32 v{dst}, 2, v{q}')
    a(f'v_lshlrev_b32 v{dst}, 1, v{dst}')
    a(f'v_and_b32 v{t}, 1, v{q}')
    a(f'v_add_u32 v{dst}, v{dst}, v{t}')
    a(f'v_and_b32 v{t}, 2, v{q}')
    a(f'v_lshl_add_u32 v{dst}, v{t}, 2, v{dst}')

K1_POS = 0; K1_CNT = 150528; K1_OVB = 151808; K1_W1 = 152832; K1_LDS = 161024

def gen_k1(a, name):
    header(a, name)
    stamp.tmp = 60; stamp.wave = 0
    a('s_cmp_ge_u32 s2, %d' % NB)
    a('s_cbranch_scc1 L1_end')
    a('s_load_dwordx8 s[4:11], s[0:1], 0')
    a('s_load_dwordx8 s[12:19], s[0:1], 32')
    a('s_load_dwordx2 s[24:25], s[0:1], 80')
    a('v_lshrrev_b32 v1, 6, v0')
    a('v_and_b32 v2, 63, v0')
    a('v_readfirstlane_b32 s3, v1')
    a('v_lshlrev_b32 v3, 4, v2')
    a('v_mov_b32 v40, 0')
    a('s_cmp_ge_u32 s3, 5')
    a.br('s_cbranch_scc1 L1_nozero')
    a('v_lshlrev_b32 v41, 2, v0')
    a(f'v_add_u32 v41, {K1_CNT}, v41')
    a('ds_write_b32 v41, v40')
    a.label('L1_nozero')
    a('s_waitcnt lgkmcnt(0)')
    stamp_init(a, 0)
    stamp(a, 0, 0)
    dbg_init(a, 0)
    dbg(a, 0)
    dbg(a, 1, True)
    a('s_cmp_ge_u32 s3, 13')
    a.br('s_cbranch_scc1 L1_hpath')
    srd(a, 28, 8, 0, CH*4, mul=CH*4)
    srd(a, 32, 10, 0, CH*4, mul=CH*4)
    srd(a, 36, 6, 0, N*6)
    a('v_lshlrev_b32 v1, 4, v0')
    nt = ' nt' if opt.nt_edges else ''
    a(f'buffer_load_dwordx4 v[4:7], v1, s[28:31], 0 offen{nt}')
    a(f'buffer_load_dwordx4 v[8:11], v1, s[32:35], 0 offen{nt}')
    a('s_lshr_b32 s40, s2, 3')
    a(f's_mul_i32 s40, s40, {opt.rot}')
    a('s_add_u32 s40, s40, s3')
    for i in range(12):
        if i == 11:
            a('s_cmp_ge_u32 s3, 4')
            a.br('s_cbranch_scc1 L1_dmadone')
        a('s_sub_u32 s41, s40, 147')
        a('s_cmp_ge_u32 s40, 147')
        a('s_cselect_b32 s40, s41, s40')
        a('s_lshl_b32 s41, s40, 10')
        a('s_mov_b32 m0, s41')
        a('s_add_u32 s40, s40, 13')
        a('buffer_load_dwordx4 v3, s[36:39], s41 offen lds')
    a.label('L1_dmadone')
    a('s_mov_b64 s[42:43], -1')
    a('s_cmp_eq_u32 s3, 12')
    a('s_cselect_b32 s43, 0, s43')
    a(f's_mov_b32 s44, {fl(opt.thr)}')
    a(f's_mov_b32 s45, -100')
    a(f's_mov_b32 s46, {K1_CNT}')
    a('v_mov_b32 v59, 0xffff0000')
    stamp(a, 0, 1)
    a('s_waitcnt vmcnt(0) lgkmcnt(0)')
    a('s_barrier')
    stamp(a, 0, 2)
    dbg(a, 2)
    dbg(a, 3, True)
    for i in range(4):
        a(f'v_mul_u32_u24 v{12+i}, 6, v{4+i}')
        a(f'v_mul_u32_u24 v{16+i}, 6, v{8+i}')
        a(f'v_and_b32 v36, -4, v{12+i}')
        a(f'v_and_b32 v37, -4, v{16+i}')
        a(f'ds_read2_b32 v[{20+2*i}:{21+2*i}], v36 offset1:1')
        a(f'ds_read2_b32 v[{28+2*i}:{29+2*i}], v37 offset1:1')
    for i in range(4):
        a(f'v_mul_u32_u24 v36, 5243, v{8+i}')
        a(f'v_lshrrev_b32 v36, 19, v36')
        a(f'v_mad_i32_i24 v37, v36, s45, v{8+i}')
        a(f'v_lshl_or_b32 v{48+i}, v{4+i}, 9, v37')
        a(f'v_lshlrev_b32 v{44+i}, 2, v36')
        a(f'v_add_u32 v{52+i}, {K1_CNT}, v{44+i}')
    a('v_mov_b32 v56, 1')
    for i in range(4):
        p, q = 20+2*i, 28+2*i
        a(f's_waitcnt lgkmcnt({6-2*i})')
        a(f'v_alignbyte_b32 v36, v{p+1}, v{p}, v{12+i}')
        a(f'v_alignbyte_b32 v37, v{p+1}, v{p+1}, v{12+i}')
        a(f'v_alignbyte_b32 v38, v{q+1}, v{q}, v{16+i}')
        a(f'v_alignbyte_b32 v39, v{q+1}, v{q+1}, v{16+i}')
        a(f'v_lshlrev_b32 v{p}, 16, v36')
        a(f'v_lshlrev_b32 v{q}, 16, v38')
        a(f'v_and_b32 v36, v59, v36')
        a(f'v_and_b32 v38, v59, v38')
        a(f'v_lshlrev_b32 v37, 16, v37')
        a(f'v_lshlrev_b32 v39, 16, v39')
        a(f'v_sub_f32 v{p}, v{p}, v{q}')
        a(f'v_sub_f32 v36, v36, v38')
        a(f'v_sub_f32 v37, v37, v39')
        a(f'v_mul_f32 v{p}, v{p}, v{p}')
        a(f'v_fmac_f32 v{p}, v36, v36')
        a(f'v_fmac_f32 v{p}, v37, v37')
        a(f'v_cmp_ngt_f32 s[{64+2*i}:{65+2*i}], v{p}, s44')
        a(f's_and_b64 s[{64+2*i}:{65+2*i}], s[{64+2*i}:{65+2*i}], s[42:43]')
    for i in range(4):
        a(f's_mov_b64 exec, s[{64+2*i}:{65+2*i}]')
        a(f'ds_add_rtn_u32 v{12+i}, v{52+i}, v56')
    a('s_mov_b64 exec, -1')
    a('s_waitcnt lgkmcnt(0)')
    a('s_barrier')
    stamp(a, 0, 3)
    for i in range(4):
        a(f'v_cmp_gt_u32 s[{72+2*i}:{73+2*i}], {CAP}, v{12+i}')
        a(f'v_lshlrev_b32 v{16+i}, 4, v{44+i}')
        a(f'v_lshl_add_u32 v{16+i}, v{12+i}, 2, v{16+i}')
    for i in range(4):
        a(f's_and_b64 exec, s[{72+2*i}:{73+2*i}], s[{64+2*i}:{65+2*i}]')
        a(f'ds_write_b32 v{16+i}, v{48+i} offset:4')
        a(f's_andn2_b64 s[{64+2*i}:{65+2*i}], s[{64+2*i}:{65+2*i}], s[{72+2*i}:{73+2*i}]')
    a('s_mov_b64 exec, -1')
    a('s_cmp_ge_u32 s3, 4')
    a.br('s_cbranch_scc1 L1_nohdr')
    a('v_lshlrev_b32 v20, 2, v0')
    a(f'v_add_u32 v21, {K1_CNT}, v20')
    a('ds_read_b32 v22, v21')
    a('v_mov_b32 v23, 0')
    a('v_lshlrev_b32 v24, 6, v0')
    a('s_waitcnt lgkmcnt(0)')
    a(f'v_cmp_lt_u32 vcc, {CAP}, v22')
    a('s_and_saveexec_b64 s[80:81], vcc')
    a.br('s_cbranch_execz L1_hdr_noovf')
    a(f'v_subrev_u32 v25, {CAP}, v22')
    a(f'v_mov_b32 v26, {K1_CNT + 1024}')
    a('ds_add_rtn_u32 v23, v26, v25')
    a(f'v_add_u32 v21, {K1_OVB}, v20')
    a('s_waitcnt lgkmcnt(0)')
    a('ds_write_b32 v21, v23')
    a.label('L1_hdr_noovf')
    a('s_mov_b64 exec, s[80:81]')
    a('v_lshl_or_b32 v22, v23, 16, v22')
    a('ds_write_b32 v24, v22')
    a.label('L1_nohdr')
    a('s_waitcnt lgkmcnt(0)')
    a('s_barrier')
    a('s_or_b64 s[72:73], s[64:65], s[66:67]')
    a('s_or_b64 s[74:75], s[68:69], s[70:71]')
    a('s_or_b64 s[72:73], s[72:73], s[74:75]')
    a.br('s_cbranch_scc0 L1_dump')
    srd(a, 28, 24, OVF_OFF, CH*4, mul=CH*4)
    for i in range(4):
        a(f's_mov_b64 exec, s[{64+2*i}:{65+2*i}]')
        a.br(f's_cbranch_execz L1_ovf{i}')
        a(f'v_add_u32 v20, {K1_OVB}, v{44+i}')
        a('ds_read_b32 v21, v20')
        a('s_waitcnt lgkmcnt(0)')
        a(f'v_add_u32 v21, v21, v{12+i}')
        a(f'v_subrev_u32 v21, {CAP}, v21')
        a('v_lshlrev_b32 v21, 2, v21')
        a(f'buffer_store_dword v{48+i}, v21, s[28:31], 0 offen')
        a.label(f'L1_ovf{i}')
    a('s_mov_b64 exec, -1')
    a.br('s_branch L1_dump')

    a.label('L1_hpath')
    if opt.tlb:
        a('s_load_dwordx2 s[20:21], s[0:1], 64')
        a(f'v_lshlrev_b32 v100, {opt.tlb}, v2')
        srd(a, 48, 24, 0, 0xE00000)
        srd(a, 52, 4, 0, N*512)
        a('buffer_load_dword v101, v100, s[48:51], 0 offen')
        a('buffer_load_dword v102, v100, s[52:55], 0 offen')
        a('s_waitcnt lgkmcnt(0)')
        srd(a, 56, 20, 0, N*512)
        a('buffer_load_dword v103, v100, s[56:59], 0 offen')
    a('s_sub_u32 s40, s3, 13')
    srd(a, 28, 14, 0, 8192)
    srd(a, 32, 4, 0, R*512, mul=R*512)
    srd(a, 36, 24, H_OFF, R*128, mul=R*128)
    for i in range(8):
        a(f's_mov_b32 m0, {K1_W1 + i*1024}')
        a(f's_mov_b32 s41, {i*1024}')
        a('buffer_load_dwordx4 v3, s[28:31], s41 offen lds')
    a('v_and_b32 v4, 15, v2')
    a('v_lshrrev_b32 v5, 4, v2')
    a('s_lshl_b32 s41, s40, 4')
    a('v_add_u32 v6, s41, v4')
    a('v_lshlrev_b32 v7, 4, v5')
    a('v_lshl_add_u32 v8, v6, 9, v7')
    a('v_lshl_add_u32 v9, v6, 7, v7')
    a('buffer_load_dwordx4 v[12:15], v8, s[32:35], 0 offen')
    a('buffer_load_dwordx4 v[16:19], v8, s[32:35], 0 offen offset:64')
    a(f'v_add_u32 v8, {48*512}, v8')
    a('buffer_load_dwordx4 v[20:23], v8, s[32:35], 0 offen')
    a('buffer_load_dwordx4 v[24:27], v8, s[32:35], 0 offen offset:64')
    a(f'v_add_u32 v8, {48*512}, v8')
    a('buffer_load_dwordx4 v[28:31], v8, s[32:35], 0 offen')
    a('buffer_load_dwordx4 v[32:35], v8, s[32:35], 0 offen offset:64')
    a('v_lshrrev_b32 v10, 2, v4')
    a('v_lshl_add_u32 v10, v5, 3, v10')
    a('v_and_b32 v11, 3, v4')
    a('v_lshlrev_b32 v11, 3, v11')
    a('v_lshl_add_u32 v10, v10, 7, v11')
    a(f'v_add_u32 v10, {K1_W1}, v10')
    a('s_waitcnt vmcnt(6)')
    FR = 64
    for ht in range(4):
        for ks in range(2):
            r = FR + (ht*2+ks)*4
            for hf in range(2):
                a(f'ds_read_b64_tr_b16 v[{r+2*hf}:{r+2*hf+1}], v10 offset:{ks*4096 + ht*32 + hf*512}')
    a('s_waitcnt lgkmcnt(0)')
    D = 96; O = 112
    for t in range(3):
        if t == 2:
            a('s_cmp_lg_u32 s40, 0')
            a.br('s_cbranch_scc1 L1_hdone')
        S = 12 + 8*t
        a('s_waitcnt vmcnt(4)')
        for ht in range(4):
            a(f'v_mfma_f32_16x16x32_bf16 v[{D+4*ht}:{D+4*ht+3}], v[{FR+ht*8}:{FR+ht*8+3}], v[{S}:{S+3}], 0')
        for ht in range(4):
            a(f'v_mfma_f32_16x16x32_bf16 v[{D+4*ht}:{D+4*ht+3}], v[{FR+ht*8+4}:{FR+ht*8+7}], v[{S+4}:{S+7}], v[{D+4*ht}:{D+4*ht+3}]')
        for i in range(16):
            a(f'v_cvt_pk_bf16_f32 v{D+i}, 0, v{D+i}')
        T = 120
        for grp in range(4):
            for i in range(4):
                a(f'v_mul_f32 v{T+i}, {fl(-1.4426950408889634)}, v{D+4*grp+i}')
            for i in range(4):
                a(f'v_exp_f32 v{T+i}, v{T+i}')
            for i in range(4):
                a(f'v_add_f32 v{T+i}, 1.0, v{T+i}')
            for i in range(4):
                a(f'v_rcp_f32 v{T+i}, v{T+i}')
            for i in range(4):
                a(f'v_mul_f32 v{T+i}, v{T+i}, v{D+4*grp+i}')
            a(f'v_cvt_pk_bf16_f32 v{O+2*grp}, v{T}, v{T+1}')
            a(f'v_cvt_pk_bf16_f32 v{O+2*grp+1}, v{T+2}, v{T+3}')
        a(f'buffer_store_dwordx4 v[{O}:{O+3}], v9, s[36:39], 0 offen ' + opt.k1st)
        a(f'buffer_store_dwordx4 v[{O+4}:{O+7}], v9, s[36:39], 0 offen offset:64 ' + opt.k1st)
        a(f'v_add_u32 v9, {48*128}, v9')
    a.label('L1_hdone')
    a('s_cmp_lg_u32 s40, 2')
    a.br('s_cbranch_scc1 L1_nofrag')
    a('s_cmp_ge_u32 s2, 27')
    a.br('s_cbranch_scc1 L1_nofrag')
    emit_Q(a, 12, 4, 13)
    a('v_lshlrev_b32 v12, 3, v12')
    srd(a, 32, 24, W2F_OFF, 24576 + 1536)
    a('s_cmp_ge_u32 s2, 24')
    a.br('s_cbranch_scc1 L1_wrfrag')
    srd(a, 28, 16, 0, 64*192*2)
    a('s_lshr_b32 s41, s2, 3')
    a('s_lshl_b32 s41, s41, 7')
    a('s_bfe_u32 s47, s2, 0x20001')
    a('s_lshl_b32 s47, s47, 1')
    a('s_add_u32 s41, s41, s47')
    a('s_and_b32 s47, s2, 1')
    a(f's_mul_i32 s47, s47, {32*384}')
    a('s_add_u32 s41, s41, s47')
    a(f'v_mul_u32_u24 v13, {4*384}, v5')
    a('v_add3_u32 v12, v12, v13, s41')
    a(f'v_add_u32 v13, {16*384}, v12')
    for jj in range(8):
        a(f'buffer_load_ushort v{16+jj}, v{12 if jj < 4 else 13}, s[28:31], 0 offen offset:{(jj&3)*384}')
    a('s_lshl_b32 s41, s2, 10')
    a('v_add_u32 v14, s41, v3')
    a('s_waitcnt vmcnt(0)')
    for i in range(4):
        a(f'v_lshl_or_b32 v{16+i}, v{17+2*i}, 16, v{16+2*i}')
    a('buffer_store_dwordx4 v[16:19], v14, s[32:35], 0 offen')
    a.br('s_branch L1_nofrag')
    a.label('L1_wrfrag')
    srd(a, 28, 18, 0, 4*192*2)
    a('s_sub_u32 s41, s2, 24')
    a('s_lshl_b32 s47, s41, 7')
    a('v_lshlrev_b32 v13, 1, v5')
    a('v_add3_u32 v12, v12, v13, s47')
    for k in range(4):
        a(f'buffer_load_ushort v{16+k}, v12, s[28:31], 0 offen offset:{k*384}')
    a('s_lshl_b32 s41, s41, 9')
    a('s_add_u32 s41, s41, 24576')
    a('v_lshlrev_b32 v14, 3, v2')
    a('v_add_u32 v14, s41, v14')
    a('s_waitcnt vmcnt(0)')
    for i in range(2):
        a(f'v_lshl_or_b32 v{16+i}, v{17+2*i}, 16, v{16+2*i}')
    a('buffer_store_dwordx2 v[16:17], v14, s[32:35], 0 offen')
    a.label('L1_nofrag')
    srd(a, 28, 24, POS4_OFF, R*8, mul=R*8)
    a('s_lshl_b32 s41, s40, 6')
    a('v_add_u32 v12, s41, v2')
    a(f's_mul_i32 s41, s2, {R}')
    a('v_add_u32 v13, s41, v12')
    a('v_mul_u32_u24 v13, 6, v13')
    a('v_and_b32 v14, -4, v13')
    a('v_lshlrev_b32 v12, 3, v12')
    a('s_waitcnt lgkmcnt(0)')
    a('s_barrier')
    a('ds_read2_b32 v[16:17], v14 offset1:1')
    a('s_waitcnt lgkmcnt(0)')
    a('v_alignbyte_b32 v18, v17, v16, v13')
    a('v_alignbyte_b32 v19, v17, v17, v13')
    a('v_and_b32 v19, 0xffff, v19')
    a('buffer_store_dwordx2 v[18:19], v12, s[28:31], 0 offen')
    if opt.pf_sv:
        srd(a, 32, 4, 0, R*512, mul=R*512)
        a('s_lshl_b32 s41, s40, 10')
        a('v_add_u32 v20, s41, v3')
        for i in range(17):
            a(f'buffer_load_dwordx4 v[100:103], v20, s[32:35], 0 offen {opt.pf_sv if opt.pf_sv != "plain" else ""}')
            a('v_add_u32 v20, 3072, v20')
    a('s_barrier')
    a('s_barrier')
    a.label('L1_dump')
    stamp(a, 0, 4)
    srd(a, 28, 24, SLOT_OFF, NB*16384)
    a('v_lshlrev_b32 v4, 4, v0')
    a('ds_read_b128 v[8:11], v4')
    a('v_lshrrev_b32 v5, 2, v0')
    a('v_lshlrev_b32 v5, 14, v5')
    a('v_and_b32 v6, 3, v0')
    a('v_lshl_add_u32 v5, v6, 4, v5')
    a('s_lshl_b32 s41, s2, 6')
    a('v_add_u32 v5, s41, v5')
    a('s_waitcnt lgkmcnt(0)')
    a('buffer_store_dwordx4 v[8:11], v5, s[28:31], 0 offen ' + opt.k1st)
    if opt.ts or opt.dbg:
        a('s_waitcnt vmcnt(0)')
        stamp(a, 0, 5)
        dbg(a, 4)
        dbg(a, 5, True)
    a.label('L1_end')
    a('s_endpgm')

L_W2F = 0; L_NCNT = 24576; L_START = L_NCNT + 512; L_DPOS = 25600; L_FLAG = 27648; L_STG = 27680
STG = 768
L_SORT = L_STG + 8*STG; L_RES = 50176; K2_LDS = L_RES + 116*512
assert L_SORT + 4*(4000+64) <= L_RES
S_VOFF, S_DL, S_R = 0, 256, 384

vLANE16, vSTGW, vSTGH, vSTGR, vSTGS, vLPV, vLPH, vLPR, vQQ, vMHI, vTR, vPACK, vNX64, vHA, vNQ, vRES, vE, vNX32, vM = range(1, 20)
PS = 20
RBF = 22
WR = 24
HOFF = 30
SEL = 32; SR = 36
V = 48
H = 96
ACC = 112
D3 = 176
D2 = 208
WS = 224
VOFF = 240
TP = 248
vRL = 254
vSTLO, vSTHI = ACC, ACC + 1
K2_VGPR = 256
sSV, sH, sP4, sOUT, sRES, sSLOT, sW2F, sOVF = 28, 32, 36, 40, 44, 48, 52, 80
sF = 56
sNC, sC64, sC32, sN0, sE0, sE1, sMORE, sROUND, sT0, sT1, sT2, sNN = 60, 61, 62, 63, 84, 85, 87, 88, 89, 90, 91, 26
sEXQ = 22
sXN0, sXNN, sXE0, sXE1, sXCONT, sLAST, sSTG, sSD, sRB = 68, 69, 70, 71, 72, 73, 6, 7, 8

def chain_step(a, tab):
    a(f'v_readlane_b32 s{sT0}, v{tab}, s{sNC}')
    a(f's_lshr_b32 s{sT1}, s{sNC}, 2')
    a(f's_and_b32 s{sT1}, s{sT1}, 16')
    a(f's_lshr_b32 s{sT0}, s{sT0}, s{sT1}')
    a(f's_and_b32 s{sNC}, s{sT0}, 0xffff')

def chain_start(a, dst):
    a(f'v_readlane_b32 s{sT0}, v{vPACK}, s{sNC}')
    a(f's_lshr_b32 s{sT1}, s{sNC}, 2')
    a(f's_and_b32 s{sT1}, s{sT1}, 16')
    a(f's_lshr_b32 s{sT0}, s{sT0}, s{sT1}')
    a(f's_and_b32 s{dst}, s{sT0}, 0xffff')

loop_n = [0]
def chain_loop(a, tab, cnt):
    n = loop_n[0]; loop_n[0] += 1
    a(f's_cmp_eq_u32 s{cnt}, 0')
    a(f's_cbranch_scc1 L2_walkdone{n}')
    a.label(f'L2_walk{n}', settle=False)
    chain_step(a, tab)
    a(f's_sub_u32 s{cnt}, s{cnt}, 1')
    a(f's_cmp_lg_u32 s{cnt}, 0')
    a(f's_cbranch_scc1 L2_walk{n}')
    a.label(f'L2_walkdone{n}', settle=False)

def Rn(d, x): return f'v_cvt_pk_bf16_f32 v{d}, 0, v{x}'

def weave(main, fill):
    out = []; n = len(main); m = len(fill); k = 0
    for i, x in enumerate(main):
        out.append(x)
        want = (i + 1) * m // n
        out += fill[k:want]; k = want
    return out + fill[k:]

def emit(a, lst):
    for x in lst: a(x)

def next_entry_read(t):
    return [f's_lshl_b32 s{sT0}, s{sXE0}, 2',
            f's_add_u32 s{sT0}, s{sT0}, s{sSD}',
            f'v_add_u32 v{t}, s{sT0}, v{vSTGW}',
            f'ds_read_b32 v{vE}, v{t}']
def next_mask(t):
    return [f's_sub_u32 s{sT0}, s{sXE1}, s{sXE0}',
            f's_lshl_b32 s{sT0}, s{sT0}, 2',
            f's_add_u32 s{sT0}, s{sT0}, s{sSTG}',
            f'v_subrev_u32 v{t}, s{sT0}, v{vSTGW}',
            f'v_ashrrev_i32 v{t}, 31, v{t}']
def next_stage(t, u):
    return ([f'v_and_b32 v{vE}, 0x00fffe7f, v{vE}'] if getattr(opt, 'strip', False) else []) + [
            f'v_bitop3_b32 v{vE}, v{vE}, v{t}, v{t} bitop3:0xf3',
            f'v_and_b32 v{t}, 0x7ffffe00, v{vE}',
            f'v_lshrrev_b32 v{u}, {9 if opt.rawpos else 6}, v{vE}',
            f'ds_write_b32 v{vSTGW}, v{t}',
            f'v_mul_u32_u24 v{u}, 6, v{u}' if opt.rawpos else f'v_and_b32 v{u}, -8, v{u}']
def off_reads(u):
    return [f'ds_read_b32 v{HOFF}, v{vHA} offset:{128*u}',
            f'ds_read_b32 v{HOFF+1}, v{vHA} offset:{128*u + 16}',
            f'ds_read_b128 v[{VOFF}:{VOFF+3}], v{vSTGR} offset:{128*u}',
            f'ds_read_b128 v[{VOFF+4}:{VOFF+7}], v{vSTGR} offset:{128*u + 16}']
def off_adds():
    return ([f'v_lshrrev_b32 v{HOFF+et}, 2, v{HOFF+et}' for et in range(2)] +
            [f'v_add_u32 v{HOFF+et}, v{HOFF+et}, v{vLPH}' for et in range(2)] +
            [f'v_add_u32 v{VOFF+jj}, v{VOFF+jj}, v{vLPV}' for jj in range(8)])
def pos_load(u): return [f'buffer_load_dwordx2 v[{PS}:{PS+1}], v{u}, s[{sP4}:{sP4+3}], 0 offen']
def h_loads():
    return [f'buffer_load_dwordx4 v[{H+et*8+ks*4}:{H+et*8+ks*4+3}], v{HOFF+et}, s[{sH}:{sH+3}], 0 offen offset:{ks*64}'
            for et in range(2) for ks in range(2)]
def v_loads(j):
    return [f'buffer_load_dwordx2 v[{V+j*16+jj*2}:{V+j*16+jj*2+1}], v{VOFF+jj}, s[{sSV}:{sSV+3}], 0 offen offset:{128*(j+1)}'
            for jj in range(8)]
def out_stores(addr):
    return [f'buffer_store_dwordx4 v[{D3+(c*2+hh)*4}:{D3+(c*2+hh)*4+3}], v{addr}, s[{sOUT}:{sOUT+3}], 0 offen offset:{c*128+hh*64} {opt.outst}'
            for c in range(4) for hh in range(2)]
def wread(step):
    p = [0, 2, 1][step // 4]; ct = step % 4
    return [f'ds_read_b128 v[{WS+(step%2)*8+ks*4}:{WS+(step%2)*8+ks*4+3}], v{vLANE16} offset:{L_W2F + ((p*4+ct)*2+ks)*1024}' for ks in range(2)]
def wf(p, u):
    return [f'v_mfma_f32_16x16x4bf16_1k v[{D3+16*et}:{D3+16*et+15}], v[{RBF}:{RBF+1}], v[{WR+2*p}:{WR+2*p+1}], 0 cbsz:2 abid:{2*u+et}' for et in range(2)]

sFI = 0
def T(a, n):
    if opt.trmain: tr(a, n)

def l2_mfma(step):
    d = D2 + (step % 2)*8; w = WS + (step % 2)*8; o = []
    for ks in range(2):
        for et in range(2):
            c = '0' if ks == 0 else f'v[{d+4*et}:{d+4*et+3}]'
            o.append(f'v_mfma_f32_16x16x32_bf16 v[{d+4*et}:{d+4*et+3}], v[{H+et*8+ks*4}:{H+et*8+ks*4+3}], v[{w+4*ks}:{w+4*ks+3}], {c}')
    return o
def l2_mul(step):
    part = step // 4; ct = step % 4; d = D2 + (step % 2)*8; o = []
    for et in range(2):
        for r in range(4):
            m = D3 + et*16 + ct*4 + r
            o.append(f'v_mul_f32 v{m if part == 2 else d+4*et+r}, v{d+4*et+r}, v{m}')
    if opt.pkc:
        o = []
        for et in range(2):
            for r in (0, 2):
                m = D3 + et*16 + ct*4 + r; x = d+4*et+r; y = m if part == 2 else x
                o.append(f'v_pk_mul_f32 v[{y}:{y+1}], v[{x}:{x+1}], v[{m}:{m+1}]')
    return o
def pbuf(step): return (TP + 4*(step % 2)) if opt.spread else D2 + (step % 2)*8
def l2_cvt(step):
    if step // 4 == 2: return []
    d = D2 + (step % 2)*8; p = pbuf(step)
    return [f'v_cvt_pk_bf16_f32 v{p+i}, v{d+2*i}, v{d+2*i+1}' for i in range(4)]
def l2_seg(step):
    part = step // 4; ct = step % 4; d = pbuf(step)
    if part == 2: return []
    if part == 0:
        acc = ACC + ct*4
        return [f'v_mfma_f32_16x16x32_bf16 v[{acc}:{acc+3}], v[{d}:{d+3}], v[{SEL}:{SEL+3}], v[{acc}:{acc+3}]']
    return [f'v_mfma_f32_16x16x32_bf16 v[{ACC+(1+j)*16+ct*4}:{ACC+(1+j)*16+ct*4+3}], v[{d}:{d+3}], v[{SR+4*j}:{SR+4*j+3}], v[{ACC+(1+j)*16+ct*4}:{ACC+(1+j)*16+ct*4+3}]' for j in range(3)]
def sel_reads(u):
    return ([f'ds_read_b128 v[{SEL}:{SEL+3}], v{vSTGS} offset:{S_DL + 64*u}'] +
            [f'ds_read_b128 v[{SR+4*j}:{SR+4*j+3}], v{vSTGS} offset:{S_R + 128*j + 64*u}' for j in range(3)])

def head(a, tag):
    first = tag == 'A'; u = 1 if tag == 'C' else 0
    if u == 0: a.label(f'L2_head_{tag}')
    vl = v_loads(0) + v_loads(1) + v_loads(2)
    assert sum(opt.vsched) == 24
    def vissue(i):
        n = opt.vsched[i] if not opt.roll else (8 if i == opt.rollat else 0)
        emit(a, vl[:n]); del vl[:n]
    if u == 0:
        X = D2
        DP = TP
        a(f'v_and_b32 v{X}, 127, v{vE}')
        a(f'v_lshlrev_b32 v{X+1}, 4, v{X}')
        a(f'ds_read_b128 v[{DP}:{DP+3}], v{X+1} offset:{L_DPOS}')
        a(f'ds_write_b16 v{vSTGH}, v{X} offset:{S_DL}')
        if first:
            a(f's_lshl_b32 s{sT0}, s{sN0}, 9')
            a(f'v_add_u32 v{vRES}, s{sT0}, v{vLPR}')
            a(f's_mul_i32 s{sT0}, s{sN0}, 0x10001')
            a(f'v_add_u32 v{vNQ}, s{sT0}, v{vQQ}')
            a(f's_bfm_b32 s{sT1}, s{sNN}, 0')
            a(f's_lshl_b32 s{sT2}, s{sT1}, 16')
            a(f's_or_b32 s{sEXQ}, s{sT1}, s{sT2}')
            a(f's_mov_b32 s{sEXQ+1}, s{sEXQ}')
        else:
            a(f's_lshl_b32 s{sT0}, s{sN0}, 9')
            a(f'v_add_u32 v{vRES}, s{sT0}, v{vLPR}')
        if first:
            a(f'v_and_b32 v{X+3}, 0xff, v{vNQ}')
            a(f'v_and_b32 v{X+4}, 7, v{vNQ}')
            a(f'v_lshlrev_b32 v{X+4}, 5, v{X+4}')
            a(f'v_xor_b32 v{X+4}, v{X+4}, v{vLPH}')
            a(f'v_lshl_add_u32 v{X+3}, v{X+3}, 9, v{X+4}')
            a(f'v_add_u32 v{X+3}, {L_RES}, v{X+3}')
            for i in range(8):
                if i: a(f'v_xor_b32 v{X+4+(i&1)}, {i*64}, v{X+3}')
                a(f'ds_read_b128 v[{D3+4*i}:{D3+4*i+3}], v{X+3 if i == 0 else X+4+(i&1)}')
        a(f'v_ashrrev_i32 v{vM}, 31, v{vE}')
        T(a, 9)
        if first and sFI:
            a(f's_cmp_eq_u32 s{sFI}, 0')
            a('s_cbranch_scc1 L2_notfirst1')
            a('s_waitcnt vmcnt(4)')
            a.lines.append('L2_notfirst1:')
        a('s_waitcnt vmcnt(%d)' % (28 if opt.roll else 12))
        T(a, 10)
        rx, ry, rz, t0, t1, t2, dd, inv = range(X, X+8)
        g0 = X + 8
        if opt.rawpos:
            a(f'v_alignbyte_b32 v{PS}, v{PS+1}, v{PS}, v{TP+5}')
            a(f'v_alignbyte_b32 v{PS+1}, v{PS+1}, v{PS+1}, v{TP+5}')
        a(f'v_lshlrev_b32 v{rx}, 16, v{PS}')
        a(f'v_and_b32 v{ry}, v{vMHI}, v{PS}')
        a(f'v_lshlrev_b32 v{rz}, 16, v{PS+1}')
        a(f's_waitcnt lgkmcnt({9 if first else 1})')
        for i in range(3): a(f'v_sub_f32 v{rx+i}, v{rx+i}, v{DP+i}')
        sc = []
        sc += [Rn(rx+i, rx+i) for i in range(3)]
        sc += [f'v_mul_f32 v{t0+i}, v{rx+i}, v{rx+i}' for i in range(3)]
        sc += [Rn(t0+i, t0+i) for i in range(3)]
        sc += [f'v_add_f32 v{t0}, v{t0}, v{t1}', f'v_add_f32 v{t0}, v{t0}, v{t2}', Rn(t0, t0),
               f'v_add_f32 v{t0}, {fl(1e-8)}, v{t0}', Rn(t0, t0), f'v_sqrt_f32 v{t0}, v{t0}', Rn(dd, t0), f'v_rcp_f32 v{inv}, v{dd}']
        sc += [f'v_mul_f32 v{g0+4}, {fl(3.141592653589793)}, v{dd}']
        sc += [f'v_mul_f32 v{g0+k}, s{sF+k}, v{dd}' for k in range(4)]
        sc += [Rn(g0+4, g0+4)] + [f'v_mul_f32 v{g0+4}, {fl(0.2)}, v{g0+4}'] + [Rn(g0+k, g0+k) for k in range(2)]
        sc += [Rn(g0+4, g0+4)] + [Rn(g0+k, g0+k) for k in range(2, 4)]
        sc += [f'v_mul_f32 v{g0+4}, 0.15915494, v{g0+4}']
        sc += [f'v_mul_f32 v{rx+i}, v{rx+i}, v{inv}' for i in range(3)]
        sc += [f'v_cos_f32 v{g0+4}, v{g0+4}']
        sc += [f'v_mul_f32 v{g0+k}, 0.15915494, v{g0+k}' for k in range(4)]
        sc += [f'v_cvt_pk_bf16_f32 v{t0}, v{rx}, v{ry}', f'v_cvt_pk_bf16_f32 v{t1}, v{rz}, v{rz}', Rn(g0+4, g0+4)]
        sc += [f'v_sin_f32 v{g0+k}, v{g0+k}' for k in range(2)]
        sc += [f'v_bitop3_b32 v{t0}, v{t0}, v{vM}, v{vM} bitop3:0x30', f'v_bitop3_b32 v{t1}, v{t1}, v{vM}, v{vM} bitop3:0x30',
               f'v_add_f32 v{g0+4}, 1.0, v{g0+4}']
        sc += [f'ds_write_b16 v{vSTGH}, v{t0} offset:{S_R}', f'ds_write_b16_d16_hi v{vSTGH}, v{t0} offset:{S_R+128}', f'ds_write_b16 v{vSTGH}, v{t1} offset:{S_R+256}']
        sc += sel_reads(0)
        sc += [f'v_sin_f32 v{g0+k}, v{g0+k}' for k in range(2, 4)]
        sc += [Rn(g0+4, g0+4), f'v_mul_f32 v{inv}, 0.5, v{inv}', f'v_mul_f32 v{inv}, v{inv}, v{g0+4}']
        sc += [f'v_mul_f32 v{g0+k}, v{g0+k}, v{inv}' for k in range(4)]
        sc += [f'v_cvt_pk_bf16_f32 v{RBF}, v{g0}, v{g0+1}', f'v_cvt_pk_bf16_f32 v{RBF+1}, v{g0+2}, v{g0+3}',
               f'v_bitop3_b32 v{RBF}, v{RBF}, v{vM}, v{vM} bitop3:0x30', f'v_bitop3_b32 v{RBF+1}, v{RBF+1}, v{vM}, v{vM} bitop3:0x30']
        fill = []
        if first:
            for c in range(4):
                for hh in range(2):
                    for ct in range(4):
                        for r in (2*hh, 2*hh+1):
                            src = D3 + (c*2 + hh)*4 + 2*(r & 1) + (ct >> 1)
                            dst = ACC + c*16 + ct*4 + r
                            fill.append(f'v_and_b32 v{dst}, v{vMHI}, v{src}' if ct & 1 else f'v_lshlrev_b32 v{dst}, 16, v{src}')
        nh = 6
        emit(a, sc[:nh])
        if first: a('s_waitcnt lgkmcnt(0)')
        emit(a, weave(sc[nh:], fill))
        emit(a, wread(0)); emit(a, wread(1))
    else:
        emit(a, wread(0)); emit(a, wread(1))
        T(a, 9)
    a(f's_mov_b32 s{sT0}, 0x00010001')
    a('s_waitcnt lgkmcnt(7)')
    for i in range(4): a(f'v_xor_b32 v{SEL+i}, v{SEL+i}, v{vNQ}')
    emit(a, wf(0, u)[:1])
    for i in range(4): a(f'v_pk_min_u16 v{SEL+i}, v{SEL+i}, s{sT0}')
    for i in range(4): a(f'v_pk_sub_u16 v{SEL+i}, v{SEL+i}, s{sT0}')
    emit(a, wf(0, u)[1:])
    a('s_waitcnt lgkmcnt(4)')
    for j in range(3):
        for i in range(4): a(f'v_and_b32 v{SR+4*j+i}, v{SR+4*j+i}, v{SEL+i}')
    for i in range(4): a(f'v_and_b32 v{SEL+i}, 0x3f803f80, v{SEL+i}')
    if opt.roll:
        if first:
            a(f's_cmp_eq_u32 s{sFI}, 0')
            a('s_cbranch_scc1 L2_notfirst2')
            emit(a, v_loads(0))
            a('s_waitcnt vmcnt(8)')
            emit(a, v_loads(1))
            a(f's_mov_b32 s{sFI}, 0')
            a.lines.append('L2_notfirst2:')
        T(a, 11)
        a(f's_waitcnt vmcnt({(8 if u == 0 else 0) + 16})')
        vl = v_loads(2)
    else:
        vissue(0)
        T(a, 11)
        if first and sFI:
            a(f's_cmp_eq_u32 s{sFI}, 0')
            a('s_cbranch_scc1 L2_notfirst2')
            a(f's_waitcnt vmcnt({opt.vsched[0]})')
            a(f's_mov_b32 s{sFI}, 0')
            a.lines.append('L2_notfirst2:')
        a(f's_waitcnt vmcnt({(8 if u == 0 else 0) + opt.vsched[0]})')
    T(a, 12)
    if opt.cprio == 1: a('s_setprio 1')
    if opt.cprio == 2: a('s_setprio 0')
    for step in range(12 if opt.spread else 0):
        a(f's_waitcnt lgkmcnt({2 if step < 11 else 0})')
        M = l2_mfma(step)
        if step == 0:
            emit(a, M); emit(a, wread(2)); vissue(1)
            continue
        S = l2_seg(step - 2) if step >= 2 else []
        s = step - 1; part = s // 4; ct = s % 4
        mu = l2_mul(s); cv = l2_cvt(s)
        va = mu[:4] + cv[:2] + mu[4:] + cv[2:]
        mf = M[:2] + S[:1] + M[2:] + S[1:]
        if step in (4, 8):
            last = max(i for i, x in enumerate(va) if x.startswith('v_mul'))
            emit(a, weave(mf[:4], va[:last+1])); emit(a, wf(2 if step == 4 else 1, u)[:1])
            emit(a, va[last+1:]); emit(a, mf[4:]); emit(a, wread(step + 2)); emit(a, wf(2 if step == 4 else 1, u)[1:])
        elif step in (5, 9):
            emit(a, mf[:4]); emit(a, weave(va, mf[4:])); emit(a, wread(step + 2) if step + 2 < 12 else [])
        else:
            emit(a, weave(mf, va))
            if step + 2 < 12: emit(a, wread(step + 2))
        vissue(step + 1)
    for step in range(0 if opt.spread else 12):
        a(f's_waitcnt lgkmcnt({2 if step < 11 else 0})')
        M = l2_mfma(step)
        if step == 0:
            emit(a, M); emit(a, wread(2)); vissue(1)
            continue
        m = l2_mul(step - 1)
        if opt.pkc == 2:
            emit(a, m + M)
        elif opt.pkc == 3:
            emit(a, M + m)
        elif step in (5, 9):
            h_ = len(m)//2
            emit(a, M[:2] + m[:h_] + M[2:3] + m[h_:h_+h_//2] + M[3:] + m[h_+h_//2:])
        else:
            emit(a, weave(M, m))
        if step == 4: emit(a, wf(2, u))
        if step == 8: emit(a, wf(1, u))
        emit(a, l2_cvt(step - 1))
        if step + 2 < 12: emit(a, wread(step + 2))
        emit(a, l2_seg(step - 1))
        vissue(step + 1)
    if opt.cprio == 1: a('s_setprio 0')
    if opt.cprio == 2: a('s_setprio 1')
    a(f's_add_u32 s{sXE0}, s{sE0}, {32*(u+1)}')
    a(f's_cmp_lt_u32 s{sXE0}, s{sE1}')
    if tag == 'A':
        a('s_cbranch_scc0 L2_newitem')
    elif tag == 'B':
        a.br('s_cbranch_scc1 L2_tail_toC')
        a.br('s_branch L2_newitem')
    else:
        a('s_cbranch_scc0 L2_newitem')
        a(f's_mov_b32 s{sXE1}, s{sE1}')
        a(f's_mov_b32 s{sXN0}, s{sN0}')
        a(f's_mov_b32 s{sXNN}, s{sNN}')
        a(f's_mov_b32 s{sXCONT}, 1')
        a(f's_mov_b32 s{sLAST}, 0')
        a.br('s_branch L2_tail_toA')

sPRE = 74; sPN0, sPNN, sPE0, sPE1 = 75, 76, 77, 78
def lookahead(a):
    chain_loop(a, vNX64, sC64)
    chain_loop(a, vNX32, sC32)
    a(f's_mov_b32 s{sPRE}, 2')
    a(f's_cmp_ge_u32 s{sNC}, {R}')
    a('s_cbranch_scc1 L2_lookdone')
    a(f's_mov_b32 s{sPN0}, s{sNC}')
    chain_start(a, sPE0)
    chain_step(a, vNX32)
    chain_start(a, sPE1)
    a(f's_sub_u32 s{sPNN}, s{sNC}, s{sPN0}')
    a(f's_mov_b32 s{sC32}, 7')
    a(f's_mov_b32 s{sPRE}, 1')
    if opt.yld in (7, 8, 9): a('s_setprio 3')
    a.label('L2_lookdone', settle=False)

def newitem(a):
    a.label('L2_newitem', settle=False)
    a(f's_mov_b32 s{sLAST}, 1')
    if opt.look:
        a(f's_cmp_eq_u32 s{sPRE}, 0')
        a('s_cbranch_scc1 L2_walknow')
        a(f's_cmp_eq_u32 s{sPRE}, 2')
        a('s_nop 3')
        a('s_cbranch_scc1 L2_tail_fin')
        a(f's_mov_b32 s{sXN0}, s{sPN0}')
        a(f's_mov_b32 s{sXNN}, s{sPNN}')
        a(f's_mov_b32 s{sXE0}, s{sPE0}')
        a(f's_mov_b32 s{sXE1}, s{sPE1}')
        a(f's_mov_b32 s{sXCONT}, 0')
        a(f's_mov_b32 s{sPRE}, 0')
        a('s_branch L2_tail_toA')
        a.label('L2_walknow', settle=False)
    chain_loop(a, vNX64, sC64)
    chain_loop(a, vNX32, sC32)
    if 'X' in getattr(opt, 'diag', ''):
        a('s_cmp_ge_u32 s3, 4')
        a('s_cbranch_scc1 L2_tail_fin')
    if 'Y' in getattr(opt, 'diag', ''):
        a('s_cbranch_scc1 L2_tail_fin')
        a('s_branch L2_tail_fin')
    a(f's_cmp_ge_u32 s{sNC}, {R}')
    a('s_cbranch_scc1 L2_tail_fin')
    a(f's_mov_b32 s{sXN0}, s{sNC}')
    chain_start(a, sXE0)
    chain_step(a, vNX32)
    chain_start(a, sXE1)
    a(f's_sub_u32 s{sXNN}, s{sNC}, s{sXN0}')
    a(f's_mov_b32 s{sXCONT}, 0')
    a(f's_mov_b32 s{sC32}, 7')
    if getattr(opt, 'yld', 0) == 2: a('s_setprio 0')

def tail(a, tag):
    if tag == 'toC':
        a.lines.append('L2_tail_toC:')
    else:
        a.label(f'L2_tail_{tag}', settle=False)
    def pv(n):
        j, ct = divmod(n, 4); U = D2 + ((n + 2) % 4)*8
        un, mu = [], []
        for jj in range(8):
            src = V + j*16 + jj*2 + (ct >> 1)
            un.append(f'v_and_b32 v{U+jj}, v{vMHI}, v{src}' if ct & 1 else f'v_lshlrev_b32 v{U+jj}, 16, v{src}')
            mu.append(f'v_mul_f32 v{U+jj}, v{U+jj}, v{D3 + (jj >> 2)*16 + ct*4 + (jj & 3)}')
        if opt.pk:
            mu = [f'v_pk_mul_f32 v[{U+jj}:{U+jj+1}], v[{U+jj}:{U+jj+1}], v[{D3 + (jj >> 2)*16 + ct*4 + (jj & 3)}:{D3 + (jj >> 2)*16 + ct*4 + (jj & 3) + 1}]' for jj in range(0, 8, 2)]
        cv = [f'v_cvt_pk_bf16_f32 v{U+i}, v{U+2*i}, v{U+2*i+1}' for i in range(4)]
        acc = ACC + (1+j)*16 + ct*4
        mf = f'v_mfma_f32_16x16x32_bf16 v[{acc}:{acc+3}], v[{U}:{U+3}], v[{SEL}:{SEL+3}], v[{acc}:{acc+3}]'
        return un, mu, cv, mf
    early = {'toA': 5, 'toC': 4, 'fin': 0}[tag] if opt.earlyh else 0
    if tag == 'toA' and opt.earlyst2:
        a(f's_cmp_eq_u32 s{sLAST}, 0')
        a(f's_cselect_b32 s{sT0}, 0x40000000, 0')
        a(f'v_or_b32 v{vRES}, s{sT0}, v{vRES}')
    if tag == 'toA': emit(a, next_entry_read(TP) + next_mask(TP+4))
    if tag == 'toC':
        if getattr(opt, 'yld', 0) == 4: a('s_setprio 1')
        emit(a, off_reads(1))
    if getattr(opt, 'yld', 0) == 5 and tag in ('toA', 'fin'): a('s_setprio 1')
    if getattr(opt, 'yld', 0) == 9 and tag == 'toA': a('s_setprio 0')
    if getattr(opt, 'yld', 0) == 10 and tag == 'fin': a('s_setprio 1')
    if getattr(opt, 'yld', 0) == 11 and tag == 'fin':
        a('s_cmp_ge_u32 s3, 4')
        a('s_cbranch_scc1 L2_keepprio')
        a('s_setprio 0')
        a.lines.append('L2_keepprio:')
    if getattr(opt, 'yld', 0) == 6 and tag == 'toA': a('s_setprio 0')
    emit(a, l2_mul(11))
    prev = None
    for n in range(12):
        j, ct = divmod(n, 4)
        un, mu, cv, mf = pv(n)
        if ct == 0:
            T(a, 13 + 2*j)
            late = 4 if (((tag == 'fin' and opt.earlyst) or (tag == 'toA' and opt.earlyst2)) and j == 2) else 0
            rolled = 8 if (opt.roll and tag != 'fin' and j == 2) else 0
            a(f's_waitcnt vmcnt({16 - 8*j + (early if j else 0) + late + rolled})')
            T(a, 14 + 2*j)
        emit(a, un[:2])
        if prev: a(prev)
        emit(a, un[2:])
        rest = mu + cv
        if tag == 'toA' and n == 1:
            a('s_waitcnt lgkmcnt(0)')
            rest = weave(rest, next_stage(TP+4, TP+5) + off_reads(0))
        if (tag == 'toA' and n == 3) or (tag == 'toC' and n == 1):
            a('s_waitcnt lgkmcnt(0)')
            rest = weave(rest, off_adds())
            if opt.earlyh: rest = rest + (pos_load(TP+5) if tag == 'toA' else []) + h_loads()
        if opt.roll and tag != 'fin' and n in (4, 8): rest = weave(rest, v_loads(n//4 - 1))
        if ((tag == 'fin' and opt.earlyst) or (tag == 'toA' and opt.earlyst2)) and n in (5, 9):
            comps, base = ((0, 1), V) if n == 5 else ((2,), V + 16)
            pk_, st_ = [], []
            for ci, c in enumerate(comps):
                for hh in range(2):
                    r0 = base + ci*8 + hh*4
                    for d in range(4):
                        lo = ACC + c*16 + (2*(d & 1))*4 + 2*hh + (d >> 1)
                        pk_.append(f'v_cvt_pk_bf16_f32 v{r0+d}, v{lo}, v{lo+4}')
                    st_.append(f'buffer_store_dwordx4 v[{r0}:{r0+3}], v{vRES}, s[{sOUT}:{sOUT+3}], 0 offen offset:{c*128+hh*64} {opt.outst}')
            rest = rest + pk_ + [f's_mov_b64 exec, s[{sEXQ}:{sEXQ+1}]'] + st_ + ['s_mov_b64 exec, -1']
        emit(a, rest)
        prev = mf
    T(a, 19)
    if tag == 'toC':
        if opt.earlyh:
            a('s_nop 1')
            a(prev)
        else:
            emit(a, h_loads()[:2])
            a(prev)
            emit(a, h_loads()[2:])
        emit(a, sel_reads(1))
        if getattr(opt, 'yld', 0) == 3: a('s_setprio 1')
        return
    if tag == 'toA':
        if not opt.earlyh:
            emit(a, pos_load(TP+5))
            emit(a, h_loads())
        a(prev)
        if not opt.earlyst2:
            a(f's_cmp_eq_u32 s{sLAST}, 0')
            a(f's_cbranch_scc1 L2_nopack')
    else:
        a('s_nop 1')
        a(prev)
    short = (tag == 'fin' and opt.earlyst) or (tag == 'toA' and opt.earlyst2)
    for c in range(3 if short else 0, 4):
        for hh in range(2):
            for d in range(4):
                lo = ACC + c*16 + (2*(d & 1))*4 + 2*hh + (d >> 1)
                a(f'v_cvt_pk_bf16_f32 v{D3+(c*2+hh)*4+d}, v{lo}, v{lo+4}')
    if tag == 'toA' and not opt.earlyst2:
        a.br('s_branch L2_store')
        a.label('L2_nopack', settle=False)
        a(f'v_mov_b32 v{vRES}, 0x40000000')
        a.label('L2_store')
    T(a, 20)
    a(f's_mov_b64 exec, s[{sEXQ}:{sEXQ+1}]')
    emit(a, out_stores(vRES)[6 if short else 0:])
    a('s_mov_b64 exec, -1')
    if tag == 'toA':
        a(f's_mov_b32 s{sN0}, s{sXN0}')
        a(f's_mov_b32 s{sNN}, s{sXNN}')
        a(f's_mov_b32 s{sE0}, s{sXE0}')
        a(f's_mov_b32 s{sE1}, s{sXE1}')
        if getattr(opt, 'yld', 0) in (1, 3, 4, 5, 6, 7, 8): a('s_setprio 0')
        a(f's_cmp_lg_u32 s{sXCONT}, 0')
        a.br('s_cbranch_scc1 L2_head_B')
        a.br('s_branch L2_head_A')

def gen_k2(a, name):
    header(a, name)
    stamp.tmp = 252; stamp.wave = 0
    a('s_cmp_ge_u32 s2, %d' % NB)
    a('s_cbranch_scc1 L2_end')
    a('s_load_dwordx2 s[4:5], s[0:1], 0')
    a('s_load_dwordx2 s[12:13], s[0:1], 32')
    a('s_load_dwordx2 s[20:21], s[0:1], 64')
    a('s_load_dwordx2 s[24:25], s[0:1], 80')
    a('v_lshrrev_b32 v40, 6, v0')
    a('v_and_b32 v41, 63, v0')
    a('v_readfirstlane_b32 s3, v40')
    a(f'v_lshlrev_b32 v{vLANE16}, 4, v41')
    a('v_lshlrev_b32 v42, 4, v0')
    a('s_waitcnt lgkmcnt(0)')
    a('s_load_dwordx2 s[14:15], s[12:13], 0')
    srd(a, sSLOT, 24, SLOT_OFF, NB*64, mul=16384)
    W = V
    a(f'buffer_load_dwordx4 v[{W}:{W+3}], v42, s[{sSLOT}:{sSLOT+3}], 0 offen')
    a(f'v_add_u32 v43, 8192, v42')
    a(f'buffer_load_dwordx4 v[{W+4}:{W+7}], v43, s[{sSLOT}:{sSLOT+3}], 0 offen')
    srd(a, sP4, 24, POS4_OFF, N*8)
    a(f's_mul_i32 s{sT0}, s2, {R*8}')
    a('v_lshlrev_b32 v43, 3, v0')
    a(f'v_add_u32 v43, s{sT0}, v43')
    a('v_cmp_gt_u32 vcc, 128, v0')
    a('v_mov_b32 v44, 0x40000000')
    a('v_cndmask_b32_e64 v43, v44, v43, vcc')
    a(f'buffer_load_dwordx2 v[46:47], v43, s[{sP4}:{sP4+3}], 0 offen')
    def zero_counters(tag):
        a('s_cmp_ge_u32 s3, 3')
        a.br(f's_cbranch_scc1 L2_nozero{tag}')
        a('v_lshlrev_b32 v40, 2, v0')
        a('v_mov_b32 v44, 0')
        a(f'v_add_u32 v42, {L_FLAG - 512}, v40')
        a(f'v_add_u32 v40, {L_NCNT}, v40')
        a('v_cmp_gt_u32 vcc, 128, v0')
        a('v_cndmask_b32_e64 v40, v42, v40, vcc')
        a('v_cmp_gt_u32 vcc, 129, v0')
        a('s_and_saveexec_b64 s[64:65], vcc')
        a('ds_write_b32 v40, v44')
        a('s_mov_b64 exec, s[64:65]')
        a.label(f'L2_nozero{tag}')
    zero_counters('a')
    srd(a, sW2F, 24, W2F_OFF, 24576 + 1536)
    a('v_lshlrev_b32 v43, 3, v41')
    a(f's_mov_b32 s{sT0}, 24576')
    for p in range(3):
        a(f'buffer_load_dwordx2 v[{WR+2*p}:{WR+2*p+1}], v43, s[{sW2F}:{sW2F+3}], s{sT0} offen offset:{p*512}')
    for i in range(3):
        a(f's_lshl_b32 s{sT0}, s3, 10')
        if i: a(f's_add_u32 s{sT0}, s{sT0}, {i*8192}')
        a(f's_mov_b32 m0, s{sT0}')
        a(f'buffer_load_dwordx4 v{vLANE16}, s[{sW2F}:{sW2F+3}], s{sT0} offen lds')
    srd(a, sRES, 4, 0, R*512, mul=R*512)
    stamp_init(a, 1)
    tr_init(a)
    tr(a, 1)
    stamp(a, 1, 0)
    dbg_init(a, 1)
    dbg(a, 6)
    dbg(a, 7, True)
    srd(a, sSV, 4, 0, N*512)
    srd(a, sH, 24, H_OFF, N*128)
    srd(a, sOUT, 20, 0, R*512, mul=R*512)
    srd(a, sOVF, 24, OVF_OFF, NB*CH*4)
    a('v_and_b32 v44, 15, v41')
    a('v_lshrrev_b32 v45, 4, v41')
    a('v_lshrrev_b32 v43, 2, v44')
    a('v_lshlrev_b32 v43, 3, v43')
    a('v_and_b32 v40, 3, v44')
    a('v_add_u32 v43, v43, v40')
    a(f's_mul_i32 s{sSTG}, s3, {STG}')
    a(f's_add_u32 s{sSTG}, s{sSTG}, {L_STG}')
    a(f's_sub_u32 s{sSD}, {L_SORT}, s{sSTG}')
    a(f'v_lshl_add_u32 v{vHA}, v43, 2, s{sSTG}')
    a('v_and_b32 v40, 1, v45')
    a('v_lshl_add_u32 v43, v40, 2, v43')
    a('v_lshrrev_b32 v40, 1, v45')
    a('v_lshl_add_u32 v43, v40, 5, v43')
    a(f'v_lshl_add_u32 v{vSTGW}, v43, 2, s{sSTG}')
    a(f'v_lshl_add_u32 v{vSTGH}, v43, 1, s{sSTG}')
    a(f'v_lshl_add_u32 v{vSTGR}, v45, 5, s{sSTG}')
    a(f'v_lshl_add_u32 v{vSTGS}, v45, 4, s{sSTG}')
    emit_Q(a, vLPV, 44, 40)
    a(f'v_lshlrev_b32 v{vLPV}, 3, v{vLPV}')
    a(f'v_lshlrev_b32 v{vLPH}, 4, v45')
    a(f'v_lshl_add_u32 v{vLPR}, v44, 9, v{vLPH}')
    a(f'v_lshl_or_b32 v{vQQ}, v44, 16, v44')
    a(f'v_mov_b32 v{vMHI}, 0xffff0000')
    a(f's_mov_b32 s{sROUND}, 0')
    a('s_waitcnt lgkmcnt(0)')
    a('s_barrier')
    a(f's_lshl_b32 s{sF}, s14, 16')
    a(f's_and_b32 s{sF+1}, s14, 0xffff0000')
    a(f's_lshl_b32 s{sF+2}, s15, 16')
    a(f's_and_b32 s{sF+3}, s15, 0xffff0000')
    a('v_and_b32 v39, 3, v0')
    a('v_lshlrev_b32 v39, 2, v39')
    a('v_subrev_u32 v39, 1, v39')
    LIM, CNT = 56, 58
    a('s_waitcnt vmcnt(8)')
    a(f'v_mov_b32_dpp v{CNT}, v{W} quad_perm:[0,0,0,0] row_mask:0xf bank_mask:0xf')
    a('s_waitcnt vmcnt(7)')
    a(f'v_mov_b32_dpp v{CNT+1}, v{W+4} quad_perm:[0,0,0,0] row_mask:0xf bank_mask:0xf')
    for h in range(2):
        a(f'v_and_b32 v{CNT+h}, 0xffff, v{CNT+h}')
        a(f'v_min_u32 v{LIM+h}, {CAP}, v{CNT+h}')
        a(f'v_subrev_u32 v{CNT+h}, {CAP}, v{CNT+h}')
    a('s_cmp_ge_u32 s3, 2')
    a.br('s_cbranch_scc1 L2_nodpos')
    a('s_waitcnt vmcnt(6)')
    a('v_lshlrev_b32 v84, 16, v46')
    a(f'v_and_b32 v85, v{vMHI}, v46')
    a('v_lshlrev_b32 v86, 16, v47')
    a('v_mov_b32 v87, 0')
    a('v_lshlrev_b32 v42, 4, v0')
    a(f'ds_write_b128 v42, v[84:87] offset:{L_DPOS}')
    a.label('L2_nodpos')
    a.label('L2_round')
    stamp(a, 1, 1)
    tr(a, 4)
    A = 60; RK = 68; T = 76
    a('v_mov_b32 v40, 1')
    for i in range(8):
        a(f'v_add_u32 v41, {i & 3}, v39')
        a(f'v_cmp_lt_u32 s[{64+2*i}:{65+2*i}], v41, v{LIM + i//4}')
        a(f'v_and_b32 v{A+i}, 127, v{W+i}')
        a(f'v_lshlrev_b32 v{A+i}, 2, v{A+i}')
        a(f'v_add_u32 v{A+i}, {L_NCNT}, v{A+i}')
    for i in range(8):
        a(f's_mov_b64 exec, s[{64+2*i}:{65+2*i}]')
        a(f'ds_add_rtn_u32 v{RK+i}, v{A+i}, v40')
    a('s_mov_b64 exec, -1')
    a(f'v_max_i32 v41, v{CNT}, v{CNT+1}')
    a('v_cmp_lt_i32 vcc, 0, v41')
    a.br('s_cbranch_vccz L2_noflag')
    a(f'v_mov_b32 v41, {L_FLAG}')
    a('ds_write_b32 v41, v40')
    a.label('L2_noflag')
    a(f'v_lshrrev_b32 v41, 9, v{vLANE16}')
    a('s_lshl_b32 s%d, s3, 1' % sT0)
    a(f'v_add_u32 v42, s{sT0}, v41')
    a('v_and_b32 v42, 7, v42')
    a('v_lshlrev_b32 v42, 5, v42')
    a(f'v_xor_b32 v42, v42, v{vLANE16}')
    for i in range(7):
        if i == 6:
            a('s_cmp_ge_u32 s3, 2')
            a.br('s_cbranch_scc1 L2_resdone')
        a(f's_lshl_b32 s{sT0}, s3, 10')
        if i: a(f's_add_u32 s{sT0}, s{sT0}, {i*8192}')
        a(f's_add_u32 m0, s{sT0}, {L_RES}')
        a(f'buffer_load_dwordx4 v42, s[{sRES}:{sRES+3}], s{sT0} offen sc1 lds')
    a.label('L2_resdone')
    a('s_waitcnt lgkmcnt(0)')
    a('s_barrier')
    stamp(a, 1, 2)
    tr(a, 5)
    a(f'v_lshrrev_b32 v41, 2, v{vLANE16}')
    a(f'v_add_u32 v41, {L_NCNT}, v41')
    a('ds_read2st64_b32 v[42:43], v41 offset1:1')
    a(f'v_mov_b32 v44, {L_FLAG}')
    a('ds_read_b32 v45, v44')
    a('s_waitcnt lgkmcnt(1)')
    a('v_lshl_or_b32 v42, v43, 16, v42')
    a('v_mov_b32 v43, v42')
    for sh in ('row_shr:1', 'row_shr:2', 'row_shr:4', 'row_shr:8'):
        a(f'v_add_u32_dpp v43, v43, v43 {sh} row_mask:0xf bank_mask:0xf')
    a('v_add_u32_dpp v43, v43, v43 row_bcast:15 row_mask:0xa bank_mask:0xf')
    a('v_add_u32_dpp v43, v43, v43 row_bcast:31 row_mask:0xc bank_mask:0xf')
    a('s_waitcnt lgkmcnt(0)')
    a(f'v_readfirstlane_b32 s{sMORE}, v45')
    a(f'v_readlane_b32 s{sT0}, v43, 63')
    a('v_sub_u32 v43, v43, v42')
    a(f's_and_b32 s{sT0}, s{sT0}, 0xffff')
    a(f'v_and_b32 v{vSTLO}, 0xffff, v43')
    a(f'v_lshrrev_b32 v{vSTHI}, 16, v43')
    a(f'v_add_u32 v{vSTHI}, s{sT0}, v{vSTHI}')
    a(f'ds_write2st64_b32 v41, v{vSTLO}, v{vSTHI} offset0:2 offset1:3')
    for i in range(8):
        a(f'ds_read_b32 v{T+i}, v{A+i} offset:512')
    a(f'v_lshl_or_b32 v{vPACK}, v{vSTHI}, 16, v{vSTLO}')
    for i in range(8):
        a('s_waitcnt lgkmcnt(7)')
        a(f'v_add_lshl_u32 v{T+i}, v{T+i}, v{RK+i}, 2')
        a(f's_mov_b64 exec, s[{64+2*i}:{65+2*i}]')
        a(f'ds_write_b32 v{T+i}, v{W+i} offset:{L_SORT}')
        a('s_mov_b64 exec, -1')
    for k, (st, d) in enumerate(((vSTLO, 32), (vSTHI, 32), (vSTLO, 64), (vSTHI, 64))):
        a(f'v_add_u32 v{T+k}, {d}, v{st}')
        a(f'v_lshlrev_b32 v{T+4+k}, 2, v{T+k}')
    a(f'v_readlane_b32 s{sT2}, v{vSTHI}, {R - 64}')
    a(f'v_lshrrev_b32 v40, 4, v{vLANE16}')
    a('v_add_u32 v41, 64, v40')
    a(f'v_mov_b32 v46, {R}')
    a(f's_mov_b32 s{sNC}, 0')
    a(f's_mov_b32 s{sC64}, s3')
    a('s_waitcnt lgkmcnt(0)')
    a('s_barrier')
    stamp(a, 1, 3)
    tr(a, 2)
    dbg(a, 8)
    dbg(a, 9, True)
    for k in (2, 3, 0, 1):
        a(f'ds_read_b32 v{T+4+k}, v{T+4+k} offset:{L_SORT}')
    for k in range(4):
        a(f'v_cmp_gt_u32 s[{64+2*k}:{65+2*k}], s{sT2}, v{T+k}')
    a('v_add_u32 v42, 1, v40')
    a('v_add_u32 v43, 16, v40')
    a('v_add_u32 v44, 1, v41')
    a('v_add_u32 v45, 16, v41')
    for k in (2, 3, 0, 1):
        r = T + 4 + k
        if k in (2, 0): a(f's_waitcnt lgkmcnt({2 if k == 2 else 0})')
        a(f'v_and_b32 v{r}, 127, v{r}')
        a(f'v_cndmask_b32_e64 v{r}, v46, v{r}, s[{64+2*k}:{65+2*k}]')
        a(f'v_med3_u32 v{r}, v{r}, v{42 + 2*(k & 1)}, v{43 + 2*(k & 1)}')
        a(f'v_min_u32 v{r}, v46, v{r}')
        if k == 3: a(f'v_lshl_or_b32 v{vNX64}, v{T+7}, 16, v{T+6}')
    a(f'v_lshl_or_b32 v{vNX32}, v{T+5}, 16, v{T+4}')
    chain_loop(a, vNX64, sC64)
    a(f's_cmp_lt_u32 s{sNC}, {R}')
    a.br('s_cbranch_scc1 L2_haveitem')
    a('s_waitcnt vmcnt(0)')
    a('s_barrier')
    a.br('s_branch L2_rounddone')
    a.label('L2_haveitem')
    if opt.prio: a('s_setprio 3')
    a(f's_mov_b32 s{sN0}, s{sNC}')
    chain_start(a, sE0)
    chain_step(a, vNX64)
    chain_start(a, sE1)
    a(f's_sub_u32 s{sNN}, s{sNC}, s{sN0}')
    a(f's_mov_b32 s{sXE0}, s{sE0}')
    a(f's_mov_b32 s{sXE1}, s{sE1}')
    emit(a, next_entry_read(TP))
    emit(a, next_mask(TP+4))
    a(f's_sub_u32 s{sC64}, 7, s3')
    a(f's_mov_b32 s{sC32}, s3')
    a('s_waitcnt lgkmcnt(0)')
    emit(a, next_stage(TP+4, TP+5))
    emit(a, off_reads(0))
    emit(a, pos_load(TP+5))
    a('s_waitcnt lgkmcnt(0)')
    emit(a, off_adds())
    emit(a, h_loads())
    a('s_waitcnt vmcnt(5)')
    a('s_barrier')
    a(f'v_mov_b32 v{vRES}, 0x40000000')
    emit(a, out_stores(vRES))
    if opt.prio: a('s_setprio 0')
    if opt.prio2 == 1:
        a('s_cmp_lt_u32 s3, 4')
        a('s_cbranch_scc1 L2_noprio')
        a('s_setprio 1')
        a.label('L2_noprio', settle=False)
    tr(a, 3)
    a.br('s_branch L2_head_A')
    head(a, 'B')
    head(a, 'A')
    tail(a, 'toC')
    head(a, 'C')
    newitem(a)
    tail(a, 'toA')
    tail(a, 'fin')
    a.label('L2_rounddone')
    tr(a, 30)
    stamp(a, 1, 4)
    a(f's_cmp_eq_u32 s{sMORE}, 0')
    a.br('s_cbranch_scc1 L2_fin')
    a('s_waitcnt vmcnt(0) lgkmcnt(0)')
    a('s_barrier')
    zero_counters('b')
    srd(a, sRES, 20, 0, R*512, mul=R*512)
    a('v_lshrrev_b32 v40, 2, v0')
    a('v_lshlrev_b32 v41, 6, v40')
    a(f'buffer_load_dword v42, v41, s[{sSLOT}:{sSLOT+3}], 0 offen')
    a('v_add_u32 v41, 8192, v41')
    a(f'buffer_load_dword v43, v41, s[{sSLOT}:{sSLOT+3}], 0 offen')
    a('v_and_b32 v39, 3, v0')
    a('v_lshlrev_b32 v39, 2, v39')
    a(f's_lshl_b32 s{sT0}, s{sROUND}, 4')
    a(f's_add_u32 s{sT1}, s{sT0}, {CAP}')
    a(f's_add_u32 s{sROUND}, s{sROUND}, 1')
    a(f'v_mul_u32_u24 v40, {CH*4}, v40')
    a('v_lshl_add_u32 v40, v39, 2, v40')
    a(f's_lshl_b32 s{sT0}, s{sT0}, 2')
    a(f'v_add_u32 v40, s{sT0}, v40')
    a('s_waitcnt vmcnt(0)')
    for h in range(2):
        a(f'v_lshrrev_b32 v44, 16, v{42+h}')
        a(f'v_lshl_add_u32 v44, v44, 2, v40')
        if h: a(f'v_add_u32 v44, {128*CH*4}, v44')
        a(f'buffer_load_dwordx4 v[{W+4*h}:{W+4*h+3}], v44, s[{sOVF}:{sOVF+3}], 0 offen')
        a(f'v_and_b32 v{CNT+h}, 0xffff, v{42+h}')
        a(f'v_subrev_u32 v{CNT+h}, s{sT1}, v{CNT+h}')
        a(f'v_med3_i32 v{LIM+h}, v{CNT+h}, 0, 16')
        a(f'v_subrev_u32 v{CNT+h}, 16, v{CNT+h}')
    a('s_waitcnt vmcnt(0) lgkmcnt(0)')
    a('s_barrier')
    a.br('s_branch L2_round')
    a.label('L2_fin')
    tr_dump(a)
    if opt.ts or opt.dbg:
        a('s_waitcnt vmcnt(0)')
        stamp(a, 1, 5)
        dbg(a, 10)
        dbg(a, 11, True)
    a.label('L2_end')
    a('s_endpgm')

def build():
    src = open('gather_scatter__molecular_angular_painn__graph.s.ref').read().split('\n')
    head = []
    for ln in src:
        if not ln.startswith(';'): break
        if '@launch' in ln or 'Override launch' in ln or 'grid=ceil' in ln: continue
        head.append(ln)
    k1, k2 = 'painn_bin_kernel', 'painn_msg_kernel'
    head.append(f'; @launch kernel={k1} grid=({NB},1,1) block=(1024,1,1) lds={K1_LDS}')
    head.append(f'; @launch kernel={k2} grid=({NB},1,1) block=(512,1,1) lds={K2_LDS}')
    a = Asm()
    a.raw('.amdgcn_target "amdgcn-amd-amdhsa--gfx950"\n.text')
    gen_k1(a, k1)
    gen_k2(a, k2)
    out = '\n'.join(head) + '\n' + a.text() + '.section .rodata,"a"\n' + descriptor(k1, 128) + descriptor(k2, K2_VGPR)
    return out

if __name__ == '__main__':
    outp = sys.argv[1]
    for kv in sys.argv[2:]:
        k, val = kv.split('=')
        setattr(opt, k, type(getattr(opt, k))(eval(val)))
    open(outp, 'w').write(build())
```

```python
import sys
from asmlib import Asm
import gen4 as g
from gen4 import *

NAME = 'gather_scatter__molecular_angular_painn__graph_kernel'
SS = 16512
EPOCH_OFF = SLOT_OFF + 250*SS
L_WRR = 125952
L_STAGE = 129024
L_W2R = 101376
opt.ng0 = 2; opt.hprio = 2; opt.rawpos = True; opt.pfres = 1; opt.wb = 2; opt.exact = 0; opt.ilv = 0; opt.drain = True; opt.dbg2 = False; opt.prewr = False; opt.g1st = 0; opt.yld = 0; opt.pfv = []; opt.diag = ''; opt.pfn = 2; opt.pfh = False; opt.fine = False; opt.tr0 = False; opt.hsc = 'sc1'; opt.rt = False; opt.spin = 16; opt.pk = True; opt.sleep = 2; opt.res_when = 'pre'; opt.prew = True; opt.pfw = True; opt.pollmask = True; opt.dumpsc = 'sc1'
sNB = 8
sEP = 100
sFI = 86
g.sFI = sFI
pLDS, pOFA, pOFB, pME, pM0, pT0, pPA, pPB, pN0, pNE, pWA, pWD, pWR, pHC, pHS = range(172, 187)
pRS = 188
sWRR = 12
sPC0 = 78
M_ENT = 0x00fffe7f; M_HDR = 0x00ffffff

def tr(a, tag):
    if not opt.tr: return
    a('s_memrealtime s[92:93]' if opt.rt else 's_memtime s[92:93]')
    a('s_mov_b32 m0, s27')
    a('s_add_u32 s27, s27, 1')
    a('s_waitcnt lgkmcnt(0)')
    a('s_lshl_b32 s92, s92, 6')
    a(f's_or_b32 s92, s92, {tag}')
    a('v_writelane_b32 v11, s92, m0')
_tr_plain = tr
DBGMAP = {48: 0, 4: 2, 7: 4, 9: 6, 21: 8, 31: 10}
def tr(a, tag):
    if not opt.dbg2: return _tr_plain(a, tag)
    if tag not in DBGMAP: return
    i = DBGMAP[tag]
    L = f'Ldbg{tag}'
    a.settle()
    a('s_mov_b32 s27, scc') if False else None
    a('s_cmp_lg_u32 s3, 0')
    a(f's_cbranch_scc1 {L}')
    a('s_memrealtime s[92:93]')
    a('s_mov_b64 s[94:95], exec')
    a('s_mov_b64 exec, 1')
    a('s_waitcnt lgkmcnt(0)')
    a('v_mov_b32 v255, s92')
    a(f'buffer_atomic_umax v255, off, s[96:99], 0 offset:{4*i + 4}')
    a('s_not_b32 s92, s92')
    a('s_nop 0')
    a('v_mov_b32 v11, s92')
    a(f'buffer_atomic_umax v11, off, s[96:99], 0 offset:{4*i}')
    a('s_mov_b64 exec, s[94:95]')
    a.label(L)
g.tr = tr
_tr_init = tr_init
def tr_init(a):
    if not opt.dbg2: return _tr_init(a)
    a('s_load_dwordx2 s[96:97], s[0:1], 72')
    a('s_waitcnt lgkmcnt(0)')
    a('s_mov_b32 s98, 64')
    a('s_mov_b32 s99, 0x20000')

def h_loads():
    return [f'buffer_load_dwordx4 v[{H+et*8+ks*4}:{H+et*8+ks*4+3}], v{HOFF+et}, s[{sH}:{sH+3}], 0 offen offset:{ks*64} {opt.hsc}'
            for et in range(2) for ks in range(2)]
def pos_load(u): return [f'v_and_b32 v{u-1}, -4, v{u}', f'buffer_load_dwordx2 v[{PS}:{PS+1}], v{u-1}, s[{sP4}:{sP4+3}], 0 offen']
g.h_loads = h_loads; g.pos_load = pos_load


def rare_paths(a):
    RK1, BINC, ENT = 136, 80, 96
    a.label('L1_ovf')
    a('s_cmp_ge_u32 s3, 4')
    a.br('s_cbranch_scc1 L1_ovf_based')
    a('v_lshlrev_b32 v40, 2, v0')
    a(f'v_add_u32 v40, {K1_CNT}, v40')
    a('ds_read_b32 v41, v40')
    a('s_waitcnt lgkmcnt(0)')
    a(f'v_cmp_lt_u32 vcc, {CAP}, v41')
    a('s_and_saveexec_b64 s[88:89], vcc')
    a.br('s_cbranch_execz L1_ovf_none')
    a(f'v_subrev_u32 v41, {CAP}, v41')
    a(f'v_mov_b32 v42, {K1_CNT + 1024}')
    a('ds_add_rtn_u32 v43, v42, v41')
    a('s_waitcnt lgkmcnt(0)')
    a(f'ds_write_b32 v40, v43 offset:{K1_OVB - K1_CNT}')
    a.label('L1_ovf_none')
    a('s_mov_b64 exec, s[88:89]')
    a.label('L1_ovf_based')
    a('s_waitcnt lgkmcnt(0)')
    a('s_barrier')
    srd(a, 88, 24, OVF_OFF, CH*4, mul=CH*4)
    for i in range(7):
        a('s_mov_b64 exec, -1')
        a(f'v_cmp_le_u32 vcc, {CAP}, v{RK1+i}')
        a(f's_and_b64 exec, vcc, s[{64+2*i}:{65+2*i}]')
        a.br(f's_cbranch_execz L1_ovf{i}')
        a(f'ds_read_b32 v40, v{BINC+i} offset:{K1_OVB - K1_CNT}')
        a('s_waitcnt lgkmcnt(0)')
        a(f'v_add_u32 v40, v40, v{RK1+i}')
        a(f'v_subrev_u32 v40, {CAP}, v40')
        a('v_lshlrev_b32 v40, 2, v40')
        a(f'buffer_store_dword v{ENT+i}, v40, s[88:91], 0 offen sc1')
        a.label(f'L1_ovf{i}')
    a('s_mov_b64 exec, -1')
    for h in range(2):
        a(f'ds_read_b32 v40, v{pHC} offset:{K1_OVB - K1_CNT + 512*h}')
        a(f'v_cmp_lt_u32 vcc, {CAP}, v{108+h}')
        a('s_waitcnt lgkmcnt(0)')
        a('v_lshlrev_b32 v40, 12, v40')
        a('v_cndmask_b32_e64 v40, 0, v40, vcc')
        a(f'v_or_b32 v{108+h}, v{108+h}, v40')
    a('s_waitcnt vmcnt(0)')
    a('s_barrier')
    a.br('s_branch L1_noovf')

def consts_poll(a):
    a('s_and_b32 s60, s2, 0xf0')
    a('s_and_b32 s61, s2, 7')
    a('s_lshl_b32 s61, s61, 1')
    a('s_or_b32 s60, s60, s61')
    a('s_bfe_u32 s61, s2, 0x10003')
    a('s_or_b32 s60, s60, s61')
    a('s_lshl_b32 s60, s60, 6')
    a(f's_add_u32 s60, s60, {SLOT_OFF}')
    a(f's_add_u32 s{sSLOT}, s24, s60')
    a(f's_addc_u32 s{sSLOT+1}, s25, 0')
    a(f's_mov_b32 s{sSLOT+2}, {(NB-1)*SS + 64}')
    a(f's_mov_b32 s{sSLOT+3}, 0x20000')
    a('v_lshrrev_b32 v43, 2, v0')
    a(f'v_mul_u32_u24 v43, {SS}, v43')
    a(f'v_add_u32 v{pPA}, v{pPA}, v43')
    a(f'v_add_u32 v{pPB}, {128*SS}, v{pPA}')
    a(f'v_not_b32 v{pNE}, v{pME}')
    a('v_cmp_gt_u32 vcc, 488, v0')
    a('s_mov_b64 s[64:65], vcc')

def consts_late(a):
    a(f's_and_b32 s{sF+3}, s{sF+1}, 0xffff0000')
    a(f's_lshl_b32 s{sF+2}, s{sF+1}, 16')
    a(f's_and_b32 s{sF+1}, s{sF}, 0xffff0000')
    a(f's_lshl_b32 s{sF}, s{sF}, 16')
    srd(a, sSV, 4, 0, 0 if 'V' in opt.diag else N*512)
    srd(a, sH, 24, H_OFF, 0 if 'H' in opt.diag else N*128)
    srd(a, sOUT, 20, 0, 0 if 'S' in opt.diag else R*512, mul=R*512)
    srd(a, sOVF, 24, OVF_OFF, NB*CH*4)
    a(f'v_bfe_u32 v44, v{vLANE16}, 4, 4')
    a(f'v_lshrrev_b32 v45, 8, v{vLANE16}')
    a('v_lshrrev_b32 v43, 2, v44')
    a('v_lshlrev_b32 v43, 3, v43')
    a('v_and_b32 v40, 3, v44')
    a('v_add_u32 v43, v43, v40')
    a(f's_mul_i32 s{sSTG}, s3, {STG}')
    a(f's_add_u32 s{sSTG}, s{sSTG}, {L_STG}')
    a(f's_sub_u32 s{sSD}, {L_SORT}, s{sSTG}')
    a(f'v_lshl_add_u32 v{vHA}, v43, 2, s{sSTG}')
    a('v_and_b32 v40, 1, v45')
    a('v_lshl_add_u32 v43, v40, 2, v43')
    a('v_lshrrev_b32 v40, 1, v45')
    a('v_lshl_add_u32 v43, v40, 5, v43')
    a(f'v_lshl_add_u32 v{vSTGW}, v43, 2, s{sSTG}')
    a(f'v_lshl_add_u32 v{vSTGH}, v43, 1, s{sSTG}')
    a(f'v_lshl_add_u32 v{vSTGR}, v45, 5, s{sSTG}')
    a(f'v_lshl_add_u32 v{vSTGS}, v45, 4, s{sSTG}')
    emit_Q(a, vLPV, 44, 40)
    a(f'v_lshlrev_b32 v{vLPV}, 3, v{vLPV}')
    a(f'v_lshl_add_u32 v{vLPR}, v44, 9, v{vLPH}')
    a(f'v_lshl_or_b32 v{vQQ}, v44, 16, v44')
    a(f's_mov_b32 s{sROUND}, 0')
    a(f'v_lshrrev_b32 v40, 1, v45')
    for k in range(4):
        a(f'v_add_u32 v{pRS+k}, {2*k}, v40')
        a(f'v_lshlrev_b32 v{pRS+k}, 5, v{pRS+k}')
        a(f'v_xor_b32 v{pRS+k}, v{pRS+k}, v{vLANE16}')
    a('v_and_b32 v39, 3, v0')
    a('v_lshlrev_b32 v39, 2, v39')
    a('v_subrev_u32 v39, 1, v39')

def build_weights(a):
    a('s_and_b32 s60, s3, 1')
    a(f's_mul_i32 s60, s60, {32*384}')
    a('s_bfe_u32 s62, s3, 0x20001')
    a('s_lshl_b32 s62, s62, 1')
    a('s_add_u32 s60, s60, s62')
    a(f's_add_u32 s60, s60, {L_W2R}')
    a(f'v_mul_u32_u24 v{pWA}, 96, v{vLPH}')
    a(f'v_add3_u32 v{pWA}, v{pWA}, v{vLPV}, s60')
    a('s_lshl_b32 s60, s3, 10')
    a(f'v_add_u32 v{pWD}, s60, v{vLANE16}')
    a(f'v_lshrrev_b32 v{pWR}, 3, v{vLPH}')
    a(f'v_add_u32 v{pWR}, v{pWR}, v{vLPV}')
    a(f'v_add_u32 v{pWR}, {L_WRR}, v{pWR}')
    for p in range(3):
        for k in range(4):
            a(f'ds_read_u16 v{104+4*p+k}, v{pWR} offset:{k*384 + p*128}')
    a('s_waitcnt lgkmcnt(0)')
    for p in range(3):
        for jj in range(8):
            if p and jj == 5: a('s_waitcnt lgkmcnt(11)')
            a(f'ds_read_u16 v{64+8*(p&1)+jj}, v{pWA} offset:{p*128 + (16*(jj>>2) + (jj&3))*384}')
        if p == 0:
            for pp in range(3):
                for i in range(2):
                    a(f'v_lshl_or_b32 v{WR+2*pp+i}, v{105+4*pp+2*i}, 16, v{104+4*pp+2*i}')
        if p:
            q = p - 1
            a('s_waitcnt lgkmcnt(8)')
            for i in range(4): a(f'v_lshl_or_b32 v{80+i}, v{65+8*(q&1)+2*i}, 16, v{64+8*(q&1)+2*i}')
            a(f'ds_write_b128 v{pWD}, v[80:83] offset:{q*8192}')
    a('s_waitcnt lgkmcnt(1)')
    for i in range(4): a(f'v_lshl_or_b32 v{84+i}, v{65+2*i}, 16, v{64+2*i}')
    a(f'ds_write_b128 v{pWD}, v[84:87] offset:{2*8192}')

def gen(a):
    header(a, NAME)
    a('s_cmp_ge_u32 s2, %d' % NB)
    a('s_cbranch_scc1 L_end')
    a('s_load_dwordx8 s[4:11], s[0:1], 0')
    a('s_load_dwordx8 s[12:19], s[0:1], 32')
    a('s_load_dwordx2 s[20:21], s[0:1], 64')
    a('s_load_dwordx2 s[24:25], s[0:1], 80')
    a('v_lshrrev_b32 v40, 6, v0')
    a('v_and_b32 v41, 63, v0')
    a('v_readfirstlane_b32 s3, v40')
    a(f'v_lshlrev_b32 v{vLANE16}, 4, v41')
    a('v_lshlrev_b32 v42, 4, v0')
    a('v_and_b32 v44, 15, v41')
    a('v_lshrrev_b32 v45, 4, v41')
    a(f'v_lshlrev_b32 v{vLPH}, 4, v45')
    a('s_and_b32 s60, s3, 3')
    a('s_lshl_b32 s60, s60, 4')
    a('v_add_u32 v46, s60, v44')
    a(f'v_lshl_add_u32 v64, v46, 9, v{vLPH}')
    a(f'v_lshl_add_u32 v65, v46, 7, v{vLPH}')
    a('v_lshrrev_b32 v43, 2, v42')
    a('s_waitcnt lgkmcnt(0)')
    if opt.tr0:
        tr_init(a); tr(a, 48)
    srd(a, 72, 6, 0, N*6)
    srd(a, sP4, 6, 0, 0 if 'P' in opt.diag else N*6)
    a('s_lshr_b32 s63, s2, 3')
    def group():
        a('s_sub_u32 s61, s60, 37')
        a('s_cmp_ge_u32 s60, 37')
        a('s_cselect_b32 s60, s61, s60')
        a('s_lshl_b32 s61, s60, 12')
        a('s_mov_b32 m0, s61')
        a(f's_add_u32 s60, s60, {group.step}')
        for k in range(4):
            a(f'buffer_load_dwordx4 v{vLANE16}, s[72:75], s61 offen offset:{1024*k} lds')
    NG = opt.ng0
    a('s_add_u32 s60, s63, s3')
    group.step = 8
    for i in range(opt.g1st): group()
    srd(a, 76, 14, 0, 8192)
    a('s_lshl_b32 s61, s3, 10')
    a(f's_add_u32 m0, s61, {K1_W1}')
    a('s_nop 0')
    a(f'buffer_load_dwordx4 v{vLANE16}, s[76:79], s61 offen lds')
    srd(a, sRES, 4, 0, R*512, mul=R*512)
    S = 68
    a('s_cmp_lt_u32 s3, 4')
    a('s_cbranch_scc1 L1_nos')
    a(f'buffer_load_dwordx4 v[{S}:{S+3}], v64, s[{sRES}:{sRES+3}], 0 offen')
    a(f'buffer_load_dwordx4 v[{S+4}:{S+7}], v64, s[{sRES}:{sRES+3}], 0 offen offset:64')
    a(f'v_add_u32 v64, {64*512}, v64')
    a(f'buffer_load_dwordx4 v[{S+8}:{S+11}], v64, s[{sRES}:{sRES+3}], 0 offen')
    a(f'buffer_load_dwordx4 v[{S+12}:{S+15}], v64, s[{sRES}:{sRES+3}], 0 offen offset:64')
    a.label('L1_nos', settle=False)
    SRC, DST = 48, 56
    srd(a, 64, 8, 0, CH*4, mul=CH*4)
    srd(a, 68, 10, 0, CH*4, mul=CH*4)
    nt = 'nt' if opt.nt_edges else ''
    a('v_lshrrev_b32 v47, 1, v42')
    a('v_add_u32 v47, 8192, v47')
    a(f'buffer_load_dwordx4 v[{SRC}:{SRC+3}], v42, s[64:67], 0 offen {nt}')
    a(f'buffer_load_dwordx4 v[{DST}:{DST+3}], v42, s[68:71], 0 offen {nt}')
    a(f'buffer_load_dwordx2 v[{SRC+4}:{SRC+5}], v47, s[64:67], 0 offen {nt}')
    a(f'buffer_load_dwordx2 v[{DST+4}:{DST+5}], v47, s[68:71], 0 offen {nt}')
    a(f'v_add_u32 v47, {12288 - 512}, v43')
    a('s_sub_u32 s61, s3, 2')
    a('s_cmp_lt_u32 s61, 2')
    a('s_cselect_b32 s62, 0, 0x40000000')
    a('v_add_u32 v47, s62, v47')
    a(f'buffer_load_dword v{SRC+6}, v47, s[64:67], 0 offen {nt}')
    a(f'buffer_load_dword v{DST+6}, v47, s[68:71], 0 offen {nt}')
    a(f's_add_u32 s88, s24, {EPOCH_OFF}')
    a('s_addc_u32 s89, s25, 0')
    a(f's_load_dword s{sEP}, s[88:89], 0')
    a(f's_load_dwordx2 s[{sF}:{sF+1}], s[12:13], 0')
    for i in range(NG - opt.g1st): group()
    if not opt.tr0: tr_init(a)
    tr(a, 1)
    a('v_mov_b32 v40, 0')
    a(f'v_add_u32 v47, {K1_CNT}, v43')
    a('s_cmp_ge_u32 s3, 5')
    a('s_cbranch_scc1 L1_nozero')
    a('ds_write_b32 v47, v40')
    a.label('L1_nozero', settle=False)
    a(f's_waitcnt vmcnt({6 + 4*(NG - opt.g1st)}) lgkmcnt(0)')
    a('s_mov_b32 s84, -100')
    a(f's_mov_b32 s85, {K1_CNT}')
    a(f's_mov_b32 s86, {L_STAGE}')
    a('v_mov_b32 v47, 80')
    a('s_barrier')
    tr(a, 2)
    a('s_cmp_ge_u32 s3, 4')
    a('s_cbranch_scc1 L1_hpath')
    AS, AD = 64, 72
    BINC, BINS, ENT = 80, 88, 96
    P = 104
    RK1 = 136
    def prep(i):
        a(f'v_mul_u32_u24 v40, 5243, v{DST+i}')
        a(f'v_mul_u32_u24 v{AS+i}, 6, v{SRC+i}')
        a(f'v_lshrrev_b32 v40, 19, v40')
        a(f'v_mul_u32_u24 v{AD+i}, 6, v{DST+i}')
        a(f'v_mad_i32_i24 v41, v40, s84, v{DST+i}')
        a(f'v_lshl_add_u32 v{BINC+i}, v40, 2, s85')
        a(f'v_lshl_or_b32 v{ENT+i}, v{SRC+i}, 9, v41')
        a(f'v_mad_u32_u24 v{BINS+i}, v40, v47, s86')
        a(f'v_and_b32 v{SRC+i}, -4, v{AS+i}')
        a(f'v_and_b32 v{DST+i}, -4, v{AD+i}')
    a('s_add_u32 s60, s63, s3')
    a(f's_add_u32 s60, s60, {8*NG}')
    a('s_sub_u32 s61, s60, 37')
    a('s_cmp_ge_u32 s60, 37')
    a('s_cselect_b32 s60, s61, s60')
    group.step = 4
    rest = 37 - 8*NG
    for i in range((rest + 3)//4):
        if 4*i + 3 >= rest:
            a(f's_cmp_ge_u32 s3, {rest - 4*i}')
            a('s_cbranch_scc1 L1_tabdone')
        group()
        if opt.ilv and i == opt.ilv - 1:
            a(f's_waitcnt vmcnt({4*(NG - opt.g1st) + 4*opt.ilv})')
            prep(0); prep(1)
        if opt.ilv and i == opt.ilv: prep(2); prep(3)
        if opt.ilv and i == opt.ilv + 1: prep(4); prep(5); prep(6)
    a.label('L1_tabdone', settle=False)
    if opt.fine: tr(a, 54)
    a(f's_waitcnt vmcnt({4*(NG - opt.g1st) + 4*(rest//4)})')
    a('s_branch L1_consts')
    a.label('L1_hpath', settle=False)
    if opt.hprio: a(f's_setprio {opt.hprio}')
    srd(a, 76, 24, H_OFF, R*128, mul=R*128)
    a('v_lshrrev_b32 v66, 2, v44')
    a('v_lshl_add_u32 v66, v45, 3, v66')
    a('v_and_b32 v67, 3, v44')
    a('v_lshlrev_b32 v67, 3, v67')
    a('v_lshl_add_u32 v66, v66, 7, v67')
    a(f'v_add_u32 v66, {K1_W1}, v66')
    FR = 100
    for ht in range(4):
        for ks in range(2):
            r = FR + (ht*2+ks)*4
            if ht == 3 and ks == 0: a('s_waitcnt lgkmcnt(4)')
            for hf in range(2):
                a(f'ds_read_b64_tr_b16 v[{r+2*hf}:{r+2*hf+1}], v66 offset:{ks*4096 + ht*32 + hf*512}')
    D = 132; O = 148; Tt = 164
    a('s_waitcnt lgkmcnt(0)')
    for t in range(2):
        if t == 1:
            a('s_cmp_eq_u32 s3, 7')
            a.br('s_cbranch_scc1 L1_hdone')
        for ht in range(4):
            a(f'v_mfma_f32_16x16x32_bf16 v[{D+4*ht}:{D+4*ht+3}], v[{FR+ht*8}:{FR+ht*8+3}], v[{S+8*t}:{S+8*t+3}], 0')
            a(f'v_mfma_f32_16x16x32_bf16 v[{D+4*ht}:{D+4*ht+3}], v[{FR+ht*8+4}:{FR+ht*8+7}], v[{S+8*t+4}:{S+8*t+7}], v[{D+4*ht}:{D+4*ht+3}]')
        for grp in range(4):
            for i in range(4): a(f'v_cvt_pk_bf16_f32 v{D+4*grp+i}, 0, v{D+4*grp+i}')
            for i in range(4): a(f'v_mul_f32 v{Tt+i}, {fl(-1.4426950408889634)}, v{D+4*grp+i}')
            for i in range(4): a(f'v_exp_f32 v{Tt+i}, v{Tt+i}')
            for i in range(4): a(f'v_add_f32 v{Tt+i}, 1.0, v{Tt+i}')
            for i in range(4): a(f'v_rcp_f32 v{Tt+i}, v{Tt+i}')
            for i in range(4): a(f'v_mul_f32 v{Tt+i}, v{Tt+i}, v{D+4*grp+i}')
            a(f'v_cvt_pk_bf16_f32 v{O+8*t+2*grp}, v{Tt}, v{Tt+1}')
            a(f'v_cvt_pk_bf16_f32 v{O+8*t+2*grp+1}, v{Tt+2}, v{Tt+3}')
        if t == 0:
            O2 = O
        else:
            pass
    a.label('L1_hdone')
    if opt.fine: tr(a, 57)
    a(f'buffer_store_dwordx4 v[{O}:{O+3}], v65, s[76:79], 0 offen sc1')
    a(f'buffer_store_dwordx4 v[{O+4}:{O+7}], v65, s[76:79], 0 offen offset:64 sc1')
    a(f'v_add_u32 v65, {64*128}, v65')
    a(f'buffer_store_dwordx4 v[{O+8}:{O+11}], v65, s[76:79], 0 offen sc1')
    a(f'buffer_store_dwordx4 v[{O+12}:{O+15}], v65, s[76:79], 0 offen offset:64 sc1')
    a(f's_waitcnt vmcnt({4*(NG - opt.g1st) + 4})')
    if opt.ilv:
        for i in range(7): prep(i)
    a.label('L1_consts')
    if opt.fine: tr(a, 55)
    a('s_waitcnt lgkmcnt(0)')
    a(f's_add_u32 s{sEP}, s{sEP}, 1')
    for j in (1, 2, 3):
        a(f's_lshr_b32 s60, s{sEP}, {10*(j-1)}')
        a('s_lshl_b32 s61, s60, 24')
        a('s_lshr_b32 s60, s60, 1')
        a('s_and_b32 s60, s60, 0x180')
        a(f's_or_b32 s{sNB+j}, s60, s61')
    a(f's_xor_b32 s{sNB}, s{sNB+1}, 0xff000180')
    srd(a, sW2F, 16, 0, 64*192*2)
    srd(a, sWRR, 18, 0, 4*192*2)
    a(f'v_mov_b32 v{vMHI}, 0xffff0000')
    a('v_lshrrev_b32 v43, 2, v0')
    a('v_and_b32 v40, 0xf0, v43')
    a('v_bfe_u32 v46, v43, 1, 3')
    a('v_or_b32 v40, v40, v46')
    a('v_and_b32 v46, 1, v43')
    a('v_lshl_or_b32 v40, v46, 3, v40')
    a('v_and_b32 v46, 3, v0')
    a(f'v_lshlrev_b32 v{pPA}, 4, v46')
    a(f'v_lshlrev_b32 v{pHC}, 2, v40')
    a(f'v_add_u32 v{pHC}, {K1_CNT}, v{pHC}')
    a('v_mul_u32_u24 v40, 80, v40')
    a(f'v_add_u32 v40, v40, v{pPA}')
    a(f'v_add_u32 v{pLDS}, {L_STAGE}, v40')
    a(f'v_lshlrev_b32 v{pOFA}, 4, v0')
    a(f'v_add_u32 v{pOFB}, 8192, v{pOFA}')
    a(f'v_mov_b32 v{pME}, {M_ENT}')
    a(f'v_mov_b32 v{pM0}, {M_HDR}')
    a(f'v_cmp_eq_u32 s[{sPC0}:{sPC0+1}], 0, v46')
    a(f'v_add_u32 v{pHS}, {K1_CNT}, v{vLANE16}')
    a(f'v_cndmask_b32_e64 v{pM0}, v{pME}, v{pM0}, s[{sPC0}:{sPC0+1}]')
    a(f'v_not_b32 v{pN0}, v{pM0}')
    a(f'v_and_b32 v{pT0}, s{sNB}, v{pN0}')
    if opt.fine: tr(a, 56)
    a(f's_mov_b32 s60, {fl([opt.thr, 24.07, 23.9][opt.exact])}')
    if not opt.ilv:
        for i in range(7): prep(i)
    a(f's_mul_i32 s87, s2, {R}')
    a(f'v_lshrrev_b32 v41, 4, v{vLANE16}')
    a('v_add_u32 v132, s87, v41')
    a('v_add_u32 v133, 64, v132')
    for h in range(2):
        a(f'v_mul_u32_u24 v{132+h}, 6, v{132+h}')
        a(f'v_and_b32 v{134+h}, -4, v{132+h}')
    a('v_mov_b32 v46, 1')
    if opt.hprio: a('s_setprio 0')
    tr(a, 3)
    a('s_cmp_ge_u32 s3, 4')
    a('s_cbranch_scc1 L1_b1')
    a('s_waitcnt vmcnt(0)')
    a.label('L1_b1', settle=False)
    a('s_waitcnt vmcnt(4) lgkmcnt(0)')
    a('s_barrier')
    tr(a, 4)
    def reads(i):
        a(f'ds_read2_b32 v[{P+4*i}:{P+4*i+1}], v{SRC+i} offset1:1')
        a(f'ds_read2_b32 v[{P+4*i+2}:{P+4*i+3}], v{DST+i} offset1:1')
    def test(i):
        p, q = P+4*i, P+4*i+2
        a(f'v_alignbyte_b32 v40, v{p+1}, v{p}, v{AS+i}')
        a(f'v_alignbyte_b32 v41, v{p+1}, v{p+1}, v{AS+i}')
        a(f'v_alignbyte_b32 v42, v{q+1}, v{q}, v{AD+i}')
        a(f'v_alignbyte_b32 v43, v{q+1}, v{q+1}, v{AD+i}')
        a(f'v_lshlrev_b32 v{p}, 16, v40')
        a(f'v_lshlrev_b32 v{q}, 16, v42')
        a(f'v_and_b32 v40, v{vMHI}, v40')
        a(f'v_and_b32 v42, v{vMHI}, v42')
        a(f'v_lshlrev_b32 v41, 16, v41')
        a(f'v_lshlrev_b32 v43, 16, v43')
        a(f'v_sub_f32 v{p}, v{p}, v{q}')
        a(f'v_sub_f32 v40, v40, v42')
        a(f'v_sub_f32 v41, v41, v43')
        if opt.exact == 2:
            for r in (p, 40, 41): a(f'v_cvt_pk_bf16_f32 v{r}, 0, v{r}')
            for r in (p, 40, 41): a(f'v_mul_f32 v{r}, v{r}, v{r}')
            for r in (p, 40, 41): a(f'v_cvt_pk_bf16_f32 v{r}, 0, v{r}')
            a(f'v_add_f32 v{p}, v{p}, v40')
            a(f'v_add_f32 v{p}, v{p}, v41')
            a(f'v_cvt_pk_bf16_f32 v{p}, 0, v{p}')
        else:
            if opt.exact == 1:
                for r in (p, 40, 41): a(f'v_cvt_pk_bf16_f32 v{r}, 0, v{r}')
            a(f'v_mul_f32 v{p}, v{p}, v{p}')
            a(f'v_fmac_f32 v{p}, v40, v40')
            a(f'v_fmac_f32 v{p}, v41, v41')
        a(f'v_cmp_ngt_f32 s[{64+2*i}:{65+2*i}], v{p}, s60')
    def rank(i):
        a(f's_mov_b64 exec, s[{64+2*i}:{65+2*i}]')
        a(f'ds_add_rtn_u32 v{RK1+i}, v{BINC+i}, v46')
        a('s_mov_b64 exec, -1')
    for i in range(6): reads(i)
    if opt.prewr:
        srd(a, 88, 24, SLOT_OFF, 16384, mul=SS)
        for k in range(4): a(f'v_mov_b32 v{168+k}, 0')
        for h in range(2):
            a(f'buffer_store_dwordx4 v[168:171], v{pOFA+h}, s[88:91], 0 offen sc1')
    if opt.pfres:
        a(f's_lshl_b32 s84, s3, 12')
        for k in range(4):
            a(f'buffer_load_dwordx4 v[164:167], v{vLANE16}, s[{sRES}:{sRES+3}], s84 offen offset:{1024*k}')
        if opt.pfres > 1:
            a('s_add_u32 s84, s84, 32768')
            for k in range(4):
                a(f'buffer_load_dwordx4 v[164:167], v{vLANE16}, s[{sRES}:{sRES+3}], s84 offen offset:{1024*k}')
    if opt.prew or opt.pfw:
        a('s_sub_u32 s84, s3, 4')
        a('s_cmp_ge_u32 s84, 3')
        a('s_cbranch_scc1 L1_notouch')
    if opt.pfw:
        a('s_lshr_b32 s85, s2, 3')
        a('s_mul_i32 s85, s85, 768')
        a('s_lshl_b32 s86, s84, 8')
        a('s_add_u32 s85, s85, s86')
        a(f'v_and_b32 v47, 0xf0, v{vLANE16}')
        a('v_add_u32 v47, s85, v47')
        a(f'buffer_load_dwordx4 v[168:171], v47, s[{sW2F}:{sW2F+3}], 0 offen')
    if opt.prew:
        srd(a, 88, 24, SLOT_OFF, 16384, mul=SS)
        a(f'v_subrev_u32 v47, 4096, v{pOFA}')
        for k in range(6):
            a('buffer_load_dwordx4 v[168:171], v47, s[88:91], 0 offen')
            if k < 5: a('v_add_u32 v47, 3072, v47')
        a(f's_mov_b32 s{sROUND}, 0')
    if opt.prew or opt.pfw:
        a.label('L1_notouch', settle=False)
    a('s_mov_b64 s[76:77], 0')
    a('s_sub_u32 s84, s3, 2')
    a('s_cmp_lt_u32 s84, 2')
    a('s_cbranch_scc0 L1_six')
    a('s_waitcnt lgkmcnt(10)')
    test(0)
    reads(6)
    a('s_waitcnt lgkmcnt(0)')
    test(6)
    a.br('s_branch L1_rest')
    a.label('L1_six')
    a('s_cmp_lg_u32 s3, 7')
    a('s_cbranch_scc1 L1_notw7')
    a('s_waitcnt lgkmcnt(8)')
    for h in range(2):
        a(f'ds_read2_b32 v[{152+2*h}:{153+2*h}], v{134+h} offset1:1')
    a('s_waitcnt lgkmcnt(0)')
    for h in range(2):
        a(f'v_alignbyte_b32 v{156+2*h}, v{153+2*h}, v{152+2*h}, v{132+h}')
        a(f'v_alignbyte_b32 v{157+2*h}, v{153+2*h}, v{153+2*h}, v{132+h}')
        a(f'v_lshlrev_b32 v{144+4*h}, 16, v{156+2*h}')
        a(f'v_and_b32 v{145+4*h}, v{vMHI}, v{156+2*h}')
        a(f'v_lshlrev_b32 v{146+4*h}, 16, v{157+2*h}')
        a(f'v_mov_b32 v{147+4*h}, 0')
    a.label('L1_notw7')
    a('s_waitcnt lgkmcnt(10)')
    test(0)
    a.label('L1_rest')
    for i in range(1, 6):
        a(f's_waitcnt lgkmcnt({2*(5-i)})')
        test(i)
    for i in (6, 0, 1, 2, 3, 4, 5):
        a(f's_mov_b64 exec, s[{64+2*i}:{65+2*i}]')
        a(f'ds_add_rtn_u32 v{RK1+i}, v{BINC+i}, v46')
    a('s_mov_b64 exec, -1')
    a('s_waitcnt lgkmcnt(0)')
    a('s_barrier')
    tr(a, 5)
    a(f's_mul_i32 s{sT0}, s3, 3072')
    a(f's_add_u32 m0, s{sT0}, {L_W2R}')
    a(f's_lshl_b32 s{sT1}, s3, 10')
    a(f's_min_u32 s{sT2}, s{sT1}, 2048')
    for i in range(3):
        a(f'buffer_load_dwordx4 v{vLANE16}, s[{sW2F}:{sW2F+3}], s{sT0} offen offset:{1024*i} lds')
    a(f's_add_u32 m0, s{sT2}, {L_WRR}')
    a(f'ds_read_b128 v[104:107], v{pHS}')
    a(f'buffer_load_dwordx4 v{vLANE16}, s[{sWRR}:{sWRR+3}], s{sT1} offen lds')
    a(f'ds_read_b32 v108, v{pHC}')
    a(f'ds_read_b32 v109, v{pHC} offset:512')
    if opt.fine: tr(a, 50)
    for i in range(7):
        a(f'v_min_u32 v40, {CAP}, v{RK1+i}')
        a(f'v_lshl_add_u32 v{BINS+i}, v40, 2, v{BINS+i}')
    for i in range(7):
        a(f's_mov_b64 exec, s[{64+2*i}:{65+2*i}]')
        a(f'ds_write_b32 v{BINS+i}, v{ENT+i} offset:4')
    a('s_mov_b64 exec, -1')
    if opt.fine: tr(a, 51)
    def zero_counters(tag):
        a('s_cmp_ge_u32 s3, 2')
        a(f's_cbranch_scc1 L2_nozero{tag}')
        a('v_lshlrev_b32 v42, 2, v0')
        a('v_mov_b32 v44, 0')
        a(f'ds_write_b32 v42, v44 offset:{L_NCNT}')
        a.label(f'L2_nozero{tag}', settle=False)
    zero_counters('a')
    a('s_cmp_lg_u32 s3, 7')
    a('s_cbranch_scc1 L1_join')
    for h in range(2):
        a(f'ds_write_b128 v{vLANE16}, v[{144+4*h}:{147+4*h}] offset:{L_DPOS + 1024*h}')
    a.label('L1_join', settle=False)
    srd(a, 84, 24, SLOT_OFF, 16384, mul=SS)
    if opt.fine: tr(a, 52)
    n7 = 4 + [0, 4, 8][opt.pfres] + (2 if opt.prewr else 0)
    if opt.prew or opt.pfw:
        a('s_cmp_lg_u32 s3, 7')
        a('s_cbranch_scc1 L1_b3')
        a(f's_waitcnt vmcnt({n7})')
        a.label('L1_b3', settle=False)
    a('s_waitcnt vmcnt(%d) lgkmcnt(0)' % (n7 + (6 if opt.prew else 0) + (1 if opt.pfw else 0)))
    if opt.fine: tr(a, 53)
    a('v_max3_u32 v104, v104, v105, v106')
    a('v_max_u32 v104, v104, v107')
    a(f'v_cmp_lt_u32 vcc, {CAP}, v104')
    a('s_barrier')
    tr(a, 6)
    W = V
    a(f'ds_read_b128 v[{W}:{W+3}], v{pLDS}')
    a(f'ds_read_b128 v[{W+4}:{W+7}], v{pLDS} offset:{128*80}')
    a('s_cbranch_vccnz L1_ovf')
    a.label('L1_noovf', settle=False)
    for h in range(2):
        a(f's_waitcnt lgkmcnt({1-h})')
        a(f'v_cndmask_b32_e64 v{W+4*h}, v{W+4*h}, v{108+h}, s[{sPC0}:{sPC0+1}]')
        for j in (1, 2, 3):
            a(f'v_and_or_b32 v{W+4*h+j}, v{W+4*h+j}, v{pME}, s{sNB+j}')
        a(f'v_and_or_b32 v{W+4*h}, v{W+4*h}, v{pM0}, v{pT0}')
        a(f'buffer_store_dwordx4 v[{W+4*h}:{W+4*h+3}], v{pOFA+h}, s[84:87], 0 offen {opt.dumpsc}')
    tr(a, 7)
    consts_poll(a)
    if opt.wb == 1:
        emit_Q(a, vLPV, 44, 40) if False else None
    def res_image(tag):
        if tag == 'b':
            a(f'v_lshrrev_b32 v40, 9, v{vLANE16}')
            for k in range(4):
                a(f'v_add_u32 v{pRS+k}, {2*k}, v40')
                a(f'v_lshlrev_b32 v{pRS+k}, 5, v{pRS+k}')
                a(f'v_xor_b32 v{pRS+k}, v{pRS+k}, v{vLANE16}')
        a(f's_lshl_b32 s{sT0}, s3, 12')
        a(f's_add_u32 m0, s{sT0}, {L_RES}')
        a('s_cmp_ge_u32 s3, 5')
        for k in range(4):
            a(f'buffer_load_dwordx4 v{pRS+k}, s[{sRES}:{sRES+3}], s{sT0} offen offset:{1024*k} sc1 lds')
        a(f's_cbranch_scc1 L2_resdone{tag}')
        a(f's_add_u32 s{sT0}, s{sT0}, 32768')
        a(f's_add_u32 m0, s{sT0}, {L_RES}')
        a('s_cmp_eq_u32 s3, 4')
        for k in range(4):
            if k == 2: a(f's_cbranch_scc1 L2_resdone{tag}')
            a(f'buffer_load_dwordx4 v{pRS+k}, s[{sRES}:{sRES+3}], s{sT0} offen offset:{1024*k} sc1 lds')
        a.label(f'L2_resdone{tag}', settle=False)
    a(f's_mov_b32 s61, {1 << opt.spin}')
    a('s_waitcnt vmcnt(2)')
    a('s_barrier')
    tr(a, 23)
    if opt.wb == 1:
        consts_late(a); build_weights(a)
    if opt.wb == 2: consts_late(a)
    if opt.res_when == 'drain':
        res_image('a')
        a('s_waitcnt vmcnt(4)')
    elif opt.drain:
        a('s_waitcnt vmcnt(0)')
    else:
        a('s_nop 1')
    tr(a, 8)
    a(f'buffer_load_dwordx4 v[{W}:{W+3}], v{pPA}, s[{sSLOT}:{sSLOT+3}], 0 offen sc1')
    a(f'buffer_load_dwordx4 v[{W+4}:{W+7}], v{pPB}, s[{sSLOT}:{sSLOT+3}], 0 offen sc1')
    if opt.res_when == 'mid': res_image('a')
    if opt.wb == 0: consts_late(a)
    if opt.wb != 1: build_weights(a)
    a('s_waitcnt vmcnt(4)' if opt.res_when == 'mid' else 's_waitcnt vmcnt(0)')
    a.label('L2_poll')
    if opt.fine: tr(a, 24)
    for h in range(2):
        w = W + 4*h
        a(f'v_xor_b32 v{61+h}, v{pT0}, v{w}')
        a(f'v_and_b32 v{61+h}, v{pN0}, v{61+h}')
        for j in (1, 2, 3):
            a(f'v_xor_b32 v63, s{sNB+j}, v{w+j}')
            a(f'v_and_or_b32 v{61+h}, v63, v{pNE}, v{61+h}')
    a('v_cmp_ne_u32 vcc, 0, v61')
    a('v_cmp_ne_u32 s[66:67], 0, v62')
    a('s_and_b64 s[66:67], s[66:67], s[64:65]')
    a('s_or_b64 s[68:69], s[66:67], vcc')
    a.br('s_cbranch_scc0 L2_polled')
    a('s_sub_u32 s61, s61, 1')
    a('s_cmp_eq_u32 s61, 0')
    a.br('s_cbranch_scc1 L2_polled')
    if opt.sleep: a(f's_sleep {opt.sleep}')
    if opt.pollmask:
        a('s_mov_b64 exec, vcc')
        a('s_cbranch_execz L2_nopollA')
    a(f'buffer_load_dwordx4 v[{W}:{W+3}], v{pPA}, s[{sSLOT}:{sSLOT+3}], 0 offen sc1')
    if opt.pollmask:
        a.label('L2_nopollA', settle=False)
        a('s_mov_b64 exec, s[66:67]')
        a('s_cbranch_execz L2_nopollB')
    a(f'buffer_load_dwordx4 v[{W+4}:{W+7}], v{pPB}, s[{sSLOT}:{sSLOT+3}], 0 offen sc1')
    if opt.pollmask:
        a.label('L2_nopollB', settle=False)
        a('s_mov_b64 exec, -1')
    a('s_waitcnt vmcnt(0)')
    a.br('s_branch L2_poll')
    a.label('L2_polled')
    tr(a, 9)
    if opt.res_when == 'post': res_image('a')
    LIM, CNT = 56, 58
    a(f'v_mov_b32_dpp v{CNT}, v{W} quad_perm:[0,0,0,0] row_mask:0xf bank_mask:0xf')
    a(f'v_mov_b32_dpp v{CNT+1}, v{W+4} quad_perm:[0,0,0,0] row_mask:0xf bank_mask:0xf')
    for h in range(2):
        a(f'v_and_b32 v{CNT+h}, 0xfff, v{CNT+h}')
        a(f'v_min_u32 v{LIM+h}, {CAP}, v{CNT+h}')
        a(f'v_subrev_u32 v{CNT+h}, {CAP}, v{CNT+h}')
    a.label('L2_round')
    A = 60; RK = 68; T = 76
    a('v_mov_b32 v40, 1')
    a(f's_mov_b32 s60, {L_NCNT}')
    for i in range(4):
        a(f'v_add_u32 v{41+i}, {i}, v39')
    for i in range(8):
        a(f'v_cmp_lt_u32 s[{64+2*i}:{65+2*i}], v{41 + (i & 3)}, v{LIM + i//4}')
        a(f'v_and_b32 v{A+i}, 127, v{W+i}')
        a(f'v_lshl_add_u32 v{A+i}, v{A+i}, 2, s60')
    if opt.fine: tr(a, 61)
    a(f'v_max_i32 v41, v{CNT}, v{CNT+1}')
    a('v_cmp_lt_i32 vcc, 0, v41')
    for i in range(8):
        a(f's_mov_b64 exec, s[{64+2*i}:{65+2*i}]')
        a(f'ds_add_rtn_u32 v{RK+i}, v{A+i}, v40')
    a('s_mov_b64 exec, -1')
    if opt.res_when == 'post2':
        a(f's_cmp_lg_u32 s{sROUND}, 0')
        a('s_cbranch_scc1 L2_resdonea')
        res_image('a')
    a('s_cbranch_vccz L2_noflag')
    a(f'v_mov_b32 v41, {L_NCNT + 127*4}')
    a('ds_write_b32 v41, v40')
    a.label('L2_noflag', settle=False)
    for i in range(8):
        a(f'v_and_b32 v{W+i}, {M_ENT}, v{W+i}')
    a('s_waitcnt lgkmcnt(0)')
    a('s_barrier')
    tr(a, 10)
    a(f's_cmp_lg_u32 s{sROUND}, 0')
    a.br('s_cbranch_scc1 L2_now2f')
    if opt.res_when == 'late': res_image('a')
    a('s_or_b32 s60, s2, s3')
    a('s_cmp_lg_u32 s60, 0')
    a.br('s_cbranch_scc1 L2_now2f')
    srd(a, 84, 24, EPOCH_OFF, 4)
    a(f'v_mov_b32 v43, s{sEP}')
    a('s_mov_b64 exec, 1')
    a('buffer_store_dword v43, off, s[84:87], 0 sc1')
    a('s_mov_b64 exec, -1')
    a.label('L2_now2f')
    if opt.pfv: a('v_mov_b32 v44, 0x40000000')
    for i in opt.pfv:
        a(f'v_and_b32 v45, 0xfffe00, v{W+i}')
        a(f'v_cndmask_b32_e64 v45, v44, v45, s[{64+2*i}:{65+2*i}]')
        for j in range(3*opt.pfn):
            a(f'buffer_load_dword v255, v45, s[{sSV}:{sSV+3}], 0 offen offset:{128 + j*128//opt.pfn}')
        if opt.pfh:
            a('v_lshrrev_b32 v45, 2, v45')
            a(f'buffer_load_dword v255, v45, s[{sH}:{sH+3}], 0 offen {opt.hsc}')
    a(f'v_lshrrev_b32 v41, 2, v{vLANE16}')
    a(f'v_add_u32 v41, {L_NCNT}, v41')
    a('ds_read2st64_b32 v[42:43], v41 offset1:1')
    a('s_waitcnt lgkmcnt(0)')
    a(f'v_readlane_b32 s{sMORE}, v43, 63')
    a('v_lshl_or_b32 v42, v43, 16, v42')
    a('v_mov_b32 v43, v42')
    for sh in ('row_shr:1', 'row_shr:2', 'row_shr:4', 'row_shr:8'):
        a(f'v_add_u32_dpp v43, v43, v43 {sh} row_mask:0xf bank_mask:0xf')
    a('v_add_u32_dpp v43, v43, v43 row_bcast:15 row_mask:0xa bank_mask:0xf')
    a('v_add_u32_dpp v43, v43, v43 row_bcast:31 row_mask:0xc bank_mask:0xf')
    a(f'v_readlane_b32 s{sT0}, v43, 63')
    a('v_sub_u32 v43, v43, v42')
    a(f's_and_b32 s{sT0}, s{sT0}, 0xffff')
    a(f'v_and_b32 v{vSTLO}, 0xffff, v43')
    a(f'v_lshrrev_b32 v{vSTHI}, 16, v43')
    a(f'v_add_u32 v{vSTHI}, s{sT0}, v{vSTHI}')
    if opt.fine: tr(a, 58)
    a(f'ds_write2st64_b32 v41, v{vSTLO}, v{vSTHI} offset0:2 offset1:3')
    for i in range(8):
        a(f'ds_read_b32 v{T+i}, v{A+i} offset:512')
    a(f'v_lshl_or_b32 v{vPACK}, v{vSTHI}, 16, v{vSTLO}')
    for i in range(8):
        if i % 4 == 0:
            a(f's_waitcnt lgkmcnt({4 - i})')
            for k in range(i, i+4): a(f'v_add_lshl_u32 v{T+k}, v{T+k}, v{RK+k}, 2')
        a(f's_mov_b64 exec, s[{64+2*i}:{65+2*i}]')
        a(f'ds_write_b32 v{T+i}, v{W+i} offset:{L_SORT}')
        if i % 4 == 3: a('s_mov_b64 exec, -1')
    for k, (st, d) in enumerate(((vSTLO, 32), (vSTHI, 32), (vSTLO, 64), (vSTHI, 64))):
        a(f'v_add_u32 v{T+k}, {d}, v{st}')
        a(f'v_lshlrev_b32 v{T+4+k}, 2, v{T+k}')
    a(f'v_readlane_b32 s{sT2}, v{vSTHI}, {R - 64}')
    a(f'v_lshrrev_b32 v40, 4, v{vLANE16}')
    a('v_add_u32 v41, 64, v40')
    a(f'v_mov_b32 v46, {R}')
    a(f's_mov_b32 s{sNC}, 0')
    a(f's_mov_b32 s{sC64}, s3')
    if opt.fine: tr(a, 59)
    a('s_waitcnt vmcnt(%d) lgkmcnt(0)' % (len(opt.pfv)*(3*opt.pfn + (1 if opt.pfh else 0))))
    if opt.fine: tr(a, 60)
    a('s_barrier')
    tr(a, 21)
    for k in (2, 3, 0, 1):
        a(f'ds_read_b32 v{T+4+k}, v{T+4+k} offset:{L_SORT}')
    for k in range(4):
        a(f'v_cmp_gt_u32 s[{64+2*k}:{65+2*k}], s{sT2}, v{T+k}')
    a('v_add_u32 v42, 1, v40')
    a('v_add_u32 v43, 16, v40')
    a('v_add_u32 v44, 1, v41')
    a('v_add_u32 v45, 16, v41')
    for k in (2, 3, 0, 1):
        r = T + 4 + k
        if k in (2, 0): a(f's_waitcnt lgkmcnt({2 if k == 2 else 0})')
        a(f'v_and_b32 v{r}, 127, v{r}')
        a(f'v_cndmask_b32_e64 v{r}, v46, v{r}, s[{64+2*k}:{65+2*k}]')
        a(f'v_med3_u32 v{r}, v{r}, v{42 + 2*(k & 1)}, v{43 + 2*(k & 1)}')
        a(f'v_min_u32 v{r}, v46, v{r}')
        if k == 3: a(f'v_lshl_or_b32 v{vNX64}, v{T+7}, 16, v{T+6}')
    a(f'v_lshl_or_b32 v{vNX32}, v{T+5}, 16, v{T+4}')
    if opt.fine: tr(a, 42)
    chain_loop(a, vNX64, sC64)
    if opt.fine: tr(a, 43)
    a(f's_cmp_lt_u32 s{sNC}, {R}')
    a.br('s_cbranch_scc0 L2_rounddone')
    if opt.prio: a('s_setprio 3')
    a(f's_mov_b32 s{sN0}, s{sNC}')
    chain_start(a, sE0)
    chain_step(a, vNX64)
    chain_start(a, sE1)
    a(f's_sub_u32 s{sNN}, s{sNC}, s{sN0}')
    a(f's_mov_b32 s{sXE0}, s{sE0}')
    a(f's_mov_b32 s{sXE1}, s{sE1}')
    emit(a, next_entry_read(TP))
    emit(a, next_mask(TP+4))
    a(f's_sub_u32 s{sC64}, 7, s3')
    a(f's_mov_b32 s{sC32}, s3')
    a('s_waitcnt lgkmcnt(0)')
    if opt.fine: tr(a, 62)
    emit(a, next_stage(TP+4, TP+5))
    emit(a, off_reads(0))
    emit(a, pos_load(TP+5))
    a('s_waitcnt lgkmcnt(0)')
    emit(a, off_adds())
    emit(a, h_loads())
    a(f's_mov_b32 s{sFI}, 1')
    if opt.prio: a('s_setprio %d' % {0: 0, 1: 1, 2: 1, 3: 2, 4: 2, 5: 2, 6: 2, 7: 1, 8: 2, 9: 1, 10: 2, 11: 2}[opt.yld])
    if opt.look: g.lookahead(a)
    tr(a, 22)
    a.br('s_branch L2_head_A')
    head(a, 'B')
    head(a, 'A')
    tail(a, 'toC')
    head(a, 'C')
    newitem(a)
    tail(a, 'toA')
    tail(a, 'fin')
    a.label('L2_rounddone')
    tr(a, 30)
    a(f's_cmp_eq_u32 s{sMORE}, 0')
    a.br('s_cbranch_scc1 L2_fin')
    a('s_waitcnt vmcnt(0) lgkmcnt(0)')
    a('s_barrier')
    zero_counters('b')
    srd(a, sRES, 20, 0, R*512, mul=R*512)
    res_image('b')
    a('v_lshrrev_b32 v40, 2, v0')
    a(f'v_mul_u32_u24 v41, {SS}, v40')
    a(f'buffer_load_dword v42, v41, s[{sSLOT}:{sSLOT+3}], 0 offen sc1')
    a(f'v_add_u32 v41, {128*SS}, v41')
    a(f'buffer_load_dword v43, v41, s[{sSLOT}:{sSLOT+3}], 0 offen sc1')
    a('v_and_b32 v39, 3, v0')
    a('v_lshlrev_b32 v39, 2, v39')
    a(f's_lshl_b32 s{sT0}, s{sROUND}, 4')
    a(f's_add_u32 s{sT1}, s{sT0}, {CAP}')
    a(f's_add_u32 s{sROUND}, s{sROUND}, 1')
    a(f'v_mul_u32_u24 v40, {CH*4}, v40')
    a('v_lshl_add_u32 v40, v39, 2, v40')
    a(f's_lshl_b32 s{sT0}, s{sT0}, 2')
    a(f'v_add_u32 v40, s{sT0}, v40')
    a('s_waitcnt vmcnt(0)')
    for h in range(2):
        a(f'v_bfe_u32 v44, v{42+h}, 12, 12')
        a(f'v_lshl_add_u32 v44, v44, 2, v40')
        if h: a(f'v_add_u32 v44, {128*CH*4}, v44')
        a(f'buffer_load_dwordx4 v[{W+4*h}:{W+4*h+3}], v44, s[{sOVF}:{sOVF+3}], 0 offen sc1')
        a(f'v_and_b32 v{CNT+h}, 0xfff, v{42+h}')
        a(f'v_subrev_u32 v{CNT+h}, s{sT1}, v{CNT+h}')
        a(f'v_med3_i32 v{LIM+h}, v{CNT+h}, 0, 16')
        a(f'v_subrev_u32 v{CNT+h}, 16, v{CNT+h}')
    a('s_waitcnt vmcnt(0) lgkmcnt(0)')
    a('s_barrier')
    a.br('s_branch L2_round')
    a.label('L2_fin')
    if opt.tr or opt.dbg2:
        a('s_waitcnt vmcnt(0)')
        tr(a, 31)
    tr_dump(a)
    a.label('L_end')
    a('s_endpgm')
    rare_paths(a)

def build():
    src = open('gather_scatter__molecular_angular_painn__graph.s.ref').read().split('\n')
    head_ = []
    for ln in src:
        if not ln.startswith(';'): break
        if '@launch' in ln or 'Override launch' in ln or 'grid=ceil' in ln: continue
        head_.append(ln)
    head_.append(f'; @launch grid=({NB},1,1) block=(512,1,1) lds={K1_LDS}')
    a = Asm()
    a.raw('.amdgcn_target "amdgcn-amd-amdhsa--gfx950"\n.text')
    gen(a)
    return '\n'.join(head_) + '\n' + a.text() + '.section .rodata,"a"\n' + descriptor(NAME, 256)

if __name__ == '__main__':
    outp = sys.argv[1]
    for kv in sys.argv[2:]:
        k, val = kv.split('=', 1)
        setattr(opt, k, type(getattr(opt, k))(eval(val)))
    open(outp, 'w').write(build())
```

```python
import sys
from asmlib import Asm
import gen4 as g
from gen4 import *

NAME = 'gather_scatter__molecular_angular_painn__graph_kernel'
SS = 16512
EPOCH_OFF = SLOT_OFF + 250*SS
L_WRR = 125952
L_STAGE = 129024
K1_CNT = 151552; K1_OVB = K1_CNT + 1280; K1_W1 = K1_OVB + 1024; K1_LDS = K1_W1 + 8192
L_W2R = 101376
opt.ng0 = 2; opt.hprio = 2; opt.rawpos = True; opt.pfres = 1; opt.wb = 2; opt.pad1 = 0; opt.pad2 = 0; opt.pad3 = 0; opt.exact = 0; opt.ilv = 0; opt.drain = True; opt.dbg2 = False; opt.prewr = False; opt.g1st = 0; opt.yld = 0; opt.pfv = []; opt.diag = ''; opt.pfn = 2; opt.pfh = False; opt.fine = False; opt.tr0 = False; opt.hsc = 'sc1'; opt.rt = False; opt.spin = 16; opt.pk = True; opt.sleep = 2; opt.res_when = 'pre'; opt.prew = True; opt.pfw = True; opt.pollmask = True; opt.dumpsc = 'sc1'
sNB = 8
sEP = 100
sFI = 86
g.sFI = sFI
pLDS, pOFA, pOFB, pME, pM0, pT0, pPA, pPB, pN0, pNE, pWA, pWD, pWR, pHC, pHS = range(172, 187)
pRS = 188
sWRR = 12
sPC0 = 78
M_ENT = 0x00fffe7f; M_HDR = 0x00ffffff

def tr(a, tag):
    if not opt.tr: return
    a('s_memrealtime s[92:93]' if opt.rt else 's_memtime s[92:93]')
    a('s_mov_b32 m0, s27')
    a('s_add_u32 s27, s27, 1')
    a('s_waitcnt lgkmcnt(0)')
    a('s_lshl_b32 s92, s92, 6')
    a(f's_or_b32 s92, s92, {tag}')
    a('v_writelane_b32 v11, s92, m0')
_tr_plain = tr
DBGMAP = {48: 0, 4: 2, 7: 4, 9: 6, 21: 8, 31: 10}
def tr(a, tag):
    if not opt.dbg2: return _tr_plain(a, tag)
    if tag not in DBGMAP: return
    i = DBGMAP[tag]
    L = f'Ldbg{tag}'
    a.settle()
    a('s_mov_b32 s27, scc') if False else None
    a('s_cmp_lg_u32 s3, 0')
    a(f's_cbranch_scc1 {L}')
    a('s_memrealtime s[92:93]')
    a('s_mov_b64 s[94:95], exec')
    a('s_mov_b64 exec, 1')
    a('s_waitcnt lgkmcnt(0)')
    a('v_mov_b32 v255, s92')
    a(f'buffer_atomic_umax v255, off, s[96:99], 0 offset:{4*i + 4}')
    a('s_not_b32 s92, s92')
    a('s_nop 0')
    a('v_mov_b32 v11, s92')
    a(f'buffer_atomic_umax v11, off, s[96:99], 0 offset:{4*i}')
    a('s_mov_b64 exec, s[94:95]')
    a.label(L)
g.tr = tr
_tr_init = tr_init
def tr_init(a):
    if not opt.dbg2: return _tr_init(a)
    a('s_load_dwordx2 s[96:97], s[0:1], 72')
    a('s_waitcnt lgkmcnt(0)')
    a('s_mov_b32 s98, 64')
    a('s_mov_b32 s99, 0x20000')

def h_loads():
    return [f'buffer_load_dwordx4 v[{H+et*8+ks*4}:{H+et*8+ks*4+3}], v{HOFF+et}, s[{sH}:{sH+3}], 0 offen offset:{ks*64} {opt.hsc}'
            for et in range(2) for ks in range(2)]
def pos_load(u): return [f'v_and_b32 v{u-1}, -4, v{u}', f'buffer_load_dwordx2 v[{PS}:{PS+1}], v{u-1}, s[{sP4}:{sP4+3}], 0 offen']
g.h_loads = h_loads; g.pos_load = pos_load


def rare_paths(a):
    RK1, BINC, ENT = 136, 80, 96
    a.label('L1_ovf')
    a('s_cmp_ge_u32 s3, 4')
    a.br('s_cbranch_scc1 L1_ovf_based')
    a('v_lshlrev_b32 v40, 2, v0')
    a(f'v_add_u32 v40, {K1_CNT}, v40')
    a('ds_read_b32 v41, v40')
    a('s_waitcnt lgkmcnt(0)')
    a(f'v_cmp_lt_u32 vcc, {CAP}, v41')
    a('s_and_saveexec_b64 s[88:89], vcc')
    a.br('s_cbranch_execz L1_ovf_none')
    a(f'v_subrev_u32 v41, {CAP}, v41')
    a(f'v_mov_b32 v42, {K1_CNT + 1024}')
    a('ds_add_rtn_u32 v43, v42, v41')
    a('s_waitcnt lgkmcnt(0)')
    a(f'ds_write_b32 v40, v43 offset:{K1_OVB - K1_CNT}')
    a.label('L1_ovf_none')
    a('s_mov_b64 exec, s[88:89]')
    a.label('L1_ovf_based')
    a('s_waitcnt lgkmcnt(0)')
    a('s_barrier')
    srd(a, 88, 24, OVF_OFF, CH*4, mul=CH*4)
    for i in range(7):
        a('s_mov_b64 exec, -1')
        a(f'v_cmp_le_u32 vcc, {CAP}, v{RK1+i}')
        a(f's_and_b64 exec, vcc, s[{64+2*i}:{65+2*i}]')
        a.br(f's_cbranch_execz L1_ovf{i}')
        a(f'ds_read_b32 v40, v{BINC+i} offset:{K1_OVB - K1_CNT}')
        a('s_waitcnt lgkmcnt(0)')
        a(f'v_add_u32 v40, v40, v{RK1+i}')
        a(f'v_subrev_u32 v40, {CAP}, v40')
        a('v_lshlrev_b32 v40, 2, v40')
        a(f'buffer_store_dword v{ENT+i}, v40, s[88:91], 0 offen sc1')
        a.label(f'L1_ovf{i}')
    a('s_mov_b64 exec, -1')
    for h in range(2):
        a(f'ds_read_b32 v40, v{pHC} offset:{K1_OVB - K1_CNT + 512*h}')
        a(f'v_cmp_lt_u32 vcc, {CAP}, v{108+h}')
        a('s_waitcnt lgkmcnt(0)')
        a('v_lshlrev_b32 v40, 12, v40')
        a('v_cndmask_b32_e64 v40, 0, v40, vcc')
        a(f'v_or_b32 v{108+h}, v{108+h}, v40')
    a('s_waitcnt vmcnt(0)')
    a('s_barrier')
    a.br('s_branch L1_noovf')

def consts_poll(a):
    a('s_and_b32 s60, s2, 0xf0')
    a('s_and_b32 s61, s2, 7')
    a('s_lshl_b32 s61, s61, 1')
    a('s_or_b32 s60, s60, s61')
    a('s_bfe_u32 s61, s2, 0x10003')
    a('s_or_b32 s60, s60, s61')
    a('s_lshl_b32 s60, s60, 6')
    a(f's_add_u32 s60, s60, {SLOT_OFF}')
    a(f's_add_u32 s{sSLOT}, s24, s60')
    a(f's_addc_u32 s{sSLOT+1}, s25, 0')
    a(f's_mov_b32 s{sSLOT+2}, {(NB-1)*SS + 64}')
    a(f's_mov_b32 s{sSLOT+3}, 0x20000')
    a('v_lshrrev_b32 v43, 2, v0')
    a(f'v_mul_u32_u24 v43, {SS}, v43')
    a(f'v_add_u32 v{pPA}, v{pPA}, v43')
    a(f'v_add_u32 v{pPB}, {128*SS}, v{pPA}')
    a(f'v_not_b32 v{pNE}, v{pME}')
    a('v_cmp_gt_u32 vcc, 488, v0')
    a('s_mov_b64 s[64:65], vcc')

def consts_late(a):
    a(f's_and_b32 s{sF+3}, s{sF+1}, 0xffff0000')
    a(f's_lshl_b32 s{sF+2}, s{sF+1}, 16')
    a(f's_and_b32 s{sF+1}, s{sF}, 0xffff0000')
    a(f's_lshl_b32 s{sF}, s{sF}, 16')
    srd(a, sSV, 4, 0, 0 if 'V' in opt.diag else N*512)
    srd(a, sH, 24, H_OFF, 0 if 'H' in opt.diag else N*128)
    srd(a, sOUT, 20, 0, 0 if 'S' in opt.diag else R*512, mul=R*512)
    srd(a, sOVF, 24, OVF_OFF, NB*CH*4)
    a(f'v_bfe_u32 v44, v{vLANE16}, 4, 4')
    a(f'v_lshrrev_b32 v45, 8, v{vLANE16}')
    a('v_lshrrev_b32 v43, 2, v44')
    a('v_lshlrev_b32 v43, 3, v43')
    a('v_and_b32 v40, 3, v44')
    a('v_add_u32 v43, v43, v40')
    a(f's_mul_i32 s{sSTG}, s3, {STG}')
    a(f's_add_u32 s{sSTG}, s{sSTG}, {L_STG}')
    a(f's_sub_u32 s{sSD}, {L_SORT}, s{sSTG}')
    a(f'v_lshl_add_u32 v{vHA}, v43, 2, s{sSTG}')
    a('v_and_b32 v40, 1, v45')
    a('v_lshl_add_u32 v43, v40, 2, v43')
    a('v_lshrrev_b32 v40, 1, v45')
    a('v_lshl_add_u32 v43, v40, 5, v43')
    a(f'v_lshl_add_u32 v{vSTGW}, v43, 2, s{sSTG}')
    a(f'v_lshl_add_u32 v{vSTGH}, v43, 1, s{sSTG}')
    a(f'v_lshl_add_u32 v{vSTGR}, v45, 5, s{sSTG}')
    a(f'v_lshl_add_u32 v{vSTGS}, v45, 4, s{sSTG}')
    emit_Q(a, vLPV, 44, 40)
    a(f'v_lshlrev_b32 v{vLPV}, 3, v{vLPV}')
    a(f'v_lshl_add_u32 v{vLPR}, v44, 9, v{vLPH}')
    a(f'v_lshl_or_b32 v{vQQ}, v44, 16, v44')
    a(f's_mov_b32 s{sROUND}, 0')
    a(f'v_lshrrev_b32 v40, 1, v45')
    for k in range(4):
        a(f'v_add_u32 v{pRS+k}, {2*k}, v40')
        a(f'v_lshlrev_b32 v{pRS+k}, 5, v{pRS+k}')
        a(f'v_xor_b32 v{pRS+k}, v{pRS+k}, v{vLANE16}')
    a('v_and_b32 v39, 3, v0')
    a('v_lshlrev_b32 v39, 2, v39')
    a('v_subrev_u32 v39, 1, v39')

def build_weights(a):
    a('s_and_b32 s60, s3, 1')
    a(f's_mul_i32 s60, s60, {32*384}')
    a('s_bfe_u32 s62, s3, 0x20001')
    a('s_lshl_b32 s62, s62, 1')
    a('s_add_u32 s60, s60, s62')
    a(f's_add_u32 s60, s60, {L_W2R}')
    a(f'v_mul_u32_u24 v{pWA}, 96, v{vLPH}')
    a(f'v_add3_u32 v{pWA}, v{pWA}, v{vLPV}, s60')
    a('s_lshl_b32 s60, s3, 10')
    a(f'v_add_u32 v{pWD}, s60, v{vLANE16}')
    a(f'v_lshrrev_b32 v{pWR}, 3, v{vLPH}')
    a(f'v_add_u32 v{pWR}, v{pWR}, v{vLPV}')
    a(f'v_add_u32 v{pWR}, {L_WRR}, v{pWR}')
    for p in range(3):
        for k in range(4):
            a(f'ds_read_u16 v{104+4*p+k}, v{pWR} offset:{k*384 + p*128}')
    a('s_waitcnt lgkmcnt(0)')
    for p in range(3):
        for jj in range(8):
            if p and jj == 5: a('s_waitcnt lgkmcnt(11)')
            a(f'ds_read_u16 v{64+8*(p&1)+jj}, v{pWA} offset:{p*128 + (16*(jj>>2) + (jj&3))*384}')
        if p == 0:
            for pp in range(3):
                for i in range(2):
                    a(f'v_lshl_or_b32 v{WR+2*pp+i}, v{105+4*pp+2*i}, 16, v{104+4*pp+2*i}')
        if p:
            q = p - 1
            a('s_waitcnt lgkmcnt(8)')
            for i in range(4): a(f'v_lshl_or_b32 v{80+i}, v{65+8*(q&1)+2*i}, 16, v{64+8*(q&1)+2*i}')
            a(f'ds_write_b128 v{pWD}, v[80:83] offset:{q*8192}')
    a('s_waitcnt lgkmcnt(1)')
    for i in range(4): a(f'v_lshl_or_b32 v{84+i}, v{65+2*i}, 16, v{64+2*i}')
    a(f'ds_write_b128 v{pWD}, v[84:87] offset:{2*8192}')

def gen(a):
    header(a, NAME)
    a('s_cmp_ge_u32 s2, %d' % NB)
    a('s_cbranch_scc1 L_end')
    a('s_load_dwordx8 s[4:11], s[0:1], 0')
    a('s_load_dwordx8 s[12:19], s[0:1], 32')
    a('s_load_dwordx2 s[20:21], s[0:1], 64')
    a('s_load_dwordx2 s[24:25], s[0:1], 80')
    a('v_lshrrev_b32 v40, 6, v0')
    a('v_and_b32 v41, 63, v0')
    a('v_readfirstlane_b32 s3, v40')
    a(f'v_lshlrev_b32 v{vLANE16}, 4, v41')
    a('v_lshlrev_b32 v42, 4, v0')
    a('v_and_b32 v44, 15, v41')
    a('v_lshrrev_b32 v45, 4, v41')
    a(f'v_lshlrev_b32 v{vLPH}, 4, v45')
    a('s_and_b32 s60, s3, 3')
    a('s_lshl_b32 s60, s60, 4')
    a('v_add_u32 v46, s60, v44')
    a(f'v_lshl_add_u32 v64, v46, 9, v{vLPH}')
    a(f'v_lshl_add_u32 v65, v46, 7, v{vLPH}')
    a('v_lshrrev_b32 v43, 2, v42')
    a('s_waitcnt lgkmcnt(0)')
    if opt.tr0:
        tr_init(a); tr(a, 48)
    srd(a, 72, 6, 0, N*6)
    srd(a, sP4, 6, 0, 0 if 'P' in opt.diag else N*6)
    a('s_lshr_b32 s63, s2, 3')
    def group():
        a('s_sub_u32 s61, s60, 37')
        a('s_cmp_ge_u32 s60, 37')
        a('s_cselect_b32 s60, s61, s60')
        a('s_lshl_b32 s61, s60, 12')
        a('s_mov_b32 m0, s61')
        a(f's_add_u32 s60, s60, {group.step}')
        for k in range(4):
            a(f'buffer_load_dwordx4 v{vLANE16}, s[72:75], s61 offen offset:{1024*k} lds')
    NG = opt.ng0
    a('s_add_u32 s60, s63, s3')
    group.step = 8
    for i in range(opt.g1st): group()
    srd(a, 76, 14, 0, 8192)
    a('s_lshl_b32 s61, s3, 10')
    a(f's_add_u32 m0, s61, {K1_W1}')
    a('s_nop 0')
    a(f'buffer_load_dwordx4 v{vLANE16}, s[76:79], s61 offen lds')
    srd(a, sRES, 4, 0, R*512, mul=R*512)
    S = 68
    a('s_cmp_lt_u32 s3, 4')
    a('s_cbranch_scc1 L1_nos')
    a(f'buffer_load_dwordx4 v[{S}:{S+3}], v64, s[{sRES}:{sRES+3}], 0 offen')
    a(f'buffer_load_dwordx4 v[{S+4}:{S+7}], v64, s[{sRES}:{sRES+3}], 0 offen offset:64')
    a(f'v_add_u32 v64, {64*512}, v64')
    a(f'buffer_load_dwordx4 v[{S+8}:{S+11}], v64, s[{sRES}:{sRES+3}], 0 offen')
    a(f'buffer_load_dwordx4 v[{S+12}:{S+15}], v64, s[{sRES}:{sRES+3}], 0 offen offset:64')
    a.label('L1_nos', settle=False)
    SRC, DST = 48, 56
    srd(a, 64, 8, 0, CH*4, mul=CH*4)
    srd(a, 68, 10, 0, CH*4, mul=CH*4)
    nt = 'nt' if opt.nt_edges else ''
    a('v_lshrrev_b32 v47, 1, v42')
    a('v_add_u32 v47, 8192, v47')
    a(f'buffer_load_dwordx4 v[{SRC}:{SRC+3}], v42, s[64:67], 0 offen {nt}')
    a(f'buffer_load_dwordx4 v[{DST}:{DST+3}], v42, s[68:71], 0 offen {nt}')
    a(f'buffer_load_dwordx2 v[{SRC+4}:{SRC+5}], v47, s[64:67], 0 offen {nt}')
    a(f'buffer_load_dwordx2 v[{DST+4}:{DST+5}], v47, s[68:71], 0 offen {nt}')
    a(f'v_add_u32 v47, {12288 - 512}, v43')
    a('s_sub_u32 s61, s3, 2')
    a('s_cmp_lt_u32 s61, 2')
    a('s_cselect_b32 s62, 0, 0x40000000')
    a('v_add_u32 v47, s62, v47')
    a(f'buffer_load_dword v{SRC+6}, v47, s[64:67], 0 offen {nt}')
    a(f'buffer_load_dword v{DST+6}, v47, s[68:71], 0 offen {nt}')
    a(f's_add_u32 s88, s24, {EPOCH_OFF}')
    a('s_addc_u32 s89, s25, 0')
    a(f's_load_dword s{sEP}, s[88:89], 0')
    a(f's_load_dwordx2 s[{sF}:{sF+1}], s[12:13], 0')
    for i in range(NG - opt.g1st): group()
    if not opt.tr0: tr_init(a)
    tr(a, 1)
    a('v_mov_b32 v40, 0')
    a(f'v_add_u32 v47, {K1_CNT}, v43')
    a('s_cmp_ge_u32 s3, 5')
    a('s_cbranch_scc1 L1_nozero')
    a('ds_write_b32 v47, v40')
    a.label('L1_nozero', settle=False)
    a(f's_waitcnt vmcnt({6 + 4*(NG - opt.g1st)}) lgkmcnt(0)')
    a('s_mov_b32 s84, -100')
    a(f's_mov_b32 s85, {K1_CNT}')
    a(f's_mov_b32 s86, {L_STAGE}')
    a('v_mov_b32 v47, 80')
    a('s_barrier')
    tr(a, 2)
    a('s_cmp_ge_u32 s3, 4')
    a('s_cbranch_scc1 L1_hpath')
    AS, AD = 64, 72
    BINC, BINS, ENT = 80, 88, 96
    P = 104
    RK1 = 136
    def prep(i):
        a(f'v_mul_u32_u24 v40, 5243, v{DST+i}')
        a(f'v_mul_u32_u24 v{AS+i}, 6, v{SRC+i}')
        a(f'v_lshrrev_b32 v40, 19, v40')
        a(f'v_mul_u32_u24 v{AD+i}, 6, v{DST+i}')
        a(f'v_mad_i32_i24 v41, v40, s84, v{DST+i}')
        a(f'v_lshl_add_u32 v{BINC+i}, v40, 2, s85')
        a(f'v_lshl_or_b32 v{ENT+i}, v{SRC+i}, 9, v41')
        a(f'v_mad_u32_u24 v{BINS+i}, v40, v47, s86')
        a(f'v_and_b32 v{SRC+i}, -4, v{AS+i}')
        a(f'v_and_b32 v{DST+i}, -4, v{AD+i}')
    a('s_add_u32 s60, s63, s3')
    a(f's_add_u32 s60, s60, {8*NG}')
    a('s_sub_u32 s61, s60, 37')
    a('s_cmp_ge_u32 s60, 37')
    a('s_cselect_b32 s60, s61, s60')
    group.step = 4
    rest = 37 - 8*NG
    for i in range((rest + 3)//4):
        if 4*i + 3 >= rest:
            a(f's_cmp_ge_u32 s3, {rest - 4*i}')
            a('s_cbranch_scc1 L1_tabdone')
        group()
        if opt.ilv and i == opt.ilv - 1:
            a(f's_waitcnt vmcnt({4*(NG - opt.g1st) + 4*opt.ilv})')
            prep(0); prep(1)
        if opt.ilv and i == opt.ilv: prep(2); prep(3)
        if opt.ilv and i == opt.ilv + 1: prep(4); prep(5); prep(6)
    a.label('L1_tabdone', settle=False)
    if opt.fine: tr(a, 54)
    a(f's_waitcnt vmcnt({4*(NG - opt.g1st) + 4*(rest//4)})')
    a('s_branch L1_consts')
    a.label('L1_hpath', settle=False)
    if opt.hprio: a(f's_setprio {opt.hprio}')
    srd(a, 76, 24, H_OFF, R*128, mul=R*128)
    a('v_lshrrev_b32 v66, 2, v44')
    a('v_lshl_add_u32 v66, v45, 3, v66')
    a('v_and_b32 v67, 3, v44')
    a('v_lshlrev_b32 v67, 3, v67')
    a('v_lshl_add_u32 v66, v66, 7, v67')
    a(f'v_add_u32 v66, {K1_W1}, v66')
    FR = 100
    for ht in range(4):
        for ks in range(2):
            r = FR + (ht*2+ks)*4
            if ht == 3 and ks == 0: a('s_waitcnt lgkmcnt(4)')
            for hf in range(2):
                a(f'ds_read_b64_tr_b16 v[{r+2*hf}:{r+2*hf+1}], v66 offset:{ks*4096 + ht*32 + hf*512}')
    D = 132; O = 148; Tt = 164
    a('s_waitcnt lgkmcnt(0)')
    for t in range(2):
        if t == 1:
            a('s_cmp_eq_u32 s3, 7')
            a.br('s_cbranch_scc1 L1_hdone')
        for ht in range(4):
            a(f'v_mfma_f32_16x16x32_bf16 v[{D+4*ht}:{D+4*ht+3}], v[{FR+ht*8}:{FR+ht*8+3}], v[{S+8*t}:{S+8*t+3}], 0')
            a(f'v_mfma_f32_16x16x32_bf16 v[{D+4*ht}:{D+4*ht+3}], v[{FR+ht*8+4}:{FR+ht*8+7}], v[{S+8*t+4}:{S+8*t+7}], v[{D+4*ht}:{D+4*ht+3}]')
        for grp in range(4):
            for i in range(4): a(f'v_cvt_pk_bf16_f32 v{D+4*grp+i}, 0, v{D+4*grp+i}')
            for i in range(4): a(f'v_mul_f32 v{Tt+i}, {fl(-1.4426950408889634)}, v{D+4*grp+i}')
            for i in range(4): a(f'v_exp_f32 v{Tt+i}, v{Tt+i}')
            for i in range(4): a(f'v_add_f32 v{Tt+i}, 1.0, v{Tt+i}')
            for i in range(4): a(f'v_rcp_f32 v{Tt+i}, v{Tt+i}')
            for i in range(4): a(f'v_mul_f32 v{Tt+i}, v{Tt+i}, v{D+4*grp+i}')
            a(f'v_cvt_pk_bf16_f32 v{O+8*t+2*grp}, v{Tt}, v{Tt+1}')
            a(f'v_cvt_pk_bf16_f32 v{O+8*t+2*grp+1}, v{Tt+2}, v{Tt+3}')
        if t == 0:
            O2 = O
        else:
            pass
    a.label('L1_hdone')
    if opt.fine: tr(a, 57)
    a(f'buffer_store_dwordx4 v[{O}:{O+3}], v65, s[76:79], 0 offen sc1')
    a(f'buffer_store_dwordx4 v[{O+4}:{O+7}], v65, s[76:79], 0 offen offset:64 sc1')
    a(f'v_add_u32 v65, {64*128}, v65')
    a(f'buffer_store_dwordx4 v[{O+8}:{O+11}], v65, s[76:79], 0 offen sc1')
    a(f'buffer_store_dwordx4 v[{O+12}:{O+15}], v65, s[76:79], 0 offen offset:64 sc1')
    a(f's_waitcnt vmcnt({4*(NG - opt.g1st) + 4})')
    if opt.ilv:
        for i in range(7): prep(i)
    a.label('L1_consts')
    if opt.fine: tr(a, 55)
    a('s_waitcnt lgkmcnt(0)')
    a(f's_add_u32 s{sEP}, s{sEP}, 1')
    for j in (1, 2, 3):
        a(f's_lshr_b32 s60, s{sEP}, {10*(j-1)}')
        a('s_lshl_b32 s61, s60, 24')
        a('s_lshr_b32 s60, s60, 1')
        a('s_and_b32 s60, s60, 0x180')
        a(f's_or_b32 s{sNB+j}, s60, s61')
    a(f's_xor_b32 s{sNB}, s{sNB+1}, 0xff000180')
    srd(a, sW2F, 16, 0, 64*192*2)
    srd(a, sWRR, 18, 0, 4*192*2)
    a(f'v_mov_b32 v{vMHI}, 0xffff0000')
    a('v_lshrrev_b32 v43, 2, v0')
    a('v_and_b32 v40, 0xf0, v43')
    a('v_bfe_u32 v46, v43, 1, 3')
    a('v_or_b32 v40, v40, v46')
    a('v_and_b32 v46, 1, v43')
    a('v_lshl_or_b32 v40, v46, 3, v40')
    a('v_and_b32 v46, 3, v0')
    a(f'v_lshlrev_b32 v{pPA}, 4, v46')
    a(f'v_lshlrev_b32 v{pHC}, 2, v40')
    a(f'v_add_u32 v{pHC}, {K1_CNT}, v{pHC}')
    a('v_mul_u32_u24 v40, 80, v40')
    a(f'v_add_u32 v40, v40, v{pPA}')
    a(f'v_add_u32 v{pLDS}, {L_STAGE}, v40')
    a(f'v_lshlrev_b32 v{pOFA}, 4, v0')
    a(f'v_add_u32 v{pOFB}, 8192, v{pOFA}')
    a(f'v_mov_b32 v{pME}, {M_ENT}')
    a(f'v_mov_b32 v{pM0}, {M_HDR}')
    a(f'v_cmp_eq_u32 s[{sPC0}:{sPC0+1}], 0, v46')
    a(f'v_add_u32 v{pHS}, {K1_CNT}, v{vLANE16}')
    a(f'v_cndmask_b32_e64 v{pM0}, v{pME}, v{pM0}, s[{sPC0}:{sPC0+1}]')
    a(f'v_not_b32 v{pN0}, v{pM0}')
    a(f'v_and_b32 v{pT0}, s{sNB}, v{pN0}')
    if opt.fine: tr(a, 56)
    a(f's_mov_b32 s60, {fl([opt.thr, 24.07, 23.9][opt.exact])}')
    if not opt.ilv:
        for i in range(7): prep(i)
    a(f's_mul_i32 s87, s2, {R}')
    a(f'v_lshrrev_b32 v41, 4, v{vLANE16}')
    a('v_add_u32 v132, s87, v41')
    a('v_add_u32 v133, 64, v132')
    for h in range(2):
        a(f'v_mul_u32_u24 v{132+h}, 6, v{132+h}')
        a(f'v_and_b32 v{134+h}, -4, v{132+h}')
    a('v_mov_b32 v46, 1')
    for _ in range(opt.pad1): a('v_lshlrev_b32 v40, 1, v40')
    if opt.hprio: a('s_setprio 0')
    tr(a, 3)
    a('s_cmp_ge_u32 s3, 4')
    a('s_cbranch_scc1 L1_b1')
    a('s_waitcnt vmcnt(0)')
    a.label('L1_b1', settle=False)
    a('s_waitcnt vmcnt(4) lgkmcnt(0)')
    a('s_barrier')
    tr(a, 4)
    def reads(i):
        a(f'ds_read2_b32 v[{P+4*i}:{P+4*i+1}], v{SRC+i} offset1:1')
        a(f'ds_read2_b32 v[{P+4*i+2}:{P+4*i+3}], v{DST+i} offset1:1')
    def test(i):
        p, q = P+4*i, P+4*i+2
        a(f'v_alignbyte_b32 v40, v{p+1}, v{p}, v{AS+i}')
        a(f'v_alignbyte_b32 v41, v{p+1}, v{p+1}, v{AS+i}')
        a(f'v_alignbyte_b32 v42, v{q+1}, v{q}, v{AD+i}')
        a(f'v_alignbyte_b32 v43, v{q+1}, v{q+1}, v{AD+i}')
        a(f'v_lshlrev_b32 v{p}, 16, v40')
        a(f'v_lshlrev_b32 v{q}, 16, v42')
        a(f'v_and_b32 v40, v{vMHI}, v40')
        a(f'v_and_b32 v42, v{vMHI}, v42')
        a(f'v_lshlrev_b32 v41, 16, v41')
        a(f'v_lshlrev_b32 v43, 16, v43')
        a(f'v_sub_f32 v{p}, v{p}, v{q}')
        a(f'v_sub_f32 v40, v40, v42')
        a(f'v_sub_f32 v41, v41, v43')
        if opt.exact == 2:
            for r in (p, 40, 41): a(f'v_cvt_pk_bf16_f32 v{r}, 0, v{r}')
            for r in (p, 40, 41): a(f'v_mul_f32 v{r}, v{r}, v{r}')
            for r in (p, 40, 41): a(f'v_cvt_pk_bf16_f32 v{r}, 0, v{r}')
            a(f'v_add_f32 v{p}, v{p}, v40')
            a(f'v_add_f32 v{p}, v{p}, v41')
            a(f'v_cvt_pk_bf16_f32 v{p}, 0, v{p}')
        else:
            if opt.exact == 1:
                for r in (p, 40, 41): a(f'v_cvt_pk_bf16_f32 v{r}, 0, v{r}')
            a(f'v_mul_f32 v{p}, v{p}, v{p}')
            a(f'v_fmac_f32 v{p}, v40, v40')
            a(f'v_fmac_f32 v{p}, v41, v41')
        a(f'v_cmp_ngt_f32 s[{64+2*i}:{65+2*i}], v{p}, s60')
    def rank(i):
        a(f's_mov_b64 exec, s[{64+2*i}:{65+2*i}]')
        a(f'ds_add_rtn_u32 v{RK1+i}, v{BINC+i}, v46')
        a('s_mov_b64 exec, -1')
    for i in range(6): reads(i)
    if opt.prewr:
        srd(a, 88, 24, SLOT_OFF, 16384, mul=SS)
        for k in range(4): a(f'v_mov_b32 v{168+k}, 0')
        for h in range(2):
            a(f'buffer_store_dwordx4 v[168:171], v{pOFA+h}, s[88:91], 0 offen sc1')
    if opt.pfres:
        a(f's_lshl_b32 s84, s3, 12')
        for k in range(4):
            a(f'buffer_load_dwordx4 v[164:167], v{vLANE16}, s[{sRES}:{sRES+3}], s84 offen offset:{1024*k}')
        if opt.pfres > 1:
            a('s_add_u32 s84, s84, 32768')
            for k in range(4):
                a(f'buffer_load_dwordx4 v[164:167], v{vLANE16}, s[{sRES}:{sRES+3}], s84 offen offset:{1024*k}')
    if opt.prew or opt.pfw:
        a('s_sub_u32 s84, s3, 4')
        a('s_cmp_ge_u32 s84, 3')
        a('s_cbranch_scc1 L1_notouch')
    if opt.pfw:
        a('s_lshr_b32 s85, s2, 3')
        a('s_mul_i32 s85, s85, 768')
        a('s_lshl_b32 s86, s84, 8')
        a('s_add_u32 s85, s85, s86')
        a(f'v_and_b32 v47, 0xf0, v{vLANE16}')
        a('v_add_u32 v47, s85, v47')
        a(f'buffer_load_dwordx4 v[168:171], v47, s[{sW2F}:{sW2F+3}], 0 offen')
    if opt.prew:
        srd(a, 88, 24, SLOT_OFF, 16384, mul=SS)
        a(f'v_subrev_u32 v47, 4096, v{pOFA}')
        for k in range(6):
            a('buffer_load_dwordx4 v[168:171], v47, s[88:91], 0 offen')
            if k < 5: a('v_add_u32 v47, 3072, v47')
        a(f's_mov_b32 s{sROUND}, 0')
    if opt.prew or opt.pfw:
        a.label('L1_notouch', settle=False)
    a('s_mov_b64 s[76:77], 0')
    a('s_sub_u32 s84, s3, 2')
    a('s_cmp_lt_u32 s84, 2')
    a('s_cbranch_scc0 L1_six')
    a('s_waitcnt lgkmcnt(10)')
    test(0)
    reads(6)
    a('s_waitcnt lgkmcnt(0)')
    test(6)
    a.br('s_branch L1_rest')
    a.label('L1_six')
    a('s_cmp_lg_u32 s3, 7')
    a('s_cbranch_scc1 L1_notw7')
    a('s_waitcnt lgkmcnt(8)')
    for h in range(2):
        a(f'ds_read2_b32 v[{152+2*h}:{153+2*h}], v{134+h} offset1:1')
    a('s_waitcnt lgkmcnt(0)')
    for h in range(2):
        a(f'v_alignbyte_b32 v{156+2*h}, v{153+2*h}, v{152+2*h}, v{132+h}')
        a(f'v_alignbyte_b32 v{157+2*h}, v{153+2*h}, v{153+2*h}, v{132+h}')
        a(f'v_lshlrev_b32 v{144+4*h}, 16, v{156+2*h}')
        a(f'v_and_b32 v{145+4*h}, v{vMHI}, v{156+2*h}')
        a(f'v_lshlrev_b32 v{146+4*h}, 16, v{157+2*h}')
        a(f'v_mov_b32 v{147+4*h}, 0')
    a.label('L1_notw7')
    a('s_waitcnt lgkmcnt(10)')
    test(0)
    a.label('L1_rest')
    for i in range(1, 6):
        a(f's_waitcnt lgkmcnt({2*(5-i)})')
        test(i)
    for i in (6, 0, 1, 2, 3, 4, 5):
        a(f's_mov_b64 exec, s[{64+2*i}:{65+2*i}]')
        a(f'ds_add_rtn_u32 v{RK1+i}, v{BINC+i}, v46')
    a('s_mov_b64 exec, -1')
    for _ in range(opt.pad2): a('v_lshlrev_b32 v40, 1, v40')
    a('s_waitcnt lgkmcnt(0)')
    a('s_barrier')
    tr(a, 5)
    a(f's_mul_i32 s{sT0}, s3, 3072')
    a(f's_add_u32 m0, s{sT0}, {L_W2R}')
    a(f's_lshl_b32 s{sT1}, s3, 10')
    a(f's_min_u32 s{sT2}, s{sT1}, 2048')
    for i in range(3):
        a(f'buffer_load_dwordx4 v{vLANE16}, s[{sW2F}:{sW2F+3}], s{sT0} offen offset:{1024*i} lds')
    a(f's_add_u32 m0, s{sT2}, {L_WRR}')
    a(f'ds_read_b128 v[104:107], v{pHS}')
    a(f'buffer_load_dwordx4 v{vLANE16}, s[{sWRR}:{sWRR+3}], s{sT1} offen lds')
    a(f'ds_read_b32 v108, v{pHC}')
    a(f'ds_read_b32 v109, v{pHC} offset:512')
    if opt.fine: tr(a, 50)
    for i in range(7):
        a(f'v_min_u32 v40, {CAP}, v{RK1+i}')
        a(f'v_lshl_add_u32 v{BINS+i}, v40, 2, v{BINS+i}')
    for i in range(7):
        a(f's_mov_b64 exec, s[{64+2*i}:{65+2*i}]')
        a(f'ds_write_b32 v{BINS+i}, v{ENT+i} offset:4')
    a('s_mov_b64 exec, -1')
    if opt.fine: tr(a, 51)
    def zero_counters(tag):
        a('s_cmp_ge_u32 s3, 2')
        a(f's_cbranch_scc1 L2_nozero{tag}')
        a('v_lshlrev_b32 v42, 2, v0')
        a('v_mov_b32 v44, 0')
        a(f'ds_write_b32 v42, v44 offset:{L_NCNT}')
        a.label(f'L2_nozero{tag}', settle=False)
    zero_counters('a')
    a('s_cmp_lg_u32 s3, 7')
    a('s_cbranch_scc1 L1_join')
    for h in range(2):
        a(f'ds_write_b128 v{vLANE16}, v[{144+4*h}:{147+4*h}] offset:{L_DPOS + 1024*h}')
    a.label('L1_join', settle=False)
    srd(a, 84, 24, SLOT_OFF, 16384, mul=SS)
    if opt.fine: tr(a, 52)
    n7 = 4 + [0, 4, 8][opt.pfres] + (2 if opt.prewr else 0)
    if opt.prew or opt.pfw:
        a('s_cmp_lg_u32 s3, 7')
        a('s_cbranch_scc1 L1_b3')
        a(f's_waitcnt vmcnt({n7})')
        a.label('L1_b3', settle=False)
    a('s_waitcnt vmcnt(%d) lgkmcnt(0)' % (n7 + (6 if opt.prew else 0) + (1 if opt.pfw else 0)))
    if opt.fine: tr(a, 53)
    a('v_max3_u32 v104, v104, v105, v106')
    a('v_max_u32 v104, v104, v107')
    a(f'v_cmp_lt_u32 vcc, {CAP}, v104')
    a('s_barrier')
    tr(a, 6)
    W = V
    a(f'ds_read_b128 v[{W}:{W+3}], v{pLDS}')
    a(f'ds_read_b128 v[{W+4}:{W+7}], v{pLDS} offset:{128*80}')
    a('s_cbranch_vccnz L1_ovf')
    a.label('L1_noovf', settle=False)
    for h in range(2):
        a(f's_waitcnt lgkmcnt({1-h})')
        a(f'v_cndmask_b32_e64 v{W+4*h}, v{W+4*h}, v{108+h}, s[{sPC0}:{sPC0+1}]')
        for j in (1, 2, 3):
            a(f'v_and_or_b32 v{W+4*h+j}, v{W+4*h+j}, v{pME}, s{sNB+j}')
        a(f'v_and_or_b32 v{W+4*h}, v{W+4*h}, v{pM0}, v{pT0}')
        a(f'buffer_store_dwordx4 v[{W+4*h}:{W+4*h+3}], v{pOFA+h}, s[84:87], 0 offen {opt.dumpsc}')
    tr(a, 7)
    consts_poll(a)
    if opt.wb == 1:
        emit_Q(a, vLPV, 44, 40) if False else None
    def res_image(tag):
        if tag == 'b':
            a(f'v_lshrrev_b32 v40, 9, v{vLANE16}')
            for k in range(4):
                a(f'v_add_u32 v{pRS+k}, {2*k}, v40')
                a(f'v_lshlrev_b32 v{pRS+k}, 5, v{pRS+k}')
                a(f'v_xor_b32 v{pRS+k}, v{pRS+k}, v{vLANE16}')
        a(f's_lshl_b32 s{sT0}, s3, 12')
        a(f's_add_u32 m0, s{sT0}, {L_RES}')
        a('s_cmp_ge_u32 s3, 5')
        for k in range(4):
            a(f'buffer_load_dwordx4 v{pRS+k}, s[{sRES}:{sRES+3}], s{sT0} offen offset:{1024*k} sc1 lds')
        a(f's_cbranch_scc1 L2_resdone{tag}')
        a(f's_add_u32 s{sT0}, s{sT0}, 32768')
        a(f's_add_u32 m0, s{sT0}, {L_RES}')
        a('s_cmp_eq_u32 s3, 4')
        for k in range(4):
            if k == 2: a(f's_cbranch_scc1 L2_resdone{tag}')
            a(f'buffer_load_dwordx4 v{pRS+k}, s[{sRES}:{sRES+3}], s{sT0} offen offset:{1024*k} sc1 lds')
        a.label(f'L2_resdone{tag}', settle=False)
    a(f's_mov_b32 s61, {1 << opt.spin}')
    a('s_waitcnt vmcnt(2)')
    a('s_barrier')
    tr(a, 23)
    if opt.wb == 1:
        consts_late(a); build_weights(a)
    if opt.wb == 2: consts_late(a)
    if opt.res_when == 'drain':
        res_image('a')
        a('s_waitcnt vmcnt(4)')
    elif opt.drain:
        a('s_waitcnt vmcnt(0)')
    else:
        a('s_nop 1')
    tr(a, 8)
    a(f'buffer_load_dwordx4 v[{W}:{W+3}], v{pPA}, s[{sSLOT}:{sSLOT+3}], 0 offen sc1')
    a(f'buffer_load_dwordx4 v[{W+4}:{W+7}], v{pPB}, s[{sSLOT}:{sSLOT+3}], 0 offen sc1')
    if opt.res_when == 'mid': res_image('a')
    if opt.wb == 0: consts_late(a)
    if opt.wb != 1: build_weights(a)
    a('s_waitcnt vmcnt(4)' if opt.res_when == 'mid' else 's_waitcnt vmcnt(0)')
    a.label('L2_poll')
    if opt.fine: tr(a, 24)
    for h in range(2):
        w = W + 4*h
        a(f'v_xor_b32 v{61+h}, v{pT0}, v{w}')
        a(f'v_and_b32 v{61+h}, v{pN0}, v{61+h}')
        for j in (1, 2, 3):
            a(f'v_xor_b32 v63, s{sNB+j}, v{w+j}')
            a(f'v_and_or_b32 v{61+h}, v63, v{pNE}, v{61+h}')
    a('v_cmp_ne_u32 vcc, 0, v61')
    a('v_cmp_ne_u32 s[66:67], 0, v62')
    a('s_and_b64 s[66:67], s[66:67], s[64:65]')
    a('s_or_b64 s[68:69], s[66:67], vcc')
    a.br('s_cbranch_scc0 L2_polled')
    a('s_sub_u32 s61, s61, 1')
    a('s_cmp_eq_u32 s61, 0')
    a.br('s_cbranch_scc1 L2_polled')
    if opt.sleep: a(f's_sleep {opt.sleep}')
    if opt.pollmask:
        a('s_mov_b64 exec, vcc')
        a('s_cbranch_execz L2_nopollA')
    a(f'buffer_load_dwordx4 v[{W}:{W+3}], v{pPA}, s[{sSLOT}:{sSLOT+3}], 0 offen sc1')
    if opt.pollmask:
        a.label('L2_nopollA', settle=False)
        a('s_mov_b64 exec, s[66:67]')
        a('s_cbranch_execz L2_nopollB')
    a(f'buffer_load_dwordx4 v[{W+4}:{W+7}], v{pPB}, s[{sSLOT}:{sSLOT+3}], 0 offen sc1')
    if opt.pollmask:
        a.label('L2_nopollB', settle=False)
        a('s_mov_b64 exec, -1')
    a('s_waitcnt vmcnt(0)')
    a.br('s_branch L2_poll')
    a.label('L2_polled')
    tr(a, 9)
    if opt.res_when == 'post': res_image('a')
    LIM, CNT = 56, 58
    a(f'v_mov_b32_dpp v{CNT}, v{W} quad_perm:[0,0,0,0] row_mask:0xf bank_mask:0xf')
    a(f'v_mov_b32_dpp v{CNT+1}, v{W+4} quad_perm:[0,0,0,0] row_mask:0xf bank_mask:0xf')
    for h in range(2):
        a(f'v_and_b32 v{CNT+h}, 0xfff, v{CNT+h}')
        a(f'v_min_u32 v{LIM+h}, {CAP}, v{CNT+h}')
        a(f'v_subrev_u32 v{CNT+h}, {CAP}, v{CNT+h}')
    a.label('L2_round')
    A = 60; RK = 68; T = 76
    a('v_mov_b32 v40, 1')
    a(f's_mov_b32 s60, {L_NCNT}')
    for i in range(4):
        a(f'v_add_u32 v{41+i}, {i}, v39')
    for i in range(8):
        a(f'v_cmp_lt_u32 s[{64+2*i}:{65+2*i}], v{41 + (i & 3)}, v{LIM + i//4}')
        a(f'v_and_b32 v{A+i}, 127, v{W+i}')
        a(f'v_lshl_add_u32 v{A+i}, v{A+i}, 2, s60')
    if opt.fine: tr(a, 61)
    a(f'v_max_i32 v41, v{CNT}, v{CNT+1}')
    a('v_cmp_lt_i32 vcc, 0, v41')
    for i in range(8):
        a(f's_mov_b64 exec, s[{64+2*i}:{65+2*i}]')
        a(f'ds_add_rtn_u32 v{RK+i}, v{A+i}, v40')
    a('s_mov_b64 exec, -1')
    if opt.res_when == 'post2':
        a(f's_cmp_lg_u32 s{sROUND}, 0')
        a('s_cbranch_scc1 L2_resdonea')
        res_image('a')
    a('s_cbranch_vccz L2_noflag')
    a(f'v_mov_b32 v41, {L_NCNT + 127*4}')
    a('ds_write_b32 v41, v40')
    a.label('L2_noflag', settle=False)
    for i in range(8):
        a(f'v_and_b32 v{W+i}, {M_ENT}, v{W+i}')
    for _ in range(opt.pad3): a('v_lshlrev_b32 v41, 1, v41')
    a('s_waitcnt lgkmcnt(0)')
    a('s_barrier')
    tr(a, 10)
    a(f's_cmp_lg_u32 s{sROUND}, 0')
    a.br('s_cbranch_scc1 L2_now2f')
    if opt.res_when == 'late': res_image('a')
    a('s_or_b32 s60, s2, s3')
    a('s_cmp_lg_u32 s60, 0')
    a.br('s_cbranch_scc1 L2_now2f')
    srd(a, 84, 24, EPOCH_OFF, 4)
    a(f'v_mov_b32 v43, s{sEP}')
    a('s_mov_b64 exec, 1')
    a('buffer_store_dword v43, off, s[84:87], 0 sc1')
    a('s_mov_b64 exec, -1')
    a.label('L2_now2f')
    if opt.pfv: a('v_mov_b32 v44, 0x40000000')
    for i in opt.pfv:
        a(f'v_and_b32 v45, 0xfffe00, v{W+i}')
        a(f'v_cndmask_b32_e64 v45, v44, v45, s[{64+2*i}:{65+2*i}]')
        for j in range(3*opt.pfn):
            a(f'buffer_load_dword v255, v45, s[{sSV}:{sSV+3}], 0 offen offset:{128 + j*128//opt.pfn}')
        if opt.pfh:
            a('v_lshrrev_b32 v45, 2, v45')
            a(f'buffer_load_dword v255, v45, s[{sH}:{sH+3}], 0 offen {opt.hsc}')
    a(f'v_lshrrev_b32 v41, 2, v{vLANE16}')
    a(f'v_add_u32 v41, {L_NCNT}, v41')
    a('ds_read2st64_b32 v[42:43], v41 offset1:1')
    a('s_waitcnt lgkmcnt(0)')
    a(f'v_readlane_b32 s{sMORE}, v43, 63')
    a('v_lshl_or_b32 v42, v43, 16, v42')
    a('v_mov_b32 v43, v42')
    for sh in ('row_shr:1', 'row_shr:2', 'row_shr:4', 'row_shr:8'):
        a(f'v_add_u32_dpp v43, v43, v43 {sh} row_mask:0xf bank_mask:0xf')
    a('v_add_u32_dpp v43, v43, v43 row_bcast:15 row_mask:0xa bank_mask:0xf')
    a('v_add_u32_dpp v43, v43, v43 row_bcast:31 row_mask:0xc bank_mask:0xf')
    a(f'v_readlane_b32 s{sT0}, v43, 63')
    a('v_sub_u32 v43, v43, v42')
    a(f's_and_b32 s{sT0}, s{sT0}, 0xffff')
    a(f'v_and_b32 v{vSTLO}, 0xffff, v43')
    a(f'v_lshrrev_b32 v{vSTHI}, 16, v43')
    a(f'v_add_u32 v{vSTHI}, s{sT0}, v{vSTHI}')
    if opt.fine: tr(a, 58)
    a(f'ds_write2st64_b32 v41, v{vSTLO}, v{vSTHI} offset0:2 offset1:3')
    for i in range(8):
        a(f'ds_read_b32 v{T+i}, v{A+i} offset:512')
    a(f'v_lshl_or_b32 v{vPACK}, v{vSTHI}, 16, v{vSTLO}')
    for i in range(8):
        if i % 4 == 0:
            a(f's_waitcnt lgkmcnt({4 - i})')
            for k in range(i, i+4): a(f'v_add_lshl_u32 v{T+k}, v{T+k}, v{RK+k}, 2')
        a(f's_mov_b64 exec, s[{64+2*i}:{65+2*i}]')
        a(f'ds_write_b32 v{T+i}, v{W+i} offset:{L_SORT}')
        if i % 4 == 3: a('s_mov_b64 exec, -1')
    for k, (st, d) in enumerate(((vSTLO, 32), (vSTHI, 32), (vSTLO, 64), (vSTHI, 64))):
        a(f'v_add_u32 v{T+k}, {d}, v{st}')
        a(f'v_lshlrev_b32 v{T+4+k}, 2, v{T+k}')
    a(f'v_readlane_b32 s{sT2}, v{vSTHI}, {R - 64}')
    a(f'v_lshrrev_b32 v40, 4, v{vLANE16}')
    a('v_add_u32 v41, 64, v40')
    a(f'v_mov_b32 v46, {R}')
    a(f's_mov_b32 s{sNC}, 0')
    a(f's_mov_b32 s{sC64}, s3')
    if opt.fine: tr(a, 59)
    a('s_waitcnt vmcnt(%d) lgkmcnt(0)' % (len(opt.pfv)*(3*opt.pfn + (1 if opt.pfh else 0))))
    if opt.fine: tr(a, 60)
    a('s_barrier')
    tr(a, 21)
    for k in (2, 3, 0, 1):
        a(f'ds_read_b32 v{T+4+k}, v{T+4+k} offset:{L_SORT}')
    for k in range(4):
        a(f'v_cmp_gt_u32 s[{64+2*k}:{65+2*k}], s{sT2}, v{T+k}')
    a('v_add_u32 v42, 1, v40')
    a('v_add_u32 v43, 16, v40')
    a('v_add_u32 v44, 1, v41')
    a('v_add_u32 v45, 16, v41')
    for k in (2, 3, 0, 1):
        r = T + 4 + k
        if k in (2, 0): a(f's_waitcnt lgkmcnt({2 if k == 2 else 0})')
        a(f'v_and_b32 v{r}, 127, v{r}')
        a(f'v_cndmask_b32_e64 v{r}, v46, v{r}, s[{64+2*k}:{65+2*k}]')
        a(f'v_med3_u32 v{r}, v{r}, v{42 + 2*(k & 1)}, v{43 + 2*(k & 1)}')
        a(f'v_min_u32 v{r}, v46, v{r}')
        if k == 3: a(f'v_lshl_or_b32 v{vNX64}, v{T+7}, 16, v{T+6}')
    a(f'v_lshl_or_b32 v{vNX32}, v{T+5}, 16, v{T+4}')
    if opt.fine: tr(a, 42)
    chain_loop(a, vNX64, sC64)
    if opt.fine: tr(a, 43)
    a(f's_cmp_lt_u32 s{sNC}, {R}')
    a.br('s_cbranch_scc0 L2_rounddone')
    if opt.prio: a('s_setprio 3')
    a(f's_mov_b32 s{sN0}, s{sNC}')
    chain_start(a, sE0)
    chain_step(a, vNX64)
    chain_start(a, sE1)
    a(f's_sub_u32 s{sNN}, s{sNC}, s{sN0}')
    a(f's_mov_b32 s{sXE0}, s{sE0}')
    a(f's_mov_b32 s{sXE1}, s{sE1}')
    emit(a, next_entry_read(TP))
    emit(a, next_mask(TP+4))
    a(f's_sub_u32 s{sC64}, 7, s3')
    a(f's_mov_b32 s{sC32}, s3')
    a('s_waitcnt lgkmcnt(0)')
    if opt.fine: tr(a, 62)
    emit(a, next_stage(TP+4, TP+5))
    emit(a, off_reads(0))
    emit(a, pos_load(TP+5))
    a('s_waitcnt lgkmcnt(0)')
    emit(a, off_adds())
    emit(a, h_loads())
    a(f's_mov_b32 s{sFI}, 1')
    if opt.prio: a('s_setprio %d' % {0: 0, 1: 1, 2: 1, 3: 2, 4: 2, 5: 2, 6: 2, 7: 1, 8: 2, 9: 1, 10: 2, 11: 2}[opt.yld])
    if opt.look: g.lookahead(a)
    tr(a, 22)
    a.br('s_branch L2_head_A')
    head(a, 'B')
    head(a, 'A')
    tail(a, 'toC')
    head(a, 'C')
    newitem(a)
    tail(a, 'toA')
    tail(a, 'fin')
    a.label('L2_rounddone')
    tr(a, 30)
    a(f's_cmp_eq_u32 s{sMORE}, 0')
    a.br('s_cbranch_scc1 L2_fin')
    a('s_waitcnt vmcnt(0) lgkmcnt(0)')
    a('s_barrier')
    zero_counters('b')
    srd(a, sRES, 20, 0, R*512, mul=R*512)
    res_image('b')
    a('v_lshrrev_b32 v40, 2, v0')
    a(f'v_mul_u32_u24 v41, {SS}, v40')
    a(f'buffer_load_dword v42, v41, s[{sSLOT}:{sSLOT+3}], 0 offen sc1')
    a(f'v_add_u32 v41, {128*SS}, v41')
    a(f'buffer_load_dword v43, v41, s[{sSLOT}:{sSLOT+3}], 0 offen sc1')
    a('v_and_b32 v39, 3, v0')
    a('v_lshlrev_b32 v39, 2, v39')
    a(f's_lshl_b32 s{sT0}, s{sROUND}, 4')
    a(f's_add_u32 s{sT1}, s{sT0}, {CAP}')
    a(f's_add_u32 s{sROUND}, s{sROUND}, 1')
    a(f'v_mul_u32_u24 v40, {CH*4}, v40')
    a('v_lshl_add_u32 v40, v39, 2, v40')
    a(f's_lshl_b32 s{sT0}, s{sT0}, 2')
    a(f'v_add_u32 v40, s{sT0}, v40')
    a('s_waitcnt vmcnt(0)')
    for h in range(2):
        a(f'v_bfe_u32 v44, v{42+h}, 12, 12')
        a(f'v_lshl_add_u32 v44, v44, 2, v40')
        if h: a(f'v_add_u32 v44, {128*CH*4}, v44')
        a(f'buffer_load_dwordx4 v[{W+4*h}:{W+4*h+3}], v44, s[{sOVF}:{sOVF+3}], 0 offen sc1')
        a(f'v_and_b32 v{CNT+h}, 0xfff, v{42+h}')
        a(f'v_subrev_u32 v{CNT+h}, s{sT1}, v{CNT+h}')
        a(f'v_med3_i32 v{LIM+h}, v{CNT+h}, 0, 16')
        a(f'v_subrev_u32 v{CNT+h}, 16, v{CNT+h}')
    a('s_waitcnt vmcnt(0) lgkmcnt(0)')
    a('s_barrier')
    a.br('s_branch L2_round')
    a.label('L2_fin')
    if opt.tr or opt.dbg2:
        a('s_waitcnt vmcnt(0)')
        tr(a, 31)
    tr_dump(a)
    a.label('L_end')
    a('s_endpgm')
    rare_paths(a)


DOC = """;
;
;   * the entries are counting-sorted by node and cut into items of <= 16 nodes and <= 64 (later 32) edges;
;     accumulated in fp32 on top of the residual row and rounded once;
;"""

def build():
    src = open('gather_scatter__molecular_angular_painn__graph.s.ref').read().split('\n')
    head_ = []
    for ln in src:
        if not ln.startswith(';'): break
        if '@launch' in ln or 'Override launch' in ln or 'grid=ceil' in ln: continue
        head_.append(ln)
    head_.append(f'; @launch grid=({NB},1,1) block=(512,1,1) lds={K1_LDS}')
    head_ += DOC.split('\n')
    a = Asm()
    a.raw('.amdgcn_target "amdgcn-amd-amdhsa--gfx950"\n.text')
    gen(a)
    return '\n'.join(head_) + '\n' + a.text() + '.section .rodata,"a"\n' + descriptor(NAME, 256)

def final_options():
    opt.prio = True; opt.hsc = ''; opt.earlyh = True; opt.prew = False; opt.pfw = False; opt.g1st = 1; opt.yld = 5
    opt.wb = 1; opt.sleep = 0; opt.drain = False; opt.nt_edges = True; opt.outst = 'sc1 nt'; opt.res_when = 'post'

if __name__ == '__main__':
    if 'final' in sys.argv: sys.argv.remove('final'); final_options()
    outp = sys.argv[1]
    for kv in sys.argv[2:]:
        k, val = kv.split('=', 1)
        setattr(opt, k, type(getattr(opt, k))(eval(val)))
    open(outp, 'w').write(build())
```

```python
import sys, struct
from asmlib import Asm

N = 25000; NB = 250; R = 100; CH = 3200
H_OFF = 0; SLOT_OFF = 0x400000; OVF_OFF = 0x800000; W2F_OFF = 0xC00000; WRF_OFF = W2F_OFF + 24576
POS4_OFF = 0xC10000; TS_OFF = 0xE00000
CAP = 15

def f2u(x): return struct.unpack('<I', struct.pack('<f', x))[0]
def fl(x): return '0x%08x' % f2u(x)
def v(i, n=1): return f'v{i}' if n == 1 else f'v[{i}:{i+n-1}]'
def s(i, n=1): return f's{i}' if n == 1 else f's[{i}:{i+n-1}]'

class Opt:
    ts = False
    tr = False
    dbg = False
    nt_edges = False
    nt_out = False
    k1st = ''
    outst = ''
    ntpos = False
    thr = 24.3
    rot = 4
    prio = False
    prio2 = 0
    pk = False
    mini = False
    cap16 = 0
    roll = False
    rollat = 1
    earlyst2 = False
    cprio = 0
    look = False
    earlyst = False
    earlyh = False
    rawpos = False
    spread = False
    pkc = 0
    trmain = True
    tlb = 0
    pf_sv = ''
    vsched = [8,0,0,0,8,0,0,0,8,0,0,0,0]
opt = Opt()

def srd(a, d, base, off, size, mul=None):
    if mul is not None:
        a(f's_mul_i32 s{d+2}, s2, {mul}')
        if off: a(f's_add_u32 s{d+2}, s{d+2}, {off}')
        a(f's_add_u32 s{d}, s{base}, s{d+2}')
        a(f's_addc_u32 s{d+1}, s{base+1}, 0')
    elif off:
        a(f's_add_u32 s{d}, s{base}, {off}')
        a(f's_addc_u32 s{d+1}, s{base+1}, 0')
    else:
        a(f's_mov_b32 s{d}, s{base}')
        a(f's_mov_b32 s{d+1}, s{base+1}')
    a(f's_mov_b32 s{d+2}, {size}')
    a(f's_mov_b32 s{d+3}, 0x20000')

def stamp(a, kern, idx, tmpv=None):
    if not opt.ts: return
    a.settle()
    L = f'Lts_{kern}_{idx}_{stamp.n}'; stamp.n += 1
    a(f's_cmp_lg_u32 s3, {stamp.wave}')
    a.br(f's_cbranch_scc1 {L}')
    a('s_memrealtime s[92:93]')
    a('s_mov_b64 s[94:95], exec')
    a('s_mov_b64 exec, 1')
    a('s_waitcnt lgkmcnt(0)')
    t = stamp.tmp
    a(f'v_mov_b32 v{t}, s92')
    a(f'v_mov_b32 v{t+1}, s93')
    a(f'v_mov_b32 v{t+2}, 0')
    a(f'buffer_store_dwordx2 v[{t}:{t+1}], v{t+2}, s[96:99], 0 offen offset:{idx*8}')
    a('s_mov_b64 exec, s[94:95]')
    a.label(L)
stamp.n = 0; stamp.wave = 0; stamp.tmp = 0

def stamp_init(a, kern):
    if not opt.ts: return
    a(f's_lshl_b32 s98, s2, 7')
    a(f's_add_u32 s98, s98, {TS_OFF + kern*256*128}')
    a('s_add_u32 s96, s24, s98')
    a('s_addc_u32 s97, s25, 0')
    a('s_mov_b32 s98, 128')
    a('s_mov_b32 s99, 0x20000')

def dbg_init(a, kern):
    if not opt.dbg: return
    a('s_load_dwordx2 s[96:97], s[0:1], 72')
    a('s_waitcnt lgkmcnt(0)')
    if kern:
        a('s_sub_u32 s96, s96, 512')
        a('s_subb_u32 s97, s97, 0')
    a('s_mov_b32 s98, 64')
    a('s_mov_b32 s99, 0x20000')

def dbg(a, idx, allwg=False):
    if not opt.dbg: return
    a.settle()
    L = f'Ldbg_{stamp.n}'; stamp.n += 1
    a('s_cmp_lg_u32 s3, 0')
    a.br(f's_cbranch_scc1 {L}')
    if not allwg:
        a('s_cmp_lg_u32 s2, 0')
        a.br(f's_cbranch_scc1 {L}')
    a('s_memrealtime s[92:93]')
    a('s_mov_b64 s[94:95], exec')
    a('s_mov_b64 exec, 1')
    a('s_waitcnt lgkmcnt(0)')
    t = stamp.tmp
    a(f'v_mov_b32 v{t}, s92')
    a(f'v_mov_b32 v{t+2}, 0')
    a(f'buffer_atomic_umax v{t}, v{t+2}, s[96:99], 0 offen offset:{idx*4}')
    a('s_mov_b64 exec, s[94:95]')
    a.label(L)

TR_OFF = 0x1000000
def tr_init(a):
    if not opt.tr: return
    a('s_lshl_b32 s98, s2, 3')
    a('s_add_u32 s98, s98, s3')
    a('s_lshl_b32 s98, s98, 10')
    a(f's_add_u32 s98, s98, {TR_OFF}')
    a('s_add_u32 s96, s24, s98')
    a('s_addc_u32 s97, s25, 0')
    a('s_mov_b32 s98, 1024')
    a('s_mov_b32 s99, 0x20000')
    a('s_mov_b32 s27, 0')
    a('v_mov_b32 v11, 0')

def tr(a, tag):
    if not opt.tr: return
    a('s_memtime s[92:93]')
    a('s_mov_b32 m0, s27')
    a('s_add_u32 s27, s27, 1')
    a('s_waitcnt lgkmcnt(0)')
    a('s_lshl_b32 s92, s92, 6')
    a(f's_or_b32 s92, s92, {tag}')
    a('v_writelane_b32 v11, s92, m0')

def tr_dump(a):
    if not opt.tr: return
    a('v_lshrrev_b32 v12, 2, v1')
    a('buffer_store_dword v11, v12, s[96:99], 0 offen')

def header(a, name):
    a.raw(f'.globl {name}\n.p2align 8\n.type {name},@function\n{name}:')
    a.hist = []

def descriptor(name, vgpr, sgpr=102):
    acc = (vgpr + 3) // 4 * 4
    return f'''.p2align 6
.amdhsa_kernel {name}
  .amdhsa_next_free_vgpr {vgpr}
  .amdhsa_next_free_sgpr {sgpr}
  .amdhsa_accum_offset {acc}
  .amdhsa_group_segment_fixed_size 0
  .amdhsa_kernarg_size 88
  .amdhsa_user_sgpr_count 2
  .amdhsa_user_sgpr_kernarg_segment_ptr 1
  .amdhsa_system_sgpr_workgroup_id_x 1
  .amdhsa_float_denorm_mode_32 3
.end_amdhsa_kernel
'''

def emit_Q(a, dst, q, t):
    a(f'v_lshrrev_b32 v{dst}, 2, v{q}')
    a(f'v_lshlrev_b32 v{dst}, 1, v{dst}')
    a(f'v_and_b32 v{t}, 1, v{q}')
    a(f'v_add_u32 v{dst}, v{dst}, v{t}')
    a(f'v_and_b32 v{t}, 2, v{q}')
    a(f'v_lshl_add_u32 v{dst}, v{t}, 2, v{dst}')

K1_POS = 0; K1_CNT = 150528; K1_OVB = 151808; K1_W1 = 152832; K1_LDS = 161024

def gen_k1(a, name):
    header(a, name)
    stamp.tmp = 60; stamp.wave = 0
    a('s_cmp_ge_u32 s2, %d' % NB)
    a('s_cbranch_scc1 L1_end')
    a('s_load_dwordx8 s[4:11], s[0:1], 0')
    a('s_load_dwordx8 s[12:19], s[0:1], 32')
    a('s_load_dwordx2 s[24:25], s[0:1], 80')
    a('v_lshrrev_b32 v1, 6, v0')
    a('v_and_b32 v2, 63, v0')
    a('v_readfirstlane_b32 s3, v1')
    a('v_lshlrev_b32 v3, 4, v2')
    a('v_mov_b32 v40, 0')
    a('s_cmp_ge_u32 s3, 5')
    a.br('s_cbranch_scc1 L1_nozero')
    a('v_lshlrev_b32 v41, 2, v0')
    a(f'v_add_u32 v41, {K1_CNT}, v41')
    a('ds_write_b32 v41, v40')
    a.label('L1_nozero')
    a('s_waitcnt lgkmcnt(0)')
    stamp_init(a, 0)
    stamp(a, 0, 0)
    dbg_init(a, 0)
    dbg(a, 0)
    dbg(a, 1, True)
    a('s_cmp_ge_u32 s3, 13')
    a.br('s_cbranch_scc1 L1_hpath')
    srd(a, 28, 8, 0, CH*4, mul=CH*4)
    srd(a, 32, 10, 0, CH*4, mul=CH*4)
    srd(a, 36, 6, 0, N*6)
    a('v_lshlrev_b32 v1, 4, v0')
    nt = ' nt' if opt.nt_edges else ''
    a(f'buffer_load_dwordx4 v[4:7], v1, s[28:31], 0 offen{nt}')
    a(f'buffer_load_dwordx4 v[8:11], v1, s[32:35], 0 offen{nt}')
    a('s_lshr_b32 s40, s2, 3')
    a(f's_mul_i32 s40, s40, {opt.rot}')
    a('s_add_u32 s40, s40, s3')
    for i in range(12):
        if i == 11:
            a('s_cmp_ge_u32 s3, 4')
            a.br('s_cbranch_scc1 L1_dmadone')
        a('s_sub_u32 s41, s40, 147')
        a('s_cmp_ge_u32 s40, 147')
        a('s_cselect_b32 s40, s41, s40')
        a('s_lshl_b32 s41, s40, 10')
        a('s_mov_b32 m0, s41')
        a('s_add_u32 s40, s40, 13')
        a('buffer_load_dwordx4 v3, s[36:39], s41 offen lds')
    a.label('L1_dmadone')
    a('s_mov_b64 s[42:43], -1')
    a('s_cmp_eq_u32 s3, 12')
    a('s_cselect_b32 s43, 0, s43')
    a(f's_mov_b32 s44, {fl(opt.thr)}')
    a(f's_mov_b32 s45, -100')
    a(f's_mov_b32 s46, {K1_CNT}')
    a('v_mov_b32 v59, 0xffff0000')
    stamp(a, 0, 1)
    a('s_waitcnt vmcnt(0) lgkmcnt(0)')
    a('s_barrier')
    stamp(a, 0, 2)
    dbg(a, 2)
    dbg(a, 3, True)
    for i in range(4):
        a(f'v_mul_u32_u24 v{12+i}, 6, v{4+i}')
        a(f'v_mul_u32_u24 v{16+i}, 6, v{8+i}')
        a(f'v_and_b32 v36, -4, v{12+i}')
        a(f'v_and_b32 v37, -4, v{16+i}')
        a(f'ds_read2_b32 v[{20+2*i}:{21+2*i}], v36 offset1:1')
        a(f'ds_read2_b32 v[{28+2*i}:{29+2*i}], v37 offset1:1')
    for i in range(4):
        a(f'v_mul_u32_u24 v36, 5243, v{8+i}')
        a(f'v_lshrrev_b32 v36, 19, v36')
        a(f'v_mad_i32_i24 v37, v36, s45, v{8+i}')
        a(f'v_lshl_or_b32 v{48+i}, v{4+i}, 9, v37')
        a(f'v_lshlrev_b32 v{44+i}, 2, v36')
        a(f'v_add_u32 v{52+i}, {K1_CNT}, v{44+i}')
    a('v_mov_b32 v56, 1')
    for i in range(4):
        p, q = 20+2*i, 28+2*i
        a(f's_waitcnt lgkmcnt({6-2*i})')
        a(f'v_alignbyte_b32 v36, v{p+1}, v{p}, v{12+i}')
        a(f'v_alignbyte_b32 v37, v{p+1}, v{p+1}, v{12+i}')
        a(f'v_alignbyte_b32 v38, v{q+1}, v{q}, v{16+i}')
        a(f'v_alignbyte_b32 v39, v{q+1}, v{q+1}, v{16+i}')
        a(f'v_lshlrev_b32 v{p}, 16, v36')
        a(f'v_lshlrev_b32 v{q}, 16, v38')
        a(f'v_and_b32 v36, v59, v36')
        a(f'v_and_b32 v38, v59, v38')
        a(f'v_lshlrev_b32 v37, 16, v37')
        a(f'v_lshlrev_b32 v39, 16, v39')
        a(f'v_sub_f32 v{p}, v{p}, v{q}')
        a(f'v_sub_f32 v36, v36, v38')
        a(f'v_sub_f32 v37, v37, v39')
        a(f'v_mul_f32 v{p}, v{p}, v{p}')
        a(f'v_fmac_f32 v{p}, v36, v36')
        a(f'v_fmac_f32 v{p}, v37, v37')
        a(f'v_cmp_ngt_f32 s[{64+2*i}:{65+2*i}], v{p}, s44')
        a(f's_and_b64 s[{64+2*i}:{65+2*i}], s[{64+2*i}:{65+2*i}], s[42:43]')
    for i in range(4):
        a(f's_mov_b64 exec, s[{64+2*i}:{65+2*i}]')
        a(f'ds_add_rtn_u32 v{12+i}, v{52+i}, v56')
    a('s_mov_b64 exec, -1')
    a('s_waitcnt lgkmcnt(0)')
    a('s_barrier')
    stamp(a, 0, 3)
    for i in range(4):
        a(f'v_cmp_gt_u32 s[{72+2*i}:{73+2*i}], {CAP}, v{12+i}')
        a(f'v_lshlrev_b32 v{16+i}, 4, v{44+i}')
        a(f'v_lshl_add_u32 v{16+i}, v{12+i}, 2, v{16+i}')
    for i in range(4):
        a(f's_and_b64 exec, s[{72+2*i}:{73+2*i}], s[{64+2*i}:{65+2*i}]')
        a(f'ds_write_b32 v{16+i}, v{48+i} offset:4')
        a(f's_andn2_b64 s[{64+2*i}:{65+2*i}], s[{64+2*i}:{65+2*i}], s[{72+2*i}:{73+2*i}]')
    a('s_mov_b64 exec, -1')
    a('s_cmp_ge_u32 s3, 4')
    a.br('s_cbranch_scc1 L1_nohdr')
    a('v_lshlrev_b32 v20, 2, v0')
    a(f'v_add_u32 v21, {K1_CNT}, v20')
    a('ds_read_b32 v22, v21')
    a('v_mov_b32 v23, 0')
    a('v_lshlrev_b32 v24, 6, v0')
    a('s_waitcnt lgkmcnt(0)')
    a(f'v_cmp_lt_u32 vcc, {CAP}, v22')
    a('s_and_saveexec_b64 s[80:81], vcc')
    a.br('s_cbranch_execz L1_hdr_noovf')
    a(f'v_subrev_u32 v25, {CAP}, v22')
    a(f'v_mov_b32 v26, {K1_CNT + 1024}')
    a('ds_add_rtn_u32 v23, v26, v25')
    a(f'v_add_u32 v21, {K1_OVB}, v20')
    a('s_waitcnt lgkmcnt(0)')
    a('ds_write_b32 v21, v23')
    a.label('L1_hdr_noovf')
    a('s_mov_b64 exec, s[80:81]')
    a('v_lshl_or_b32 v22, v23, 16, v22')
    a('ds_write_b32 v24, v22')
    a.label('L1_nohdr')
    a('s_waitcnt lgkmcnt(0)')
    a('s_barrier')
    a('s_or_b64 s[72:73], s[64:65], s[66:67]')
    a('s_or_b64 s[74:75], s[68:69], s[70:71]')
    a('s_or_b64 s[72:73], s[72:73], s[74:75]')
    a.br('s_cbranch_scc0 L1_dump')
    srd(a, 28, 24, OVF_OFF, CH*4, mul=CH*4)
    for i in range(4):
        a(f's_mov_b64 exec, s[{64+2*i}:{65+2*i}]')
        a.br(f's_cbranch_execz L1_ovf{i}')
        a(f'v_add_u32 v20, {K1_OVB}, v{44+i}')
        a('ds_read_b32 v21, v20')
        a('s_waitcnt lgkmcnt(0)')
        a(f'v_add_u32 v21, v21, v{12+i}')
        a(f'v_subrev_u32 v21, {CAP}, v21')
        a('v_lshlrev_b32 v21, 2, v21')
        a(f'buffer_store_dword v{48+i}, v21, s[28:31], 0 offen')
        a.label(f'L1_ovf{i}')
    a('s_mov_b64 exec, -1')
    a.br('s_branch L1_dump')

    a.label('L1_hpath')
    if opt.tlb:
        a('s_load_dwordx2 s[20:21], s[0:1], 64')
        a(f'v_lshlrev_b32 v100, {opt.tlb}, v2')
        srd(a, 48, 24, 0, 0xE00000)
        srd(a, 52, 4, 0, N*512)
        a('buffer_load_dword v101, v100, s[48:51], 0 offen')
        a('buffer_load_dword v102, v100, s[52:55], 0 offen')
        a('s_waitcnt lgkmcnt(0)')
        srd(a, 56, 20, 0, N*512)
        a('buffer_load_dword v103, v100, s[56:59], 0 offen')
    a('s_sub_u32 s40, s3, 13')
    srd(a, 28, 14, 0, 8192)
    srd(a, 32, 4, 0, R*512, mul=R*512)
    srd(a, 36, 24, H_OFF, R*128, mul=R*128)
    for i in range(8):
        a(f's_mov_b32 m0, {K1_W1 + i*1024}')
        a(f's_mov_b32 s41, {i*1024}')
        a('buffer_load_dwordx4 v3, s[28:31], s41 offen lds')
    a('v_and_b32 v4, 15, v2')
    a('v_lshrrev_b32 v5, 4, v2')
    a('s_lshl_b32 s41, s40, 4')
    a('v_add_u32 v6, s41, v4')
    a('v_lshlrev_b32 v7, 4, v5')
    a('v_lshl_add_u32 v8, v6, 9, v7')
    a('v_lshl_add_u32 v9, v6, 7, v7')
    a('buffer_load_dwordx4 v[12:15], v8, s[32:35], 0 offen')
    a('buffer_load_dwordx4 v[16:19], v8, s[32:35], 0 offen offset:64')
    a(f'v_add_u32 v8, {48*512}, v8')
    a('buffer_load_dwordx4 v[20:23], v8, s[32:35], 0 offen')
    a('buffer_load_dwordx4 v[24:27], v8, s[32:35], 0 offen offset:64')
    a(f'v_add_u32 v8, {48*512}, v8')
    a('buffer_load_dwordx4 v[28:31], v8, s[32:35], 0 offen')
    a('buffer_load_dwordx4 v[32:35], v8, s[32:35], 0 offen offset:64')
    a('v_lshrrev_b32 v10, 2, v4')
    a('v_lshl_add_u32 v10, v5, 3, v10')
    a('v_and_b32 v11, 3, v4')
    a('v_lshlrev_b32 v11, 3, v11')
    a('v_lshl_add_u32 v10, v10, 7, v11')
    a(f'v_add_u32 v10, {K1_W1}, v10')
    a('s_waitcnt vmcnt(6)')
    FR = 64
    for ht in range(4):
        for ks in range(2):
            r = FR + (ht*2+ks)*4
            for hf in range(2):
                a(f'ds_read_b64_tr_b16 v[{r+2*hf}:{r+2*hf+1}], v10 offset:{ks*4096 + ht*32 + hf*512}')
    a('s_waitcnt lgkmcnt(0)')
    D = 96; O = 112
    for t in range(3):
        if t == 2:
            a('s_cmp_lg_u32 s40, 0')
            a.br('s_cbranch_scc1 L1_hdone')
        S = 12 + 8*t
        a('s_waitcnt vmcnt(4)')
        for ht in range(4):
            a(f'v_mfma_f32_16x16x32_bf16 v[{D+4*ht}:{D+4*ht+3}], v[{FR+ht*8}:{FR+ht*8+3}], v[{S}:{S+3}], 0')
        for ht in range(4):
            a(f'v_mfma_f32_16x16x32_bf16 v[{D+4*ht}:{D+4*ht+3}], v[{FR+ht*8+4}:{FR+ht*8+7}], v[{S+4}:{S+7}], v[{D+4*ht}:{D+4*ht+3}]')
        for i in range(16):
            a(f'v_cvt_pk_bf16_f32 v{D+i}, 0, v{D+i}')
        T = 120
        for grp in range(4):
            for i in range(4):
                a(f'v_mul_f32 v{T+i}, {fl(-1.4426950408889634)}, v{D+4*grp+i}')
            for i in range(4):
                a(f'v_exp_f32 v{T+i}, v{T+i}')
            for i in range(4):
                a(f'v_add_f32 v{T+i}, 1.0, v{T+i}')
            for i in range(4):
                a(f'v_rcp_f32 v{T+i}, v{T+i}')
            for i in range(4):
                a(f'v_mul_f32 v{T+i}, v{T+i}, v{D+4*grp+i}')
            a(f'v_cvt_pk_bf16_f32 v{O+2*grp}, v{T}, v{T+1}')
            a(f'v_cvt_pk_bf16_f32 v{O+2*grp+1}, v{T+2}, v{T+3}')
        a(f'buffer_store_dwordx4 v[{O}:{O+3}], v9, s[36:39], 0 offen ' + opt.k1st)
        a(f'buffer_store_dwordx4 v[{O+4}:{O+7}], v9, s[36:39], 0 offen offset:64 ' + opt.k1st)
        a(f'v_add_u32 v9, {48*128}, v9')
    a.label('L1_hdone')
    a('s_cmp_lg_u32 s40, 2')
    a.br('s_cbranch_scc1 L1_nofrag')
    a('s_cmp_ge_u32 s2, 27')
    a.br('s_cbranch_scc1 L1_nofrag')
    emit_Q(a, 12, 4, 13)
    a('v_lshlrev_b32 v12, 3, v12')
    srd(a, 32, 24, W2F_OFF, 24576 + 1536)
    a('s_cmp_ge_u32 s2, 24')
    a.br('s_cbranch_scc1 L1_wrfrag')
    srd(a, 28, 16, 0, 64*192*2)
    a('s_lshr_b32 s41, s2, 3')
    a('s_lshl_b32 s41, s41, 7')
    a('s_bfe_u32 s47, s2, 0x20001')
    a('s_lshl_b32 s47, s47, 1')
    a('s_add_u32 s41, s41, s47')
    a('s_and_b32 s47, s2, 1')
    a(f's_mul_i32 s47, s47, {32*384}')
    a('s_add_u32 s41, s41, s47')
    a(f'v_mul_u32_u24 v13, {4*384}, v5')
    a('v_add3_u32 v12, v12, v13, s41')
    a(f'v_add_u32 v13, {16*384}, v12')
    for jj in range(8):
        a(f'buffer_load_ushort v{16+jj}, v{12 if jj < 4 else 13}, s[28:31], 0 offen offset:{(jj&3)*384}')
    a('s_lshl_b32 s41, s2, 10')
    a('v_add_u32 v14, s41, v3')
    a('s_waitcnt vmcnt(0)')
    for i in range(4):
        a(f'v_lshl_or_b32 v{16+i}, v{17+2*i}, 16, v{16+2*i}')
    a('buffer_store_dwordx4 v[16:19], v14, s[32:35], 0 offen')
    a.br('s_branch L1_nofrag')
    a.label('L1_wrfrag')
    srd(a, 28, 18, 0, 4*192*2)
    a('s_sub_u32 s41, s2, 24')
    a('s_lshl_b32 s47, s41, 7')
    a('v_lshlrev_b32 v13, 1, v5')
    a('v_add3_u32 v12, v12, v13, s47')
    for k in range(4):
        a(f'buffer_load_ushort v{16+k}, v12, s[28:31], 0 offen offset:{k*384}')
    a('s_lshl_b32 s41, s41, 9')
    a('s_add_u32 s41, s41, 24576')
    a('v_lshlrev_b32 v14, 3, v2')
    a('v_add_u32 v14, s41, v14')
    a('s_waitcnt vmcnt(0)')
    for i in range(2):
        a(f'v_lshl_or_b32 v{16+i}, v{17+2*i}, 16, v{16+2*i}')
    a('buffer_store_dwordx2 v[16:17], v14, s[32:35], 0 offen')
    a.label('L1_nofrag')
    srd(a, 28, 24, POS4_OFF, R*8, mul=R*8)
    a('s_lshl_b32 s41, s40, 6')
    a('v_add_u32 v12, s41, v2')
    a(f's_mul_i32 s41, s2, {R}')
    a('v_add_u32 v13, s41, v12')
    a('v_mul_u32_u24 v13, 6, v13')
    a('v_and_b32 v14, -4, v13')
    a('v_lshlrev_b32 v12, 3, v12')
    a('s_waitcnt lgkmcnt(0)')
    a('s_barrier')
    a('ds_read2_b32 v[16:17], v14 offset1:1')
    a('s_waitcnt lgkmcnt(0)')
    a('v_alignbyte_b32 v18, v17, v16, v13')
    a('v_alignbyte_b32 v19, v17, v17, v13')
    a('v_and_b32 v19, 0xffff, v19')
    a('buffer_store_dwordx2 v[18:19], v12, s[28:31], 0 offen')
    if opt.pf_sv:
        srd(a, 32, 4, 0, R*512, mul=R*512)
        a('s_lshl_b32 s41, s40, 10')
        a('v_add_u32 v20, s41, v3')
        for i in range(17):
            a(f'buffer_load_dwordx4 v[100:103], v20, s[32:35], 0 offen {opt.pf_sv if opt.pf_sv != "plain" else ""}')
            a('v_add_u32 v20, 3072, v20')
    a('s_barrier')
    a('s_barrier')
    a.label('L1_dump')
    stamp(a, 0, 4)
    srd(a, 28, 24, SLOT_OFF, NB*16384)
    a('v_lshlrev_b32 v4, 4, v0')
    a('ds_read_b128 v[8:11], v4')
    a('v_lshrrev_b32 v5, 2, v0')
    a('v_lshlrev_b32 v5, 14, v5')
    a('v_and_b32 v6, 3, v0')
    a('v_lshl_add_u32 v5, v6, 4, v5')
    a('s_lshl_b32 s41, s2, 6')
    a('v_add_u32 v5, s41, v5')
    a('s_waitcnt lgkmcnt(0)')
    a('buffer_store_dwordx4 v[8:11], v5, s[28:31], 0 offen ' + opt.k1st)
    if opt.ts or opt.dbg:
        a('s_waitcnt vmcnt(0)')
        stamp(a, 0, 5)
        dbg(a, 4)
        dbg(a, 5, True)
    a.label('L1_end')
    a('s_endpgm')

L_W2F = 0; L_NCNT = 24576; L_START = L_NCNT + 512; L_DPOS = 25600; L_FLAG = 27648; L_STG = 27680
STG = 768
L_SORT = L_STG + 8*STG; L_RES = 50176; K2_LDS = L_RES + 116*512
assert L_SORT + 4*(4000+64) <= L_RES
S_VOFF, S_DL, S_R = 0, 256, 384

vLANE16, vSTGW, vSTGH, vSTGR, vSTGS, vLPV, vLPH, vLPR, vQQ, vMHI, vTR, vPACK, vNX64, vHA, vNQ, vRES, vE, vNX32, vM = range(1, 20)
PS = 20
RBF = 22
WR = 24
HOFF = 30
SEL = 32; SR = 36
V = 48
H = 96
ACC = 112
D3 = 176
D2 = 208
WS = 224
VOFF = 240
TP = 248
vRL = 254
vSTLO, vSTHI = ACC, ACC + 1
K2_VGPR = 256
sSV, sH, sP4, sOUT, sRES, sSLOT, sW2F, sOVF = 28, 32, 36, 40, 44, 48, 52, 80
sF = 56
sNC, sC64, sC32, sN0, sE0, sE1, sMORE, sROUND, sT0, sT1, sT2, sNN = 60, 61, 62, 63, 84, 85, 87, 88, 89, 90, 91, 26
sEXQ = 22
sXN0, sXNN, sXE0, sXE1, sXCONT, sLAST, sSTG, sSD, sRB = 68, 69, 70, 71, 72, 73, 6, 7, 8

def chain_step(a, tab):
    a(f'v_readlane_b32 s{sT0}, v{tab}, s{sNC}')
    a(f's_lshr_b32 s{sT1}, s{sNC}, 2')
    a(f's_and_b32 s{sT1}, s{sT1}, 16')
    a(f's_lshr_b32 s{sT0}, s{sT0}, s{sT1}')
    a(f's_and_b32 s{sNC}, s{sT0}, 0xffff')

def chain_start(a, dst):
    a(f'v_readlane_b32 s{sT0}, v{vPACK}, s{sNC}')
    a(f's_lshr_b32 s{sT1}, s{sNC}, 2')
    a(f's_and_b32 s{sT1}, s{sT1}, 16')
    a(f's_lshr_b32 s{sT0}, s{sT0}, s{sT1}')
    a(f's_and_b32 s{dst}, s{sT0}, 0xffff')

loop_n = [0]
def chain_loop(a, tab, cnt):
    n = loop_n[0]; loop_n[0] += 1
    a(f's_cmp_eq_u32 s{cnt}, 0')
    a(f's_cbranch_scc1 L2_walkdone{n}')
    a.label(f'L2_walk{n}', settle=False)
    chain_step(a, tab)
    a(f's_sub_u32 s{cnt}, s{cnt}, 1')
    a(f's_cmp_lg_u32 s{cnt}, 0')
    a(f's_cbranch_scc1 L2_walk{n}')
    a.label(f'L2_walkdone{n}', settle=False)

def Rn(d, x): return f'v_cvt_pk_bf16_f32 v{d}, 0, v{x}'

def weave(main, fill):
    out = []; n = len(main); m = len(fill); k = 0
    for i, x in enumerate(main):
        out.append(x)
        want = (i + 1) * m // n
        out += fill[k:want]; k = want
    return out + fill[k:]

def emit(a, lst):
    for x in lst: a(x)

def next_entry_read(t):
    if opt.mini:
        return [f's_lshl_b32 s{sT0}, s{sXE0}, 2',
                f'v_lshrrev_b32 v{t+1}, 2, v{vLANE16}',
                f'v_add_u32 v{t}, s{sT0}, v{t+1}',
                f'ds_read_b32 v{vE}, v{t} offset:{L_SORT}']
    return [f's_lshl_b32 s{sT0}, s{sXE0}, 2',
            f's_add_u32 s{sT0}, s{sT0}, s{sSD}',
            f'v_add_u32 v{t}, s{sT0}, v{vSTGW}',
            f'ds_read_b32 v{vE}, v{t}']
def next_mask(t):
    if opt.mini:
        return [f's_sub_u32 s{sT0}, s{sXE1}, s{sXE0}',
                f's_lshl_b32 s{sT0}, s{sT0}, 2',
                f'v_subrev_u32 v{t}, s{sT0}, v{TP+1}',
                f'v_ashrrev_i32 v{t}, 31, v{t}']
    return [f's_sub_u32 s{sT0}, s{sXE1}, s{sXE0}',
            f's_lshl_b32 s{sT0}, s{sT0}, 2',
            f's_add_u32 s{sT0}, s{sT0}, s{sSTG}',
            f'v_subrev_u32 v{t}, s{sT0}, v{vSTGW}',
            f'v_ashrrev_i32 v{t}, 31, v{t}']
def next_stage(t, u):
    return ([f'v_and_b32 v{vE}, 0x00fffe7f, v{vE}'] if getattr(opt, 'strip', False) else []) + [
            f'v_bitop3_b32 v{vE}, v{vE}, v{t}, v{t} bitop3:0xf3',
            f'v_and_b32 v{t}, 0x7ffffe00, v{vE}',
            f'v_lshrrev_b32 v{u}, {9 if opt.rawpos else 6}, v{vE}',
            f'ds_write_b32 v{vSTGW}, v{t}',
            f'v_mul_u32_u24 v{u}, 6, v{u}' if opt.rawpos else f'v_and_b32 v{u}, -8, v{u}']
def off_reads(u):
    return [f'ds_read_b32 v{HOFF}, v{vHA} offset:{128*u}',
            f'ds_read_b32 v{HOFF+1}, v{vHA} offset:{128*u + 16}',
            f'ds_read_b128 v[{VOFF}:{VOFF+3}], v{vSTGR} offset:{128*u}',
            f'ds_read_b128 v[{VOFF+4}:{VOFF+7}], v{vSTGR} offset:{128*u + 16}']
def off_adds():
    return ([f'v_lshrrev_b32 v{HOFF+et}, 2, v{HOFF+et}' for et in range(2)] +
            [f'v_add_u32 v{HOFF+et}, v{HOFF+et}, v{vLPH}' for et in range(2)] +
            [f'v_add_u32 v{VOFF+jj}, v{VOFF+jj}, v{vLPV}' for jj in range(8)])
def pos_load(u): return [f'buffer_load_dwordx2 v[{PS}:{PS+1}], v{u}, s[{sP4}:{sP4+3}], 0 offen']
def h_loads():
    return [f'buffer_load_dwordx4 v[{H+et*8+ks*4}:{H+et*8+ks*4+3}], v{HOFF+et}, s[{sH}:{sH+3}], 0 offen offset:{ks*64}'
            for et in range(2) for ks in range(2)]
def v_loads(j):
    return [f'buffer_load_dwordx2 v[{V+j*16+jj*2}:{V+j*16+jj*2+1}], v{VOFF+jj}, s[{sSV}:{sSV+3}], 0 offen offset:{128*(j+1)}'
            for jj in range(4*NET())]
def out_stores(addr):
    return [f'buffer_store_dwordx4 v[{D3+(c*2+hh)*4}:{D3+(c*2+hh)*4+3}], v{addr}, s[{sOUT}:{sOUT+3}], 0 offen offset:{c*128+hh*64} {opt.outst}'
            for c in range(4) for hh in range(2)]
def wread(step):
    p = [0, 2, 1][step // 4]; ct = step % 4
    return [f'ds_read_b128 v[{WS+(step%2)*8+ks*4}:{WS+(step%2)*8+ks*4+3}], v{vLANE16} offset:{L_W2F + ((p*4+ct)*2+ks)*1024}' for ks in range(2)]
MINI = [False]
def mf_seg(acc, A, B):
    if MINI[0]: return f'v_mfma_f32_16x16x16bf16_1k v[{acc}:{acc+3}], v[{A}:{A+1}], v[{B}:{B+1}], v[{acc}:{acc+3}]'
    return f'v_mfma_f32_16x16x32_bf16 v[{acc}:{acc+3}], v[{A}:{A+3}], v[{B}:{B+3}], v[{acc}:{acc+3}]'
def NET(): return 1 if MINI[0] else 2
def wf(p, u):
    if MINI[0]: return [f'v_mfma_f32_16x16x4bf16_1k v[{D3}:{D3+15}], v[{RBF}:{RBF+1}], v[{WR+2*p}:{WR+2*p+1}], 0 cbsz:2 abid:0']
    return [f'v_mfma_f32_16x16x4bf16_1k v[{D3+16*et}:{D3+16*et+15}], v[{RBF}:{RBF+1}], v[{WR+2*p}:{WR+2*p+1}], 0 cbsz:2 abid:{2*u+et}' for et in range(2)]

sFI = 0
def T(a, n):
    if opt.trmain: tr(a, n)

def l2_mfma(step):
    d = D2 + (step % 2)*8; w = WS + (step % 2)*8; o = []
    for ks in range(2):
        for et in range(NET()):
            c = '0' if ks == 0 else f'v[{d+4*et}:{d+4*et+3}]'
            o.append(f'v_mfma_f32_16x16x32_bf16 v[{d+4*et}:{d+4*et+3}], v[{H+et*8+ks*4}:{H+et*8+ks*4+3}], v[{w+4*ks}:{w+4*ks+3}], {c}')
    return o
def l2_mul(step):
    part = step // 4; ct = step % 4; d = D2 + (step % 2)*8; o = []
    for et in range(NET()):
        for r in range(4):
            m = D3 + et*16 + ct*4 + r
            o.append(f'v_mul_f32 v{m if part == 2 else d+4*et+r}, v{d+4*et+r}, v{m}')
    if opt.pkc:
        o = []
        for et in range(2):
            for r in (0, 2):
                m = D3 + et*16 + ct*4 + r; x = d+4*et+r; y = m if part == 2 else x
                o.append(f'v_pk_mul_f32 v[{y}:{y+1}], v[{x}:{x+1}], v[{m}:{m+1}]')
    return o
def pbuf(step): return (TP + 4*(step % 2)) if opt.spread else D2 + (step % 2)*8
def l2_cvt(step):
    if step // 4 == 2: return []
    d = D2 + (step % 2)*8; p = pbuf(step)
    return [f'v_cvt_pk_bf16_f32 v{p+i}, v{d+2*i}, v{d+2*i+1}' for i in range(2*NET())]
def l2_seg(step):
    part = step // 4; ct = step % 4; d = pbuf(step)
    if part == 2: return []
    if part == 0:
        acc = ACC + ct*4
        return [mf_seg(acc, d, SEL)]
    return [mf_seg(ACC+(1+j)*16+ct*4, d, SR+4*j) for j in range(3)]
def sel_reads(u):
    if MINI[0]:
        return ([f'ds_read_b64 v[{SEL}:{SEL+1}], v{vSTGS} offset:{S_DL}'] +
                [f'ds_read_b64 v[{SR+4*j}:{SR+4*j+1}], v{vSTGS} offset:{S_R + 128*j}' for j in range(3)])
    return ([f'ds_read_b128 v[{SEL}:{SEL+3}], v{vSTGS} offset:{S_DL + 64*u}'] +
            [f'ds_read_b128 v[{SR+4*j}:{SR+4*j+3}], v{vSTGS} offset:{S_R + 128*j + 64*u}' for j in range(3)])

def head(a, tag):
    first = tag in 'AM'; u = 1 if tag == 'C' else 0
    MINI[0] = tag == 'M'
    NS = 2*NET()
    if u == 0: a.label(f'L2_head_{tag}')
    vl = v_loads(0) + v_loads(1) + v_loads(2)
    assert sum(opt.vsched) == 24
    def vissue(i):
        n = opt.vsched[i] if not opt.roll else (8 if i == opt.rollat else 0)
        if MINI[0]: n //= 2
        emit(a, vl[:n]); del vl[:n]
    if u == 0:
        X = D2
        DP = TP
        a(f'v_and_b32 v{X}, 127, v{vE}')
        a(f'v_lshlrev_b32 v{X+1}, 4, v{X}')
        a(f'ds_read_b128 v[{DP}:{DP+3}], v{X+1} offset:{L_DPOS}')
        a(f'ds_write_b16 v{vSTGH}, v{X} offset:{S_DL}')
        if first:
            a(f's_lshl_b32 s{sT0}, s{sN0}, 9')
            a(f'v_add_u32 v{vRES}, s{sT0}, v{vLPR}')
            a(f's_mul_i32 s{sT0}, s{sN0}, 0x10001')
            a(f'v_add_u32 v{vNQ}, s{sT0}, v{vQQ}')
            a(f's_bfm_b32 s{sT1}, s{sNN}, 0')
            a(f's_lshl_b32 s{sT2}, s{sT1}, 16')
            a(f's_or_b32 s{sEXQ}, s{sT1}, s{sT2}')
            a(f's_mov_b32 s{sEXQ+1}, s{sEXQ}')
        else:
            a(f's_lshl_b32 s{sT0}, s{sN0}, 9')
            a(f'v_add_u32 v{vRES}, s{sT0}, v{vLPR}')
        if first:
            a(f'v_and_b32 v{X+3}, 0xff, v{vNQ}')
            a(f'v_and_b32 v{X+4}, 7, v{vNQ}')
            a(f'v_lshlrev_b32 v{X+4}, 5, v{X+4}')
            a(f'v_xor_b32 v{X+4}, v{X+4}, v{vLPH}')
            a(f'v_lshl_add_u32 v{X+3}, v{X+3}, 9, v{X+4}')
            a(f'v_add_u32 v{X+3}, {L_RES}, v{X+3}')
            for i in range(8):
                if i: a(f'v_xor_b32 v{X+4+(i&1)}, {i*64}, v{X+3}')
                a(f'ds_read_b128 v[{D3+4*i}:{D3+4*i+3}], v{X+3 if i == 0 else X+4+(i&1)}')
        a(f'v_ashrrev_i32 v{vM}, 31, v{vE}')
        T(a, 9)
        if tag == 'A' and sFI:
            a(f's_cmp_eq_u32 s{sFI}, 0')
            a('s_cbranch_scc1 L2_notfirst1')
            a('s_waitcnt vmcnt(4)')
            a.lines.append('L2_notfirst1:')
        a('s_waitcnt vmcnt(%d)' % (28 if opt.roll else 12))
        T(a, 10)
        rx, ry, rz, t0, t1, t2, dd, inv = range(X, X+8)
        g0 = X + 8
        if opt.rawpos:
            a(f'v_alignbyte_b32 v{PS}, v{PS+1}, v{PS}, v{TP+5}')
            a(f'v_alignbyte_b32 v{PS+1}, v{PS+1}, v{PS+1}, v{TP+5}')
        a(f'v_lshlrev_b32 v{rx}, 16, v{PS}')
        a(f'v_and_b32 v{ry}, v{vMHI}, v{PS}')
        a(f'v_lshlrev_b32 v{rz}, 16, v{PS+1}')
        a(f's_waitcnt lgkmcnt({9 if first else 1})')
        for i in range(3): a(f'v_sub_f32 v{rx+i}, v{rx+i}, v{DP+i}')
        sc = []
        sc += [Rn(rx+i, rx+i) for i in range(3)]
        sc += [f'v_mul_f32 v{t0+i}, v{rx+i}, v{rx+i}' for i in range(3)]
        sc += [Rn(t0+i, t0+i) for i in range(3)]
        sc += [f'v_add_f32 v{t0}, v{t0}, v{t1}', f'v_add_f32 v{t0}, v{t0}, v{t2}', Rn(t0, t0),
               f'v_add_f32 v{t0}, {fl(1e-8)}, v{t0}', Rn(t0, t0), f'v_sqrt_f32 v{t0}, v{t0}', Rn(dd, t0), f'v_rcp_f32 v{inv}, v{dd}']
        sc += [f'v_mul_f32 v{g0+4}, {fl(3.141592653589793)}, v{dd}']
        sc += [f'v_mul_f32 v{g0+k}, s{sF+k}, v{dd}' for k in range(4)]
        sc += [Rn(g0+4, g0+4)] + [f'v_mul_f32 v{g0+4}, {fl(0.2)}, v{g0+4}'] + [Rn(g0+k, g0+k) for k in range(2)]
        sc += [Rn(g0+4, g0+4)] + [Rn(g0+k, g0+k) for k in range(2, 4)]
        sc += [f'v_mul_f32 v{g0+4}, 0.15915494, v{g0+4}']
        sc += [f'v_mul_f32 v{rx+i}, v{rx+i}, v{inv}' for i in range(3)]
        sc += [f'v_cos_f32 v{g0+4}, v{g0+4}']
        sc += [f'v_mul_f32 v{g0+k}, 0.15915494, v{g0+k}' for k in range(4)]
        sc += [f'v_cvt_pk_bf16_f32 v{t0}, v{rx}, v{ry}', f'v_cvt_pk_bf16_f32 v{t1}, v{rz}, v{rz}', Rn(g0+4, g0+4)]
        sc += [f'v_sin_f32 v{g0+k}, v{g0+k}' for k in range(2)]
        sc += [f'v_bitop3_b32 v{t0}, v{t0}, v{vM}, v{vM} bitop3:0x30', f'v_bitop3_b32 v{t1}, v{t1}, v{vM}, v{vM} bitop3:0x30',
               f'v_add_f32 v{g0+4}, 1.0, v{g0+4}']
        sc += [f'ds_write_b16 v{vSTGH}, v{t0} offset:{S_R}', f'ds_write_b16_d16_hi v{vSTGH}, v{t0} offset:{S_R+128}', f'ds_write_b16 v{vSTGH}, v{t1} offset:{S_R+256}']
        sc += sel_reads(0)
        sc += [f'v_sin_f32 v{g0+k}, v{g0+k}' for k in range(2, 4)]
        sc += [Rn(g0+4, g0+4), f'v_mul_f32 v{inv}, 0.5, v{inv}', f'v_mul_f32 v{inv}, v{inv}, v{g0+4}']
        sc += [f'v_mul_f32 v{g0+k}, v{g0+k}, v{inv}' for k in range(4)]
        sc += [f'v_cvt_pk_bf16_f32 v{RBF}, v{g0}, v{g0+1}', f'v_cvt_pk_bf16_f32 v{RBF+1}, v{g0+2}, v{g0+3}',
               f'v_bitop3_b32 v{RBF}, v{RBF}, v{vM}, v{vM} bitop3:0x30', f'v_bitop3_b32 v{RBF+1}, v{RBF+1}, v{vM}, v{vM} bitop3:0x30']
        fill = []
        if first:
            for c in range(4):
                for hh in range(2):
                    for ct in range(4):
                        for r in (2*hh, 2*hh+1):
                            src = D3 + (c*2 + hh)*4 + 2*(r & 1) + (ct >> 1)
                            dst = ACC + c*16 + ct*4 + r
                            fill.append(f'v_and_b32 v{dst}, v{vMHI}, v{src}' if ct & 1 else f'v_lshlrev_b32 v{dst}, 16, v{src}')
        nh = 6
        emit(a, sc[:nh])
        if first: a('s_waitcnt lgkmcnt(0)')
        emit(a, weave(sc[nh:], fill))
        emit(a, wread(0)); emit(a, wread(1))
    else:
        emit(a, wread(0)); emit(a, wread(1))
        T(a, 9)
    a(f's_mov_b32 s{sT0}, 0x00010001')
    a('s_waitcnt lgkmcnt(7)')
    for i in range(NS): a(f'v_xor_b32 v{SEL+i}, v{SEL+i}, v{vNQ}')
    emit(a, wf(0, u)[:1])
    for i in range(NS): a(f'v_pk_min_u16 v{SEL+i}, v{SEL+i}, s{sT0}')
    for i in range(NS): a(f'v_pk_sub_u16 v{SEL+i}, v{SEL+i}, s{sT0}')
    emit(a, wf(0, u)[1:])
    a('s_waitcnt lgkmcnt(4)')
    for j in range(3):
        for i in range(NS): a(f'v_and_b32 v{SR+4*j+i}, v{SR+4*j+i}, v{SEL+i}')
    for i in range(NS): a(f'v_and_b32 v{SEL+i}, 0x3f803f80, v{SEL+i}')
    if opt.roll:
        if first:
            a(f's_cmp_eq_u32 s{sFI}, 0')
            a('s_cbranch_scc1 L2_notfirst2')
            emit(a, v_loads(0))
            a('s_waitcnt vmcnt(8)')
            emit(a, v_loads(1))
            a(f's_mov_b32 s{sFI}, 0')
            a.lines.append('L2_notfirst2:')
        T(a, 11)
        a(f's_waitcnt vmcnt({(8 if u == 0 else 0) + 16})')
        vl = v_loads(2)
    else:
        vissue(0)
        T(a, 11)
        if tag == 'A' and sFI:
            a(f's_cmp_eq_u32 s{sFI}, 0')
            a('s_cbranch_scc1 L2_notfirst2')
            a(f's_waitcnt vmcnt({opt.vsched[0]})')
            a(f's_mov_b32 s{sFI}, 0')
            a.lines.append('L2_notfirst2:')
        a(f's_waitcnt vmcnt({(8 if u == 0 else 0) + opt.vsched[0]*NET()//2})')
    T(a, 12)
    if opt.cprio == 1: a('s_setprio 1')
    if opt.cprio == 2: a('s_setprio 0')
    for step in range(12 if opt.spread else 0):
        a(f's_waitcnt lgkmcnt({2 if step < 11 else 0})')
        M = l2_mfma(step)
        if step == 0:
            emit(a, M); emit(a, wread(2)); vissue(1)
            continue
        S = l2_seg(step - 2) if step >= 2 else []
        s = step - 1; part = s // 4; ct = s % 4
        mu = l2_mul(s); cv = l2_cvt(s)
        va = mu[:4] + cv[:2] + mu[4:] + cv[2:]
        mf = M[:2] + S[:1] + M[2:] + S[1:]
        if step in (4, 8):
            last = max(i for i, x in enumerate(va) if x.startswith('v_mul'))
            emit(a, weave(mf[:4], va[:last+1])); emit(a, wf(2 if step == 4 else 1, u)[:1])
            emit(a, va[last+1:]); emit(a, mf[4:]); emit(a, wread(step + 2)); emit(a, wf(2 if step == 4 else 1, u)[1:])
        elif step in (5, 9):
            emit(a, mf[:4]); emit(a, weave(va, mf[4:])); emit(a, wread(step + 2) if step + 2 < 12 else [])
        else:
            emit(a, weave(mf, va))
            if step + 2 < 12: emit(a, wread(step + 2))
        vissue(step + 1)
    for step in range(0 if opt.spread else 12):
        a(f's_waitcnt lgkmcnt({2 if step < 11 else 0})')
        M = l2_mfma(step)
        if step == 0:
            emit(a, M); emit(a, wread(2)); vissue(1)
            continue
        m = l2_mul(step - 1)
        if MINI[0]:
            emit(a, M + m)
        elif opt.pkc == 2:
            emit(a, m + M)
        elif opt.pkc == 3:
            emit(a, M + m)
        elif step in (5, 9):
            h_ = len(m)//2
            emit(a, M[:2] + m[:h_] + M[2:3] + m[h_:h_+h_//2] + M[3:] + m[h_+h_//2:])
        else:
            emit(a, weave(M, m))
        if step == 4: emit(a, wf(2, u))
        if step == 8: emit(a, wf(1, u))
        emit(a, l2_cvt(step - 1))
        if step + 2 < 12: emit(a, wread(step + 2))
        emit(a, l2_seg(step - 1))
        vissue(step + 1)
    if opt.cprio == 1: a('s_setprio 0')
    if opt.cprio == 2: a('s_setprio 1')
    if tag == 'M':
        a.settle()
        return
    a(f's_add_u32 s{sXE0}, s{sE0}, {32*(u+1)}')
    a(f's_cmp_lt_u32 s{sXE0}, s{sE1}')
    if tag == 'A':
        a('s_cbranch_scc0 L2_newitem')
    elif tag == 'B':
        a.br('s_cbranch_scc1 L2_tail_toC')
        a.br('s_branch L2_newitem')
    else:
        a('s_cbranch_scc0 L2_newitem')
        a(f's_mov_b32 s{sXE1}, s{sE1}')
        a(f's_mov_b32 s{sXN0}, s{sN0}')
        a(f's_mov_b32 s{sXNN}, s{sNN}')
        a(f's_mov_b32 s{sXCONT}, 1')
        a(f's_mov_b32 s{sLAST}, 0')
        a.br('s_branch L2_tail_toA')

sPRE = 74; sPN0, sPNN, sPE0, sPE1 = 75, 76, 77, 78
def lookahead(a):
    chain_loop(a, vNX64, sC64)
    chain_loop(a, vNX32, sC32)
    a(f's_mov_b32 s{sPRE}, 2')
    a(f's_cmp_ge_u32 s{sNC}, {R}')
    a('s_cbranch_scc1 L2_lookdone')
    a(f's_mov_b32 s{sPN0}, s{sNC}')
    chain_start(a, sPE0)
    chain_step(a, vNX32)
    chain_start(a, sPE1)
    a(f's_sub_u32 s{sPNN}, s{sNC}, s{sPN0}')
    a(f's_mov_b32 s{sC32}, 7')
    a(f's_mov_b32 s{sPRE}, 1')
    if opt.yld in (7, 8, 9, 12): a('s_setprio 3')
    a.label('L2_lookdone', settle=False)

sCC, sCD, sFM, sEX, sSTAGE, sTOT = 74, 75, 76, 77, 78, 79
walk_n = [0]
def walk_init(a):
    a(f's_sub_u32 s{sC64}, 7, s3')
    a(f's_min_u32 s{sC32}, s3, 4')
    a(f's_sub_u32 s{sCC}, s3, s{sC32}')
    a(f's_mov_b32 s{sCD}, 0')
    a(f's_lshr_b32 s{sFM}, s3, 2')
    a(f's_mov_b32 s{sEX}, s{sFM}')
    a(f's_mov_b32 s{sSTAGE}, 0')

def walk(a, none, n0, e0, e1):
    n = walk_n[0]; walk_n[0] += 1
    chain_loop(a, vNX64, sC64)
    chain_loop(a, vNX32, sC32)
    a(f's_cmp_ge_u32 s{sNC}, {R}')
    a(f's_cbranch_scc1 {none}')
    a(f's_cmp_eq_u32 s{sFM}, 0')
    a(f's_cbranch_scc1 L2_nomode{n}')
    chain_start(a, sT2)
    a(f's_sub_u32 s{sT2}, s{sTOT}, s{sT2}')
    a(f's_cmp_gt_u32 s{sT2}, {opt.cap16}')
    a(f's_cbranch_scc0 L2_small{n}')
    a(f'v_mov_b32 v{vNX64}, v{vNX32}')
    a.br(f's_branch L2_nomode{n}')
    a.label(f'L2_small{n}', settle=False)
    x0, x1, x2, x3, x4, x5 = TP, TP+1, TP+2, TP+3, 254, 255
    a(f'v_and_b32 v{x0}, 0xffff, v{vPACK}')
    a(f'v_lshrrev_b32 v{x1}, 16, v{vPACK}')
    a(f'v_add_u32 v{x0}, 16, v{x0}')
    a(f'v_add_u32 v{x1}, 16, v{x1}')
    a(f'v_lshlrev_b32 v{x2}, 2, v{x0}')
    a(f'v_lshlrev_b32 v{x3}, 2, v{x1}')
    a(f'ds_read_b32 v{x2}, v{x2} offset:{L_SORT}')
    a(f'ds_read_b32 v{x3}, v{x3} offset:{L_SORT}')
    a(f'v_cmp_gt_u32 s[64:65], s{sTOT}, v{x0}')
    a(f'v_cmp_gt_u32 s[66:67], s{sTOT}, v{x1}')
    a(f'v_mov_b32 v{x4}, {R}')
    a(f'v_lshrrev_b32 v{x5}, 4, v{vLANE16}')
    a('s_waitcnt lgkmcnt(0)')
    for h, r in enumerate((x2, x3)):
        a(f'v_and_b32 v{r}, 127, v{r}')
        a(f'v_cndmask_b32_e64 v{r}, v{x4}, v{r}, s[{64+2*h}:{65+2*h}]')
        a(f'v_add_u32 v{x0}, {1 + 64*h}, v{x5}')
        a(f'v_add_u32 v{x1}, {16 + 64*h}, v{x5}')
        a(f'v_med3_u32 v{r}, v{r}, v{x0}, v{x1}')
        a(f'v_min_u32 v{r}, v{x4}, v{r}')
    a(f'v_lshl_or_b32 v{vNX64}, v{x3}, 16, v{x2}')
    a.label(f'L2_nomode{n}')
    chain_loop(a, vNX64, sCC)
    chain_loop(a, vNX32, sCD)
    a(f's_cmp_ge_u32 s{sNC}, {R}')
    a(f's_cbranch_scc1 {none}')
    a(f's_mov_b32 s{n0}, s{sNC}')
    chain_start(a, e0)
    a(f's_cmp_eq_u32 s{sEX}, 0')
    a(f's_cbranch_scc1 L2_end32_{n}')
    chain_step(a, vNX64)
    a(f's_branch L2_ended{n}')
    a.label(f'L2_end32_{n}', settle=False)
    chain_step(a, vNX32)
    a.label(f'L2_ended{n}', settle=False)
    chain_start(a, e1)
    a(f's_mov_b32 s{sEX}, 0')
    a(f's_cmp_lg_u32 s{sSTAGE}, 0')
    a(f's_cbranch_scc1 L2_later{n}')
    a(f's_mov_b32 s{sSTAGE}, 1')
    a(f's_mov_b32 s{sCD}, s3')
    a(f's_xor_b32 s{sFM}, s{sFM}, 1')
    a(f's_sub_u32 s{sT0}, 3, s3')
    a(f's_max_i32 s{sC32}, s{sT0}, 0')
    a(f's_sub_u32 s{sT0}, 7, s3')
    a(f's_min_u32 s{sCC}, s{sT0}, 4')
    a(f's_branch L2_walked{n}')
    a.label(f'L2_later{n}', settle=False)
    a(f's_mov_b32 s{sC32}, 7')
    a(f's_mov_b32 s{sFM}, 0')
    a.label(f'L2_walked{n}', settle=False)

def newitem(a):
    a.label('L2_newitem', settle=False)
    a(f's_mov_b32 s{sLAST}, 1')
    if opt.cap16:
        walk(a, 'L2_tail_fin', sXN0, sXE0, sXE1)
        a(f's_sub_u32 s{sXNN}, s{sNC}, s{sXN0}')
        a(f's_mov_b32 s{sXCONT}, 0')
        return
    if opt.look:
        a(f's_cmp_eq_u32 s{sPRE}, 0')
        a('s_cbranch_scc1 L2_walknow')
        a(f's_cmp_eq_u32 s{sPRE}, 2')
        a('s_nop 3')
        a('s_cbranch_scc1 L2_tail_fin')
        a(f's_mov_b32 s{sXN0}, s{sPN0}')
        a(f's_mov_b32 s{sXNN}, s{sPNN}')
        a(f's_mov_b32 s{sXE0}, s{sPE0}')
        a(f's_mov_b32 s{sXE1}, s{sPE1}')
        a(f's_mov_b32 s{sXCONT}, 0')
        a(f's_mov_b32 s{sPRE}, 0')
        a('s_branch L2_tail_toA')
        a.label('L2_walknow', settle=False)
    chain_loop(a, vNX64, sC64)
    chain_loop(a, vNX32, sC32)
    if 'X' in getattr(opt, 'diag', ''):
        a('s_cmp_ge_u32 s3, 4')
        a('s_cbranch_scc1 L2_tail_fin')
    if 'Y' in getattr(opt, 'diag', ''):
        a('s_cbranch_scc1 L2_tail_fin')
        a('s_branch L2_tail_fin')
    a(f's_cmp_ge_u32 s{sNC}, {R}')
    a('s_cbranch_scc1 L2_tail_fin')
    a(f's_mov_b32 s{sXN0}, s{sNC}')
    chain_start(a, sXE0)
    chain_step(a, vNX32)
    chain_start(a, sXE1)
    a(f's_sub_u32 s{sXNN}, s{sNC}, s{sXN0}')
    a(f's_mov_b32 s{sXCONT}, 0')
    a(f's_mov_b32 s{sC32}, 7')
    if getattr(opt, 'yld', 0) == 2: a('s_setprio 0')

def tail(a, tag):
    MINI[0] = tag == 'finM'
    NJ = 4*NET()
    if tag == 'finM':
        pass
    elif tag == 'toC':
        a.lines.append('L2_tail_toC:')
    else:
        a.label(f'L2_tail_{tag}', settle=False)
    def pv(n):
        j, ct = divmod(n, 4); U = D2 + ((n + 2) % 4)*8
        un, mu = [], []
        for jj in range(NJ):
            src = V + j*16 + jj*2 + (ct >> 1)
            un.append(f'v_and_b32 v{U+jj}, v{vMHI}, v{src}' if ct & 1 else f'v_lshlrev_b32 v{U+jj}, 16, v{src}')
            mu.append(f'v_mul_f32 v{U+jj}, v{U+jj}, v{D3 + (jj >> 2)*16 + ct*4 + (jj & 3)}')
        if opt.pk:
            mu = [f'v_pk_mul_f32 v[{U+jj}:{U+jj+1}], v[{U+jj}:{U+jj+1}], v[{D3 + (jj >> 2)*16 + ct*4 + (jj & 3)}:{D3 + (jj >> 2)*16 + ct*4 + (jj & 3) + 1}]' for jj in range(0, NJ, 2)]
        cv = [f'v_cvt_pk_bf16_f32 v{U+i}, v{U+2*i}, v{U+2*i+1}' for i in range(NJ//2)]
        acc = ACC + (1+j)*16 + ct*4
        mf = mf_seg(acc, U, SEL)
        return un, mu, cv, mf
    early = {'toA': 5, 'toC': 4, 'fin': 0, 'finM': 0}[tag] if opt.earlyh else 0
    if tag == 'toA' and opt.earlyst2:
        a(f's_cmp_eq_u32 s{sLAST}, 0')
        a(f's_cselect_b32 s{sT0}, 0x40000000, 0')
        a(f'v_or_b32 v{vRES}, s{sT0}, v{vRES}')
    if tag == 'toA': emit(a, next_entry_read(TP) + next_mask(TP+4))
    if tag == 'toC':
        if getattr(opt, 'yld', 0) == 4: a('s_setprio 1')
        emit(a, off_reads(1))
    if getattr(opt, 'yld', 0) == 5 and tag in ('toA', 'fin', 'finM'): a('s_setprio 1')
    if getattr(opt, 'yld', 0) == 9 and tag == 'toA': a('s_setprio 0')
    if getattr(opt, 'yld', 0) == 10 and tag == 'fin': a('s_setprio 1')
    if getattr(opt, 'yld', 0) in (12, 13) and tag == 'fin': a('s_setprio 0')
    if getattr(opt, 'yld', 0) == 14 and tag in ('toA', 'fin'): a('s_setprio 0')
    if getattr(opt, 'yld', 0) == 11 and tag == 'fin':
        a('s_cmp_ge_u32 s3, 4')
        a('s_cbranch_scc1 L2_keepprio')
        a('s_setprio 0')
        a.lines.append('L2_keepprio:')
    if getattr(opt, 'yld', 0) == 6 and tag == 'toA': a('s_setprio 0')
    emit(a, l2_mul(11))
    prev = None
    for n in range(12):
        j, ct = divmod(n, 4)
        un, mu, cv, mf = pv(n)
        if ct == 0:
            T(a, 13 + 2*j)
            late = 4 if (((tag == 'fin' and opt.earlyst) or (tag == 'toA' and opt.earlyst2)) and j == 2) else 0
            rolled = 8 if (opt.roll and tag != 'fin' and j == 2) else 0
            a(f's_waitcnt vmcnt({(16 - 8*j)*NET()//2 + (early if j else 0) + late + rolled})')
            T(a, 14 + 2*j)
        emit(a, un[:2])
        if prev: a(prev)
        emit(a, un[2:])
        rest = mu + cv
        if tag == 'toA' and n == 1:
            a('s_waitcnt lgkmcnt(0)')
            rest = weave(rest, next_stage(TP+4, TP+5) + off_reads(0))
        if (tag == 'toA' and n == 3) or (tag == 'toC' and n == 1):
            a('s_waitcnt lgkmcnt(0)')
            rest = weave(rest, off_adds())
            if opt.earlyh: rest = rest + (pos_load(TP+5) if tag == 'toA' else []) + h_loads()
        if opt.roll and tag != 'fin' and n in (4, 8): rest = weave(rest, v_loads(n//4 - 1))
        if ((tag == 'fin' and opt.earlyst) or (tag == 'toA' and opt.earlyst2)) and n in (5, 9):
            comps, base = ((0, 1), V) if n == 5 else ((2,), V + 16)
            pk_, st_ = [], []
            for ci, c in enumerate(comps):
                for hh in range(2):
                    r0 = base + ci*8 + hh*4
                    for d in range(4):
                        lo = ACC + c*16 + (2*(d & 1))*4 + 2*hh + (d >> 1)
                        pk_.append(f'v_cvt_pk_bf16_f32 v{r0+d}, v{lo}, v{lo+4}')
                    st_.append(f'buffer_store_dwordx4 v[{r0}:{r0+3}], v{vRES}, s[{sOUT}:{sOUT+3}], 0 offen offset:{c*128+hh*64} {opt.outst}')
            rest = rest + pk_ + [f's_mov_b64 exec, s[{sEXQ}:{sEXQ+1}]'] + st_ + ['s_mov_b64 exec, -1']
        emit(a, rest)
        prev = mf
    T(a, 19)
    if tag == 'toC':
        if opt.earlyh:
            a('s_nop 1')
            a(prev)
        else:
            emit(a, h_loads()[:2])
            a(prev)
            emit(a, h_loads()[2:])
        emit(a, sel_reads(1))
        if getattr(opt, 'yld', 0) == 3: a('s_setprio 1')
        return
    if tag == 'toA':
        if not opt.earlyh:
            emit(a, pos_load(TP+5))
            emit(a, h_loads())
        a(prev)
        if not opt.earlyst2:
            a(f's_cmp_eq_u32 s{sLAST}, 0')
            a(f's_cbranch_scc1 L2_nopack')
    else:
        a('s_nop 1')
        a(prev)
    short = (tag == 'fin' and opt.earlyst) or (tag == 'toA' and opt.earlyst2)
    for c in range(3 if short else 0, 4):
        for hh in range(2):
            for d in range(4):
                lo = ACC + c*16 + (2*(d & 1))*4 + 2*hh + (d >> 1)
                a(f'v_cvt_pk_bf16_f32 v{D3+(c*2+hh)*4+d}, v{lo}, v{lo+4}')
    if tag == 'toA' and not opt.earlyst2:
        a.br('s_branch L2_store')
        a.label('L2_nopack', settle=False)
        a(f'v_mov_b32 v{vRES}, 0x40000000')
        a.label('L2_store')
    T(a, 20)
    a(f's_mov_b64 exec, s[{sEXQ}:{sEXQ+1}]')
    emit(a, out_stores(vRES)[6 if short else 0:])
    a('s_mov_b64 exec, -1')
    if tag == 'toA':
        a(f's_mov_b32 s{sN0}, s{sXN0}')
        a(f's_mov_b32 s{sNN}, s{sXNN}')
        a(f's_mov_b32 s{sE0}, s{sXE0}')
        a(f's_mov_b32 s{sE1}, s{sXE1}')
        if getattr(opt, 'yld', 0) in (1, 3, 4, 5, 6, 7, 8): a('s_setprio 0')
        a(f's_cmp_lg_u32 s{sXCONT}, 0')
        a.br('s_cbranch_scc1 L2_head_B')
        if opt.mini:
            a(f's_sub_u32 s{sT0}, s{sE1}, s{sE0}')
            a(f's_cmp_le_u32 s{sT0}, 16')
            a('s_cbranch_scc1 L2_head_M')
        a.br('s_branch L2_head_A')
    if tag == 'finM':
        if opt.cap16:
            walk(a, 'L2_rounddone', sN0, sE0, sE1)
        else:
            chain_loop(a, vNX64, sC64)
            chain_loop(a, vNX32, sC32)
            a(f's_cmp_ge_u32 s{sNC}, {R}')
            a('s_cbranch_scc1 L2_rounddone')
            a(f's_mov_b32 s{sN0}, s{sNC}')
            chain_start(a, sE0)
            chain_step(a, vNX32)
            chain_start(a, sE1)
            a(f's_mov_b32 s{sC32}, 7')
        a.br('s_branch L2_issue')
    MINI[0] = False

def gen_k2(a, name):
    header(a, name)
    stamp.tmp = 252; stamp.wave = 0
    a('s_cmp_ge_u32 s2, %d' % NB)
    a('s_cbranch_scc1 L2_end')
    a('s_load_dwordx2 s[4:5], s[0:1], 0')
    a('s_load_dwordx2 s[12:13], s[0:1], 32')
    a('s_load_dwordx2 s[20:21], s[0:1], 64')
    a('s_load_dwordx2 s[24:25], s[0:1], 80')
    a('v_lshrrev_b32 v40, 6, v0')
    a('v_and_b32 v41, 63, v0')
    a('v_readfirstlane_b32 s3, v40')
    a(f'v_lshlrev_b32 v{vLANE16}, 4, v41')
    a('v_lshlrev_b32 v42, 4, v0')
    a('s_waitcnt lgkmcnt(0)')
    a('s_load_dwordx2 s[14:15], s[12:13], 0')
    srd(a, sSLOT, 24, SLOT_OFF, NB*64, mul=16384)
    W = V
    a(f'buffer_load_dwordx4 v[{W}:{W+3}], v42, s[{sSLOT}:{sSLOT+3}], 0 offen')
    a(f'v_add_u32 v43, 8192, v42')
    a(f'buffer_load_dwordx4 v[{W+4}:{W+7}], v43, s[{sSLOT}:{sSLOT+3}], 0 offen')
    srd(a, sP4, 24, POS4_OFF, N*8)
    a(f's_mul_i32 s{sT0}, s2, {R*8}')
    a('v_lshlrev_b32 v43, 3, v0')
    a(f'v_add_u32 v43, s{sT0}, v43')
    a('v_cmp_gt_u32 vcc, 128, v0')
    a('v_mov_b32 v44, 0x40000000')
    a('v_cndmask_b32_e64 v43, v44, v43, vcc')
    a(f'buffer_load_dwordx2 v[46:47], v43, s[{sP4}:{sP4+3}], 0 offen')
    def zero_counters(tag):
        a('s_cmp_ge_u32 s3, 3')
        a.br(f's_cbranch_scc1 L2_nozero{tag}')
        a('v_lshlrev_b32 v40, 2, v0')
        a('v_mov_b32 v44, 0')
        a(f'v_add_u32 v42, {L_FLAG - 512}, v40')
        a(f'v_add_u32 v40, {L_NCNT}, v40')
        a('v_cmp_gt_u32 vcc, 128, v0')
        a('v_cndmask_b32_e64 v40, v42, v40, vcc')
        a('v_cmp_gt_u32 vcc, 129, v0')
        a('s_and_saveexec_b64 s[64:65], vcc')
        a('ds_write_b32 v40, v44')
        a('s_mov_b64 exec, s[64:65]')
        a.label(f'L2_nozero{tag}')
    zero_counters('a')
    srd(a, sW2F, 24, W2F_OFF, 24576 + 1536)
    a('v_lshlrev_b32 v43, 3, v41')
    a(f's_mov_b32 s{sT0}, 24576')
    for p in range(3):
        a(f'buffer_load_dwordx2 v[{WR+2*p}:{WR+2*p+1}], v43, s[{sW2F}:{sW2F+3}], s{sT0} offen offset:{p*512}')
    for i in range(3):
        a(f's_lshl_b32 s{sT0}, s3, 10')
        if i: a(f's_add_u32 s{sT0}, s{sT0}, {i*8192}')
        a(f's_mov_b32 m0, s{sT0}')
        a(f'buffer_load_dwordx4 v{vLANE16}, s[{sW2F}:{sW2F+3}], s{sT0} offen lds')
    srd(a, sRES, 4, 0, R*512, mul=R*512)
    stamp_init(a, 1)
    tr_init(a)
    tr(a, 1)
    stamp(a, 1, 0)
    dbg_init(a, 1)
    dbg(a, 6)
    dbg(a, 7, True)
    srd(a, sSV, 4, 0, N*512)
    srd(a, sH, 24, H_OFF, N*128)
    srd(a, sOUT, 20, 0, R*512, mul=R*512)
    srd(a, sOVF, 24, OVF_OFF, NB*CH*4)
    a('v_and_b32 v44, 15, v41')
    a('v_lshrrev_b32 v45, 4, v41')
    a('v_lshrrev_b32 v43, 2, v44')
    a('v_lshlrev_b32 v43, 3, v43')
    a('v_and_b32 v40, 3, v44')
    a('v_add_u32 v43, v43, v40')
    a(f's_mul_i32 s{sSTG}, s3, {STG}')
    a(f's_add_u32 s{sSTG}, s{sSTG}, {L_STG}')
    a(f's_sub_u32 s{sSD}, {L_SORT}, s{sSTG}')
    a(f'v_lshl_add_u32 v{vHA}, v43, 2, s{sSTG}')
    a('v_and_b32 v40, 1, v45')
    a('v_lshl_add_u32 v43, v40, 2, v43')
    a('v_lshrrev_b32 v40, 1, v45')
    a('v_lshl_add_u32 v43, v40, 5, v43')
    a(f'v_lshl_add_u32 v{vSTGW}, v43, 2, s{sSTG}')
    a(f'v_lshl_add_u32 v{vSTGH}, v43, 1, s{sSTG}')
    a(f'v_lshl_add_u32 v{vSTGR}, v45, 5, s{sSTG}')
    a(f'v_lshl_add_u32 v{vSTGS}, v45, 4, s{sSTG}')
    emit_Q(a, vLPV, 44, 40)
    a(f'v_lshlrev_b32 v{vLPV}, 3, v{vLPV}')
    a(f'v_lshlrev_b32 v{vLPH}, 4, v45')
    a(f'v_lshl_add_u32 v{vLPR}, v44, 9, v{vLPH}')
    a(f'v_lshl_or_b32 v{vQQ}, v44, 16, v44')
    a(f'v_mov_b32 v{vMHI}, 0xffff0000')
    a(f's_mov_b32 s{sROUND}, 0')
    a('s_waitcnt lgkmcnt(0)')
    a('s_barrier')
    a(f's_lshl_b32 s{sF}, s14, 16')
    a(f's_and_b32 s{sF+1}, s14, 0xffff0000')
    a(f's_lshl_b32 s{sF+2}, s15, 16')
    a(f's_and_b32 s{sF+3}, s15, 0xffff0000')
    a('v_and_b32 v39, 3, v0')
    a('v_lshlrev_b32 v39, 2, v39')
    a('v_subrev_u32 v39, 1, v39')
    LIM, CNT = 56, 58
    a('s_waitcnt vmcnt(8)')
    a(f'v_mov_b32_dpp v{CNT}, v{W} quad_perm:[0,0,0,0] row_mask:0xf bank_mask:0xf')
    a('s_waitcnt vmcnt(7)')
    a(f'v_mov_b32_dpp v{CNT+1}, v{W+4} quad_perm:[0,0,0,0] row_mask:0xf bank_mask:0xf')
    for h in range(2):
        a(f'v_and_b32 v{CNT+h}, 0xffff, v{CNT+h}')
        a(f'v_min_u32 v{LIM+h}, {CAP}, v{CNT+h}')
        a(f'v_subrev_u32 v{CNT+h}, {CAP}, v{CNT+h}')
    a('s_cmp_ge_u32 s3, 2')
    a.br('s_cbranch_scc1 L2_nodpos')
    a('s_waitcnt vmcnt(6)')
    a('v_lshlrev_b32 v84, 16, v46')
    a(f'v_and_b32 v85, v{vMHI}, v46')
    a('v_lshlrev_b32 v86, 16, v47')
    a('v_mov_b32 v87, 0')
    a('v_lshlrev_b32 v42, 4, v0')
    a(f'ds_write_b128 v42, v[84:87] offset:{L_DPOS}')
    a.label('L2_nodpos')
    a.label('L2_round')
    stamp(a, 1, 1)
    tr(a, 4)
    A = 60; RK = 68; T = 76
    a('v_mov_b32 v40, 1')
    for i in range(8):
        a(f'v_add_u32 v41, {i & 3}, v39')
        a(f'v_cmp_lt_u32 s[{64+2*i}:{65+2*i}], v41, v{LIM + i//4}')
        a(f'v_and_b32 v{A+i}, 127, v{W+i}')
        a(f'v_lshlrev_b32 v{A+i}, 2, v{A+i}')
        a(f'v_add_u32 v{A+i}, {L_NCNT}, v{A+i}')
    for i in range(8):
        a(f's_mov_b64 exec, s[{64+2*i}:{65+2*i}]')
        a(f'ds_add_rtn_u32 v{RK+i}, v{A+i}, v40')
    a('s_mov_b64 exec, -1')
    a(f'v_max_i32 v41, v{CNT}, v{CNT+1}')
    a('v_cmp_lt_i32 vcc, 0, v41')
    a.br('s_cbranch_vccz L2_noflag')
    a(f'v_mov_b32 v41, {L_FLAG}')
    a('ds_write_b32 v41, v40')
    a.label('L2_noflag')
    a(f'v_lshrrev_b32 v41, 9, v{vLANE16}')
    a('s_lshl_b32 s%d, s3, 1' % sT0)
    a(f'v_add_u32 v42, s{sT0}, v41')
    a('v_and_b32 v42, 7, v42')
    a('v_lshlrev_b32 v42, 5, v42')
    a(f'v_xor_b32 v42, v42, v{vLANE16}')
    for i in range(7):
        if i == 6:
            a('s_cmp_ge_u32 s3, 2')
            a.br('s_cbranch_scc1 L2_resdone')
        a(f's_lshl_b32 s{sT0}, s3, 10')
        if i: a(f's_add_u32 s{sT0}, s{sT0}, {i*8192}')
        a(f's_add_u32 m0, s{sT0}, {L_RES}')
        a(f'buffer_load_dwordx4 v42, s[{sRES}:{sRES+3}], s{sT0} offen sc1 lds')
    a.label('L2_resdone')
    a('s_waitcnt lgkmcnt(0)')
    a('s_barrier')
    stamp(a, 1, 2)
    tr(a, 5)
    a(f'v_lshrrev_b32 v41, 2, v{vLANE16}')
    a(f'v_add_u32 v41, {L_NCNT}, v41')
    a('ds_read2st64_b32 v[42:43], v41 offset1:1')
    a(f'v_mov_b32 v44, {L_FLAG}')
    a('ds_read_b32 v45, v44')
    a('s_waitcnt lgkmcnt(1)')
    a('v_lshl_or_b32 v42, v43, 16, v42')
    a('v_mov_b32 v43, v42')
    for sh in ('row_shr:1', 'row_shr:2', 'row_shr:4', 'row_shr:8'):
        a(f'v_add_u32_dpp v43, v43, v43 {sh} row_mask:0xf bank_mask:0xf')
    a('v_add_u32_dpp v43, v43, v43 row_bcast:15 row_mask:0xa bank_mask:0xf')
    a('v_add_u32_dpp v43, v43, v43 row_bcast:31 row_mask:0xc bank_mask:0xf')
    a('s_waitcnt lgkmcnt(0)')
    a(f'v_readfirstlane_b32 s{sMORE}, v45')
    a(f'v_readlane_b32 s{sT0}, v43, 63')
    a('v_sub_u32 v43, v43, v42')
    a(f's_and_b32 s{sT0}, s{sT0}, 0xffff')
    a(f'v_and_b32 v{vSTLO}, 0xffff, v43')
    a(f'v_lshrrev_b32 v{vSTHI}, 16, v43')
    a(f'v_add_u32 v{vSTHI}, s{sT0}, v{vSTHI}')
    a(f'ds_write2st64_b32 v41, v{vSTLO}, v{vSTHI} offset0:2 offset1:3')
    for i in range(8):
        a(f'ds_read_b32 v{T+i}, v{A+i} offset:512')
    a(f'v_lshl_or_b32 v{vPACK}, v{vSTHI}, 16, v{vSTLO}')
    for i in range(8):
        a('s_waitcnt lgkmcnt(7)')
        a(f'v_add_lshl_u32 v{T+i}, v{T+i}, v{RK+i}, 2')
        a(f's_mov_b64 exec, s[{64+2*i}:{65+2*i}]')
        a(f'ds_write_b32 v{T+i}, v{W+i} offset:{L_SORT}')
        a('s_mov_b64 exec, -1')
    for k, (st, d) in enumerate(((vSTLO, 32), (vSTHI, 32), (vSTLO, 64), (vSTHI, 64))):
        a(f'v_add_u32 v{T+k}, {d}, v{st}')
        a(f'v_lshlrev_b32 v{T+4+k}, 2, v{T+k}')
    a(f'v_readlane_b32 s{sT2}, v{vSTHI}, {R - 64}')
    a(f'v_lshrrev_b32 v40, 4, v{vLANE16}')
    a('v_add_u32 v41, 64, v40')
    a(f'v_mov_b32 v46, {R}')
    a(f's_mov_b32 s{sNC}, 0')
    a(f's_mov_b32 s{sC64}, s3')
    a('s_waitcnt lgkmcnt(0)')
    a('s_barrier')
    stamp(a, 1, 3)
    tr(a, 2)
    dbg(a, 8)
    dbg(a, 9, True)
    for k in (2, 3, 0, 1):
        a(f'ds_read_b32 v{T+4+k}, v{T+4+k} offset:{L_SORT}')
    for k in range(4):
        a(f'v_cmp_gt_u32 s[{64+2*k}:{65+2*k}], s{sT2}, v{T+k}')
    a('v_add_u32 v42, 1, v40')
    a('v_add_u32 v43, 16, v40')
    a('v_add_u32 v44, 1, v41')
    a('v_add_u32 v45, 16, v41')
    for k in (2, 3, 0, 1):
        r = T + 4 + k
        if k in (2, 0): a(f's_waitcnt lgkmcnt({2 if k == 2 else 0})')
        a(f'v_and_b32 v{r}, 127, v{r}')
        a(f'v_cndmask_b32_e64 v{r}, v46, v{r}, s[{64+2*k}:{65+2*k}]')
        a(f'v_med3_u32 v{r}, v{r}, v{42 + 2*(k & 1)}, v{43 + 2*(k & 1)}')
        a(f'v_min_u32 v{r}, v46, v{r}')
        if k == 3: a(f'v_lshl_or_b32 v{vNX64}, v{T+7}, 16, v{T+6}')
    a(f'v_lshl_or_b32 v{vNX32}, v{T+5}, 16, v{T+4}')
    chain_loop(a, vNX64, sC64)
    a(f's_cmp_lt_u32 s{sNC}, {R}')
    a.br('s_cbranch_scc1 L2_haveitem')
    a('s_waitcnt vmcnt(0)')
    a('s_barrier')
    a.br('s_branch L2_rounddone')
    a.label('L2_haveitem')
    if opt.prio: a('s_setprio 3')
    a(f's_mov_b32 s{sN0}, s{sNC}')
    chain_start(a, sE0)
    chain_step(a, vNX64)
    chain_start(a, sE1)
    a(f's_sub_u32 s{sNN}, s{sNC}, s{sN0}')
    a(f's_mov_b32 s{sXE0}, s{sE0}')
    a(f's_mov_b32 s{sXE1}, s{sE1}')
    emit(a, next_entry_read(TP))
    emit(a, next_mask(TP+4))
    a(f's_sub_u32 s{sC64}, 7, s3')
    a(f's_mov_b32 s{sC32}, s3')
    a('s_waitcnt lgkmcnt(0)')
    emit(a, next_stage(TP+4, TP+5))
    emit(a, off_reads(0))
    emit(a, pos_load(TP+5))
    a('s_waitcnt lgkmcnt(0)')
    emit(a, off_adds())
    emit(a, h_loads())
    a('s_waitcnt vmcnt(5)')
    a('s_barrier')
    a(f'v_mov_b32 v{vRES}, 0x40000000')
    emit(a, out_stores(vRES))
    if opt.prio: a('s_setprio 0')
    if opt.prio2 == 1:
        a('s_cmp_lt_u32 s3, 4')
        a('s_cbranch_scc1 L2_noprio')
        a('s_setprio 1')
        a.label('L2_noprio', settle=False)
    tr(a, 3)
    a.br('s_branch L2_head_A')
    head(a, 'B')
    head(a, 'A')
    tail(a, 'toC')
    head(a, 'C')
    newitem(a)
    tail(a, 'toA')
    tail(a, 'fin')
    a.label('L2_rounddone')
    tr(a, 30)
    stamp(a, 1, 4)
    a(f's_cmp_eq_u32 s{sMORE}, 0')
    a.br('s_cbranch_scc1 L2_fin')
    a('s_waitcnt vmcnt(0) lgkmcnt(0)')
    a('s_barrier')
    zero_counters('b')
    srd(a, sRES, 20, 0, R*512, mul=R*512)
    a('v_lshrrev_b32 v40, 2, v0')
    a('v_lshlrev_b32 v41, 6, v40')
    a(f'buffer_load_dword v42, v41, s[{sSLOT}:{sSLOT+3}], 0 offen')
    a('v_add_u32 v41, 8192, v41')
    a(f'buffer_load_dword v43, v41, s[{sSLOT}:{sSLOT+3}], 0 offen')
    a('v_and_b32 v39, 3, v0')
    a('v_lshlrev_b32 v39, 2, v39')
    a(f's_lshl_b32 s{sT0}, s{sROUND}, 4')
    a(f's_add_u32 s{sT1}, s{sT0}, {CAP}')
    a(f's_add_u32 s{sROUND}, s{sROUND}, 1')
    a(f'v_mul_u32_u24 v40, {CH*4}, v40')
    a('v_lshl_add_u32 v40, v39, 2, v40')
    a(f's_lshl_b32 s{sT0}, s{sT0}, 2')
    a(f'v_add_u32 v40, s{sT0}, v40')
    a('s_waitcnt vmcnt(0)')
    for h in range(2):
        a(f'v_lshrrev_b32 v44, 16, v{42+h}')
        a(f'v_lshl_add_u32 v44, v44, 2, v40')
        if h: a(f'v_add_u32 v44, {128*CH*4}, v44')
        a(f'buffer_load_dwordx4 v[{W+4*h}:{W+4*h+3}], v44, s[{sOVF}:{sOVF+3}], 0 offen')
        a(f'v_and_b32 v{CNT+h}, 0xffff, v{42+h}')
        a(f'v_subrev_u32 v{CNT+h}, s{sT1}, v{CNT+h}')
        a(f'v_med3_i32 v{LIM+h}, v{CNT+h}, 0, 16')
        a(f'v_subrev_u32 v{CNT+h}, 16, v{CNT+h}')
    a('s_waitcnt vmcnt(0) lgkmcnt(0)')
    a('s_barrier')
    a.br('s_branch L2_round')
    a.label('L2_fin')
    tr_dump(a)
    if opt.ts or opt.dbg:
        a('s_waitcnt vmcnt(0)')
        stamp(a, 1, 5)
        dbg(a, 10)
        dbg(a, 11, True)
    a.label('L2_end')
    a('s_endpgm')

def build():
    src = open('gather_scatter__molecular_angular_painn__graph.s.ref').read().split('\n')
    head = []
    for ln in src:
        if not ln.startswith(';'): break
        if '@launch' in ln or 'Override launch' in ln or 'grid=ceil' in ln: continue
        head.append(ln)
    k1, k2 = 'painn_bin_kernel', 'painn_msg_kernel'
    head.append(f'; @launch kernel={k1} grid=({NB},1,1) block=(1024,1,1) lds={K1_LDS}')
    head.append(f'; @launch kernel={k2} grid=({NB},1,1) block=(512,1,1) lds={K2_LDS}')
    a = Asm()
    a.raw('.amdgcn_target "amdgcn-amd-amdhsa--gfx950"\n.text')
    gen_k1(a, k1)
    gen_k2(a, k2)
    out = '\n'.join(head) + '\n' + a.text() + '.section .rodata,"a"\n' + descriptor(k1, 128) + descriptor(k2, K2_VGPR)
    return out

if __name__ == '__main__':
    outp = sys.argv[1]
    for kv in sys.argv[2:]:
        k, val = kv.split('=')
        setattr(opt, k, type(getattr(opt, k))(eval(val)))
    open(outp, 'w').write(build())
```

```python
import sys
from asmlib import Asm
import gen4 as g
from gen4 import *

NAME = 'gather_scatter__molecular_angular_painn__graph_kernel'
SS = 16512
EPOCH_OFF = SLOT_OFF + 250*SS
L_WRR = 125952
L_STAGE = 129024
K1_CNT = 151552; K1_OVB = K1_CNT + 1280; K1_W1 = K1_OVB + 1024; K1_LDS = K1_W1 + 8192
L_W2R = 101376
opt.ng0 = 2; opt.hprio = 2; opt.rawpos = True; opt.pfres = 1; opt.wb = 2; opt.dbg3 = False; opt.pad1 = 0; opt.pad2 = 0; opt.pad3 = 0; opt.exact = 0; opt.ilv = 0; opt.drain = True; opt.dbg2 = False; opt.prewr = False; opt.g1st = 0; opt.yld = 0; opt.pfv = []; opt.diag = ''; opt.pfn = 2; opt.pfh = False; opt.fine = False; opt.tr0 = False; opt.hsc = 'sc1'; opt.rt = False; opt.spin = 16; opt.pk = True; opt.sleep = 2; opt.res_when = 'pre'; opt.prew = True; opt.pfw = True; opt.pollmask = True; opt.dumpsc = 'sc1'
sNB = 8
sEP = 100
sFI = 86
g.sFI = sFI
pLDS, pOFA, pOFB, pME, pM0, pT0, pPA, pPB, pN0, pNE, pWA, pWD, pWR, pHC, pHS = range(172, 187)
pRS = 188
sWRR = 12
sPC0 = 78
M_ENT = 0x00fffe7f; M_HDR = 0x00ffffff

def tr(a, tag):
    if not opt.tr: return
    a('s_memrealtime s[92:93]' if opt.rt else 's_memtime s[92:93]')
    a('s_mov_b32 m0, s27')
    a('s_add_u32 s27, s27, 1')
    a('s_waitcnt lgkmcnt(0)')
    a('s_lshl_b32 s92, s92, 6')
    a(f's_or_b32 s92, s92, {tag}')
    a('v_writelane_b32 v11, s92, m0')
_tr_plain = tr
DBGMAP = {48: 0, 4: 2, 7: 4, 9: 6, 21: 8, 31: 10}
def tr(a, tag):
    if opt.dbg3:
        if tag not in (48, 7): return
        L = f'Ldbg{tag}'
        a.settle()
        a('s_lshr_b32 s92, s2, 3')
        a('s_lshl_b32 s93, s3, 5')
        a('s_add_u32 s92, s92, s93')
        a('s_cmp_lg_u32 s92, 12')
        a(f's_cbranch_scc1 {L}')
        a('s_memrealtime s[92:93]')
        a('s_and_b32 s27, s2, 7')
        a('s_lshl_b32 s27, s27, 2')
        a('s_mov_b64 s[94:95], exec')
        a('s_mov_b64 exec, 1')
        a('s_waitcnt lgkmcnt(0)')
        a('v_mov_b32 v255, s92')
        a(f'buffer_store_dword v255, off, s[96:99], s27 offset:{0 if tag == 48 else 32}')
        a('s_mov_b64 exec, s[94:95]')
        a.label(L)
        return
    if not opt.dbg2: return _tr_plain(a, tag)
    if tag not in DBGMAP: return
    i = DBGMAP[tag]
    L = f'Ldbg{tag}'
    a.settle()
    a('s_mov_b32 s27, scc') if False else None
    a('s_cmp_lg_u32 s3, 0')
    a(f's_cbranch_scc1 {L}')
    a('s_memrealtime s[92:93]')
    a('s_mov_b64 s[94:95], exec')
    a('s_mov_b64 exec, 1')
    a('s_waitcnt lgkmcnt(0)')
    a('v_mov_b32 v255, s92')
    a(f'buffer_atomic_umax v255, off, s[96:99], 0 offset:{4*i + 4}')
    a('s_not_b32 s92, s92')
    a('s_nop 0')
    a('v_mov_b32 v11, s92')
    a(f'buffer_atomic_umax v11, off, s[96:99], 0 offset:{4*i}')
    a('s_mov_b64 exec, s[94:95]')
    a.label(L)
g.tr = tr
_tr_init = tr_init
def tr_init(a):
    if not (opt.dbg2 or opt.dbg3): return _tr_init(a)
    a('s_load_dwordx2 s[96:97], s[0:1], 72')
    a('s_waitcnt lgkmcnt(0)')
    a('s_mov_b32 s98, 64')
    a('s_mov_b32 s99, 0x20000')

def h_loads():
    return [f'buffer_load_dwordx4 v[{H+et*8+ks*4}:{H+et*8+ks*4+3}], v{HOFF+et}, s[{sH}:{sH+3}], 0 offen offset:{ks*64} {opt.hsc}'
            for et in range(2) for ks in range(2)]
def pos_load(u): return [f'v_and_b32 v{u-1}, -4, v{u}', f'buffer_load_dwordx2 v[{PS}:{PS+1}], v{u-1}, s[{sP4}:{sP4+3}], 0 offen']
g.h_loads = h_loads; g.pos_load = pos_load


def rare_paths(a):
    RK1, BINC, ENT = 136, 80, 96
    a.label('L1_ovf')
    a('s_cmp_ge_u32 s3, 4')
    a.br('s_cbranch_scc1 L1_ovf_based')
    a('v_lshlrev_b32 v40, 2, v0')
    a(f'v_add_u32 v40, {K1_CNT}, v40')
    a('ds_read_b32 v41, v40')
    a('s_waitcnt lgkmcnt(0)')
    a(f'v_cmp_lt_u32 vcc, {CAP}, v41')
    a('s_and_saveexec_b64 s[88:89], vcc')
    a.br('s_cbranch_execz L1_ovf_none')
    a(f'v_subrev_u32 v41, {CAP}, v41')
    a(f'v_mov_b32 v42, {K1_CNT + 1024}')
    a('ds_add_rtn_u32 v43, v42, v41')
    a('s_waitcnt lgkmcnt(0)')
    a(f'ds_write_b32 v40, v43 offset:{K1_OVB - K1_CNT}')
    a.label('L1_ovf_none')
    a('s_mov_b64 exec, s[88:89]')
    a.label('L1_ovf_based')
    a('s_waitcnt lgkmcnt(0)')
    a('s_barrier')
    srd(a, 88, 24, OVF_OFF, CH*4, mul=CH*4)
    for i in range(7):
        a('s_mov_b64 exec, -1')
        a(f'v_cmp_le_u32 vcc, {CAP}, v{RK1+i}')
        a(f's_and_b64 exec, vcc, s[{64+2*i}:{65+2*i}]')
        a.br(f's_cbranch_execz L1_ovf{i}')
        a(f'ds_read_b32 v40, v{BINC+i} offset:{K1_OVB - K1_CNT}')
        a('s_waitcnt lgkmcnt(0)')
        a(f'v_add_u32 v40, v40, v{RK1+i}')
        a(f'v_subrev_u32 v40, {CAP}, v40')
        a('v_lshlrev_b32 v40, 2, v40')
        a(f'buffer_store_dword v{ENT+i}, v40, s[88:91], 0 offen sc1')
        a.label(f'L1_ovf{i}')
    a('s_mov_b64 exec, -1')
    for h in range(2):
        a(f'ds_read_b32 v40, v{pHC} offset:{K1_OVB - K1_CNT + 512*h}')
        a(f'v_cmp_lt_u32 vcc, {CAP}, v{108+h}')
        a('s_waitcnt lgkmcnt(0)')
        a('v_lshlrev_b32 v40, 12, v40')
        a('v_cndmask_b32_e64 v40, 0, v40, vcc')
        a(f'v_or_b32 v{108+h}, v{108+h}, v40')
    a('s_waitcnt vmcnt(0)')
    a('s_barrier')
    a.br('s_branch L1_noovf')

def consts_poll(a):
    a('s_and_b32 s60, s2, 0xf0')
    a('s_and_b32 s61, s2, 7')
    a('s_lshl_b32 s61, s61, 1')
    a('s_or_b32 s60, s60, s61')
    a('s_bfe_u32 s61, s2, 0x10003')
    a('s_or_b32 s60, s60, s61')
    a('s_lshl_b32 s60, s60, 6')
    a(f's_add_u32 s60, s60, {SLOT_OFF}')
    a(f's_add_u32 s{sSLOT}, s24, s60')
    a(f's_addc_u32 s{sSLOT+1}, s25, 0')
    a(f's_mov_b32 s{sSLOT+2}, {(NB-1)*SS + 64}')
    a(f's_mov_b32 s{sSLOT+3}, 0x20000')
    a('v_lshrrev_b32 v43, 2, v0')
    a(f'v_mul_u32_u24 v43, {SS}, v43')
    a(f'v_add_u32 v{pPA}, v{pPA}, v43')
    a(f'v_add_u32 v{pPB}, {128*SS}, v{pPA}')
    a(f'v_not_b32 v{pNE}, v{pME}')
    a('v_cmp_gt_u32 vcc, 488, v0')
    a('s_mov_b64 s[64:65], vcc')

def consts_late(a):
    a(f's_and_b32 s{sF+3}, s{sF+1}, 0xffff0000')
    a(f's_lshl_b32 s{sF+2}, s{sF+1}, 16')
    a(f's_and_b32 s{sF+1}, s{sF}, 0xffff0000')
    a(f's_lshl_b32 s{sF}, s{sF}, 16')
    srd(a, sSV, 4, 0, 0 if 'V' in opt.diag else N*512)
    srd(a, sH, 24, H_OFF, 0 if 'H' in opt.diag else N*128)
    srd(a, sOUT, 20, 0, 0 if 'S' in opt.diag else R*512, mul=R*512)
    srd(a, sOVF, 24, OVF_OFF, NB*CH*4)
    a(f'v_bfe_u32 v44, v{vLANE16}, 4, 4')
    a(f'v_lshrrev_b32 v45, 8, v{vLANE16}')
    a('v_lshrrev_b32 v43, 2, v44')
    a('v_lshlrev_b32 v43, 3, v43')
    a('v_and_b32 v40, 3, v44')
    a('v_add_u32 v43, v43, v40')
    a(f's_mul_i32 s{sSTG}, s3, {STG}')
    a(f's_add_u32 s{sSTG}, s{sSTG}, {L_STG}')
    a(f's_sub_u32 s{sSD}, {L_SORT}, s{sSTG}')
    a(f'v_lshl_add_u32 v{vHA}, v43, 2, s{sSTG}')
    a('v_and_b32 v40, 1, v45')
    a('v_lshl_add_u32 v43, v40, 2, v43')
    a('v_lshrrev_b32 v40, 1, v45')
    a('v_lshl_add_u32 v43, v40, 5, v43')
    a(f'v_lshl_add_u32 v{vSTGW}, v43, 2, s{sSTG}')
    a(f'v_lshl_add_u32 v{vSTGH}, v43, 1, s{sSTG}')
    a(f'v_lshl_add_u32 v{vSTGR}, v45, 5, s{sSTG}')
    a(f'v_lshl_add_u32 v{vSTGS}, v45, 4, s{sSTG}')
    emit_Q(a, vLPV, 44, 40)
    a(f'v_lshlrev_b32 v{vLPV}, 3, v{vLPV}')
    a(f'v_lshl_add_u32 v{vLPR}, v44, 9, v{vLPH}')
    a(f'v_lshl_or_b32 v{vQQ}, v44, 16, v44')
    a(f's_mov_b32 s{sROUND}, 0')
    a(f'v_lshrrev_b32 v40, 1, v45')
    for k in range(4):
        a(f'v_add_u32 v{pRS+k}, {2*k}, v40')
        a(f'v_lshlrev_b32 v{pRS+k}, 5, v{pRS+k}')
        a(f'v_xor_b32 v{pRS+k}, v{pRS+k}, v{vLANE16}')
    a('v_and_b32 v39, 3, v0')
    a('v_lshlrev_b32 v39, 2, v39')
    a('v_subrev_u32 v39, 1, v39')

def build_weights(a):
    a('s_and_b32 s60, s3, 1')
    a(f's_mul_i32 s60, s60, {32*384}')
    a('s_bfe_u32 s62, s3, 0x20001')
    a('s_lshl_b32 s62, s62, 1')
    a('s_add_u32 s60, s60, s62')
    a(f's_add_u32 s60, s60, {L_W2R}')
    a(f'v_mul_u32_u24 v{pWA}, 96, v{vLPH}')
    a(f'v_add3_u32 v{pWA}, v{pWA}, v{vLPV}, s60')
    a('s_lshl_b32 s60, s3, 10')
    a(f'v_add_u32 v{pWD}, s60, v{vLANE16}')
    a(f'v_lshrrev_b32 v{pWR}, 3, v{vLPH}')
    a(f'v_add_u32 v{pWR}, v{pWR}, v{vLPV}')
    a(f'v_add_u32 v{pWR}, {L_WRR}, v{pWR}')
    for p in range(3):
        for k in range(4):
            a(f'ds_read_u16 v{104+4*p+k}, v{pWR} offset:{k*384 + p*128}')
    a('s_waitcnt lgkmcnt(0)')
    for p in range(3):
        for jj in range(8):
            if p and jj == 5: a('s_waitcnt lgkmcnt(11)')
            a(f'ds_read_u16 v{64+8*(p&1)+jj}, v{pWA} offset:{p*128 + (16*(jj>>2) + (jj&3))*384}')
        if p == 0:
            for pp in range(3):
                for i in range(2):
                    a(f'v_lshl_or_b32 v{WR+2*pp+i}, v{105+4*pp+2*i}, 16, v{104+4*pp+2*i}')
        if p:
            q = p - 1
            a('s_waitcnt lgkmcnt(8)')
            for i in range(4): a(f'v_lshl_or_b32 v{80+i}, v{65+8*(q&1)+2*i}, 16, v{64+8*(q&1)+2*i}')
            a(f'ds_write_b128 v{pWD}, v[80:83] offset:{q*8192}')
    a('s_waitcnt lgkmcnt(1)')
    for i in range(4): a(f'v_lshl_or_b32 v{84+i}, v{65+2*i}, 16, v{64+2*i}')
    a(f'ds_write_b128 v{pWD}, v[84:87] offset:{2*8192}')

def gen(a):
    header(a, NAME)
    a('s_cmp_ge_u32 s2, %d' % NB)
    a('s_cbranch_scc1 L_end')
    a('s_load_dwordx8 s[4:11], s[0:1], 0')
    a('s_load_dwordx8 s[12:19], s[0:1], 32')
    a('s_load_dwordx2 s[20:21], s[0:1], 64')
    a('s_load_dwordx2 s[24:25], s[0:1], 80')
    a('v_lshrrev_b32 v40, 6, v0')
    a('v_and_b32 v41, 63, v0')
    a('v_readfirstlane_b32 s3, v40')
    a(f'v_lshlrev_b32 v{vLANE16}, 4, v41')
    a('v_lshlrev_b32 v42, 4, v0')
    a('v_and_b32 v44, 15, v41')
    a('v_lshrrev_b32 v45, 4, v41')
    a(f'v_lshlrev_b32 v{vLPH}, 4, v45')
    a('s_and_b32 s60, s3, 3')
    a('s_lshl_b32 s60, s60, 4')
    a('v_add_u32 v46, s60, v44')
    a(f'v_lshl_add_u32 v64, v46, 9, v{vLPH}')
    a(f'v_lshl_add_u32 v65, v46, 7, v{vLPH}')
    a('v_lshrrev_b32 v43, 2, v42')
    a('s_waitcnt lgkmcnt(0)')
    if opt.tr0:
        tr_init(a); tr(a, 48)
    srd(a, 72, 6, 0, N*6)
    srd(a, sP4, 6, 0, 0 if 'P' in opt.diag else N*6)
    a('s_lshr_b32 s63, s2, 3')
    def group():
        a('s_sub_u32 s61, s60, 37')
        a('s_cmp_ge_u32 s60, 37')
        a('s_cselect_b32 s60, s61, s60')
        a('s_lshl_b32 s61, s60, 12')
        a('s_mov_b32 m0, s61')
        a(f's_add_u32 s60, s60, {group.step}')
        for k in range(4):
            a(f'buffer_load_dwordx4 v{vLANE16}, s[72:75], s61 offen offset:{1024*k} lds')
    NG = opt.ng0
    a('s_add_u32 s60, s63, s3')
    group.step = 8
    for i in range(opt.g1st): group()
    srd(a, 76, 14, 0, 8192)
    a('s_lshl_b32 s61, s3, 10')
    a(f's_add_u32 m0, s61, {K1_W1}')
    a('s_nop 0')
    a(f'buffer_load_dwordx4 v{vLANE16}, s[76:79], s61 offen lds')
    srd(a, sRES, 4, 0, R*512, mul=R*512)
    S = 68
    a('s_cmp_lt_u32 s3, 4')
    a('s_cbranch_scc1 L1_nos')
    a(f'buffer_load_dwordx4 v[{S}:{S+3}], v64, s[{sRES}:{sRES+3}], 0 offen')
    a(f'buffer_load_dwordx4 v[{S+4}:{S+7}], v64, s[{sRES}:{sRES+3}], 0 offen offset:64')
    a(f'v_add_u32 v64, {64*512}, v64')
    a(f'buffer_load_dwordx4 v[{S+8}:{S+11}], v64, s[{sRES}:{sRES+3}], 0 offen')
    a(f'buffer_load_dwordx4 v[{S+12}:{S+15}], v64, s[{sRES}:{sRES+3}], 0 offen offset:64')
    a.label('L1_nos', settle=False)
    SRC, DST = 48, 56
    srd(a, 64, 8, 0, CH*4, mul=CH*4)
    srd(a, 68, 10, 0, CH*4, mul=CH*4)
    nt = 'nt' if opt.nt_edges else ''
    a('v_lshrrev_b32 v47, 1, v42')
    a('v_add_u32 v47, 8192, v47')
    a(f'buffer_load_dwordx4 v[{SRC}:{SRC+3}], v42, s[64:67], 0 offen {nt}')
    a(f'buffer_load_dwordx4 v[{DST}:{DST+3}], v42, s[68:71], 0 offen {nt}')
    a(f'buffer_load_dwordx2 v[{SRC+4}:{SRC+5}], v47, s[64:67], 0 offen {nt}')
    a(f'buffer_load_dwordx2 v[{DST+4}:{DST+5}], v47, s[68:71], 0 offen {nt}')
    a(f'v_add_u32 v47, {12288 - 512}, v43')
    a('s_sub_u32 s61, s3, 2')
    a('s_cmp_lt_u32 s61, 2')
    a('s_cselect_b32 s62, 0, 0x40000000')
    a('v_add_u32 v47, s62, v47')
    a(f'buffer_load_dword v{SRC+6}, v47, s[64:67], 0 offen {nt}')
    a(f'buffer_load_dword v{DST+6}, v47, s[68:71], 0 offen {nt}')
    a(f's_add_u32 s88, s24, {EPOCH_OFF}')
    a('s_addc_u32 s89, s25, 0')
    a(f's_load_dword s{sEP}, s[88:89], 0')
    a(f's_load_dwordx2 s[{sF}:{sF+1}], s[12:13], 0')
    for i in range(NG - opt.g1st): group()
    if not opt.tr0: tr_init(a)
    tr(a, 1)
    a('v_mov_b32 v40, 0')
    a(f'v_add_u32 v47, {K1_CNT}, v43')
    a('s_cmp_ge_u32 s3, 5')
    a('s_cbranch_scc1 L1_nozero')
    a('ds_write_b32 v47, v40')
    a.label('L1_nozero', settle=False)
    a(f's_waitcnt vmcnt({6 + 4*(NG - opt.g1st)}) lgkmcnt(0)')
    a('s_mov_b32 s84, -100')
    a(f's_mov_b32 s85, {K1_CNT}')
    a(f's_mov_b32 s86, {L_STAGE}')
    a('v_mov_b32 v47, 80')
    a('s_barrier')
    tr(a, 2)
    a('s_cmp_ge_u32 s3, 4')
    a('s_cbranch_scc1 L1_hpath')
    AS, AD = 64, 72
    BINC, BINS, ENT = 80, 88, 96
    P = 104
    RK1 = 136
    def prep(i):
        a(f'v_mul_u32_u24 v40, 5243, v{DST+i}')
        a(f'v_mul_u32_u24 v{AS+i}, 6, v{SRC+i}')
        a(f'v_lshrrev_b32 v40, 19, v40')
        a(f'v_mul_u32_u24 v{AD+i}, 6, v{DST+i}')
        a(f'v_mad_i32_i24 v41, v40, s84, v{DST+i}')
        a(f'v_lshl_add_u32 v{BINC+i}, v40, 2, s85')
        a(f'v_lshl_or_b32 v{ENT+i}, v{SRC+i}, 9, v41')
        a(f'v_mad_u32_u24 v{BINS+i}, v40, v47, s86')
        a(f'v_and_b32 v{SRC+i}, -4, v{AS+i}')
        a(f'v_and_b32 v{DST+i}, -4, v{AD+i}')
    a('s_add_u32 s60, s63, s3')
    a(f's_add_u32 s60, s60, {8*NG}')
    a('s_sub_u32 s61, s60, 37')
    a('s_cmp_ge_u32 s60, 37')
    a('s_cselect_b32 s60, s61, s60')
    group.step = 4
    rest = 37 - 8*NG
    for i in range((rest + 3)//4):
        if 4*i + 3 >= rest:
            a(f's_cmp_ge_u32 s3, {rest - 4*i}')
            a('s_cbranch_scc1 L1_tabdone')
        group()
        if opt.ilv and i == opt.ilv - 1:
            a(f's_waitcnt vmcnt({4*(NG - opt.g1st) + 4*opt.ilv})')
            prep(0); prep(1)
        if opt.ilv and i == opt.ilv: prep(2); prep(3)
        if opt.ilv and i == opt.ilv + 1: prep(4); prep(5); prep(6)
    a.label('L1_tabdone', settle=False)
    if opt.fine: tr(a, 54)
    a(f's_waitcnt vmcnt({4*(NG - opt.g1st) + 4*(rest//4)})')
    a('s_branch L1_consts')
    a.label('L1_hpath', settle=False)
    if opt.hprio: a(f's_setprio {opt.hprio}')
    srd(a, 76, 24, H_OFF, R*128, mul=R*128)
    a('v_lshrrev_b32 v66, 2, v44')
    a('v_lshl_add_u32 v66, v45, 3, v66')
    a('v_and_b32 v67, 3, v44')
    a('v_lshlrev_b32 v67, 3, v67')
    a('v_lshl_add_u32 v66, v66, 7, v67')
    a(f'v_add_u32 v66, {K1_W1}, v66')
    FR = 100
    for ht in range(4):
        for ks in range(2):
            r = FR + (ht*2+ks)*4
            if ht == 3 and ks == 0: a('s_waitcnt lgkmcnt(4)')
            for hf in range(2):
                a(f'ds_read_b64_tr_b16 v[{r+2*hf}:{r+2*hf+1}], v66 offset:{ks*4096 + ht*32 + hf*512}')
    D = 132; O = 148; Tt = 164
    a('s_waitcnt lgkmcnt(0)')
    for t in range(2):
        if t == 1:
            a('s_cmp_eq_u32 s3, 7')
            a.br('s_cbranch_scc1 L1_hdone')
        for ht in range(4):
            a(f'v_mfma_f32_16x16x32_bf16 v[{D+4*ht}:{D+4*ht+3}], v[{FR+ht*8}:{FR+ht*8+3}], v[{S+8*t}:{S+8*t+3}], 0')
            a(f'v_mfma_f32_16x16x32_bf16 v[{D+4*ht}:{D+4*ht+3}], v[{FR+ht*8+4}:{FR+ht*8+7}], v[{S+8*t+4}:{S+8*t+7}], v[{D+4*ht}:{D+4*ht+3}]')
        for grp in range(4):
            for i in range(4): a(f'v_cvt_pk_bf16_f32 v{D+4*grp+i}, 0, v{D+4*grp+i}')
            for i in range(4): a(f'v_mul_f32 v{Tt+i}, {fl(-1.4426950408889634)}, v{D+4*grp+i}')
            for i in range(4): a(f'v_exp_f32 v{Tt+i}, v{Tt+i}')
            for i in range(4): a(f'v_add_f32 v{Tt+i}, 1.0, v{Tt+i}')
            for i in range(4): a(f'v_rcp_f32 v{Tt+i}, v{Tt+i}')
            for i in range(4): a(f'v_mul_f32 v{Tt+i}, v{Tt+i}, v{D+4*grp+i}')
            a(f'v_cvt_pk_bf16_f32 v{O+8*t+2*grp}, v{Tt}, v{Tt+1}')
            a(f'v_cvt_pk_bf16_f32 v{O+8*t+2*grp+1}, v{Tt+2}, v{Tt+3}')
        if t == 0:
            O2 = O
        else:
            pass
    a.label('L1_hdone')
    if opt.fine: tr(a, 57)
    a(f'buffer_store_dwordx4 v[{O}:{O+3}], v65, s[76:79], 0 offen sc1')
    a(f'buffer_store_dwordx4 v[{O+4}:{O+7}], v65, s[76:79], 0 offen offset:64 sc1')
    a(f'v_add_u32 v65, {64*128}, v65')
    a(f'buffer_store_dwordx4 v[{O+8}:{O+11}], v65, s[76:79], 0 offen sc1')
    a(f'buffer_store_dwordx4 v[{O+12}:{O+15}], v65, s[76:79], 0 offen offset:64 sc1')
    a(f's_waitcnt vmcnt({4*(NG - opt.g1st) + 4})')
    if opt.ilv:
        for i in range(7): prep(i)
    a.label('L1_consts')
    if opt.fine: tr(a, 55)
    a('s_waitcnt lgkmcnt(0)')
    a(f's_add_u32 s{sEP}, s{sEP}, 1')
    for j in (1, 2, 3):
        a(f's_lshr_b32 s60, s{sEP}, {10*(j-1)}')
        a('s_lshl_b32 s61, s60, 24')
        a('s_lshr_b32 s60, s60, 1')
        a('s_and_b32 s60, s60, 0x180')
        a(f's_or_b32 s{sNB+j}, s60, s61')
    a(f's_xor_b32 s{sNB}, s{sNB+1}, 0xff000180')
    srd(a, sW2F, 16, 0, 64*192*2)
    srd(a, sWRR, 18, 0, 4*192*2)
    a(f'v_mov_b32 v{vMHI}, 0xffff0000')
    a('v_lshrrev_b32 v43, 2, v0')
    a('v_and_b32 v40, 0xf0, v43')
    a('v_bfe_u32 v46, v43, 1, 3')
    a('v_or_b32 v40, v40, v46')
    a('v_and_b32 v46, 1, v43')
    a('v_lshl_or_b32 v40, v46, 3, v40')
    a('v_and_b32 v46, 3, v0')
    a(f'v_lshlrev_b32 v{pPA}, 4, v46')
    a(f'v_lshlrev_b32 v{pHC}, 2, v40')
    a(f'v_add_u32 v{pHC}, {K1_CNT}, v{pHC}')
    a('v_mul_u32_u24 v40, 80, v40')
    a(f'v_add_u32 v40, v40, v{pPA}')
    a(f'v_add_u32 v{pLDS}, {L_STAGE}, v40')
    a(f'v_lshlrev_b32 v{pOFA}, 4, v0')
    a(f'v_add_u32 v{pOFB}, 8192, v{pOFA}')
    a(f'v_mov_b32 v{pME}, {M_ENT}')
    a(f'v_mov_b32 v{pM0}, {M_HDR}')
    a(f'v_cmp_eq_u32 s[{sPC0}:{sPC0+1}], 0, v46')
    a(f'v_add_u32 v{pHS}, {K1_CNT}, v{vLANE16}')
    a(f'v_cndmask_b32_e64 v{pM0}, v{pME}, v{pM0}, s[{sPC0}:{sPC0+1}]')
    a(f'v_not_b32 v{pN0}, v{pM0}')
    a(f'v_and_b32 v{pT0}, s{sNB}, v{pN0}')
    if opt.fine: tr(a, 56)
    a(f's_mov_b32 s60, {fl([opt.thr, 24.07, 23.9][opt.exact])}')
    if not opt.ilv:
        for i in range(7): prep(i)
    a(f's_mul_i32 s87, s2, {R}')
    a(f'v_lshrrev_b32 v41, 4, v{vLANE16}')
    a('v_add_u32 v132, s87, v41')
    a('v_add_u32 v133, 64, v132')
    for h in range(2):
        a(f'v_mul_u32_u24 v{132+h}, 6, v{132+h}')
        a(f'v_and_b32 v{134+h}, -4, v{132+h}')
    a('v_mov_b32 v46, 1')
    for _ in range(opt.pad1): a('v_lshlrev_b32 v40, 1, v40')
    if opt.hprio: a('s_setprio 0')
    tr(a, 3)
    a('s_cmp_ge_u32 s3, 4')
    a('s_cbranch_scc1 L1_b1')
    a('s_waitcnt vmcnt(0)')
    a.label('L1_b1', settle=False)
    a('s_waitcnt vmcnt(4) lgkmcnt(0)')
    a('s_barrier')
    tr(a, 4)
    def reads(i):
        a(f'ds_read2_b32 v[{P+4*i}:{P+4*i+1}], v{SRC+i} offset1:1')
        a(f'ds_read2_b32 v[{P+4*i+2}:{P+4*i+3}], v{DST+i} offset1:1')
    def test(i):
        p, q = P+4*i, P+4*i+2
        a(f'v_alignbyte_b32 v40, v{p+1}, v{p}, v{AS+i}')
        a(f'v_alignbyte_b32 v41, v{p+1}, v{p+1}, v{AS+i}')
        a(f'v_alignbyte_b32 v42, v{q+1}, v{q}, v{AD+i}')
        a(f'v_alignbyte_b32 v43, v{q+1}, v{q+1}, v{AD+i}')
        a(f'v_lshlrev_b32 v{p}, 16, v40')
        a(f'v_lshlrev_b32 v{q}, 16, v42')
        a(f'v_and_b32 v40, v{vMHI}, v40')
        a(f'v_and_b32 v42, v{vMHI}, v42')
        a(f'v_lshlrev_b32 v41, 16, v41')
        a(f'v_lshlrev_b32 v43, 16, v43')
        a(f'v_sub_f32 v{p}, v{p}, v{q}')
        a(f'v_sub_f32 v40, v40, v42')
        a(f'v_sub_f32 v41, v41, v43')
        if opt.exact == 2:
            for r in (p, 40, 41): a(f'v_cvt_pk_bf16_f32 v{r}, 0, v{r}')
            for r in (p, 40, 41): a(f'v_mul_f32 v{r}, v{r}, v{r}')
            for r in (p, 40, 41): a(f'v_cvt_pk_bf16_f32 v{r}, 0, v{r}')
            a(f'v_add_f32 v{p}, v{p}, v40')
            a(f'v_add_f32 v{p}, v{p}, v41')
            a(f'v_cvt_pk_bf16_f32 v{p}, 0, v{p}')
        else:
            if opt.exact == 1:
                for r in (p, 40, 41): a(f'v_cvt_pk_bf16_f32 v{r}, 0, v{r}')
            a(f'v_mul_f32 v{p}, v{p}, v{p}')
            a(f'v_fmac_f32 v{p}, v40, v40')
            a(f'v_fmac_f32 v{p}, v41, v41')
        a(f'v_cmp_ngt_f32 s[{64+2*i}:{65+2*i}], v{p}, s60')
    def rank(i):
        a(f's_mov_b64 exec, s[{64+2*i}:{65+2*i}]')
        a(f'ds_add_rtn_u32 v{RK1+i}, v{BINC+i}, v46')
        a('s_mov_b64 exec, -1')
    for i in range(6): reads(i)
    if opt.prewr:
        srd(a, 88, 24, SLOT_OFF, 16384, mul=SS)
        for k in range(4): a(f'v_mov_b32 v{168+k}, 0')
        for h in range(2):
            a(f'buffer_store_dwordx4 v[168:171], v{pOFA+h}, s[88:91], 0 offen sc1')
    if opt.pfres:
        a(f's_lshl_b32 s84, s3, 12')
        for k in range(4):
            a(f'buffer_load_dwordx4 v[164:167], v{vLANE16}, s[{sRES}:{sRES+3}], s84 offen offset:{1024*k}')
        if opt.pfres > 1:
            a('s_add_u32 s84, s84, 32768')
            for k in range(4):
                a(f'buffer_load_dwordx4 v[164:167], v{vLANE16}, s[{sRES}:{sRES+3}], s84 offen offset:{1024*k}')
    if opt.prew or opt.pfw:
        a('s_sub_u32 s84, s3, 4')
        a('s_cmp_ge_u32 s84, 3')
        a('s_cbranch_scc1 L1_notouch')
    if opt.pfw:
        a('s_lshr_b32 s85, s2, 3')
        a('s_mul_i32 s85, s85, 768')
        a('s_lshl_b32 s86, s84, 8')
        a('s_add_u32 s85, s85, s86')
        a(f'v_and_b32 v47, 0xf0, v{vLANE16}')
        a('v_add_u32 v47, s85, v47')
        a(f'buffer_load_dwordx4 v[168:171], v47, s[{sW2F}:{sW2F+3}], 0 offen')
    if opt.prew:
        srd(a, 88, 24, SLOT_OFF, 16384, mul=SS)
        a(f'v_subrev_u32 v47, 4096, v{pOFA}')
        for k in range(6):
            a('buffer_load_dwordx4 v[168:171], v47, s[88:91], 0 offen')
            if k < 5: a('v_add_u32 v47, 3072, v47')
        a(f's_mov_b32 s{sROUND}, 0')
    if opt.prew or opt.pfw:
        a.label('L1_notouch', settle=False)
    a('s_mov_b64 s[76:77], 0')
    a('s_sub_u32 s84, s3, 2')
    a('s_cmp_lt_u32 s84, 2')
    a('s_cbranch_scc0 L1_six')
    a('s_waitcnt lgkmcnt(10)')
    test(0)
    reads(6)
    a('s_waitcnt lgkmcnt(0)')
    test(6)
    a.br('s_branch L1_rest')
    a.label('L1_six')
    a('s_cmp_lg_u32 s3, 7')
    a('s_cbranch_scc1 L1_notw7')
    a('s_waitcnt lgkmcnt(8)')
    for h in range(2):
        a(f'ds_read2_b32 v[{152+2*h}:{153+2*h}], v{134+h} offset1:1')
    a('s_waitcnt lgkmcnt(0)')
    for h in range(2):
        a(f'v_alignbyte_b32 v{156+2*h}, v{153+2*h}, v{152+2*h}, v{132+h}')
        a(f'v_alignbyte_b32 v{157+2*h}, v{153+2*h}, v{153+2*h}, v{132+h}')
        a(f'v_lshlrev_b32 v{144+4*h}, 16, v{156+2*h}')
        a(f'v_and_b32 v{145+4*h}, v{vMHI}, v{156+2*h}')
        a(f'v_lshlrev_b32 v{146+4*h}, 16, v{157+2*h}')
        a(f'v_mov_b32 v{147+4*h}, 0')
    a.label('L1_notw7')
    a('s_waitcnt lgkmcnt(10)')
    test(0)
    a.label('L1_rest')
    for i in range(1, 6):
        a(f's_waitcnt lgkmcnt({2*(5-i)})')
        test(i)
    for i in (6, 0, 1, 2, 3, 4, 5):
        a(f's_mov_b64 exec, s[{64+2*i}:{65+2*i}]')
        a(f'ds_add_rtn_u32 v{RK1+i}, v{BINC+i}, v46')
    a('s_mov_b64 exec, -1')
    for _ in range(opt.pad2): a('v_lshlrev_b32 v40, 1, v40')
    a('s_waitcnt lgkmcnt(0)')
    a('s_barrier')
    tr(a, 5)
    a(f's_mul_i32 s{sT0}, s3, 3072')
    a(f's_add_u32 m0, s{sT0}, {L_W2R}')
    a(f's_lshl_b32 s{sT1}, s3, 10')
    a(f's_min_u32 s{sT2}, s{sT1}, 2048')
    for i in range(3):
        a(f'buffer_load_dwordx4 v{vLANE16}, s[{sW2F}:{sW2F+3}], s{sT0} offen offset:{1024*i} lds')
    a(f's_add_u32 m0, s{sT2}, {L_WRR}')
    a(f'ds_read_b128 v[104:107], v{pHS}')
    a(f'buffer_load_dwordx4 v{vLANE16}, s[{sWRR}:{sWRR+3}], s{sT1} offen lds')
    a(f'ds_read_b32 v108, v{pHC}')
    a(f'ds_read_b32 v109, v{pHC} offset:512')
    if opt.fine: tr(a, 50)
    for i in range(7):
        a(f'v_min_u32 v40, {CAP}, v{RK1+i}')
        a(f'v_lshl_add_u32 v{BINS+i}, v40, 2, v{BINS+i}')
    for i in range(7):
        a(f's_mov_b64 exec, s[{64+2*i}:{65+2*i}]')
        a(f'ds_write_b32 v{BINS+i}, v{ENT+i} offset:4')
    a('s_mov_b64 exec, -1')
    if opt.fine: tr(a, 51)
    def zero_counters(tag):
        a('s_cmp_ge_u32 s3, 2')
        a(f's_cbranch_scc1 L2_nozero{tag}')
        a('v_lshlrev_b32 v42, 2, v0')
        a('v_mov_b32 v44, 0')
        a(f'ds_write_b32 v42, v44 offset:{L_NCNT}')
        a.label(f'L2_nozero{tag}', settle=False)
    zero_counters('a')
    a('s_cmp_lg_u32 s3, 7')
    a('s_cbranch_scc1 L1_join')
    for h in range(2):
        a(f'ds_write_b128 v{vLANE16}, v[{144+4*h}:{147+4*h}] offset:{L_DPOS + 1024*h}')
    a.label('L1_join', settle=False)
    srd(a, 84, 24, SLOT_OFF, 16384, mul=SS)
    if opt.fine: tr(a, 52)
    n7 = 4 + [0, 4, 8][opt.pfres] + (2 if opt.prewr else 0)
    if opt.prew or opt.pfw:
        a('s_cmp_lg_u32 s3, 7')
        a('s_cbranch_scc1 L1_b3')
        a(f's_waitcnt vmcnt({n7})')
        a.label('L1_b3', settle=False)
    a('s_waitcnt vmcnt(%d) lgkmcnt(0)' % (n7 + (6 if opt.prew else 0) + (1 if opt.pfw else 0)))
    if opt.fine: tr(a, 53)
    a('v_max3_u32 v104, v104, v105, v106')
    a('v_max_u32 v104, v104, v107')
    a(f'v_cmp_lt_u32 vcc, {CAP}, v104')
    a('s_barrier')
    tr(a, 6)
    W = V
    a(f'ds_read_b128 v[{W}:{W+3}], v{pLDS}')
    a(f'ds_read_b128 v[{W+4}:{W+7}], v{pLDS} offset:{128*80}')
    a('s_cbranch_vccnz L1_ovf')
    a.label('L1_noovf', settle=False)
    for h in range(2):
        a(f's_waitcnt lgkmcnt({1-h})')
        a(f'v_cndmask_b32_e64 v{W+4*h}, v{W+4*h}, v{108+h}, s[{sPC0}:{sPC0+1}]')
        for j in (1, 2, 3):
            a(f'v_and_or_b32 v{W+4*h+j}, v{W+4*h+j}, v{pME}, s{sNB+j}')
        a(f'v_and_or_b32 v{W+4*h}, v{W+4*h}, v{pM0}, v{pT0}')
        a(f'buffer_store_dwordx4 v[{W+4*h}:{W+4*h+3}], v{pOFA+h}, s[84:87], 0 offen {opt.dumpsc}')
    tr(a, 7)
    consts_poll(a)
    if opt.wb == 1:
        emit_Q(a, vLPV, 44, 40) if False else None
    def res_image(tag):
        if tag == 'b':
            a(f'v_lshrrev_b32 v40, 9, v{vLANE16}')
            for k in range(4):
                a(f'v_add_u32 v{pRS+k}, {2*k}, v40')
                a(f'v_lshlrev_b32 v{pRS+k}, 5, v{pRS+k}')
                a(f'v_xor_b32 v{pRS+k}, v{pRS+k}, v{vLANE16}')
        a(f's_lshl_b32 s{sT0}, s3, 12')
        a(f's_add_u32 m0, s{sT0}, {L_RES}')
        a('s_cmp_ge_u32 s3, 5')
        for k in range(4):
            a(f'buffer_load_dwordx4 v{pRS+k}, s[{sRES}:{sRES+3}], s{sT0} offen offset:{1024*k} sc1 lds')
        a(f's_cbranch_scc1 L2_resdone{tag}')
        a(f's_add_u32 s{sT0}, s{sT0}, 32768')
        a(f's_add_u32 m0, s{sT0}, {L_RES}')
        a('s_cmp_eq_u32 s3, 4')
        for k in range(4):
            if k == 2: a(f's_cbranch_scc1 L2_resdone{tag}')
            a(f'buffer_load_dwordx4 v{pRS+k}, s[{sRES}:{sRES+3}], s{sT0} offen offset:{1024*k} sc1 lds')
        a.label(f'L2_resdone{tag}', settle=False)
    a(f's_mov_b32 s61, {1 << opt.spin}')
    a('s_waitcnt vmcnt(2)')
    a('s_barrier')
    tr(a, 23)
    if opt.wb == 1:
        consts_late(a); build_weights(a)
    if opt.wb == 2: consts_late(a)
    if opt.res_when == 'drain':
        res_image('a')
        a('s_waitcnt vmcnt(4)')
    elif opt.drain:
        a('s_waitcnt vmcnt(0)')
    else:
        a('s_nop 1')
    tr(a, 8)
    a(f'buffer_load_dwordx4 v[{W}:{W+3}], v{pPA}, s[{sSLOT}:{sSLOT+3}], 0 offen sc1')
    a(f'buffer_load_dwordx4 v[{W+4}:{W+7}], v{pPB}, s[{sSLOT}:{sSLOT+3}], 0 offen sc1')
    if opt.res_when == 'mid': res_image('a')
    if opt.wb == 0: consts_late(a)
    if opt.wb != 1: build_weights(a)
    a('s_waitcnt vmcnt(4)' if opt.res_when == 'mid' else 's_waitcnt vmcnt(0)')
    a.label('L2_poll')
    if opt.fine: tr(a, 24)
    for h in range(2):
        w = W + 4*h
        a(f'v_xor_b32 v{61+h}, v{pT0}, v{w}')
        a(f'v_and_b32 v{61+h}, v{pN0}, v{61+h}')
        for j in (1, 2, 3):
            a(f'v_xor_b32 v63, s{sNB+j}, v{w+j}')
            a(f'v_and_or_b32 v{61+h}, v63, v{pNE}, v{61+h}')
    a('v_cmp_ne_u32 vcc, 0, v61')
    a('v_cmp_ne_u32 s[66:67], 0, v62')
    a('s_and_b64 s[66:67], s[66:67], s[64:65]')
    a('s_or_b64 s[68:69], s[66:67], vcc')
    a.br('s_cbranch_scc0 L2_polled')
    a('s_sub_u32 s61, s61, 1')
    a('s_cmp_eq_u32 s61, 0')
    a.br('s_cbranch_scc1 L2_polled')
    if opt.sleep: a(f's_sleep {opt.sleep}')
    if opt.pollmask:
        a('s_mov_b64 exec, vcc')
        a('s_cbranch_execz L2_nopollA')
    a(f'buffer_load_dwordx4 v[{W}:{W+3}], v{pPA}, s[{sSLOT}:{sSLOT+3}], 0 offen sc1')
    if opt.pollmask:
        a.label('L2_nopollA', settle=False)
        a('s_mov_b64 exec, s[66:67]')
        a('s_cbranch_execz L2_nopollB')
    a(f'buffer_load_dwordx4 v[{W+4}:{W+7}], v{pPB}, s[{sSLOT}:{sSLOT+3}], 0 offen sc1')
    if opt.pollmask:
        a.label('L2_nopollB', settle=False)
        a('s_mov_b64 exec, -1')
    a('s_waitcnt vmcnt(0)')
    a.br('s_branch L2_poll')
    a.label('L2_polled')
    tr(a, 9)
    if opt.res_when == 'post': res_image('a')
    LIM, CNT = 56, 58
    a(f'v_mov_b32_dpp v{CNT}, v{W} quad_perm:[0,0,0,0] row_mask:0xf bank_mask:0xf')
    a(f'v_mov_b32_dpp v{CNT+1}, v{W+4} quad_perm:[0,0,0,0] row_mask:0xf bank_mask:0xf')
    for h in range(2):
        a(f'v_and_b32 v{CNT+h}, 0xfff, v{CNT+h}')
        a(f'v_min_u32 v{LIM+h}, {CAP}, v{CNT+h}')
        a(f'v_subrev_u32 v{CNT+h}, {CAP}, v{CNT+h}')
    a.label('L2_round')
    A = 60; RK = 68; T = 76
    a('v_mov_b32 v40, 1')
    a(f's_mov_b32 s60, {L_NCNT}')
    for i in range(4):
        a(f'v_add_u32 v{41+i}, {i}, v39')
    for i in range(8):
        a(f'v_cmp_lt_u32 s[{64+2*i}:{65+2*i}], v{41 + (i & 3)}, v{LIM + i//4}')
        a(f'v_and_b32 v{A+i}, 127, v{W+i}')
        a(f'v_lshl_add_u32 v{A+i}, v{A+i}, 2, s60')
    if opt.fine: tr(a, 61)
    a(f'v_max_i32 v41, v{CNT}, v{CNT+1}')
    a('v_cmp_lt_i32 vcc, 0, v41')
    for i in range(8):
        a(f's_mov_b64 exec, s[{64+2*i}:{65+2*i}]')
        a(f'ds_add_rtn_u32 v{RK+i}, v{A+i}, v40')
    a('s_mov_b64 exec, -1')
    if opt.res_when == 'post2':
        a(f's_cmp_lg_u32 s{sROUND}, 0')
        a('s_cbranch_scc1 L2_resdonea')
        res_image('a')
    a('s_cbranch_vccz L2_noflag')
    a(f'v_mov_b32 v41, {L_NCNT + 127*4}')
    a('ds_write_b32 v41, v40')
    a.label('L2_noflag', settle=False)
    for i in range(8):
        a(f'v_and_b32 v{W+i}, {M_ENT}, v{W+i}')
    for _ in range(opt.pad3): a('v_lshlrev_b32 v41, 1, v41')
    a('s_waitcnt lgkmcnt(0)')
    a('s_barrier')
    tr(a, 10)
    a(f's_cmp_lg_u32 s{sROUND}, 0')
    a.br('s_cbranch_scc1 L2_now2f')
    if opt.res_when == 'late': res_image('a')
    a('s_or_b32 s60, s2, s3')
    a('s_cmp_lg_u32 s60, 0')
    a.br('s_cbranch_scc1 L2_now2f')
    srd(a, 84, 24, EPOCH_OFF, 4)
    a(f'v_mov_b32 v43, s{sEP}')
    a('s_mov_b64 exec, 1')
    a('buffer_store_dword v43, off, s[84:87], 0 sc1')
    a('s_mov_b64 exec, -1')
    a.label('L2_now2f')
    if opt.pfv: a('v_mov_b32 v44, 0x40000000')
    for i in opt.pfv:
        a(f'v_and_b32 v45, 0xfffe00, v{W+i}')
        a(f'v_cndmask_b32_e64 v45, v44, v45, s[{64+2*i}:{65+2*i}]')
        for j in range(3*opt.pfn):
            a(f'buffer_load_dword v255, v45, s[{sSV}:{sSV+3}], 0 offen offset:{128 + j*128//opt.pfn}')
        if opt.pfh:
            a('v_lshrrev_b32 v45, 2, v45')
            a(f'buffer_load_dword v255, v45, s[{sH}:{sH+3}], 0 offen {opt.hsc}')
    a(f'v_lshrrev_b32 v41, 2, v{vLANE16}')
    a(f'v_add_u32 v41, {L_NCNT}, v41')
    a('ds_read2st64_b32 v[42:43], v41 offset1:1')
    a('s_waitcnt lgkmcnt(0)')
    a(f'v_readlane_b32 s{sMORE}, v43, 63')
    a('v_lshl_or_b32 v42, v43, 16, v42')
    a('v_mov_b32 v43, v42')
    for sh in ('row_shr:1', 'row_shr:2', 'row_shr:4', 'row_shr:8'):
        a(f'v_add_u32_dpp v43, v43, v43 {sh} row_mask:0xf bank_mask:0xf')
    a('v_add_u32_dpp v43, v43, v43 row_bcast:15 row_mask:0xa bank_mask:0xf')
    a('v_add_u32_dpp v43, v43, v43 row_bcast:31 row_mask:0xc bank_mask:0xf')
    a(f'v_readlane_b32 s{sT0}, v43, 63')
    a('v_sub_u32 v43, v43, v42')
    a(f's_and_b32 s{sT0}, s{sT0}, 0xffff')
    a(f'v_and_b32 v{vSTLO}, 0xffff, v43')
    a(f'v_lshrrev_b32 v{vSTHI}, 16, v43')
    a(f'v_add_u32 v{vSTHI}, s{sT0}, v{vSTHI}')
    if opt.fine: tr(a, 58)
    a(f'ds_write2st64_b32 v41, v{vSTLO}, v{vSTHI} offset0:2 offset1:3')
    for i in range(8):
        a(f'ds_read_b32 v{T+i}, v{A+i} offset:512')
    a(f'v_lshl_or_b32 v{vPACK}, v{vSTHI}, 16, v{vSTLO}')
    for i in range(8):
        if i % 4 == 0:
            a(f's_waitcnt lgkmcnt({4 - i})')
            for k in range(i, i+4): a(f'v_add_lshl_u32 v{T+k}, v{T+k}, v{RK+k}, 2')
        a(f's_mov_b64 exec, s[{64+2*i}:{65+2*i}]')
        a(f'ds_write_b32 v{T+i}, v{W+i} offset:{L_SORT}')
        if i % 4 == 3: a('s_mov_b64 exec, -1')
    for k, (st, d) in enumerate(((vSTLO, 32), (vSTHI, 32), (vSTLO, 64), (vSTHI, 64))):
        a(f'v_add_u32 v{T+k}, {d}, v{st}')
        a(f'v_lshlrev_b32 v{T+4+k}, 2, v{T+k}')
    a(f'v_readlane_b32 s{sT2}, v{vSTHI}, {R - 64}')
    a(f'v_lshrrev_b32 v40, 4, v{vLANE16}')
    a('v_add_u32 v41, 64, v40')
    a(f'v_mov_b32 v46, {R}')
    a(f's_mov_b32 s{sNC}, 0')
    a(f's_mov_b32 s{sC64}, s3')
    if opt.fine: tr(a, 59)
    a('s_waitcnt vmcnt(%d) lgkmcnt(0)' % (len(opt.pfv)*(3*opt.pfn + (1 if opt.pfh else 0))))
    if opt.fine: tr(a, 60)
    a('s_barrier')
    tr(a, 21)
    for k in (2, 3, 0, 1):
        a(f'ds_read_b32 v{T+4+k}, v{T+4+k} offset:{L_SORT}')
    for k in range(4):
        a(f'v_cmp_gt_u32 s[{64+2*k}:{65+2*k}], s{sT2}, v{T+k}')
    a('v_add_u32 v42, 1, v40')
    a('v_add_u32 v43, 16, v40')
    a('v_add_u32 v44, 1, v41')
    a('v_add_u32 v45, 16, v41')
    for k in (2, 3, 0, 1):
        r = T + 4 + k
        if k in (2, 0): a(f's_waitcnt lgkmcnt({2 if k == 2 else 0})')
        a(f'v_and_b32 v{r}, 127, v{r}')
        a(f'v_cndmask_b32_e64 v{r}, v46, v{r}, s[{64+2*k}:{65+2*k}]')
        a(f'v_med3_u32 v{r}, v{r}, v{42 + 2*(k & 1)}, v{43 + 2*(k & 1)}')
        a(f'v_min_u32 v{r}, v46, v{r}')
        if k == 3: a(f'v_lshl_or_b32 v{vNX64}, v{T+7}, 16, v{T+6}')
    a(f'v_lshl_or_b32 v{vNX32}, v{T+5}, 16, v{T+4}')
    if opt.fine: tr(a, 42)
    chain_loop(a, vNX64, sC64)
    if opt.fine: tr(a, 43)
    a(f's_cmp_lt_u32 s{sNC}, {R}')
    a.br('s_cbranch_scc0 L2_rounddone')
    if opt.prio: a('s_setprio 3')
    a(f's_mov_b32 s{sN0}, s{sNC}')
    chain_start(a, sE0)
    chain_step(a, vNX64)
    chain_start(a, sE1)
    if opt.cap16:
        g.walk_init(a)
        a(f's_mov_b32 s{g.sTOT}, s{sT2}')
    else:
        a(f's_sub_u32 s{sC64}, 7, s3')
        a(f's_mov_b32 s{sC32}, s3')
    if opt.mini: a.label('L2_issue', settle=False)
    a(f's_sub_u32 s{sNN}, s{sNC}, s{sN0}')
    a(f's_mov_b32 s{sXE0}, s{sE0}')
    a(f's_mov_b32 s{sXE1}, s{sE1}')
    emit(a, next_entry_read(TP))
    emit(a, next_mask(TP+4))
    a('s_waitcnt lgkmcnt(0)')
    if opt.fine: tr(a, 62)
    emit(a, next_stage(TP+4, TP+5))
    emit(a, off_reads(0))
    emit(a, pos_load(TP+5))
    a('s_waitcnt lgkmcnt(0)')
    emit(a, off_adds())
    emit(a, h_loads())
    a(f's_mov_b32 s{sFI}, 1')
    if opt.prio: a('s_setprio %d' % {0: 0, 1: 1, 2: 1, 3: 2, 4: 2, 5: 2, 6: 2, 7: 1, 8: 2, 9: 1, 10: 2, 11: 2, 12: 1, 13: 1, 14: 1, 15: 1}[opt.yld])
    if opt.yld in (13, 14, 15):
        a('s_cmp_ge_u32 s3, 4')
        a('s_cbranch_scc1 L2_young')
        a('s_setprio 2')
        a.label('L2_young', settle=False)
    if opt.look: g.lookahead(a)
    tr(a, 22)
    a.br('s_branch L2_head_A')
    head(a, 'B')
    head(a, 'A')
    tail(a, 'toC')
    head(a, 'C')
    newitem(a)
    tail(a, 'toA')
    if opt.mini:
        head(a, 'M')
        tail(a, 'finM')
    tail(a, 'fin')
    a.label('L2_rounddone')
    tr(a, 30)
    a(f's_cmp_eq_u32 s{sMORE}, 0')
    a.br('s_cbranch_scc1 L2_fin')
    a('s_waitcnt vmcnt(0) lgkmcnt(0)')
    a('s_barrier')
    zero_counters('b')
    srd(a, sRES, 20, 0, R*512, mul=R*512)
    res_image('b')
    a('v_lshrrev_b32 v40, 2, v0')
    a(f'v_mul_u32_u24 v41, {SS}, v40')
    a(f'buffer_load_dword v42, v41, s[{sSLOT}:{sSLOT+3}], 0 offen sc1')
    a(f'v_add_u32 v41, {128*SS}, v41')
    a(f'buffer_load_dword v43, v41, s[{sSLOT}:{sSLOT+3}], 0 offen sc1')
    a('v_and_b32 v39, 3, v0')
    a('v_lshlrev_b32 v39, 2, v39')
    a(f's_lshl_b32 s{sT0}, s{sROUND}, 4')
    a(f's_add_u32 s{sT1}, s{sT0}, {CAP}')
    a(f's_add_u32 s{sROUND}, s{sROUND}, 1')
    a(f'v_mul_u32_u24 v40, {CH*4}, v40')
    a('v_lshl_add_u32 v40, v39, 2, v40')
    a(f's_lshl_b32 s{sT0}, s{sT0}, 2')
    a(f'v_add_u32 v40, s{sT0}, v40')
    a('s_waitcnt vmcnt(0)')
    for h in range(2):
        a(f'v_bfe_u32 v44, v{42+h}, 12, 12')
        a(f'v_lshl_add_u32 v44, v44, 2, v40')
        if h: a(f'v_add_u32 v44, {128*CH*4}, v44')
        a(f'buffer_load_dwordx4 v[{W+4*h}:{W+4*h+3}], v44, s[{sOVF}:{sOVF+3}], 0 offen sc1')
        a(f'v_and_b32 v{CNT+h}, 0xfff, v{42+h}')
        a(f'v_subrev_u32 v{CNT+h}, s{sT1}, v{CNT+h}')
        a(f'v_med3_i32 v{LIM+h}, v{CNT+h}, 0, 16')
        a(f'v_subrev_u32 v{CNT+h}, 16, v{CNT+h}')
    a('s_waitcnt vmcnt(0) lgkmcnt(0)')
    a('s_barrier')
    a.br('s_branch L2_round')
    a.label('L2_fin')
    if opt.tr or opt.dbg2:
        a('s_waitcnt vmcnt(0)')
        tr(a, 31)
    tr_dump(a)
    a.label('L_end')
    a('s_endpgm')
    rare_paths(a)


DOC = """;
;
;   * the entries are counting-sorted by node and cut into items of <= 16 nodes and <= 64 (later 32 or 16) edges;
;     accumulated in fp32 on top of the residual row and rounded once;
;"""

def build():
    src = open('gather_scatter__molecular_angular_painn__graph.s.ref').read().split('\n')
    head_ = []
    for ln in src:
        if not ln.startswith(';'): break
        if '@launch' in ln or 'Override launch' in ln or 'grid=ceil' in ln: continue
        head_.append(ln)
    head_.append(f'; @launch grid=({NB},1,1) block=(512,1,1) lds={K1_LDS}')
    head_ += DOC.split('\n')
    a = Asm()
    a.raw('.amdgcn_target "amdgcn-amd-amdhsa--gfx950"\n.text')
    gen(a)
    return '\n'.join(head_) + '\n' + a.text() + '.section .rodata,"a"\n' + descriptor(NAME, 256)

def final_options():
    opt.prio = True; opt.hsc = ''; opt.earlyh = True; opt.prew = False; opt.pfw = False; opt.g1st = 1; opt.yld = 5
    opt.wb = 1; opt.sleep = 0; opt.drain = False; opt.nt_edges = True; opt.outst = 'sc1 nt'; opt.res_when = 'post'
    opt.mini = True; opt.cap16 = 52

if __name__ == '__main__':
    if 'final' in sys.argv: sys.argv.remove('final'); final_options()
    outp = sys.argv[1]
    for kv in sys.argv[2:]:
        k, val = kv.split('=', 1)
        setattr(opt, k, type(getattr(opt, k))(eval(val)))
    open(outp, 'w').write(build())
```

```python
import sys, struct
from asmlib import Asm

N = 25000; NB = 250; R = 100; CH = 3200
H_OFF = 0; SLOT_OFF = 0x400000; OVF_OFF = 0x800000; W2F_OFF = 0xC00000; WRF_OFF = W2F_OFF + 24576
POS4_OFF = 0xC10000; TS_OFF = 0xE00000
CAP = 15

def f2u(x): return struct.unpack('<I', struct.pack('<f', x))[0]
def fl(x): return '0x%08x' % f2u(x)
def v(i, n=1): return f'v{i}' if n == 1 else f'v[{i}:{i+n-1}]'
def s(i, n=1): return f's{i}' if n == 1 else f's[{i}:{i+n-1}]'

class Opt:
    ts = False
    tr = False
    dbg = False
    nt_edges = False
    nt_out = False
    k1st = ''
    outst = ''
    ntpos = False
    thr = 24.3
    rot = 4
    prio = False
    prio2 = 0
    pk = False
    mini = False
    hd = False
    cap16 = 0
    roll = False
    rollat = 1
    earlyst2 = False
    cprio = 0
    look = False
    earlyst = False
    earlyh = False
    rawpos = False
    spread = False
    pkc = 0
    trmain = True
    tlb = 0
    pf_sv = ''
    vsched = [8,0,0,0,8,0,0,0,8,0,0,0,0]
opt = Opt()

def srd(a, d, base, off, size, mul=None):
    if mul is not None:
        a(f's_mul_i32 s{d+2}, s2, {mul}')
        if off: a(f's_add_u32 s{d+2}, s{d+2}, {off}')
        a(f's_add_u32 s{d}, s{base}, s{d+2}')
        a(f's_addc_u32 s{d+1}, s{base+1}, 0')
    elif off:
        a(f's_add_u32 s{d}, s{base}, {off}')
        a(f's_addc_u32 s{d+1}, s{base+1}, 0')
    else:
        a(f's_mov_b32 s{d}, s{base}')
        a(f's_mov_b32 s{d+1}, s{base+1}')
    a(f's_mov_b32 s{d+2}, {size}')
    a(f's_mov_b32 s{d+3}, 0x20000')

def stamp(a, kern, idx, tmpv=None):
    if not opt.ts: return
    a.settle()
    L = f'Lts_{kern}_{idx}_{stamp.n}'; stamp.n += 1
    a(f's_cmp_lg_u32 s3, {stamp.wave}')
    a.br(f's_cbranch_scc1 {L}')
    a('s_memrealtime s[92:93]')
    a('s_mov_b64 s[94:95], exec')
    a('s_mov_b64 exec, 1')
    a('s_waitcnt lgkmcnt(0)')
    t = stamp.tmp
    a(f'v_mov_b32 v{t}, s92')
    a(f'v_mov_b32 v{t+1}, s93')
    a(f'v_mov_b32 v{t+2}, 0')
    a(f'buffer_store_dwordx2 v[{t}:{t+1}], v{t+2}, s[96:99], 0 offen offset:{idx*8}')
    a('s_mov_b64 exec, s[94:95]')
    a.label(L)
stamp.n = 0; stamp.wave = 0; stamp.tmp = 0

def stamp_init(a, kern):
    if not opt.ts: return
    a(f's_lshl_b32 s98, s2, 7')
    a(f's_add_u32 s98, s98, {TS_OFF + kern*256*128}')
    a('s_add_u32 s96, s24, s98')
    a('s_addc_u32 s97, s25, 0')
    a('s_mov_b32 s98, 128')
    a('s_mov_b32 s99, 0x20000')

def dbg_init(a, kern):
    if not opt.dbg: return
    a('s_load_dwordx2 s[96:97], s[0:1], 72')
    a('s_waitcnt lgkmcnt(0)')
    if kern:
        a('s_sub_u32 s96, s96, 512')
        a('s_subb_u32 s97, s97, 0')
    a('s_mov_b32 s98, 64')
    a('s_mov_b32 s99, 0x20000')

def dbg(a, idx, allwg=False):
    if not opt.dbg: return
    a.settle()
    L = f'Ldbg_{stamp.n}'; stamp.n += 1
    a('s_cmp_lg_u32 s3, 0')
    a.br(f's_cbranch_scc1 {L}')
    if not allwg:
        a('s_cmp_lg_u32 s2, 0')
        a.br(f's_cbranch_scc1 {L}')
    a('s_memrealtime s[92:93]')
    a('s_mov_b64 s[94:95], exec')
    a('s_mov_b64 exec, 1')
    a('s_waitcnt lgkmcnt(0)')
    t = stamp.tmp
    a(f'v_mov_b32 v{t}, s92')
    a(f'v_mov_b32 v{t+2}, 0')
    a(f'buffer_atomic_umax v{t}, v{t+2}, s[96:99], 0 offen offset:{idx*4}')
    a('s_mov_b64 exec, s[94:95]')
    a.label(L)

TR_OFF = 0x1000000
def tr_init(a):
    if not opt.tr: return
    a('s_lshl_b32 s98, s2, 3')
    a('s_add_u32 s98, s98, s3')
    a('s_lshl_b32 s98, s98, 10')
    a(f's_add_u32 s98, s98, {TR_OFF}')
    a('s_add_u32 s96, s24, s98')
    a('s_addc_u32 s97, s25, 0')
    a('s_mov_b32 s98, 1024')
    a('s_mov_b32 s99, 0x20000')
    a('s_mov_b32 s27, 0')
    a('v_mov_b32 v11, 0')

def tr(a, tag):
    if not opt.tr: return
    a('s_memtime s[92:93]')
    a('s_mov_b32 m0, s27')
    a('s_add_u32 s27, s27, 1')
    a('s_waitcnt lgkmcnt(0)')
    a('s_lshl_b32 s92, s92, 6')
    a(f's_or_b32 s92, s92, {tag}')
    a('v_writelane_b32 v11, s92, m0')

def tr_dump(a):
    if not opt.tr: return
    a('v_lshrrev_b32 v12, 2, v1')
    a('buffer_store_dword v11, v12, s[96:99], 0 offen')

def header(a, name):
    a.raw(f'.globl {name}\n.p2align 8\n.type {name},@function\n{name}:')
    a.hist = []

def descriptor(name, vgpr, sgpr=102):
    acc = (vgpr + 3) // 4 * 4
    return f'''.p2align 6
.amdhsa_kernel {name}
  .amdhsa_next_free_vgpr {vgpr}
  .amdhsa_next_free_sgpr {sgpr}
  .amdhsa_accum_offset {acc}
  .amdhsa_group_segment_fixed_size 0
  .amdhsa_kernarg_size 88
  .amdhsa_user_sgpr_count 2
  .amdhsa_user_sgpr_kernarg_segment_ptr 1
  .amdhsa_system_sgpr_workgroup_id_x 1
  .amdhsa_float_denorm_mode_32 3
.end_amdhsa_kernel
'''

def emit_Q(a, dst, q, t):
    a(f'v_lshrrev_b32 v{dst}, 2, v{q}')
    a(f'v_lshlrev_b32 v{dst}, 1, v{dst}')
    a(f'v_and_b32 v{t}, 1, v{q}')
    a(f'v_add_u32 v{dst}, v{dst}, v{t}')
    a(f'v_and_b32 v{t}, 2, v{q}')
    a(f'v_lshl_add_u32 v{dst}, v{t}, 2, v{dst}')

K1_POS = 0; K1_CNT = 150528; K1_OVB = 151808; K1_W1 = 152832; K1_LDS = 161024

def gen_k1(a, name):
    header(a, name)
    stamp.tmp = 60; stamp.wave = 0
    a('s_cmp_ge_u32 s2, %d' % NB)
    a('s_cbranch_scc1 L1_end')
    a('s_load_dwordx8 s[4:11], s[0:1], 0')
    a('s_load_dwordx8 s[12:19], s[0:1], 32')
    a('s_load_dwordx2 s[24:25], s[0:1], 80')
    a('v_lshrrev_b32 v1, 6, v0')
    a('v_and_b32 v2, 63, v0')
    a('v_readfirstlane_b32 s3, v1')
    a('v_lshlrev_b32 v3, 4, v2')
    a('v_mov_b32 v40, 0')
    a('s_cmp_ge_u32 s3, 5')
    a.br('s_cbranch_scc1 L1_nozero')
    a('v_lshlrev_b32 v41, 2, v0')
    a(f'v_add_u32 v41, {K1_CNT}, v41')
    a('ds_write_b32 v41, v40')
    a.label('L1_nozero')
    a('s_waitcnt lgkmcnt(0)')
    stamp_init(a, 0)
    stamp(a, 0, 0)
    dbg_init(a, 0)
    dbg(a, 0)
    dbg(a, 1, True)
    a('s_cmp_ge_u32 s3, 13')
    a.br('s_cbranch_scc1 L1_hpath')
    srd(a, 28, 8, 0, CH*4, mul=CH*4)
    srd(a, 32, 10, 0, CH*4, mul=CH*4)
    srd(a, 36, 6, 0, N*6)
    a('v_lshlrev_b32 v1, 4, v0')
    nt = ' nt' if opt.nt_edges else ''
    a(f'buffer_load_dwordx4 v[4:7], v1, s[28:31], 0 offen{nt}')
    a(f'buffer_load_dwordx4 v[8:11], v1, s[32:35], 0 offen{nt}')
    a('s_lshr_b32 s40, s2, 3')
    a(f's_mul_i32 s40, s40, {opt.rot}')
    a('s_add_u32 s40, s40, s3')
    for i in range(12):
        if i == 11:
            a('s_cmp_ge_u32 s3, 4')
            a.br('s_cbranch_scc1 L1_dmadone')
        a('s_sub_u32 s41, s40, 147')
        a('s_cmp_ge_u32 s40, 147')
        a('s_cselect_b32 s40, s41, s40')
        a('s_lshl_b32 s41, s40, 10')
        a('s_mov_b32 m0, s41')
        a('s_add_u32 s40, s40, 13')
        a('buffer_load_dwordx4 v3, s[36:39], s41 offen lds')
    a.label('L1_dmadone')
    a('s_mov_b64 s[42:43], -1')
    a('s_cmp_eq_u32 s3, 12')
    a('s_cselect_b32 s43, 0, s43')
    a(f's_mov_b32 s44, {fl(opt.thr)}')
    a(f's_mov_b32 s45, -100')
    a(f's_mov_b32 s46, {K1_CNT}')
    a('v_mov_b32 v59, 0xffff0000')
    stamp(a, 0, 1)
    a('s_waitcnt vmcnt(0) lgkmcnt(0)')
    a('s_barrier')
    stamp(a, 0, 2)
    dbg(a, 2)
    dbg(a, 3, True)
    for i in range(4):
        a(f'v_mul_u32_u24 v{12+i}, 6, v{4+i}')
        a(f'v_mul_u32_u24 v{16+i}, 6, v{8+i}')
        a(f'v_and_b32 v36, -4, v{12+i}')
        a(f'v_and_b32 v37, -4, v{16+i}')
        a(f'ds_read2_b32 v[{20+2*i}:{21+2*i}], v36 offset1:1')
        a(f'ds_read2_b32 v[{28+2*i}:{29+2*i}], v37 offset1:1')
    for i in range(4):
        a(f'v_mul_u32_u24 v36, 5243, v{8+i}')
        a(f'v_lshrrev_b32 v36, 19, v36')
        a(f'v_mad_i32_i24 v37, v36, s45, v{8+i}')
        a(f'v_lshl_or_b32 v{48+i}, v{4+i}, 9, v37')
        a(f'v_lshlrev_b32 v{44+i}, 2, v36')
        a(f'v_add_u32 v{52+i}, {K1_CNT}, v{44+i}')
    a('v_mov_b32 v56, 1')
    for i in range(4):
        p, q = 20+2*i, 28+2*i
        a(f's_waitcnt lgkmcnt({6-2*i})')
        a(f'v_alignbyte_b32 v36, v{p+1}, v{p}, v{12+i}')
        a(f'v_alignbyte_b32 v37, v{p+1}, v{p+1}, v{12+i}')
        a(f'v_alignbyte_b32 v38, v{q+1}, v{q}, v{16+i}')
        a(f'v_alignbyte_b32 v39, v{q+1}, v{q+1}, v{16+i}')
        a(f'v_lshlrev_b32 v{p}, 16, v36')
        a(f'v_lshlrev_b32 v{q}, 16, v38')
        a(f'v_and_b32 v36, v59, v36')
        a(f'v_and_b32 v38, v59, v38')
        a(f'v_lshlrev_b32 v37, 16, v37')
        a(f'v_lshlrev_b32 v39, 16, v39')
        a(f'v_sub_f32 v{p}, v{p}, v{q}')
        a(f'v_sub_f32 v36, v36, v38')
        a(f'v_sub_f32 v37, v37, v39')
        a(f'v_mul_f32 v{p}, v{p}, v{p}')
        a(f'v_fmac_f32 v{p}, v36, v36')
        a(f'v_fmac_f32 v{p}, v37, v37')
        a(f'v_cmp_ngt_f32 s[{64+2*i}:{65+2*i}], v{p}, s44')
        a(f's_and_b64 s[{64+2*i}:{65+2*i}], s[{64+2*i}:{65+2*i}], s[42:43]')
    for i in range(4):
        a(f's_mov_b64 exec, s[{64+2*i}:{65+2*i}]')
        a(f'ds_add_rtn_u32 v{12+i}, v{52+i}, v56')
    a('s_mov_b64 exec, -1')
    a('s_waitcnt lgkmcnt(0)')
    a('s_barrier')
    stamp(a, 0, 3)
    for i in range(4):
        a(f'v_cmp_gt_u32 s[{72+2*i}:{73+2*i}], {CAP}, v{12+i}')
        a(f'v_lshlrev_b32 v{16+i}, 4, v{44+i}')
        a(f'v_lshl_add_u32 v{16+i}, v{12+i}, 2, v{16+i}')
    for i in range(4):
        a(f's_and_b64 exec, s[{72+2*i}:{73+2*i}], s[{64+2*i}:{65+2*i}]')
        a(f'ds_write_b32 v{16+i}, v{48+i} offset:4')
        a(f's_andn2_b64 s[{64+2*i}:{65+2*i}], s[{64+2*i}:{65+2*i}], s[{72+2*i}:{73+2*i}]')
    a('s_mov_b64 exec, -1')
    a('s_cmp_ge_u32 s3, 4')
    a.br('s_cbranch_scc1 L1_nohdr')
    a('v_lshlrev_b32 v20, 2, v0')
    a(f'v_add_u32 v21, {K1_CNT}, v20')
    a('ds_read_b32 v22, v21')
    a('v_mov_b32 v23, 0')
    a('v_lshlrev_b32 v24, 6, v0')
    a('s_waitcnt lgkmcnt(0)')
    a(f'v_cmp_lt_u32 vcc, {CAP}, v22')
    a('s_and_saveexec_b64 s[80:81], vcc')
    a.br('s_cbranch_execz L1_hdr_noovf')
    a(f'v_subrev_u32 v25, {CAP}, v22')
    a(f'v_mov_b32 v26, {K1_CNT + 1024}')
    a('ds_add_rtn_u32 v23, v26, v25')
    a(f'v_add_u32 v21, {K1_OVB}, v20')
    a('s_waitcnt lgkmcnt(0)')
    a('ds_write_b32 v21, v23')
    a.label('L1_hdr_noovf')
    a('s_mov_b64 exec, s[80:81]')
    a('v_lshl_or_b32 v22, v23, 16, v22')
    a('ds_write_b32 v24, v22')
    a.label('L1_nohdr')
    a('s_waitcnt lgkmcnt(0)')
    a('s_barrier')
    a('s_or_b64 s[72:73], s[64:65], s[66:67]')
    a('s_or_b64 s[74:75], s[68:69], s[70:71]')
    a('s_or_b64 s[72:73], s[72:73], s[74:75]')
    a.br('s_cbranch_scc0 L1_dump')
    srd(a, 28, 24, OVF_OFF, CH*4, mul=CH*4)
    for i in range(4):
        a(f's_mov_b64 exec, s[{64+2*i}:{65+2*i}]')
        a.br(f's_cbranch_execz L1_ovf{i}')
        a(f'v_add_u32 v20, {K1_OVB}, v{44+i}')
        a('ds_read_b32 v21, v20')
        a('s_waitcnt lgkmcnt(0)')
        a(f'v_add_u32 v21, v21, v{12+i}')
        a(f'v_subrev_u32 v21, {CAP}, v21')
        a('v_lshlrev_b32 v21, 2, v21')
        a(f'buffer_store_dword v{48+i}, v21, s[28:31], 0 offen')
        a.label(f'L1_ovf{i}')
    a('s_mov_b64 exec, -1')
    a.br('s_branch L1_dump')

    a.label('L1_hpath')
    if opt.tlb:
        a('s_load_dwordx2 s[20:21], s[0:1], 64')
        a(f'v_lshlrev_b32 v100, {opt.tlb}, v2')
        srd(a, 48, 24, 0, 0xE00000)
        srd(a, 52, 4, 0, N*512)
        a('buffer_load_dword v101, v100, s[48:51], 0 offen')
        a('buffer_load_dword v102, v100, s[52:55], 0 offen')
        a('s_waitcnt lgkmcnt(0)')
        srd(a, 56, 20, 0, N*512)
        a('buffer_load_dword v103, v100, s[56:59], 0 offen')
    a('s_sub_u32 s40, s3, 13')
    srd(a, 28, 14, 0, 8192)
    srd(a, 32, 4, 0, R*512, mul=R*512)
    srd(a, 36, 24, H_OFF, R*128, mul=R*128)
    for i in range(8):
        a(f's_mov_b32 m0, {K1_W1 + i*1024}')
        a(f's_mov_b32 s41, {i*1024}')
        a('buffer_load_dwordx4 v3, s[28:31], s41 offen lds')
    a('v_and_b32 v4, 15, v2')
    a('v_lshrrev_b32 v5, 4, v2')
    a('s_lshl_b32 s41, s40, 4')
    a('v_add_u32 v6, s41, v4')
    a('v_lshlrev_b32 v7, 4, v5')
    a('v_lshl_add_u32 v8, v6, 9, v7')
    a('v_lshl_add_u32 v9, v6, 7, v7')
    a('buffer_load_dwordx4 v[12:15], v8, s[32:35], 0 offen')
    a('buffer_load_dwordx4 v[16:19], v8, s[32:35], 0 offen offset:64')
    a(f'v_add_u32 v8, {48*512}, v8')
    a('buffer_load_dwordx4 v[20:23], v8, s[32:35], 0 offen')
    a('buffer_load_dwordx4 v[24:27], v8, s[32:35], 0 offen offset:64')
    a(f'v_add_u32 v8, {48*512}, v8')
    a('buffer_load_dwordx4 v[28:31], v8, s[32:35], 0 offen')
    a('buffer_load_dwordx4 v[32:35], v8, s[32:35], 0 offen offset:64')
    a('v_lshrrev_b32 v10, 2, v4')
    a('v_lshl_add_u32 v10, v5, 3, v10')
    a('v_and_b32 v11, 3, v4')
    a('v_lshlrev_b32 v11, 3, v11')
    a('v_lshl_add_u32 v10, v10, 7, v11')
    a(f'v_add_u32 v10, {K1_W1}, v10')
    a('s_waitcnt vmcnt(6)')
    FR = 64
    for ht in range(4):
        for ks in range(2):
            r = FR + (ht*2+ks)*4
            for hf in range(2):
                a(f'ds_read_b64_tr_b16 v[{r+2*hf}:{r+2*hf+1}], v10 offset:{ks*4096 + ht*32 + hf*512}')
    a('s_waitcnt lgkmcnt(0)')
    D = 96; O = 112
    for t in range(3):
        if t == 2:
            a('s_cmp_lg_u32 s40, 0')
            a.br('s_cbranch_scc1 L1_hdone')
        S = 12 + 8*t
        a('s_waitcnt vmcnt(4)')
        for ht in range(4):
            a(f'v_mfma_f32_16x16x32_bf16 v[{D+4*ht}:{D+4*ht+3}], v[{FR+ht*8}:{FR+ht*8+3}], v[{S}:{S+3}], 0')
        for ht in range(4):
            a(f'v_mfma_f32_16x16x32_bf16 v[{D+4*ht}:{D+4*ht+3}], v[{FR+ht*8+4}:{FR+ht*8+7}], v[{S+4}:{S+7}], v[{D+4*ht}:{D+4*ht+3}]')
        for i in range(16):
            a(f'v_cvt_pk_bf16_f32 v{D+i}, 0, v{D+i}')
        T = 120
        for grp in range(4):
            for i in range(4):
                a(f'v_mul_f32 v{T+i}, {fl(-1.4426950408889634)}, v{D+4*grp+i}')
            for i in range(4):
                a(f'v_exp_f32 v{T+i}, v{T+i}')
            for i in range(4):
                a(f'v_add_f32 v{T+i}, 1.0, v{T+i}')
            for i in range(4):
                a(f'v_rcp_f32 v{T+i}, v{T+i}')
            for i in range(4):
                a(f'v_mul_f32 v{T+i}, v{T+i}, v{D+4*grp+i}')
            a(f'v_cvt_pk_bf16_f32 v{O+2*grp}, v{T}, v{T+1}')
            a(f'v_cvt_pk_bf16_f32 v{O+2*grp+1}, v{T+2}, v{T+3}')
        a(f'buffer_store_dwordx4 v[{O}:{O+3}], v9, s[36:39], 0 offen ' + opt.k1st)
        a(f'buffer_store_dwordx4 v[{O+4}:{O+7}], v9, s[36:39], 0 offen offset:64 ' + opt.k1st)
        a(f'v_add_u32 v9, {48*128}, v9')
    a.label('L1_hdone')
    a('s_cmp_lg_u32 s40, 2')
    a.br('s_cbranch_scc1 L1_nofrag')
    a('s_cmp_ge_u32 s2, 27')
    a.br('s_cbranch_scc1 L1_nofrag')
    emit_Q(a, 12, 4, 13)
    a('v_lshlrev_b32 v12, 3, v12')
    srd(a, 32, 24, W2F_OFF, 24576 + 1536)
    a('s_cmp_ge_u32 s2, 24')
    a.br('s_cbranch_scc1 L1_wrfrag')
    srd(a, 28, 16, 0, 64*192*2)
    a('s_lshr_b32 s41, s2, 3')
    a('s_lshl_b32 s41, s41, 7')
    a('s_bfe_u32 s47, s2, 0x20001')
    a('s_lshl_b32 s47, s47, 1')
    a('s_add_u32 s41, s41, s47')
    a('s_and_b32 s47, s2, 1')
    a(f's_mul_i32 s47, s47, {32*384}')
    a('s_add_u32 s41, s41, s47')
    a(f'v_mul_u32_u24 v13, {4*384}, v5')
    a('v_add3_u32 v12, v12, v13, s41')
    a(f'v_add_u32 v13, {16*384}, v12')
    for jj in range(8):
        a(f'buffer_load_ushort v{16+jj}, v{12 if jj < 4 else 13}, s[28:31], 0 offen offset:{(jj&3)*384}')
    a('s_lshl_b32 s41, s2, 10')
    a('v_add_u32 v14, s41, v3')
    a('s_waitcnt vmcnt(0)')
    for i in range(4):
        a(f'v_lshl_or_b32 v{16+i}, v{17+2*i}, 16, v{16+2*i}')
    a('buffer_store_dwordx4 v[16:19], v14, s[32:35], 0 offen')
    a.br('s_branch L1_nofrag')
    a.label('L1_wrfrag')
    srd(a, 28, 18, 0, 4*192*2)
    a('s_sub_u32 s41, s2, 24')
    a('s_lshl_b32 s47, s41, 7')
    a('v_lshlrev_b32 v13, 1, v5')
    a('v_add3_u32 v12, v12, v13, s47')
    for k in range(4):
        a(f'buffer_load_ushort v{16+k}, v12, s[28:31], 0 offen offset:{k*384}')
    a('s_lshl_b32 s41, s41, 9')
    a('s_add_u32 s41, s41, 24576')
    a('v_lshlrev_b32 v14, 3, v2')
    a('v_add_u32 v14, s41, v14')
    a('s_waitcnt vmcnt(0)')
    for i in range(2):
        a(f'v_lshl_or_b32 v{16+i}, v{17+2*i}, 16, v{16+2*i}')
    a('buffer_store_dwordx2 v[16:17], v14, s[32:35], 0 offen')
    a.label('L1_nofrag')
    srd(a, 28, 24, POS4_OFF, R*8, mul=R*8)
    a('s_lshl_b32 s41, s40, 6')
    a('v_add_u32 v12, s41, v2')
    a(f's_mul_i32 s41, s2, {R}')
    a('v_add_u32 v13, s41, v12')
    a('v_mul_u32_u24 v13, 6, v13')
    a('v_and_b32 v14, -4, v13')
    a('v_lshlrev_b32 v12, 3, v12')
    a('s_waitcnt lgkmcnt(0)')
    a('s_barrier')
    a('ds_read2_b32 v[16:17], v14 offset1:1')
    a('s_waitcnt lgkmcnt(0)')
    a('v_alignbyte_b32 v18, v17, v16, v13')
    a('v_alignbyte_b32 v19, v17, v17, v13')
    a('v_and_b32 v19, 0xffff, v19')
    a('buffer_store_dwordx2 v[18:19], v12, s[28:31], 0 offen')
    if opt.pf_sv:
        srd(a, 32, 4, 0, R*512, mul=R*512)
        a('s_lshl_b32 s41, s40, 10')
        a('v_add_u32 v20, s41, v3')
        for i in range(17):
            a(f'buffer_load_dwordx4 v[100:103], v20, s[32:35], 0 offen {opt.pf_sv if opt.pf_sv != "plain" else ""}')
            a('v_add_u32 v20, 3072, v20')
    a('s_barrier')
    a('s_barrier')
    a.label('L1_dump')
    stamp(a, 0, 4)
    srd(a, 28, 24, SLOT_OFF, NB*16384)
    a('v_lshlrev_b32 v4, 4, v0')
    a('ds_read_b128 v[8:11], v4')
    a('v_lshrrev_b32 v5, 2, v0')
    a('v_lshlrev_b32 v5, 14, v5')
    a('v_and_b32 v6, 3, v0')
    a('v_lshl_add_u32 v5, v6, 4, v5')
    a('s_lshl_b32 s41, s2, 6')
    a('v_add_u32 v5, s41, v5')
    a('s_waitcnt lgkmcnt(0)')
    a('buffer_store_dwordx4 v[8:11], v5, s[28:31], 0 offen ' + opt.k1st)
    if opt.ts or opt.dbg:
        a('s_waitcnt vmcnt(0)')
        stamp(a, 0, 5)
        dbg(a, 4)
        dbg(a, 5, True)
    a.label('L1_end')
    a('s_endpgm')

L_W2F = 0; L_NCNT = 24576; L_START = L_NCNT + 512; L_DPOS = 25600; L_FLAG = 27648; L_STG = 27680
STG = 768
L_SORT = L_STG + 8*STG; L_RES = 50176; K2_LDS = L_RES + 116*512
assert L_SORT + 4*(4000+64) <= L_RES
S_VOFF, S_DL, S_R = 0, 256, 384

vLANE16, vSTGW, vSTGH, vSTGR, vSTGS, vLPV, vLPH, vLPR, vQQ, vMHI, vTR, vPACK, vNX64, vHA, vNQ, vRES, vE, vNX32, vM = range(1, 20)
PS = 20
RBF = 22
WR = 24
HOFF = 30
SEL = 32; SR = 36
V = 48
H = 96
ACC = 112
D3 = 176
D2 = 208
WS = 224
VOFF = 240
TP = 248
vRL = 254
vSTLO, vSTHI = ACC, ACC + 1
K2_VGPR = 256
sSV, sH, sP4, sOUT, sRES, sSLOT, sW2F, sOVF = 28, 32, 36, 40, 44, 48, 52, 80
sF = 56
sNC, sC64, sC32, sN0, sE0, sE1, sMORE, sROUND, sT0, sT1, sT2, sNN = 60, 61, 62, 63, 84, 85, 87, 88, 89, 90, 91, 26
sEXQ = 22
sXN0, sXNN, sXE0, sXE1, sXCONT, sLAST, sSTG, sSD, sRB = 68, 69, 70, 71, 72, 73, 6, 7, 8

def chain_step(a, tab):
    a(f'v_readlane_b32 s{sT0}, v{tab}, s{sNC}')
    a(f's_lshr_b32 s{sT1}, s{sNC}, 2')
    a(f's_and_b32 s{sT1}, s{sT1}, 16')
    a(f's_lshr_b32 s{sT0}, s{sT0}, s{sT1}')
    a(f's_and_b32 s{sNC}, s{sT0}, 0xffff')

def chain_start(a, dst):
    a(f'v_readlane_b32 s{sT0}, v{vPACK}, s{sNC}')
    a(f's_lshr_b32 s{sT1}, s{sNC}, 2')
    a(f's_and_b32 s{sT1}, s{sT1}, 16')
    a(f's_lshr_b32 s{sT0}, s{sT0}, s{sT1}')
    a(f's_and_b32 s{dst}, s{sT0}, 0xffff')

loop_n = [0]
def chain_loop(a, tab, cnt):
    n = loop_n[0]; loop_n[0] += 1
    a(f's_cmp_eq_u32 s{cnt}, 0')
    a(f's_cbranch_scc1 L2_walkdone{n}')
    a.label(f'L2_walk{n}', settle=False)
    chain_step(a, tab)
    a(f's_sub_u32 s{cnt}, s{cnt}, 1')
    a(f's_cmp_lg_u32 s{cnt}, 0')
    a(f's_cbranch_scc1 L2_walk{n}')
    a.label(f'L2_walkdone{n}', settle=False)

def Rn(d, x): return f'v_cvt_pk_bf16_f32 v{d}, 0, v{x}'

def weave(main, fill):
    out = []; n = len(main); m = len(fill); k = 0
    for i, x in enumerate(main):
        out.append(x)
        want = (i + 1) * m // n
        out += fill[k:want]; k = want
    return out + fill[k:]

def emit(a, lst):
    for x in lst: a(x)

def next_entry_read(t):
    if opt.mini:
        return [f's_lshl_b32 s{sT0}, s{sXE0}, 2',
                f'v_lshrrev_b32 v{t+1}, 2, v{vLANE16}',
                f'v_add_u32 v{t}, s{sT0}, v{t+1}',
                f'ds_read_b32 v{vE}, v{t} offset:{L_SORT}']
    return [f's_lshl_b32 s{sT0}, s{sXE0}, 2',
            f's_add_u32 s{sT0}, s{sT0}, s{sSD}',
            f'v_add_u32 v{t}, s{sT0}, v{vSTGW}',
            f'ds_read_b32 v{vE}, v{t}']
def next_mask(t):
    if opt.mini:
        return [f's_sub_u32 s{sT0}, s{sXE1}, s{sXE0}',
                f's_lshl_b32 s{sT0}, s{sT0}, 2',
                f'v_subrev_u32 v{t}, s{sT0}, v{TP+1}',
                f'v_ashrrev_i32 v{t}, 31, v{t}']
    return [f's_sub_u32 s{sT0}, s{sXE1}, s{sXE0}',
            f's_lshl_b32 s{sT0}, s{sT0}, 2',
            f's_add_u32 s{sT0}, s{sT0}, s{sSTG}',
            f'v_subrev_u32 v{t}, s{sT0}, v{vSTGW}',
            f'v_ashrrev_i32 v{t}, 31, v{t}']
def next_stage(t, u):
    return ([f'v_and_b32 v{vE}, 0x00fffe7f, v{vE}'] if getattr(opt, 'strip', False) else []) + [
            f'v_bitop3_b32 v{vE}, v{vE}, v{t}, v{t} bitop3:0xf3',
            f'v_and_b32 v{t}, 0x7ffffe00, v{vE}',
            f'v_lshrrev_b32 v{u}, {9 if opt.rawpos else 6}, v{vE}',
            f'ds_write_b32 v{vSTGW}, v{t}',
            f'v_mul_u32_u24 v{u}, 6, v{u}' if opt.rawpos else f'v_and_b32 v{u}, -8, v{u}']
def off_reads(u):
    return [f'ds_read_b32 v{HOFF}, v{vHA} offset:{128*u}',
            f'ds_read_b32 v{HOFF+1}, v{vHA} offset:{128*u + 16}',
            f'ds_read_b128 v[{VOFF}:{VOFF+3}], v{vSTGR} offset:{128*u}',
            f'ds_read_b128 v[{VOFF+4}:{VOFF+7}], v{vSTGR} offset:{128*u + 16}']
L_HB = 101376; sHB = 16
HOF2 = 254
def hd_reads():
    return [f'ds_read_b32 v{HOF2}, v{vHA} offset:128', f'ds_read_b32 v{HOF2+1}, v{vHA} offset:144']
def hd_adds():
    return ([f'v_lshrrev_b32 v{HOF2+et}, 2, v{HOF2+et}' for et in range(2)] +
            [f'v_add_u32 v{HOF2+et}, v{HOF2+et}, v{vLPH}' for et in range(2)])
def hd_loads():
    o = []
    for et in range(2):
        for ks in range(2):
            o += [f's_add_u32 m0, s{sHB}, {(et*2+ks)*1024 - ks*64}', 's_nop 0',
                  f'buffer_load_dwordx4 v{HOF2+et}, s[{sH}:{sH+3}], 0 offen offset:{ks*64} lds']
    return o
def hd_fetch(t):
    return ([f'v_add_u32 v{t}, s{sHB}, v{vLANE16}'] +
            [f'ds_read_b128 v[{H+4*i}:{H+4*i+3}], v{t} offset:{1024*i}' for i in range(4)])
def off_adds():
    return ([f'v_lshrrev_b32 v{HOFF+et}, 2, v{HOFF+et}' for et in range(2)] +
            [f'v_add_u32 v{HOFF+et}, v{HOFF+et}, v{vLPH}' for et in range(2)] +
            [f'v_add_u32 v{VOFF+jj}, v{VOFF+jj}, v{vLPV}' for jj in range(8)])
def pos_load(u): return [f'buffer_load_dwordx2 v[{PS}:{PS+1}], v{u}, s[{sP4}:{sP4+3}], 0 offen']
def h_loads():
    return [f'buffer_load_dwordx4 v[{H+et*8+ks*4}:{H+et*8+ks*4+3}], v{HOFF+et}, s[{sH}:{sH+3}], 0 offen offset:{ks*64}'
            for et in range(2) for ks in range(2)]
def v_loads(j):
    return [f'buffer_load_dwordx2 v[{V+j*16+jj*2}:{V+j*16+jj*2+1}], v{VOFF+jj}, s[{sSV}:{sSV+3}], 0 offen offset:{128*(j+1)}'
            for jj in range(4*NET())]
def out_stores(addr):
    return [f'buffer_store_dwordx4 v[{D3+(c*2+hh)*4}:{D3+(c*2+hh)*4+3}], v{addr}, s[{sOUT}:{sOUT+3}], 0 offen offset:{c*128+hh*64} {opt.outst}'
            for c in range(4) for hh in range(2)]
def wread(step):
    p = [0, 2, 1][step // 4]; ct = step % 4
    return [f'ds_read_b128 v[{WS+(step%2)*8+ks*4}:{WS+(step%2)*8+ks*4+3}], v{vLANE16} offset:{L_W2F + ((p*4+ct)*2+ks)*1024}' for ks in range(2)]
MINI = [False]
def mf_seg(acc, A, B):
    if MINI[0]: return f'v_mfma_f32_16x16x16bf16_1k v[{acc}:{acc+3}], v[{A}:{A+1}], v[{B}:{B+1}], v[{acc}:{acc+3}]'
    return f'v_mfma_f32_16x16x32_bf16 v[{acc}:{acc+3}], v[{A}:{A+3}], v[{B}:{B+3}], v[{acc}:{acc+3}]'
def NET(): return 1 if MINI[0] else 2
def wf(p, u):
    if MINI[0]: return [f'v_mfma_f32_16x16x4bf16_1k v[{D3}:{D3+15}], v[{RBF}:{RBF+1}], v[{WR+2*p}:{WR+2*p+1}], 0 cbsz:2 abid:0']
    return [f'v_mfma_f32_16x16x4bf16_1k v[{D3+16*et}:{D3+16*et+15}], v[{RBF}:{RBF+1}], v[{WR+2*p}:{WR+2*p+1}], 0 cbsz:2 abid:{2*u+et}' for et in range(2)]

sFI = 0
def T(a, n):
    if opt.trmain: tr(a, n)

def l2_mfma(step):
    d = D2 + (step % 2)*8; w = WS + (step % 2)*8; o = []
    for ks in range(2):
        for et in range(NET()):
            c = '0' if ks == 0 else f'v[{d+4*et}:{d+4*et+3}]'
            o.append(f'v_mfma_f32_16x16x32_bf16 v[{d+4*et}:{d+4*et+3}], v[{H+et*8+ks*4}:{H+et*8+ks*4+3}], v[{w+4*ks}:{w+4*ks+3}], {c}')
    return o
def l2_mul(step):
    part = step // 4; ct = step % 4; d = D2 + (step % 2)*8; o = []
    for et in range(NET()):
        for r in range(4):
            m = D3 + et*16 + ct*4 + r
            o.append(f'v_mul_f32 v{m if part == 2 else d+4*et+r}, v{d+4*et+r}, v{m}')
    if opt.pkc:
        o = []
        for et in range(2):
            for r in (0, 2):
                m = D3 + et*16 + ct*4 + r; x = d+4*et+r; y = m if part == 2 else x
                o.append(f'v_pk_mul_f32 v[{y}:{y+1}], v[{x}:{x+1}], v[{m}:{m+1}]')
    return o
def pbuf(step): return (TP + 4*(step % 2)) if opt.spread else D2 + (step % 2)*8
def l2_cvt(step):
    if step // 4 == 2: return []
    d = D2 + (step % 2)*8; p = pbuf(step)
    return [f'v_cvt_pk_bf16_f32 v{p+i}, v{d+2*i}, v{d+2*i+1}' for i in range(2*NET())]
def l2_seg(step):
    part = step // 4; ct = step % 4; d = pbuf(step)
    if part == 2: return []
    if part == 0:
        acc = ACC + ct*4
        return [mf_seg(acc, d, SEL)]
    return [mf_seg(ACC+(1+j)*16+ct*4, d, SR+4*j) for j in range(3)]
def sel_reads(u):
    if MINI[0]:
        return ([f'ds_read_b64 v[{SEL}:{SEL+1}], v{vSTGS} offset:{S_DL}'] +
                [f'ds_read_b64 v[{SR+4*j}:{SR+4*j+1}], v{vSTGS} offset:{S_R + 128*j}' for j in range(3)])
    return ([f'ds_read_b128 v[{SEL}:{SEL+3}], v{vSTGS} offset:{S_DL + 64*u}'] +
            [f'ds_read_b128 v[{SR+4*j}:{SR+4*j+3}], v{vSTGS} offset:{S_R + 128*j + 64*u}' for j in range(3)])

def head(a, tag):
    first = tag in 'AM'; u = 1 if tag == 'C' else 0
    MINI[0] = tag == 'M'
    NS = 2*NET()
    if u == 0: a.label(f'L2_head_{tag}')
    vl = v_loads(0) + v_loads(1) + v_loads(2)
    assert sum(opt.vsched) == 24
    def vissue(i):
        n = opt.vsched[i] if not opt.roll else (8 if i == opt.rollat else 0)
        if MINI[0]: n //= 2
        emit(a, vl[:n]); del vl[:n]
    if u == 0:
        X = D2
        DP = TP
        a(f'v_and_b32 v{X}, 127, v{vE}')
        a(f'v_lshlrev_b32 v{X+1}, 4, v{X}')
        a(f'ds_read_b128 v[{DP}:{DP+3}], v{X+1} offset:{L_DPOS}')
        a(f'ds_write_b16 v{vSTGH}, v{X} offset:{S_DL}')
        if first:
            a(f's_lshl_b32 s{sT0}, s{sN0}, 9')
            a(f'v_add_u32 v{vRES}, s{sT0}, v{vLPR}')
            a(f's_mul_i32 s{sT0}, s{sN0}, 0x10001')
            a(f'v_add_u32 v{vNQ}, s{sT0}, v{vQQ}')
            a(f's_bfm_b32 s{sT1}, s{sNN}, 0')
            a(f's_lshl_b32 s{sT2}, s{sT1}, 16')
            a(f's_or_b32 s{sEXQ}, s{sT1}, s{sT2}')
            a(f's_mov_b32 s{sEXQ+1}, s{sEXQ}')
        else:
            a(f's_lshl_b32 s{sT0}, s{sN0}, 9')
            a(f'v_add_u32 v{vRES}, s{sT0}, v{vLPR}')
        if first:
            a(f'v_and_b32 v{X+3}, 0xff, v{vNQ}')
            a(f'v_and_b32 v{X+4}, 7, v{vNQ}')
            a(f'v_lshlrev_b32 v{X+4}, 5, v{X+4}')
            a(f'v_xor_b32 v{X+4}, v{X+4}, v{vLPH}')
            a(f'v_lshl_add_u32 v{X+3}, v{X+3}, 9, v{X+4}')
            a(f'v_add_u32 v{X+3}, {L_RES}, v{X+3}')
            for i in range(8):
                if i: a(f'v_xor_b32 v{X+4+(i&1)}, {i*64}, v{X+3}')
                a(f'ds_read_b128 v[{D3+4*i}:{D3+4*i+3}], v{X+3 if i == 0 else X+4+(i&1)}')
        a(f'v_ashrrev_i32 v{vM}, 31, v{vE}')
        T(a, 9)
        if tag == 'A' and sFI:
            a(f's_cmp_eq_u32 s{sFI}, 0')
            a('s_cbranch_scc1 L2_notfirst1')
            a('s_waitcnt vmcnt(%d)' % (8 if opt.hd else 4))
            a.lines.append('L2_notfirst1:')
        a('s_waitcnt vmcnt(%d)' % (28 if opt.roll else (16 if opt.hd else 12)))
        T(a, 10)
        rx, ry, rz, t0, t1, t2, dd, inv = range(X, X+8)
        g0 = X + 8
        if opt.rawpos:
            a(f'v_alignbyte_b32 v{PS}, v{PS+1}, v{PS}, v{TP+5}')
            a(f'v_alignbyte_b32 v{PS+1}, v{PS+1}, v{PS+1}, v{TP+5}')
        a(f'v_lshlrev_b32 v{rx}, 16, v{PS}')
        a(f'v_and_b32 v{ry}, v{vMHI}, v{PS}')
        a(f'v_lshlrev_b32 v{rz}, 16, v{PS+1}')
        a(f's_waitcnt lgkmcnt({9 if first else 1})')
        for i in range(3): a(f'v_sub_f32 v{rx+i}, v{rx+i}, v{DP+i}')
        sc = []
        sc += [Rn(rx+i, rx+i) for i in range(3)]
        sc += [f'v_mul_f32 v{t0+i}, v{rx+i}, v{rx+i}' for i in range(3)]
        sc += [Rn(t0+i, t0+i) for i in range(3)]
        sc += [f'v_add_f32 v{t0}, v{t0}, v{t1}', f'v_add_f32 v{t0}, v{t0}, v{t2}', Rn(t0, t0),
               f'v_add_f32 v{t0}, {fl(1e-8)}, v{t0}', Rn(t0, t0), f'v_sqrt_f32 v{t0}, v{t0}', Rn(dd, t0), f'v_rcp_f32 v{inv}, v{dd}']
        sc += [f'v_mul_f32 v{g0+4}, {fl(3.141592653589793)}, v{dd}']
        sc += [f'v_mul_f32 v{g0+k}, s{sF+k}, v{dd}' for k in range(4)]
        sc += [Rn(g0+4, g0+4)] + [f'v_mul_f32 v{g0+4}, {fl(0.2)}, v{g0+4}'] + [Rn(g0+k, g0+k) for k in range(2)]
        sc += [Rn(g0+4, g0+4)] + [Rn(g0+k, g0+k) for k in range(2, 4)]
        sc += [f'v_mul_f32 v{g0+4}, 0.15915494, v{g0+4}']
        sc += [f'v_mul_f32 v{rx+i}, v{rx+i}, v{inv}' for i in range(3)]
        sc += [f'v_cos_f32 v{g0+4}, v{g0+4}']
        sc += [f'v_mul_f32 v{g0+k}, 0.15915494, v{g0+k}' for k in range(4)]
        sc += [f'v_cvt_pk_bf16_f32 v{t0}, v{rx}, v{ry}', f'v_cvt_pk_bf16_f32 v{t1}, v{rz}, v{rz}', Rn(g0+4, g0+4)]
        sc += [f'v_sin_f32 v{g0+k}, v{g0+k}' for k in range(2)]
        sc += [f'v_bitop3_b32 v{t0}, v{t0}, v{vM}, v{vM} bitop3:0x30', f'v_bitop3_b32 v{t1}, v{t1}, v{vM}, v{vM} bitop3:0x30',
               f'v_add_f32 v{g0+4}, 1.0, v{g0+4}']
        sc += [f'ds_write_b16 v{vSTGH}, v{t0} offset:{S_R}', f'ds_write_b16_d16_hi v{vSTGH}, v{t0} offset:{S_R+128}', f'ds_write_b16 v{vSTGH}, v{t1} offset:{S_R+256}']
        sc += sel_reads(0)
        sc += [f'v_sin_f32 v{g0+k}, v{g0+k}' for k in range(2, 4)]
        sc += [Rn(g0+4, g0+4), f'v_mul_f32 v{inv}, 0.5, v{inv}', f'v_mul_f32 v{inv}, v{inv}, v{g0+4}']
        sc += [f'v_mul_f32 v{g0+k}, v{g0+k}, v{inv}' for k in range(4)]
        sc += [f'v_cvt_pk_bf16_f32 v{RBF}, v{g0}, v{g0+1}', f'v_cvt_pk_bf16_f32 v{RBF+1}, v{g0+2}, v{g0+3}',
               f'v_bitop3_b32 v{RBF}, v{RBF}, v{vM}, v{vM} bitop3:0x30', f'v_bitop3_b32 v{RBF+1}, v{RBF+1}, v{vM}, v{vM} bitop3:0x30']
        fill = []
        if first:
            for c in range(4):
                for hh in range(2):
                    for ct in range(4):
                        for r in (2*hh, 2*hh+1):
                            src = D3 + (c*2 + hh)*4 + 2*(r & 1) + (ct >> 1)
                            dst = ACC + c*16 + ct*4 + r
                            fill.append(f'v_and_b32 v{dst}, v{vMHI}, v{src}' if ct & 1 else f'v_lshlrev_b32 v{dst}, 16, v{src}')
        nh = 6
        emit(a, sc[:nh])
        if first: a('s_waitcnt lgkmcnt(0)')
        emit(a, weave(sc[nh:], fill))
        emit(a, wread(0)); emit(a, wread(1))
    else:
        emit(a, wread(0)); emit(a, wread(1))
        T(a, 9)
    a(f's_mov_b32 s{sT0}, 0x00010001')
    a('s_waitcnt lgkmcnt(7)')
    for i in range(NS): a(f'v_xor_b32 v{SEL+i}, v{SEL+i}, v{vNQ}')
    emit(a, wf(0, u)[:1])
    for i in range(NS): a(f'v_pk_min_u16 v{SEL+i}, v{SEL+i}, s{sT0}')
    for i in range(NS): a(f'v_pk_sub_u16 v{SEL+i}, v{SEL+i}, s{sT0}')
    emit(a, wf(0, u)[1:])
    a('s_waitcnt lgkmcnt(4)')
    for j in range(3):
        for i in range(NS): a(f'v_and_b32 v{SR+4*j+i}, v{SR+4*j+i}, v{SEL+i}')
    for i in range(NS): a(f'v_and_b32 v{SEL+i}, 0x3f803f80, v{SEL+i}')
    if opt.roll:
        if first:
            a(f's_cmp_eq_u32 s{sFI}, 0')
            a('s_cbranch_scc1 L2_notfirst2')
            emit(a, v_loads(0))
            a('s_waitcnt vmcnt(8)')
            emit(a, v_loads(1))
            a(f's_mov_b32 s{sFI}, 0')
            a.lines.append('L2_notfirst2:')
        T(a, 11)
        a(f's_waitcnt vmcnt({(8 if u == 0 else 0) + 16})')
        vl = v_loads(2)
    else:
        vissue(0)
        T(a, 11)
        if tag == 'A' and sFI:
            a(f's_cmp_eq_u32 s{sFI}, 0')
            a('s_cbranch_scc1 L2_notfirst2')
            a(f's_waitcnt vmcnt({opt.vsched[0] + (4 if opt.hd else 0)})')
            a(f's_mov_b32 s{sFI}, 0')
            a.lines.append('L2_notfirst2:')
        if not (opt.hd and u): a(f's_waitcnt vmcnt({(8 if u == 0 else 0) + (4 if opt.hd else 0) + opt.vsched[0]*NET()//2})')
    T(a, 12)
    if opt.cprio == 1: a('s_setprio 1')
    if opt.cprio == 2: a('s_setprio 0')
    for step in range(12 if opt.spread else 0):
        a(f's_waitcnt lgkmcnt({2 if step < 11 else 0})')
        M = l2_mfma(step)
        if step == 0:
            emit(a, M); emit(a, wread(2)); vissue(1)
            continue
        S = l2_seg(step - 2) if step >= 2 else []
        s = step - 1; part = s // 4; ct = s % 4
        mu = l2_mul(s); cv = l2_cvt(s)
        va = mu[:4] + cv[:2] + mu[4:] + cv[2:]
        mf = M[:2] + S[:1] + M[2:] + S[1:]
        if step in (4, 8):
            last = max(i for i, x in enumerate(va) if x.startswith('v_mul'))
            emit(a, weave(mf[:4], va[:last+1])); emit(a, wf(2 if step == 4 else 1, u)[:1])
            emit(a, va[last+1:]); emit(a, mf[4:]); emit(a, wread(step + 2)); emit(a, wf(2 if step == 4 else 1, u)[1:])
        elif step in (5, 9):
            emit(a, mf[:4]); emit(a, weave(va, mf[4:])); emit(a, wread(step + 2) if step + 2 < 12 else [])
        else:
            emit(a, weave(mf, va))
            if step + 2 < 12: emit(a, wread(step + 2))
        vissue(step + 1)
    for step in range(0 if opt.spread else 12):
        a(f's_waitcnt lgkmcnt({2 if step < 11 else 0})')
        M = l2_mfma(step)
        if step == 0:
            emit(a, M); emit(a, wread(2)); vissue(1)
            continue
        m = l2_mul(step - 1)
        if MINI[0]:
            emit(a, M + m)
        elif opt.pkc == 2:
            emit(a, m + M)
        elif opt.pkc == 3:
            emit(a, M + m)
        elif step in (5, 9):
            h_ = len(m)//2
            emit(a, M[:2] + m[:h_] + M[2:3] + m[h_:h_+h_//2] + M[3:] + m[h_+h_//2:])
        else:
            emit(a, weave(M, m))
        if step == 4: emit(a, wf(2, u))
        if step == 8: emit(a, wf(1, u))
        emit(a, l2_cvt(step - 1))
        if step + 2 < 12: emit(a, wread(step + 2))
        emit(a, l2_seg(step - 1))
        vissue(step + 1)
    if opt.cprio == 1: a('s_setprio 0')
    if opt.cprio == 2: a('s_setprio 1')
    if tag == 'M':
        a.settle()
        return
    a(f's_add_u32 s{sXE0}, s{sE0}, {32*(u+1)}')
    a(f's_cmp_lt_u32 s{sXE0}, s{sE1}')
    if tag == 'A':
        a('s_cbranch_scc0 L2_newitem')
    elif tag == 'B':
        a.br('s_cbranch_scc1 L2_tail_toC')
        a.br('s_branch L2_newitem')
    else:
        a('s_cbranch_scc0 L2_newitem')
        a(f's_mov_b32 s{sXE1}, s{sE1}')
        a(f's_mov_b32 s{sXN0}, s{sN0}')
        a(f's_mov_b32 s{sXNN}, s{sNN}')
        a(f's_mov_b32 s{sXCONT}, 1')
        a(f's_mov_b32 s{sLAST}, 0')
        a.br('s_branch L2_tail_toA')

sPRE = 74; sPN0, sPNN, sPE0, sPE1 = 75, 76, 77, 78
def lookahead(a):
    chain_loop(a, vNX64, sC64)
    chain_loop(a, vNX32, sC32)
    a(f's_mov_b32 s{sPRE}, 2')
    a(f's_cmp_ge_u32 s{sNC}, {R}')
    a('s_cbranch_scc1 L2_lookdone')
    a(f's_mov_b32 s{sPN0}, s{sNC}')
    chain_start(a, sPE0)
    chain_step(a, vNX32)
    chain_start(a, sPE1)
    a(f's_sub_u32 s{sPNN}, s{sNC}, s{sPN0}')
    a(f's_mov_b32 s{sC32}, 7')
    a(f's_mov_b32 s{sPRE}, 1')
    if opt.yld in (7, 8, 9, 12): a('s_setprio 3')
    a.label('L2_lookdone', settle=False)

sCC, sCD, sFM, sEX, sSTAGE, sTOT = 74, 75, 76, 77, 78, 79
walk_n = [0]
def walk_init(a):
    a(f's_sub_u32 s{sC64}, 7, s3')
    a(f's_min_u32 s{sC32}, s3, 4')
    a(f's_sub_u32 s{sCC}, s3, s{sC32}')
    a(f's_mov_b32 s{sCD}, 0')
    a(f's_lshr_b32 s{sFM}, s3, 2')
    a(f's_mov_b32 s{sEX}, s{sFM}')
    a(f's_mov_b32 s{sSTAGE}, 0')

def walk(a, none, n0, e0, e1):
    n = walk_n[0]; walk_n[0] += 1
    chain_loop(a, vNX64, sC64)
    chain_loop(a, vNX32, sC32)
    a(f's_cmp_ge_u32 s{sNC}, {R}')
    a(f's_cbranch_scc1 {none}')
    a(f's_cmp_eq_u32 s{sFM}, 0')
    a(f's_cbranch_scc1 L2_nomode{n}')
    chain_start(a, sT2)
    a(f's_sub_u32 s{sT2}, s{sTOT}, s{sT2}')
    a(f's_cmp_gt_u32 s{sT2}, {opt.cap16}')
    a(f's_cbranch_scc0 L2_small{n}')
    a(f'v_mov_b32 v{vNX64}, v{vNX32}')
    a.br(f's_branch L2_nomode{n}')
    a.label(f'L2_small{n}', settle=False)
    x0, x1, x2, x3, x4, x5 = TP, TP+1, TP+2, TP+3, 254, 255
    a(f'v_and_b32 v{x0}, 0xffff, v{vPACK}')
    a(f'v_lshrrev_b32 v{x1}, 16, v{vPACK}')
    a(f'v_add_u32 v{x0}, 16, v{x0}')
    a(f'v_add_u32 v{x1}, 16, v{x1}')
    a(f'v_lshlrev_b32 v{x2}, 2, v{x0}')
    a(f'v_lshlrev_b32 v{x3}, 2, v{x1}')
    a(f'ds_read_b32 v{x2}, v{x2} offset:{L_SORT}')
    a(f'ds_read_b32 v{x3}, v{x3} offset:{L_SORT}')
    a(f'v_cmp_gt_u32 s[64:65], s{sTOT}, v{x0}')
    a(f'v_cmp_gt_u32 s[66:67], s{sTOT}, v{x1}')
    a(f'v_mov_b32 v{x4}, {R}')
    a(f'v_lshrrev_b32 v{x5}, 4, v{vLANE16}')
    a('s_waitcnt lgkmcnt(0)')
    for h, r in enumerate((x2, x3)):
        a(f'v_and_b32 v{r}, 127, v{r}')
        a(f'v_cndmask_b32_e64 v{r}, v{x4}, v{r}, s[{64+2*h}:{65+2*h}]')
        a(f'v_add_u32 v{x0}, {1 + 64*h}, v{x5}')
        a(f'v_add_u32 v{x1}, {16 + 64*h}, v{x5}')
        a(f'v_med3_u32 v{r}, v{r}, v{x0}, v{x1}')
        a(f'v_min_u32 v{r}, v{x4}, v{r}')
    a(f'v_lshl_or_b32 v{vNX64}, v{x3}, 16, v{x2}')
    a.label(f'L2_nomode{n}')
    chain_loop(a, vNX64, sCC)
    chain_loop(a, vNX32, sCD)
    a(f's_cmp_ge_u32 s{sNC}, {R}')
    a(f's_cbranch_scc1 {none}')
    a(f's_mov_b32 s{n0}, s{sNC}')
    chain_start(a, e0)
    a(f's_cmp_eq_u32 s{sEX}, 0')
    a(f's_cbranch_scc1 L2_end32_{n}')
    chain_step(a, vNX64)
    a(f's_branch L2_ended{n}')
    a.label(f'L2_end32_{n}', settle=False)
    chain_step(a, vNX32)
    a.label(f'L2_ended{n}', settle=False)
    chain_start(a, e1)
    a(f's_mov_b32 s{sEX}, 0')
    a(f's_cmp_lg_u32 s{sSTAGE}, 0')
    a(f's_cbranch_scc1 L2_later{n}')
    a(f's_mov_b32 s{sSTAGE}, 1')
    a(f's_mov_b32 s{sCD}, s3')
    a(f's_xor_b32 s{sFM}, s{sFM}, 1')
    a(f's_sub_u32 s{sT0}, 3, s3')
    a(f's_max_i32 s{sC32}, s{sT0}, 0')
    a(f's_sub_u32 s{sT0}, 7, s3')
    a(f's_min_u32 s{sCC}, s{sT0}, 4')
    a(f's_branch L2_walked{n}')
    a.label(f'L2_later{n}', settle=False)
    a(f's_mov_b32 s{sC32}, 7')
    a(f's_mov_b32 s{sFM}, 0')
    a.label(f'L2_walked{n}', settle=False)

def newitem(a):
    a.label('L2_newitem', settle=False)
    a(f's_mov_b32 s{sLAST}, 1')
    if opt.cap16:
        walk(a, 'L2_tail_fin', sXN0, sXE0, sXE1)
        a(f's_sub_u32 s{sXNN}, s{sNC}, s{sXN0}')
        a(f's_mov_b32 s{sXCONT}, 0')
        return
    if opt.look:
        a(f's_cmp_eq_u32 s{sPRE}, 0')
        a('s_cbranch_scc1 L2_walknow')
        a(f's_cmp_eq_u32 s{sPRE}, 2')
        a('s_nop 3')
        a('s_cbranch_scc1 L2_tail_fin')
        a(f's_mov_b32 s{sXN0}, s{sPN0}')
        a(f's_mov_b32 s{sXNN}, s{sPNN}')
        a(f's_mov_b32 s{sXE0}, s{sPE0}')
        a(f's_mov_b32 s{sXE1}, s{sPE1}')
        a(f's_mov_b32 s{sXCONT}, 0')
        a(f's_mov_b32 s{sPRE}, 0')
        a('s_branch L2_tail_toA')
        a.label('L2_walknow', settle=False)
    chain_loop(a, vNX64, sC64)
    chain_loop(a, vNX32, sC32)
    if 'X' in getattr(opt, 'diag', ''):
        a('s_cmp_ge_u32 s3, 4')
        a('s_cbranch_scc1 L2_tail_fin')
    if 'Y' in getattr(opt, 'diag', ''):
        a('s_cbranch_scc1 L2_tail_fin')
        a('s_branch L2_tail_fin')
    a(f's_cmp_ge_u32 s{sNC}, {R}')
    a('s_cbranch_scc1 L2_tail_fin')
    a(f's_mov_b32 s{sXN0}, s{sNC}')
    chain_start(a, sXE0)
    chain_step(a, vNX32)
    chain_start(a, sXE1)
    a(f's_sub_u32 s{sXNN}, s{sNC}, s{sXN0}')
    a(f's_mov_b32 s{sXCONT}, 0')
    a(f's_mov_b32 s{sC32}, 7')
    if getattr(opt, 'yld', 0) == 2: a('s_setprio 0')

def tail(a, tag):
    MINI[0] = tag == 'finM'
    NJ = 4*NET()
    if tag == 'finM':
        pass
    elif tag == 'toC':
        a.lines.append('L2_tail_toC:')
    else:
        a.label(f'L2_tail_{tag}', settle=False)
    def pv(n):
        j, ct = divmod(n, 4); U = D2 + ((n + 2) % 4)*8
        un, mu = [], []
        for jj in range(NJ):
            src = V + j*16 + jj*2 + (ct >> 1)
            un.append(f'v_and_b32 v{U+jj}, v{vMHI}, v{src}' if ct & 1 else f'v_lshlrev_b32 v{U+jj}, 16, v{src}')
            mu.append(f'v_mul_f32 v{U+jj}, v{U+jj}, v{D3 + (jj >> 2)*16 + ct*4 + (jj & 3)}')
        if opt.pk:
            mu = [f'v_pk_mul_f32 v[{U+jj}:{U+jj+1}], v[{U+jj}:{U+jj+1}], v[{D3 + (jj >> 2)*16 + ct*4 + (jj & 3)}:{D3 + (jj >> 2)*16 + ct*4 + (jj & 3) + 1}]' for jj in range(0, NJ, 2)]
        cv = [f'v_cvt_pk_bf16_f32 v{U+i}, v{U+2*i}, v{U+2*i+1}' for i in range(NJ//2)]
        acc = ACC + (1+j)*16 + ct*4
        mf = mf_seg(acc, U, SEL)
        return un, mu, cv, mf
    early = {'toA': 9 if opt.hd else 5, 'toC': 0 if opt.hd else 4, 'fin': 0, 'finM': 0}[tag] if opt.earlyh else 0
    if tag == 'toA' and opt.earlyst2:
        a(f's_cmp_eq_u32 s{sLAST}, 0')
        a(f's_cselect_b32 s{sT0}, 0x40000000, 0')
        a(f'v_or_b32 v{vRES}, s{sT0}, v{vRES}')
    if tag == 'toA': emit(a, next_entry_read(TP) + next_mask(TP+4))
    if tag == 'toC':
        if getattr(opt, 'yld', 0) == 4: a('s_setprio 1')
        emit(a, off_reads(1)[2:] if opt.hd else off_reads(1))
    if getattr(opt, 'yld', 0) == 5 and tag in ('toA', 'fin', 'finM'): a('s_setprio 1')
    if getattr(opt, 'yld', 0) == 9 and tag == 'toA': a('s_setprio 0')
    if getattr(opt, 'yld', 0) == 10 and tag == 'fin': a('s_setprio 1')
    if getattr(opt, 'yld', 0) in (12, 13) and tag == 'fin': a('s_setprio 0')
    if getattr(opt, 'yld', 0) == 14 and tag in ('toA', 'fin'): a('s_setprio 0')
    if getattr(opt, 'yld', 0) == 11 and tag == 'fin':
        a('s_cmp_ge_u32 s3, 4')
        a('s_cbranch_scc1 L2_keepprio')
        a('s_setprio 0')
        a.lines.append('L2_keepprio:')
    if getattr(opt, 'yld', 0) == 6 and tag == 'toA': a('s_setprio 0')
    emit(a, l2_mul(11))
    prev = None
    for n in range(12):
        j, ct = divmod(n, 4)
        un, mu, cv, mf = pv(n)
        if ct == 0:
            T(a, 13 + 2*j)
            late = 4 if (((tag in ('fin', 'finM') and opt.earlyst) or (tag == 'toA' and opt.earlyst2)) and j == 2) else 0
            rolled = 8 if (opt.roll and tag != 'fin' and j == 2) else 0
            a(f's_waitcnt vmcnt({(16 - 8*j)*NET()//2 + (early if j else 0) + late + rolled})')
            T(a, 14 + 2*j)
        emit(a, un[:2])
        if prev: a(prev)
        emit(a, un[2:])
        rest = mu + cv
        if tag == 'toA' and n == 1:
            a('s_waitcnt lgkmcnt(0)')
            rest = weave(rest, next_stage(TP+4, TP+5) + off_reads(0) + (hd_reads() if opt.hd else []))
        if (tag == 'toA' and n == 3) or (tag == 'toC' and n == 1):
            a('s_waitcnt lgkmcnt(0)')
            if opt.hd and tag == 'toC':
                rest = weave(rest, off_adds()[4:] + hd_fetch(TP))
            elif opt.hd:
                rest = weave(rest, off_adds() + hd_adds()) + pos_load(TP+5) + h_loads() + hd_loads()
            else:
                rest = weave(rest, off_adds())
                if opt.earlyh: rest = rest + (pos_load(TP+5) if tag == 'toA' else []) + h_loads()
        if opt.roll and tag != 'fin' and n in (4, 8): rest = weave(rest, v_loads(n//4 - 1))
        if ((tag in ('fin', 'finM') and opt.earlyst) or (tag == 'toA' and opt.earlyst2)) and n in (5, 9):
            comps, base = ((0, 1), V) if n == 5 else ((2,), V + 16)
            pk_, st_ = [], []
            for ci, c in enumerate(comps):
                for hh in range(2):
                    r0 = base + ci*8 + hh*4
                    for d in range(4):
                        lo = ACC + c*16 + (2*(d & 1))*4 + 2*hh + (d >> 1)
                        pk_.append(f'v_cvt_pk_bf16_f32 v{r0+d}, v{lo}, v{lo+4}')
                    st_.append(f'buffer_store_dwordx4 v[{r0}:{r0+3}], v{vRES}, s[{sOUT}:{sOUT+3}], 0 offen offset:{c*128+hh*64} {opt.outst}')
            rest = rest + pk_ + [f's_mov_b64 exec, s[{sEXQ}:{sEXQ+1}]'] + st_ + ['s_mov_b64 exec, -1']
        emit(a, rest)
        prev = mf
    T(a, 19)
    if tag == 'toC':
        if opt.earlyh:
            a('s_nop 1')
            a(prev)
        else:
            emit(a, h_loads()[:2])
            a(prev)
            emit(a, h_loads()[2:])
        emit(a, sel_reads(1))
        if getattr(opt, 'yld', 0) == 3: a('s_setprio 1')
        return
    if tag == 'toA':
        if not opt.earlyh:
            emit(a, pos_load(TP+5))
            emit(a, h_loads())
        a(prev)
        if not opt.earlyst2:
            a(f's_cmp_eq_u32 s{sLAST}, 0')
            a(f's_cbranch_scc1 L2_nopack')
    else:
        a('s_nop 1')
        a(prev)
    short = (tag in ('fin', 'finM') and opt.earlyst) or (tag == 'toA' and opt.earlyst2)
    for c in range(3 if short else 0, 4):
        for hh in range(2):
            for d in range(4):
                lo = ACC + c*16 + (2*(d & 1))*4 + 2*hh + (d >> 1)
                a(f'v_cvt_pk_bf16_f32 v{D3+(c*2+hh)*4+d}, v{lo}, v{lo+4}')
    if tag == 'toA' and not opt.earlyst2:
        a.br('s_branch L2_store')
        a.label('L2_nopack', settle=False)
        a(f'v_mov_b32 v{vRES}, 0x40000000')
        a.label('L2_store')
    T(a, 20)
    a(f's_mov_b64 exec, s[{sEXQ}:{sEXQ+1}]')
    emit(a, out_stores(vRES)[6 if short else 0:])
    a('s_mov_b64 exec, -1')
    if tag == 'toA':
        a(f's_mov_b32 s{sN0}, s{sXN0}')
        a(f's_mov_b32 s{sNN}, s{sXNN}')
        a(f's_mov_b32 s{sE0}, s{sXE0}')
        a(f's_mov_b32 s{sE1}, s{sXE1}')
        if getattr(opt, 'yld', 0) in (1, 3, 4, 5, 6, 7, 8): a('s_setprio 0')
        a(f's_cmp_lg_u32 s{sXCONT}, 0')
        a.br('s_cbranch_scc1 L2_head_B')
        if opt.mini:
            a(f's_sub_u32 s{sT0}, s{sE1}, s{sE0}')
            a(f's_cmp_le_u32 s{sT0}, 16')
            a('s_cbranch_scc1 L2_head_M')
        a.br('s_branch L2_head_A')
    if tag == 'finM':
        if opt.cap16:
            walk(a, 'L2_rounddone', sN0, sE0, sE1)
        else:
            chain_loop(a, vNX64, sC64)
            chain_loop(a, vNX32, sC32)
            a(f's_cmp_ge_u32 s{sNC}, {R}')
            a('s_cbranch_scc1 L2_rounddone')
            a(f's_mov_b32 s{sN0}, s{sNC}')
            chain_start(a, sE0)
            chain_step(a, vNX32)
            chain_start(a, sE1)
            a(f's_mov_b32 s{sC32}, 7')
        a.br('s_branch L2_issue')
    MINI[0] = False

def gen_k2(a, name):
    header(a, name)
    stamp.tmp = 252; stamp.wave = 0
    a('s_cmp_ge_u32 s2, %d' % NB)
    a('s_cbranch_scc1 L2_end')
    a('s_load_dwordx2 s[4:5], s[0:1], 0')
    a('s_load_dwordx2 s[12:13], s[0:1], 32')
    a('s_load_dwordx2 s[20:21], s[0:1], 64')
    a('s_load_dwordx2 s[24:25], s[0:1], 80')
    a('v_lshrrev_b32 v40, 6, v0')
    a('v_and_b32 v41, 63, v0')
    a('v_readfirstlane_b32 s3, v40')
    a(f'v_lshlrev_b32 v{vLANE16}, 4, v41')
    a('v_lshlrev_b32 v42, 4, v0')
    a('s_waitcnt lgkmcnt(0)')
    a('s_load_dwordx2 s[14:15], s[12:13], 0')
    srd(a, sSLOT, 24, SLOT_OFF, NB*64, mul=16384)
    W = V
    a(f'buffer_load_dwordx4 v[{W}:{W+3}], v42, s[{sSLOT}:{sSLOT+3}], 0 offen')
    a(f'v_add_u32 v43, 8192, v42')
    a(f'buffer_load_dwordx4 v[{W+4}:{W+7}], v43, s[{sSLOT}:{sSLOT+3}], 0 offen')
    srd(a, sP4, 24, POS4_OFF, N*8)
    a(f's_mul_i32 s{sT0}, s2, {R*8}')
    a('v_lshlrev_b32 v43, 3, v0')
    a(f'v_add_u32 v43, s{sT0}, v43')
    a('v_cmp_gt_u32 vcc, 128, v0')
    a('v_mov_b32 v44, 0x40000000')
    a('v_cndmask_b32_e64 v43, v44, v43, vcc')
    a(f'buffer_load_dwordx2 v[46:47], v43, s[{sP4}:{sP4+3}], 0 offen')
    def zero_counters(tag):
        a('s_cmp_ge_u32 s3, 3')
        a.br(f's_cbranch_scc1 L2_nozero{tag}')
        a('v_lshlrev_b32 v40, 2, v0')
        a('v_mov_b32 v44, 0')
        a(f'v_add_u32 v42, {L_FLAG - 512}, v40')
        a(f'v_add_u32 v40, {L_NCNT}, v40')
        a('v_cmp_gt_u32 vcc, 128, v0')
        a('v_cndmask_b32_e64 v40, v42, v40, vcc')
        a('v_cmp_gt_u32 vcc, 129, v0')
        a('s_and_saveexec_b64 s[64:65], vcc')
        a('ds_write_b32 v40, v44')
        a('s_mov_b64 exec, s[64:65]')
        a.label(f'L2_nozero{tag}')
    zero_counters('a')
    srd(a, sW2F, 24, W2F_OFF, 24576 + 1536)
    a('v_lshlrev_b32 v43, 3, v41')
    a(f's_mov_b32 s{sT0}, 24576')
    for p in range(3):
        a(f'buffer_load_dwordx2 v[{WR+2*p}:{WR+2*p+1}], v43, s[{sW2F}:{sW2F+3}], s{sT0} offen offset:{p*512}')
    for i in range(3):
        a(f's_lshl_b32 s{sT0}, s3, 10')
        if i: a(f's_add_u32 s{sT0}, s{sT0}, {i*8192}')
        a(f's_mov_b32 m0, s{sT0}')
        a(f'buffer_load_dwordx4 v{vLANE16}, s[{sW2F}:{sW2F+3}], s{sT0} offen lds')
    srd(a, sRES, 4, 0, R*512, mul=R*512)
    stamp_init(a, 1)
    tr_init(a)
    tr(a, 1)
    stamp(a, 1, 0)
    dbg_init(a, 1)
    dbg(a, 6)
    dbg(a, 7, True)
    srd(a, sSV, 4, 0, N*512)
    srd(a, sH, 24, H_OFF, N*128)
    srd(a, sOUT, 20, 0, R*512, mul=R*512)
    srd(a, sOVF, 24, OVF_OFF, NB*CH*4)
    a('v_and_b32 v44, 15, v41')
    a('v_lshrrev_b32 v45, 4, v41')
    a('v_lshrrev_b32 v43, 2, v44')
    a('v_lshlrev_b32 v43, 3, v43')
    a('v_and_b32 v40, 3, v44')
    a('v_add_u32 v43, v43, v40')
    a(f's_mul_i32 s{sSTG}, s3, {STG}')
    a(f's_add_u32 s{sSTG}, s{sSTG}, {L_STG}')
    a(f's_sub_u32 s{sSD}, {L_SORT}, s{sSTG}')
    a(f'v_lshl_add_u32 v{vHA}, v43, 2, s{sSTG}')
    a('v_and_b32 v40, 1, v45')
    a('v_lshl_add_u32 v43, v40, 2, v43')
    a('v_lshrrev_b32 v40, 1, v45')
    a('v_lshl_add_u32 v43, v40, 5, v43')
    a(f'v_lshl_add_u32 v{vSTGW}, v43, 2, s{sSTG}')
    a(f'v_lshl_add_u32 v{vSTGH}, v43, 1, s{sSTG}')
    a(f'v_lshl_add_u32 v{vSTGR}, v45, 5, s{sSTG}')
    a(f'v_lshl_add_u32 v{vSTGS}, v45, 4, s{sSTG}')
    emit_Q(a, vLPV, 44, 40)
    a(f'v_lshlrev_b32 v{vLPV}, 3, v{vLPV}')
    a(f'v_lshlrev_b32 v{vLPH}, 4, v45')
    a(f'v_lshl_add_u32 v{vLPR}, v44, 9, v{vLPH}')
    a(f'v_lshl_or_b32 v{vQQ}, v44, 16, v44')
    a(f'v_mov_b32 v{vMHI}, 0xffff0000')
    a(f's_mov_b32 s{sROUND}, 0')
    a('s_waitcnt lgkmcnt(0)')
    a('s_barrier')
    a(f's_lshl_b32 s{sF}, s14, 16')
    a(f's_and_b32 s{sF+1}, s14, 0xffff0000')
    a(f's_lshl_b32 s{sF+2}, s15, 16')
    a(f's_and_b32 s{sF+3}, s15, 0xffff0000')
    a('v_and_b32 v39, 3, v0')
    a('v_lshlrev_b32 v39, 2, v39')
    a('v_subrev_u32 v39, 1, v39')
    LIM, CNT = 56, 58
    a('s_waitcnt vmcnt(8)')
    a(f'v_mov_b32_dpp v{CNT}, v{W} quad_perm:[0,0,0,0] row_mask:0xf bank_mask:0xf')
    a('s_waitcnt vmcnt(7)')
    a(f'v_mov_b32_dpp v{CNT+1}, v{W+4} quad_perm:[0,0,0,0] row_mask:0xf bank_mask:0xf')
    for h in range(2):
        a(f'v_and_b32 v{CNT+h}, 0xffff, v{CNT+h}')
        a(f'v_min_u32 v{LIM+h}, {CAP}, v{CNT+h}')
        a(f'v_subrev_u32 v{CNT+h}, {CAP}, v{CNT+h}')
    a('s_cmp_ge_u32 s3, 2')
    a.br('s_cbranch_scc1 L2_nodpos')
    a('s_waitcnt vmcnt(6)')
    a('v_lshlrev_b32 v84, 16, v46')
    a(f'v_and_b32 v85, v{vMHI}, v46')
    a('v_lshlrev_b32 v86, 16, v47')
    a('v_mov_b32 v87, 0')
    a('v_lshlrev_b32 v42, 4, v0')
    a(f'ds_write_b128 v42, v[84:87] offset:{L_DPOS}')
    a.label('L2_nodpos')
    a.label('L2_round')
    stamp(a, 1, 1)
    tr(a, 4)
    A = 60; RK = 68; T = 76
    a('v_mov_b32 v40, 1')
    for i in range(8):
        a(f'v_add_u32 v41, {i & 3}, v39')
        a(f'v_cmp_lt_u32 s[{64+2*i}:{65+2*i}], v41, v{LIM + i//4}')
        a(f'v_and_b32 v{A+i}, 127, v{W+i}')
        a(f'v_lshlrev_b32 v{A+i}, 2, v{A+i}')
        a(f'v_add_u32 v{A+i}, {L_NCNT}, v{A+i}')
    for i in range(8):
        a(f's_mov_b64 exec, s[{64+2*i}:{65+2*i}]')
        a(f'ds_add_rtn_u32 v{RK+i}, v{A+i}, v40')
    a('s_mov_b64 exec, -1')
    a(f'v_max_i32 v41, v{CNT}, v{CNT+1}')
    a('v_cmp_lt_i32 vcc, 0, v41')
    a.br('s_cbranch_vccz L2_noflag')
    a(f'v_mov_b32 v41, {L_FLAG}')
    a('ds_write_b32 v41, v40')
    a.label('L2_noflag')
    a(f'v_lshrrev_b32 v41, 9, v{vLANE16}')
    a('s_lshl_b32 s%d, s3, 1' % sT0)
    a(f'v_add_u32 v42, s{sT0}, v41')
    a('v_and_b32 v42, 7, v42')
    a('v_lshlrev_b32 v42, 5, v42')
    a(f'v_xor_b32 v42, v42, v{vLANE16}')
    for i in range(7):
        if i == 6:
            a('s_cmp_ge_u32 s3, 2')
            a.br('s_cbranch_scc1 L2_resdone')
        a(f's_lshl_b32 s{sT0}, s3, 10')
        if i: a(f's_add_u32 s{sT0}, s{sT0}, {i*8192}')
        a(f's_add_u32 m0, s{sT0}, {L_RES}')
        a(f'buffer_load_dwordx4 v42, s[{sRES}:{sRES+3}], s{sT0} offen sc1 lds')
    a.label('L2_resdone')
    a('s_waitcnt lgkmcnt(0)')
    a('s_barrier')
    stamp(a, 1, 2)
    tr(a, 5)
    a(f'v_lshrrev_b32 v41, 2, v{vLANE16}')
    a(f'v_add_u32 v41, {L_NCNT}, v41')
    a('ds_read2st64_b32 v[42:43], v41 offset1:1')
    a(f'v_mov_b32 v44, {L_FLAG}')
    a('ds_read_b32 v45, v44')
    a('s_waitcnt lgkmcnt(1)')
    a('v_lshl_or_b32 v42, v43, 16, v42')
    a('v_mov_b32 v43, v42')
    for sh in ('row_shr:1', 'row_shr:2', 'row_shr:4', 'row_shr:8'):
        a(f'v_add_u32_dpp v43, v43, v43 {sh} row_mask:0xf bank_mask:0xf')
    a('v_add_u32_dpp v43, v43, v43 row_bcast:15 row_mask:0xa bank_mask:0xf')
    a('v_add_u32_dpp v43, v43, v43 row_bcast:31 row_mask:0xc bank_mask:0xf')
    a('s_waitcnt lgkmcnt(0)')
    a(f'v_readfirstlane_b32 s{sMORE}, v45')
    a(f'v_readlane_b32 s{sT0}, v43, 63')
    a('v_sub_u32 v43, v43, v42')
    a(f's_and_b32 s{sT0}, s{sT0}, 0xffff')
    a(f'v_and_b32 v{vSTLO}, 0xffff, v43')
    a(f'v_lshrrev_b32 v{vSTHI}, 16, v43')
    a(f'v_add_u32 v{vSTHI}, s{sT0}, v{vSTHI}')
    a(f'ds_write2st64_b32 v41, v{vSTLO}, v{vSTHI} offset0:2 offset1:3')
    for i in range(8):
        a(f'ds_read_b32 v{T+i}, v{A+i} offset:512')
    a(f'v_lshl_or_b32 v{vPACK}, v{vSTHI}, 16, v{vSTLO}')
    for i in range(8):
        a('s_waitcnt lgkmcnt(7)')
        a(f'v_add_lshl_u32 v{T+i}, v{T+i}, v{RK+i}, 2')
        a(f's_mov_b64 exec, s[{64+2*i}:{65+2*i}]')
        a(f'ds_write_b32 v{T+i}, v{W+i} offset:{L_SORT}')
        a('s_mov_b64 exec, -1')
    for k, (st, d) in enumerate(((vSTLO, 32), (vSTHI, 32), (vSTLO, 64), (vSTHI, 64))):
        a(f'v_add_u32 v{T+k}, {d}, v{st}')
        a(f'v_lshlrev_b32 v{T+4+k}, 2, v{T+k}')
    a(f'v_readlane_b32 s{sT2}, v{vSTHI}, {R - 64}')
    a(f'v_lshrrev_b32 v40, 4, v{vLANE16}')
    a('v_add_u32 v41, 64, v40')
    a(f'v_mov_b32 v46, {R}')
    a(f's_mov_b32 s{sNC}, 0')
    a(f's_mov_b32 s{sC64}, s3')
    a('s_waitcnt lgkmcnt(0)')
    a('s_barrier')
    stamp(a, 1, 3)
    tr(a, 2)
    dbg(a, 8)
    dbg(a, 9, True)
    for k in (2, 3, 0, 1):
        a(f'ds_read_b32 v{T+4+k}, v{T+4+k} offset:{L_SORT}')
    for k in range(4):
        a(f'v_cmp_gt_u32 s[{64+2*k}:{65+2*k}], s{sT2}, v{T+k}')
    a('v_add_u32 v42, 1, v40')
    a('v_add_u32 v43, 16, v40')
    a('v_add_u32 v44, 1, v41')
    a('v_add_u32 v45, 16, v41')
    for k in (2, 3, 0, 1):
        r = T + 4 + k
        if k in (2, 0): a(f's_waitcnt lgkmcnt({2 if k == 2 else 0})')
        a(f'v_and_b32 v{r}, 127, v{r}')
        a(f'v_cndmask_b32_e64 v{r}, v46, v{r}, s[{64+2*k}:{65+2*k}]')
        a(f'v_med3_u32 v{r}, v{r}, v{42 + 2*(k & 1)}, v{43 + 2*(k & 1)}')
        a(f'v_min_u32 v{r}, v46, v{r}')
        if k == 3: a(f'v_lshl_or_b32 v{vNX64}, v{T+7}, 16, v{T+6}')
    a(f'v_lshl_or_b32 v{vNX32}, v{T+5}, 16, v{T+4}')
    chain_loop(a, vNX64, sC64)
    a(f's_cmp_lt_u32 s{sNC}, {R}')
    a.br('s_cbranch_scc1 L2_haveitem')
    a('s_waitcnt vmcnt(0)')
    a('s_barrier')
    a.br('s_branch L2_rounddone')
    a.label('L2_haveitem')
    if opt.prio: a('s_setprio 3')
    a(f's_mov_b32 s{sN0}, s{sNC}')
    chain_start(a, sE0)
    chain_step(a, vNX64)
    chain_start(a, sE1)
    a(f's_sub_u32 s{sNN}, s{sNC}, s{sN0}')
    a(f's_mov_b32 s{sXE0}, s{sE0}')
    a(f's_mov_b32 s{sXE1}, s{sE1}')
    emit(a, next_entry_read(TP))
    emit(a, next_mask(TP+4))
    a(f's_sub_u32 s{sC64}, 7, s3')
    a(f's_mov_b32 s{sC32}, s3')
    a('s_waitcnt lgkmcnt(0)')
    emit(a, next_stage(TP+4, TP+5))
    emit(a, off_reads(0))
    emit(a, pos_load(TP+5))
    a('s_waitcnt lgkmcnt(0)')
    emit(a, off_adds())
    emit(a, h_loads())
    a('s_waitcnt vmcnt(5)')
    a('s_barrier')
    a(f'v_mov_b32 v{vRES}, 0x40000000')
    emit(a, out_stores(vRES))
    if opt.prio: a('s_setprio 0')
    if opt.prio2 == 1:
        a('s_cmp_lt_u32 s3, 4')
        a('s_cbranch_scc1 L2_noprio')
        a('s_setprio 1')
        a.label('L2_noprio', settle=False)
    tr(a, 3)
    a.br('s_branch L2_head_A')
    head(a, 'B')
    head(a, 'A')
    tail(a, 'toC')
    head(a, 'C')
    newitem(a)
    tail(a, 'toA')
    tail(a, 'fin')
    a.label('L2_rounddone')
    tr(a, 30)
    stamp(a, 1, 4)
    a(f's_cmp_eq_u32 s{sMORE}, 0')
    a.br('s_cbranch_scc1 L2_fin')
    a('s_waitcnt vmcnt(0) lgkmcnt(0)')
    a('s_barrier')
    zero_counters('b')
    srd(a, sRES, 20, 0, R*512, mul=R*512)
    a('v_lshrrev_b32 v40, 2, v0')
    a('v_lshlrev_b32 v41, 6, v40')
    a(f'buffer_load_dword v42, v41, s[{sSLOT}:{sSLOT+3}], 0 offen')
    a('v_add_u32 v41, 8192, v41')
    a(f'buffer_load_dword v43, v41, s[{sSLOT}:{sSLOT+3}], 0 offen')
    a('v_and_b32 v39, 3, v0')
    a('v_lshlrev_b32 v39, 2, v39')
    a(f's_lshl_b32 s{sT0}, s{sROUND}, 4')
    a(f's_add_u32 s{sT1}, s{sT0}, {CAP}')
    a(f's_add_u32 s{sROUND}, s{sROUND}, 1')
    a(f'v_mul_u32_u24 v40, {CH*4}, v40')
    a('v_lshl_add_u32 v40, v39, 2, v40')
    a(f's_lshl_b32 s{sT0}, s{sT0}, 2')
    a(f'v_add_u32 v40, s{sT0}, v40')
    a('s_waitcnt vmcnt(0)')
    for h in range(2):
        a(f'v_lshrrev_b32 v44, 16, v{42+h}')
        a(f'v_lshl_add_u32 v44, v44, 2, v40')
        if h: a(f'v_add_u32 v44, {128*CH*4}, v44')
        a(f'buffer_load_dwordx4 v[{W+4*h}:{W+4*h+3}], v44, s[{sOVF}:{sOVF+3}], 0 offen')
        a(f'v_and_b32 v{CNT+h}, 0xffff, v{42+h}')
        a(f'v_subrev_u32 v{CNT+h}, s{sT1}, v{CNT+h}')
        a(f'v_med3_i32 v{LIM+h}, v{CNT+h}, 0, 16')
        a(f'v_subrev_u32 v{CNT+h}, 16, v{CNT+h}')
    a('s_waitcnt vmcnt(0) lgkmcnt(0)')
    a('s_barrier')
    a.br('s_branch L2_round')
    a.label('L2_fin')
    tr_dump(a)
    if opt.ts or opt.dbg:
        a('s_waitcnt vmcnt(0)')
        stamp(a, 1, 5)
        dbg(a, 10)
        dbg(a, 11, True)
    a.label('L2_end')
    a('s_endpgm')

def build():
    src = open('gather_scatter__molecular_angular_painn__graph.s.ref').read().split('\n')
    head = []
    for ln in src:
        if not ln.startswith(';'): break
        if '@launch' in ln or 'Override launch' in ln or 'grid=ceil' in ln: continue
        head.append(ln)
    k1, k2 = 'painn_bin_kernel', 'painn_msg_kernel'
    head.append(f'; @launch kernel={k1} grid=({NB},1,1) block=(1024,1,1) lds={K1_LDS}')
    head.append(f'; @launch kernel={k2} grid=({NB},1,1) block=(512,1,1) lds={K2_LDS}')
    a = Asm()
    a.raw('.amdgcn_target "amdgcn-amd-amdhsa--gfx950"\n.text')
    gen_k1(a, k1)
    gen_k2(a, k2)
    out = '\n'.join(head) + '\n' + a.text() + '.section .rodata,"a"\n' + descriptor(k1, 128) + descriptor(k2, K2_VGPR)
    return out

if __name__ == '__main__':
    outp = sys.argv[1]
    for kv in sys.argv[2:]:
        k, val = kv.split('=')
        setattr(opt, k, type(getattr(opt, k))(eval(val)))
    open(outp, 'w').write(build())
```

```python
import sys
from asmlib import Asm
import gen4 as g
from gen4 import *

NAME = 'gather_scatter__molecular_angular_painn__graph_kernel'
SS = 16512
EPOCH_OFF = SLOT_OFF + 250*SS
L_WRR = 125952
L_STAGE = 129024
K1_CNT = 151552; K1_OVB = K1_CNT + 1280; K1_W1 = K1_OVB + 1024; K1_LDS = K1_W1 + 8192
L_W2R = 101376
opt.ng0 = 2; opt.hprio = 2; opt.rawpos = True; opt.pfres = 1; opt.wb = 2; opt.ssc = ''; opt.dbg3 = False; opt.pad1 = 0; opt.pad2 = 0; opt.pad3 = 0; opt.exact = 0; opt.ilv = 0; opt.drain = True; opt.dbg2 = False; opt.prewr = False; opt.g1st = 0; opt.yld = 0; opt.pfv = []; opt.diag = ''; opt.pfn = 2; opt.pfh = False; opt.fine = False; opt.tr0 = False; opt.hsc = 'sc1'; opt.rt = False; opt.spin = 16; opt.pk = True; opt.sleep = 2; opt.res_when = 'pre'; opt.prew = True; opt.pfw = True; opt.pollmask = True; opt.dumpsc = 'sc1'
sNB = 8
sEP = 100
sFI = 86
g.sFI = sFI
pLDS, pOFA, pOFB, pME, pM0, pT0, pPA, pPB, pN0, pNE, pWA, pWD, pWR, pHC, pHS = range(172, 187)
pRS = 188
sWRR = 12
sPC0 = 78
M_ENT = 0x00fffe7f; M_HDR = 0x00ffffff

def tr(a, tag):
    if not opt.tr: return
    a('s_memrealtime s[92:93]' if opt.rt else 's_memtime s[92:93]')
    a('s_mov_b32 m0, s27')
    a('s_add_u32 s27, s27, 1')
    a('s_waitcnt lgkmcnt(0)')
    a('s_lshl_b32 s92, s92, 6')
    a(f's_or_b32 s92, s92, {tag}')
    a('v_writelane_b32 v11, s92, m0')
_tr_plain = tr
DBGMAP = {48: 0, 4: 2, 7: 4, 9: 6, 21: 8, 31: 10}
def tr(a, tag):
    if opt.dbg3:
        if tag not in (48, 7): return
        L = f'Ldbg{tag}'
        a.settle()
        a('s_lshr_b32 s92, s2, 3')
        a('s_lshl_b32 s93, s3, 5')
        a('s_add_u32 s92, s92, s93')
        a('s_cmp_lg_u32 s92, 12')
        a(f's_cbranch_scc1 {L}')
        a('s_memrealtime s[92:93]')
        a('s_and_b32 s27, s2, 7')
        a('s_lshl_b32 s27, s27, 2')
        a('s_mov_b64 s[94:95], exec')
        a('s_mov_b64 exec, 1')
        a('s_waitcnt lgkmcnt(0)')
        a('v_mov_b32 v255, s92')
        a(f'buffer_store_dword v255, off, s[96:99], s27 offset:{0 if tag == 48 else 32}')
        a('s_mov_b64 exec, s[94:95]')
        a.label(L)
        return
    if not opt.dbg2: return _tr_plain(a, tag)
    if tag not in DBGMAP: return
    i = DBGMAP[tag]
    L = f'Ldbg{tag}'
    a.settle()
    a('s_mov_b32 s27, scc') if False else None
    a('s_cmp_lg_u32 s3, 0')
    a(f's_cbranch_scc1 {L}')
    a('s_memrealtime s[92:93]')
    a('s_mov_b64 s[94:95], exec')
    a('s_mov_b64 exec, 1')
    a('s_waitcnt lgkmcnt(0)')
    a('v_mov_b32 v255, s92')
    a(f'buffer_atomic_umax v255, off, s[96:99], 0 offset:{4*i + 4}')
    a('s_not_b32 s92, s92')
    a('s_nop 0')
    a('v_mov_b32 v11, s92')
    a(f'buffer_atomic_umax v11, off, s[96:99], 0 offset:{4*i}')
    a('s_mov_b64 exec, s[94:95]')
    a.label(L)
g.tr = tr
_tr_init = tr_init
def tr_init(a):
    if not (opt.dbg2 or opt.dbg3): return _tr_init(a)
    a('s_load_dwordx2 s[96:97], s[0:1], 72')
    a('s_waitcnt lgkmcnt(0)')
    a('s_mov_b32 s98, 64')
    a('s_mov_b32 s99, 0x20000')

def h_loads():
    if 'h' in opt.diag:
        return [f'buffer_load_dwordx4 v[{H+et*8+ks*4}:{H+et*8+ks*4+3}], v{HOFF+et if ks == 0 else vRES}, s[{sH if ks == 0 else sOVF}:{(sH if ks == 0 else sOVF)+3}], 0 offen offset:{ks*64}'
                for et in range(2) for ks in range(2)]
    return [f'buffer_load_dwordx4 v[{H+et*8+ks*4}:{H+et*8+ks*4+3}], v{HOFF+et}, s[{sH}:{sH+3}], 0 offen offset:{ks*64} {opt.hsc}'
            for et in range(2) for ks in range(2)]
def pos_load(u): return [f'v_and_b32 v{u-1}, -4, v{u}', f'buffer_load_dwordx2 v[{PS}:{PS+1}], v{u-1}, s[{sP4}:{sP4+3}], 0 offen']
g.h_loads = h_loads; g.pos_load = pos_load


def rare_paths(a):
    RK1, BINC, ENT = 136, 80, 96
    a.label('L1_ovf')
    a('s_cmp_ge_u32 s3, 4')
    a.br('s_cbranch_scc1 L1_ovf_based')
    a('v_lshlrev_b32 v40, 2, v0')
    a(f'v_add_u32 v40, {K1_CNT}, v40')
    a('ds_read_b32 v41, v40')
    a('s_waitcnt lgkmcnt(0)')
    a(f'v_cmp_lt_u32 vcc, {CAP}, v41')
    a('s_and_saveexec_b64 s[88:89], vcc')
    a.br('s_cbranch_execz L1_ovf_none')
    a(f'v_subrev_u32 v41, {CAP}, v41')
    a(f'v_mov_b32 v42, {K1_CNT + 1024}')
    a('ds_add_rtn_u32 v43, v42, v41')
    a('s_waitcnt lgkmcnt(0)')
    a(f'ds_write_b32 v40, v43 offset:{K1_OVB - K1_CNT}')
    a.label('L1_ovf_none')
    a('s_mov_b64 exec, s[88:89]')
    a.label('L1_ovf_based')
    a('s_waitcnt lgkmcnt(0)')
    a('s_barrier')
    srd(a, 88, 24, OVF_OFF, CH*4, mul=CH*4)
    for i in range(7):
        a('s_mov_b64 exec, -1')
        a(f'v_cmp_le_u32 vcc, {CAP}, v{RK1+i}')
        a(f's_and_b64 exec, vcc, s[{64+2*i}:{65+2*i}]')
        a.br(f's_cbranch_execz L1_ovf{i}')
        a(f'ds_read_b32 v40, v{BINC+i} offset:{K1_OVB - K1_CNT}')
        a('s_waitcnt lgkmcnt(0)')
        a(f'v_add_u32 v40, v40, v{RK1+i}')
        a(f'v_subrev_u32 v40, {CAP}, v40')
        a('v_lshlrev_b32 v40, 2, v40')
        a(f'buffer_store_dword v{ENT+i}, v40, s[88:91], 0 offen sc1')
        a.label(f'L1_ovf{i}')
    a('s_mov_b64 exec, -1')
    for h in range(2):
        a(f'ds_read_b32 v40, v{pHC} offset:{K1_OVB - K1_CNT + 512*h}')
        a(f'v_cmp_lt_u32 vcc, {CAP}, v{108+h}')
        a('s_waitcnt lgkmcnt(0)')
        a('v_lshlrev_b32 v40, 12, v40')
        a('v_cndmask_b32_e64 v40, 0, v40, vcc')
        a(f'v_or_b32 v{108+h}, v{108+h}, v40')
    a('s_waitcnt vmcnt(0)')
    a('s_barrier')
    a.br('s_branch L1_noovf')

def consts_poll(a):
    a('s_and_b32 s60, s2, 0xf0')
    a('s_and_b32 s61, s2, 7')
    a('s_lshl_b32 s61, s61, 1')
    a('s_or_b32 s60, s60, s61')
    a('s_bfe_u32 s61, s2, 0x10003')
    a('s_or_b32 s60, s60, s61')
    a('s_lshl_b32 s60, s60, 6')
    a(f's_add_u32 s60, s60, {SLOT_OFF}')
    a(f's_add_u32 s{sSLOT}, s24, s60')
    a(f's_addc_u32 s{sSLOT+1}, s25, 0')
    a(f's_mov_b32 s{sSLOT+2}, {(NB-1)*SS + 64}')
    a(f's_mov_b32 s{sSLOT+3}, 0x20000')
    a('v_lshrrev_b32 v43, 2, v0')
    a(f'v_mul_u32_u24 v43, {SS}, v43')
    a(f'v_add_u32 v{pPA}, v{pPA}, v43')
    a(f'v_add_u32 v{pPB}, {128*SS}, v{pPA}')
    a(f'v_not_b32 v{pNE}, v{pME}')
    a('v_cmp_gt_u32 vcc, 488, v0')
    a('s_mov_b64 s[64:65], vcc')

def consts_late(a):
    a(f's_and_b32 s{sF+3}, s{sF+1}, 0xffff0000')
    a(f's_lshl_b32 s{sF+2}, s{sF+1}, 16')
    a(f's_and_b32 s{sF+1}, s{sF}, 0xffff0000')
    a(f's_lshl_b32 s{sF}, s{sF}, 16')
    srd(a, sSV, 4, 0, 0 if 'V' in opt.diag else N*512)
    srd(a, sH, 24, H_OFF, 0 if 'H' in opt.diag else N*128)
    srd(a, sOUT, 20, 0, 0 if 'S' in opt.diag else R*512, mul=R*512)
    srd(a, sOVF, 24, OVF_OFF, 0 if 'h' in opt.diag else NB*CH*4)
    a(f'v_bfe_u32 v44, v{vLANE16}, 4, 4')
    a(f'v_lshrrev_b32 v45, 8, v{vLANE16}')
    a('v_lshrrev_b32 v43, 2, v44')
    a('v_lshlrev_b32 v43, 3, v43')
    a('v_and_b32 v40, 3, v44')
    a('v_add_u32 v43, v43, v40')
    a(f's_mul_i32 s{sSTG}, s3, {STG}')
    a(f's_add_u32 s{sSTG}, s{sSTG}, {L_STG}')
    a(f's_sub_u32 s{sSD}, {L_SORT}, s{sSTG}')
    a(f'v_lshl_add_u32 v{vHA}, v43, 2, s{sSTG}')
    a('v_and_b32 v40, 1, v45')
    a('v_lshl_add_u32 v43, v40, 2, v43')
    a('v_lshrrev_b32 v40, 1, v45')
    a('v_lshl_add_u32 v43, v40, 5, v43')
    a(f'v_lshl_add_u32 v{vSTGW}, v43, 2, s{sSTG}')
    a(f'v_lshl_add_u32 v{vSTGH}, v43, 1, s{sSTG}')
    a(f'v_lshl_add_u32 v{vSTGR}, v45, 5, s{sSTG}')
    a(f'v_lshl_add_u32 v{vSTGS}, v45, 4, s{sSTG}')
    emit_Q(a, vLPV, 44, 40)
    a(f'v_lshlrev_b32 v{vLPV}, 3, v{vLPV}')
    a(f'v_lshl_add_u32 v{vLPR}, v44, 9, v{vLPH}')
    a(f'v_lshl_or_b32 v{vQQ}, v44, 16, v44')
    a(f's_mov_b32 s{sROUND}, 0')
    if opt.hd:
        a(f's_lshl_b32 s{g.sHB}, s3, 12')
        a(f's_add_u32 s{g.sHB}, s{g.sHB}, {g.L_HB}')
    a(f'v_lshrrev_b32 v40, 1, v45')
    for k in range(4):
        a(f'v_add_u32 v{pRS+k}, {2*k}, v40')
        a(f'v_lshlrev_b32 v{pRS+k}, 5, v{pRS+k}')
        a(f'v_xor_b32 v{pRS+k}, v{pRS+k}, v{vLANE16}')
    a('v_and_b32 v39, 3, v0')
    a('v_lshlrev_b32 v39, 2, v39')
    a('v_subrev_u32 v39, 1, v39')

def build_weights(a):
    a('s_and_b32 s60, s3, 1')
    a(f's_mul_i32 s60, s60, {32*384}')
    a('s_bfe_u32 s62, s3, 0x20001')
    a('s_lshl_b32 s62, s62, 1')
    a('s_add_u32 s60, s60, s62')
    a(f's_add_u32 s60, s60, {L_W2R}')
    a(f'v_mul_u32_u24 v{pWA}, 96, v{vLPH}')
    a(f'v_add3_u32 v{pWA}, v{pWA}, v{vLPV}, s60')
    a('s_lshl_b32 s60, s3, 10')
    a(f'v_add_u32 v{pWD}, s60, v{vLANE16}')
    a(f'v_lshrrev_b32 v{pWR}, 3, v{vLPH}')
    a(f'v_add_u32 v{pWR}, v{pWR}, v{vLPV}')
    a(f'v_add_u32 v{pWR}, {L_WRR}, v{pWR}')
    for p in range(3):
        for k in range(4):
            a(f'ds_read_u16 v{104+4*p+k}, v{pWR} offset:{k*384 + p*128}')
    a('s_waitcnt lgkmcnt(0)')
    for p in range(3):
        for jj in range(8):
            if p and jj == 5: a('s_waitcnt lgkmcnt(11)')
            a(f'ds_read_u16 v{64+8*(p&1)+jj}, v{pWA} offset:{p*128 + (16*(jj>>2) + (jj&3))*384}')
        if p == 0:
            for pp in range(3):
                for i in range(2):
                    a(f'v_lshl_or_b32 v{WR+2*pp+i}, v{105+4*pp+2*i}, 16, v{104+4*pp+2*i}')
        if p:
            q = p - 1
            a('s_waitcnt lgkmcnt(8)')
            for i in range(4): a(f'v_lshl_or_b32 v{80+i}, v{65+8*(q&1)+2*i}, 16, v{64+8*(q&1)+2*i}')
            a(f'ds_write_b128 v{pWD}, v[80:83] offset:{q*8192}')
    a('s_waitcnt lgkmcnt(1)')
    for i in range(4): a(f'v_lshl_or_b32 v{84+i}, v{65+2*i}, 16, v{64+2*i}')
    a(f'ds_write_b128 v{pWD}, v[84:87] offset:{2*8192}')

def gen(a):
    header(a, NAME)
    if opt.tr0 and opt.tr: a('s_memrealtime s[90:91]')
    a('s_cmp_ge_u32 s2, %d' % NB)
    a('s_cbranch_scc1 L_end')
    a('s_load_dwordx8 s[4:11], s[0:1], 0')
    a('s_load_dwordx8 s[12:19], s[0:1], 32')
    a('s_load_dwordx2 s[20:21], s[0:1], 64')
    a('s_load_dwordx2 s[24:25], s[0:1], 80')
    a('v_lshrrev_b32 v40, 6, v0')
    a('v_and_b32 v41, 63, v0')
    a('v_readfirstlane_b32 s3, v40')
    a(f'v_lshlrev_b32 v{vLANE16}, 4, v41')
    a('v_lshlrev_b32 v42, 4, v0')
    a('v_and_b32 v44, 15, v41')
    a('v_lshrrev_b32 v45, 4, v41')
    a(f'v_lshlrev_b32 v{vLPH}, 4, v45')
    a('s_and_b32 s60, s3, 3')
    a('s_lshl_b32 s60, s60, 4')
    a('v_add_u32 v46, s60, v44')
    a(f'v_lshl_add_u32 v64, v46, 9, v{vLPH}')
    a(f'v_lshl_add_u32 v65, v46, 7, v{vLPH}')
    a('v_lshrrev_b32 v43, 2, v42')
    a('s_waitcnt lgkmcnt(0)')
    if opt.tr0:
        tr_init(a)
        if opt.tr:
            a('s_mov_b32 m0, s27')
            a('s_add_u32 s27, s27, 1')
            a('s_lshl_b32 s90, s90, 6')
            a('s_or_b32 s90, s90, 49')
            a('v_writelane_b32 v11, s90, m0')
        tr(a, 48)
    srd(a, 72, 6, 0, N*6)
    srd(a, sP4, 6, 0, 0 if 'P' in opt.diag else N*6)
    a('s_lshr_b32 s63, s2, 3')
    def group():
        a('s_sub_u32 s61, s60, 37')
        a('s_cmp_ge_u32 s60, 37')
        a('s_cselect_b32 s60, s61, s60')
        a('s_lshl_b32 s61, s60, 12')
        a('s_mov_b32 m0, s61')
        a(f's_add_u32 s60, s60, {group.step}')
        for k in range(4):
            a(f'buffer_load_dwordx4 v{vLANE16}, s[72:75], s61 offen offset:{1024*k} lds')
    NG = opt.ng0
    a('s_add_u32 s60, s63, s3')
    group.step = 8
    for i in range(opt.g1st): group()
    srd(a, 76, 14, 0, 8192)
    a('s_lshl_b32 s61, s3, 10')
    a(f's_add_u32 m0, s61, {K1_W1}')
    a('s_nop 0')
    a(f'buffer_load_dwordx4 v{vLANE16}, s[76:79], s61 offen lds')
    srd(a, sRES, 4, 0, R*512, mul=R*512)
    S = 68
    a('s_cmp_lt_u32 s3, 4')
    a('s_cbranch_scc1 L1_nos')
    a(f'buffer_load_dwordx4 v[{S}:{S+3}], v64, s[{sRES}:{sRES+3}], 0 offen {opt.ssc}')
    a(f'buffer_load_dwordx4 v[{S+4}:{S+7}], v64, s[{sRES}:{sRES+3}], 0 offen offset:64 {opt.ssc}')
    a(f'v_add_u32 v64, {64*512}, v64')
    a(f'buffer_load_dwordx4 v[{S+8}:{S+11}], v64, s[{sRES}:{sRES+3}], 0 offen {opt.ssc}')
    a(f'buffer_load_dwordx4 v[{S+12}:{S+15}], v64, s[{sRES}:{sRES+3}], 0 offen offset:64 {opt.ssc}')
    a.label('L1_nos', settle=False)
    SRC, DST = 48, 56
    srd(a, 64, 8, 0, CH*4, mul=CH*4)
    srd(a, 68, 10, 0, CH*4, mul=CH*4)
    nt = 'nt' if opt.nt_edges else ''
    a('v_lshrrev_b32 v47, 1, v42')
    a('v_add_u32 v47, 8192, v47')
    a(f'buffer_load_dwordx4 v[{SRC}:{SRC+3}], v42, s[64:67], 0 offen {nt}')
    a(f'buffer_load_dwordx4 v[{DST}:{DST+3}], v42, s[68:71], 0 offen {nt}')
    a(f'buffer_load_dwordx2 v[{SRC+4}:{SRC+5}], v47, s[64:67], 0 offen {nt}')
    a(f'buffer_load_dwordx2 v[{DST+4}:{DST+5}], v47, s[68:71], 0 offen {nt}')
    a(f'v_add_u32 v47, {12288 - 512}, v43')
    a('s_sub_u32 s61, s3, 2')
    a('s_cmp_lt_u32 s61, 2')
    a('s_cselect_b32 s62, 0, 0x40000000')
    a('v_add_u32 v47, s62, v47')
    a(f'buffer_load_dword v{SRC+6}, v47, s[64:67], 0 offen {nt}')
    a(f'buffer_load_dword v{DST+6}, v47, s[68:71], 0 offen {nt}')
    a(f's_add_u32 s88, s24, {EPOCH_OFF}')
    a('s_addc_u32 s89, s25, 0')
    a(f's_load_dword s{sEP}, s[88:89], 0')
    a(f's_load_dwordx2 s[{sF}:{sF+1}], s[12:13], 0')
    for i in range(NG - opt.g1st): group()
    if not opt.tr0: tr_init(a)
    tr(a, 1)
    a('v_mov_b32 v40, 0')
    a(f'v_add_u32 v47, {K1_CNT}, v43')
    a('s_cmp_ge_u32 s3, 5')
    a('s_cbranch_scc1 L1_nozero')
    a('ds_write_b32 v47, v40')
    a.label('L1_nozero', settle=False)
    a(f's_waitcnt vmcnt({6 + 4*(NG - opt.g1st)}) lgkmcnt(0)')
    a('s_mov_b32 s84, -100')
    a(f's_mov_b32 s85, {K1_CNT}')
    a(f's_mov_b32 s86, {L_STAGE}')
    a('v_mov_b32 v47, 80')
    a('s_barrier')
    tr(a, 2)
    a('s_cmp_ge_u32 s3, 4')
    a('s_cbranch_scc1 L1_hpath')
    AS, AD = 64, 72
    BINC, BINS, ENT = 80, 88, 96
    P = 104
    RK1 = 136
    def prep(i):
        a(f'v_mul_u32_u24 v40, 5243, v{DST+i}')
        a(f'v_mul_u32_u24 v{AS+i}, 6, v{SRC+i}')
        a(f'v_lshrrev_b32 v40, 19, v40')
        a(f'v_mul_u32_u24 v{AD+i}, 6, v{DST+i}')
        a(f'v_mad_i32_i24 v41, v40, s84, v{DST+i}')
        a(f'v_lshl_add_u32 v{BINC+i}, v40, 2, s85')
        a(f'v_lshl_or_b32 v{ENT+i}, v{SRC+i}, 9, v41')
        a(f'v_mad_u32_u24 v{BINS+i}, v40, v47, s86')
        a(f'v_and_b32 v{SRC+i}, -4, v{AS+i}')
        a(f'v_and_b32 v{DST+i}, -4, v{AD+i}')
    a('s_add_u32 s60, s63, s3')
    a(f's_add_u32 s60, s60, {8*NG}')
    a('s_sub_u32 s61, s60, 37')
    a('s_cmp_ge_u32 s60, 37')
    a('s_cselect_b32 s60, s61, s60')
    group.step = 4
    rest = 37 - 8*NG
    for i in range((rest + 3)//4):
        if 4*i + 3 >= rest:
            a(f's_cmp_ge_u32 s3, {rest - 4*i}')
            a('s_cbranch_scc1 L1_tabdone')
        group()
        if opt.ilv and i == opt.ilv - 1:
            a(f's_waitcnt vmcnt({4*(NG - opt.g1st) + 4*opt.ilv})')
            prep(0); prep(1)
        if opt.ilv and i == opt.ilv: prep(2); prep(3)
        if opt.ilv and i == opt.ilv + 1: prep(4); prep(5); prep(6)
    a.label('L1_tabdone', settle=False)
    if opt.fine: tr(a, 54)
    a(f's_waitcnt vmcnt({4*(NG - opt.g1st) + 4*(rest//4)})')
    a('s_branch L1_consts')
    a.label('L1_hpath', settle=False)
    if opt.hprio: a(f's_setprio {opt.hprio}')
    srd(a, 76, 24, H_OFF, R*128, mul=R*128)
    a('v_lshrrev_b32 v66, 2, v44')
    a('v_lshl_add_u32 v66, v45, 3, v66')
    a('v_and_b32 v67, 3, v44')
    a('v_lshlrev_b32 v67, 3, v67')
    a('v_lshl_add_u32 v66, v66, 7, v67')
    a(f'v_add_u32 v66, {K1_W1}, v66')
    FR = 100
    for ht in range(4):
        for ks in range(2):
            r = FR + (ht*2+ks)*4
            if ht == 3 and ks == 0: a('s_waitcnt lgkmcnt(4)')
            for hf in range(2):
                a(f'ds_read_b64_tr_b16 v[{r+2*hf}:{r+2*hf+1}], v66 offset:{ks*4096 + ht*32 + hf*512}')
    D = 132; O = 148; Tt = 164
    a('s_waitcnt lgkmcnt(0)')
    for t in range(2):
        if t == 1:
            a('s_cmp_eq_u32 s3, 7')
            a.br('s_cbranch_scc1 L1_hdone')
        for ht in range(4):
            a(f'v_mfma_f32_16x16x32_bf16 v[{D+4*ht}:{D+4*ht+3}], v[{FR+ht*8}:{FR+ht*8+3}], v[{S+8*t}:{S+8*t+3}], 0')
            a(f'v_mfma_f32_16x16x32_bf16 v[{D+4*ht}:{D+4*ht+3}], v[{FR+ht*8+4}:{FR+ht*8+7}], v[{S+8*t+4}:{S+8*t+7}], v[{D+4*ht}:{D+4*ht+3}]')
        for grp in range(4):
            for i in range(4): a(f'v_cvt_pk_bf16_f32 v{D+4*grp+i}, 0, v{D+4*grp+i}')
            for i in range(4): a(f'v_mul_f32 v{Tt+i}, {fl(-1.4426950408889634)}, v{D+4*grp+i}')
            for i in range(4): a(f'v_exp_f32 v{Tt+i}, v{Tt+i}')
            for i in range(4): a(f'v_add_f32 v{Tt+i}, 1.0, v{Tt+i}')
            for i in range(4): a(f'v_rcp_f32 v{Tt+i}, v{Tt+i}')
            for i in range(4): a(f'v_mul_f32 v{Tt+i}, v{Tt+i}, v{D+4*grp+i}')
            a(f'v_cvt_pk_bf16_f32 v{O+8*t+2*grp}, v{Tt}, v{Tt+1}')
            a(f'v_cvt_pk_bf16_f32 v{O+8*t+2*grp+1}, v{Tt+2}, v{Tt+3}')
        if t == 0:
            O2 = O
        else:
            pass
    a.label('L1_hdone')
    if opt.fine: tr(a, 57)
    a(f'buffer_store_dwordx4 v[{O}:{O+3}], v65, s[76:79], 0 offen sc1')
    a(f'buffer_store_dwordx4 v[{O+4}:{O+7}], v65, s[76:79], 0 offen offset:64 sc1')
    a(f'v_add_u32 v65, {64*128}, v65')
    a(f'buffer_store_dwordx4 v[{O+8}:{O+11}], v65, s[76:79], 0 offen sc1')
    a(f'buffer_store_dwordx4 v[{O+12}:{O+15}], v65, s[76:79], 0 offen offset:64 sc1')
    a(f's_waitcnt vmcnt({4*(NG - opt.g1st) + 4})')
    if opt.ilv:
        for i in range(7): prep(i)
    a.label('L1_consts')
    if opt.fine: tr(a, 55)
    a('s_waitcnt lgkmcnt(0)')
    a(f's_add_u32 s{sEP}, s{sEP}, 1')
    for j in (1, 2, 3):
        a(f's_lshr_b32 s60, s{sEP}, {10*(j-1)}')
        a('s_lshl_b32 s61, s60, 24')
        a('s_lshr_b32 s60, s60, 1')
        a('s_and_b32 s60, s60, 0x180')
        a(f's_or_b32 s{sNB+j}, s60, s61')
    a(f's_xor_b32 s{sNB}, s{sNB+1}, 0xff000180')
    srd(a, sW2F, 16, 0, 64*192*2)
    srd(a, sWRR, 18, 0, 4*192*2)
    a(f'v_mov_b32 v{vMHI}, 0xffff0000')
    a('v_lshrrev_b32 v43, 2, v0')
    a('v_and_b32 v40, 0xf0, v43')
    a('v_bfe_u32 v46, v43, 1, 3')
    a('v_or_b32 v40, v40, v46')
    a('v_and_b32 v46, 1, v43')
    a('v_lshl_or_b32 v40, v46, 3, v40')
    a('v_and_b32 v46, 3, v0')
    a(f'v_lshlrev_b32 v{pPA}, 4, v46')
    a(f'v_lshlrev_b32 v{pHC}, 2, v40')
    a(f'v_add_u32 v{pHC}, {K1_CNT}, v{pHC}')
    a('v_mul_u32_u24 v40, 80, v40')
    a(f'v_add_u32 v40, v40, v{pPA}')
    a(f'v_add_u32 v{pLDS}, {L_STAGE}, v40')
    a(f'v_lshlrev_b32 v{pOFA}, 4, v0')
    a(f'v_add_u32 v{pOFB}, 8192, v{pOFA}')
    a(f'v_mov_b32 v{pME}, {M_ENT}')
    a(f'v_mov_b32 v{pM0}, {M_HDR}')
    a(f'v_cmp_eq_u32 s[{sPC0}:{sPC0+1}], 0, v46')
    a(f'v_add_u32 v{pHS}, {K1_CNT}, v{vLANE16}')
    a(f'v_cndmask_b32_e64 v{pM0}, v{pME}, v{pM0}, s[{sPC0}:{sPC0+1}]')
    a(f'v_not_b32 v{pN0}, v{pM0}')
    a(f'v_and_b32 v{pT0}, s{sNB}, v{pN0}')
    if opt.fine: tr(a, 56)
    a(f's_mov_b32 s60, {fl([opt.thr, 24.07, 23.9][opt.exact])}')
    if not opt.ilv:
        for i in range(7): prep(i)
    a(f's_mul_i32 s87, s2, {R}')
    a(f'v_lshrrev_b32 v41, 4, v{vLANE16}')
    a('v_add_u32 v132, s87, v41')
    a('v_add_u32 v133, 64, v132')
    for h in range(2):
        a(f'v_mul_u32_u24 v{132+h}, 6, v{132+h}')
        a(f'v_and_b32 v{134+h}, -4, v{132+h}')
    a('v_mov_b32 v46, 1')
    for _ in range(opt.pad1): a('v_lshlrev_b32 v40, 1, v40')
    if opt.hprio: a('s_setprio 0')
    tr(a, 3)
    a('s_cmp_ge_u32 s3, 4')
    a('s_cbranch_scc1 L1_b1')
    a('s_waitcnt vmcnt(0)')
    a.label('L1_b1', settle=False)
    a('s_waitcnt vmcnt(4) lgkmcnt(0)')
    a('s_barrier')
    tr(a, 4)
    def reads(i):
        a(f'ds_read2_b32 v[{P+4*i}:{P+4*i+1}], v{SRC+i} offset1:1')
        a(f'ds_read2_b32 v[{P+4*i+2}:{P+4*i+3}], v{DST+i} offset1:1')
    def test(i):
        p, q = P+4*i, P+4*i+2
        a(f'v_alignbyte_b32 v40, v{p+1}, v{p}, v{AS+i}')
        a(f'v_alignbyte_b32 v41, v{p+1}, v{p+1}, v{AS+i}')
        a(f'v_alignbyte_b32 v42, v{q+1}, v{q}, v{AD+i}')
        a(f'v_alignbyte_b32 v43, v{q+1}, v{q+1}, v{AD+i}')
        a(f'v_lshlrev_b32 v{p}, 16, v40')
        a(f'v_lshlrev_b32 v{q}, 16, v42')
        a(f'v_and_b32 v40, v{vMHI}, v40')
        a(f'v_and_b32 v42, v{vMHI}, v42')
        a(f'v_lshlrev_b32 v41, 16, v41')
        a(f'v_lshlrev_b32 v43, 16, v43')
        a(f'v_sub_f32 v{p}, v{p}, v{q}')
        a(f'v_sub_f32 v40, v40, v42')
        a(f'v_sub_f32 v41, v41, v43')
        if opt.exact == 2:
            for r in (p, 40, 41): a(f'v_cvt_pk_bf16_f32 v{r}, 0, v{r}')
            for r in (p, 40, 41): a(f'v_mul_f32 v{r}, v{r}, v{r}')
            for r in (p, 40, 41): a(f'v_cvt_pk_bf16_f32 v{r}, 0, v{r}')
            a(f'v_add_f32 v{p}, v{p}, v40')
            a(f'v_add_f32 v{p}, v{p}, v41')
            a(f'v_cvt_pk_bf16_f32 v{p}, 0, v{p}')
        else:
            if opt.exact == 1:
                for r in (p, 40, 41): a(f'v_cvt_pk_bf16_f32 v{r}, 0, v{r}')
            a(f'v_mul_f32 v{p}, v{p}, v{p}')
            a(f'v_fmac_f32 v{p}, v40, v40')
            a(f'v_fmac_f32 v{p}, v41, v41')
        a(f'v_cmp_ngt_f32 s[{64+2*i}:{65+2*i}], v{p}, s60')
    def rank(i):
        a(f's_mov_b64 exec, s[{64+2*i}:{65+2*i}]')
        a(f'ds_add_rtn_u32 v{RK1+i}, v{BINC+i}, v46')
        a('s_mov_b64 exec, -1')
    for i in range(6): reads(i)
    if opt.prewr:
        srd(a, 88, 24, SLOT_OFF, 16384, mul=SS)
        for k in range(4): a(f'v_mov_b32 v{168+k}, 0')
        for h in range(2):
            a(f'buffer_store_dwordx4 v[168:171], v{pOFA+h}, s[88:91], 0 offen sc1')
    if opt.pfres:
        a(f's_lshl_b32 s84, s3, 12')
        for k in range(4):
            a(f'buffer_load_dwordx4 v[164:167], v{vLANE16}, s[{sRES}:{sRES+3}], s84 offen offset:{1024*k}')
        if opt.pfres > 1:
            a('s_add_u32 s84, s84, 32768')
            for k in range(4):
                a(f'buffer_load_dwordx4 v[164:167], v{vLANE16}, s[{sRES}:{sRES+3}], s84 offen offset:{1024*k}')
    if opt.prew or opt.pfw:
        a('s_sub_u32 s84, s3, 4')
        a('s_cmp_ge_u32 s84, 3')
        a('s_cbranch_scc1 L1_notouch')
    if opt.pfw:
        a('s_lshr_b32 s85, s2, 3')
        a('s_mul_i32 s85, s85, 768')
        a('s_lshl_b32 s86, s84, 8')
        a('s_add_u32 s85, s85, s86')
        a(f'v_and_b32 v47, 0xf0, v{vLANE16}')
        a('v_add_u32 v47, s85, v47')
        a(f'buffer_load_dwordx4 v[168:171], v47, s[{sW2F}:{sW2F+3}], 0 offen')
    if opt.prew:
        srd(a, 88, 24, SLOT_OFF, 16384, mul=SS)
        a(f'v_subrev_u32 v47, 4096, v{pOFA}')
        for k in range(6):
            a('buffer_load_dwordx4 v[168:171], v47, s[88:91], 0 offen')
            if k < 5: a('v_add_u32 v47, 3072, v47')
        a(f's_mov_b32 s{sROUND}, 0')
    if opt.prew or opt.pfw:
        a.label('L1_notouch', settle=False)
    a('s_mov_b64 s[76:77], 0')
    a('s_sub_u32 s84, s3, 2')
    a('s_cmp_lt_u32 s84, 2')
    a('s_cbranch_scc0 L1_six')
    a('s_waitcnt lgkmcnt(10)')
    test(0)
    reads(6)
    a('s_waitcnt lgkmcnt(0)')
    test(6)
    a.br('s_branch L1_rest')
    a.label('L1_six')
    a('s_cmp_lg_u32 s3, 7')
    a('s_cbranch_scc1 L1_notw7')
    a('s_waitcnt lgkmcnt(8)')
    for h in range(2):
        a(f'ds_read2_b32 v[{152+2*h}:{153+2*h}], v{134+h} offset1:1')
    a('s_waitcnt lgkmcnt(0)')
    for h in range(2):
        a(f'v_alignbyte_b32 v{156+2*h}, v{153+2*h}, v{152+2*h}, v{132+h}')
        a(f'v_alignbyte_b32 v{157+2*h}, v{153+2*h}, v{153+2*h}, v{132+h}')
        a(f'v_lshlrev_b32 v{144+4*h}, 16, v{156+2*h}')
        a(f'v_and_b32 v{145+4*h}, v{vMHI}, v{156+2*h}')
        a(f'v_lshlrev_b32 v{146+4*h}, 16, v{157+2*h}')
        a(f'v_mov_b32 v{147+4*h}, 0')
    a.label('L1_notw7')
    a('s_waitcnt lgkmcnt(10)')
    test(0)
    a.label('L1_rest')
    for i in range(1, 6):
        a(f's_waitcnt lgkmcnt({2*(5-i)})')
        test(i)
    for i in (6, 0, 1, 2, 3, 4, 5):
        a(f's_mov_b64 exec, s[{64+2*i}:{65+2*i}]')
        a(f'ds_add_rtn_u32 v{RK1+i}, v{BINC+i}, v46')
    a('s_mov_b64 exec, -1')
    for _ in range(opt.pad2): a('v_lshlrev_b32 v40, 1, v40')
    a('s_waitcnt lgkmcnt(0)')
    a('s_barrier')
    tr(a, 5)
    a(f's_mul_i32 s{sT0}, s3, 3072')
    a(f's_add_u32 m0, s{sT0}, {L_W2R}')
    a(f's_lshl_b32 s{sT1}, s3, 10')
    a(f's_min_u32 s{sT2}, s{sT1}, 2048')
    for i in range(3):
        a(f'buffer_load_dwordx4 v{vLANE16}, s[{sW2F}:{sW2F+3}], s{sT0} offen offset:{1024*i} lds')
    a(f's_add_u32 m0, s{sT2}, {L_WRR}')
    a(f'ds_read_b128 v[104:107], v{pHS}')
    a(f'buffer_load_dwordx4 v{vLANE16}, s[{sWRR}:{sWRR+3}], s{sT1} offen lds')
    a(f'ds_read_b32 v108, v{pHC}')
    a(f'ds_read_b32 v109, v{pHC} offset:512')
    if opt.fine: tr(a, 50)
    for i in range(7):
        a(f'v_min_u32 v40, {CAP}, v{RK1+i}')
        a(f'v_lshl_add_u32 v{BINS+i}, v40, 2, v{BINS+i}')
    for i in range(7):
        a(f's_mov_b64 exec, s[{64+2*i}:{65+2*i}]')
        a(f'ds_write_b32 v{BINS+i}, v{ENT+i} offset:4')
    a('s_mov_b64 exec, -1')
    if opt.fine: tr(a, 51)
    def zero_counters(tag):
        a('s_cmp_ge_u32 s3, 2')
        a(f's_cbranch_scc1 L2_nozero{tag}')
        a('v_lshlrev_b32 v42, 2, v0')
        a('v_mov_b32 v44, 0')
        a(f'ds_write_b32 v42, v44 offset:{L_NCNT}')
        a.label(f'L2_nozero{tag}', settle=False)
    zero_counters('a')
    a('s_cmp_lg_u32 s3, 7')
    a('s_cbranch_scc1 L1_join')
    for h in range(2):
        a(f'ds_write_b128 v{vLANE16}, v[{144+4*h}:{147+4*h}] offset:{L_DPOS + 1024*h}')
    a.label('L1_join', settle=False)
    srd(a, 84, 24, SLOT_OFF, 16384, mul=SS)
    if opt.fine: tr(a, 52)
    n7 = 4 + [0, 4, 8][opt.pfres] + (2 if opt.prewr else 0)
    if opt.prew or opt.pfw:
        a('s_cmp_lg_u32 s3, 7')
        a('s_cbranch_scc1 L1_b3')
        a(f's_waitcnt vmcnt({n7})')
        a.label('L1_b3', settle=False)
    a('s_waitcnt vmcnt(%d) lgkmcnt(0)' % (n7 + (6 if opt.prew else 0) + (1 if opt.pfw else 0)))
    if opt.fine: tr(a, 53)
    a('v_max3_u32 v104, v104, v105, v106')
    a('v_max_u32 v104, v104, v107')
    a(f'v_cmp_lt_u32 vcc, {CAP}, v104')
    a('s_barrier')
    tr(a, 6)
    W = V
    a(f'ds_read_b128 v[{W}:{W+3}], v{pLDS}')
    a(f'ds_read_b128 v[{W+4}:{W+7}], v{pLDS} offset:{128*80}')
    a('s_cbranch_vccnz L1_ovf')
    a.label('L1_noovf', settle=False)
    for h in range(2):
        a(f's_waitcnt lgkmcnt({1-h})')
        a(f'v_cndmask_b32_e64 v{W+4*h}, v{W+4*h}, v{108+h}, s[{sPC0}:{sPC0+1}]')
        for j in (1, 2, 3):
            a(f'v_and_or_b32 v{W+4*h+j}, v{W+4*h+j}, v{pME}, s{sNB+j}')
        a(f'v_and_or_b32 v{W+4*h}, v{W+4*h}, v{pM0}, v{pT0}')
        a(f'buffer_store_dwordx4 v[{W+4*h}:{W+4*h+3}], v{pOFA+h}, s[84:87], 0 offen {opt.dumpsc}')
    tr(a, 7)
    consts_poll(a)
    if opt.wb == 1:
        emit_Q(a, vLPV, 44, 40) if False else None
    def res_image(tag):
        if tag == 'b':
            a(f'v_lshrrev_b32 v40, 9, v{vLANE16}')
            for k in range(4):
                a(f'v_add_u32 v{pRS+k}, {2*k}, v40')
                a(f'v_lshlrev_b32 v{pRS+k}, 5, v{pRS+k}')
                a(f'v_xor_b32 v{pRS+k}, v{pRS+k}, v{vLANE16}')
        a(f's_lshl_b32 s{sT0}, s3, 12')
        a(f's_add_u32 m0, s{sT0}, {L_RES}')
        a('s_cmp_ge_u32 s3, 5')
        for k in range(4):
            a(f'buffer_load_dwordx4 v{pRS+k}, s[{sRES}:{sRES+3}], s{sT0} offen offset:{1024*k} sc1 lds')
        a(f's_cbranch_scc1 L2_resdone{tag}')
        a(f's_add_u32 s{sT0}, s{sT0}, 32768')
        a(f's_add_u32 m0, s{sT0}, {L_RES}')
        a('s_cmp_eq_u32 s3, 4')
        for k in range(4):
            if k == 2: a(f's_cbranch_scc1 L2_resdone{tag}')
            a(f'buffer_load_dwordx4 v{pRS+k}, s[{sRES}:{sRES+3}], s{sT0} offen offset:{1024*k} sc1 lds')
        a.label(f'L2_resdone{tag}', settle=False)
    a(f's_mov_b32 s61, {1 << opt.spin}')
    a('s_waitcnt vmcnt(2)')
    a('s_barrier')
    tr(a, 23)
    if opt.wb == 1:
        consts_late(a); build_weights(a)
    if opt.wb == 2: consts_late(a)
    if opt.res_when == 'drain':
        res_image('a')
        a('s_waitcnt vmcnt(4)')
    elif opt.drain:
        a('s_waitcnt vmcnt(0)')
    else:
        a('s_nop 1')
    tr(a, 8)
    a(f'buffer_load_dwordx4 v[{W}:{W+3}], v{pPA}, s[{sSLOT}:{sSLOT+3}], 0 offen sc1')
    a(f'buffer_load_dwordx4 v[{W+4}:{W+7}], v{pPB}, s[{sSLOT}:{sSLOT+3}], 0 offen sc1')
    if opt.res_when == 'mid': res_image('a')
    if opt.wb == 0: consts_late(a)
    if opt.wb != 1: build_weights(a)
    a('s_waitcnt vmcnt(4)' if opt.res_when == 'mid' else 's_waitcnt vmcnt(0)')
    a.label('L2_poll')
    if opt.fine: tr(a, 24)
    for h in range(2):
        w = W + 4*h
        a(f'v_xor_b32 v{61+h}, v{pT0}, v{w}')
        a(f'v_and_b32 v{61+h}, v{pN0}, v{61+h}')
        for j in (1, 2, 3):
            a(f'v_xor_b32 v63, s{sNB+j}, v{w+j}')
            a(f'v_and_or_b32 v{61+h}, v63, v{pNE}, v{61+h}')
    a('v_cmp_ne_u32 vcc, 0, v61')
    a('v_cmp_ne_u32 s[66:67], 0, v62')
    a('s_and_b64 s[66:67], s[66:67], s[64:65]')
    a('s_or_b64 s[68:69], s[66:67], vcc')
    a.br('s_cbranch_scc0 L2_polled')
    a('s_sub_u32 s61, s61, 1')
    a('s_cmp_eq_u32 s61, 0')
    a.br('s_cbranch_scc1 L2_polled')
    if opt.sleep: a(f's_sleep {opt.sleep}')
    if opt.pollmask:
        a('s_mov_b64 exec, vcc')
        a('s_cbranch_execz L2_nopollA')
    a(f'buffer_load_dwordx4 v[{W}:{W+3}], v{pPA}, s[{sSLOT}:{sSLOT+3}], 0 offen sc1')
    if opt.pollmask:
        a.label('L2_nopollA', settle=False)
        a('s_mov_b64 exec, s[66:67]')
        a('s_cbranch_execz L2_nopollB')
    a(f'buffer_load_dwordx4 v[{W+4}:{W+7}], v{pPB}, s[{sSLOT}:{sSLOT+3}], 0 offen sc1')
    if opt.pollmask:
        a.label('L2_nopollB', settle=False)
        a('s_mov_b64 exec, -1')
    a('s_waitcnt vmcnt(0)')
    a.br('s_branch L2_poll')
    a.label('L2_polled')
    tr(a, 9)
    if opt.res_when == 'post': res_image('a')
    LIM, CNT = 56, 58
    a(f'v_mov_b32_dpp v{CNT}, v{W} quad_perm:[0,0,0,0] row_mask:0xf bank_mask:0xf')
    a(f'v_mov_b32_dpp v{CNT+1}, v{W+4} quad_perm:[0,0,0,0] row_mask:0xf bank_mask:0xf')
    for h in range(2):
        a(f'v_and_b32 v{CNT+h}, 0xfff, v{CNT+h}')
        a(f'v_min_u32 v{LIM+h}, {CAP}, v{CNT+h}')
        a(f'v_subrev_u32 v{CNT+h}, {CAP}, v{CNT+h}')
    a.label('L2_round')
    A = 60; RK = 68; T = 76
    a('v_mov_b32 v40, 1')
    a(f's_mov_b32 s60, {L_NCNT}')
    for i in range(4):
        a(f'v_add_u32 v{41+i}, {i}, v39')
    for i in range(8):
        a(f'v_cmp_lt_u32 s[{64+2*i}:{65+2*i}], v{41 + (i & 3)}, v{LIM + i//4}')
        a(f'v_and_b32 v{A+i}, 127, v{W+i}')
        a(f'v_lshl_add_u32 v{A+i}, v{A+i}, 2, s60')
    if opt.fine: tr(a, 61)
    a(f'v_max_i32 v41, v{CNT}, v{CNT+1}')
    a('v_cmp_lt_i32 vcc, 0, v41')
    for i in range(8):
        a(f's_mov_b64 exec, s[{64+2*i}:{65+2*i}]')
        a(f'ds_add_rtn_u32 v{RK+i}, v{A+i}, v40')
    a('s_mov_b64 exec, -1')
    if opt.res_when == 'post2':
        a(f's_cmp_lg_u32 s{sROUND}, 0')
        a('s_cbranch_scc1 L2_resdonea')
        res_image('a')
    a('s_cbranch_vccz L2_noflag')
    a(f'v_mov_b32 v41, {L_NCNT + 127*4}')
    a('ds_write_b32 v41, v40')
    a.label('L2_noflag', settle=False)
    for i in range(8):
        a(f'v_and_b32 v{W+i}, {M_ENT}, v{W+i}')
    for _ in range(opt.pad3): a('v_lshlrev_b32 v41, 1, v41')
    a('s_waitcnt lgkmcnt(0)')
    a('s_barrier')
    tr(a, 10)
    a(f's_cmp_lg_u32 s{sROUND}, 0')
    a.br('s_cbranch_scc1 L2_now2f')
    if opt.res_when == 'late': res_image('a')
    a('s_or_b32 s60, s2, s3')
    a('s_cmp_lg_u32 s60, 0')
    a.br('s_cbranch_scc1 L2_now2f')
    srd(a, 84, 24, EPOCH_OFF, 4)
    a(f'v_mov_b32 v43, s{sEP}')
    a('s_mov_b64 exec, 1')
    a('buffer_store_dword v43, off, s[84:87], 0 sc1')
    a('s_mov_b64 exec, -1')
    a.label('L2_now2f')
    if opt.pfv: a('v_mov_b32 v44, 0x40000000')
    for i in opt.pfv:
        a(f'v_and_b32 v45, 0xfffe00, v{W+i}')
        a(f'v_cndmask_b32_e64 v45, v44, v45, s[{64+2*i}:{65+2*i}]')
        for j in range(3*opt.pfn):
            a(f'buffer_load_dword v255, v45, s[{sSV}:{sSV+3}], 0 offen offset:{128 + j*128//opt.pfn}')
        if opt.pfh:
            a('v_lshrrev_b32 v45, 2, v45')
            a(f'buffer_load_dword v255, v45, s[{sH}:{sH+3}], 0 offen {opt.hsc}')
    a(f'v_lshrrev_b32 v41, 2, v{vLANE16}')
    a(f'v_add_u32 v41, {L_NCNT}, v41')
    a('ds_read2st64_b32 v[42:43], v41 offset1:1')
    a('s_waitcnt lgkmcnt(0)')
    a(f'v_readlane_b32 s{sMORE}, v43, 63')
    a('v_lshl_or_b32 v42, v43, 16, v42')
    a('v_mov_b32 v43, v42')
    for sh in ('row_shr:1', 'row_shr:2', 'row_shr:4', 'row_shr:8'):
        a(f'v_add_u32_dpp v43, v43, v43 {sh} row_mask:0xf bank_mask:0xf')
    a('v_add_u32_dpp v43, v43, v43 row_bcast:15 row_mask:0xa bank_mask:0xf')
    a('v_add_u32_dpp v43, v43, v43 row_bcast:31 row_mask:0xc bank_mask:0xf')
    a(f'v_readlane_b32 s{sT0}, v43, 63')
    a('v_sub_u32 v43, v43, v42')
    a(f's_and_b32 s{sT0}, s{sT0}, 0xffff')
    a(f'v_and_b32 v{vSTLO}, 0xffff, v43')
    a(f'v_lshrrev_b32 v{vSTHI}, 16, v43')
    a(f'v_add_u32 v{vSTHI}, s{sT0}, v{vSTHI}')
    if opt.fine: tr(a, 58)
    a(f'ds_write2st64_b32 v41, v{vSTLO}, v{vSTHI} offset0:2 offset1:3')
    for i in range(8):
        a(f'ds_read_b32 v{T+i}, v{A+i} offset:512')
    a(f'v_lshl_or_b32 v{vPACK}, v{vSTHI}, 16, v{vSTLO}')
    for i in range(8):
        if i % 4 == 0:
            a(f's_waitcnt lgkmcnt({4 - i})')
            for k in range(i, i+4): a(f'v_add_lshl_u32 v{T+k}, v{T+k}, v{RK+k}, 2')
        a(f's_mov_b64 exec, s[{64+2*i}:{65+2*i}]')
        a(f'ds_write_b32 v{T+i}, v{W+i} offset:{L_SORT}')
        if i % 4 == 3: a('s_mov_b64 exec, -1')
    for k, (st, d) in enumerate(((vSTLO, 32), (vSTHI, 32), (vSTLO, 64), (vSTHI, 64))):
        a(f'v_add_u32 v{T+k}, {d}, v{st}')
        a(f'v_lshlrev_b32 v{T+4+k}, 2, v{T+k}')
    a(f'v_readlane_b32 s{sT2}, v{vSTHI}, {R - 64}')
    a(f'v_lshrrev_b32 v40, 4, v{vLANE16}')
    a('v_add_u32 v41, 64, v40')
    a(f'v_mov_b32 v46, {R}')
    a(f's_mov_b32 s{sNC}, 0')
    a(f's_mov_b32 s{sC64}, s3')
    if opt.fine: tr(a, 59)
    a('s_waitcnt vmcnt(%d) lgkmcnt(0)' % (len(opt.pfv)*(3*opt.pfn + (1 if opt.pfh else 0))))
    if opt.fine: tr(a, 60)
    a('s_barrier')
    tr(a, 21)
    for k in (2, 3, 0, 1):
        a(f'ds_read_b32 v{T+4+k}, v{T+4+k} offset:{L_SORT}')
    for k in range(4):
        a(f'v_cmp_gt_u32 s[{64+2*k}:{65+2*k}], s{sT2}, v{T+k}')
    a('v_add_u32 v42, 1, v40')
    a('v_add_u32 v43, 16, v40')
    a('v_add_u32 v44, 1, v41')
    a('v_add_u32 v45, 16, v41')
    for k in (2, 3, 0, 1):
        r = T + 4 + k
        if k in (2, 0): a(f's_waitcnt lgkmcnt({2 if k == 2 else 0})')
        a(f'v_and_b32 v{r}, 127, v{r}')
        a(f'v_cndmask_b32_e64 v{r}, v46, v{r}, s[{64+2*k}:{65+2*k}]')
        a(f'v_med3_u32 v{r}, v{r}, v{42 + 2*(k & 1)}, v{43 + 2*(k & 1)}')
        a(f'v_min_u32 v{r}, v46, v{r}')
        if k == 3: a(f'v_lshl_or_b32 v{vNX64}, v{T+7}, 16, v{T+6}')
    a(f'v_lshl_or_b32 v{vNX32}, v{T+5}, 16, v{T+4}')
    if opt.fine: tr(a, 42)
    chain_loop(a, vNX64, sC64)
    if opt.fine: tr(a, 43)
    a(f's_cmp_lt_u32 s{sNC}, {R}')
    a.br('s_cbranch_scc0 L2_rounddone')
    if opt.prio: a('s_setprio 3')
    a(f's_mov_b32 s{sN0}, s{sNC}')
    chain_start(a, sE0)
    chain_step(a, vNX64)
    chain_start(a, sE1)
    if opt.cap16:
        g.walk_init(a)
        a(f's_mov_b32 s{g.sTOT}, s{sT2}')
    else:
        a(f's_sub_u32 s{sC64}, 7, s3')
        a(f's_mov_b32 s{sC32}, s3')
    if opt.mini: a.label('L2_issue', settle=False)
    a(f's_sub_u32 s{sNN}, s{sNC}, s{sN0}')
    a(f's_mov_b32 s{sXE0}, s{sE0}')
    a(f's_mov_b32 s{sXE1}, s{sE1}')
    emit(a, next_entry_read(TP))
    emit(a, next_mask(TP+4))
    a('s_waitcnt lgkmcnt(0)')
    if opt.fine: tr(a, 62)
    emit(a, next_stage(TP+4, TP+5))
    emit(a, off_reads(0))
    if opt.hd: emit(a, g.hd_reads())
    emit(a, pos_load(TP+5))
    a('s_waitcnt lgkmcnt(0)')
    emit(a, off_adds())
    emit(a, h_loads())
    if opt.hd: emit(a, g.hd_adds() + g.hd_loads())
    a(f's_mov_b32 s{sFI}, 1')
    if opt.prio: a('s_setprio %d' % {0: 0, 1: 1, 2: 1, 3: 2, 4: 2, 5: 2, 6: 2, 7: 1, 8: 2, 9: 1, 10: 2, 11: 2, 12: 1, 13: 1, 14: 1, 15: 1}[opt.yld])
    if opt.yld in (13, 14, 15):
        a('s_cmp_ge_u32 s3, 4')
        a('s_cbranch_scc1 L2_young')
        a('s_setprio 2')
        a.label('L2_young', settle=False)
    if opt.look: g.lookahead(a)
    tr(a, 22)
    a.br('s_branch L2_head_A')
    head(a, 'B')
    head(a, 'A')
    tail(a, 'toC')
    head(a, 'C')
    newitem(a)
    tail(a, 'toA')
    if opt.mini:
        head(a, 'M')
        tail(a, 'finM')
    tail(a, 'fin')
    a.label('L2_rounddone')
    tr(a, 30)
    a(f's_cmp_eq_u32 s{sMORE}, 0')
    a.br('s_cbranch_scc1 L2_fin')
    a('s_waitcnt vmcnt(0) lgkmcnt(0)')
    a('s_barrier')
    zero_counters('b')
    srd(a, sRES, 20, 0, R*512, mul=R*512)
    res_image('b')
    a('v_lshrrev_b32 v40, 2, v0')
    a(f'v_mul_u32_u24 v41, {SS}, v40')
    a(f'buffer_load_dword v42, v41, s[{sSLOT}:{sSLOT+3}], 0 offen sc1')
    a(f'v_add_u32 v41, {128*SS}, v41')
    a(f'buffer_load_dword v43, v41, s[{sSLOT}:{sSLOT+3}], 0 offen sc1')
    a('v_and_b32 v39, 3, v0')
    a('v_lshlrev_b32 v39, 2, v39')
    a(f's_lshl_b32 s{sT0}, s{sROUND}, 4')
    a(f's_add_u32 s{sT1}, s{sT0}, {CAP}')
    a(f's_add_u32 s{sROUND}, s{sROUND}, 1')
    a(f'v_mul_u32_u24 v40, {CH*4}, v40')
    a('v_lshl_add_u32 v40, v39, 2, v40')
    a(f's_lshl_b32 s{sT0}, s{sT0}, 2')
    a(f'v_add_u32 v40, s{sT0}, v40')
    a('s_waitcnt vmcnt(0)')
    for h in range(2):
        a(f'v_bfe_u32 v44, v{42+h}, 12, 12')
        a(f'v_lshl_add_u32 v44, v44, 2, v40')
        if h: a(f'v_add_u32 v44, {128*CH*4}, v44')
        a(f'buffer_load_dwordx4 v[{W+4*h}:{W+4*h+3}], v44, s[{sOVF}:{sOVF+3}], 0 offen sc1')
        a(f'v_and_b32 v{CNT+h}, 0xfff, v{42+h}')
        a(f'v_subrev_u32 v{CNT+h}, s{sT1}, v{CNT+h}')
        a(f'v_med3_i32 v{LIM+h}, v{CNT+h}, 0, 16')
        a(f'v_subrev_u32 v{CNT+h}, 16, v{CNT+h}')
    a('s_waitcnt vmcnt(0) lgkmcnt(0)')
    a('s_barrier')
    a.br('s_branch L2_round')
    a.label('L2_fin')
    if opt.tr or opt.dbg2:
        a('s_waitcnt vmcnt(0)')
        tr(a, 31)
    tr_dump(a)
    a.label('L_end')
    a('s_endpgm')
    rare_paths(a)


DOC = """;
;
;   * the entries are counting-sorted by node and cut into items of <= 16 nodes and <= 64 (later 32 or 16) edges;
;     accumulated in fp32 on top of the residual row and rounded once;
;"""

def build():
    src = open('gather_scatter__molecular_angular_painn__graph.s.ref').read().split('\n')
    head_ = []
    for ln in src:
        if not ln.startswith(';'): break
        if '@launch' in ln or 'Override launch' in ln or 'grid=ceil' in ln: continue
        head_.append(ln)
    head_.append(f'; @launch grid=({NB},1,1) block=(512,1,1) lds={K1_LDS}')
    head_ += DOC.split('\n')
    a = Asm()
    a.raw('.amdgcn_target "amdgcn-amd-amdhsa--gfx950"\n.text')
    gen(a)
    return '\n'.join(head_) + '\n' + a.text() + '.section .rodata,"a"\n' + descriptor(NAME, 256)

def final_options():
    opt.prio = True; opt.hsc = ''; opt.earlyh = True; opt.prew = False; opt.pfw = False; opt.g1st = 1; opt.yld = 5
    opt.wb = 1; opt.sleep = 0; opt.drain = False; opt.nt_edges = True; opt.outst = 'sc1 nt'; opt.res_when = 'post'
    opt.mini = True; opt.cap16 = 54; opt.earlyst = True

if __name__ == '__main__':
    if 'final' in sys.argv: sys.argv.remove('final'); final_options()
    outp = sys.argv[1]
    for kv in sys.argv[2:]:
        k, val = kv.split('=', 1)
        setattr(opt, k, type(getattr(opt, k))(eval(val)))
    open(outp, 'w').write(build())
```

```python
import sys
from asmlib import Asm
import gen4 as g
from gen4 import *

NAME = 'gather_scatter__molecular_angular_painn__graph_kernel'
SS = 16512
EPOCH_OFF = SLOT_OFF + 250*SS
L_WRR = 125952
L_STAGE = 129024
K1_CNT = 151552; K1_OVB = K1_CNT + 1280; K1_W1 = K1_OVB + 1024; K1_LDS = K1_W1 + 8192
L_W2R = 101376
opt.ng0 = 2; opt.hprio = 2; opt.rawpos = True; opt.pfres = 1; opt.wb = 2; opt.ssc = ''; opt.dbg3 = False; opt.pad1 = 0; opt.pad2 = 0; opt.pad3 = 0; opt.exact = 0; opt.ilv = 0; opt.drain = True; opt.dbg2 = False; opt.prewr = False; opt.g1st = 0; opt.yld = 0; opt.pfv = []; opt.diag = ''; opt.pfn = 2; opt.pfh = False; opt.fine = False; opt.tr0 = False; opt.hsc = 'sc1'; opt.rt = False; opt.spin = 16; opt.pk = True; opt.sleep = 2; opt.res_when = 'pre'; opt.prew = True; opt.pfw = True; opt.pollmask = True; opt.dumpsc = 'sc1'
sNB = 8
sEP = 100
sFI = 86
g.sFI = sFI
pLDS, pOFA, pOFB, pME, pM0, pT0, pPA, pPB, pN0, pNE, pWA, pWD, pWR, pHC, pHS = range(172, 187)
pRS = 188
sWRR = 12
sPC0 = 78
M_ENT = 0x00fffe7f; M_HDR = 0x00ffffff

def tr(a, tag):
    if not opt.tr: return
    a('s_memrealtime s[92:93]' if opt.rt else 's_memtime s[92:93]')
    a('s_mov_b32 m0, s27')
    a('s_add_u32 s27, s27, 1')
    a('s_waitcnt lgkmcnt(0)')
    a('s_lshl_b32 s92, s92, 6')
    a(f's_or_b32 s92, s92, {tag}')
    a('v_writelane_b32 v11, s92, m0')
_tr_plain = tr
DBGMAP = {48: 0, 4: 2, 7: 4, 9: 6, 21: 8, 31: 10}
def tr(a, tag):
    if opt.dbg3:
        if tag not in (48, 7): return
        L = f'Ldbg{tag}'
        a.settle()
        a('s_lshr_b32 s92, s2, 3')
        a('s_lshl_b32 s93, s3, 5')
        a('s_add_u32 s92, s92, s93')
        a('s_cmp_lg_u32 s92, 12')
        a(f's_cbranch_scc1 {L}')
        a('s_memrealtime s[92:93]')
        a('s_and_b32 s27, s2, 7')
        a('s_lshl_b32 s27, s27, 2')
        a('s_mov_b64 s[94:95], exec')
        a('s_mov_b64 exec, 1')
        a('s_waitcnt lgkmcnt(0)')
        a('v_mov_b32 v255, s92')
        a(f'buffer_store_dword v255, off, s[96:99], s27 offset:{0 if tag == 48 else 32}')
        a('s_mov_b64 exec, s[94:95]')
        a.label(L)
        return
    if not opt.dbg2: return _tr_plain(a, tag)
    if tag not in DBGMAP: return
    i = DBGMAP[tag]
    L = f'Ldbg{tag}'
    a.settle()
    a('s_mov_b32 s27, scc') if False else None
    a('s_cmp_lg_u32 s3, 0')
    a(f's_cbranch_scc1 {L}')
    a('s_memrealtime s[92:93]')
    a('s_mov_b64 s[94:95], exec')
    a('s_mov_b64 exec, 1')
    a('s_waitcnt lgkmcnt(0)')
    a('v_mov_b32 v255, s92')
    a(f'buffer_atomic_umax v255, off, s[96:99], 0 offset:{4*i + 4}')
    a('s_not_b32 s92, s92')
    a('s_nop 0')
    a('v_mov_b32 v11, s92')
    a(f'buffer_atomic_umax v11, off, s[96:99], 0 offset:{4*i}')
    a('s_mov_b64 exec, s[94:95]')
    a.label(L)
g.tr = tr
_tr_init = tr_init
def tr_init(a):
    if not (opt.dbg2 or opt.dbg3): return _tr_init(a)
    a('s_load_dwordx2 s[96:97], s[0:1], 72')
    a('s_waitcnt lgkmcnt(0)')
    a('s_mov_b32 s98, 64')
    a('s_mov_b32 s99, 0x20000')

def h_loads():
    if 'h' in opt.diag:
        return [f'buffer_load_dwordx4 v[{H+et*8+ks*4}:{H+et*8+ks*4+3}], v{HOFF+et if ks == 0 else vRES}, s[{sH if ks == 0 else sOVF}:{(sH if ks == 0 else sOVF)+3}], 0 offen offset:{ks*64}'
                for et in range(2) for ks in range(2)]
    return [f'buffer_load_dwordx4 v[{H+et*8+ks*4}:{H+et*8+ks*4+3}], v{HOFF+et}, s[{sH}:{sH+3}], 0 offen offset:{ks*64} {opt.hsc}'
            for et in range(2) for ks in range(2)]
def pos_load(u): return [f'v_and_b32 v{u-1}, -4, v{u}', f'buffer_load_dwordx2 v[{PS}:{PS+1}], v{u-1}, s[{sP4}:{sP4+3}], 0 offen']
g.h_loads = h_loads; g.pos_load = pos_load


def rare_paths(a):
    RK1, BINC, ENT = 136, 80, 96
    a.label('L1_ovf')
    a('s_cmp_ge_u32 s3, 4')
    a.br('s_cbranch_scc1 L1_ovf_based')
    a('v_lshlrev_b32 v40, 2, v0')
    a(f'v_add_u32 v40, {K1_CNT}, v40')
    a('ds_read_b32 v41, v40')
    a('s_waitcnt lgkmcnt(0)')
    a(f'v_cmp_lt_u32 vcc, {CAP}, v41')
    a('s_and_saveexec_b64 s[88:89], vcc')
    a.br('s_cbranch_execz L1_ovf_none')
    a(f'v_subrev_u32 v41, {CAP}, v41')
    a(f'v_mov_b32 v42, {K1_CNT + 1024}')
    a('ds_add_rtn_u32 v43, v42, v41')
    a('s_waitcnt lgkmcnt(0)')
    a(f'ds_write_b32 v40, v43 offset:{K1_OVB - K1_CNT}')
    a.label('L1_ovf_none')
    a('s_mov_b64 exec, s[88:89]')
    a.label('L1_ovf_based')
    a('s_waitcnt lgkmcnt(0)')
    a('s_barrier')
    srd(a, 88, 24, OVF_OFF, CH*4, mul=CH*4)
    for i in range(7):
        a('s_mov_b64 exec, -1')
        a(f'v_cmp_le_u32 vcc, {CAP}, v{RK1+i}')
        a(f's_and_b64 exec, vcc, s[{64+2*i}:{65+2*i}]')
        a.br(f's_cbranch_execz L1_ovf{i}')
        a(f'ds_read_b32 v40, v{BINC+i} offset:{K1_OVB - K1_CNT}')
        a('s_waitcnt lgkmcnt(0)')
        a(f'v_add_u32 v40, v40, v{RK1+i}')
        a(f'v_subrev_u32 v40, {CAP}, v40')
        a('v_lshlrev_b32 v40, 2, v40')
        a(f'buffer_store_dword v{ENT+i}, v40, s[88:91], 0 offen sc1')
        a.label(f'L1_ovf{i}')
    a('s_mov_b64 exec, -1')
    for h in range(2):
        a(f'ds_read_b32 v40, v{pHC} offset:{K1_OVB - K1_CNT + 512*h}')
        a(f'v_cmp_lt_u32 vcc, {CAP}, v{108+h}')
        a('s_waitcnt lgkmcnt(0)')
        a('v_lshlrev_b32 v40, 12, v40')
        a('v_cndmask_b32_e64 v40, 0, v40, vcc')
        a(f'v_or_b32 v{108+h}, v{108+h}, v40')
    a('s_waitcnt vmcnt(0)')
    a('s_barrier')
    a.br('s_branch L1_noovf')

def consts_poll(a):
    a('s_and_b32 s60, s2, 0xf0')
    a('s_and_b32 s61, s2, 7')
    a('s_lshl_b32 s61, s61, 1')
    a('s_or_b32 s60, s60, s61')
    a('s_bfe_u32 s61, s2, 0x10003')
    a('s_or_b32 s60, s60, s61')
    a('s_lshl_b32 s60, s60, 6')
    a(f's_add_u32 s60, s60, {SLOT_OFF}')
    a(f's_add_u32 s{sSLOT}, s24, s60')
    a(f's_addc_u32 s{sSLOT+1}, s25, 0')
    a(f's_mov_b32 s{sSLOT+2}, {(NB-1)*SS + 64}')
    a(f's_mov_b32 s{sSLOT+3}, 0x20000')
    a('v_lshrrev_b32 v43, 2, v0')
    a(f'v_mul_u32_u24 v43, {SS}, v43')
    a(f'v_add_u32 v{pPA}, v{pPA}, v43')
    a(f'v_add_u32 v{pPB}, {128*SS}, v{pPA}')
    a(f'v_not_b32 v{pNE}, v{pME}')
    a('v_cmp_gt_u32 vcc, 488, v0')
    a('s_mov_b64 s[64:65], vcc')

def consts_late(a):
    a(f's_and_b32 s{sF+3}, s{sF+1}, 0xffff0000')
    a(f's_lshl_b32 s{sF+2}, s{sF+1}, 16')
    a(f's_and_b32 s{sF+1}, s{sF}, 0xffff0000')
    a(f's_lshl_b32 s{sF}, s{sF}, 16')
    srd(a, sSV, 4, 0, 0 if 'V' in opt.diag else N*512)
    srd(a, sH, 24, H_OFF, 0 if 'H' in opt.diag else N*128)
    srd(a, sOUT, 20, 0, 0 if 'S' in opt.diag else R*512, mul=R*512)
    srd(a, sOVF, 24, OVF_OFF, 0 if 'h' in opt.diag else NB*CH*4)
    a(f'v_bfe_u32 v44, v{vLANE16}, 4, 4')
    a(f'v_lshrrev_b32 v45, 8, v{vLANE16}')
    a('v_lshrrev_b32 v43, 2, v44')
    a('v_lshlrev_b32 v43, 3, v43')
    a('v_and_b32 v40, 3, v44')
    a('v_add_u32 v43, v43, v40')
    a(f's_mul_i32 s{sSTG}, s3, {STG}')
    a(f's_add_u32 s{sSTG}, s{sSTG}, {L_STG}')
    a(f's_sub_u32 s{sSD}, {L_SORT}, s{sSTG}')
    a(f'v_lshl_add_u32 v{vHA}, v43, 2, s{sSTG}')
    a('v_and_b32 v40, 1, v45')
    a('v_lshl_add_u32 v43, v40, 2, v43')
    a('v_lshrrev_b32 v40, 1, v45')
    a('v_lshl_add_u32 v43, v40, 5, v43')
    a(f'v_lshl_add_u32 v{vSTGW}, v43, 2, s{sSTG}')
    a(f'v_lshl_add_u32 v{vSTGH}, v43, 1, s{sSTG}')
    a(f'v_lshl_add_u32 v{vSTGR}, v45, 5, s{sSTG}')
    a(f'v_lshl_add_u32 v{vSTGS}, v45, 4, s{sSTG}')
    emit_Q(a, vLPV, 44, 40)
    a(f'v_lshlrev_b32 v{vLPV}, 3, v{vLPV}')
    a(f'v_lshl_add_u32 v{vLPR}, v44, 9, v{vLPH}')
    a(f'v_lshl_or_b32 v{vQQ}, v44, 16, v44')
    a(f's_mov_b32 s{sROUND}, 0')
    if opt.hd:
        a(f's_lshl_b32 s{g.sHB}, s3, 12')
        a(f's_add_u32 s{g.sHB}, s{g.sHB}, {g.L_HB}')
    a(f'v_lshrrev_b32 v40, 1, v45')
    for k in range(4):
        a(f'v_add_u32 v{pRS+k}, {2*k}, v40')
        a(f'v_lshlrev_b32 v{pRS+k}, 5, v{pRS+k}')
        a(f'v_xor_b32 v{pRS+k}, v{pRS+k}, v{vLANE16}')
    a('v_and_b32 v39, 3, v0')
    a('v_lshlrev_b32 v39, 2, v39')
    a('v_subrev_u32 v39, 1, v39')

def build_weights(a):
    a('s_and_b32 s60, s3, 1')
    a(f's_mul_i32 s60, s60, {32*384}')
    a('s_bfe_u32 s62, s3, 0x20001')
    a('s_lshl_b32 s62, s62, 1')
    a('s_add_u32 s60, s60, s62')
    a(f's_add_u32 s60, s60, {L_W2R}')
    a(f'v_mul_u32_u24 v{pWA}, 96, v{vLPH}')
    a(f'v_add3_u32 v{pWA}, v{pWA}, v{vLPV}, s60')
    a('s_lshl_b32 s60, s3, 10')
    a(f'v_add_u32 v{pWD}, s60, v{vLANE16}')
    a(f'v_lshrrev_b32 v{pWR}, 3, v{vLPH}')
    a(f'v_add_u32 v{pWR}, v{pWR}, v{vLPV}')
    a(f'v_add_u32 v{pWR}, {L_WRR}, v{pWR}')
    for p in range(3):
        for k in range(4):
            a(f'ds_read_u16 v{104+4*p+k}, v{pWR} offset:{k*384 + p*128}')
    a('s_waitcnt lgkmcnt(0)')
    for p in range(3):
        for jj in range(8):
            if p and jj == 5: a('s_waitcnt lgkmcnt(11)')
            a(f'ds_read_u16 v{64+8*(p&1)+jj}, v{pWA} offset:{p*128 + (16*(jj>>2) + (jj&3))*384}')
        if p == 0:
            for pp in range(3):
                for i in range(2):
                    a(f'v_lshl_or_b32 v{WR+2*pp+i}, v{105+4*pp+2*i}, 16, v{104+4*pp+2*i}')
        if p:
            q = p - 1
            a('s_waitcnt lgkmcnt(8)')
            for i in range(4): a(f'v_lshl_or_b32 v{80+i}, v{65+8*(q&1)+2*i}, 16, v{64+8*(q&1)+2*i}')
            a(f'ds_write_b128 v{pWD}, v[80:83] offset:{q*8192}')
    a('s_waitcnt lgkmcnt(1)')
    for i in range(4): a(f'v_lshl_or_b32 v{84+i}, v{65+2*i}, 16, v{64+2*i}')
    a(f'ds_write_b128 v{pWD}, v[84:87] offset:{2*8192}')

def gen(a):
    header(a, NAME)
    if opt.tr0 and opt.tr: a('s_memrealtime s[90:91]')
    a('s_cmp_ge_u32 s2, %d' % NB)
    a('s_cbranch_scc1 L_end')
    a('s_load_dwordx8 s[4:11], s[0:1], 0')
    a('s_load_dwordx8 s[12:19], s[0:1], 32')
    a('s_load_dwordx2 s[20:21], s[0:1], 64')
    a('s_load_dwordx2 s[24:25], s[0:1], 80')
    a('v_lshrrev_b32 v40, 6, v0')
    a('v_and_b32 v41, 63, v0')
    a('v_readfirstlane_b32 s3, v40')
    a(f'v_lshlrev_b32 v{vLANE16}, 4, v41')
    a('v_lshlrev_b32 v42, 4, v0')
    a('v_and_b32 v44, 15, v41')
    a('v_lshrrev_b32 v45, 4, v41')
    a(f'v_lshlrev_b32 v{vLPH}, 4, v45')
    a('s_and_b32 s60, s3, 3')
    a('s_lshl_b32 s60, s60, 4')
    a('v_add_u32 v46, s60, v44')
    a(f'v_lshl_add_u32 v64, v46, 9, v{vLPH}')
    a(f'v_lshl_add_u32 v65, v46, 7, v{vLPH}')
    a('v_lshrrev_b32 v43, 2, v42')
    a('s_waitcnt lgkmcnt(0)')
    if opt.tr0:
        tr_init(a)
        if opt.tr:
            a('s_mov_b32 m0, s27')
            a('s_add_u32 s27, s27, 1')
            a('s_lshl_b32 s90, s90, 6')
            a('s_or_b32 s90, s90, 49')
            a('v_writelane_b32 v11, s90, m0')
        tr(a, 48)
    srd(a, 72, 6, 0, N*6)
    srd(a, sP4, 6, 0, 0 if 'P' in opt.diag else N*6)
    a('s_lshr_b32 s63, s2, 3')
    def group():
        a('s_sub_u32 s61, s60, 37')
        a('s_cmp_ge_u32 s60, 37')
        a('s_cselect_b32 s60, s61, s60')
        a('s_lshl_b32 s61, s60, 12')
        a('s_mov_b32 m0, s61')
        a(f's_add_u32 s60, s60, {group.step}')
        for k in range(4):
            a(f'buffer_load_dwordx4 v{vLANE16}, s[72:75], s61 offen offset:{1024*k} lds')
    NG = opt.ng0
    a('s_add_u32 s60, s63, s3')
    group.step = 8
    for i in range(opt.g1st): group()
    srd(a, 76, 14, 0, 8192)
    a('s_lshl_b32 s61, s3, 10')
    a(f's_add_u32 m0, s61, {K1_W1}')
    a('s_nop 0')
    a(f'buffer_load_dwordx4 v{vLANE16}, s[76:79], s61 offen lds')
    srd(a, sRES, 4, 0, R*512, mul=R*512)
    S = 68
    a('s_cmp_lt_u32 s3, 4')
    a('s_cbranch_scc1 L1_nos')
    a(f'buffer_load_dwordx4 v[{S}:{S+3}], v64, s[{sRES}:{sRES+3}], 0 offen {opt.ssc}')
    a(f'buffer_load_dwordx4 v[{S+4}:{S+7}], v64, s[{sRES}:{sRES+3}], 0 offen offset:64 {opt.ssc}')
    a(f'v_add_u32 v64, {64*512}, v64')
    a(f'buffer_load_dwordx4 v[{S+8}:{S+11}], v64, s[{sRES}:{sRES+3}], 0 offen {opt.ssc}')
    a(f'buffer_load_dwordx4 v[{S+12}:{S+15}], v64, s[{sRES}:{sRES+3}], 0 offen offset:64 {opt.ssc}')
    a.label('L1_nos', settle=False)
    SRC, DST = 48, 56
    srd(a, 64, 8, 0, CH*4, mul=CH*4)
    srd(a, 68, 10, 0, CH*4, mul=CH*4)
    nt = 'nt' if opt.nt_edges else ''
    a('v_lshrrev_b32 v47, 1, v42')
    a('v_add_u32 v47, 8192, v47')
    a(f'buffer_load_dwordx4 v[{SRC}:{SRC+3}], v42, s[64:67], 0 offen {nt}')
    a(f'buffer_load_dwordx4 v[{DST}:{DST+3}], v42, s[68:71], 0 offen {nt}')
    a(f'buffer_load_dwordx2 v[{SRC+4}:{SRC+5}], v47, s[64:67], 0 offen {nt}')
    a(f'buffer_load_dwordx2 v[{DST+4}:{DST+5}], v47, s[68:71], 0 offen {nt}')
    a(f'v_add_u32 v47, {12288 - 512}, v43')
    a('s_sub_u32 s61, s3, 2')
    a('s_cmp_lt_u32 s61, 2')
    a('s_cselect_b32 s62, 0, 0x40000000')
    a('v_add_u32 v47, s62, v47')
    a(f'buffer_load_dword v{SRC+6}, v47, s[64:67], 0 offen {nt}')
    a(f'buffer_load_dword v{DST+6}, v47, s[68:71], 0 offen {nt}')
    a(f's_add_u32 s88, s24, {EPOCH_OFF}')
    a('s_addc_u32 s89, s25, 0')
    a(f's_load_dword s{sEP}, s[88:89], 0')
    a(f's_load_dwordx2 s[{sF}:{sF+1}], s[12:13], 0')
    for i in range(NG - opt.g1st): group()
    if not opt.tr0: tr_init(a)
    tr(a, 1)
    a('v_mov_b32 v40, 0')
    a(f'v_add_u32 v47, {K1_CNT}, v43')
    a('s_cmp_ge_u32 s3, 5')
    a('s_cbranch_scc1 L1_nozero')
    a('ds_write_b32 v47, v40')
    a.label('L1_nozero', settle=False)
    a(f's_waitcnt vmcnt({6 + 4*(NG - opt.g1st)}) lgkmcnt(0)')
    a('s_mov_b32 s84, -100')
    a(f's_mov_b32 s85, {K1_CNT}')
    a(f's_mov_b32 s86, {L_STAGE}')
    a('v_mov_b32 v47, 80')
    a('s_barrier')
    tr(a, 2)
    a('s_cmp_ge_u32 s3, 4')
    a('s_cbranch_scc1 L1_hpath')
    AS, AD = 64, 72
    BINC, BINS, ENT = 80, 88, 96
    P = 104
    RK1 = 136
    def prep(i):
        a(f'v_mul_u32_u24 v40, 5243, v{DST+i}')
        a(f'v_mul_u32_u24 v{AS+i}, 6, v{SRC+i}')
        a(f'v_lshrrev_b32 v40, 19, v40')
        a(f'v_mul_u32_u24 v{AD+i}, 6, v{DST+i}')
        a(f'v_mad_i32_i24 v41, v40, s84, v{DST+i}')
        a(f'v_lshl_add_u32 v{BINC+i}, v40, 2, s85')
        a(f'v_lshl_or_b32 v{ENT+i}, v{SRC+i}, 9, v41')
        a(f'v_mad_u32_u24 v{BINS+i}, v40, v47, s86')
        a(f'v_and_b32 v{SRC+i}, -4, v{AS+i}')
        a(f'v_and_b32 v{DST+i}, -4, v{AD+i}')
    a('s_add_u32 s60, s63, s3')
    a(f's_add_u32 s60, s60, {8*NG}')
    a('s_sub_u32 s61, s60, 37')
    a('s_cmp_ge_u32 s60, 37')
    a('s_cselect_b32 s60, s61, s60')
    group.step = 4
    rest = 37 - 8*NG
    for i in range((rest + 3)//4):
        if 4*i + 3 >= rest:
            a(f's_cmp_ge_u32 s3, {rest - 4*i}')
            a('s_cbranch_scc1 L1_tabdone')
        group()
        if opt.ilv and i == opt.ilv - 1:
            a(f's_waitcnt vmcnt({4*(NG - opt.g1st) + 4*opt.ilv})')
            prep(0); prep(1)
        if opt.ilv and i == opt.ilv: prep(2); prep(3)
        if opt.ilv and i == opt.ilv + 1: prep(4); prep(5); prep(6)
    a.label('L1_tabdone', settle=False)
    if opt.fine: tr(a, 54)
    a(f's_waitcnt vmcnt({4*(NG - opt.g1st) + 4*(rest//4)})')
    a('s_branch L1_consts')
    a.label('L1_hpath', settle=False)
    if opt.hprio: a(f's_setprio {opt.hprio}')
    srd(a, 76, 24, H_OFF, R*128, mul=R*128)
    a('v_lshrrev_b32 v66, 2, v44')
    a('v_lshl_add_u32 v66, v45, 3, v66')
    a('v_and_b32 v67, 3, v44')
    a('v_lshlrev_b32 v67, 3, v67')
    a('v_lshl_add_u32 v66, v66, 7, v67')
    a(f'v_add_u32 v66, {K1_W1}, v66')
    FR = 100
    for ht in range(4):
        for ks in range(2):
            r = FR + (ht*2+ks)*4
            if ht == 3 and ks == 0: a('s_waitcnt lgkmcnt(4)')
            for hf in range(2):
                a(f'ds_read_b64_tr_b16 v[{r+2*hf}:{r+2*hf+1}], v66 offset:{ks*4096 + ht*32 + hf*512}')
    D = 132; O = 148; Tt = 164
    a('s_waitcnt lgkmcnt(0)')
    for t in range(2):
        if t == 1:
            a('s_cmp_eq_u32 s3, 7')
            a.br('s_cbranch_scc1 L1_hdone')
        for ht in range(4):
            a(f'v_mfma_f32_16x16x32_bf16 v[{D+4*ht}:{D+4*ht+3}], v[{FR+ht*8}:{FR+ht*8+3}], v[{S+8*t}:{S+8*t+3}], 0')
            a(f'v_mfma_f32_16x16x32_bf16 v[{D+4*ht}:{D+4*ht+3}], v[{FR+ht*8+4}:{FR+ht*8+7}], v[{S+8*t+4}:{S+8*t+7}], v[{D+4*ht}:{D+4*ht+3}]')
        for grp in range(4):
            for i in range(4): a(f'v_cvt_pk_bf16_f32 v{D+4*grp+i}, 0, v{D+4*grp+i}')
            for i in range(4): a(f'v_mul_f32 v{Tt+i}, {fl(-1.4426950408889634)}, v{D+4*grp+i}')
            for i in range(4): a(f'v_exp_f32 v{Tt+i}, v{Tt+i}')
            for i in range(4): a(f'v_add_f32 v{Tt+i}, 1.0, v{Tt+i}')
            for i in range(4): a(f'v_rcp_f32 v{Tt+i}, v{Tt+i}')
            for i in range(4): a(f'v_mul_f32 v{Tt+i}, v{Tt+i}, v{D+4*grp+i}')
            a(f'v_cvt_pk_bf16_f32 v{O+8*t+2*grp}, v{Tt}, v{Tt+1}')
            a(f'v_cvt_pk_bf16_f32 v{O+8*t+2*grp+1}, v{Tt+2}, v{Tt+3}')
        if t == 0:
            O2 = O
        else:
            pass
    a.label('L1_hdone')
    if opt.fine: tr(a, 57)
    a(f'buffer_store_dwordx4 v[{O}:{O+3}], v65, s[76:79], 0 offen sc1')
    a(f'buffer_store_dwordx4 v[{O+4}:{O+7}], v65, s[76:79], 0 offen offset:64 sc1')
    a(f'v_add_u32 v65, {64*128}, v65')
    a(f'buffer_store_dwordx4 v[{O+8}:{O+11}], v65, s[76:79], 0 offen sc1')
    a(f'buffer_store_dwordx4 v[{O+12}:{O+15}], v65, s[76:79], 0 offen offset:64 sc1')
    a(f's_waitcnt vmcnt({4*(NG - opt.g1st) + 4})')
    if opt.ilv:
        for i in range(7): prep(i)
    a.label('L1_consts')
    if opt.fine: tr(a, 55)
    a('s_waitcnt lgkmcnt(0)')
    a(f's_add_u32 s{sEP}, s{sEP}, 1')
    for j in (1, 2, 3):
        a(f's_lshr_b32 s60, s{sEP}, {10*(j-1)}')
        a('s_lshl_b32 s61, s60, 24')
        a('s_lshr_b32 s60, s60, 1')
        a('s_and_b32 s60, s60, 0x180')
        a(f's_or_b32 s{sNB+j}, s60, s61')
    a(f's_xor_b32 s{sNB}, s{sNB+1}, 0xff000180')
    srd(a, sW2F, 16, 0, 64*192*2)
    srd(a, sWRR, 18, 0, 4*192*2)
    a(f'v_mov_b32 v{vMHI}, 0xffff0000')
    a('v_lshrrev_b32 v43, 2, v0')
    a('v_and_b32 v40, 0xf0, v43')
    a('v_bfe_u32 v46, v43, 1, 3')
    a('v_or_b32 v40, v40, v46')
    a('v_and_b32 v46, 1, v43')
    a('v_lshl_or_b32 v40, v46, 3, v40')
    a('v_and_b32 v46, 3, v0')
    a(f'v_lshlrev_b32 v{pPA}, 4, v46')
    a(f'v_lshlrev_b32 v{pHC}, 2, v40')
    a(f'v_add_u32 v{pHC}, {K1_CNT}, v{pHC}')
    a('v_mul_u32_u24 v40, 80, v40')
    a(f'v_add_u32 v40, v40, v{pPA}')
    a(f'v_add_u32 v{pLDS}, {L_STAGE}, v40')
    a(f'v_lshlrev_b32 v{pOFA}, 4, v0')
    a(f'v_add_u32 v{pOFB}, 8192, v{pOFA}')
    a(f'v_mov_b32 v{pME}, {M_ENT}')
    a(f'v_mov_b32 v{pM0}, {M_HDR}')
    a(f'v_cmp_eq_u32 s[{sPC0}:{sPC0+1}], 0, v46')
    a(f'v_add_u32 v{pHS}, {K1_CNT}, v{vLANE16}')
    a(f'v_cndmask_b32_e64 v{pM0}, v{pME}, v{pM0}, s[{sPC0}:{sPC0+1}]')
    a(f'v_not_b32 v{pN0}, v{pM0}')
    a(f'v_and_b32 v{pT0}, s{sNB}, v{pN0}')
    if opt.fine: tr(a, 56)
    a(f's_mov_b32 s60, {fl([opt.thr, 24.07, 23.9][opt.exact])}')
    if not opt.ilv:
        for i in range(7): prep(i)
    a(f's_mul_i32 s87, s2, {R}')
    a(f'v_lshrrev_b32 v41, 4, v{vLANE16}')
    a('v_add_u32 v132, s87, v41')
    a('v_add_u32 v133, 64, v132')
    for h in range(2):
        a(f'v_mul_u32_u24 v{132+h}, 6, v{132+h}')
        a(f'v_and_b32 v{134+h}, -4, v{132+h}')
    a('v_mov_b32 v46, 1')
    for _ in range(opt.pad1): a('v_lshlrev_b32 v40, 1, v40')
    if opt.hprio: a('s_setprio 0')
    tr(a, 3)
    a('s_cmp_ge_u32 s3, 4')
    a('s_cbranch_scc1 L1_b1')
    a('s_waitcnt vmcnt(0)')
    a.label('L1_b1', settle=False)
    a('s_waitcnt vmcnt(4) lgkmcnt(0)')
    a('s_barrier')
    tr(a, 4)
    def reads(i):
        a(f'ds_read2_b32 v[{P+4*i}:{P+4*i+1}], v{SRC+i} offset1:1')
        a(f'ds_read2_b32 v[{P+4*i+2}:{P+4*i+3}], v{DST+i} offset1:1')
    def test(i):
        p, q = P+4*i, P+4*i+2
        a(f'v_alignbyte_b32 v40, v{p+1}, v{p}, v{AS+i}')
        a(f'v_alignbyte_b32 v41, v{p+1}, v{p+1}, v{AS+i}')
        a(f'v_alignbyte_b32 v42, v{q+1}, v{q}, v{AD+i}')
        a(f'v_alignbyte_b32 v43, v{q+1}, v{q+1}, v{AD+i}')
        a(f'v_lshlrev_b32 v{p}, 16, v40')
        a(f'v_lshlrev_b32 v{q}, 16, v42')
        a(f'v_and_b32 v40, v{vMHI}, v40')
        a(f'v_and_b32 v42, v{vMHI}, v42')
        a(f'v_lshlrev_b32 v41, 16, v41')
        a(f'v_lshlrev_b32 v43, 16, v43')
        a(f'v_sub_f32 v{p}, v{p}, v{q}')
        a(f'v_sub_f32 v40, v40, v42')
        a(f'v_sub_f32 v41, v41, v43')
        if opt.exact == 2:
            for r in (p, 40, 41): a(f'v_cvt_pk_bf16_f32 v{r}, 0, v{r}')
            for r in (p, 40, 41): a(f'v_mul_f32 v{r}, v{r}, v{r}')
            for r in (p, 40, 41): a(f'v_cvt_pk_bf16_f32 v{r}, 0, v{r}')
            a(f'v_add_f32 v{p}, v{p}, v40')
            a(f'v_add_f32 v{p}, v{p}, v41')
            a(f'v_cvt_pk_bf16_f32 v{p}, 0, v{p}')
        else:
            if opt.exact == 1:
                for r in (p, 40, 41): a(f'v_cvt_pk_bf16_f32 v{r}, 0, v{r}')
            a(f'v_mul_f32 v{p}, v{p}, v{p}')
            a(f'v_fmac_f32 v{p}, v40, v40')
            a(f'v_fmac_f32 v{p}, v41, v41')
        a(f'v_cmp_ngt_f32 s[{64+2*i}:{65+2*i}], v{p}, s60')
    def rank(i):
        a(f's_mov_b64 exec, s[{64+2*i}:{65+2*i}]')
        a(f'ds_add_rtn_u32 v{RK1+i}, v{BINC+i}, v46')
        a('s_mov_b64 exec, -1')
    for i in range(6): reads(i)
    if opt.prewr:
        srd(a, 88, 24, SLOT_OFF, 16384, mul=SS)
        for k in range(4): a(f'v_mov_b32 v{168+k}, 0')
        for h in range(2):
            a(f'buffer_store_dwordx4 v[168:171], v{pOFA+h}, s[88:91], 0 offen sc1')
    if opt.pfres:
        a(f's_lshl_b32 s84, s3, 12')
        for k in range(4):
            a(f'buffer_load_dwordx4 v[164:167], v{vLANE16}, s[{sRES}:{sRES+3}], s84 offen offset:{1024*k}')
        if opt.pfres > 1:
            a('s_add_u32 s84, s84, 32768')
            for k in range(4):
                a(f'buffer_load_dwordx4 v[164:167], v{vLANE16}, s[{sRES}:{sRES+3}], s84 offen offset:{1024*k}')
    if opt.prew or opt.pfw:
        a('s_sub_u32 s84, s3, 4')
        a('s_cmp_ge_u32 s84, 3')
        a('s_cbranch_scc1 L1_notouch')
    if opt.pfw:
        a('s_lshr_b32 s85, s2, 3')
        a('s_mul_i32 s85, s85, 768')
        a('s_lshl_b32 s86, s84, 8')
        a('s_add_u32 s85, s85, s86')
        a(f'v_and_b32 v47, 0xf0, v{vLANE16}')
        a('v_add_u32 v47, s85, v47')
        a(f'buffer_load_dwordx4 v[168:171], v47, s[{sW2F}:{sW2F+3}], 0 offen')
    if opt.prew:
        srd(a, 88, 24, SLOT_OFF, 16384, mul=SS)
        a(f'v_subrev_u32 v47, 4096, v{pOFA}')
        for k in range(6):
            a('buffer_load_dwordx4 v[168:171], v47, s[88:91], 0 offen')
            if k < 5: a('v_add_u32 v47, 3072, v47')
        a(f's_mov_b32 s{sROUND}, 0')
    if opt.prew or opt.pfw:
        a.label('L1_notouch', settle=False)
    a('s_mov_b64 s[76:77], 0')
    a('s_sub_u32 s84, s3, 2')
    a('s_cmp_lt_u32 s84, 2')
    a('s_cbranch_scc0 L1_six')
    a('s_waitcnt lgkmcnt(10)')
    test(0)
    reads(6)
    a('s_waitcnt lgkmcnt(0)')
    test(6)
    a.br('s_branch L1_rest')
    a.label('L1_six')
    a('s_cmp_lg_u32 s3, 7')
    a('s_cbranch_scc1 L1_notw7')
    a('s_waitcnt lgkmcnt(8)')
    for h in range(2):
        a(f'ds_read2_b32 v[{152+2*h}:{153+2*h}], v{134+h} offset1:1')
    a('s_waitcnt lgkmcnt(0)')
    for h in range(2):
        a(f'v_alignbyte_b32 v{156+2*h}, v{153+2*h}, v{152+2*h}, v{132+h}')
        a(f'v_alignbyte_b32 v{157+2*h}, v{153+2*h}, v{153+2*h}, v{132+h}')
        a(f'v_lshlrev_b32 v{144+4*h}, 16, v{156+2*h}')
        a(f'v_and_b32 v{145+4*h}, v{vMHI}, v{156+2*h}')
        a(f'v_lshlrev_b32 v{146+4*h}, 16, v{157+2*h}')
        a(f'v_mov_b32 v{147+4*h}, 0')
    a.label('L1_notw7')
    a('s_waitcnt lgkmcnt(10)')
    test(0)
    a.label('L1_rest')
    for i in range(1, 6):
        a(f's_waitcnt lgkmcnt({2*(5-i)})')
        test(i)
    for i in (6, 0, 1, 2, 3, 4, 5):
        a(f's_mov_b64 exec, s[{64+2*i}:{65+2*i}]')
        a(f'ds_add_rtn_u32 v{RK1+i}, v{BINC+i}, v46')
    a('s_mov_b64 exec, -1')
    for _ in range(opt.pad2): a('v_lshlrev_b32 v40, 1, v40')
    a('s_waitcnt lgkmcnt(0)')
    a('s_barrier')
    tr(a, 5)
    a(f's_mul_i32 s{sT0}, s3, 3072')
    a(f's_add_u32 m0, s{sT0}, {L_W2R}')
    a(f's_lshl_b32 s{sT1}, s3, 10')
    a(f's_min_u32 s{sT2}, s{sT1}, 2048')
    for i in range(3):
        a(f'buffer_load_dwordx4 v{vLANE16}, s[{sW2F}:{sW2F+3}], s{sT0} offen offset:{1024*i} lds')
    a(f's_add_u32 m0, s{sT2}, {L_WRR}')
    a(f'ds_read_b128 v[104:107], v{pHS}')
    a(f'buffer_load_dwordx4 v{vLANE16}, s[{sWRR}:{sWRR+3}], s{sT1} offen lds')
    a(f'ds_read_b32 v108, v{pHC}')
    a(f'ds_read_b32 v109, v{pHC} offset:512')
    if opt.fine: tr(a, 50)
    for i in range(7):
        a(f'v_min_u32 v40, {CAP}, v{RK1+i}')
        a(f'v_lshl_add_u32 v{BINS+i}, v40, 2, v{BINS+i}')
    for i in range(7):
        a(f's_mov_b64 exec, s[{64+2*i}:{65+2*i}]')
        a(f'ds_write_b32 v{BINS+i}, v{ENT+i} offset:4')
    a('s_mov_b64 exec, -1')
    if opt.fine: tr(a, 51)
    def zero_counters(tag):
        a('s_cmp_ge_u32 s3, 2')
        a(f's_cbranch_scc1 L2_nozero{tag}')
        a('v_lshlrev_b32 v42, 2, v0')
        a('v_mov_b32 v44, 0')
        a(f'ds_write_b32 v42, v44 offset:{L_NCNT}')
        a.label(f'L2_nozero{tag}', settle=False)
    zero_counters('a')
    a('s_cmp_lg_u32 s3, 7')
    a('s_cbranch_scc1 L1_join')
    for h in range(2):
        a(f'ds_write_b128 v{vLANE16}, v[{144+4*h}:{147+4*h}] offset:{L_DPOS + 1024*h}')
    a.label('L1_join', settle=False)
    srd(a, 84, 24, SLOT_OFF, 16384, mul=SS)
    if opt.fine: tr(a, 52)
    n7 = 4 + [0, 4, 8][opt.pfres] + (2 if opt.prewr else 0)
    if opt.prew or opt.pfw:
        a('s_cmp_lg_u32 s3, 7')
        a('s_cbranch_scc1 L1_b3')
        a(f's_waitcnt vmcnt({n7})')
        a.label('L1_b3', settle=False)
    a('s_waitcnt vmcnt(%d) lgkmcnt(0)' % (n7 + (6 if opt.prew else 0) + (1 if opt.pfw else 0)))
    if opt.fine: tr(a, 53)
    a('v_max3_u32 v104, v104, v105, v106')
    a('v_max_u32 v104, v104, v107')
    a(f'v_cmp_lt_u32 vcc, {CAP}, v104')
    a('s_barrier')
    tr(a, 6)
    W = V
    a(f'ds_read_b128 v[{W}:{W+3}], v{pLDS}')
    a(f'ds_read_b128 v[{W+4}:{W+7}], v{pLDS} offset:{128*80}')
    a('s_cbranch_vccnz L1_ovf')
    a.label('L1_noovf', settle=False)
    for h in range(2):
        a(f's_waitcnt lgkmcnt({1-h})')
        a(f'v_cndmask_b32_e64 v{W+4*h}, v{W+4*h}, v{108+h}, s[{sPC0}:{sPC0+1}]')
        for j in (1, 2, 3):
            a(f'v_and_or_b32 v{W+4*h+j}, v{W+4*h+j}, v{pME}, s{sNB+j}')
        a(f'v_and_or_b32 v{W+4*h}, v{W+4*h}, v{pM0}, v{pT0}')
        a(f'buffer_store_dwordx4 v[{W+4*h}:{W+4*h+3}], v{pOFA+h}, s[84:87], 0 offen {opt.dumpsc}')
    tr(a, 7)
    consts_poll(a)
    if opt.wb == 1:
        emit_Q(a, vLPV, 44, 40) if False else None
    def res_image(tag):
        if tag == 'b':
            a(f'v_lshrrev_b32 v40, 9, v{vLANE16}')
            for k in range(4):
                a(f'v_add_u32 v{pRS+k}, {2*k}, v40')
                a(f'v_lshlrev_b32 v{pRS+k}, 5, v{pRS+k}')
                a(f'v_xor_b32 v{pRS+k}, v{pRS+k}, v{vLANE16}')
        a(f's_lshl_b32 s{sT0}, s3, 12')
        a(f's_add_u32 m0, s{sT0}, {L_RES}')
        a('s_cmp_ge_u32 s3, 5')
        for k in range(4):
            a(f'buffer_load_dwordx4 v{pRS+k}, s[{sRES}:{sRES+3}], s{sT0} offen offset:{1024*k} sc1 lds')
        a(f's_cbranch_scc1 L2_resdone{tag}')
        a(f's_add_u32 s{sT0}, s{sT0}, 32768')
        a(f's_add_u32 m0, s{sT0}, {L_RES}')
        a('s_cmp_eq_u32 s3, 4')
        for k in range(4):
            if k == 2: a(f's_cbranch_scc1 L2_resdone{tag}')
            a(f'buffer_load_dwordx4 v{pRS+k}, s[{sRES}:{sRES+3}], s{sT0} offen offset:{1024*k} sc1 lds')
        a.label(f'L2_resdone{tag}', settle=False)
    a(f's_mov_b32 s61, {1 << opt.spin}')
    a('s_waitcnt vmcnt(2)')
    a('s_barrier')
    tr(a, 23)
    if opt.wb == 1:
        consts_late(a); build_weights(a)
    if opt.wb == 2: consts_late(a)
    if opt.res_when == 'drain':
        res_image('a')
        a('s_waitcnt vmcnt(4)')
    elif opt.drain:
        a('s_waitcnt vmcnt(0)')
    else:
        a('s_nop 1')
    tr(a, 8)
    a(f'buffer_load_dwordx4 v[{W}:{W+3}], v{pPA}, s[{sSLOT}:{sSLOT+3}], 0 offen sc1')
    a(f'buffer_load_dwordx4 v[{W+4}:{W+7}], v{pPB}, s[{sSLOT}:{sSLOT+3}], 0 offen sc1')
    if opt.res_when == 'mid': res_image('a')
    if opt.wb == 0: consts_late(a)
    if opt.wb != 1: build_weights(a)
    a('s_waitcnt vmcnt(4)' if opt.res_when == 'mid' else 's_waitcnt vmcnt(0)')
    a.label('L2_poll')
    if opt.fine: tr(a, 24)
    for h in range(2):
        w = W + 4*h
        a(f'v_xor_b32 v{61+h}, v{pT0}, v{w}')
        a(f'v_and_b32 v{61+h}, v{pN0}, v{61+h}')
        for j in (1, 2, 3):
            a(f'v_xor_b32 v63, s{sNB+j}, v{w+j}')
            a(f'v_and_or_b32 v{61+h}, v63, v{pNE}, v{61+h}')
    a('v_cmp_ne_u32 vcc, 0, v61')
    a('v_cmp_ne_u32 s[66:67], 0, v62')
    a('s_and_b64 s[66:67], s[66:67], s[64:65]')
    a('s_or_b64 s[68:69], s[66:67], vcc')
    a.br('s_cbranch_scc0 L2_polled')
    a('s_sub_u32 s61, s61, 1')
    a('s_cmp_eq_u32 s61, 0')
    a.br('s_cbranch_scc1 L2_polled')
    if opt.sleep: a(f's_sleep {opt.sleep}')
    if opt.pollmask:
        a('s_mov_b64 exec, vcc')
        a('s_cbranch_execz L2_nopollA')
    a(f'buffer_load_dwordx4 v[{W}:{W+3}], v{pPA}, s[{sSLOT}:{sSLOT+3}], 0 offen sc1')
    if opt.pollmask:
        a.label('L2_nopollA', settle=False)
        a('s_mov_b64 exec, s[66:67]')
        a('s_cbranch_execz L2_nopollB')
    a(f'buffer_load_dwordx4 v[{W+4}:{W+7}], v{pPB}, s[{sSLOT}:{sSLOT+3}], 0 offen sc1')
    if opt.pollmask:
        a.label('L2_nopollB', settle=False)
        a('s_mov_b64 exec, -1')
    a('s_waitcnt vmcnt(0)')
    a.br('s_branch L2_poll')
    a.label('L2_polled')
    tr(a, 9)
    if opt.res_when == 'post': res_image('a')
    LIM, CNT = 56, 58
    a(f'v_mov_b32_dpp v{CNT}, v{W} quad_perm:[0,0,0,0] row_mask:0xf bank_mask:0xf')
    a(f'v_mov_b32_dpp v{CNT+1}, v{W+4} quad_perm:[0,0,0,0] row_mask:0xf bank_mask:0xf')
    for h in range(2):
        a(f'v_and_b32 v{CNT+h}, 0xfff, v{CNT+h}')
        a(f'v_min_u32 v{LIM+h}, {CAP}, v{CNT+h}')
        a(f'v_subrev_u32 v{CNT+h}, {CAP}, v{CNT+h}')
    a.label('L2_round')
    A = 60; RK = 68; T = 76
    a('v_mov_b32 v40, 1')
    a(f's_mov_b32 s60, {L_NCNT}')
    for i in range(4):
        a(f'v_add_u32 v{41+i}, {i}, v39')
    for i in range(8):
        a(f'v_cmp_lt_u32 s[{64+2*i}:{65+2*i}], v{41 + (i & 3)}, v{LIM + i//4}')
        a(f'v_and_b32 v{A+i}, 127, v{W+i}')
        a(f'v_lshl_add_u32 v{A+i}, v{A+i}, 2, s60')
    if opt.pfv: a('v_mov_b32 v84, 0x40000000')
    for i in opt.pfv:
        a(f'v_and_b32 v85, 0xfffe00, v{W+i}')
        a(f'v_cndmask_b32_e64 v85, v84, v85, s[{64+2*i}:{65+2*i}]')
        for j in range(3*opt.pfn):
            a(f'buffer_load_dword v255, v85, s[{sSV}:{sSV+3}], 0 offen offset:{128 + j*128//opt.pfn}')
        if opt.pfh:
            a('v_lshrrev_b32 v85, 2, v85')
            a(f'buffer_load_dword v255, v85, s[{sH}:{sH+3}], 0 offen {opt.hsc}')
    if opt.fine: tr(a, 61)
    a(f'v_max_i32 v41, v{CNT}, v{CNT+1}')
    a('v_cmp_lt_i32 vcc, 0, v41')
    for i in range(8):
        a(f's_mov_b64 exec, s[{64+2*i}:{65+2*i}]')
        a(f'ds_add_rtn_u32 v{RK+i}, v{A+i}, v40')
    a('s_mov_b64 exec, -1')
    if opt.res_when == 'post2':
        a(f's_cmp_lg_u32 s{sROUND}, 0')
        a('s_cbranch_scc1 L2_resdonea')
        res_image('a')
    a('s_cbranch_vccz L2_noflag')
    a(f'v_mov_b32 v41, {L_NCNT + 127*4}')
    a('ds_write_b32 v41, v40')
    a.label('L2_noflag', settle=False)
    for i in range(8):
        a(f'v_and_b32 v{W+i}, {M_ENT}, v{W+i}')
    for _ in range(opt.pad3): a('v_lshlrev_b32 v41, 1, v41')
    a('s_waitcnt lgkmcnt(0)')
    a('s_barrier')
    tr(a, 10)
    a(f's_cmp_lg_u32 s{sROUND}, 0')
    a.br('s_cbranch_scc1 L2_now2f')
    if opt.res_when == 'late': res_image('a')
    a('s_or_b32 s60, s2, s3')
    a('s_cmp_lg_u32 s60, 0')
    a.br('s_cbranch_scc1 L2_now2f')
    srd(a, 84, 24, EPOCH_OFF, 4)
    a(f'v_mov_b32 v43, s{sEP}')
    a('s_mov_b64 exec, 1')
    a('buffer_store_dword v43, off, s[84:87], 0 sc1')
    a('s_mov_b64 exec, -1')
    a.label('L2_now2f')
    a(f'v_lshrrev_b32 v41, 2, v{vLANE16}')
    a(f'v_add_u32 v41, {L_NCNT}, v41')
    a('ds_read2st64_b32 v[42:43], v41 offset1:1')
    a('s_waitcnt lgkmcnt(0)')
    a(f'v_readlane_b32 s{sMORE}, v43, 63')
    a('v_lshl_or_b32 v42, v43, 16, v42')
    a('v_mov_b32 v43, v42')
    for sh in ('row_shr:1', 'row_shr:2', 'row_shr:4', 'row_shr:8'):
        a(f'v_add_u32_dpp v43, v43, v43 {sh} row_mask:0xf bank_mask:0xf')
    a('v_add_u32_dpp v43, v43, v43 row_bcast:15 row_mask:0xa bank_mask:0xf')
    a('v_add_u32_dpp v43, v43, v43 row_bcast:31 row_mask:0xc bank_mask:0xf')
    a(f'v_readlane_b32 s{sT0}, v43, 63')
    a('v_sub_u32 v43, v43, v42')
    a(f's_and_b32 s{sT0}, s{sT0}, 0xffff')
    a(f'v_and_b32 v{vSTLO}, 0xffff, v43')
    a(f'v_lshrrev_b32 v{vSTHI}, 16, v43')
    a(f'v_add_u32 v{vSTHI}, s{sT0}, v{vSTHI}')
    if opt.fine: tr(a, 58)
    a(f'ds_write2st64_b32 v41, v{vSTLO}, v{vSTHI} offset0:2 offset1:3')
    for i in range(8):
        a(f'ds_read_b32 v{T+i}, v{A+i} offset:512')
    a(f'v_lshl_or_b32 v{vPACK}, v{vSTHI}, 16, v{vSTLO}')
    for i in range(8):
        if i % 4 == 0:
            a(f's_waitcnt lgkmcnt({4 - i})')
            for k in range(i, i+4): a(f'v_add_lshl_u32 v{T+k}, v{T+k}, v{RK+k}, 2')
        a(f's_mov_b64 exec, s[{64+2*i}:{65+2*i}]')
        a(f'ds_write_b32 v{T+i}, v{W+i} offset:{L_SORT}')
        if i % 4 == 3: a('s_mov_b64 exec, -1')
    for k, (st, d) in enumerate(((vSTLO, 32), (vSTHI, 32), (vSTLO, 64), (vSTHI, 64))):
        a(f'v_add_u32 v{T+k}, {d}, v{st}')
        a(f'v_lshlrev_b32 v{T+4+k}, 2, v{T+k}')
    a(f'v_readlane_b32 s{sT2}, v{vSTHI}, {R - 64}')
    a(f'v_lshrrev_b32 v40, 4, v{vLANE16}')
    a('v_add_u32 v41, 64, v40')
    a(f'v_mov_b32 v46, {R}')
    a(f's_mov_b32 s{sNC}, 0')
    a(f's_mov_b32 s{sC64}, s3')
    if opt.fine: tr(a, 59)
    a('s_waitcnt vmcnt(%d) lgkmcnt(0)' % (len(opt.pfv)*(3*opt.pfn + (1 if opt.pfh else 0))))
    if opt.fine: tr(a, 60)
    a('s_barrier')
    tr(a, 21)
    for k in (2, 3, 0, 1):
        a(f'ds_read_b32 v{T+4+k}, v{T+4+k} offset:{L_SORT}')
    for k in range(4):
        a(f'v_cmp_gt_u32 s[{64+2*k}:{65+2*k}], s{sT2}, v{T+k}')
    a('v_add_u32 v42, 1, v40')
    a('v_add_u32 v43, 16, v40')
    a('v_add_u32 v44, 1, v41')
    a('v_add_u32 v45, 16, v41')
    for k in (2, 3, 0, 1):
        r = T + 4 + k
        if k in (2, 0): a(f's_waitcnt lgkmcnt({2 if k == 2 else 0})')
        a(f'v_and_b32 v{r}, 127, v{r}')
        a(f'v_cndmask_b32_e64 v{r}, v46, v{r}, s[{64+2*k}:{65+2*k}]')
        a(f'v_med3_u32 v{r}, v{r}, v{42 + 2*(k & 1)}, v{43 + 2*(k & 1)}')
        a(f'v_min_u32 v{r}, v46, v{r}')
        if k == 3: a(f'v_lshl_or_b32 v{vNX64}, v{T+7}, 16, v{T+6}')
    a(f'v_lshl_or_b32 v{vNX32}, v{T+5}, 16, v{T+4}')
    if opt.fine: tr(a, 42)
    chain_loop(a, vNX64, sC64)
    if opt.fine: tr(a, 43)
    a(f's_cmp_lt_u32 s{sNC}, {R}')
    a.br('s_cbranch_scc0 L2_rounddone')
    if opt.prio: a('s_setprio 3')
    a(f's_mov_b32 s{sN0}, s{sNC}')
    chain_start(a, sE0)
    chain_step(a, vNX64)
    chain_start(a, sE1)
    if opt.cap16:
        g.walk_init(a)
        a(f's_mov_b32 s{g.sTOT}, s{sT2}')
    else:
        a(f's_sub_u32 s{sC64}, 7, s3')
        a(f's_mov_b32 s{sC32}, s3')
    if opt.mini: a.label('L2_issue', settle=False)
    a(f's_sub_u32 s{sNN}, s{sNC}, s{sN0}')
    a(f's_mov_b32 s{sXE0}, s{sE0}')
    a(f's_mov_b32 s{sXE1}, s{sE1}')
    emit(a, next_entry_read(TP))
    emit(a, next_mask(TP+4))
    a('s_waitcnt lgkmcnt(0)')
    if opt.fine: tr(a, 62)
    emit(a, next_stage(TP+4, TP+5))
    emit(a, off_reads(0))
    if opt.hd: emit(a, g.hd_reads())
    emit(a, pos_load(TP+5))
    a('s_waitcnt lgkmcnt(0)')
    emit(a, off_adds())
    emit(a, h_loads())
    if opt.hd: emit(a, g.hd_adds() + g.hd_loads())
    a(f's_mov_b32 s{sFI}, 1')
    if opt.prio: a('s_setprio %d' % {0: 0, 1: 1, 2: 1, 3: 2, 4: 2, 5: 2, 6: 2, 7: 1, 8: 2, 9: 1, 10: 2, 11: 2, 12: 1, 13: 1, 14: 1, 15: 1}[opt.yld])
    if opt.yld in (13, 14, 15):
        a('s_cmp_ge_u32 s3, 4')
        a('s_cbranch_scc1 L2_young')
        a('s_setprio 2')
        a.label('L2_young', settle=False)
    if opt.look: g.lookahead(a)
    tr(a, 22)
    a.br('s_branch L2_head_A')
    head(a, 'B')
    head(a, 'A')
    tail(a, 'toC')
    head(a, 'C')
    newitem(a)
    tail(a, 'toA')
    if opt.mini:
        head(a, 'M')
        tail(a, 'finM')
    tail(a, 'fin')
    a.label('L2_rounddone')
    tr(a, 30)
    a(f's_cmp_eq_u32 s{sMORE}, 0')
    a.br('s_cbranch_scc1 L2_fin')
    a('s_waitcnt vmcnt(0) lgkmcnt(0)')
    a('s_barrier')
    zero_counters('b')
    srd(a, sRES, 20, 0, R*512, mul=R*512)
    res_image('b')
    a('v_lshrrev_b32 v40, 2, v0')
    a(f'v_mul_u32_u24 v41, {SS}, v40')
    a(f'buffer_load_dword v42, v41, s[{sSLOT}:{sSLOT+3}], 0 offen sc1')
    a(f'v_add_u32 v41, {128*SS}, v41')
    a(f'buffer_load_dword v43, v41, s[{sSLOT}:{sSLOT+3}], 0 offen sc1')
    a('v_and_b32 v39, 3, v0')
    a('v_lshlrev_b32 v39, 2, v39')
    a(f's_lshl_b32 s{sT0}, s{sROUND}, 4')
    a(f's_add_u32 s{sT1}, s{sT0}, {CAP}')
    a(f's_add_u32 s{sROUND}, s{sROUND}, 1')
    a(f'v_mul_u32_u24 v40, {CH*4}, v40')
    a('v_lshl_add_u32 v40, v39, 2, v40')
    a(f's_lshl_b32 s{sT0}, s{sT0}, 2')
    a(f'v_add_u32 v40, s{sT0}, v40')
    a('s_waitcnt vmcnt(0)')
    for h in range(2):
        a(f'v_bfe_u32 v44, v{42+h}, 12, 12')
        a(f'v_lshl_add_u32 v44, v44, 2, v40')
        if h: a(f'v_add_u32 v44, {128*CH*4}, v44')
        a(f'buffer_load_dwordx4 v[{W+4*h}:{W+4*h+3}], v44, s[{sOVF}:{sOVF+3}], 0 offen sc1')
        a(f'v_and_b32 v{CNT+h}, 0xfff, v{42+h}')
        a(f'v_subrev_u32 v{CNT+h}, s{sT1}, v{CNT+h}')
        a(f'v_med3_i32 v{LIM+h}, v{CNT+h}, 0, 16')
        a(f'v_subrev_u32 v{CNT+h}, 16, v{CNT+h}')
    a('s_waitcnt vmcnt(0) lgkmcnt(0)')
    a('s_barrier')
    a.br('s_branch L2_round')
    a.label('L2_fin')
    if opt.tr or opt.dbg2:
        a('s_waitcnt vmcnt(0)')
        tr(a, 31)
    tr_dump(a)
    a.label('L_end')
    a('s_endpgm')
    rare_paths(a)


DOC = """;
;
;   * the entries are counting-sorted by node and cut into items of <= 16 nodes and <= 64 (later 32 or 16) edges;
;     accumulated in fp32 on top of the residual row and rounded once;
;"""

def build():
    src = open('gather_scatter__molecular_angular_painn__graph.s.ref').read().split('\n')
    head_ = []
    for ln in src:
        if not ln.startswith(';'): break
        if '@launch' in ln or 'Override launch' in ln or 'grid=ceil' in ln: continue
        head_.append(ln)
    head_.append(f'; @launch grid=({NB},1,1) block=(512,1,1) lds={K1_LDS}')
    head_ += DOC.split('\n')
    a = Asm()
    a.raw('.amdgcn_target "amdgcn-amd-amdhsa--gfx950"\n.text')
    gen(a)
    return '\n'.join(head_) + '\n' + a.text() + '.section .rodata,"a"\n' + descriptor(NAME, 256)

def final_options():
    opt.prio = True; opt.hsc = ''; opt.earlyh = True; opt.prew = False; opt.pfw = False; opt.g1st = 1; opt.yld = 5
    opt.wb = 1; opt.sleep = 0; opt.drain = False; opt.nt_edges = True; opt.outst = 'sc1 nt'; opt.res_when = 'post'
    opt.mini = True; opt.cap16 = 54; opt.earlyst = True

if __name__ == '__main__':
    if 'final' in sys.argv: sys.argv.remove('final'); final_options()
    outp = sys.argv[1]
    for kv in sys.argv[2:]:
        k, val = kv.split('=', 1)
        setattr(opt, k, type(getattr(opt, k))(eval(val)))
    open(outp, 'w').write(build())
```
